```python
import torch

def _softmax(x, axis=-1):
    return torch.softmax(x, dim=axis)
def _gelu(x):
    return torch.nn.functional.gelu(x, approximate="tanh")
def _silu(x):
    return torch.nn.functional.silu(x)
def _sigmoid(x):
    return torch.sigmoid(x)
def _layernorm(x, axis=-1, eps=1e-5):
    m = x.mean(dim=axis, keepdim=True)
    v = x.var(dim=axis, keepdim=True, unbiased=False)
    return (x - m) / torch.sqrt(v + eps)
def _scatter_add(tgt, idx, src, axis=0):
    return tgt.clone().index_add_(axis, idx, src)
def _segment_sum(src, seg, n):
    out = torch.zeros((n,) + src.shape[1:], dtype=src.dtype)
    return out.index_add_(0, seg, src)
def _pad(x, pw):
    flat = tuple(v for pair in reversed(pw) for v in pair)
    return torch.nn.functional.pad(x, flat)

kernel_name = 'gated_mix__mha_block__softmax_full_mha__prompt'

def setup_inputs():

    _w = (lambda a: (lambda t: t.to(torch.bfloat16) if t.is_floating_point() else t)(torch.as_tensor(a)))
    def _A_setup():
        B, S, D, H = 1, 2048, 1024, 32
        return {
            "x": _w((lambda *s: torch.randn(*s, dtype=torch.bfloat16) * 0.05)(B, S, D)),
            "wqkv": _w((lambda *s: torch.randn(*s, dtype=torch.bfloat16) * 0.8)(D, 3 * D)),
            "wo": _w((lambda *s: torch.randn(*s, dtype=torch.bfloat16) * 0.05)(D, D)),
        }
    _A_in = _A_setup()

    def _B_setup():
        B, S, D = 1, 2048, 1024
        return {
            "x": _w((lambda *s: torch.randn(*s, dtype=torch.bfloat16) * 0.05)(B, S, D)),
            "wqkv": _w((lambda *s: torch.randn(*s, dtype=torch.bfloat16) * 0.8)(D, 3 * D)),
            "wo": _w((lambda *s: torch.randn(*s, dtype=torch.bfloat16) * 0.05)(D, D)),
        }
    _B_in = _B_setup()

    return {
        "A_x": _A_in["x"],
        "A_wqkv": _A_in["wqkv"],
        "A_wo": _A_in["wo"],
        "B_x": _B_in["x"],
        "B_wqkv": _B_in["wqkv"],
        "B_wo": _B_in["wo"],
        "gate_w": _w((lambda *s: torch.randn(*s, dtype=torch.bfloat16) * 0.05)(1024) * 16.0),
    }

def reference(A_x, A_wqkv, A_wo, B_x, B_wqkv, B_wo, gate_w):
    def _A_ref(x, wqkv, wo):
        B, S, D = x.shape
        H = 32
        Dh = D // H
        qkv = (lambda x, *d: x.permute(*d))((x @ wqkv).reshape(B, S, 3, H, Dh), 2, 0, 3, 1, 4)
        q, k, v = qkv[0], qkv[1], qkv[2]
        scores = torch.einsum("bhqd,bhkd->bhqk", q, k) * (Dh ** -0.5)
        p = _softmax(scores, axis=-1)
        o = torch.einsum("bhqk,bhkd->bhqd", p, v)
        return (lambda x, *d: x.permute(*d))(o, 0, 2, 1, 3).reshape(B, S, D) @ wo

    def _B_ref(x, wqkv, wo):
        B, S, D = x.shape
        H = 32; Dh = D // H
        qkv = (lambda x, *d: x.permute(*d))((x @ wqkv).reshape(B, S, 3, H, Dh), 2, 0, 3, 1, 4)
        q, k, v = qkv[0], qkv[1], qkv[2]
        scale = Dh ** -0.5
        scores = torch.einsum("bhqd,bhkd->bhqk", q, k) * scale
        p = _softmax(scores, axis=-1)
        o = torch.einsum("bhqk,bhkd->bhqd", p, v)
        return (lambda x, *d: x.permute(*d))(o, 0, 2, 1, 3).reshape(B, S, D) @ wo

    x = A_x
    g = _sigmoid((x * gate_w).sum(-1, keepdims=True))
    a = _A_ref(x, A_wqkv, A_wo)
    b = _B_ref(x, B_wqkv, B_wo)
    return g * a + (1 - g) * b
```

```python
class Asm:
    def __init__(self):
        self.lines = []
        self.uid = 0
    def __call__(self, s):
        for l in s.split("\n"):
            l = l.strip()
            if l:
                self.lines.append(("" if l.endswith(":") or l.startswith(".") or l.startswith(";") else "    ") + l)
    def label(self, base):
        self.uid += 1
        return f"L_{base}_{self.uid}"
    def text(self):
        return "\n".join(self.lines) + "\n"

def vr(a, n=1):
    return f"v{a}" if n == 1 else f"v[{a}:{a+n-1}]"
def sr(a, n=1):
    return f"s{a}" if n == 1 else f"s[{a}:{a+n-1}]"

class VmTracker:
    def __init__(self):
        self.ops = []
    def issue(self, tag):
        self.ops.append(tag)
    def wait_count(self, pred):
        last = -1
        for i, t in enumerate(self.ops):
            if pred(t):
                last = i
        n = len(self.ops) - 1 - last
        self.ops = self.ops[last + 1:]
        return n
```

```python
from asm import Asm, vr, sr, VmTracker

NAME12 = "gated_mix__mha_block__softmax_full_mha__prompt_kernel"
WS_KV = 0
WS_O = 16 << 20
WS_G = 24 << 20
WS_DBG = 32 << 20
WS_SIZE = 0x10000000
LOG2E = 1.4426950408889634
QSCALE = LOG2E / (32 ** 0.5)

import struct
def f2u(x): return struct.unpack("<I", struct.pack("<f", x))[0]

SRD_X, SRD_W, SRD_WS, SRD_DBG, SRD_GW = 8, 12, 16, 20, 24
sW, sHH, sTQ, sHP, sTB = 28, 29, 30, 31, 32
sW1K = 33
sXJ = 34
sWJ = 35
sRING = 36
sRINGW = 37
sJ = 38
sT0, sT1, sT2, sT3 = 40, 41, 42, 43
sXQ = 44
sKVSRC = 45
sSLOT = 46
sBLK = 47
sM = 48
sM2 = 50
sOOFF = 52
sCNT = 53
vLANE = 0
vDX, vDW, vXP, vWP, vXA, vW0 = 2, 3, 4, 5, 6, 7
vL16 = 10
vXB = 11
vT = 12
FR = [64, 84]
ACC = 160
QF = 16
OA = 32
LA = 64
NM = 72
SS = 104
PP = 136
KF = 144
VF = 152
ONES = 160
vCUR, vNXT = 2, 3

RING = 20 * 8192

def wrap_add(a, dst, src, const, tmp):
    a(f"s_add_u32 {sr(tmp)}, {sr(src)}, {const}")
    a(f"s_sub_u32 {dst}, {sr(tmp)}, {RING}")
    a(f"s_cselect_b32 {dst}, {sr(tmp)}, {dst}")

def prologue(a, opt):
    a(f"""
    s_cmp_ge_u32 s2, 256
    s_cbranch_scc1 L_end12
    s_load_dwordx4 s[56:59], s[0:1], 0
    s_load_dwordx2 s[60:61], s[0:1], 32
    s_load_dwordx2 s[62:63], s[0:1], 48
    s_load_dwordx4 s[64:67], s[0:1], 64
    v_lshrrev_b32 v1, 6, v0
    v_and_b32 v0, 63, v0
    s_nop 0
    v_readfirstlane_b32 {sr(sW)}, v1
    s_and_b32 s3, s2, 7
    s_lshr_b32 s4, s2, 3
    s_and_b32 s5, s4, 3
    s_lshl_b32 s3, s3, 2
    s_add_u32 {sr(sHP)}, s3, s5
    s_lshr_b32 {sr(sTB)}, s4, 2
    s_lshr_b32 {sr(sHH)}, {sr(sW)}, 2
    s_and_b32 {sr(sTQ)}, {sr(sW)}, 3
    s_lshl_b32 {sr(sW1K)}, {sr(sW)}, 10
    s_waitcnt lgkmcnt(0)
    s_mov_b32 {sr(SRD_X)}, s56
    s_mov_b32 {sr(SRD_X+1)}, s57
    s_mov_b32 {sr(SRD_X+2)}, {2048*1024*2}
    s_mov_b32 {sr(SRD_X+3)}, 0x00020000
    s_cmp_ge_u32 {sr(sHP)}, 16
    s_cselect_b32 {sr(SRD_W)}, s60, s58
    s_cselect_b32 {sr(SRD_W+1)}, s61, s59
    s_mov_b32 {sr(SRD_W+2)}, {1024*3072*2}
    s_mov_b32 {sr(SRD_W+3)}, 0x00020000
    s_mov_b32 {sr(SRD_WS)}, s66
    s_mov_b32 {sr(SRD_WS+1)}, s67
    s_mov_b32 {sr(SRD_WS+2)}, {WS_SIZE}
    s_mov_b32 {sr(SRD_WS+3)}, 0x00020000
    s_mov_b32 {sr(SRD_DBG)}, s64
    s_mov_b32 {sr(SRD_DBG+1)}, s65
    s_mov_b32 {sr(SRD_DBG+2)}, 256
    s_mov_b32 {sr(SRD_DBG+3)}, 0x00020000
    s_mov_b32 {sr(SRD_GW)}, s62
    s_mov_b32 {sr(SRD_GW+1)}, s63
    s_mov_b32 {sr(SRD_GW+2)}, 2048
    s_mov_b32 {sr(SRD_GW+3)}, 0x00020000
    """)
    a(f"""
    s_lshl_b32 {sr(sT0)}, {sr(sTB)}, 8
    s_lshl_b32 {sr(sT1)}, {sr(sHP)}, 3
    s_add_u32 {sr(sT0)}, {sr(sT0)}, {sr(sT1)}
    s_add_u32 {sr(sT0)}, {sr(sT0)}, {sr(sW)}
    s_lshl_b32 {sr(sT2)}, {sr(sT0)}, 11
    v_lshlrev_b32 v12, 5, v0
    buffer_load_dwordx4 v[16:19], v12, {sr(SRD_X,4)}, {sr(sT2)} offen
    buffer_load_dwordx4 v[20:23], v12, {sr(SRD_X,4)}, {sr(sT2)} offen offset:16
    buffer_load_dwordx4 v[24:27], v12, {sr(SRD_GW,4)}, 0 offen
    buffer_load_dwordx4 v[28:31], v12, {sr(SRD_GW,4)}, 0 offen offset:16
    s_lshl_b32 {sr(sT3)}, {sr(sT0)}, 2
    """)
    a(f"""
    v_lshrrev_b32 v13, 3, v0                 ; r8
    v_and_b32 v14, 7, v0                     ; c'
    s_and_b32 {sr(sT0)}, {sr(sW)}, 1
    s_lshl_b32 {sr(sT0)}, {sr(sT0)}, 2
    v_lshrrev_b32 v15, 1, v13                ; r8>>1 (0..3)
    v_add_u32 v1, {sr(sT0)}, v15             ; 4*(w&1) + (r8>>1)
    v_xor_b32 v1, v1, v14                    ; cX
    s_lshl_b32 {sr(sT1)}, {sr(sW)}, 3
    v_add_u32 v13, {sr(sT1)}, v13            ; 8w + r8
    v_lshlrev_b32 {vr(vDX)}, 11, v13
    v_lshl_add_u32 {vr(vDX)}, v1, 4, {vr(vDX)}
    v_and_b32 v15, 1, v15
    v_lshlrev_b32 v15, 2, v15
    v_xor_b32 v15, v15, v14                  ; cW
    s_mov_b32 {sr(sT1)}, 6144
    v_mul_lo_u32 {vr(vDW)}, v13, {sr(sT1)}
    v_lshl_add_u32 {vr(vDW)}, v15, 4, {vr(vDW)}
    v_and_b32 v13, 31, v0
    v_lshrrev_b32 v14, 5, v0                 ; h
    v_bfe_u32 v15, v13, 1, 3
    v_xor_b32 v15, v15, v14
    v_lshlrev_b32 {vr(vXP)}, 7, v13
    v_lshl_add_u32 {vr(vXP)}, v15, 4, {vr(vXP)}
    v_bfe_u32 v13, v0, 2, 2                  ; r
    v_lshl_add_u32 v1, v14, 3, v13           ; 8h + r
    v_lshlrev_b32 {vr(vWP)}, 7, v1
    v_bfe_u32 v15, v0, 4, 1                  ; g
    v_lshlrev_b32 v15, 1, v15
    v_bfe_u32 v1, v0, 1, 1                   ; c>>1
    v_add_u32 v15, v15, v1
    s_lshl_b32 {sr(sT1)}, {sr(sHH)}, 2
    v_add_u32 v15, {sr(sT1)}, v15            ; cc
    v_lshrrev_b32 v13, 1, v13
    v_lshlrev_b32 v13, 2, v13
    v_xor_b32 v15, v15, v13
    v_lshl_add_u32 {vr(vWP)}, v15, 4, {vr(vWP)}
    v_and_b32 v1, 1, v0
    v_lshl_add_u32 {vr(vWP)}, v1, 3, {vr(vWP)}
    v_lshlrev_b32 {vr(vL16)}, 4, v0
    """)
    a(f"""
    s_lshl_b32 {sr(sXJ)}, {sr(sTB)}, 19          ; tb*256*2048
    s_and_b32 {sr(sWJ)}, {sr(sHP)}, 15
    s_lshl_b32 {sr(sWJ)}, {sr(sWJ)}, 7           ; hpl*128
    s_add_u32 {sr(sXQ)}, {sr(sTQ)}, 3
    s_lshl_b32 {sr(sXQ)}, {sr(sXQ)}, 13
    """)

def dma_unit_static(a, g):
    j, u = divmod(g, 7)
    a(f"s_add_u32 m0, {sr(sW1K)}, {(g % 20) * 8192}")
    if u < 3:
        a(f"s_add_u32 {sr(sT0)}, {sr(sWJ)}, {j * 64 * 6144 + u * 2048}")
        a(f"buffer_load_dwordx4 {vr(vDW)}, {sr(SRD_W,4)}, {sr(sT0)} offen lds")
    else:
        a(f"s_add_u32 {sr(sT0)}, {sr(sXJ)}, {j * 128 + (u - 3) * 131072}")
        a(f"buffer_load_dwordx4 {vr(vDX)}, {sr(SRD_X,4)}, {sr(sT0)} offen lds")

def gate_compute(a):
    a("v_mov_b32 v12, 0")
    for i in range(8):
        x, w = 16 + i, 24 + i
        a(f"""
        v_lshlrev_b32 v13, 16, v{x}
        v_and_b32 v14, 0xffff0000, v{x}
        v_lshlrev_b32 v15, 16, v{w}
        v_and_b32 v1, 0xffff0000, v{w}
        v_mul_f32 v13, v13, v15
        v_mul_f32 v14, v14, v1
        v_cvt_pk_bf16_f32 v13, v13, v14
        v_lshlrev_b32 v14, 16, v13
        v_and_b32 v13, 0xffff0000, v13
        v_add_f32 v12, v12, v14
        v_add_f32 v12, v12, v13
        """)
    for sh in (1, 2, 4, 8):
        a(f"s_nop 1\nv_add_f32_dpp v12, v12, v12 row_shr:{sh} row_mask:0xf bank_mask:0xf bound_ctrl:0")
    a("s_nop 1\nv_add_f32_dpp v12, v12, v12 row_bcast:15 row_mask:0xa bank_mask:0xf")
    a("s_nop 1\nv_add_f32_dpp v12, v12, v12 row_bcast:31 row_mask:0xc bank_mask:0xf")
    a(f"""
    s_nop 1
    v_cvt_pk_bf16_f32 v12, v12, v12
    v_lshlrev_b32 v12, 16, v12
    v_mul_f32 v12, {hex(f2u(-LOG2E))}, v12
    v_exp_f32 v12, v12
    s_nop 0
    v_add_f32 v12, 1.0, v12
    v_rcp_f32 v12, v12
    s_nop 0
    v_cvt_pk_bf16_f32 v12, v12, v12
    v_lshlrev_b32 v12, 16, v12
    v_mov_b32 v13, {WS_G}
    v_cmp_eq_u32 vcc, 63, v0
    s_and_saveexec_b64 {sr(sM,2)}, vcc
    buffer_store_dword v12, v13, {sr(SRD_WS,4)}, {sr(sT3)} offen
    s_mov_b64 exec, {sr(sM,2)}
    """)

def frag(set_, name):
    off = {"X0": 0, "X1": 4, "Wq": 8, "Wk": 12, "Wv": 16}[name]
    return FR[set_] + off

def gemm_reads(ks, set_):
    r = []
    r.append(f"ds_read_b128 {vr(frag(set_,'X0'),4)}, {vr(vXA)}")
    for u, nm in enumerate(("Wq", "Wk", "Wv")):
        b = frag(set_, nm)
        r.append(f"ds_read_b64_tr_b16 {vr(b,2)}, {vr(vW0+u)} offset:{ks*2048}")
        r.append(f"ds_read_b64_tr_b16 {vr(b+2,2)}, {vr(vW0+u)} offset:{ks*2048+512}")
        if u == 0:
            r.append(f"ds_read_b128 {vr(frag(set_,'X1'),4)}, {vr(vXA)} offset:4096")
    return r

def gemm_mfmas(set_):
    m = []
    X0, X1 = frag(set_, "X0"), frag(set_, "X1")
    Wq, Wk, Wv = frag(set_, "Wq"), frag(set_, "Wk"), frag(set_, "Wv")
    def mf(acc, A, B): return f"v_mfma_f32_32x32x16_bf16 {vr(acc,16)}, {vr(A,4)}, {vr(B,4)}, {vr(acc,16)}"
    m.append(mf(ACC + 0, Wq, X0))
    m.append(mf(ACC + 32, Wk, X0))
    m.append(mf(ACC + 64, X0, Wv))
    m.append(mf(ACC + 16, Wq, X1))
    m.append(mf(ACC + 48, Wk, X1))
    m.append(mf(ACC + 80, X1, Wv))
    return m

def set_read_bases(a):
    for u in range(3):
        if u == 0:
            a(f"v_add_u32 {vr(vW0)}, {sr(sRING)}, {vr(vWP)}")
        else:
            wrap_add(a, sr(sT1), sRING, u * 8192, sT0)
            a(f"v_add_u32 {vr(vW0+u)}, {sr(sT1)}, {vr(vWP)}")
    a(f"s_add_u32 {sr(sT0)}, {sr(sRING)}, {sr(sXQ)}")
    a(f"s_sub_u32 {sr(sT1)}, {sr(sT0)}, {RING}")
    a(f"s_cselect_b32 {sr(sT1)}, {sr(sT0)}, {sr(sT1)}")
    a(f"v_add_u32 {vr(vXB)}, {sr(sT1)}, {vr(vXP)}")

def kstep(a, ks, cur, next_ks, extra=None):
    m = gemm_mfmas(cur)
    r = gemm_reads(next_ks, cur ^ 1) if next_ks is not None else []
    extra = list(extra or [])
    if next_ks is not None:
        a(f"v_xor_b32 {vr(vXA)}, {next_ks << 5}, {vr(vXB)}")
    gaps = [[] for _ in range(6)]
    for i, x in enumerate(r):
        gaps[min(i // 3, 5)].append(x)
    gi = 2
    for x in extra:
        gaps[gi].append(x)
        gi = gi + 1 if gi < 5 else 2
    for i in range(6):
        a(m[i])
        for x in gaps[i]:
            a(x)

def dma_group(i):
    s = []
    s.append(f"s_add_u32 {sr(sT2)}, {sr(sRINGW)}, {i * 8192}")
    s.append(f"s_sub_u32 m0, {sr(sT2)}, {RING}")
    s.append(f"s_cselect_b32 m0, {sr(sT2)}, m0")
    if i == 0:
        s.append(f"s_add_u32 {sr(sT3)}, {sr(sXJ)}, {3 * 131072 - 128}")
        s.append(f"buffer_load_dwordx4 {vr(vDX)}, {sr(SRD_X,4)}, {sr(sT3)} offen lds")
    elif i <= 3:
        s.append(f"s_add_u32 {sr(sT3)}, {sr(sWJ)}, {(i - 1) * 2048}")
        s.append(f"buffer_load_dwordx4 {vr(vDW)}, {sr(SRD_W,4)}, {sr(sT3)} offen lds")
    else:
        s.append(f"s_add_u32 {sr(sT3)}, {sr(sXJ)}, {(i - 4) * 131072}")
        s.append(f"buffer_load_dwordx4 {vr(vDX)}, {sr(SRD_X,4)}, {sr(sT3)} offen lds")
    return "\n".join(s)

def gemm_stage(a, ndma, vm_wait, last=False):
    for ks in range(3):
        a("s_waitcnt lgkmcnt(0)")
        kstep(a, ks, ks & 1, ks + 1)
    if vm_wait is not None:
        a(f"s_waitcnt vmcnt({vm_wait}) lgkmcnt(0)")
    else:
        a("s_waitcnt lgkmcnt(0)")
    a("s_barrier")
    a(f"s_add_u32 {sr(sRINGW)}, {sr(sRING)}, {sr(sW1K)}")
    wrap_add(a, sr(sRING), sRING, 7 * 8192, sT0)
    if not last:
        set_read_bases(a)
    extra = [dma_group(i) for i in range(ndma)]
    kstep(a, 3, 1, None if last else 0, extra)
    a(f"s_add_u32 {sr(sXJ)}, {sr(sXJ)}, 128")
    a(f"s_add_u32 {sr(sWJ)}, {sr(sWJ)}, {64 * 6144}")

def gemm(a, opt):
    for g in range(20):
        dma_unit_static(a, g)
    a(f"s_add_u32 {sr(sXJ)}, {sr(sXJ)}, {3 * 128}")
    a(f"s_add_u32 {sr(sWJ)}, {sr(sWJ)}, {3 * 64 * 6144}")
    for i in range(96):
        a(f"v_mov_b32 v{ACC + i}, 0")
    a("s_waitcnt vmcnt(20)")
    gate_compute(a)
    a(f"s_mov_b32 {sr(sRING)}, 0")
    set_read_bases(a)
    a("s_waitcnt vmcnt(14)")
    a("s_barrier")
    a(f"v_mov_b32 {vr(vXA)}, {vr(vXB)}")
    for x in gemm_reads(0, 0):
        a(x)
    gemm_stage(a, 7, 7)
    a(f"s_mov_b32 {sr(sJ)}, 12")
    lab = a.label("gemm")
    a(".p2align 6")
    a(f"{lab}:")
    gemm_stage(a, 7, 6)
    a(f"s_sub_u32 {sr(sJ)}, {sr(sJ)}, 1")
    a(f"s_cmp_lg_u32 {sr(sJ)}, 0")
    a(f"s_cbranch_scc1 {lab}")
    gemm_stage(a, 1, 6)
    gemm_stage(a, 0, 0)
    gemm_stage(a, 0, None, last=True)
    a("s_nop 15")

def gemm_epilogue(a, opt):
    a(f"s_mov_b32 {sr(sT0)}, {hex(f2u(QSCALE))}")
    for tile in (2, 3, 4, 5):
        b = ACC + 16 * tile
        for i in range(8):
            a(f"v_cvt_pk_bf16_f32 v{b+i}, v{b+2*i}, v{b+2*i+1}")
    a(f"""
    s_lshl_b32 {sr(sT1)}, {sr(sHP)}, 1
    s_add_u32 {sr(sT1)}, {sr(sT1)}, {sr(sHH)}
    s_lshl_b32 {sr(sKVSRC)}, {sr(sT1)}, 18
    s_lshl_b32 {sr(sT1)}, {sr(sTB)}, 15
    s_lshl_b32 {sr(sT2)}, {sr(sTQ)}, 13
    s_add_u32 {sr(sT1)}, {sr(sT1)}, {sr(sT2)}
    s_add_u32 {sr(sT1)}, {sr(sT1)}, {sr(sKVSRC)}
    s_add_u32 {sr(sT2)}, {sr(sT1)}, 4096
    """)
    for tt in range(2):
        so = sT1 if tt == 0 else sT2
        kb, vb = ACC + 32 + 16 * tt, ACC + 64 + 16 * tt
        a(f"buffer_store_dwordx4 {vr(kb,4)}, {vr(vL16)}, {sr(SRD_WS,4)}, {sr(so)} offen sc1")
        a(f"buffer_store_dwordx4 {vr(kb+4,4)}, {vr(vL16)}, {sr(SRD_WS,4)}, {sr(so)} offen offset:1024 sc1")
        a(f"buffer_store_dwordx4 {vr(vb,4)}, {vr(vL16)}, {sr(SRD_WS,4)}, {sr(so)} offen offset:2048 sc1")
        a(f"buffer_store_dwordx4 {vr(vb+4,4)}, {vr(vL16)}, {sr(SRD_WS,4)}, {sr(so)} offen offset:3072 sc1")
    a(f"""
    s_lshr_b32 {sr(sT1)}, {sr(sTQ)}, 1
    s_lshl_b32 {sr(sT1)}, {sr(sT1)}, 15
    s_lshl_b32 {sr(sT2)}, {sr(sHH)}, 14
    s_add_u32 {sr(sT1)}, {sr(sT1)}, {sr(sT2)}
    s_and_b32 {sr(sT2)}, {sr(sTQ)}, 1
    s_lshl_b32 {sr(sT2)}, {sr(sT2)}, 13
    s_add_u32 {sr(sT1)}, {sr(sT1)}, {sr(sT2)}
    v_add_u32 v12, {sr(sT1)}, {vr(vL16)}
    """)
    for tt in range(2):
        kb, vb = ACC + 32 + 16 * tt, ACC + 64 + 16 * tt
        a(f"ds_write_b128 v12, {vr(kb,4)} offset:{tt*4096}")
        a(f"ds_write_b128 v12, {vr(kb+4,4)} offset:{tt*4096+1024}")
        a(f"ds_write_b128 v12, {vr(vb,4)} offset:{tt*4096+2048}")
        a(f"ds_write_b128 v12, {vr(vb+4,4)} offset:{tt*4096+3072}")
    for tt in range(2):
        b = ACC + 16 * tt
        for i in range(16):
            a(f"v_mul_f32 v{b+i}, {sr(sT0)}, v{b+i}")
        for i in range(8):
            a(f"v_cvt_pk_bf16_f32 v{QF+8*tt+i}, v{b+2*i}, v{b+2*i+1}")
    if opt.get("dump_q"):
        a(f"""
        s_lshl_b32 {sr(sT1)}, s2, 3
        s_add_u32 {sr(sT1)}, {sr(sT1)}, {sr(sW)}
        s_lshl_b32 {sr(sT1)}, {sr(sT1)}, 12
        s_add_u32 {sr(sT1)}, {sr(sT1)}, {WS_DBG}
        """)
        for i in range(4):
            a(f"buffer_store_dwordx4 {vr(QF+4*i,4)}, {vr(vL16)}, {sr(SRD_WS,4)}, {sr(sT1)} offen offset:{i*1024}")

def attn_unit(a, t, x, hooks):
    S = SS + 16 * x
    Sn = SS + 16 * (x ^ 1)
    xn = x ^ 1
    xp = x ^ 1
    Qn = QF + 8 * xn
    P0, P1 = PP, PP + 4
    def M(d, A, B, C): return f"v_mfma_f32_32x32x16_bf16 {vr(d,16)}, {vr(A,4)}, {vr(B,4)}, {vr(C,16)}"
    def m(d, A, B): return f"v_mfma_f32_16x16x32_bf16 {vr(d,4)}, {vr(A,4)}, {vr(B,4)}, {vr(d,4)}"
    e = lambda i: f"v_exp_f32 v{S+i}, v{S+i}"
    c = lambda i: f"v_cvt_pk_bf16_f32 v{PP+i}, v{S+2*i}, v{S+2*i+1}"
    mf = [M(Sn, KF, Qn, NM + 16 * xn),
          M(OA + 16 * xp, VF + 4, P1, OA + 16 * xp),
          m(LA + 4 * xp, ONES, P1),
          M(Sn, KF + 4, Qn + 4, Sn),
          M(OA + 16 * x, VF, P0, OA + 16 * x),
          m(LA + 4 * x, ONES, P0)]
    va = [[e(0), e(1), e(2)], [e(3), e(4), e(5)], [e(6), e(7), c(0), c(1), c(2), c(3)],
          [e(8), e(9), e(10)], [e(11), e(12), e(13)], [e(14), e(15), c(4), c(5), c(6), c(7)]]
    for g in range(6):
        a(mf[g])
        for h in hooks.get(g, []):
            a(h)
        for v in va[g]:
            a(v)

def kv_addr(tile, f):
    if tile < 4:
        return vCUR, tile * 4096 + f * 1024
    return vNXT, f * 1024

def rd(dst, tile, f):
    b, o = kv_addr(tile, f)
    return f"ds_read_b128 {vr(dst,4)}, {vr(b)} offset:{o}"

def attn_dma4(slot_expr_s, src_s):
    pass

def attention(a, opt):
    for i in range(32): a(f"v_mov_b32 v{OA+i}, 0")
    for i in range(8): a(f"v_mov_b32 v{LA+i}, 0")
    for i in range(8): a(f"v_mov_b32 v{PP+i}, 0")
    for i in range(4): a(f"v_mov_b32 v{VF+4+i}, 0")
    a(f"""
    v_bfe_u32 v12, v0, 2, 1
    v_bfe_u32 v13, v0, 4, 1
    v_cmp_eq_u32 vcc, v12, v13
    v_mov_b32 v14, 0x3f803f80
    s_nop 0
    v_cndmask_b32 v{ONES}, 0, v14, vcc
    v_mov_b32 v{ONES+1}, v{ONES}
    v_mov_b32 v{ONES+2}, v{ONES}
    v_mov_b32 v{ONES+3}, v{ONES}
    s_lshl_b32 {sr(sT0)}, {sr(sHH)}, 14
    v_add_u32 {vr(vCUR)}, {sr(sT0)}, {vr(vL16)}
    v_add_u32 {vr(vNXT)}, 32768, {vr(vCUR)}
    """)
    a(f"""
    s_lshl_b32 {sr(sT0)}, {sr(sTQ)}, 12
    s_add_u32 {sr(sKVSRC)}, {sr(sKVSRC)}, {sr(sT0)}
    s_lshl_b32 {sr(sCNT)}, {sr(sHP)}, 2
    s_waitcnt lgkmcnt(0)
    s_barrier
    """)
    a(rd(KF, 0, 0)); a(rd(KF + 4, 0, 1)); a(rd(VF, 0, 2))
    a("s_waitcnt lgkmcnt(0)")
    for x in range(2):
        S, Q = SS + 16 * x, QF + 8 * x
        a(f"v_mfma_f32_32x32x16_bf16 {vr(S,16)}, {vr(KF,4)}, {vr(Q,4)}, 0")
        a(f"v_mfma_f32_32x32x16_bf16 {vr(S,16)}, {vr(KF+4,4)}, {vr(Q+4,4)}, {vr(S,16)}")
    a("s_nop 15")
    for x in range(2):
        S = SS + 16 * x
        a(f"v_max3_f32 v12, v{S}, v{S+1}, v{S+2}")
        for i in range(3, 15, 2):
            a(f"v_max3_f32 v12, v12, v{S+i}, v{S+i+1}")
        a(f"v_max_f32 v12, v12, v{S+15}")
        a(f"""
        v_mov_b32 v13, v12
        s_nop 1
        v_permlane32_swap_b32 v13, v12
        s_nop 1
        v_max_f32 v12, v12, v13
        v_sub_f32 v12, 0, v12
        """)
        for i in range(16):
            a(f"v_mov_b32 v{NM+16*x+i}, v12")
    a("s_nop 1")
    a(f"v_mfma_f32_32x32x16_bf16 {vr(SS,16)}, {vr(KF,4)}, {vr(QF,4)}, {vr(NM,16)}")
    a(f"v_mfma_f32_32x32x16_bf16 {vr(SS,16)}, {vr(KF+4,4)}, {vr(QF+4,4)}, {vr(SS,16)}")
    a(f"s_mov_b32 {sr(sJ)}, 0")
    a(f"s_mov_b32 {sr(sSLOT)}, {3 * 32768}")
    a("s_nop 15")
    loop = a.label("attn")
    a(".p2align 6")
    a(f"{loop}:")
    def dma_block(slot_s, blk_add):
        return
    for t in range(4):
        if t == 1:
            skip = a.label("nf")
            poll = a.label("poll")
            go = a.label("go")
            a(f"s_cmp_eq_u32 {sr(sJ)}, 1")
            a(f"s_cbranch_scc0 {skip}")
            a(f"s_cmp_eq_u32 {sr(sW)}, 0")
            a(f"s_cbranch_scc0 {go}")
            a(f"s_mov_b32 {sr(sT1)}, 200000")
            a(f"{poll}:")
            a(f"s_sub_u32 {sr(sT1)}, {sr(sT1)}, 1")
            a(f"s_cbranch_scc1 {go}_a")
            a(f"buffer_load_dword v12, off, {sr(SRD_DBG,4)}, {sr(sCNT)} sc1")
            a("s_waitcnt vmcnt(0)")
            a(f"v_readfirstlane_b32 {sr(sT0)}, v12")
            a("s_nop 3")
            a(f"s_cmp_ge_u32 {sr(sT0)}, 8")
            a(f"s_cbranch_scc1 {go}_a")
            a("s_sleep 2")
            a(f"s_branch {poll}")
            a(f"{go}_a:")
            a("buffer_inv sc1")
            a("s_waitcnt vmcnt(0)")
            a(f"{go}:")
            a("s_barrier")
            for st in (2, 3):
                a(f"s_add_u32 {sr(sT0)}, {sr(sTB)}, 1")
                a(f"s_and_b32 {sr(sT0)}, {sr(sT0)}, 7")
                a(f"s_lshl_b32 {sr(sT0)}, {sr(sT0)}, 15")
                a(f"s_add_u32 {sr(sT0)}, {sr(sT0)}, {sr(sKVSRC)}")
                if st & 1: a(f"s_add_u32 {sr(sT0)}, {sr(sT0)}, 16384")
                a(f"s_lshl_b32 {sr(sT1)}, {sr(sHH)}, 14")
                a(f"s_lshl_b32 {sr(sT2)}, {sr(sTQ)}, 12")
                a(f"s_add_u32 {sr(sT1)}, {sr(sT1)}, {sr(sT2)}")
                a(f"s_add_u32 m0, {sr(sT1)}, {st * 32768}")
                a("s_nop 0")
                for p in range(4):
                    a(f"buffer_load_dwordx4 {vr(vL16)}, {sr(SRD_WS,4)}, {sr(sT0)} offen offset:{p*1024} sc1 lds")
            a(f"{skip}:")
        if t == 3:
            z = a.label("z"); nz = a.label("nz"); nd = a.label("nd"); na = a.label("na")
            a(f"s_sub_u32 {sr(sT0)}, {sr(sJ)}, 1")
            a(f"s_cmp_lt_u32 {sr(sT0)}, 13")
            a(f"s_cbranch_scc1 {nz}")
            a("s_waitcnt vmcnt(0)")
            a(f"{nz}:")
            a("s_waitcnt vmcnt(4)")
            a("s_barrier")
            a(f"s_add_u32 {sr(sT1)}, {sr(sJ)}, {sr(sW)}")
            a(f"s_cmp_eq_u32 {sr(sT1)}, 0")
            a(f"s_cbranch_scc0 {na}")
            a(f"""
            v_mov_b32 v12, 1
            s_mov_b64 exec, 1
            buffer_atomic_add v12, off, {sr(SRD_DBG,4)}, {sr(sCNT)} sc1
            s_mov_b64 exec, -1
            """)
            a(f"{na}:")
            a(f"s_cmp_lt_u32 {sr(sT0)}, 12")
            a(f"s_cbranch_scc0 {nd}")
            a(f"""
            s_add_u32 {sr(sT0)}, {sr(sJ)}, 3
            s_lshr_b32 {sr(sT1)}, {sr(sT0)}, 1
            s_add_u32 {sr(sT1)}, {sr(sT1)}, {sr(sTB)}
            s_and_b32 {sr(sT1)}, {sr(sT1)}, 7
            s_lshl_b32 {sr(sT1)}, {sr(sT1)}, 15
            s_and_b32 {sr(sT0)}, {sr(sT0)}, 1
            s_lshl_b32 {sr(sT0)}, {sr(sT0)}, 14
            s_add_u32 {sr(sT0)}, {sr(sT0)}, {sr(sT1)}
            s_add_u32 {sr(sT0)}, {sr(sT0)}, {sr(sKVSRC)}
            s_lshl_b32 {sr(sT1)}, {sr(sHH)}, 14
            s_lshl_b32 {sr(sT2)}, {sr(sTQ)}, 12
            s_add_u32 {sr(sT1)}, {sr(sT1)}, {sr(sT2)}
            s_add_u32 m0, {sr(sT1)}, {sr(sSLOT)}
            s_nop 0
            """)
            for p in range(4):
                a(f"buffer_load_dwordx4 {vr(vL16)}, {sr(SRD_WS,4)}, {sr(sT0)} offen offset:{p*1024} sc1 lds")
            a(f"{nd}:")
        attn_unit(a, t, 0, {0: [rd(KF, t + 1, 0)], 1: [rd(VF + 4, t, 3)], 2: ["s_waitcnt lgkmcnt(2)"],
                            3: [rd(KF + 4, t + 1, 1)], 5: ["s_waitcnt lgkmcnt(2)"]})
        attn_unit(a, t, 1, {0: ["s_waitcnt lgkmcnt(1)"], 2: ["s_waitcnt lgkmcnt(0)"], 4: [rd(VF, t + 1, 2)]})
    a(f"""
    v_mov_b32 {vr(vCUR)}, {vr(vNXT)}
    s_add_u32 {sr(sJ)}, {sr(sJ)}, 1
    s_add_u32 {sr(sT0)}, {sr(sJ)}, 1
    s_and_b32 {sr(sT0)}, {sr(sT0)}, 3
    s_lshl_b32 {sr(sT0)}, {sr(sT0)}, 15
    s_lshl_b32 {sr(sT1)}, {sr(sHH)}, 14
    s_add_u32 {sr(sT0)}, {sr(sT0)}, {sr(sT1)}
    v_add_u32 {vr(vNXT)}, {sr(sT0)}, {vr(vL16)}
    s_add_u32 {sr(sSLOT)}, {sr(sSLOT)}, 32768
    s_and_b32 {sr(sSLOT)}, {sr(sSLOT)}, {4 * 32768 - 1}
    s_cmp_lt_u32 {sr(sJ)}, 16
    s_cbranch_scc1 {loop}
    """)
    a("s_nop 1")
    a(f"v_mfma_f32_32x32x16_bf16 {vr(OA+16,16)}, {vr(VF+4,4)}, {vr(PP+4,4)}, {vr(OA+16,16)}")
    a(f"v_mfma_f32_16x16x32_bf16 {vr(LA+4,4)}, {vr(ONES,4)}, {vr(PP+4,4)}, {vr(LA+4,4)}")
    a("s_waitcnt lgkmcnt(0)")
    a("s_nop 15")

def attn_epilogue(a, opt):
    a(f"""
    s_lshl_b32 {sr(sT0)}, {sr(sTB)}, 3
    s_lshl_b32 {sr(sT1)}, {sr(sTQ)}, 1
    s_add_u32 {sr(sT0)}, {sr(sT0)}, {sr(sT1)}
    s_lshl_b32 {sr(sT0)}, {sr(sT0)}, 17
    s_lshl_b32 {sr(sT1)}, {sr(sHP)}, 1
    s_add_u32 {sr(sT1)}, {sr(sT1)}, {sr(sHH)}
    s_lshl_b32 {sr(sT1)}, {sr(sT1)}, 11
    s_add_u32 {sr(sT0)}, {sr(sT0)}, {sr(sT1)}
    s_add_u32 {sr(sOOFF)}, {sr(sT0)}, {WS_O}
    """)
    ok = a.label("ok")
    a(f"s_mov_b32 {sr(sT2)}, {hex(f2u(2.0**24))}")
    a(f"v_cmp_nle_f32 {sr(sM,2)}, v{LA}, {sr(sT2)}")
    a(f"v_cmp_nle_f32 {sr(sM2,2)}, v{LA+4}, {sr(sT2)}")
    a(f"s_or_b64 {sr(sM,2)}, {sr(sM,2)}, {sr(sM2,2)}")
    a("v_mov_b32 v12, 0x207")
    for i in range(32):
        a(f"v_cmp_class_f32 vcc, v{OA+i}, v12")
        a(f"s_or_b64 {sr(sM,2)}, {sr(sM,2)}, vcc")
    if opt.get("force_fallback"):
        a(f"s_mov_b64 {sr(sM,2)}, -1")
    a(f"s_cmp_eq_u64 {sr(sM,2)}, 0")
    a(f"s_cbranch_scc1 {ok}")
    fallback(a, opt)
    a(f"{ok}:")
    for x in range(2):
        a(f"v_rcp_f32 v12, v{LA+4*x}")
        a("s_nop 0")
        b = OA + 16 * x
        for i in range(16):
            a(f"v_mul_f32 v{b+i}, v12, v{b+i}")
        for i in range(8):
            a(f"v_cvt_pk_bf16_f32 v{b+i}, v{b+2*i}, v{b+2*i+1}")
        if x == 1:
            a(f"s_add_u32 {sr(sOOFF)}, {sr(sOOFF)}, 131072")
        a(f"buffer_store_dwordx4 {vr(b,4)}, {vr(vL16)}, {sr(SRD_WS,4)}, {sr(sOOFF)} offen")
        a(f"buffer_store_dwordx4 {vr(b+4,4)}, {vr(vL16)}, {sr(SRD_WS,4)}, {sr(sOOFF)} offen offset:1024")

def fallback(a, opt):
    MX = NM
    a(f"s_lshl_b32 {sr(sT0)}, {sr(sHP)}, 1")
    a(f"s_add_u32 {sr(sT0)}, {sr(sT0)}, {sr(sHH)}")
    a(f"s_lshl_b32 {sr(sBLK)}, {sr(sT0)}, 18")
    for i in range(32): a(f"v_mov_b32 v{OA+i}, 0")
    for i in range(8): a(f"v_mov_b32 v{LA+i}, 0")
    a(f"v_mov_b32 v{MX}, 0xff800000")
    a(f"v_mov_b32 v{MX+16}, 0xff800000")
    a(f"s_mov_b32 {sr(sJ)}, 0")
    loop = a.label("fb")
    a(f"{loop}:")
    a(f"buffer_load_dwordx4 {vr(KF,4)}, {vr(vL16)}, {sr(SRD_WS,4)}, {sr(sBLK)} offen sc1")
    a(f"buffer_load_dwordx4 {vr(KF+4,4)}, {vr(vL16)}, {sr(SRD_WS,4)}, {sr(sBLK)} offen offset:1024 sc1")
    a(f"buffer_load_dwordx4 {vr(VF,4)}, {vr(vL16)}, {sr(SRD_WS,4)}, {sr(sBLK)} offen offset:2048 sc1")
    a(f"buffer_load_dwordx4 {vr(VF+4,4)}, {vr(vL16)}, {sr(SRD_WS,4)}, {sr(sBLK)} offen offset:3072 sc1")
    a("s_waitcnt vmcnt(0)")
    for x in range(2):
        S, Q, O, L, mx = SS, QF + 8 * x, OA + 16 * x, LA + 4 * x, MX + 16 * x
        a(f"v_mfma_f32_32x32x16_bf16 {vr(S,16)}, {vr(KF,4)}, {vr(Q,4)}, 0")
        a(f"v_mfma_f32_32x32x16_bf16 {vr(S,16)}, {vr(KF+4,4)}, {vr(Q+4,4)}, {vr(S,16)}")
        a("s_nop 15")
        a(f"v_max3_f32 v12, v{S}, v{S+1}, v{S+2}")
        for i in range(3, 15, 2):
            a(f"v_max3_f32 v12, v12, v{S+i}, v{S+i+1}")
        a(f"v_max_f32 v12, v12, v{S+15}")
        a(f"""
        v_mov_b32 v13, v12
        s_nop 1
        v_permlane32_swap_b32 v13, v12
        s_nop 1
        v_max3_f32 v12, v12, v13, v{mx}
        v_sub_f32 v13, v{mx}, v12
        v_cmp_eq_f32 vcc, v{mx}, v12
        v_exp_f32 v13, v13
        s_nop 1
        v_cndmask_b32 v13, v13, 1.0, vcc
        v_mov_b32 v{mx}, v12
        """)
        for i in range(16):
            a(f"v_mul_f32 v{O+i}, v13, v{O+i}")
        for i in range(4):
            a(f"v_mul_f32 v{L+i}, v13, v{L+i}")
        for i in range(16):
            a(f"v_sub_f32 v{S+i}, v{S+i}, v12")
        for i in range(16):
            a(f"v_exp_f32 v{S+i}, v{S+i}")
        a("s_nop 0")
        for i in range(8):
            a(f"v_cvt_pk_bf16_f32 v{PP+i}, v{S+2*i}, v{S+2*i+1}")
        a("s_nop 1")
        a(f"v_mfma_f32_32x32x16_bf16 {vr(O,16)}, {vr(VF,4)}, {vr(PP,4)}, {vr(O,16)}")
        a(f"v_mfma_f32_32x32x16_bf16 {vr(O,16)}, {vr(VF+4,4)}, {vr(PP+4,4)}, {vr(O,16)}")
        a(f"v_mfma_f32_16x16x32_bf16 {vr(L,4)}, {vr(ONES,4)}, {vr(PP,4)}, {vr(L,4)}")
        a(f"v_mfma_f32_16x16x32_bf16 {vr(L,4)}, {vr(ONES,4)}, {vr(PP+4,4)}, {vr(L,4)}")
        a("s_nop 15")
    a(f"s_add_u32 {sr(sBLK)}, {sr(sBLK)}, 4096")
    a(f"s_add_u32 {sr(sJ)}, {sr(sJ)}, 1")
    a(f"s_cmp_lt_u32 {sr(sJ)}, 64")
    a(f"s_cbranch_scc1 {loop}")

def timestamp(a, idx, opt):
    if not opt.get("stamps"):
        return
    a(f"s_memtime s[70:71]")
    a("s_waitcnt lgkmcnt(0)")
    a(f"s_mov_b32 s{72+idx}, s70")

def stamps_out(a, n, opt):
    if not opt.get("stamps"):
        return
    a(f"""
    s_lshl_b32 {sr(sT1)}, s2, 3
    s_add_u32 {sr(sT1)}, {sr(sT1)}, {sr(sW)}
    s_lshl_b32 {sr(sT1)}, {sr(sT1)}, 6
    s_add_u32 {sr(sT1)}, {sr(sT1)}, {WS_DBG + (8 << 20)}
    v_mov_b32 v13, 0
    """)
    for i in range(n):
        a(f"v_writelane_b32 v13, s{72+i}, {i}")
    a(f"""
    v_lshlrev_b32 v12, 2, v0
    v_cmp_gt_u32 vcc, {n}, v0
    s_and_saveexec_b64 {sr(sM,2)}, vcc
    buffer_store_dword v13, v12, {sr(SRD_WS,4)}, {sr(sT1)} offen
    s_mov_b64 exec, {sr(sM,2)}
    """)

def k12(opt):
    a = Asm()
    a(f".globl {NAME12}\n.p2align 8\n.type {NAME12},@function\n{NAME12}:")
    timestamp(a, 0, opt)
    prologue(a, opt)
    gemm(a, opt)
    timestamp(a, 1, opt)
    gemm_epilogue(a, opt)
    if opt.get("stop_after_gemm"):
        a("s_waitcnt vmcnt(0) lgkmcnt(0)")
        timestamp(a, 2, opt)
        stamps_out(a, 3, opt)
    else:
        timestamp(a, 2, opt)
        attention(a, opt)
        timestamp(a, 3, opt)
        attn_epilogue(a, opt)
        a("s_waitcnt vmcnt(0)")
        timestamp(a, 4, opt)
        stamps_out(a, 5, opt)
    a("L_end12:\ns_endpgm")
    return a.text()

KD12 = f"""
.section .rodata,"a"
.p2align 6
.amdhsa_kernel {NAME12}
  .amdhsa_next_free_vgpr 256
  .amdhsa_next_free_sgpr 96
  .amdhsa_accum_offset 256
  .amdhsa_group_segment_fixed_size 0
  .amdhsa_kernarg_size 80
  .amdhsa_user_sgpr_count 2
  .amdhsa_user_sgpr_kernarg_segment_ptr 1
  .amdhsa_system_sgpr_workgroup_id_x 1
  .amdhsa_float_denorm_mode_32 3
.end_amdhsa_kernel
"""
```

```python
from asm import Asm, vr, sr, VmTracker
from k12 import WS_O, WS_G, WS_SIZE, WS_DBG, f2u

NAME3 = "outproj_kernel"
SRD_WO, SRD_WS, SRD_OUT = 8, 12, 16
sW, sBR, sTT, sTB3, sCB = 20, 21, 22, 23, 24
sAOFF, sWOFF, sLDSW = 25, 26, 27
sT0, sT1, sT2, sT3 = 32, 33, 34, 35
sM = 36
vL16, vDW, vWR, vG, vOUT = 2, 3, 4, 5, 6
vRD = 8
ACC = 16
AF = 48
OF = 64
DEPTH = 16
NSLOT = 8

def k3(opt):
    a = Asm()
    vm = VmTracker()
    a(f".globl {NAME3}\n.p2align 8\n.type {NAME3},@function\n{NAME3}:")
    if opt.get("stamps"):
        a("s_memtime s[70:71]\ns_waitcnt lgkmcnt(0)\ns_mov_b32 s72, s70")
    a(f"""
    s_cmp_ge_u32 s2, 256
    s_cbranch_scc1 L_end3
    s_load_dwordx2 s[40:41], s[0:1], 16
    s_load_dwordx2 s[42:43], s[0:1], 40
    s_load_dwordx2 s[44:45], s[0:1], 56
    s_load_dwordx2 s[46:47], s[0:1], 72
    v_lshrrev_b32 v1, 6, v0
    v_and_b32 v0, 63, v0
    s_nop 0
    v_readfirstlane_b32 {sr(sW)}, v1
    s_and_b32 s3, s2, 7
    s_lshr_b32 s4, s2, 3
    s_lshr_b32 s5, s3, 1
    s_lshl_b32 s5, s5, 2
    s_and_b32 s6, s4, 3
    s_add_u32 {sr(sTB3)}, s5, s6
    s_and_b32 s5, s3, 1
    s_lshl_b32 s5, s5, 3
    s_lshr_b32 s6, s4, 2
    s_add_u32 {sr(sCB)}, s5, s6
    s_lshr_b32 {sr(sBR)}, {sr(sW)}, 2
    s_and_b32 {sr(sTT)}, {sr(sW)}, 3
    s_waitcnt lgkmcnt(0)
    s_cmp_eq_u32 {sr(sBR)}, 1
    s_cselect_b32 {sr(SRD_WO)}, s42, s40
    s_cselect_b32 {sr(SRD_WO+1)}, s43, s41
    s_mov_b32 {sr(SRD_WO+2)}, {1024*1024*2}
    s_mov_b32 {sr(SRD_WO+3)}, 0x00020000
    s_mov_b32 {sr(SRD_WS)}, s46
    s_mov_b32 {sr(SRD_WS+1)}, s47
    s_mov_b32 {sr(SRD_WS+2)}, {WS_SIZE}
    s_mov_b32 {sr(SRD_WS+3)}, 0x00020000
    s_mov_b32 {sr(SRD_OUT)}, s44
    s_mov_b32 {sr(SRD_OUT+1)}, s45
    s_mov_b32 {sr(SRD_OUT+2)}, {2048*1024*2}
    s_mov_b32 {sr(SRD_OUT+3)}, 0x00020000
    v_lshlrev_b32 {vr(vL16)}, 4, v0
    v_lshrrev_b32 v12, 3, v0                 ; r8
    v_and_b32 v13, 7, v0
    v_bfe_u32 v14, v12, 1, 1
    v_lshlrev_b32 v14, 2, v14
    v_xor_b32 v13, v13, v14
    s_lshl_b32 {sr(sT0)}, {sr(sTT)}, 4
    v_add_u32 v12, {sr(sT0)}, v12
    v_lshlrev_b32 {vr(vDW)}, 11, v12
    v_lshl_add_u32 {vr(vDW)}, v13, 4, {vr(vDW)}
    s_lshl_b32 {sr(sWOFF)}, {sr(sCB)}, 7
    s_lshl_b32 {sr(sLDSW)}, {sr(sBR)}, 13
    s_lshl_b32 {sr(sT0)}, {sr(sTT)}, 11
    s_add_u32 {sr(sLDSW)}, {sr(sLDSW)}, {sr(sT0)}
    s_lshl_b32 {sr(sT0)}, {sr(sTB3)}, 2
    s_add_u32 {sr(sT0)}, {sr(sT0)}, {sr(sTT)}
    s_lshl_b32 {sr(sAOFF)}, {sr(sT0)}, 17
    s_lshl_b32 {sr(sT1)}, {sr(sBR)}, 16
    s_add_u32 {sr(sAOFF)}, {sr(sAOFF)}, {sr(sT1)}
    s_add_u32 {sr(sAOFF)}, {sr(sAOFF)}, {WS_O}
    """)
    def dma(st):
        slot = st % NSLOT
        a(f"s_add_u32 m0, {sr(sLDSW)}, {slot * 16384}")
        a(f"s_add_u32 {sr(sT2)}, {sr(sWOFF)}, {st * 64 * 2048}")
        a(f"buffer_load_dwordx4 {vr(vDW)}, {sr(SRD_WO,4)}, {sr(sT2)} offen lds")
        vm.issue(("w", st))
        a(f"s_add_u32 m0, {sr(sLDSW)}, {slot * 16384 + 1024}")
        a(f"s_add_u32 {sr(sT3)}, {sr(sWOFF)}, {st * 64 * 2048 + 8 * 2048}")
        a(f"buffer_load_dwordx4 {vr(vDW)}, {sr(SRD_WO,4)}, {sr(sT3)} offen lds")
        vm.issue(("w", st))
    def oload(kk):
        d = kk % DEPTH
        if kk % 4 == 0:
            a(f"s_add_u32 {sr(sT1)}, {sr(sAOFF)}, {(kk // 4) * 4096}")
        a(f"buffer_load_dwordx4 {vr(OF+4*d,4)}, {vr(vL16)}, {sr(SRD_WS,4)}, {sr(sT1)} offen offset:{(kk%4)*1024}")
        vm.issue(("o", kk))
    dma(0)
    for kk in range(4): oload(kk)
    dma(1)
    for kk in range(4, 8): oload(kk)
    dma(2)
    for kk in range(8, DEPTH): oload(kk)
    for st in range(3, NSLOT): dma(st)
    a(f"""
    v_and_b32 v12, 31, v0
    s_lshl_b32 {sr(sT0)}, {sr(sTB3)}, 7
    s_lshl_b32 {sr(sT2)}, {sr(sTT)}, 5
    s_add_u32 {sr(sT0)}, {sr(sT0)}, {sr(sT2)}
    v_add_u32 v12, {sr(sT0)}, v12                  ; token
    v_lshlrev_b32 v13, 2, v12
    s_mov_b32 {sr(sT2)}, {WS_G}
    buffer_load_dword {vr(vG)}, v13, {sr(SRD_WS,4)}, {sr(sT2)} offen
    v_lshrrev_b32 v14, 5, v0                       ; h
    v_lshlrev_b32 {vr(vOUT)}, 11, v12
    v_lshl_add_u32 {vr(vOUT)}, v14, 4, {vr(vOUT)}
    v_bfe_u32 v15, v0, 2, 2                        ; r
    v_lshl_add_u32 v12, v14, 2, v15                ; 4h + r
    v_lshlrev_b32 {vr(vWR)}, 7, v12
    v_and_b32 v12, 1, v0                           ; h'
    v_bfe_u32 v13, v0, 1, 1                        ; a
    v_bfe_u32 v14, v0, 4, 1                        ; g
    v_lshl_add_u32 v12, v14, 1, v12                ; chunk16 = 2g + h'
    v_lshrrev_b32 v15, 1, v15
    v_lshlrev_b32 v15, 2, v15
    v_xor_b32 v12, v12, v15
    v_lshl_add_u32 {vr(vWR)}, v12, 4, {vr(vWR)}
    v_lshl_add_u32 {vr(vWR)}, v13, 3, {vr(vWR)}
    s_lshl_b32 {sr(sT0)}, {sr(sBR)}, 13
    v_add_u32 {vr(vRD)}, {sr(sT0)}, {vr(vWR)}
    v_xor_b32 {vr(vRD+1)}, 64, {vr(vRD)}
    v_add_u32 {vr(vRD+2)}, 0x10000, {vr(vRD)}
    v_add_u32 {vr(vRD+3)}, 0x10000, {vr(vRD+1)}
    """)
    vm.issue(("g", 0))
    for i in range(32):
        a(f"v_mov_b32 v{ACC+i}, 0")
    def wreads(st, ks, set_):
        r = []
        slot = st % NSLOT
        win, off = divmod(slot * 16384, 65536)
        for ct in range(2):
            base = AF + 8 * set_ + 4 * ct
            reg = vRD + 2 * win + ct
            r.append(f"ds_read_b64_tr_b16 {vr(base,2)}, {vr(reg)} offset:{off + ks*2048}")
            r.append(f"ds_read_b64_tr_b16 {vr(base+2,2)}, {vr(reg)} offset:{off + ks*2048+1024}")
        return r
    n = vm.wait_count(lambda t: t == ("w", 0))
    a(f"s_waitcnt vmcnt({n})")
    a("s_barrier")
    for x in wreads(0, 0, 0): a(x)
    for st in range(16):
        for ks in range(4):
            kk = 4 * st + ks
            d = kk % DEPTH
            cur = ks & 1
            nxt = []
            if ks == 3:
                if st < 15:
                    n = vm.wait_count(lambda t: t in (("w", st + 1), ("o", kk)))
                    a(f"s_waitcnt vmcnt({n}) lgkmcnt(0)")
                    a("s_barrier")
                    nxt = wreads(st + 1, 0, cur ^ 1)
                else:
                    n = vm.wait_count(lambda t: t == ("o", kk))
                    a(f"s_waitcnt vmcnt({n}) lgkmcnt(0)")
            else:
                n = vm.wait_count(lambda t: t == ("o", kk))
                a(f"s_waitcnt vmcnt({n}) lgkmcnt(0)")
                nxt = wreads(st, ks + 1, cur ^ 1)
            for ct in range(2):
                a(f"v_mfma_f32_32x32x16_bf16 {vr(ACC+16*ct,16)}, {vr(AF+8*cur+4*ct,4)}, {vr(OF+4*d,4)}, {vr(ACC+16*ct,16)}")
                for x in nxt[2*ct:2*ct+2]: a(x)
            if kk + DEPTH < 64:
                oload(kk + DEPTH)
            if ks == 3 and st + NSLOT < 16:
                dma(st + NSLOT)
    if opt.get("stamps"):
        a("s_memtime s[70:71]\ns_waitcnt lgkmcnt(0)\ns_mov_b32 s73, s70")
    a("s_nop 15")
    for ct in range(2):
        b = ACC + 16 * ct
        for i in range(8):
            a(f"v_cvt_pk_bf16_f32 v{b+i}, v{b+2*i}, v{b+2*i+1}")
    nosw = a.label("nosw")
    a(f"s_cmp_eq_u32 {sr(sBR)}, 0")
    a(f"s_cbranch_scc1 {nosw}")
    for i in range(8):
        a(f"v_swap_b32 v{ACC+i}, v{ACC+16+i}")
    a(f"{nosw}:")
    a(f"""
    s_lshl_b32 {sr(sT0)}, {sr(sTT)}, 12
    s_lshl_b32 {sr(sT1)}, {sr(sBR)}, 11
    s_add_u32 {sr(sT2)}, {sr(sT0)}, {sr(sT1)}
    s_xor_b32 {sr(sT1)}, {sr(sT1)}, 2048
    s_add_u32 {sr(sT3)}, {sr(sT0)}, {sr(sT1)}
    v_add_u32 v12, {sr(sT2)}, {vr(vL16)}
    v_add_u32 v13, {sr(sT3)}, {vr(vL16)}
    s_barrier
    ds_write_b128 v12, {vr(ACC+16,4)}
    ds_write_b128 v12, {vr(ACC+20,4)} offset:1024
    s_waitcnt lgkmcnt(0)
    s_barrier
    ds_read_b128 {vr(ACC+16,4)}, v13
    ds_read_b128 {vr(ACC+20,4)}, v13 offset:1024
    """)
    n = vm.wait_count(lambda t: t == ("g", 0))
    a(f"s_waitcnt vmcnt(0)")
    a(f"""
    v_sub_f32 v14, 1.0, {vr(vG)}
    v_cvt_pk_bf16_f32 v14, v14, v14
    v_lshlrev_b32 v14, 16, v14
    s_cmp_eq_u32 {sr(sBR)}, 0
    s_cselect_b64 vcc, -1, 0
    v_cndmask_b32 v15, v14, {vr(vG)}, vcc      ; c_own
    v_cndmask_b32 v14, {vr(vG)}, v14, vcc      ; c_recv
    s_waitcnt lgkmcnt(0)
    """)
    for i in range(8):
        o, r = ACC + i, ACC + 16 + i
        a(f"""
        v_lshlrev_b32 v48, 16, v{o}
        v_and_b32 v49, 0xffff0000, v{o}
        v_lshlrev_b32 v50, 16, v{r}
        v_and_b32 v51, 0xffff0000, v{r}
        v_mul_f32 v48, v15, v48
        v_mul_f32 v49, v15, v49
        v_mul_f32 v50, v14, v50
        v_mul_f32 v51, v14, v51
        v_cvt_pk_bf16_f32 v48, v48, v49
        v_cvt_pk_bf16_f32 v50, v50, v51
        v_lshlrev_b32 v49, 16, v48
        v_and_b32 v48, 0xffff0000, v48
        v_lshlrev_b32 v51, 16, v50
        v_and_b32 v50, 0xffff0000, v50
        v_add_f32 v49, v49, v51
        v_add_f32 v48, v48, v50
        v_cvt_pk_bf16_f32 v{o}, v49, v48
        """)
    a(f"""
    s_lshl_b32 {sr(sT0)}, {sr(sCB)}, 7
    s_lshl_b32 {sr(sT1)}, {sr(sBR)}, 6
    s_add_u32 {sr(sT0)}, {sr(sT0)}, {sr(sT1)}
    buffer_store_dwordx4 {vr(ACC,4)}, {vr(vOUT)}, {sr(SRD_OUT,4)}, {sr(sT0)} offen
    buffer_store_dwordx4 {vr(ACC+4,4)}, {vr(vOUT)}, {sr(SRD_OUT,4)}, {sr(sT0)} offen offset:32
    """)
    if opt.get("stamps"):
        a("s_waitcnt vmcnt(0)")
        a("s_memtime s[70:71]\ns_waitcnt lgkmcnt(0)\ns_mov_b32 s74, s70")
        a(f"""
        s_lshl_b32 {sr(sT1)}, s2, 3
        s_add_u32 {sr(sT1)}, {sr(sT1)}, {sr(sW)}
        s_lshl_b32 {sr(sT1)}, {sr(sT1)}, 6
        s_add_u32 {sr(sT1)}, {sr(sT1)}, {WS_DBG + (9 << 20)}
        v_mov_b32 v13, 0
        v_writelane_b32 v13, s72, 0
        v_writelane_b32 v13, s73, 1
        v_writelane_b32 v13, s74, 2
        v_lshlrev_b32 v12, 2, v0
        v_cmp_gt_u32 vcc, 3, v0
        s_and_saveexec_b64 {sr(sM,2)}, vcc
        buffer_store_dword v13, v12, {sr(SRD_WS,4)}, {sr(sT1)} offen
        s_mov_b64 exec, {sr(sM,2)}
        """)
    a("L_end3:\ns_endpgm")
    return a.text()

KD3 = f"""
.section .rodata,"a"
.p2align 6
.amdhsa_kernel {NAME3}
  .amdhsa_next_free_vgpr 128
  .amdhsa_next_free_sgpr 96
  .amdhsa_accum_offset 128
  .amdhsa_group_segment_fixed_size 0
  .amdhsa_kernarg_size 80
  .amdhsa_user_sgpr_count 2
  .amdhsa_user_sgpr_kernarg_segment_ptr 1
  .amdhsa_system_sgpr_workgroup_id_x 1
  .amdhsa_float_denorm_mode_32 3
.end_amdhsa_kernel
"""
```

```python
import sys, json
sys.path.insert(0, 'gen'); sys.path.insert(0, 'tools')
import importlib
import k12, k3
HEADER = open('gated_mix__mha_block__softmax_full_mha__prompt.s.ref').read().split('; Override launch geometry')[0]
def build(opt=None):
    opt = opt or {}
    s = HEADER
    s += f"; @launch kernel={k12.NAME12} grid=(256,1,1) block=(512,1,1) lds=163840\n"
    if not opt.get("stop_after_gemm") and not opt.get("no_k3"):
        s += f"; @launch kernel={k3.NAME3} grid=(256,1,1) block=(512,1,1) lds=131072\n"
    s += '.amdgcn_target "amdgcn-amd-amdhsa--gfx950"\n.text\n'
    s += k12.k12(opt)
    s += ".text\n" if False else ""
    s += k3.k3(opt)
    s += k12.KD12 + k3.KD3
    return s
if __name__ == "__main__":
    out = sys.argv[1]
    opt = json.loads(sys.argv[2]) if len(sys.argv) > 2 else {}
    open(out, 'w').write(build(opt))
    print("wrote", out)
```

```python
from asm import Asm, vr, sr, VmTracker

NAME12 = "gated_mix__mha_block__softmax_full_mha__prompt_kernel"
WS_KV = 0
WS_O = 16 << 20
WS_G = 24 << 20
WS_MB = 25 << 20
WS_DBG = 32 << 20
WS_SIZE = 0x10000000
LOG2E = 1.4426950408889634
QSCALE = LOG2E / (32 ** 0.5)

import struct
def f2u(x): return struct.unpack("<I", struct.pack("<f", x))[0]

SRD_X, SRD_W, SRD_WS, SRD_DBG, SRD_GW = 8, 12, 16, 20, 24
sW, sHH, sTQ, sHP, sTB = 28, 29, 30, 31, 32
sW1K = 33
sXJ = 34
sWJ = 35
sRING = 36
sRINGW = 37
sJ = 38
sT0, sT1, sT2, sT3 = 40, 41, 42, 43
sXQ = 44
sKVSRC = 45
sSLOT = 46
sBLK = 47
sM = 48
sM2 = 50
sOOFF = 52
sCNT = 53
sMB = 54
sLDSW = 55
sSRC = 39
sOFFS = 64
sNXT = 65
sCHKJ = 66
vLANE = 0
vDX, vDW, vXP, vWP, vXA, vW0 = 2, 3, 4, 5, 6, 7
vL16 = 10
vXB = 11
vT = 12
FR = [64, 84]
ACC = 160
QF = 16
OA = 32
LA = 64
NM = 72
SS = 104
PP = 136
KF = 144
VF = 152
ONES = 160
vCUR, vNXT = 2, 3
vKVB, vDMA = 4, 5
vCHK = 15

RING = 20 * 8192

def wrap_add(a, dst, src, const, tmp):
    a(f"s_add_u32 {sr(tmp)}, {sr(src)}, {const}")
    a(f"s_sub_u32 {dst}, {sr(tmp)}, {RING}")
    a(f"s_cselect_b32 {dst}, {sr(tmp)}, {dst}")

def prologue(a, opt):
    a(f"""
    s_cmp_ge_u32 s2, 256
    s_cbranch_scc1 L_end12
    s_load_dwordx4 s[56:59], s[0:1], 0
    s_load_dwordx2 s[60:61], s[0:1], 32
    s_load_dwordx2 s[62:63], s[0:1], 48
    s_load_dwordx4 s[64:67], s[0:1], 64
    v_lshrrev_b32 v1, 6, v0
    v_and_b32 v0, 63, v0
    s_nop 0
    v_readfirstlane_b32 {sr(sW)}, v1
    s_and_b32 s3, s2, 7
    s_lshr_b32 s4, s2, 3
    s_and_b32 s5, s4, 3
    s_lshl_b32 s3, s3, 2
    s_add_u32 {sr(sHP)}, s3, s5
    s_lshr_b32 {sr(sTB)}, s4, 2
    s_lshr_b32 {sr(sHH)}, {sr(sW)}, 2
    s_and_b32 {sr(sTQ)}, {sr(sW)}, 3
    s_lshl_b32 {sr(sW1K)}, {sr(sW)}, 10
    s_waitcnt lgkmcnt(0)
    s_mov_b32 {sr(SRD_X)}, s56
    s_mov_b32 {sr(SRD_X+1)}, s57
    s_mov_b32 {sr(SRD_X+2)}, {2048*1024*2}
    s_mov_b32 {sr(SRD_X+3)}, 0x00020000
    s_cmp_ge_u32 {sr(sHP)}, 16
    s_cselect_b32 {sr(SRD_W)}, s60, s58
    s_cselect_b32 {sr(SRD_W+1)}, s61, s59
    s_mov_b32 {sr(SRD_W+2)}, {1024*3072*2}
    s_mov_b32 {sr(SRD_W+3)}, 0x00020000
    s_mov_b32 {sr(SRD_WS)}, s66
    s_mov_b32 {sr(SRD_WS+1)}, s67
    s_mov_b32 {sr(SRD_WS+2)}, {WS_SIZE}
    s_mov_b32 {sr(SRD_WS+3)}, 0x00020000
    s_mov_b32 {sr(SRD_DBG)}, s64
    s_mov_b32 {sr(SRD_DBG+1)}, s65
    s_mov_b32 {sr(SRD_DBG+2)}, 256
    s_mov_b32 {sr(SRD_DBG+3)}, 0x00020000
    s_mov_b32 {sr(SRD_GW)}, s62
    s_mov_b32 {sr(SRD_GW+1)}, s63
    s_mov_b32 {sr(SRD_GW+2)}, 2048
    s_mov_b32 {sr(SRD_GW+3)}, 0x00020000
    """)
    nr = a.label("nr")
    a(f"""
    s_lshl_b32 {sr(sMB)}, {sr(sHP)}, 3
    s_add_u32 {sr(sMB)}, {sr(sMB)}, {sr(sTB)}
    s_lshl_b32 {sr(sMB)}, {sr(sMB)}, 7
    s_add_u32 {sr(sMB)}, {sr(sMB)}, {WS_MB}
    s_lshl_b32 {sr(sCNT)}, {sr(sHP)}, 3
    s_cmp_eq_u32 {sr(sW)}, 0
    s_cselect_b32 {sr(sCHKJ)}, 6, 0xffff
    s_cbranch_scc0 {nr}
    v_lshlrev_b32 v12, 2, v0
    v_mov_b32 v13, 0
    s_mov_b32 exec_lo, -1
    s_mov_b32 exec_hi, 0
    buffer_store_dword v13, v12, {sr(SRD_WS,4)}, {sr(sMB)} offen sc1
    s_mov_b64 exec, -1
    {nr}:
    """)
    a(f"""
    s_lshl_b32 {sr(sT0)}, {sr(sTB)}, 8
    s_lshl_b32 {sr(sT1)}, {sr(sHP)}, 3
    s_add_u32 {sr(sT0)}, {sr(sT0)}, {sr(sT1)}
    s_add_u32 {sr(sT0)}, {sr(sT0)}, {sr(sW)}
    s_lshl_b32 {sr(sT2)}, {sr(sT0)}, 11
    v_lshlrev_b32 v12, 5, v0
    buffer_load_dwordx4 v[16:19], v12, {sr(SRD_X,4)}, {sr(sT2)} offen
    buffer_load_dwordx4 v[20:23], v12, {sr(SRD_X,4)}, {sr(sT2)} offen offset:16
    buffer_load_dwordx4 v[24:27], v12, {sr(SRD_GW,4)}, 0 offen
    buffer_load_dwordx4 v[28:31], v12, {sr(SRD_GW,4)}, 0 offen offset:16
    s_lshl_b32 {sr(sT3)}, {sr(sT0)}, 2
    """)
    a(f"""
    v_lshrrev_b32 v13, 3, v0                 ; r8
    v_and_b32 v14, 7, v0                     ; c'
    s_and_b32 {sr(sT0)}, {sr(sW)}, 1
    s_lshl_b32 {sr(sT0)}, {sr(sT0)}, 2
    v_lshrrev_b32 v15, 1, v13                ; r8>>1 (0..3)
    v_add_u32 v1, {sr(sT0)}, v15             ; 4*(w&1) + (r8>>1)
    v_xor_b32 v1, v1, v14                    ; cX
    s_lshl_b32 {sr(sT1)}, {sr(sW)}, 3
    v_add_u32 v13, {sr(sT1)}, v13            ; 8w + r8
    v_lshlrev_b32 {vr(vDX)}, 11, v13
    v_lshl_add_u32 {vr(vDX)}, v1, 4, {vr(vDX)}
    v_and_b32 v15, 1, v15
    v_lshlrev_b32 v15, 2, v15
    v_xor_b32 v15, v15, v14                  ; cW
    s_mov_b32 {sr(sT1)}, 6144
    v_mul_lo_u32 {vr(vDW)}, v13, {sr(sT1)}
    v_lshl_add_u32 {vr(vDW)}, v15, 4, {vr(vDW)}
    v_and_b32 v13, 31, v0
    v_lshrrev_b32 v14, 5, v0                 ; h
    v_bfe_u32 v15, v13, 1, 3
    v_xor_b32 v15, v15, v14
    v_lshlrev_b32 {vr(vXP)}, 7, v13
    v_lshl_add_u32 {vr(vXP)}, v15, 4, {vr(vXP)}
    v_bfe_u32 v13, v0, 2, 2                  ; r
    v_lshl_add_u32 v1, v14, 3, v13           ; 8h + r
    v_lshlrev_b32 {vr(vWP)}, 7, v1
    v_bfe_u32 v15, v0, 4, 1                  ; g
    v_lshlrev_b32 v15, 1, v15
    v_bfe_u32 v1, v0, 1, 1                   ; c>>1
    v_add_u32 v15, v15, v1
    s_lshl_b32 {sr(sT1)}, {sr(sHH)}, 2
    v_add_u32 v15, {sr(sT1)}, v15            ; cc
    v_lshrrev_b32 v13, 1, v13
    v_lshlrev_b32 v13, 2, v13
    v_xor_b32 v15, v15, v13
    v_lshl_add_u32 {vr(vWP)}, v15, 4, {vr(vWP)}
    v_and_b32 v1, 1, v0
    v_lshl_add_u32 {vr(vWP)}, v1, 3, {vr(vWP)}
    v_lshlrev_b32 {vr(vL16)}, 4, v0
    """)
    a(f"""
    s_lshl_b32 {sr(sXJ)}, {sr(sTB)}, 19          ; tb*256*2048
    s_and_b32 {sr(sWJ)}, {sr(sHP)}, 15
    s_lshl_b32 {sr(sWJ)}, {sr(sWJ)}, 7           ; hpl*128
    s_add_u32 {sr(sXQ)}, {sr(sTQ)}, 3
    s_lshl_b32 {sr(sXQ)}, {sr(sXQ)}, 13
    """)

def dma_unit_static(a, g):
    j, u = divmod(g, 7)
    a(f"s_add_u32 m0, {sr(sW1K)}, {(g % 20) * 8192}")
    if u < 3:
        a(f"s_add_u32 {sr(sT0)}, {sr(sWJ)}, {j * 64 * 6144 + u * 2048}")
        a(f"buffer_load_dwordx4 {vr(vDW)}, {sr(SRD_W,4)}, {sr(sT0)} offen lds")
    else:
        a(f"s_add_u32 {sr(sT0)}, {sr(sXJ)}, {j * 128 + (u - 3) * 131072}")
        a(f"buffer_load_dwordx4 {vr(vDX)}, {sr(SRD_X,4)}, {sr(sT0)} offen lds")

def gate_compute(a):
    a("v_mov_b32 v12, 0")
    for i in range(8):
        x, w = 16 + i, 24 + i
        a(f"""
        v_lshlrev_b32 v13, 16, v{x}
        v_and_b32 v14, 0xffff0000, v{x}
        v_lshlrev_b32 v15, 16, v{w}
        v_and_b32 v1, 0xffff0000, v{w}
        v_mul_f32 v13, v13, v15
        v_mul_f32 v14, v14, v1
        v_cvt_pk_bf16_f32 v13, v13, v14
        v_lshlrev_b32 v14, 16, v13
        v_and_b32 v13, 0xffff0000, v13
        v_add_f32 v12, v12, v14
        v_add_f32 v12, v12, v13
        """)
    for sh in (1, 2, 4, 8):
        a(f"s_nop 1\nv_add_f32_dpp v12, v12, v12 row_shr:{sh} row_mask:0xf bank_mask:0xf bound_ctrl:0")
    a("s_nop 1\nv_add_f32_dpp v12, v12, v12 row_bcast:15 row_mask:0xa bank_mask:0xf")
    a("s_nop 1\nv_add_f32_dpp v12, v12, v12 row_bcast:31 row_mask:0xc bank_mask:0xf")
    a(f"""
    s_nop 1
    v_cvt_pk_bf16_f32 v12, v12, v12
    v_lshlrev_b32 v12, 16, v12
    v_mul_f32 v12, {hex(f2u(-LOG2E))}, v12
    v_exp_f32 v12, v12
    s_nop 0
    v_add_f32 v12, 1.0, v12
    v_rcp_f32 v12, v12
    s_nop 0
    v_cvt_pk_bf16_f32 v12, v12, v12
    v_lshlrev_b32 v12, 16, v12
    v_mov_b32 v13, {WS_G}
    v_cmp_eq_u32 vcc, 63, v0
    s_and_saveexec_b64 {sr(sM,2)}, vcc
    buffer_store_dword v12, v13, {sr(SRD_WS,4)}, {sr(sT3)} offen
    s_mov_b64 exec, {sr(sM,2)}
    """)

def frag(set_, name):
    off = {"X0": 0, "X1": 4, "Wq": 8, "Wk": 12, "Wv": 16}[name]
    return FR[set_] + off

def gemm_reads(ks, set_):
    r = []
    r.append(f"ds_read_b128 {vr(frag(set_,'X0'),4)}, {vr(vXA)}")
    for u, nm in enumerate(("Wq", "Wk", "Wv")):
        b = frag(set_, nm)
        r.append(f"ds_read_b64_tr_b16 {vr(b,2)}, {vr(vW0+u)} offset:{ks*2048}")
        r.append(f"ds_read_b64_tr_b16 {vr(b+2,2)}, {vr(vW0+u)} offset:{ks*2048+512}")
        if u == 0:
            r.append(f"ds_read_b128 {vr(frag(set_,'X1'),4)}, {vr(vXA)} offset:4096")
    return r

def gemm_mfmas(set_):
    m = []
    X0, X1 = frag(set_, "X0"), frag(set_, "X1")
    Wq, Wk, Wv = frag(set_, "Wq"), frag(set_, "Wk"), frag(set_, "Wv")
    def mf(acc, A, B): return f"v_mfma_f32_32x32x16_bf16 {vr(acc,16)}, {vr(A,4)}, {vr(B,4)}, {vr(acc,16)}"
    m.append(mf(ACC + 0, Wq, X0))
    m.append(mf(ACC + 32, Wk, X0))
    m.append(mf(ACC + 64, X0, Wv))
    m.append(mf(ACC + 16, Wq, X1))
    m.append(mf(ACC + 48, Wk, X1))
    m.append(mf(ACC + 80, X1, Wv))
    return m

def set_read_bases(a):
    for u in range(3):
        if u == 0:
            a(f"v_add_u32 {vr(vW0)}, {sr(sRING)}, {vr(vWP)}")
        else:
            wrap_add(a, sr(sT1), sRING, u * 8192, sT0)
            a(f"v_add_u32 {vr(vW0+u)}, {sr(sT1)}, {vr(vWP)}")
    a(f"s_add_u32 {sr(sT0)}, {sr(sRING)}, {sr(sXQ)}")
    a(f"s_sub_u32 {sr(sT1)}, {sr(sT0)}, {RING}")
    a(f"s_cselect_b32 {sr(sT1)}, {sr(sT0)}, {sr(sT1)}")
    a(f"v_add_u32 {vr(vXB)}, {sr(sT1)}, {vr(vXP)}")

def kstep(a, ks, cur, next_ks, extra=None):
    m = gemm_mfmas(cur)
    r = gemm_reads(next_ks, cur ^ 1) if next_ks is not None else []
    extra = list(extra or [])
    if next_ks is not None:
        a(f"v_xor_b32 {vr(vXA)}, {next_ks << 5}, {vr(vXB)}")
    gaps = [[] for _ in range(6)]
    for i, x in enumerate(r):
        gaps[min(i // 3, 5)].append(x)
    gi = 2
    for x in extra:
        gaps[gi].append(x)
        gi = gi + 1 if gi < 5 else 2
    for i in range(6):
        a(m[i])
        for x in gaps[i]:
            a(x)

def dma_group(i):
    s = []
    s.append(f"s_add_u32 {sr(sT2)}, {sr(sRINGW)}, {i * 8192}")
    s.append(f"s_sub_u32 m0, {sr(sT2)}, {RING}")
    s.append(f"s_cselect_b32 m0, {sr(sT2)}, m0")
    if i == 0:
        s.append(f"s_add_u32 {sr(sT3)}, {sr(sXJ)}, {3 * 131072 - 128}")
        s.append(f"buffer_load_dwordx4 {vr(vDX)}, {sr(SRD_X,4)}, {sr(sT3)} offen lds")
    elif i <= 3:
        s.append(f"s_add_u32 {sr(sT3)}, {sr(sWJ)}, {(i - 1) * 2048}")
        s.append(f"buffer_load_dwordx4 {vr(vDW)}, {sr(SRD_W,4)}, {sr(sT3)} offen lds")
    else:
        s.append(f"s_add_u32 {sr(sT3)}, {sr(sXJ)}, {(i - 4) * 131072}")
        s.append(f"buffer_load_dwordx4 {vr(vDX)}, {sr(SRD_X,4)}, {sr(sT3)} offen lds")
    return "\n".join(s)

def gemm_stage(a, ndma, vm_wait, last=False):
    for ks in range(3):
        a("s_waitcnt lgkmcnt(0)")
        kstep(a, ks, ks & 1, ks + 1)
    if OPT.get("stampsg"):
        a("s_waitcnt lgkmcnt(0)")
        gstamp(a, 204)
    if vm_wait is not None:
        a(f"s_waitcnt vmcnt({vm_wait}) lgkmcnt(0)")
    else:
        a("s_waitcnt lgkmcnt(0)")
    if OPT.get("stampsg"): gstamp(a, 205)
    if not OPT.get("g_nobar"): a("s_barrier")
    if OPT.get("stampsg"):
        gstamp(a, 206)
        a("s_add_u32 s88, s88, 1")
    a(f"s_add_u32 {sr(sRINGW)}, {sr(sRING)}, {sr(sW1K)}")
    wrap_add(a, sr(sRING), sRING, 7 * 8192, sT0)
    if not last:
        set_read_bases(a)
    if OPT.get("g_nodma"): ndma = 0
    extra = [dma_group(i) for i in range(ndma)]
    kstep(a, 3, 1, None if last else 0, extra)
    a(f"s_add_u32 {sr(sXJ)}, {sr(sXJ)}, 128")
    a(f"s_add_u32 {sr(sWJ)}, {sr(sWJ)}, {64 * 6144}")

def gemm(a, opt):
    if OPT.get("stampsg"): a("s_mov_b32 s88, 0")
    for g in range(20):
        dma_unit_static(a, g)
    a(f"s_add_u32 {sr(sXJ)}, {sr(sXJ)}, {3 * 128}")
    a(f"s_add_u32 {sr(sWJ)}, {sr(sWJ)}, {3 * 64 * 6144}")
    for i in range(96):
        a(f"v_mov_b32 v{ACC + i}, 0")
    a("s_waitcnt vmcnt(20)")
    na = a.label("na")
    a(f"s_cmp_eq_u32 {sr(sW)}, 0")
    a(f"s_cbranch_scc0 {na}")
    a(f"""
    v_mov_b32 v12, 1
    s_mov_b64 exec, 1
    buffer_atomic_add v12, off, {sr(SRD_DBG,4)}, {sr(sCNT)} sc1
    s_mov_b64 exec, -1
    """)
    a(f"{na}:")
    gate_compute(a)
    a(f"s_mov_b32 {sr(sRING)}, 0")
    set_read_bases(a)
    a("s_waitcnt vmcnt(14)")
    a("s_barrier")
    a(f"v_mov_b32 {vr(vXA)}, {vr(vXB)}")
    for x in gemm_reads(0, 0):
        a(x)
    gemm_stage(a, 7, 7)
    a(f"s_mov_b32 {sr(sJ)}, 12")
    lab = a.label("gemm")
    a(".p2align 6")
    a(f"{lab}:")
    gemm_stage(a, 7, 6)
    nc = a.label("nc")
    a(f"s_cmp_eq_u32 {sr(sJ)}, {sr(sCHKJ)}")
    a(f"s_cbranch_scc0 {nc}")
    a(f"buffer_load_dword {vr(vCHK)}, off, {sr(SRD_DBG,4)}, {sr(sCNT)} sc1")
    a(f"{nc}:")
    a(f"s_sub_u32 {sr(sJ)}, {sr(sJ)}, 1")
    a(f"s_cmp_lg_u32 {sr(sJ)}, 0")
    a(f"s_cbranch_scc1 {lab}")
    gemm_stage(a, 1, 6)
    gemm_stage(a, 0, 0)
    gemm_stage(a, 0, None, last=True)
    a("s_nop 15")

def gemm_epilogue(a, opt):
    a(f"s_mov_b32 {sr(sT0)}, {hex(f2u(QSCALE))}")
    for tile in (2, 3, 4, 5):
        b = ACC + 16 * tile
        for i in range(8):
            a(f"v_cvt_pk_bf16_f32 v{b+i}, v{b+2*i}, v{b+2*i+1}")
    a(f"""
    s_lshl_b32 {sr(sT1)}, {sr(sHP)}, 1
    s_add_u32 {sr(sT1)}, {sr(sT1)}, {sr(sHH)}
    s_lshl_b32 {sr(sKVSRC)}, {sr(sT1)}, 18
    s_lshl_b32 {sr(sT1)}, {sr(sTB)}, 15
    s_lshl_b32 {sr(sT2)}, {sr(sTQ)}, 13
    s_add_u32 {sr(sT1)}, {sr(sT1)}, {sr(sT2)}
    s_add_u32 {sr(sT1)}, {sr(sT1)}, {sr(sKVSRC)}
    s_add_u32 {sr(sT2)}, {sr(sT1)}, 4096
    """)
    for tt in range(2):
        so = sT1 if tt == 0 else sT2
        kb, vb = ACC + 32 + 16 * tt, ACC + 64 + 16 * tt
        a(f"buffer_store_dwordx4 {vr(kb,4)}, {vr(vL16)}, {sr(SRD_WS,4)}, {sr(so)} offen sc1")
        a(f"buffer_store_dwordx4 {vr(kb+4,4)}, {vr(vL16)}, {sr(SRD_WS,4)}, {sr(so)} offen offset:1024 sc1")
        a(f"buffer_store_dwordx4 {vr(vb,4)}, {vr(vL16)}, {sr(SRD_WS,4)}, {sr(so)} offen offset:2048 sc1")
        a(f"buffer_store_dwordx4 {vr(vb+4,4)}, {vr(vL16)}, {sr(SRD_WS,4)}, {sr(so)} offen offset:3072 sc1")
    a(f"""
    s_lshr_b32 {sr(sT1)}, {sr(sTQ)}, 1
    s_lshl_b32 {sr(sT1)}, {sr(sT1)}, 15
    s_lshl_b32 {sr(sT2)}, {sr(sHH)}, 14
    s_add_u32 {sr(sT1)}, {sr(sT1)}, {sr(sT2)}
    s_and_b32 {sr(sT2)}, {sr(sTQ)}, 1
    s_lshl_b32 {sr(sT2)}, {sr(sT2)}, 13
    s_add_u32 {sr(sT1)}, {sr(sT1)}, {sr(sT2)}
    v_add_u32 v12, {sr(sT1)}, {vr(vL16)}
    """)
    for tt in range(2):
        kb, vb = ACC + 32 + 16 * tt, ACC + 64 + 16 * tt
        a(f"ds_write_b128 v12, {vr(kb,4)} offset:{tt*4096}")
        a(f"ds_write_b128 v12, {vr(kb+4,4)} offset:{tt*4096+1024}")
        a(f"ds_write_b128 v12, {vr(vb,4)} offset:{tt*4096+2048}")
        a(f"ds_write_b128 v12, {vr(vb+4,4)} offset:{tt*4096+3072}")
    for tt in range(2):
        b = ACC + 16 * tt
        for i in range(16):
            a(f"v_mul_f32 v{b+i}, {sr(sT0)}, v{b+i}")
        for i in range(8):
            a(f"v_cvt_pk_bf16_f32 v{QF+8*tt+i}, v{b+2*i}, v{b+2*i+1}")
    if opt.get("dump_q"):
        a(f"""
        s_lshl_b32 {sr(sT1)}, s2, 3
        s_add_u32 {sr(sT1)}, {sr(sT1)}, {sr(sW)}
        s_lshl_b32 {sr(sT1)}, {sr(sT1)}, 12
        s_add_u32 {sr(sT1)}, {sr(sT1)}, {WS_DBG}
        """)
        for i in range(4):
            a(f"buffer_store_dwordx4 {vr(QF+4*i,4)}, {vr(vL16)}, {sr(SRD_WS,4)}, {sr(sT1)} offen offset:{i*1024}")

def attn_unit(a, t, x, hooks):
    S = SS + 16 * x
    Sn = SS + 16 * (x ^ 1)
    xn = x ^ 1
    xp = x ^ 1
    Qn = QF + 8 * xn
    P0, P1 = PP, PP + 4
    def M(d, A, B, C): return f"v_mfma_f32_32x32x16_bf16 {vr(d,16)}, {vr(A,4)}, {vr(B,4)}, {vr(C,16)}"
    def m(d, A, B): return f"v_mfma_f32_16x16x32_bf16 {vr(d,4)}, {vr(A,4)}, {vr(B,4)}, {vr(d,4)}"
    e = lambda i: f"v_exp_f32 v{S+i}, v{S+i}"
    c = lambda i: f"v_cvt_pk_bf16_f32 v{PP+i}, v{S+2*i}, v{S+2*i+1}"
    mf = [M(Sn, KF, Qn, NM + 16 * xn),
          M(OA + 16 * xp, VF + 4, P1, OA + 16 * xp),
          m(LA + 4 * xp, ONES, P1),
          M(Sn, KF + 4, Qn + 4, Sn),
          M(OA + 16 * x, VF, P0, OA + 16 * x),
          m(LA + 4 * x, ONES, P0)]
    va = [[e(0), e(1), e(2)], [e(3), e(4), e(5)], [e(6), e(7), c(0), c(1), c(2), c(3)],
          [e(8), e(9), e(10)], [e(11), e(12), e(13)], [e(14), e(15), c(4), c(5), c(6), c(7)]]
    for g in range(6):
        if not (OPT.get("x_nomfma") and True):
            a(mf[g])
        for h in hooks.get(g, []):
            if OPT.get("x_nolds") and (h.startswith("ds_read") or h.startswith("s_waitcnt")):
                continue
            a(h)
        for v in va[g]:
            if OPT.get("x_noexp") and v.startswith("v_exp"):
                continue
            if OPT.get("x_nodep") and v.startswith("v_cvt"):
                v = v.split(",")[0] + ", v200, v201"
            a(v)

def kv_addr(tile, f):
    if tile < 4:
        return vCUR, tile * 4096 + f * 1024
    return vNXT, f * 1024

def rd(dst, tile, f):
    b, o = kv_addr(tile, f)
    return f"ds_read_b128 {vr(dst,4)}, {vr(b)} offset:{o}"

def kv_dma(p):
    return f"buffer_load_dwordx4 {vr(vDMA)}, {sr(SRD_WS,4)}, {sr(sOFFS)} offen offset:{p*1024} sc1 lds"

def poll_mailbox(a, want_all):
    poll, done = a.label("poll"), a.label("pdone")
    a(f"s_mov_b32 {sr(sT1)}, 400000")
    a(f"v_lshlrev_b32 v13, 2, v0")
    a(f"s_add_u32 {sr(sT2)}, {sr(sTB)}, 1")
    a(f"s_and_b32 {sr(sT2)}, {sr(sT2)}, 7")
    a(f"s_lshl_b32 {sr(sT2)}, 1, {sr(sT2)}")
    if want_all:
        a(f"s_mov_b32 {sr(sT2)}, 0xff")
    a("s_mov_b64 exec, 0xff")
    a(f"{poll}:")
    a(f"buffer_load_dword v12, v13, {sr(SRD_WS,4)}, {sr(sMB)} offen sc1")
    a("s_waitcnt vmcnt(0)")
    a("v_cmp_eq_u32 vcc, 1, v12")
    a("s_nop 3")
    a(f"s_and_b32 {sr(sT3)}, vcc_lo, {sr(sT2)}")
    a(f"s_cmp_eq_u32 {sr(sT3)}, {sr(sT2)}")
    a(f"s_cbranch_scc1 {done}")
    a(f"s_sub_u32 {sr(sT1)}, {sr(sT1)}, 1")
    a(f"s_cbranch_scc1 {done}")
    a("s_sleep 1")
    a(f"s_branch {poll}")
    a(f"{done}:")
    a("s_mov_b64 exec, -1")

def publish(a):
    spin, ok = a.label("rdy"), a.label("rdyok")
    a(f"s_mov_b32 {sr(sT1)}, 400000")
    a(f"{spin}:")
    a(f"v_readfirstlane_b32 {sr(sT0)}, {vr(vCHK)}")
    a("s_nop 3")
    a(f"s_cmp_ge_u32 {sr(sT0)}, 8")
    a(f"s_cbranch_scc1 {ok}")
    a(f"s_sub_u32 {sr(sT1)}, {sr(sT1)}, 1")
    a(f"s_cbranch_scc1 {ok}")
    a(f"buffer_load_dword {vr(vCHK)}, off, {sr(SRD_DBG,4)}, {sr(sCNT)} sc1")
    a("s_waitcnt vmcnt(0)")
    a(f"s_branch {spin}")
    a(f"{ok}:")
    a(f"""
    s_lshl_b32 {sr(sT0)}, {sr(sHP)}, 10
    s_lshl_b32 {sr(sT1)}, {sr(sTB)}, 2
    s_add_u32 {sr(sT0)}, {sr(sT0)}, {sr(sT1)}
    s_add_u32 {sr(sT0)}, {sr(sT0)}, {WS_MB}
    v_lshlrev_b32 v12, 7, v0
    v_mov_b32 v13, 1
    s_mov_b64 exec, 0xff
    buffer_store_dword v13, v12, {sr(SRD_WS,4)}, {sr(sT0)} offen sc1
    s_mov_b64 exec, -1
    """)

def attn_stage(a, opt, kind):
    prio = opt.get("prio", 1)
    def sp(n): return [f"s_setprio {n}"] if prio else []
    adv_src = [f"s_add_u32 {sr(sSRC)}, {sr(sSRC)}, 16384", f"s_and_b32 {sr(sSRC)}, {sr(sSRC)}, 0x3ffff"]
    for t in range(4):
        h0 = {0: [rd(KF, t + 1, 0)], 1: [rd(VF + 4, t, 3)], 2: ["s_waitcnt lgkmcnt(2)"],
              3: [rd(KF + 4, t + 1, 1)], 4: [], 5: ["s_waitcnt lgkmcnt(2)"]}
        h1 = {0: ["s_waitcnt lgkmcnt(1)"], 1: [], 2: ["s_waitcnt lgkmcnt(0)"], 3: [], 4: [rd(VF, t + 1, 2)], 5: []}
        if t == 0:
            h0[4] = sp(2)
            h1[1] = [f"s_cmp_lt_u32 {sr(sJ)}, 13"]
            h1[3] = [f"s_cselect_b32 {sr(sOFFS)}, {sr(sSRC)}, {WS_SIZE}"]
            h1[5] = [f"s_add_u32 m0, {sr(sSLOT)}, {sr(sLDSW)}"]
        if t == 1:
            h0[4] = sp(1)
            h1[1] = [adv_src[0]]
            h1[3] = [adv_src[1]]
            h1[5] = [f"s_add_u32 {sr(sSLOT)}, {sr(sSLOT)}, 32768"]
            if kind == 1:
                go = a.label("go")
                lanestamp(a, 203, opt, 0)
                a(f"s_cmp_eq_u32 {sr(sW)}, 0")
                a(f"s_cbranch_scc0 {go}")
                poll_mailbox(a, False)
                a(f"{go}:")
                lanestamp(a, 203, opt, 1)
                a("s_barrier")
                lanestamp(a, 203, opt, 2)
                for st in (2, 3):
                    a(f"""
                    s_lshl_b32 {sr(sT0)}, {sr(sTB)}, 1
                    s_add_u32 {sr(sT0)}, {sr(sT0)}, {st}
                    s_and_b32 {sr(sT0)}, {sr(sT0)}, 15
                    s_lshl_b32 {sr(sOFFS)}, {sr(sT0)}, 14
                    s_add_u32 m0, {sr(sLDSW)}, {st * 32768}
                    s_nop 0
                    """)
                    for p in range(4):
                        a(kv_dma(p))
                a(f"s_sub_u32 {sr(sOFFS)}, {sr(sSRC)}, 0")
                a(f"s_add_u32 m0, {sr(sSLOT)}, {sr(sLDSW)}")
        if t == 2:
            h0[4] = sp(0)
            h1[1] = [f"s_and_b32 {sr(sSLOT)}, {sr(sSLOT)}, 0x1ffff"]
            h1[3] = [f"s_add_u32 {sr(sJ)}, {sr(sJ)}, 1"]
            if kind == 0:
                bar = ["s_waitcnt vmcnt(0)", "s_barrier"]
            elif kind == 1:
                bar = None
            else:
                bar = ["s_waitcnt vmcnt(4)", "s_barrier"]
            if bar: h1[5] = bar
        if t == 3:
            h0[4] = sp(3)
            if kind == 0:
                h1[1] = []; h1[3] = []; h1[5] = []
            else:
                h0[4] = sp(3) + [kv_dma(0)]
                h1[1] = [kv_dma(1)]
                h1[3] = [kv_dma(2)]
                h1[5] = [kv_dma(3)]
        if t == 3 and kind == 0:
            np_ = a.label("np")
            a(f"s_cmp_eq_u32 {sr(sW)}, 0")
            a(f"s_cbranch_scc0 {np_}")
            publish(a)
            a(f"{np_}:")
        if t == 3 and kind == 1:
            go = a.label("go")
            a(f"s_cmp_eq_u32 {sr(sW)}, 0")
            a(f"s_cbranch_scc0 {go}")
            poll_mailbox(a, True)
            a(f"{go}:")
            a("s_waitcnt vmcnt(4)")
            a("s_barrier")
        if t == 3 and kind == 2:
            pass
        attn_unit(a, t, 0, h0)
        attn_unit(a, t, 1, h1)
    a(f"v_mov_b32 {vr(vCUR)}, {vr(vNXT)}")
    a(f"v_add_u32 {vr(vNXT)}, {sr(sNXT)}, {vr(vKVB)}")
    a(f"s_add_u32 {sr(sNXT)}, {sr(sNXT)}, 32768")
    a(f"s_and_b32 {sr(sNXT)}, {sr(sNXT)}, 0x1ffff")

def attention(a, opt):
    for i in range(32): a(f"v_mov_b32 v{OA+i}, 0")
    for i in range(8): a(f"v_mov_b32 v{LA+i}, 0")
    for i in range(4): a(f"v_mov_b32 v{PP+4+i}, 0")
    for i in range(4): a(f"v_mov_b32 v{VF+4+i}, 0")
    a(f"""
    v_bfe_u32 v12, v0, 2, 1
    v_bfe_u32 v13, v0, 4, 1
    v_cmp_eq_u32 vcc, v12, v13
    v_mov_b32 v14, 0x3f803f80
    s_nop 0
    v_cndmask_b32 v{ONES}, 0, v14, vcc
    v_mov_b32 v{ONES+1}, v{ONES}
    v_mov_b32 v{ONES+2}, v{ONES}
    v_mov_b32 v{ONES+3}, v{ONES}
    s_lshl_b32 {sr(sT0)}, {sr(sHH)}, 14
    v_add_u32 {vr(vKVB)}, {sr(sT0)}, {vr(vL16)}
    v_mov_b32 {vr(vCUR)}, {vr(vKVB)}
    v_add_u32 {vr(vNXT)}, 32768, {vr(vKVB)}
    s_lshl_b32 {sr(sT1)}, {sr(sTQ)}, 12
    s_add_u32 {sr(sLDSW)}, {sr(sT0)}, {sr(sT1)}
    s_add_u32 {sr(sKVSRC)}, {sr(sKVSRC)}, {sr(sT1)}
    v_add_u32 {vr(vDMA)}, {sr(sKVSRC)}, {vr(vL16)}
    s_lshl_b32 {sr(sSRC)}, {sr(sTB)}, 1
    s_add_u32 {sr(sSRC)}, {sr(sSRC)}, 3
    s_and_b32 {sr(sSRC)}, {sr(sSRC)}, 15
    s_lshl_b32 {sr(sSRC)}, {sr(sSRC)}, 14
    s_mov_b32 {sr(sSLOT)}, {3 * 32768}
    s_mov_b32 {sr(sNXT)}, {2 * 32768}
    s_mov_b32 {sr(sJ)}, 0
    s_waitcnt lgkmcnt(0)
    s_barrier
    """)
    a(rd(KF, 0, 0)); a(rd(KF + 4, 0, 1)); a(rd(VF, 0, 2))
    a("s_waitcnt lgkmcnt(0)")
    for x in range(2):
        S, Q = SS + 16 * x, QF + 8 * x
        a(f"v_mfma_f32_32x32x16_bf16 {vr(S,16)}, {vr(KF,4)}, {vr(Q,4)}, 0")
        a(f"v_mfma_f32_32x32x16_bf16 {vr(S,16)}, {vr(KF+4,4)}, {vr(Q+4,4)}, {vr(S,16)}")
    a("s_nop 15")
    for x in range(2):
        S = SS + 16 * x
        a(f"v_max3_f32 v12, v{S}, v{S+1}, v{S+2}")
        for i in range(3, 15, 2):
            a(f"v_max3_f32 v12, v12, v{S+i}, v{S+i+1}")
        a(f"v_max_f32 v12, v12, v{S+15}")
        a(f"""
        v_mov_b32 v13, v12
        s_nop 1
        v_permlane32_swap_b32 v13, v12
        s_nop 1
        v_max_f32 v12, v12, v13
        v_sub_f32 v12, 0, v12
        """)
        for i in range(16):
            a(f"v_mov_b32 v{NM+16*x+i}, v12")
    a("s_nop 1")
    a(f"v_mfma_f32_32x32x16_bf16 {vr(SS,16)}, {vr(KF,4)}, {vr(QF,4)}, {vr(NM,16)}")
    a(f"v_mfma_f32_32x32x16_bf16 {vr(SS,16)}, {vr(KF+4,4)}, {vr(QF+4,4)}, {vr(SS,16)}")
    lanestamp(a, 203, opt, 3)
    a("s_nop 15")
    attn_stage(a, opt, 0)
    lanestamp(a, 202, opt, 0)
    attn_stage(a, opt, 1)
    lanestamp(a, 202, opt, 1)
    loop = a.label("attn")
    a(".p2align 6")
    a(f"{loop}:")
    attn_stage(a, opt, 2)
    lanestamp(a, 202, opt, "m")
    a(f"s_cmp_lt_u32 {sr(sJ)}, 16")
    a(f"s_cbranch_scc1 {loop}")
    a("s_setprio 0")
    a("s_nop 1")
    a(f"v_mfma_f32_32x32x16_bf16 {vr(OA+16,16)}, {vr(VF+4,4)}, {vr(PP+4,4)}, {vr(OA+16,16)}")
    a(f"v_mfma_f32_16x16x32_bf16 {vr(LA+4,4)}, {vr(ONES,4)}, {vr(PP+4,4)}, {vr(LA+4,4)}")
    a("s_waitcnt lgkmcnt(0)")
    a("s_nop 15")

def attn_epilogue(a, opt):
    a(f"""
    s_lshl_b32 {sr(sT0)}, {sr(sTB)}, 3
    s_lshl_b32 {sr(sT1)}, {sr(sTQ)}, 1
    s_add_u32 {sr(sT0)}, {sr(sT0)}, {sr(sT1)}
    s_lshl_b32 {sr(sT0)}, {sr(sT0)}, 17
    s_lshl_b32 {sr(sT1)}, {sr(sHP)}, 1
    s_add_u32 {sr(sT1)}, {sr(sT1)}, {sr(sHH)}
    s_lshl_b32 {sr(sT1)}, {sr(sT1)}, 11
    s_add_u32 {sr(sT0)}, {sr(sT0)}, {sr(sT1)}
    s_add_u32 {sr(sOOFF)}, {sr(sT0)}, {WS_O}
    """)
    ok = a.label("ok")
    a(f"s_mov_b32 {sr(sT2)}, {hex(f2u(2.0**24))}")
    a(f"v_cmp_nle_f32 {sr(sM,2)}, v{LA}, {sr(sT2)}")
    a(f"v_cmp_nle_f32 {sr(sM2,2)}, v{LA+4}, {sr(sT2)}")
    a(f"s_or_b64 {sr(sM,2)}, {sr(sM,2)}, {sr(sM2,2)}")
    a("v_mov_b32 v12, 0x207")
    for i in range(32):
        a(f"v_cmp_class_f32 vcc, v{OA+i}, v12")
        a(f"s_or_b64 {sr(sM,2)}, {sr(sM,2)}, vcc")
    if opt.get("force_fallback"):
        a(f"s_mov_b64 {sr(sM,2)}, -1")
    a(f"s_cmp_eq_u64 {sr(sM,2)}, 0")
    a(f"s_cbranch_scc1 {ok}")
    fallback(a, opt)
    a(f"{ok}:")
    for x in range(2):
        a(f"v_rcp_f32 v12, v{LA+4*x}")
        a("s_nop 0")
        b = OA + 16 * x
        for i in range(16):
            a(f"v_mul_f32 v{b+i}, v12, v{b+i}")
        for i in range(8):
            a(f"v_cvt_pk_bf16_f32 v{b+i}, v{b+2*i}, v{b+2*i+1}")
        if x == 1:
            a(f"s_add_u32 {sr(sOOFF)}, {sr(sOOFF)}, 131072")
        a(f"buffer_store_dwordx4 {vr(b,4)}, {vr(vL16)}, {sr(SRD_WS,4)}, {sr(sOOFF)} offen")
        a(f"buffer_store_dwordx4 {vr(b+4,4)}, {vr(vL16)}, {sr(SRD_WS,4)}, {sr(sOOFF)} offen offset:1024")

def fallback(a, opt):
    MX = NM
    a(f"s_lshl_b32 {sr(sT0)}, {sr(sHP)}, 1")
    a(f"s_add_u32 {sr(sT0)}, {sr(sT0)}, {sr(sHH)}")
    a(f"s_lshl_b32 {sr(sBLK)}, {sr(sT0)}, 18")
    for i in range(32): a(f"v_mov_b32 v{OA+i}, 0")
    for i in range(8): a(f"v_mov_b32 v{LA+i}, 0")
    a(f"v_mov_b32 v{MX}, 0xff800000")
    a(f"v_mov_b32 v{MX+16}, 0xff800000")
    a(f"s_mov_b32 {sr(sJ)}, 0")
    loop = a.label("fb")
    a(f"{loop}:")
    a(f"buffer_load_dwordx4 {vr(KF,4)}, {vr(vL16)}, {sr(SRD_WS,4)}, {sr(sBLK)} offen sc1")
    a(f"buffer_load_dwordx4 {vr(KF+4,4)}, {vr(vL16)}, {sr(SRD_WS,4)}, {sr(sBLK)} offen offset:1024 sc1")
    a(f"buffer_load_dwordx4 {vr(VF,4)}, {vr(vL16)}, {sr(SRD_WS,4)}, {sr(sBLK)} offen offset:2048 sc1")
    a(f"buffer_load_dwordx4 {vr(VF+4,4)}, {vr(vL16)}, {sr(SRD_WS,4)}, {sr(sBLK)} offen offset:3072 sc1")
    a("s_waitcnt vmcnt(0)")
    for x in range(2):
        S, Q, O, L, mx = SS, QF + 8 * x, OA + 16 * x, LA + 4 * x, MX + 16 * x
        a(f"v_mfma_f32_32x32x16_bf16 {vr(S,16)}, {vr(KF,4)}, {vr(Q,4)}, 0")
        a(f"v_mfma_f32_32x32x16_bf16 {vr(S,16)}, {vr(KF+4,4)}, {vr(Q+4,4)}, {vr(S,16)}")
        a("s_nop 15")
        a(f"v_max3_f32 v12, v{S}, v{S+1}, v{S+2}")
        for i in range(3, 15, 2):
            a(f"v_max3_f32 v12, v12, v{S+i}, v{S+i+1}")
        a(f"v_max_f32 v12, v12, v{S+15}")
        a(f"""
        v_mov_b32 v13, v12
        s_nop 1
        v_permlane32_swap_b32 v13, v12
        s_nop 1
        v_max3_f32 v12, v12, v13, v{mx}
        v_sub_f32 v13, v{mx}, v12
        v_cmp_eq_f32 vcc, v{mx}, v12
        v_exp_f32 v13, v13
        s_nop 1
        v_cndmask_b32 v13, v13, 1.0, vcc
        v_mov_b32 v{mx}, v12
        """)
        for i in range(16):
            a(f"v_mul_f32 v{O+i}, v13, v{O+i}")
        for i in range(4):
            a(f"v_mul_f32 v{L+i}, v13, v{L+i}")
        for i in range(16):
            a(f"v_sub_f32 v{S+i}, v{S+i}, v12")
        for i in range(16):
            a(f"v_exp_f32 v{S+i}, v{S+i}")
        a("s_nop 0")
        for i in range(8):
            a(f"v_cvt_pk_bf16_f32 v{PP+i}, v{S+2*i}, v{S+2*i+1}")
        a("s_nop 1")
        a(f"v_mfma_f32_32x32x16_bf16 {vr(O,16)}, {vr(VF,4)}, {vr(PP,4)}, {vr(O,16)}")
        a(f"v_mfma_f32_32x32x16_bf16 {vr(O,16)}, {vr(VF+4,4)}, {vr(PP+4,4)}, {vr(O,16)}")
        a(f"v_mfma_f32_16x16x32_bf16 {vr(L,4)}, {vr(ONES,4)}, {vr(PP,4)}, {vr(L,4)}")
        a(f"v_mfma_f32_16x16x32_bf16 {vr(L,4)}, {vr(ONES,4)}, {vr(PP+4,4)}, {vr(L,4)}")
        a("s_nop 15")
    a(f"s_add_u32 {sr(sBLK)}, {sr(sBLK)}, 4096")
    a(f"s_add_u32 {sr(sJ)}, {sr(sJ)}, 1")
    a(f"s_cmp_lt_u32 {sr(sJ)}, 64")
    a(f"s_cbranch_scc1 {loop}")

def gstamp(a, reg):
    a("s_memtime s[70:71]")
    a("s_waitcnt lgkmcnt(0)")
    a("s_mov_b32 s69, m0")
    a("s_mov_b32 m0, s88")
    a(f"v_writelane_b32 v{reg-100}, s70, m0")
    a("s_mov_b32 m0, s69")

def lanestamp(a, reg, opt, lane=None):
    if not opt.get("stamps2"):
        return
    a("s_memtime s[70:71]")
    a("s_waitcnt lgkmcnt(0)")
    if lane == "m":
        a(f"s_mov_b32 s69, m0")
        a(f"s_sub_u32 m0, {sr(sJ)}, 1")
        a(f"v_writelane_b32 v{reg}, s70, m0")
        a(f"s_mov_b32 m0, s69")
    elif lane is None:
        a(f"s_mov_b32 s69, m0")
        a(f"s_mov_b32 m0, {sr(sJ)}")
        a(f"v_writelane_b32 v{reg}, s70, m0")
        a(f"s_mov_b32 m0, s69")
    else:
        a(f"v_writelane_b32 v{reg}, s70, {lane}")

def timestamp(a, idx, opt):
    if not opt.get("stamps"):
        return
    a(f"s_memtime s[70:71]")
    a(f"s_memrealtime s[68:69]")
    a("s_waitcnt lgkmcnt(0)")
    a(f"s_mov_b32 s{72+idx}, s70")
    a(f"s_mov_b32 s{80+idx}, s68")

def stamps_out(a, n, opt):
    if opt.get("stampsg"):
        a(f"""
        s_lshl_b32 {sr(sT1)}, s2, 3
        s_add_u32 {sr(sT1)}, {sr(sT1)}, {sr(sW)}
        s_lshl_b32 {sr(sT1)}, {sr(sT1)}, 10
        s_add_u32 {sr(sT1)}, {sr(sT1)}, {WS_DBG + (12 << 20)}
        v_lshlrev_b32 v12, 2, v0
        buffer_store_dword v104, v12, {sr(SRD_WS,4)}, {sr(sT1)} offen
        buffer_store_dword v105, v12, {sr(SRD_WS,4)}, {sr(sT1)} offen offset:256
        buffer_store_dword v106, v12, {sr(SRD_WS,4)}, {sr(sT1)} offen offset:512
        """)
    if opt.get("stamps2"):
        a(f"""
        s_lshl_b32 {sr(sT1)}, s2, 3
        s_add_u32 {sr(sT1)}, {sr(sT1)}, {sr(sW)}
        s_lshl_b32 {sr(sT1)}, {sr(sT1)}, 10
        s_add_u32 {sr(sT1)}, {sr(sT1)}, {WS_DBG + (10 << 20)}
        v_lshlrev_b32 v12, 2, v0
        buffer_store_dword v200, v12, {sr(SRD_WS,4)}, {sr(sT1)} offen
        buffer_store_dword v201, v12, {sr(SRD_WS,4)}, {sr(sT1)} offen offset:256
        buffer_store_dword v202, v12, {sr(SRD_WS,4)}, {sr(sT1)} offen offset:512
        buffer_store_dword v203, v12, {sr(SRD_WS,4)}, {sr(sT1)} offen offset:768
        """)
    if not opt.get("stamps"):
        return
    a(f"""
    s_lshl_b32 {sr(sT1)}, s2, 3
    s_add_u32 {sr(sT1)}, {sr(sT1)}, {sr(sW)}
    s_lshl_b32 {sr(sT1)}, {sr(sT1)}, 6
    s_add_u32 {sr(sT1)}, {sr(sT1)}, {WS_DBG + (8 << 20)}
    v_mov_b32 v13, 0
    """)
    for i in range(n):
        a(f"v_writelane_b32 v13, s{72+i}, {i}")
        a(f"v_writelane_b32 v13, s{80+i}, {8+i}")
    a(f"""
    v_lshlrev_b32 v12, 2, v0
    v_cmp_gt_u32 vcc, 16, v0
    s_and_saveexec_b64 {sr(sM,2)}, vcc
    buffer_store_dword v13, v12, {sr(SRD_WS,4)}, {sr(sT1)} offen
    s_mov_b64 exec, {sr(sM,2)}
    """)

OPT = {}
def k12(opt):
    OPT.clear(); OPT.update(opt)
    a = Asm()
    a(f".globl {NAME12}\n.p2align 8\n.type {NAME12},@function\n{NAME12}:")
    timestamp(a, 0, opt)
    prologue(a, opt)
    gemm(a, opt)
    timestamp(a, 1, opt)
    gemm_epilogue(a, opt)
    if opt.get("stop_after_gemm"):
        a("s_waitcnt vmcnt(0) lgkmcnt(0)")
        timestamp(a, 2, opt)
        stamps_out(a, 3, opt)
    else:
        timestamp(a, 2, opt)
        attention(a, opt)
        timestamp(a, 3, opt)
        attn_epilogue(a, opt)
        a("s_waitcnt vmcnt(0)")
        timestamp(a, 4, opt)
        stamps_out(a, 5, opt)
    a("L_end12:\ns_endpgm")
    return a.text()

KD12 = f"""
.section .rodata,"a"
.p2align 6
.amdhsa_kernel {NAME12}
  .amdhsa_next_free_vgpr 256
  .amdhsa_next_free_sgpr 96
  .amdhsa_accum_offset 256
  .amdhsa_group_segment_fixed_size 0
  .amdhsa_kernarg_size 80
  .amdhsa_user_sgpr_count 2
  .amdhsa_user_sgpr_kernarg_segment_ptr 1
  .amdhsa_system_sgpr_workgroup_id_x 1
  .amdhsa_float_denorm_mode_32 3
.end_amdhsa_kernel
"""
```

```python
from asm import Asm, vr, sr, VmTracker
from k12 import WS_O, WS_G, WS_SIZE, WS_DBG, f2u

NAME3 = "outproj_kernel"
SRD_WO, SRD_WS, SRD_OUT = 8, 12, 16
sW, sBR, sTT, sTB3, sCB = 20, 21, 22, 23, 24
sAOFF, sWOFF, sLDSW = 25, 26, 27
sT0, sT1, sT2, sT3 = 32, 33, 34, 35
sM = 36
vL16, vDW, vWR, vG, vOUT = 2, 3, 4, 5, 6
vRD = 8
ACC = 16
AF = 48
OF = 64
DEPTH = 16
NSLOT = 8

def k3(opt):
    a = Asm()
    vm = VmTracker()
    a(f".globl {NAME3}\n.p2align 8\n.type {NAME3},@function\n{NAME3}:")
    if opt.get("stamps"):
        a("s_memtime s[70:71]\ns_memrealtime s[68:69]\ns_waitcnt lgkmcnt(0)\ns_mov_b32 s72, s70\ns_mov_b32 s80, s68")
    a(f"""
    s_cmp_ge_u32 s2, 256
    s_cbranch_scc1 L_end3
    s_load_dwordx2 s[40:41], s[0:1], 16
    s_load_dwordx2 s[42:43], s[0:1], 40
    s_load_dwordx2 s[44:45], s[0:1], 56
    s_load_dwordx2 s[46:47], s[0:1], 72
    v_lshrrev_b32 v1, 6, v0
    v_and_b32 v0, 63, v0
    s_nop 0
    v_readfirstlane_b32 {sr(sW)}, v1
    s_and_b32 s3, s2, 7
    s_lshr_b32 s4, s2, 3
    s_lshr_b32 s5, s3, 1
    s_lshl_b32 s5, s5, 2
    s_and_b32 s6, s4, 3
    s_add_u32 {sr(sTB3)}, s5, s6
    s_and_b32 s5, s3, 1
    s_lshl_b32 s5, s5, 3
    s_lshr_b32 s6, s4, 2
    s_add_u32 {sr(sCB)}, s5, s6
    s_lshr_b32 {sr(sBR)}, {sr(sW)}, 2
    s_and_b32 {sr(sTT)}, {sr(sW)}, 3
    s_waitcnt lgkmcnt(0)
    s_cmp_eq_u32 {sr(sBR)}, 1
    s_cselect_b32 {sr(SRD_WO)}, s42, s40
    s_cselect_b32 {sr(SRD_WO+1)}, s43, s41
    s_mov_b32 {sr(SRD_WO+2)}, {1024*1024*2}
    s_mov_b32 {sr(SRD_WO+3)}, 0x00020000
    s_mov_b32 {sr(SRD_WS)}, s46
    s_mov_b32 {sr(SRD_WS+1)}, s47
    s_mov_b32 {sr(SRD_WS+2)}, {WS_SIZE}
    s_mov_b32 {sr(SRD_WS+3)}, 0x00020000
    s_mov_b32 {sr(SRD_OUT)}, s44
    s_mov_b32 {sr(SRD_OUT+1)}, s45
    s_mov_b32 {sr(SRD_OUT+2)}, {2048*1024*2}
    s_mov_b32 {sr(SRD_OUT+3)}, 0x00020000
    v_lshlrev_b32 {vr(vL16)}, 4, v0
    v_lshrrev_b32 v12, 3, v0                 ; r8
    v_and_b32 v13, 7, v0
    v_bfe_u32 v14, v12, 1, 1
    v_lshlrev_b32 v14, 2, v14
    v_xor_b32 v13, v13, v14
    s_lshl_b32 {sr(sT0)}, {sr(sTT)}, 4
    v_add_u32 v12, {sr(sT0)}, v12
    v_lshlrev_b32 {vr(vDW)}, 11, v12
    v_lshl_add_u32 {vr(vDW)}, v13, 4, {vr(vDW)}
    s_lshl_b32 {sr(sWOFF)}, {sr(sCB)}, 7
    s_lshl_b32 {sr(sLDSW)}, {sr(sBR)}, 13
    s_lshl_b32 {sr(sT0)}, {sr(sTT)}, 11
    s_add_u32 {sr(sLDSW)}, {sr(sLDSW)}, {sr(sT0)}
    s_lshl_b32 {sr(sT0)}, {sr(sTB3)}, 2
    s_add_u32 {sr(sT0)}, {sr(sT0)}, {sr(sTT)}
    s_lshl_b32 {sr(sAOFF)}, {sr(sT0)}, 17
    s_lshl_b32 {sr(sT1)}, {sr(sBR)}, 16
    s_add_u32 {sr(sAOFF)}, {sr(sAOFF)}, {sr(sT1)}
    s_add_u32 {sr(sAOFF)}, {sr(sAOFF)}, {WS_O}
    """)
    def dma(st):
        slot = st % NSLOT
        a(f"s_add_u32 m0, {sr(sLDSW)}, {slot * 16384}")
        a(f"s_add_u32 {sr(sT2)}, {sr(sWOFF)}, {st * 64 * 2048}")
        a(f"buffer_load_dwordx4 {vr(vDW)}, {sr(SRD_WO,4)}, {sr(sT2)} offen lds")
        vm.issue(("w", st))
        a(f"s_add_u32 m0, {sr(sLDSW)}, {slot * 16384 + 1024}")
        a(f"s_add_u32 {sr(sT3)}, {sr(sWOFF)}, {st * 64 * 2048 + 8 * 2048}")
        a(f"buffer_load_dwordx4 {vr(vDW)}, {sr(SRD_WO,4)}, {sr(sT3)} offen lds")
        vm.issue(("w", st))
    def oload(kk):
        d = kk % DEPTH
        if kk % 4 == 0:
            a(f"s_add_u32 {sr(sT1)}, {sr(sAOFF)}, {(kk // 4) * 4096}")
        a(f"buffer_load_dwordx4 {vr(OF+4*d,4)}, {vr(vL16)}, {sr(SRD_WS,4)}, {sr(sT1)} offen offset:{(kk%4)*1024}")
        vm.issue(("o", kk))
    dma(0)
    for kk in range(4): oload(kk)
    dma(1)
    for kk in range(4, 8): oload(kk)
    dma(2)
    for kk in range(8, DEPTH): oload(kk)
    for st in range(3, NSLOT): dma(st)
    a(f"""
    v_and_b32 v12, 31, v0
    s_lshl_b32 {sr(sT0)}, {sr(sTB3)}, 7
    s_lshl_b32 {sr(sT2)}, {sr(sTT)}, 5
    s_add_u32 {sr(sT0)}, {sr(sT0)}, {sr(sT2)}
    v_add_u32 v12, {sr(sT0)}, v12                  ; token
    v_lshlrev_b32 v13, 2, v12
    s_mov_b32 {sr(sT2)}, {WS_G}
    buffer_load_dword {vr(vG)}, v13, {sr(SRD_WS,4)}, {sr(sT2)} offen
    v_lshrrev_b32 v14, 5, v0                       ; h
    v_lshlrev_b32 {vr(vOUT)}, 11, v12
    v_lshl_add_u32 {vr(vOUT)}, v14, 4, {vr(vOUT)}
    v_bfe_u32 v15, v0, 2, 2                        ; r
    v_lshl_add_u32 v12, v14, 2, v15                ; 4h + r
    v_lshlrev_b32 {vr(vWR)}, 7, v12
    v_and_b32 v12, 1, v0                           ; h'
    v_bfe_u32 v13, v0, 1, 1                        ; a
    v_bfe_u32 v14, v0, 4, 1                        ; g
    v_lshl_add_u32 v12, v14, 1, v12                ; chunk16 = 2g + h'
    v_lshrrev_b32 v15, 1, v15
    v_lshlrev_b32 v15, 2, v15
    v_xor_b32 v12, v12, v15
    v_lshl_add_u32 {vr(vWR)}, v12, 4, {vr(vWR)}
    v_lshl_add_u32 {vr(vWR)}, v13, 3, {vr(vWR)}
    s_lshl_b32 {sr(sT0)}, {sr(sBR)}, 13
    v_add_u32 {vr(vRD)}, {sr(sT0)}, {vr(vWR)}
    v_xor_b32 {vr(vRD+1)}, 64, {vr(vRD)}
    v_add_u32 {vr(vRD+2)}, 0x10000, {vr(vRD)}
    v_add_u32 {vr(vRD+3)}, 0x10000, {vr(vRD+1)}
    """)
    vm.issue(("g", 0))
    for i in range(32):
        a(f"v_mov_b32 v{ACC+i}, 0")
    def wreads(st, ks, set_):
        r = []
        slot = st % NSLOT
        win, off = divmod(slot * 16384, 65536)
        for ct in range(2):
            base = AF + 8 * set_ + 4 * ct
            reg = vRD + 2 * win + ct
            r.append(f"ds_read_b64_tr_b16 {vr(base,2)}, {vr(reg)} offset:{off + ks*2048}")
            r.append(f"ds_read_b64_tr_b16 {vr(base+2,2)}, {vr(reg)} offset:{off + ks*2048+1024}")
        return r
    n = vm.wait_count(lambda t: t == ("w", 0))
    a(f"s_waitcnt vmcnt({n})")
    a("s_barrier")
    for x in wreads(0, 0, 0): a(x)
    for st in range(16):
        for ks in range(4):
            kk = 4 * st + ks
            d = kk % DEPTH
            cur = ks & 1
            nxt = []
            if ks == 3:
                if st < 15:
                    n = vm.wait_count(lambda t: t in (("w", st + 1), ("o", kk)))
                    a(f"s_waitcnt vmcnt({n}) lgkmcnt(0)")
                    a("s_barrier")
                    nxt = wreads(st + 1, 0, cur ^ 1)
                else:
                    n = vm.wait_count(lambda t: t == ("o", kk))
                    a(f"s_waitcnt vmcnt({n}) lgkmcnt(0)")
            else:
                n = vm.wait_count(lambda t: t == ("o", kk))
                a(f"s_waitcnt vmcnt({n}) lgkmcnt(0)")
                nxt = wreads(st, ks + 1, cur ^ 1)
            for ct in range(2):
                a(f"v_mfma_f32_32x32x16_bf16 {vr(ACC+16*ct,16)}, {vr(AF+8*cur+4*ct,4)}, {vr(OF+4*d,4)}, {vr(ACC+16*ct,16)}")
                for x in nxt[2*ct:2*ct+2]: a(x)
            if kk + DEPTH < 64:
                oload(kk + DEPTH)
            if ks == 3 and st + NSLOT < 16:
                dma(st + NSLOT)
    if opt.get("stamps"):
        a("s_memtime s[70:71]\ns_memrealtime s[68:69]\ns_waitcnt lgkmcnt(0)\ns_mov_b32 s73, s70\ns_mov_b32 s81, s68")
    a("s_nop 15")
    for ct in range(2):
        b = ACC + 16 * ct
        for i in range(8):
            a(f"v_cvt_pk_bf16_f32 v{b+i}, v{b+2*i}, v{b+2*i+1}")
    nosw = a.label("nosw")
    a(f"s_cmp_eq_u32 {sr(sBR)}, 0")
    a(f"s_cbranch_scc1 {nosw}")
    for i in range(8):
        a(f"v_swap_b32 v{ACC+i}, v{ACC+16+i}")
    a(f"{nosw}:")
    a(f"""
    s_lshl_b32 {sr(sT0)}, {sr(sTT)}, 12
    s_lshl_b32 {sr(sT1)}, {sr(sBR)}, 11
    s_add_u32 {sr(sT2)}, {sr(sT0)}, {sr(sT1)}
    s_xor_b32 {sr(sT1)}, {sr(sT1)}, 2048
    s_add_u32 {sr(sT3)}, {sr(sT0)}, {sr(sT1)}
    v_add_u32 v12, {sr(sT2)}, {vr(vL16)}
    v_add_u32 v13, {sr(sT3)}, {vr(vL16)}
    s_barrier
    ds_write_b128 v12, {vr(ACC+16,4)}
    ds_write_b128 v12, {vr(ACC+20,4)} offset:1024
    s_waitcnt lgkmcnt(0)
    s_barrier
    ds_read_b128 {vr(ACC+16,4)}, v13
    ds_read_b128 {vr(ACC+20,4)}, v13 offset:1024
    """)
    n = vm.wait_count(lambda t: t == ("g", 0))
    a(f"s_waitcnt vmcnt(0)")
    a(f"""
    v_sub_f32 v14, 1.0, {vr(vG)}
    v_cvt_pk_bf16_f32 v14, v14, v14
    v_lshlrev_b32 v14, 16, v14
    s_cmp_eq_u32 {sr(sBR)}, 0
    s_cselect_b64 vcc, -1, 0
    v_cndmask_b32 v15, v14, {vr(vG)}, vcc      ; c_own
    v_cndmask_b32 v14, {vr(vG)}, v14, vcc      ; c_recv
    s_waitcnt lgkmcnt(0)
    """)
    for i in range(8):
        o, r = ACC + i, ACC + 16 + i
        a(f"""
        v_lshlrev_b32 v48, 16, v{o}
        v_and_b32 v49, 0xffff0000, v{o}
        v_lshlrev_b32 v50, 16, v{r}
        v_and_b32 v51, 0xffff0000, v{r}
        v_mul_f32 v48, v15, v48
        v_mul_f32 v49, v15, v49
        v_mul_f32 v50, v14, v50
        v_mul_f32 v51, v14, v51
        v_cvt_pk_bf16_f32 v48, v48, v49
        v_cvt_pk_bf16_f32 v50, v50, v51
        v_lshlrev_b32 v49, 16, v48
        v_and_b32 v48, 0xffff0000, v48
        v_lshlrev_b32 v51, 16, v50
        v_and_b32 v50, 0xffff0000, v50
        v_add_f32 v49, v49, v51
        v_add_f32 v48, v48, v50
        v_cvt_pk_bf16_f32 v{o}, v49, v48
        """)
    a(f"""
    s_lshl_b32 {sr(sT0)}, {sr(sCB)}, 7
    s_lshl_b32 {sr(sT1)}, {sr(sBR)}, 6
    s_add_u32 {sr(sT0)}, {sr(sT0)}, {sr(sT1)}
    buffer_store_dwordx4 {vr(ACC,4)}, {vr(vOUT)}, {sr(SRD_OUT,4)}, {sr(sT0)} offen
    buffer_store_dwordx4 {vr(ACC+4,4)}, {vr(vOUT)}, {sr(SRD_OUT,4)}, {sr(sT0)} offen offset:32
    """)
    if opt.get("stamps"):
        a("s_waitcnt vmcnt(0)")
        a("s_memtime s[70:71]\ns_memrealtime s[68:69]\ns_waitcnt lgkmcnt(0)\ns_mov_b32 s74, s70\ns_mov_b32 s82, s68")
        a(f"""
        s_lshl_b32 {sr(sT1)}, s2, 3
        s_add_u32 {sr(sT1)}, {sr(sT1)}, {sr(sW)}
        s_lshl_b32 {sr(sT1)}, {sr(sT1)}, 6
        s_add_u32 {sr(sT1)}, {sr(sT1)}, {WS_DBG + (9 << 20)}
        v_mov_b32 v13, 0
        v_writelane_b32 v13, s72, 0
        v_writelane_b32 v13, s73, 1
        v_writelane_b32 v13, s74, 2
        v_writelane_b32 v13, s80, 8
        v_writelane_b32 v13, s81, 9
        v_writelane_b32 v13, s82, 10
        v_lshlrev_b32 v12, 2, v0
        v_cmp_gt_u32 vcc, 16, v0
        s_and_saveexec_b64 {sr(sM,2)}, vcc
        buffer_store_dword v13, v12, {sr(SRD_WS,4)}, {sr(sT1)} offen
        s_mov_b64 exec, {sr(sM,2)}
        """)
    a("L_end3:\ns_endpgm")
    return a.text()

KD3 = f"""
.section .rodata,"a"
.p2align 6
.amdhsa_kernel {NAME3}
  .amdhsa_next_free_vgpr 128
  .amdhsa_next_free_sgpr 96
  .amdhsa_accum_offset 128
  .amdhsa_group_segment_fixed_size 0
  .amdhsa_kernarg_size 80
  .amdhsa_user_sgpr_count 2
  .amdhsa_user_sgpr_kernarg_segment_ptr 1
  .amdhsa_system_sgpr_workgroup_id_x 1
  .amdhsa_float_denorm_mode_32 3
.end_amdhsa_kernel
"""
```

```python
from asm import Asm, vr, sr, VmTracker

NAME12 = "gated_mix__mha_block__softmax_full_mha__prompt_kernel"
WS_KV = 0
WS_O = 16 << 20
WS_G = 24 << 20
WS_MB = 25 << 20
WS_MB2 = WS_MB + 65536
WS_DBG = 32 << 20
WS_SIZE = 0x10000000
LOG2E = 1.4426950408889634
QSCALE = LOG2E / (32 ** 0.5)

import struct
def f2u(x): return struct.unpack("<I", struct.pack("<f", x))[0]

SRD_X, SRD_W, SRD_WS, SRD_DBG, SRD_GW = 8, 12, 16, 20, 24
sW, sHH, sTQ, sHP, sTB = 28, 29, 30, 31, 32
sW1K = 33
sXJ = 34
sWJ = 35
sRING = 36
sRINGW = 37
sJ = 38
sT0, sT1, sT2, sT3 = 40, 41, 42, 43
sXQ = 44
sKVSRC = 45
sSLOT = 46
sBLK = 47
sM = 48
sM2 = 50
sOOFF = 52
sCNT = 53
sMB = 54
sLDSW = 55
sSRC = 39
sOFFS = 64
sNXT = 65
sCHKJ = 66
sARRJ = 67
sGOFF = 68
SRD_WO, SRD_OUT = 4, 56
sTB3, sCB, sROT, sMB2 = 60, 61, 62, 63
sAOFF, sWOFF = 100, 101
sLDSW3 = 34
vDW3 = 6
vLANE = 0
vDX, vDW, vXP, vWP, vXA, vW0 = 2, 3, 4, 5, 6, 7
vL16 = 10
vXB = 11
vT = 12
FR = [64, 84]
ACC = 160
QF = 16
OA = 32
LA = 64
NM = 72
SS = 104
PP = 136
KF = 144
VF = 152
ONES = 160
vCUR, vNXT = 2, 3
vKVB, vDMA = 4, 5
vCHK = 15

RING = 20 * 8192

def wrap_add(a, dst, src, const, tmp):
    a(f"s_add_u32 {sr(tmp)}, {sr(src)}, {const}")
    a(f"s_sub_u32 {dst}, {sr(tmp)}, {RING}")
    a(f"s_cselect_b32 {dst}, {sr(tmp)}, {dst}")

def prologue(a, opt):
    a(f"""
    s_cmp_ge_u32 s2, 256
    s_cbranch_scc1 L_end12
    s_load_dwordx4 s[56:59], s[0:1], 0
    s_load_dwordx2 s[60:61], s[0:1], 32
    s_load_dwordx2 s[62:63], s[0:1], 48
    s_load_dwordx4 s[88:91], s[0:1], 64
    s_load_dwordx2 s[94:95], s[0:1], 16
    s_load_dwordx2 s[96:97], s[0:1], 40
    s_load_dwordx2 s[98:99], s[0:1], 56
    v_lshrrev_b32 v1, 6, v0
    v_and_b32 v0, 63, v0
    s_and_b32 s3, s2, 7
    v_readfirstlane_b32 {sr(sW)}, v1
    s_lshr_b32 s4, s2, 3
    s_and_b32 s5, s4, 3
    s_lshl_b32 s3, s3, 2
    s_add_u32 {sr(sHP)}, s3, s5
    s_lshr_b32 {sr(sTB)}, s4, 2
    s_lshr_b32 {sr(sHH)}, {sr(sW)}, 2
    s_and_b32 {sr(sTQ)}, {sr(sW)}, 3
    s_lshl_b32 {sr(sW1K)}, {sr(sW)}, 10
    """)
    a(f"""
    v_lshrrev_b32 v13, 3, v0                 ; r8
    v_and_b32 v14, 7, v0                     ; c'
    s_and_b32 {sr(sT0)}, {sr(sW)}, 1
    s_lshl_b32 {sr(sT0)}, {sr(sT0)}, 2
    v_lshrrev_b32 v15, 1, v13                ; r8>>1 (0..3)
    v_add_u32 v1, {sr(sT0)}, v15             ; 4*(w&1) + (r8>>1)
    v_xor_b32 v1, v1, v14                    ; cX
    s_lshl_b32 {sr(sT1)}, {sr(sW)}, 3
    v_add_u32 v13, {sr(sT1)}, v13            ; 8w + r8
    v_lshlrev_b32 {vr(vDX)}, 11, v13
    v_lshl_add_u32 {vr(vDX)}, v1, 4, {vr(vDX)}
    v_and_b32 v15, 1, v15
    v_lshlrev_b32 v15, 2, v15
    v_xor_b32 v15, v15, v14                  ; cW
    s_mov_b32 {sr(sT1)}, 6144
    v_mul_lo_u32 {vr(vDW)}, v13, {sr(sT1)}
    v_lshl_add_u32 {vr(vDW)}, v15, 4, {vr(vDW)}
    s_lshl_b32 {sr(sXJ)}, {sr(sTB)}, 19          ; tb*256*2048
    s_and_b32 {sr(sWJ)}, {sr(sHP)}, 15
    s_lshl_b32 {sr(sWJ)}, {sr(sWJ)}, 7           ; hpl*128
    s_waitcnt lgkmcnt(0)
    """)
    if opt.get("stamps_start"): timestamp(a, 1, opt)
    a(f"""
    s_mov_b32 {sr(SRD_X)}, s56
    s_mov_b32 {sr(SRD_X+1)}, s57
    s_mov_b32 {sr(SRD_X+2)}, {2048*1024*2}
    s_mov_b32 {sr(SRD_X+3)}, 0x00020000
    s_cmp_ge_u32 {sr(sHP)}, 16
    s_cselect_b32 {sr(SRD_W)}, s60, s58
    s_cselect_b32 {sr(SRD_W+1)}, s61, s59
    s_mov_b32 {sr(SRD_W+2)}, {1024*3072*2}
    s_mov_b32 {sr(SRD_W+3)}, 0x00020000
    """)
    for g in range(20):
        dma_unit_static(a, g)
        if g == 6 and opt.get("stamps_start"): timestamp(a, 2, opt)
    if opt.get("stamps_start"): timestamp(a, 3, opt)
    a(f"""
    s_mov_b32 {sr(SRD_WS)}, s90
    s_mov_b32 {sr(SRD_WS+1)}, s91
    s_mov_b32 {sr(SRD_WS+2)}, {WS_SIZE}
    s_mov_b32 {sr(SRD_WS+3)}, 0x00020000
    s_mov_b32 {sr(SRD_DBG)}, s88
    s_mov_b32 {sr(SRD_DBG+1)}, s89
    s_mov_b32 {sr(SRD_DBG+2)}, 256
    s_mov_b32 {sr(SRD_DBG+3)}, 0x00020000
    s_mov_b32 {sr(SRD_GW)}, s62
    s_mov_b32 {sr(SRD_GW+1)}, s63
    s_mov_b32 {sr(SRD_GW+2)}, 2048
    s_mov_b32 {sr(SRD_GW+3)}, 0x00020000
    """)
    a(f"""
    s_and_b32 s3, s2, 7
    s_lshr_b32 {sr(sT1)}, s2, 3
    s_lshr_b32 {sr(sT2)}, s3, 1
    s_lshl_b32 {sr(sT2)}, {sr(sT2)}, 2
    s_and_b32 {sr(sT3)}, {sr(sT1)}, 3
    s_add_u32 {sr(sTB3)}, {sr(sT2)}, {sr(sT3)}
    s_and_b32 {sr(sT2)}, s3, 1
    s_lshl_b32 {sr(sT2)}, {sr(sT2)}, 3
    s_lshr_b32 {sr(sT1)}, {sr(sT1)}, 2
    s_add_u32 {sr(sCB)}, {sr(sT2)}, {sr(sT1)}
    s_add_u32 {sr(sROT)}, {sr(sTB3)}, {sr(sCB)}
    s_and_b32 {sr(sROT)}, {sr(sROT)}, 15
    s_lshl_b32 {sr(sMB2)}, {sr(sTB3)}, 4
    s_add_u32 {sr(sMB2)}, {sr(sMB2)}, {sr(sCB)}
    s_lshl_b32 {sr(sMB2)}, {sr(sMB2)}, 7
    s_add_u32 {sr(sMB2)}, {sr(sMB2)}, {WS_MB2}
    s_cmp_eq_u32 {sr(sHH)}, 1
    s_cselect_b32 {sr(SRD_WO)}, s96, s94
    s_cselect_b32 {sr(SRD_WO+1)}, s97, s95
    s_mov_b32 {sr(SRD_WO+2)}, {1024*1024*2}
    s_mov_b32 {sr(SRD_WO+3)}, 0x00020000
    s_mov_b32 {sr(SRD_OUT)}, s98
    s_mov_b32 {sr(SRD_OUT+1)}, s99
    s_mov_b32 {sr(SRD_OUT+2)}, {2048*1024*2}
    s_mov_b32 {sr(SRD_OUT+3)}, 0x00020000
    """)
    nr = a.label("nr")
    a(f"""
    s_lshl_b32 {sr(sMB)}, {sr(sHP)}, 3
    s_add_u32 {sr(sMB)}, {sr(sMB)}, {sr(sTB)}
    s_lshl_b32 {sr(sMB)}, {sr(sMB)}, 7
    s_add_u32 {sr(sMB)}, {sr(sMB)}, {WS_MB}
    s_lshl_b32 {sr(sCNT)}, {sr(sHP)}, 3
    s_cmp_eq_u32 {sr(sW)}, 0
    s_cselect_b32 {sr(sCHKJ)}, 5, 0xffff
    s_cselect_b32 {sr(sARRJ)}, 11, 0xffff
    s_cbranch_scc0 {nr}
    v_lshlrev_b32 v12, 2, v0
    s_sub_u32 {sr(sT0)}, {sr(sMB2)}, 128
    v_mov_b32 v13, {sr(sMB)}
    v_mov_b32 v14, {sr(sT0)}
    v_cmp_gt_u32 vcc, 32, v0
    s_nop 1
    v_cndmask_b32 v13, v14, v13, vcc
    v_add_u32 v12, v12, v13
    v_mov_b32 v13, 0
    buffer_store_dword v13, v12, {sr(SRD_WS,4)}, 0 offen sc1
    {nr}:
    """)
    a(f"""
    s_lshl_b32 {sr(sT0)}, {sr(sTB)}, 8
    s_lshl_b32 {sr(sT1)}, {sr(sHP)}, 3
    s_add_u32 {sr(sT0)}, {sr(sT0)}, {sr(sT1)}
    s_add_u32 {sr(sT0)}, {sr(sT0)}, {sr(sW)}
    s_lshl_b32 {sr(sT2)}, {sr(sT0)}, 11
    v_lshlrev_b32 v12, 5, v0
    buffer_load_dwordx4 v[16:19], v12, {sr(SRD_X,4)}, {sr(sT2)} offen
    buffer_load_dwordx4 v[20:23], v12, {sr(SRD_X,4)}, {sr(sT2)} offen offset:16
    buffer_load_dwordx4 v[24:27], v12, {sr(SRD_GW,4)}, 0 offen
    buffer_load_dwordx4 v[28:31], v12, {sr(SRD_GW,4)}, 0 offen offset:16
    s_lshl_b32 {sr(sGOFF)}, {sr(sT0)}, 2
    """)
    a(f"""
    v_and_b32 v13, 31, v0
    v_lshrrev_b32 v14, 5, v0                 ; h
    v_bfe_u32 v15, v13, 1, 3
    v_xor_b32 v15, v15, v14
    v_lshlrev_b32 {vr(vXP)}, 7, v13
    v_lshl_add_u32 {vr(vXP)}, v15, 4, {vr(vXP)}
    v_bfe_u32 v13, v0, 2, 2                  ; r
    v_lshl_add_u32 v1, v14, 3, v13           ; 8h + r
    v_lshlrev_b32 {vr(vWP)}, 7, v1
    v_bfe_u32 v15, v0, 4, 1                  ; g
    v_lshlrev_b32 v15, 1, v15
    v_bfe_u32 v1, v0, 1, 1                   ; c>>1
    v_add_u32 v15, v15, v1
    s_lshl_b32 {sr(sT1)}, {sr(sHH)}, 2
    v_add_u32 v15, {sr(sT1)}, v15            ; cc
    v_lshrrev_b32 v13, 1, v13
    v_lshlrev_b32 v13, 2, v13
    v_xor_b32 v15, v15, v13
    v_lshl_add_u32 {vr(vWP)}, v15, 4, {vr(vWP)}
    v_and_b32 v1, 1, v0
    v_lshl_add_u32 {vr(vWP)}, v1, 3, {vr(vWP)}
    v_lshlrev_b32 {vr(vL16)}, 4, v0
    s_add_u32 {sr(sXQ)}, {sr(sTQ)}, 3
    s_lshl_b32 {sr(sXQ)}, {sr(sXQ)}, 13
    """)

def dma_unit_static(a, g):
    j, u = divmod(g, 7)
    a(f"s_add_u32 m0, {sr(sW1K)}, {(g % 20) * 8192}")
    if u < 3:
        a(f"s_add_u32 {sr(sT0)}, {sr(sWJ)}, {j * 64 * 6144 + u * 2048}")
        a(f"buffer_load_dwordx4 {vr(vDW)}, {sr(SRD_W,4)}, {sr(sT0)} offen lds")
    else:
        a(f"s_add_u32 {sr(sT0)}, {sr(sXJ)}, {j * 128 + (u - 3) * 131072}")
        a(f"buffer_load_dwordx4 {vr(vDX)}, {sr(SRD_X,4)}, {sr(sT0)} offen lds")

def gate_instrs():
    c = ["v_mov_b32 v12, 0"]
    for i in range(8):
        x, w = 16 + i, 24 + i
        c += [f"v_lshlrev_b32 v13, 16, v{x}", f"v_and_b32 v14, 0xffff0000, v{x}", f"v_lshlrev_b32 v32, 16, v{w}",
              f"v_and_b32 v1, 0xffff0000, v{w}", "v_mul_f32 v13, v13, v32", "v_mul_f32 v14, v14, v1",
              "v_cvt_pk_bf16_f32 v13, v13, v14", "v_lshlrev_b32 v14, 16, v13", "v_and_b32 v13, 0xffff0000, v13",
              "v_add_f32 v12, v12, v14", "v_add_f32 v12, v12, v13"]
    for sh in (1, 2, 4, 8):
        c += [f"s_nop 1\nv_add_f32_dpp v12, v12, v12 row_shr:{sh} row_mask:0xf bank_mask:0xf bound_ctrl:0"]
    c += ["s_nop 1\nv_add_f32_dpp v12, v12, v12 row_bcast:15 row_mask:0xa bank_mask:0xf"]
    c += ["s_nop 1\nv_add_f32_dpp v12, v12, v12 row_bcast:31 row_mask:0xc bank_mask:0xf"]
    c += ["s_nop 1\nv_cvt_pk_bf16_f32 v12, v12, v12", "v_lshlrev_b32 v12, 16, v12", f"v_mul_f32 v12, {hex(f2u(-LOG2E))}, v12",
          "v_exp_f32 v12, v12\ns_nop 0\nv_add_f32 v12, 1.0, v12", "v_rcp_f32 v12, v12\ns_nop 0\nv_cvt_pk_bf16_f32 v12, v12, v12",
          "v_lshlrev_b32 v12, 16, v12", f"v_mov_b32 v13, {WS_G}"]
    st = [f"""s_mov_b32 exec_lo, 0
    s_mov_b32 exec_hi, 0x80000000
    buffer_store_dword v12, v13, {sr(SRD_WS,4)}, {sr(sGOFF)} offen sc1
    s_mov_b64 exec, -1"""]
    return c, st

def frag(set_, name):
    off = {"X0": 0, "X1": 4, "Wq": 8, "Wk": 12, "Wv": 16}[name]
    return FR[set_] + off

def gemm_reads(ks, set_):
    r = []
    r.append(f"ds_read_b128 {vr(frag(set_,'X0'),4)}, {vr(vXA)}")
    for u, nm in enumerate(("Wq", "Wk", "Wv")):
        b = frag(set_, nm)
        r.append(f"ds_read_b64_tr_b16 {vr(b,2)}, {vr(vW0+u)} offset:{ks*2048}")
        r.append(f"ds_read_b64_tr_b16 {vr(b+2,2)}, {vr(vW0+u)} offset:{ks*2048+512}")
        if u == 0:
            r.append(f"ds_read_b128 {vr(frag(set_,'X1'),4)}, {vr(vXA)} offset:4096")
    return r

def gemm_mfmas(set_, first=False):
    m = []
    X0, X1 = frag(set_, "X0"), frag(set_, "X1")
    Wq, Wk, Wv = frag(set_, "Wq"), frag(set_, "Wk"), frag(set_, "Wv")
    def mf(acc, A, B): return f"v_mfma_f32_32x32x16_bf16 {vr(acc,16)}, {vr(A,4)}, {vr(B,4)}, {'0' if first else vr(acc,16)}"
    m.append(mf(ACC + 0, Wq, X0))
    m.append(mf(ACC + 32, Wk, X0))
    m.append(mf(ACC + 64, X0, Wv))
    m.append(mf(ACC + 16, Wq, X1))
    m.append(mf(ACC + 48, Wk, X1))
    m.append(mf(ACC + 80, X1, Wv))
    return m

def wrap_list(dst, src, const, tmp):
    return [f"s_add_u32 {sr(tmp)}, {sr(src)}, {const}", f"s_sub_u32 {dst}, {sr(tmp)}, {RING}", f"s_cselect_b32 {dst}, {sr(tmp)}, {dst}"]

def read_bases_list():
    r = [f"v_add_u32 {vr(vW0)}, {sr(sRING)}, {vr(vWP)}"]
    for u in (1, 2):
        r += wrap_list(sr(sT1), sRING, u * 8192, sT0)
        r.append(f"v_add_u32 {vr(vW0+u)}, {sr(sT1)}, {vr(vWP)}")
    r += [f"s_add_u32 {sr(sT0)}, {sr(sRING)}, {sr(sXQ)}", f"s_sub_u32 {sr(sT1)}, {sr(sT0)}, {RING}",
          f"s_cselect_b32 {sr(sT1)}, {sr(sT0)}, {sr(sT1)}", f"v_add_u32 {vr(vXB)}, {sr(sT1)}, {vr(vXP)}",
          f"v_mov_b32 {vr(vXA)}, {vr(vXB)}"]
    return r

def dma_group(i):
    if OPT.get("g_nodma"): return []
    s = [f"s_add_u32 {sr(sT2)}, {sr(sRINGW)}, {i * 8192}", f"s_sub_u32 m0, {sr(sT2)}, {RING}", f"s_cselect_b32 m0, {sr(sT2)}, m0"]
    if i == 0:
        s.append(f"s_add_u32 {sr(sT3)}, {sr(sXJ)}, {3 * 131072 - 128}")
        s.append(f"buffer_load_dwordx4 {vr(vDX)}, {sr(SRD_X,4)}, {sr(sT3)} offen lds")
    elif i <= 3:
        s.append(f"s_add_u32 {sr(sT3)}, {sr(sWJ)}, {(i - 1) * 2048}")
        s.append(f"buffer_load_dwordx4 {vr(vDW)}, {sr(SRD_W,4)}, {sr(sT3)} offen lds")
    else:
        s.append(f"s_add_u32 {sr(sT3)}, {sr(sXJ)}, {(i - 4) * 131072}")
        s.append(f"buffer_load_dwordx4 {vr(vDX)}, {sr(SRD_X,4)}, {sr(sT3)} offen lds")
    return s

def kstep(a, cur, next_ks, gaps_extra, first=False):
    m = gemm_mfmas(cur, first)
    r = gemm_reads(next_ks, cur ^ 1) if next_ks is not None else []
    gaps = [[] for _ in range(6)]
    for i, x in enumerate(r):
        gaps[min(i // 3, 5)].append(x)
    for g in range(6):
        gaps[g] += gaps_extra.get(g, [])
    for i in range(6):
        a(m[i])
        for x in gaps[i]:
            a(x)

def gemm_stage(a, pending, new_batch, vm_wait, first=False, last=False, valu=None, after_bar=None):
    prio = OPT.get("gprio", 1)
    sp = lambda n: [f"s_setprio {n}"] if prio else []
    valu = list(valu or [])
    per = (len(valu) + 2) // 3
    for ks in range(3):
        ex = {}
        mine = [i for i in pending if (i - 2) // 2 == ks]
        if mine:
            ex[2] = dma_group(mine[0])
        if len(mine) > 1:
            ex[4] = dma_group(mine[1])
        chunk = valu[ks * per:(ks + 1) * per]
        n3 = (len(chunk) + 2) // 3
        for k, g in enumerate((1, 3, 5)):
            ex[g] = ex.get(g, []) + chunk[k * n3:(k + 1) * n3]
        ex[0] = sp(2 - ks)
        if ks < 2:
            ex[5] = ex.get(5, []) + [f"v_xor_b32 {vr(vXA)}, {(ks + 2) << 5}, {vr(vXB)}"]
        else:
            upd = [f"s_add_u32 {sr(sRINGW)}, {sr(sRING)}, {sr(sW1K)}", f"s_add_u32 {sr(sXJ)}, {sr(sXJ)}, 128",
                   f"s_add_u32 {sr(sWJ)}, {sr(sWJ)}, {64 * 6144}"] + wrap_list(sr(sRING), sRING, 7 * 8192, sT0)
            ex[3] = ex.get(3, []) + upd
            if not last:
                ex[4] = ex.get(4, []) + read_bases_list()
        a("s_waitcnt lgkmcnt(0)")
        kstep(a, ks & 1, ks + 1, ex, first=(first and ks == 0))
    if OPT.get("stampsg"):
        a("s_waitcnt lgkmcnt(0)")
        gstamp(a, 204)
    if vm_wait is not None:
        a(f"s_waitcnt vmcnt({vm_wait}) lgkmcnt(0)")
    else:
        a("s_waitcnt lgkmcnt(0)")
    if OPT.get("stampsg"): gstamp(a, 205)
    if not OPT.get("g_nobar"): a("s_barrier")
    if OPT.get("stampsg"):
        gstamp(a, 206)
        a("s_add_u32 s87, s87, 1")
    ex = {0: sp(3)}
    if len(new_batch) > 0: ex[2] = dma_group(new_batch[0])
    if len(new_batch) > 1: ex[4] = dma_group(new_batch[1])
    if not last:
        ex[5] = [f"v_xor_b32 {vr(vXA)}, {1 << 5}, {vr(vXB)}"]
    if after_bar:
        ex[5] = ex.get(5, []) + after_bar
    kstep(a, 1, None if last else 0, ex)

def gemm(a, opt):
    if OPT.get("stampsg"): a("s_mov_b32 s87, 0")
    a(f"s_add_u32 {sr(sXJ)}, {sr(sXJ)}, {2 * 128}")
    a(f"s_add_u32 {sr(sWJ)}, {sr(sWJ)}, {2 * 64 * 6144}")
    a(f"s_mov_b32 {sr(sRING)}, 0")
    for x in read_bases_list(): a(x)
    if opt.get("stamps_start"): timestamp(a, 4, opt)
    a("s_waitcnt vmcnt(17)")
    if opt.get("stamps_start"): timestamp(a, 5, opt)
    a("s_barrier")
    if opt.get("stamps_start"): timestamp(a, 6, opt)
    for x in gemm_reads(0, 0):
        a(x)
    a(f"v_xor_b32 {vr(vXA)}, {1 << 5}, {vr(vXB)}")
    gemm_stage(a, [], [0, 1], 10, first=True)
    a(f"s_mov_b32 {sr(sJ)}, 12")
    lab = a.label("gemm")
    a(".p2align 6")
    a(f"{lab}:")
    gemm_stage(a, [2, 3, 4, 5, 6], [0, 1], 6)
    nc = a.label("nc"); nd = a.label("nd")
    a(f"s_cmp_eq_u32 {sr(sJ)}, {sr(sARRJ)}")
    a(f"s_cbranch_scc0 {nd}")
    a(f"""
    v_mov_b32 v12, 1
    s_mov_b64 exec, 1
    buffer_atomic_add v12, off, {sr(SRD_DBG,4)}, {sr(sCNT)} sc1
    s_mov_b64 exec, -1
    s_nop 3
    """)
    a(f"{nd}:")
    a(f"s_cmp_eq_u32 {sr(sJ)}, {sr(sCHKJ)}")
    a(f"s_cbranch_scc0 {nc}")
    a(f"v_lshlrev_b32 v12, 2, v0")
    a(f"buffer_load_dword {vr(vCHK)}, v12, {sr(SRD_DBG,4)}, 0 offen sc1")
    a(f"{nc}:")
    a(f"s_sub_u32 {sr(sJ)}, {sr(sJ)}, 1")
    a(f"s_cmp_lg_u32 {sr(sJ)}, 0")
    a(f"s_cbranch_scc1 {lab}")
    gc, gs = gate_instrs()
    gemm_stage(a, [2, 3, 4, 5, 6], [0], 6)
    gemm_stage(a, [], [], 0, valu=gc, after_bar=gs + ["s_nop 3"])
    gemm_stage(a, [], [], None, last=True)
    a("s_setprio 0")
    a("s_nop 15")

def gemm_epilogue(a, opt):
    a(f"s_mov_b32 {sr(sT0)}, {hex(f2u(QSCALE))}")
    for tile in (2, 3, 4, 5):
        b = ACC + 16 * tile
        for i in range(8):
            a(f"v_cvt_pk_bf16_f32 v{b+i}, v{b+2*i}, v{b+2*i+1}")
    a(f"""
    s_lshl_b32 {sr(sT1)}, {sr(sHP)}, 1
    s_add_u32 {sr(sT1)}, {sr(sT1)}, {sr(sHH)}
    s_lshl_b32 {sr(sKVSRC)}, {sr(sT1)}, 18
    s_lshl_b32 {sr(sT1)}, {sr(sTB)}, 15
    s_lshl_b32 {sr(sT2)}, {sr(sTQ)}, 13
    s_add_u32 {sr(sT1)}, {sr(sT1)}, {sr(sT2)}
    s_add_u32 {sr(sT1)}, {sr(sT1)}, {sr(sKVSRC)}
    s_add_u32 {sr(sT2)}, {sr(sT1)}, 4096
    """)
    for tt in range(2):
        so = sT1 if tt == 0 else sT2
        kb, vb = ACC + 32 + 16 * tt, ACC + 64 + 16 * tt
        a(f"buffer_store_dwordx4 {vr(kb,4)}, {vr(vL16)}, {sr(SRD_WS,4)}, {sr(so)} offen sc1")
        a(f"buffer_store_dwordx4 {vr(kb+4,4)}, {vr(vL16)}, {sr(SRD_WS,4)}, {sr(so)} offen offset:1024 sc1")
        a(f"buffer_store_dwordx4 {vr(vb,4)}, {vr(vL16)}, {sr(SRD_WS,4)}, {sr(so)} offen offset:2048 sc1")
        a(f"buffer_store_dwordx4 {vr(vb+4,4)}, {vr(vL16)}, {sr(SRD_WS,4)}, {sr(so)} offen offset:3072 sc1")
    a(f"""
    s_lshr_b32 {sr(sT1)}, {sr(sTQ)}, 1
    s_lshl_b32 {sr(sT1)}, {sr(sT1)}, 15
    s_lshl_b32 {sr(sT2)}, {sr(sHH)}, 14
    s_add_u32 {sr(sT1)}, {sr(sT1)}, {sr(sT2)}
    s_and_b32 {sr(sT2)}, {sr(sTQ)}, 1
    s_lshl_b32 {sr(sT2)}, {sr(sT2)}, 13
    s_add_u32 {sr(sT1)}, {sr(sT1)}, {sr(sT2)}
    v_add_u32 v12, {sr(sT1)}, {vr(vL16)}
    """)
    for tt in range(2):
        kb, vb = ACC + 32 + 16 * tt, ACC + 64 + 16 * tt
        a(f"ds_write_b128 v12, {vr(kb,4)} offset:{tt*4096}")
        a(f"ds_write_b128 v12, {vr(kb+4,4)} offset:{tt*4096+1024}")
        a(f"ds_write_b128 v12, {vr(vb,4)} offset:{tt*4096+2048}")
        a(f"ds_write_b128 v12, {vr(vb+4,4)} offset:{tt*4096+3072}")
    for tt in range(2):
        b = ACC + 16 * tt
        for i in range(16):
            a(f"v_mul_f32 v{b+i}, {sr(sT0)}, v{b+i}")
        for i in range(8):
            a(f"v_cvt_pk_bf16_f32 v{QF+8*tt+i}, v{b+2*i}, v{b+2*i+1}")
    if opt.get("dump_q"):
        a(f"""
        s_lshl_b32 {sr(sT1)}, s2, 3
        s_add_u32 {sr(sT1)}, {sr(sT1)}, {sr(sW)}
        s_lshl_b32 {sr(sT1)}, {sr(sT1)}, 12
        s_add_u32 {sr(sT1)}, {sr(sT1)}, {WS_DBG}
        """)
        for i in range(4):
            a(f"buffer_store_dwordx4 {vr(QF+4*i,4)}, {vr(vL16)}, {sr(SRD_WS,4)}, {sr(sT1)} offen offset:{i*1024}")

def attn_unit(a, t, x, hooks):
    S = SS + 16 * x
    Sn = SS + 16 * (x ^ 1)
    xn = x ^ 1
    xp = x ^ 1
    Qn = QF + 8 * xn
    P0, P1 = PP, PP + 4
    def M(d, A, B, C): return f"v_mfma_f32_32x32x16_bf16 {vr(d,16)}, {vr(A,4)}, {vr(B,4)}, {vr(C,16)}"
    def m(d, A, B): return f"v_mfma_f32_16x16x32_bf16 {vr(d,4)}, {vr(A,4)}, {vr(B,4)}, {vr(d,4)}"
    e = lambda i: f"v_exp_f32 v{S+i}, v{S+i}"
    c = lambda i: f"v_cvt_pk_bf16_f32 v{PP+i}, v{S+2*i}, v{S+2*i+1}"
    mf = [M(Sn, KF, Qn, NM + 16 * xn),
          M(OA + 16 * xp, VF + 4, P1, OA + 16 * xp),
          m(LA + 4 * xp, ONES, P1),
          M(Sn, KF + 4, Qn + 4, Sn),
          M(OA + 16 * x, VF, P0, OA + 16 * x),
          m(LA + 4 * x, ONES, P0)]
    va = [[e(0), e(1), e(2)], [e(3), e(4), e(5)], [e(6), e(7), c(0), c(1), c(2), c(3)],
          [e(8), e(9), e(10)], [e(11), e(12), e(13)], [e(14), e(15), c(4), c(5), c(6), c(7)]]
    for g in range(6):
        if not (OPT.get("x_nomfma") and True):
            a(mf[g])
        for h in hooks.get(g, []):
            if OPT.get("x_nolds") and (h.startswith("ds_read") or h.startswith("s_waitcnt")):
                continue
            a(h)
        for v in va[g]:
            if OPT.get("x_noexp") and v.startswith("v_exp"):
                continue
            if OPT.get("x_nodep") and v.startswith("v_cvt"):
                v = v.split(",")[0] + ", v200, v201"
            a(v)

def kv_addr(tile, f):
    if tile < 4:
        return vCUR, tile * 4096 + f * 1024
    return vNXT, f * 1024

def rd(dst, tile, f):
    b, o = kv_addr(tile, f)
    return f"ds_read_b128 {vr(dst,4)}, {vr(b)} offset:{o}"

def kv_dma(p):
    return f"buffer_load_dwordx4 {vr(vDMA)}, {sr(SRD_WS,4)}, {sr(sOFFS)} offen offset:{p*1024} sc1 lds"

def poll_mailbox(a, want_all):
    poll, done = a.label("poll"), a.label("pdone")
    a(f"s_mov_b32 {sr(sT1)}, 400000")
    a(f"v_lshlrev_b32 v13, 2, v0")
    a(f"s_add_u32 {sr(sT2)}, {sr(sTB)}, 1")
    a(f"s_and_b32 {sr(sT2)}, {sr(sT2)}, 7")
    a(f"s_lshl_b32 {sr(sT2)}, 1, {sr(sT2)}")
    if want_all:
        a(f"s_mov_b32 {sr(sT2)}, 0xff")
    a("s_mov_b64 exec, 0xff")
    a(f"{poll}:")
    a(f"buffer_load_dword v12, v13, {sr(SRD_WS,4)}, {sr(sMB)} offen sc1")
    a("s_waitcnt vmcnt(0)")
    a("v_cmp_eq_u32 vcc, 1, v12")
    a("s_nop 3")
    a(f"s_and_b32 {sr(sT3)}, vcc_lo, {sr(sT2)}")
    a(f"s_cmp_eq_u32 {sr(sT3)}, {sr(sT2)}")
    a(f"s_cbranch_scc1 {done}")
    a(f"s_sub_u32 {sr(sT1)}, {sr(sT1)}, 1")
    a(f"s_cbranch_scc1 {done}")
    a("s_sleep 1")
    a(f"s_branch {poll}")
    a(f"{done}:")
    a("s_mov_b64 exec, -1")

def publish(a):
    spin, ok = a.label("rdy"), a.label("rdyok")
    a(f"s_mov_b32 {sr(sT1)}, 400000")
    a(f"s_mov_b32 {sr(sT2)}, 0x55555555")
    a(f"v_lshlrev_b32 v12, 2, v0")
    a(f"{spin}:")
    a(f"v_cmp_eq_u32 vcc, 8, {vr(vCHK)}")
    a("s_nop 3")
    a(f"s_and_b32 {sr(sT0)}, vcc_lo, {sr(sT2)}")
    a(f"s_and_b32 {sr(sT3)}, vcc_hi, {sr(sT2)}")
    a(f"s_and_b32 {sr(sT0)}, {sr(sT0)}, {sr(sT3)}")
    a(f"s_cmp_eq_u32 {sr(sT0)}, {sr(sT2)}")
    a(f"s_cbranch_scc1 {ok}")
    a(f"s_sub_u32 {sr(sT1)}, {sr(sT1)}, 1")
    a(f"s_cbranch_scc1 {ok}")
    a(f"buffer_load_dword {vr(vCHK)}, v12, {sr(SRD_DBG,4)}, 0 offen sc1")
    a("s_waitcnt vmcnt(0)")
    a(f"s_branch {spin}")
    a(f"{ok}:")
    a(f"""
    s_lshl_b32 {sr(sT0)}, {sr(sHP)}, 10
    s_lshl_b32 {sr(sT1)}, {sr(sTB)}, 2
    s_add_u32 {sr(sT0)}, {sr(sT0)}, {sr(sT1)}
    s_add_u32 {sr(sT0)}, {sr(sT0)}, {WS_MB}
    v_lshlrev_b32 v12, 7, v0
    v_mov_b32 v13, 1
    s_mov_b64 exec, 0xff
    buffer_store_dword v13, v12, {sr(SRD_WS,4)}, {sr(sT0)} offen sc1
    s_mov_b64 exec, -1
    """)

def wo_piece(i, half):
    return [f"s_add_u32 {sr(sT0)}, {sr(sROT)}, {i}", f"s_and_b32 {sr(sT0)}, {sr(sT0)}, 15", f"s_lshl_b32 {sr(sT0)}, {sr(sT0)}, 17",
            f"s_add_u32 {sr(sT0)}, {sr(sT0)}, {sr(sWOFF)}"] + ([f"s_add_u32 {sr(sT0)}, {sr(sT0)}, 16384"] if half else []) + \
           [f"s_add_u32 m0, {sr(sLDSW3)}, {(i % 8) * 16384 + half * 1024}", "s_nop 0",
            f"buffer_load_dwordx4 {vr(vDW3)}, {sr(SRD_WO,4)}, {sr(sT0)} offen lds"]

def attn_stage(a, opt, kind, s_=None):
    prio = opt.get("prio", 1)
    def sp(n): return [f"s_setprio {n}"] if prio else []
    adv_src = [f"s_add_u32 {sr(sSRC)}, {sr(sSRC)}, 16384", f"s_and_b32 {sr(sSRC)}, {sr(sSRC)}, 0x3ffff"]
    for t in range(4):
        h0 = {0: [rd(KF, t + 1, 0)], 1: [rd(VF + 4, t, 3)], 2: ["s_waitcnt lgkmcnt(2)"],
              3: [rd(KF + 4, t + 1, 1)], 4: [], 5: ["s_waitcnt lgkmcnt(2)"]}
        h1 = {0: ["s_waitcnt lgkmcnt(1)"], 1: [], 2: ["s_waitcnt lgkmcnt(0)"], 3: [], 4: [rd(VF, t + 1, 2)], 5: []}
        if t == 0:
            h0[4] = sp(2)
            if opt.get("fused"):
                h1[3] = [f"s_mov_b32 {sr(sOFFS)}, {sr(sSRC)}"]
            else:
                h1[1] = [f"s_cmp_lt_u32 {sr(sJ)}, 13"]
                h1[3] = [f"s_cselect_b32 {sr(sOFFS)}, {sr(sSRC)}, {WS_SIZE}"]
            h1[5] = [f"s_add_u32 m0, {sr(sSLOT)}, {sr(sLDSW)}"]
        if t == 1:
            h0[4] = sp(1)
            h1[1] = [adv_src[0]]
            h1[3] = [adv_src[1]]
            h1[5] = [f"s_add_u32 {sr(sSLOT)}, {sr(sSLOT)}, 32768"]
            if kind == 1:
                go = a.label("go")
                lanestamp(a, 203, opt, 0)
                a(f"s_cmp_eq_u32 {sr(sW)}, 0")
                a(f"s_cbranch_scc0 {go}")
                poll_mailbox(a, False)
                a(f"{go}:")
                lanestamp(a, 203, opt, 1)
                a("s_barrier")
                lanestamp(a, 203, opt, 2)
                for st in (2, 3):
                    a(f"""
                    s_lshl_b32 {sr(sT0)}, {sr(sTB)}, 1
                    s_add_u32 {sr(sT0)}, {sr(sT0)}, {st}
                    s_and_b32 {sr(sT0)}, {sr(sT0)}, 15
                    s_lshl_b32 {sr(sOFFS)}, {sr(sT0)}, 14
                    s_add_u32 m0, {sr(sLDSW)}, {st * 32768}
                    s_nop 0
                    """)
                    for p in range(4):
                        a(kv_dma(p))
                a(f"s_sub_u32 {sr(sOFFS)}, {sr(sSRC)}, 0")
                a(f"s_add_u32 m0, {sr(sSLOT)}, {sr(sLDSW)}")
        if t == 2:
            h0[4] = sp(0)
            h1[1] = [f"s_and_b32 {sr(sSLOT)}, {sr(sSLOT)}, 0x1ffff"]
            h1[3] = [f"s_add_u32 {sr(sJ)}, {sr(sJ)}, 1"]
            if kind == 0:
                bar = ["s_waitcnt vmcnt(0)", "s_barrier"]
            elif kind == 1:
                bar = None
            elif kind == 3 and s_ == 15:
                bar = ["s_barrier"]
            else:
                bar = ["s_waitcnt vmcnt(4)", "s_barrier"]
            if bar: h1[5] = bar
        if t == 3:
            h0[4] = sp(3)
            if kind == 0:
                h1[1] = []; h1[3] = []; h1[5] = []
            elif kind == 3:
                q = s_ - 13
                h0[4] = sp(3) + wo_piece(2 * q, 0)
                h1[1] = wo_piece(2 * q, 1)
                h1[3] = wo_piece(2 * q + 1, 0)
                h1[5] = wo_piece(2 * q + 1, 1)
            else:
                h0[4] = sp(3) + [kv_dma(0)]
                h1[1] = [kv_dma(1)]
                h1[3] = [kv_dma(2)]
                h1[5] = [kv_dma(3)]
        if t == 3 and kind == 0:
            np_ = a.label("np")
            a(f"s_cmp_eq_u32 {sr(sW)}, 0")
            a(f"s_cbranch_scc0 {np_}")
            publish(a)
            a(f"{np_}:")
        if t == 3 and kind == 1:
            go = a.label("go")
            a(f"s_cmp_eq_u32 {sr(sW)}, 0")
            a(f"s_cbranch_scc0 {go}")
            poll_mailbox(a, True)
            a(f"{go}:")
            a("s_waitcnt vmcnt(4)")
            a("s_barrier")
        if t == 3 and kind == 2:
            pass
        attn_unit(a, t, 0, h0)
        attn_unit(a, t, 1, h1)
    a(f"v_mov_b32 {vr(vCUR)}, {vr(vNXT)}")
    a(f"v_add_u32 {vr(vNXT)}, {sr(sNXT)}, {vr(vKVB)}")
    a(f"s_add_u32 {sr(sNXT)}, {sr(sNXT)}, 32768")
    a(f"s_and_b32 {sr(sNXT)}, {sr(sNXT)}, 0x1ffff")

def attention(a, opt):
    for i in range(32): a(f"v_mov_b32 v{OA+i}, 0")
    for i in range(8): a(f"v_mov_b32 v{LA+i}, 0")
    for i in range(4): a(f"v_mov_b32 v{PP+4+i}, 0")
    for i in range(4): a(f"v_mov_b32 v{VF+4+i}, 0")
    a(f"""
    v_bfe_u32 v12, v0, 2, 1
    v_bfe_u32 v13, v0, 4, 1
    v_cmp_eq_u32 vcc, v12, v13
    v_mov_b32 v14, 0x3f803f80
    s_nop 0
    v_cndmask_b32 v{ONES}, 0, v14, vcc
    v_mov_b32 v{ONES+1}, v{ONES}
    v_mov_b32 v{ONES+2}, v{ONES}
    v_mov_b32 v{ONES+3}, v{ONES}
    s_lshl_b32 {sr(sT0)}, {sr(sHH)}, 14
    v_add_u32 {vr(vKVB)}, {sr(sT0)}, {vr(vL16)}
    v_mov_b32 {vr(vCUR)}, {vr(vKVB)}
    v_add_u32 {vr(vNXT)}, 32768, {vr(vKVB)}
    s_lshl_b32 {sr(sT1)}, {sr(sTQ)}, 12
    s_add_u32 {sr(sLDSW)}, {sr(sT0)}, {sr(sT1)}
    s_add_u32 {sr(sKVSRC)}, {sr(sKVSRC)}, {sr(sT1)}
    v_add_u32 {vr(vDMA)}, {sr(sKVSRC)}, {vr(vL16)}
    s_lshl_b32 {sr(sSRC)}, {sr(sTB)}, 1
    s_add_u32 {sr(sSRC)}, {sr(sSRC)}, 3
    s_and_b32 {sr(sSRC)}, {sr(sSRC)}, 15
    s_lshl_b32 {sr(sSRC)}, {sr(sSRC)}, 14
    s_mov_b32 {sr(sSLOT)}, {3 * 32768}
    s_mov_b32 {sr(sNXT)}, {2 * 32768}
    s_mov_b32 {sr(sJ)}, 0
    v_lshrrev_b32 v12, 3, v0
    v_and_b32 v13, 7, v0
    v_bfe_u32 v14, v12, 1, 1
    v_lshlrev_b32 v14, 2, v14
    v_xor_b32 v13, v13, v14
    s_lshl_b32 {sr(sT0)}, {sr(sTQ)}, 4
    v_add_u32 v12, {sr(sT0)}, v12
    v_lshlrev_b32 {vr(vDW3)}, 11, v12
    v_lshl_add_u32 {vr(vDW3)}, v13, 4, {vr(vDW3)}
    s_lshl_b32 {sr(sWOFF)}, {sr(sCB)}, 7
    s_lshl_b32 {sr(sLDSW3)}, {sr(sHH)}, 13
    s_lshl_b32 {sr(sT0)}, {sr(sTQ)}, 11
    s_add_u32 {sr(sLDSW3)}, {sr(sLDSW3)}, {sr(sT0)}
    s_waitcnt lgkmcnt(0)
    s_barrier
    """)
    a(rd(KF, 0, 0)); a(rd(KF + 4, 0, 1)); a(rd(VF, 0, 2))
    a("s_waitcnt lgkmcnt(0)")
    for x in range(2):
        S, Q = SS + 16 * x, QF + 8 * x
        a(f"v_mfma_f32_32x32x16_bf16 {vr(S,16)}, {vr(KF,4)}, {vr(Q,4)}, 0")
        a(f"v_mfma_f32_32x32x16_bf16 {vr(S,16)}, {vr(KF+4,4)}, {vr(Q+4,4)}, {vr(S,16)}")
    a("s_nop 15")
    for x in range(2):
        S = SS + 16 * x
        a(f"v_max3_f32 v12, v{S}, v{S+1}, v{S+2}")
        for i in range(3, 15, 2):
            a(f"v_max3_f32 v12, v12, v{S+i}, v{S+i+1}")
        a(f"v_max_f32 v12, v12, v{S+15}")
        a(f"""
        v_mov_b32 v13, v12
        s_nop 1
        v_permlane32_swap_b32 v13, v12
        s_nop 1
        v_max_f32 v12, v12, v13
        v_sub_f32 v12, 0, v12
        """)
        for i in range(16):
            a(f"v_mov_b32 v{NM+16*x+i}, v12")
    a("s_nop 1")
    a(f"v_mfma_f32_32x32x16_bf16 {vr(SS,16)}, {vr(KF,4)}, {vr(QF,4)}, {vr(NM,16)}")
    a(f"v_mfma_f32_32x32x16_bf16 {vr(SS,16)}, {vr(KF+4,4)}, {vr(QF+4,4)}, {vr(SS,16)}")
    lanestamp(a, 203, opt, 3)
    a("s_nop 15")
    attn_stage(a, opt, 0)
    lanestamp(a, 202, opt, 0)
    attn_stage(a, opt, 1)
    lanestamp(a, 202, opt, 1)
    loop = a.label("attn")
    a(".p2align 6")
    a(f"{loop}:")
    attn_stage(a, opt, 2)
    lanestamp(a, 202, opt, "m")
    a(f"s_cmp_lt_u32 {sr(sJ)}, {13 if opt.get('fused') else 16}")
    a(f"s_cbranch_scc1 {loop}")
    if opt.get("fused"):
        for s_ in (13, 14, 15):
            attn_stage(a, opt, 3, s_)
            lanestamp(a, 202, opt, s_)
    a("s_setprio 0")
    a("s_nop 1")
    a(f"v_mfma_f32_32x32x16_bf16 {vr(OA+16,16)}, {vr(VF+4,4)}, {vr(PP+4,4)}, {vr(OA+16,16)}")
    a(f"v_mfma_f32_16x16x32_bf16 {vr(LA+4,4)}, {vr(ONES,4)}, {vr(PP+4,4)}, {vr(LA+4,4)}")
    a("s_waitcnt lgkmcnt(0)")
    a("s_nop 15")

def attn_epilogue(a, opt):
    a(f"""
    s_lshl_b32 {sr(sT0)}, {sr(sTB)}, 3
    s_lshl_b32 {sr(sT1)}, {sr(sTQ)}, 1
    s_add_u32 {sr(sT0)}, {sr(sT0)}, {sr(sT1)}
    s_lshl_b32 {sr(sT0)}, {sr(sT0)}, 17
    s_lshl_b32 {sr(sT1)}, {sr(sHP)}, 1
    s_add_u32 {sr(sT1)}, {sr(sT1)}, {sr(sHH)}
    s_lshl_b32 {sr(sT1)}, {sr(sT1)}, 11
    s_add_u32 {sr(sT0)}, {sr(sT0)}, {sr(sT1)}
    s_add_u32 {sr(sOOFF)}, {sr(sT0)}, {WS_O}
    """)
    ok = a.label("ok")
    a(f"s_mov_b32 {sr(sT2)}, {hex(f2u(2.0**24))}")
    a(f"v_cmp_nle_f32 {sr(sM,2)}, v{LA}, {sr(sT2)}")
    a(f"v_cmp_nle_f32 {sr(sM2,2)}, v{LA+4}, {sr(sT2)}")
    a(f"s_or_b64 {sr(sM,2)}, {sr(sM,2)}, {sr(sM2,2)}")
    a("v_mov_b32 v12, 0x207")
    for i in range(32):
        a(f"v_cmp_class_f32 vcc, v{OA+i}, v12")
        a(f"s_or_b64 {sr(sM,2)}, {sr(sM,2)}, vcc")
    if opt.get("force_fallback"):
        a(f"s_mov_b64 {sr(sM,2)}, -1")
    a(f"s_cmp_eq_u64 {sr(sM,2)}, 0")
    a(f"s_cbranch_scc1 {ok}")
    fallback(a, opt)
    a(f"{ok}:")
    for x in range(2):
        a(f"v_rcp_f32 v12, v{LA+4*x}")
        a("s_nop 0")
        b = OA + 16 * x
        for i in range(16):
            a(f"v_mul_f32 v{b+i}, v12, v{b+i}")
        for i in range(8):
            a(f"v_cvt_pk_bf16_f32 v{b+i}, v{b+2*i}, v{b+2*i+1}")
        if x == 1:
            a(f"s_add_u32 {sr(sOOFF)}, {sr(sOOFF)}, 131072")
        sc = " sc1" if opt.get("fused") else ""
        a(f"buffer_store_dwordx4 {vr(b,4)}, {vr(vL16)}, {sr(SRD_WS,4)}, {sr(sOOFF)} offen{sc}")
        a(f"buffer_store_dwordx4 {vr(b+4,4)}, {vr(vL16)}, {sr(SRD_WS,4)}, {sr(sOOFF)} offen offset:1024{sc}")

def phase3(a, opt):
    vm = VmTracker()
    ACC3, AF, OF, DEPTH, NSLOT = 16, 48, 64, 16, 8
    vRD = [7, 8, 9, 11]
    vG, vOUT = 14, 13
    a("s_waitcnt vmcnt(0)")
    a("s_barrier")
    timestamp(a, 4, opt)
    np_ = a.label("np3")
    a(f"s_cmp_eq_u32 {sr(sW)}, 0")
    a(f"s_cbranch_scc0 {np_}")
    a(f"""
    s_lshl_b32 {sr(sT0)}, {sr(sTB)}, 12
    s_lshl_b32 {sr(sT1)}, {sr(sHP)}, 2
    s_add_u32 {sr(sT0)}, {sr(sT0)}, {sr(sT1)}
    s_add_u32 {sr(sT0)}, {sr(sT0)}, {WS_MB2}
    v_lshlrev_b32 v12, 7, v0
    v_mov_b32 v15, 1
    s_mov_b32 exec_lo, -1
    s_mov_b32 exec_hi, 0
    buffer_store_dword v15, v12, {sr(SRD_WS,4)}, {sr(sT0)} offen sc1
    s_mov_b64 exec, -1
    """)
    poll = a.label("poll3"); done = a.label("pd3")
    a(f"s_mov_b32 {sr(sT1)}, 400000")
    a(f"v_lshlrev_b32 v12, 2, v0")
    a("s_mov_b32 exec_lo, -1")
    a("s_mov_b32 exec_hi, 0")
    a(f"{poll}:")
    a(f"buffer_load_dword v15, v12, {sr(SRD_WS,4)}, {sr(sMB2)} offen sc1")
    a("s_waitcnt vmcnt(0)")
    a("v_cmp_eq_u32 vcc, 1, v15")
    a("s_nop 3")
    a("s_cmp_eq_u32 vcc_lo, -1")
    a(f"s_cbranch_scc1 {done}")
    a(f"s_sub_u32 {sr(sT1)}, {sr(sT1)}, 1")
    a(f"s_cbranch_scc1 {done}")
    a("s_sleep 1")
    a(f"s_branch {poll}")
    a(f"{done}:")
    a("s_mov_b64 exec, -1")
    a(f"{np_}:")
    def wdma(i):
        for half in range(2):
            for x in wo_piece(i, half): a(x)
            vm.issue(("w", i))
    wdma(6); wdma(7)
    a(f"""
    v_and_b32 v12, 31, v0
    s_lshl_b32 {sr(sT0)}, {sr(sTB3)}, 7
    s_lshl_b32 {sr(sT2)}, {sr(sTQ)}, 5
    s_add_u32 {sr(sT0)}, {sr(sT0)}, {sr(sT2)}
    v_add_u32 v12, {sr(sT0)}, v12                  ; token
    v_lshlrev_b32 v3, 2, v12
    v_lshrrev_b32 {vr(vG)}, 5, v0                  ; h
    v_lshlrev_b32 {vr(vOUT)}, 11, v12
    v_lshl_add_u32 {vr(vOUT)}, {vr(vG)}, 4, {vr(vOUT)}
    v_bfe_u32 v15, v0, 2, 2                        ; r
    v_lshl_add_u32 v12, {vr(vG)}, 2, v15           ; 4h + r
    v_lshlrev_b32 v2, 7, v12
    v_and_b32 v12, 1, v0                           ; h'
    v_bfe_u32 v1, v0, 1, 1                         ; a
    v_bfe_u32 v4, v0, 4, 1                         ; g
    v_lshl_add_u32 v12, v4, 1, v12                 ; chunk16 = 2g + h'
    v_lshrrev_b32 v15, 1, v15
    v_lshlrev_b32 v15, 2, v15
    v_xor_b32 v12, v12, v15
    v_lshl_add_u32 v2, v12, 4, v2
    v_lshl_add_u32 v2, v1, 3, v2
    s_lshl_b32 {sr(sT0)}, {sr(sHH)}, 13
    v_add_u32 v{vRD[0]}, {sr(sT0)}, v2
    v_xor_b32 v{vRD[1]}, 64, v{vRD[0]}
    v_add_u32 v{vRD[2]}, 0x10000, v{vRD[0]}
    v_add_u32 v{vRD[3]}, 0x10000, v{vRD[1]}
    s_lshl_b32 {sr(sT0)}, {sr(sTB3)}, 2
    s_add_u32 {sr(sT0)}, {sr(sT0)}, {sr(sTQ)}
    s_lshl_b32 {sr(sAOFF)}, {sr(sT0)}, 17
    s_lshl_b32 {sr(sT1)}, {sr(sHH)}, 16
    s_add_u32 {sr(sAOFF)}, {sr(sAOFF)}, {sr(sT1)}
    s_add_u32 {sr(sAOFF)}, {sr(sAOFF)}, {WS_O}
    """)
    a("s_barrier")
    timestamp(a, 5, opt)
    def oload(kk):
        d = kk % DEPTH
        if kk % 4 == 0:
            a(f"s_add_u32 {sr(sT1)}, {sr(sROT)}, {kk // 4}")
            a(f"s_and_b32 {sr(sT1)}, {sr(sT1)}, 15")
            a(f"s_lshl_b32 {sr(sT1)}, {sr(sT1)}, 12")
            a(f"s_add_u32 {sr(sT1)}, {sr(sT1)}, {sr(sAOFF)}")
        a(f"buffer_load_dwordx4 {vr(OF+4*d,4)}, {vr(vL16)}, {sr(SRD_WS,4)}, {sr(sT1)} offen offset:{(kk%4)*1024} sc1")
        vm.issue(("o", kk))
    for kk in range(DEPTH): oload(kk)
    a(f"s_mov_b32 {sr(sT2)}, {WS_G}")
    a(f"buffer_load_dword {vr(vG)}, v3, {sr(SRD_WS,4)}, {sr(sT2)} offen sc1")
    vm.issue(("g", 0))
    def wreads(st, ks, set_):
        r = []
        slot = st % NSLOT
        win, off = divmod(slot * 16384, 65536)
        for ct in range(2):
            base = AF + 8 * set_ + 4 * ct
            reg = vRD[2 * win + ct]
            r.append(f"ds_read_b64_tr_b16 {vr(base,2)}, {vr(reg)} offset:{off + ks*2048}")
            r.append(f"ds_read_b64_tr_b16 {vr(base+2,2)}, {vr(reg)} offset:{off + ks*2048+1024}")
        return r
    for x in wreads(0, 0, 0): a(x)
    for st in range(16):
        for ks in range(4):
            kk = 4 * st + ks
            d = kk % DEPTH
            cur = ks & 1
            nxt = []
            if ks == 3 and st < 15:
                n = vm.wait_count(lambda t: t in (("w", st + 1), ("o", kk)))
                a(f"s_waitcnt vmcnt({n}) lgkmcnt(0)")
                a("s_barrier")
                nxt = wreads(st + 1, 0, cur ^ 1)
            else:
                n = vm.wait_count(lambda t: t == ("o", kk))
                a(f"s_waitcnt vmcnt({n}) lgkmcnt(0)")
                if ks < 3: nxt = wreads(st, ks + 1, cur ^ 1)
            for ct in range(2):
                c = "0" if kk == 0 else vr(ACC3+16*ct,16)
                a(f"v_mfma_f32_32x32x16_bf16 {vr(ACC3+16*ct,16)}, {vr(AF+8*cur+4*ct,4)}, {vr(OF+4*d,4)}, {c}")
                for x in nxt[2*ct:2*ct+2]: a(x)
            if kk + DEPTH < 64:
                oload(kk + DEPTH)
            if ks == 3 and st + NSLOT < 16:
                wdma(st + NSLOT)
    timestamp(a, 6, opt)
    a("s_nop 15")
    for ct in range(2):
        b = ACC3 + 16 * ct
        for i in range(8):
            a(f"v_cvt_pk_bf16_f32 v{b+i}, v{b+2*i}, v{b+2*i+1}")
    nosw = a.label("nosw")
    a(f"s_cmp_eq_u32 {sr(sHH)}, 0")
    a(f"s_cbranch_scc1 {nosw}")
    for i in range(8):
        a(f"v_swap_b32 v{ACC3+i}, v{ACC3+16+i}")
    a(f"{nosw}:")
    a(f"""
    s_lshl_b32 {sr(sT0)}, {sr(sTQ)}, 12
    s_lshl_b32 {sr(sT1)}, {sr(sHH)}, 11
    s_add_u32 {sr(sT2)}, {sr(sT0)}, {sr(sT1)}
    s_xor_b32 {sr(sT1)}, {sr(sT1)}, 2048
    s_add_u32 {sr(sT3)}, {sr(sT0)}, {sr(sT1)}
    v_add_u32 v12, {sr(sT2)}, {vr(vL16)}
    v_add_u32 v1, {sr(sT3)}, {vr(vL16)}
    s_barrier
    ds_write_b128 v12, {vr(ACC3+16,4)}
    ds_write_b128 v12, {vr(ACC3+20,4)} offset:1024
    s_waitcnt lgkmcnt(0)
    s_barrier
    ds_read_b128 {vr(ACC3+16,4)}, v1
    ds_read_b128 {vr(ACC3+20,4)}, v1 offset:1024
    s_waitcnt vmcnt(0)
    v_sub_f32 v2, 1.0, {vr(vG)}
    v_cvt_pk_bf16_f32 v2, v2, v2
    v_lshlrev_b32 v2, 16, v2
    s_cmp_eq_u32 {sr(sHH)}, 0
    s_cselect_b64 vcc, -1, 0
    v_cndmask_b32 v15, v2, {vr(vG)}, vcc      ; c_own
    v_cndmask_b32 v2, {vr(vG)}, v2, vcc       ; c_recv
    s_waitcnt lgkmcnt(0)
    """)
    for i in range(8):
        o, r = ACC3 + i, ACC3 + 16 + i
        a(f"""
        v_lshlrev_b32 v48, 16, v{o}
        v_and_b32 v49, 0xffff0000, v{o}
        v_lshlrev_b32 v50, 16, v{r}
        v_and_b32 v51, 0xffff0000, v{r}
        v_mul_f32 v48, v15, v48
        v_mul_f32 v49, v15, v49
        v_mul_f32 v50, v2, v50
        v_mul_f32 v51, v2, v51
        v_cvt_pk_bf16_f32 v48, v48, v49
        v_cvt_pk_bf16_f32 v50, v50, v51
        v_lshlrev_b32 v49, 16, v48
        v_and_b32 v48, 0xffff0000, v48
        v_lshlrev_b32 v51, 16, v50
        v_and_b32 v50, 0xffff0000, v50
        v_add_f32 v49, v49, v51
        v_add_f32 v48, v48, v50
        v_cvt_pk_bf16_f32 v{o}, v49, v48
        """)
    a(f"""
    s_lshl_b32 {sr(sT0)}, {sr(sCB)}, 7
    s_lshl_b32 {sr(sT1)}, {sr(sHH)}, 6
    s_add_u32 {sr(sT0)}, {sr(sT0)}, {sr(sT1)}
    buffer_store_dwordx4 {vr(ACC3,4)}, {vr(vOUT)}, {sr(SRD_OUT,4)}, {sr(sT0)} offen
    buffer_store_dwordx4 {vr(ACC3+4,4)}, {vr(vOUT)}, {sr(SRD_OUT,4)}, {sr(sT0)} offen offset:32
    """)

def fallback(a, opt):
    MX = NM
    a(f"s_lshl_b32 {sr(sT0)}, {sr(sHP)}, 1")
    a(f"s_add_u32 {sr(sT0)}, {sr(sT0)}, {sr(sHH)}")
    a(f"s_lshl_b32 {sr(sBLK)}, {sr(sT0)}, 18")
    for i in range(32): a(f"v_mov_b32 v{OA+i}, 0")
    for i in range(8): a(f"v_mov_b32 v{LA+i}, 0")
    a(f"v_mov_b32 v{MX}, 0xff800000")
    a(f"v_mov_b32 v{MX+16}, 0xff800000")
    a(f"s_mov_b32 {sr(sJ)}, 0")
    loop = a.label("fb")
    a(f"{loop}:")
    a(f"buffer_load_dwordx4 {vr(KF,4)}, {vr(vL16)}, {sr(SRD_WS,4)}, {sr(sBLK)} offen sc1")
    a(f"buffer_load_dwordx4 {vr(KF+4,4)}, {vr(vL16)}, {sr(SRD_WS,4)}, {sr(sBLK)} offen offset:1024 sc1")
    a(f"buffer_load_dwordx4 {vr(VF,4)}, {vr(vL16)}, {sr(SRD_WS,4)}, {sr(sBLK)} offen offset:2048 sc1")
    a(f"buffer_load_dwordx4 {vr(VF+4,4)}, {vr(vL16)}, {sr(SRD_WS,4)}, {sr(sBLK)} offen offset:3072 sc1")
    a("s_waitcnt vmcnt(0)")
    for x in range(2):
        S, Q, O, L, mx = SS, QF + 8 * x, OA + 16 * x, LA + 4 * x, MX + 16 * x
        a(f"v_mfma_f32_32x32x16_bf16 {vr(S,16)}, {vr(KF,4)}, {vr(Q,4)}, 0")
        a(f"v_mfma_f32_32x32x16_bf16 {vr(S,16)}, {vr(KF+4,4)}, {vr(Q+4,4)}, {vr(S,16)}")
        a("s_nop 15")
        a(f"v_max3_f32 v12, v{S}, v{S+1}, v{S+2}")
        for i in range(3, 15, 2):
            a(f"v_max3_f32 v12, v12, v{S+i}, v{S+i+1}")
        a(f"v_max_f32 v12, v12, v{S+15}")
        a(f"""
        v_mov_b32 v13, v12
        s_nop 1
        v_permlane32_swap_b32 v13, v12
        s_nop 1
        v_max3_f32 v12, v12, v13, v{mx}
        v_sub_f32 v13, v{mx}, v12
        v_cmp_eq_f32 vcc, v{mx}, v12
        v_exp_f32 v13, v13
        s_nop 1
        v_cndmask_b32 v13, v13, 1.0, vcc
        v_mov_b32 v{mx}, v12
        """)
        for i in range(16):
            a(f"v_mul_f32 v{O+i}, v13, v{O+i}")
        for i in range(4):
            a(f"v_mul_f32 v{L+i}, v13, v{L+i}")
        for i in range(16):
            a(f"v_sub_f32 v{S+i}, v{S+i}, v12")
        for i in range(16):
            a(f"v_exp_f32 v{S+i}, v{S+i}")
        a("s_nop 0")
        for i in range(8):
            a(f"v_cvt_pk_bf16_f32 v{PP+i}, v{S+2*i}, v{S+2*i+1}")
        a("s_nop 1")
        a(f"v_mfma_f32_32x32x16_bf16 {vr(O,16)}, {vr(VF,4)}, {vr(PP,4)}, {vr(O,16)}")
        a(f"v_mfma_f32_32x32x16_bf16 {vr(O,16)}, {vr(VF+4,4)}, {vr(PP+4,4)}, {vr(O,16)}")
        a(f"v_mfma_f32_16x16x32_bf16 {vr(L,4)}, {vr(ONES,4)}, {vr(PP,4)}, {vr(L,4)}")
        a(f"v_mfma_f32_16x16x32_bf16 {vr(L,4)}, {vr(ONES,4)}, {vr(PP+4,4)}, {vr(L,4)}")
        a("s_nop 15")
    a(f"s_add_u32 {sr(sBLK)}, {sr(sBLK)}, 4096")
    a(f"s_add_u32 {sr(sJ)}, {sr(sJ)}, 1")
    a(f"s_cmp_lt_u32 {sr(sJ)}, 64")
    a(f"s_cbranch_scc1 {loop}")

def gstamp(a, reg):
    a("s_memtime s[70:71]")
    a("s_waitcnt lgkmcnt(0)")
    a("s_mov_b32 s69, m0")
    a("s_mov_b32 m0, s87")
    a(f"v_writelane_b32 v{reg-100}, s70, m0")
    a("s_mov_b32 m0, s69")

def lanestamp(a, reg, opt, lane=None):
    if not opt.get("stamps2"):
        return
    a("s_memtime s[70:71]")
    a("s_waitcnt lgkmcnt(0)")
    if lane == "m":
        a(f"s_mov_b32 s69, m0")
        a(f"s_sub_u32 m0, {sr(sJ)}, 1")
        a(f"v_writelane_b32 v{reg}, s70, m0")
        a(f"s_mov_b32 m0, s69")
    elif lane is None:
        a(f"s_mov_b32 s69, m0")
        a(f"s_mov_b32 m0, {sr(sJ)}")
        a(f"v_writelane_b32 v{reg}, s70, m0")
        a(f"s_mov_b32 m0, s69")
    else:
        a(f"v_writelane_b32 v{reg}, s70, {lane}")

def timestamp(a, idx, opt):
    if not opt.get("stamps"):
        return
    a(f"s_memtime s[70:71]")
    a(f"s_memrealtime s[92:93]")
    a("s_waitcnt lgkmcnt(0)")
    a(f"s_mov_b32 s{72+idx}, s70")
    a(f"s_mov_b32 s{80+idx}, s92")

def stamps_out(a, n, opt):
    if opt.get("stampsg"):
        a(f"""
        s_lshl_b32 {sr(sT1)}, s2, 3
        s_add_u32 {sr(sT1)}, {sr(sT1)}, {sr(sW)}
        s_lshl_b32 {sr(sT1)}, {sr(sT1)}, 10
        s_add_u32 {sr(sT1)}, {sr(sT1)}, {WS_DBG + (12 << 20)}
        v_lshlrev_b32 v12, 2, v0
        buffer_store_dword v104, v12, {sr(SRD_WS,4)}, {sr(sT1)} offen
        buffer_store_dword v105, v12, {sr(SRD_WS,4)}, {sr(sT1)} offen offset:256
        buffer_store_dword v106, v12, {sr(SRD_WS,4)}, {sr(sT1)} offen offset:512
        """)
    if opt.get("stamps2"):
        a(f"""
        s_lshl_b32 {sr(sT1)}, s2, 3
        s_add_u32 {sr(sT1)}, {sr(sT1)}, {sr(sW)}
        s_lshl_b32 {sr(sT1)}, {sr(sT1)}, 10
        s_add_u32 {sr(sT1)}, {sr(sT1)}, {WS_DBG + (10 << 20)}
        v_lshlrev_b32 v12, 2, v0
        buffer_store_dword v200, v12, {sr(SRD_WS,4)}, {sr(sT1)} offen
        buffer_store_dword v201, v12, {sr(SRD_WS,4)}, {sr(sT1)} offen offset:256
        buffer_store_dword v202, v12, {sr(SRD_WS,4)}, {sr(sT1)} offen offset:512
        buffer_store_dword v203, v12, {sr(SRD_WS,4)}, {sr(sT1)} offen offset:768
        """)
    if not opt.get("stamps"):
        return
    a(f"""
    s_lshl_b32 {sr(sT1)}, s2, 3
    s_add_u32 {sr(sT1)}, {sr(sT1)}, {sr(sW)}
    s_lshl_b32 {sr(sT1)}, {sr(sT1)}, 6
    s_add_u32 {sr(sT1)}, {sr(sT1)}, {WS_DBG + (8 << 20)}
    v_mov_b32 v13, 0
    """)
    for i in range(n):
        a(f"v_writelane_b32 v13, s{72+i}, {i}")
        a(f"v_writelane_b32 v13, s{80+i}, {8+i}")
    a(f"""
    v_lshlrev_b32 v12, 2, v0
    v_cmp_gt_u32 vcc, 16, v0
    s_and_saveexec_b64 {sr(sM,2)}, vcc
    buffer_store_dword v13, v12, {sr(SRD_WS,4)}, {sr(sT1)} offen
    s_mov_b64 exec, {sr(sM,2)}
    """)

OPT = {}
def k12(opt):
    OPT.clear(); OPT.update(opt)
    a = Asm()
    a(f".globl {NAME12}\n.p2align 8\n.type {NAME12},@function\n{NAME12}:")
    timestamp(a, 0, opt)
    prologue(a, opt)
    gemm(a, opt)
    if opt.get("stamps_start"):
        timestamp(a, 7, opt)
        opt = dict(opt); opt["stamps"] = 0
        gemm_epilogue(a, opt)
        a("s_waitcnt vmcnt(0) lgkmcnt(0)")
        opt["stamps"] = 1
        stamps_out(a, 8, opt)
        a("L_end12:\ns_endpgm")
        return a.text()
    timestamp(a, 1, opt)
    gemm_epilogue(a, opt)
    if opt.get("stop_after_gemm"):
        a("s_waitcnt vmcnt(0) lgkmcnt(0)")
        timestamp(a, 2, opt)
        stamps_out(a, 3, opt)
    else:
        timestamp(a, 2, opt)
        attention(a, opt)
        timestamp(a, 3, opt)
        attn_epilogue(a, opt)
        if opt.get("fused"):
            phase3(a, opt)
            if opt.get("stamps"):
                a("s_waitcnt vmcnt(0)")
                timestamp(a, 7, opt)
            stamps_out(a, 8, opt)
        else:
            a("s_waitcnt vmcnt(0)")
            timestamp(a, 4, opt)
            stamps_out(a, 5, opt)
    a("L_end12:\ns_endpgm")
    return a.text()

KD12 = f"""
.section .rodata,"a"
.p2align 6
.amdhsa_kernel {NAME12}
  .amdhsa_next_free_vgpr 256
  .amdhsa_next_free_sgpr 102
  .amdhsa_accum_offset 256
  .amdhsa_group_segment_fixed_size 0
  .amdhsa_kernarg_size 80
  .amdhsa_user_sgpr_count 2
  .amdhsa_user_sgpr_kernarg_segment_ptr 1
  .amdhsa_system_sgpr_workgroup_id_x 1
  .amdhsa_float_denorm_mode_32 3
.end_amdhsa_kernel
"""
```

```python
import sys, json
sys.path.insert(0, 'gen'); sys.path.insert(0, 'tools')
import importlib
import k12, k3
HEADER = open('gated_mix__mha_block__softmax_full_mha__prompt.s.ref').read().split('; Override launch geometry')[0]
def build(opt=None):
    opt = opt or {}
    s = HEADER
    if opt.get("fused"):
        s += "; @launch grid=(256,1,1) block=(512,1,1) lds=163840\n"
        s += '.amdgcn_target "amdgcn-amd-amdhsa--gfx950"\n.text\n'
        s += k12.k12(opt)
        s += k12.KD12
        return s
    s += f"; @launch kernel={k12.NAME12} grid=(256,1,1) block=(512,1,1) lds=163840\n"
    if not opt.get("stop_after_gemm") and not opt.get("no_k3"):
        s += f"; @launch kernel={k3.NAME3} grid=(256,1,1) block=(512,1,1) lds=131072\n"
    s += '.amdgcn_target "amdgcn-amd-amdhsa--gfx950"\n.text\n'
    s += k12.k12(opt)
    s += ".text\n" if False else ""
    s += k3.k3(opt)
    s += k12.KD12 + k3.KD3
    return s
if __name__ == "__main__":
    out = sys.argv[1]
    opt = json.loads(sys.argv[2]) if len(sys.argv) > 2 else {}
    open(out, 'w').write(build(opt))
    print("wrote", out)
```

```python
from asm import Asm, vr, sr, VmTracker

NAME12 = "gated_mix__mha_block__softmax_full_mha__prompt_kernel"
WS_KV = 0
WS_O = 16 << 20
WS_G = 24 << 20
WS_MB = 25 << 20
WS_MB2 = WS_MB + 65536
WS_DBG = 32 << 20
WS_SIZE = 0x10000000
LOG2E = 1.4426950408889634
QSCALE = LOG2E / (32 ** 0.5)

import struct
def f2u(x): return struct.unpack("<I", struct.pack("<f", x))[0]

SRD_X, SRD_W, SRD_WS, SRD_DBG, SRD_GW = 8, 12, 16, 20, 24
sW, sHH, sTQ, sHP, sTB = 28, 29, 30, 31, 32
sW1K = 33
sXJ = 34
sWJ = 35
sRING = 36
sRINGW = 37
sJ = 38
sT0, sT1, sT2, sT3 = 40, 41, 42, 43
sXQ = 44
sKVSRC = 45
sSLOT = 46
sBLK = 47
sM = 48
sM2 = 50
sOOFF = 52
sCNT = 53
sMB = 54
sLDSW = 55
sSRC = 39
sOFFS = 64
sNXT = 65
sCHKJ = 66
sARRJ = 67
sGOFF = 68
SRD_WO, SRD_OUT = 4, 56
sTB3, sCB, sROT, sMB2 = 60, 61, 62, 63
sAOFF, sWOFF = 100, 101
sLDSW3 = 34
vDW3 = 6
vLANE = 0
vDX, vDW, vXP, vWP, vXA, vW0 = 2, 3, 4, 5, 6, 7
vL16 = 10
vXB = 11
vT = 12
FR = [64, 84]
ACC = 160
QF = 16
OA = 32
LA = 64
NM = 72
SS = 104
PP = 136
KF = 144
VF = 152
ONES = 160
IDX = 164
vCUR, vNXT = 2, 3
vKVB, vDMA = 4, 5
vCHK = 15

RING = 20 * 8192
NSLOT3 = 10

def wrap_add(a, dst, src, const, tmp):
    a(f"s_add_u32 {sr(tmp)}, {sr(src)}, {const}")
    a(f"s_sub_u32 {dst}, {sr(tmp)}, {RING}")
    a(f"s_cselect_b32 {dst}, {sr(tmp)}, {dst}")

def prologue(a, opt):
    a(f"""
    s_cmp_ge_u32 s2, 256
    s_cbranch_scc1 L_end12
    s_load_dwordx4 s[56:59], s[0:1], 0
    s_load_dwordx2 s[60:61], s[0:1], 32
    s_load_dwordx2 s[62:63], s[0:1], 48
    s_load_dwordx4 s[88:91], s[0:1], 64
    s_load_dwordx2 s[94:95], s[0:1], 16
    s_load_dwordx2 s[96:97], s[0:1], 40
    s_load_dwordx2 s[98:99], s[0:1], 56
    v_lshrrev_b32 v1, 6, v0
    v_and_b32 v0, 63, v0
    s_and_b32 s3, s2, 7
    v_readfirstlane_b32 {sr(sW)}, v1
    s_lshr_b32 s4, s2, 3
    s_and_b32 s5, s4, 3
    s_lshl_b32 s3, s3, 2
    s_add_u32 {sr(sHP)}, s3, s5
    s_lshr_b32 {sr(sTB)}, s4, 2
    s_lshr_b32 {sr(sHH)}, {sr(sW)}, 2
    s_and_b32 {sr(sTQ)}, {sr(sW)}, 3
    s_lshl_b32 {sr(sW1K)}, {sr(sW)}, 10
    """)
    a(f"""
    v_lshrrev_b32 v13, 3, v0                 ; r8
    v_and_b32 v14, 7, v0                     ; c'
    s_and_b32 {sr(sT0)}, {sr(sW)}, 1
    s_lshl_b32 {sr(sT0)}, {sr(sT0)}, 2
    v_lshrrev_b32 v15, 1, v13                ; r8>>1 (0..3)
    v_add_u32 v1, {sr(sT0)}, v15             ; 4*(w&1) + (r8>>1)
    v_xor_b32 v1, v1, v14                    ; cX
    s_lshl_b32 {sr(sT1)}, {sr(sW)}, 3
    v_add_u32 v13, {sr(sT1)}, v13            ; 8w + r8
    v_lshlrev_b32 {vr(vDX)}, 11, v13
    v_lshl_add_u32 {vr(vDX)}, v1, 4, {vr(vDX)}
    v_and_b32 v15, 1, v15
    v_lshlrev_b32 v15, 2, v15
    v_xor_b32 v15, v15, v14                  ; cW
    s_mov_b32 {sr(sT1)}, 6144
    v_mul_lo_u32 {vr(vDW)}, v13, {sr(sT1)}
    v_lshl_add_u32 {vr(vDW)}, v15, 4, {vr(vDW)}
    s_lshl_b32 {sr(sXJ)}, {sr(sTB)}, 19          ; tb*256*2048
    s_and_b32 {sr(sWJ)}, {sr(sHP)}, 15
    s_lshl_b32 {sr(sWJ)}, {sr(sWJ)}, 7           ; hpl*128
    s_waitcnt lgkmcnt(0)
    """)
    if opt.get("stamps_start"): timestamp(a, 1, opt)
    a(f"""
    s_mov_b32 {sr(SRD_X)}, s56
    s_mov_b32 {sr(SRD_X+1)}, s57
    s_mov_b32 {sr(SRD_X+2)}, {2048*1024*2}
    s_mov_b32 {sr(SRD_X+3)}, 0x00020000
    s_cmp_ge_u32 {sr(sHP)}, 16
    s_cselect_b32 {sr(SRD_W)}, s60, s58
    s_cselect_b32 {sr(SRD_W+1)}, s61, s59
    s_mov_b32 {sr(SRD_W+2)}, {1024*3072*2}
    s_mov_b32 {sr(SRD_W+3)}, 0x00020000
    """)
    for g in range(20):
        dma_unit_static(a, g)
        if g == 6 and opt.get("stamps_start"): timestamp(a, 2, opt)
    if opt.get("stamps_start"): timestamp(a, 3, opt)
    a(f"""
    s_mov_b32 {sr(SRD_WS)}, s90
    s_mov_b32 {sr(SRD_WS+1)}, s91
    s_mov_b32 {sr(SRD_WS+2)}, {WS_SIZE}
    s_mov_b32 {sr(SRD_WS+3)}, 0x00020000
    s_mov_b32 {sr(SRD_DBG)}, s88
    s_mov_b32 {sr(SRD_DBG+1)}, s89
    s_mov_b32 {sr(SRD_DBG+2)}, 256
    s_mov_b32 {sr(SRD_DBG+3)}, 0x00020000
    s_mov_b32 {sr(SRD_GW)}, s62
    s_mov_b32 {sr(SRD_GW+1)}, s63
    s_mov_b32 {sr(SRD_GW+2)}, 2048
    s_mov_b32 {sr(SRD_GW+3)}, 0x00020000
    """)
    a(f"""
    s_and_b32 s3, s2, 7
    s_lshr_b32 {sr(sT1)}, s2, 3
    s_lshr_b32 {sr(sT2)}, s3, 1
    s_lshl_b32 {sr(sT2)}, {sr(sT2)}, 2
    s_and_b32 {sr(sT3)}, {sr(sT1)}, 3
    s_add_u32 {sr(sTB3)}, {sr(sT2)}, {sr(sT3)}
    s_and_b32 {sr(sT2)}, s3, 1
    s_lshl_b32 {sr(sT2)}, {sr(sT2)}, 3
    s_lshr_b32 {sr(sT1)}, {sr(sT1)}, 2
    s_add_u32 {sr(sCB)}, {sr(sT2)}, {sr(sT1)}
    s_add_u32 {sr(sROT)}, {sr(sTB3)}, {sr(sCB)}
    s_and_b32 {sr(sROT)}, {sr(sROT)}, 15
    s_lshl_b32 {sr(sMB2)}, {sr(sTB3)}, 4
    s_add_u32 {sr(sMB2)}, {sr(sMB2)}, {sr(sCB)}
    s_lshl_b32 {sr(sMB2)}, {sr(sMB2)}, 7
    s_add_u32 {sr(sMB2)}, {sr(sMB2)}, {WS_MB2}
    s_cmp_eq_u32 {sr(sHH)}, 1
    s_cselect_b32 {sr(SRD_WO)}, s96, s94
    s_cselect_b32 {sr(SRD_WO+1)}, s97, s95
    s_mov_b32 {sr(SRD_WO+2)}, {1024*1024*2}
    s_mov_b32 {sr(SRD_WO+3)}, 0x00020000
    s_mov_b32 {sr(SRD_OUT)}, s98
    s_mov_b32 {sr(SRD_OUT+1)}, s99
    s_mov_b32 {sr(SRD_OUT+2)}, {2048*1024*2}
    s_mov_b32 {sr(SRD_OUT+3)}, 0x00020000
    """)
    nr = a.label("nr")
    a(f"""
    s_lshl_b32 {sr(sMB)}, {sr(sHP)}, 3
    s_add_u32 {sr(sMB)}, {sr(sMB)}, {sr(sTB)}
    s_lshl_b32 {sr(sMB)}, {sr(sMB)}, 7
    s_add_u32 {sr(sMB)}, {sr(sMB)}, {WS_MB}
    s_lshl_b32 {sr(sCNT)}, {sr(sHP)}, 3
    s_cmp_eq_u32 {sr(sW)}, 0
    s_cselect_b32 {sr(sCHKJ)}, 5, 0xffff
    s_cselect_b32 {sr(sARRJ)}, 11, 0xffff
    s_cbranch_scc0 {nr}
    v_lshlrev_b32 v12, 2, v0
    s_sub_u32 {sr(sT0)}, {sr(sMB2)}, 128
    v_mov_b32 v13, {sr(sMB)}
    v_mov_b32 v14, {sr(sT0)}
    v_cmp_gt_u32 vcc, 32, v0
    s_nop 1
    v_cndmask_b32 v13, v14, v13, vcc
    v_add_u32 v12, v12, v13
    v_mov_b32 v13, 0
    buffer_store_dword v13, v12, {sr(SRD_WS,4)}, 0 offen sc1
    {nr}:
    """)
    a(f"""
    s_lshl_b32 {sr(sT0)}, {sr(sTB)}, 8
    s_lshl_b32 {sr(sT1)}, {sr(sHP)}, 3
    s_add_u32 {sr(sT0)}, {sr(sT0)}, {sr(sT1)}
    s_add_u32 {sr(sT0)}, {sr(sT0)}, {sr(sW)}
    s_lshl_b32 {sr(sT2)}, {sr(sT0)}, 11
    v_lshlrev_b32 v12, 5, v0
    buffer_load_dwordx4 v[16:19], v12, {sr(SRD_X,4)}, {sr(sT2)} offen
    buffer_load_dwordx4 v[20:23], v12, {sr(SRD_X,4)}, {sr(sT2)} offen offset:16
    buffer_load_dwordx4 v[24:27], v12, {sr(SRD_GW,4)}, 0 offen
    buffer_load_dwordx4 v[28:31], v12, {sr(SRD_GW,4)}, 0 offen offset:16
    s_lshl_b32 {sr(sGOFF)}, {sr(sT0)}, 2
    """)
    if opt.get("warm", 0):
        a(f"""
        s_lshl_b32 {sr(sT0)}, s2, 14
        s_lshl_b32 {sr(sT1)}, {sr(sW)}, 11
        s_add_u32 {sr(sT0)}, {sr(sT0)}, {sr(sT1)}
        v_lshlrev_b32 v12, 4, v0
        buffer_load_dwordx4 v[32:35], v12, {sr(SRD_X,4)}, {sr(sT0)} offen
        buffer_load_dwordx4 v[36:39], v12, {sr(SRD_X,4)}, {sr(sT0)} offen offset:1024
        """)
        a(f"""
        s_and_b32 {sr(sT0)}, {sr(sHP)}, 15
        s_lshl_b32 {sr(sT0)}, {sr(sT0)}, 3
        s_add_u32 {sr(sT0)}, {sr(sT0)}, {sr(sTB)}
        s_mul_i32 {sr(sT0)}, {sr(sT0)}, 49152
        s_mul_i32 {sr(sT1)}, {sr(sW)}, 6144
        s_add_u32 {sr(sT0)}, {sr(sT0)}, {sr(sT1)}
        s_add_u32 {sr(sT1)}, {sr(sT0)}, 4096
        """)
        for i in range(6):
            so = sT0 if i < 4 else sT1
            a(f"buffer_load_dwordx4 v[{40+4*i}:{43+4*i}], v12, {sr(SRD_W,4)}, {sr(so)} offen offset:{(i % 4) * 1024}")
        NWARM = 8
        a(f"""
        s_lshl_b32 {sr(sT0)}, {sr(sHP)}, 19
        s_lshl_b32 {sr(sT1)}, {sr(sTB)}, 20
        s_add_u32 {sr(sT1)}, {sr(sT1)}, {WS_O}
        s_lshl_b32 {sr(sT2)}, {sr(sTB3)}, 19
        s_add_u32 {sr(sT2)}, {sr(sT2)}, {WS_O}
        s_lshl_b32 {sr(sT3)}, {sr(sTB3)}, 18
        buffer_load_dword v104, off, {sr(SRD_WS,4)}, {sr(sT0)}
        buffer_load_dword v105, off, {sr(SRD_WS,4)}, {sr(sT1)}
        buffer_load_dword v106, off, {sr(SRD_WS,4)}, {sr(sT2)}
        buffer_load_dword v107, off, {sr(SRD_WO,4)}, 0
        buffer_load_dword v108, off, {sr(SRD_OUT,4)}, {sr(sT3)}
        """)
    a(f"""
    v_and_b32 v13, 31, v0
    v_lshrrev_b32 v14, 5, v0                 ; h
    v_bfe_u32 v15, v13, 1, 3
    v_xor_b32 v15, v15, v14
    v_lshlrev_b32 {vr(vXP)}, 7, v13
    v_lshl_add_u32 {vr(vXP)}, v15, 4, {vr(vXP)}
    v_bfe_u32 v13, v0, 2, 2                  ; r
    v_lshl_add_u32 v1, v14, 3, v13           ; 8h + r
    v_lshlrev_b32 {vr(vWP)}, 7, v1
    v_bfe_u32 v15, v0, 4, 1                  ; g
    v_lshlrev_b32 v15, 1, v15
    v_bfe_u32 v1, v0, 1, 1                   ; c>>1
    v_add_u32 v15, v15, v1
    s_lshl_b32 {sr(sT1)}, {sr(sHH)}, 2
    v_add_u32 v15, {sr(sT1)}, v15            ; cc
    v_lshrrev_b32 v13, 1, v13
    v_lshlrev_b32 v13, 2, v13
    v_xor_b32 v15, v15, v13
    v_lshl_add_u32 {vr(vWP)}, v15, 4, {vr(vWP)}
    v_and_b32 v1, 1, v0
    v_lshl_add_u32 {vr(vWP)}, v1, 3, {vr(vWP)}
    v_lshlrev_b32 {vr(vL16)}, 4, v0
    s_add_u32 {sr(sXQ)}, {sr(sTQ)}, 3
    s_lshl_b32 {sr(sXQ)}, {sr(sXQ)}, 13
    """)

def dma_unit_static(a, g):
    j, u = divmod(g, 7)
    a(f"s_add_u32 m0, {sr(sW1K)}, {(g % 20) * 8192}")
    if u < 3:
        a(f"s_add_u32 {sr(sT0)}, {sr(sWJ)}, {j * 64 * 6144 + u * 2048}")
        a(f"buffer_load_dwordx4 {vr(vDW)}, {sr(SRD_W,4)}, {sr(sT0)} offen lds")
    else:
        a(f"s_add_u32 {sr(sT0)}, {sr(sXJ)}, {j * 128 + (u - 3) * 131072}")
        a(f"buffer_load_dwordx4 {vr(vDX)}, {sr(SRD_X,4)}, {sr(sT0)} offen lds")

def gate_instrs():
    c = ["v_mov_b32 v12, 0"]
    for i in range(8):
        x, w = 16 + i, 24 + i
        c += [f"v_lshlrev_b32 v13, 16, v{x}", f"v_and_b32 v14, 0xffff0000, v{x}", f"v_lshlrev_b32 v32, 16, v{w}",
              f"v_and_b32 v1, 0xffff0000, v{w}", "v_mul_f32 v13, v13, v32", "v_mul_f32 v14, v14, v1",
              "v_cvt_pk_bf16_f32 v13, v13, v14", "v_lshlrev_b32 v14, 16, v13", "v_and_b32 v13, 0xffff0000, v13",
              "v_add_f32 v12, v12, v14", "v_add_f32 v12, v12, v13"]
    for sh in (1, 2, 4, 8):
        c += [f"s_nop 1\nv_add_f32_dpp v12, v12, v12 row_shr:{sh} row_mask:0xf bank_mask:0xf bound_ctrl:0"]
    c += ["s_nop 1\nv_add_f32_dpp v12, v12, v12 row_bcast:15 row_mask:0xa bank_mask:0xf"]
    c += ["s_nop 1\nv_add_f32_dpp v12, v12, v12 row_bcast:31 row_mask:0xc bank_mask:0xf"]
    c += ["s_nop 1\nv_cvt_pk_bf16_f32 v12, v12, v12", "v_lshlrev_b32 v12, 16, v12", f"v_mul_f32 v12, {hex(f2u(-LOG2E))}, v12",
          "v_exp_f32 v12, v12\ns_nop 0\nv_add_f32 v12, 1.0, v12", "v_rcp_f32 v12, v12\ns_nop 0\nv_cvt_pk_bf16_f32 v12, v12, v12",
          "v_lshlrev_b32 v12, 16, v12", f"v_mov_b32 v13, {WS_G}"]
    st = [f"""s_mov_b32 exec_lo, 0
    s_mov_b32 exec_hi, 0x80000000
    buffer_store_dword v12, v13, {sr(SRD_WS,4)}, {sr(sGOFF)} offen sc1
    s_mov_b64 exec, -1"""]
    return c, st

def frag(set_, name):
    off = {"X0": 0, "X1": 4, "Wq": 8, "Wk": 12, "Wv": 16}[name]
    return FR[set_] + off

def gemm_reads(ks, set_):
    r = []
    r.append(f"ds_read_b128 {vr(frag(set_,'X0'),4)}, {vr(vXA)}")
    for u, nm in enumerate(("Wq", "Wk", "Wv")):
        b = frag(set_, nm)
        r.append(f"ds_read_b64_tr_b16 {vr(b,2)}, {vr(vW0+u)} offset:{ks*2048}")
        r.append(f"ds_read_b64_tr_b16 {vr(b+2,2)}, {vr(vW0+u)} offset:{ks*2048+512}")
        if u == 0:
            r.append(f"ds_read_b128 {vr(frag(set_,'X1'),4)}, {vr(vXA)} offset:4096")
    return r

def gemm_mfmas(set_, first=False):
    m = []
    X0, X1 = frag(set_, "X0"), frag(set_, "X1")
    Wq, Wk, Wv = frag(set_, "Wq"), frag(set_, "Wk"), frag(set_, "Wv")
    def mf(acc, A, B): return f"v_mfma_f32_32x32x16_bf16 {vr(acc,16)}, {vr(A,4)}, {vr(B,4)}, {'0' if first else vr(acc,16)}"
    m.append(mf(ACC + 0, Wq, X0))
    m.append(mf(ACC + 32, Wk, X0))
    m.append(mf(ACC + 64, X0, Wv))
    m.append(mf(ACC + 16, Wq, X1))
    m.append(mf(ACC + 48, Wk, X1))
    m.append(mf(ACC + 80, X1, Wv))
    return m

def wrap_list(dst, src, const, tmp):
    return [f"s_add_u32 {sr(tmp)}, {sr(src)}, {const}", f"s_sub_u32 {dst}, {sr(tmp)}, {RING}", f"s_cselect_b32 {dst}, {sr(tmp)}, {dst}"]

def read_bases_list():
    r = [f"v_add_u32 {vr(vW0)}, {sr(sRING)}, {vr(vWP)}"]
    for u in (1, 2):
        r += wrap_list(sr(sT1), sRING, u * 8192, sT0)
        r.append(f"v_add_u32 {vr(vW0+u)}, {sr(sT1)}, {vr(vWP)}")
    r += [f"s_add_u32 {sr(sT0)}, {sr(sRING)}, {sr(sXQ)}", f"s_sub_u32 {sr(sT1)}, {sr(sT0)}, {RING}",
          f"s_cselect_b32 {sr(sT1)}, {sr(sT0)}, {sr(sT1)}", f"v_add_u32 {vr(vXB)}, {sr(sT1)}, {vr(vXP)}",
          f"v_mov_b32 {vr(vXA)}, {vr(vXB)}"]
    return r

def dma_group(i):
    if OPT.get("g_nodma"): return []
    s = [f"s_add_u32 {sr(sT2)}, {sr(sRINGW)}, {i * 8192}", f"s_sub_u32 m0, {sr(sT2)}, {RING}", f"s_cselect_b32 m0, {sr(sT2)}, m0"]
    if i == 0:
        s.append(f"s_add_u32 {sr(sT3)}, {sr(sXJ)}, {3 * 131072 - 128}")
        s.append(f"buffer_load_dwordx4 {vr(vDX)}, {sr(SRD_X,4)}, {sr(sT3)} offen lds")
    elif i <= 3:
        s.append(f"s_add_u32 {sr(sT3)}, {sr(sWJ)}, {(i - 1) * 2048}")
        s.append(f"buffer_load_dwordx4 {vr(vDW)}, {sr(SRD_W,4)}, {sr(sT3)} offen lds")
    else:
        s.append(f"s_add_u32 {sr(sT3)}, {sr(sXJ)}, {(i - 4) * 131072}")
        s.append(f"buffer_load_dwordx4 {vr(vDX)}, {sr(SRD_X,4)}, {sr(sT3)} offen lds")
    return s

def kstep(a, cur, next_ks, gaps_extra, first=False):
    m = gemm_mfmas(cur, first)
    r = gemm_reads(next_ks, cur ^ 1) if next_ks is not None else []
    gaps = [[] for _ in range(6)]
    for i, x in enumerate(r):
        gaps[min(i // 3, 5)].append(x)
    for g in range(6):
        gaps[g] += gaps_extra.get(g, [])
    for i in range(6):
        a(m[i])
        for x in gaps[i]:
            a(x)

def gemm_stage(a, pending, new_batch, vm_wait, first=False, last=False, valu=None, after_bar=None):
    prio = OPT.get("gprio", 1)
    sp = lambda n: [f"s_setprio {n}"] if prio else []
    valu = list(valu or [])
    per = (len(valu) + 2) // 3
    for ks in range(3):
        ex = {}
        mine = [i for i in pending if (i - 2) // 2 == ks]
        if mine:
            ex[2] = dma_group(mine[0])
        if len(mine) > 1:
            ex[4] = dma_group(mine[1])
        chunk = valu[ks * per:(ks + 1) * per]
        n3 = (len(chunk) + 2) // 3
        for k, g in enumerate((1, 3, 5)):
            ex[g] = ex.get(g, []) + chunk[k * n3:(k + 1) * n3]
        ex[0] = sp(2 - ks)
        if ks < 2:
            ex[5] = ex.get(5, []) + [f"v_xor_b32 {vr(vXA)}, {(ks + 2) << 5}, {vr(vXB)}"]
        else:
            upd = [f"s_add_u32 {sr(sRINGW)}, {sr(sRING)}, {sr(sW1K)}", f"s_add_u32 {sr(sXJ)}, {sr(sXJ)}, 128",
                   f"s_add_u32 {sr(sWJ)}, {sr(sWJ)}, {64 * 6144}"] + wrap_list(sr(sRING), sRING, 7 * 8192, sT0)
            ex[3] = ex.get(3, []) + upd
            if not last:
                ex[4] = ex.get(4, []) + read_bases_list()
        a("s_waitcnt lgkmcnt(0)")
        kstep(a, ks & 1, ks + 1, ex, first=(first and ks == 0))
    if OPT.get("stampsg"):
        a("s_waitcnt lgkmcnt(0)")
        gstamp(a, 204)
    if vm_wait is not None:
        a(f"s_waitcnt vmcnt({vm_wait}) lgkmcnt(0)")
    else:
        a("s_waitcnt lgkmcnt(0)")
    if OPT.get("stampsg"): gstamp(a, 205)
    if not OPT.get("g_nobar"): a("s_barrier")
    if OPT.get("stampsg"):
        gstamp(a, 206)
        a("s_add_u32 s87, s87, 1")
    ex = {0: sp(3)}
    if len(new_batch) > 0: ex[2] = dma_group(new_batch[0])
    if len(new_batch) > 1: ex[4] = dma_group(new_batch[1])
    if not last:
        ex[5] = [f"v_xor_b32 {vr(vXA)}, {1 << 5}, {vr(vXB)}"]
    if after_bar:
        ex[5] = ex.get(5, []) + after_bar
    kstep(a, 1, None if last else 0, ex)

def gemm(a, opt):
    if OPT.get("stampsg"): a("s_mov_b32 s87, 0")
    a(f"s_add_u32 {sr(sXJ)}, {sr(sXJ)}, {2 * 128}")
    a(f"s_add_u32 {sr(sWJ)}, {sr(sWJ)}, {2 * 64 * 6144}")
    a(f"s_mov_b32 {sr(sRING)}, 0")
    for x in read_bases_list(): a(x)
    if opt.get("stamps_start"): timestamp(a, 4, opt)
    nw = 13 if opt.get("warm", 0) else 0
    a(f"s_waitcnt vmcnt({17 + nw})")
    if opt.get("stamps_start"): timestamp(a, 5, opt)
    a("s_barrier")
    if opt.get("stamps_start"): timestamp(a, 6, opt)
    for x in gemm_reads(0, 0):
        a(x)
    a(f"v_xor_b32 {vr(vXA)}, {1 << 5}, {vr(vXB)}")
    gemm_stage(a, [], [0, 1], 10 + nw, first=True)
    a(f"s_mov_b32 {sr(sJ)}, 12")
    lab = a.label("gemm")
    a(".p2align 6")
    a(f"{lab}:")
    gemm_stage(a, [2, 3, 4, 5, 6], [0, 1], 6)
    nc = a.label("nc"); nd = a.label("nd")
    a(f"s_cmp_eq_u32 {sr(sJ)}, {sr(sARRJ)}")
    a(f"s_cbranch_scc0 {nd}")
    a(f"""
    v_mov_b32 v12, 1
    s_mov_b64 exec, 1
    buffer_atomic_add v12, off, {sr(SRD_DBG,4)}, {sr(sCNT)} sc1
    s_mov_b64 exec, -1
    s_nop 3
    """)
    a(f"{nd}:")
    a(f"s_cmp_eq_u32 {sr(sJ)}, {sr(sCHKJ)}")
    a(f"s_cbranch_scc0 {nc}")
    a(f"v_lshlrev_b32 v12, 2, v0")
    a(f"buffer_load_dword {vr(vCHK)}, v12, {sr(SRD_DBG,4)}, 0 offen sc1")
    a(f"{nc}:")
    a(f"s_sub_u32 {sr(sJ)}, {sr(sJ)}, 1")
    a(f"s_cmp_lg_u32 {sr(sJ)}, 0")
    a(f"s_cbranch_scc1 {lab}")
    gc, gs = gate_instrs()
    gemm_stage(a, [2, 3, 4, 5, 6], [0], 6)
    gemm_stage(a, [], [], 0, valu=gc, after_bar=gs + ["s_nop 3"])
    gemm_stage(a, [], [], None, last=True)
    a("s_setprio 0")
    a("s_nop 15")

def gemm_epilogue(a, opt):
    for tile in (2, 3, 4, 5):
        b = ACC + 16 * tile
        for i in range(8):
            a(f"v_cvt_pk_bf16_f32 v{b+i}, v{b+2*i}, v{b+2*i+1}")
    a(f"""
    s_lshl_b32 {sr(sT1)}, {sr(sHP)}, 1
    s_add_u32 {sr(sT1)}, {sr(sT1)}, {sr(sHH)}
    s_lshl_b32 {sr(sKVSRC)}, {sr(sT1)}, 18
    s_lshl_b32 {sr(sT1)}, {sr(sTB)}, 15
    s_lshl_b32 {sr(sT2)}, {sr(sTQ)}, 13
    s_add_u32 {sr(sT1)}, {sr(sT1)}, {sr(sT2)}
    s_add_u32 {sr(sT1)}, {sr(sT1)}, {sr(sKVSRC)}
    s_add_u32 {sr(sT2)}, {sr(sT1)}, 4096
    """)
    for tt in range(2):
        so = sT1 if tt == 0 else sT2
        kb, vb = ACC + 32 + 16 * tt, ACC + 64 + 16 * tt
        a(f"buffer_store_dwordx4 {vr(kb,4)}, {vr(vL16)}, {sr(SRD_WS,4)}, {sr(so)} offen sc1")
        a(f"buffer_store_dwordx4 {vr(kb+4,4)}, {vr(vL16)}, {sr(SRD_WS,4)}, {sr(so)} offen offset:1024 sc1")
        a(f"buffer_store_dwordx4 {vr(vb,4)}, {vr(vL16)}, {sr(SRD_WS,4)}, {sr(so)} offen offset:2048 sc1")
        a(f"buffer_store_dwordx4 {vr(vb+4,4)}, {vr(vL16)}, {sr(SRD_WS,4)}, {sr(so)} offen offset:3072 sc1")
    a(f"s_mov_b32 {sr(sT2)}, {hex(f2u(QSCALE))}")
    a(f"s_mov_b32 {sr(sT3)}, {hex(f2u(QSCALE))}")
    for tt in range(2):
        b = ACC + 16 * tt
        for i in range(8):
            a(f"v_pk_mul_f32 {vr(b+2*i,2)}, {vr(b+2*i,2)}, {sr(sT2,2)}")
        for i in range(8):
            a(f"v_cvt_pk_bf16_f32 v{QF+8*tt+i}, v{b+2*i}, v{b+2*i+1}")
    kb = ACC + 32
    a("s_nop 1")
    for x in range(2):
        S, Q = SS + 16 * x, QF + 8 * x
        a(f"v_mfma_f32_32x32x16_bf16 {vr(S,16)}, {vr(kb,4)}, {vr(Q,4)}, 0")
        a(f"v_mfma_f32_32x32x16_bf16 {vr(S,16)}, {vr(kb+4,4)}, {vr(Q+4,4)}, {vr(S,16)}")
    a(f"""
    s_lshr_b32 {sr(sT1)}, {sr(sTQ)}, 1
    s_lshl_b32 {sr(sT1)}, {sr(sT1)}, 15
    s_lshl_b32 {sr(sT2)}, {sr(sHH)}, 14
    s_add_u32 {sr(sT1)}, {sr(sT1)}, {sr(sT2)}
    s_and_b32 {sr(sT2)}, {sr(sTQ)}, 1
    s_lshl_b32 {sr(sT2)}, {sr(sT2)}, 13
    s_add_u32 {sr(sT1)}, {sr(sT1)}, {sr(sT2)}
    v_add_u32 v12, {sr(sT1)}, {vr(vL16)}
    """)
    for tt in range(2):
        kb, vb = ACC + 32 + 16 * tt, ACC + 64 + 16 * tt
        a(f"ds_write_b128 v12, {vr(kb,4)} offset:{tt*4096}")
        a(f"ds_write_b128 v12, {vr(kb+4,4)} offset:{tt*4096+1024}")
        a(f"ds_write_b128 v12, {vr(vb,4)} offset:{tt*4096+2048}")
        a(f"ds_write_b128 v12, {vr(vb+4,4)} offset:{tt*4096+3072}")
    if opt.get("dump_q"):
        a(f"""
        s_lshl_b32 {sr(sT1)}, s2, 3
        s_add_u32 {sr(sT1)}, {sr(sT1)}, {sr(sW)}
        s_lshl_b32 {sr(sT1)}, {sr(sT1)}, 12
        s_add_u32 {sr(sT1)}, {sr(sT1)}, {WS_DBG}
        """)
        for i in range(4):
            a(f"buffer_store_dwordx4 {vr(QF+4*i,4)}, {vr(vL16)}, {sr(SRD_WS,4)}, {sr(sT1)} offen offset:{i*1024}")

def smf(L):
    return f"v_smfmac_f32_16x16x64_bf16 {vr(L,4)}, {vr(ONES,4)}, {vr(PP,8)}, {vr(IDX)}"

def attn_unit(a, t, x, hooks, skip_prev=False, c_zero=False):
    S = SS + 16 * x
    Sn = SS + 16 * (x ^ 1)
    xn = xp = x ^ 1
    Qn = QF + 8 * xn
    P0, P1 = PP, PP + 4
    def M(d, A, B, C): return f"v_mfma_f32_32x32x16_bf16 {vr(d,16)}, {vr(A,4)}, {vr(B,4)}, {C}"
    e = lambda i: f"v_exp_f32 v{S+i}, v{S+i}"
    c = lambda i: f"v_cvt_pk_bf16_f32 v{PP+i}, v{S+2*i}, v{S+2*i+1}"
    mf = [M(Sn, KF, Qn, vr(NM + 16 * xn, 16)),
          None if skip_prev else M(OA + 16 * xp, VF + 4, P1, vr(OA + 16 * xp, 16)),
          None if skip_prev else smf(LA + 4 * xp),
          M(Sn, KF + 4, Qn + 4, vr(Sn, 16)),
          M(OA + 16 * x, VF, P0, "0" if c_zero else vr(OA + 16 * x, 16))]
    va = [[e(0), e(1), e(2)], [e(3), e(4), e(5)], [e(6), e(7), c(0), c(1), c(2), c(3)],
          [e(8), e(9), e(10)], [e(11), e(12), e(13), e(14), e(15), c(4), c(5), c(6), c(7)]]
    for g in range(5):
        if mf[g]: a(mf[g])
        for h in hooks.get(g, []):
            a(h)
        for v in va[g]:
            a(v)

def kv_addr(tile, f):
    if tile < 4:
        return vCUR, tile * 4096 + f * 1024
    return vNXT, f * 1024

def rd(dst, tile, f):
    b, o = kv_addr(tile, f)
    return f"ds_read_b128 {vr(dst,4)}, {vr(b)} offset:{o}"

def kv_dma(p, so):
    return f"buffer_load_dwordx4 {vr(vDMA)}, {sr(SRD_WS,4)}, {sr(so)} offen offset:{p*1024} sc1 lds"

def poll_mailbox(a, want_all):
    poll, done = a.label("poll"), a.label("pdone")
    a(f"s_mov_b32 {sr(sT1)}, 400000")
    a(f"v_lshlrev_b32 v13, 2, v0")
    a(f"s_add_u32 {sr(sT2)}, {sr(sTB)}, 1")
    a(f"s_and_b32 {sr(sT2)}, {sr(sT2)}, 7")
    a(f"s_lshl_b32 {sr(sT2)}, 1, {sr(sT2)}")
    if want_all:
        a(f"s_mov_b32 {sr(sT2)}, 0xff")
    a("s_mov_b64 exec, 0xff")
    a(f"{poll}:")
    a(f"buffer_load_dword v12, v13, {sr(SRD_WS,4)}, {sr(sMB)} offen sc1")
    a("s_waitcnt vmcnt(0)")
    a("v_cmp_eq_u32 vcc, 1, v12")
    a("s_nop 3")
    a(f"s_and_b32 {sr(sT3)}, vcc_lo, {sr(sT2)}")
    a(f"s_cmp_eq_u32 {sr(sT3)}, {sr(sT2)}")
    a(f"s_cbranch_scc1 {done}")
    a(f"s_sub_u32 {sr(sT1)}, {sr(sT1)}, 1")
    a(f"s_cbranch_scc1 {done}")
    a("s_sleep 1")
    a(f"s_branch {poll}")
    a(f"{done}:")
    a("s_mov_b64 exec, -1")

def publish(a):
    spin, ok = a.label("rdy"), a.label("rdyok")
    a(f"s_mov_b32 {sr(sT1)}, 400000")
    a(f"s_mov_b32 {sr(sT2)}, 0x55555555")
    a(f"v_lshlrev_b32 v12, 2, v0")
    a(f"{spin}:")
    a(f"v_cmp_eq_u32 vcc, 8, {vr(vCHK)}")
    a("s_nop 3")
    a(f"s_and_b32 {sr(sT0)}, vcc_lo, {sr(sT2)}")
    a(f"s_and_b32 {sr(sT3)}, vcc_hi, {sr(sT2)}")
    a(f"s_and_b32 {sr(sT0)}, {sr(sT0)}, {sr(sT3)}")
    a(f"s_cmp_eq_u32 {sr(sT0)}, {sr(sT2)}")
    a(f"s_cbranch_scc1 {ok}")
    a(f"s_sub_u32 {sr(sT1)}, {sr(sT1)}, 1")
    a(f"s_cbranch_scc1 {ok}")
    a(f"buffer_load_dword {vr(vCHK)}, v12, {sr(SRD_DBG,4)}, 0 offen sc1")
    a("s_waitcnt vmcnt(0)")
    a(f"s_branch {spin}")
    a(f"{ok}:")
    a(f"""
    s_lshl_b32 {sr(sT0)}, {sr(sHP)}, 10
    s_lshl_b32 {sr(sT1)}, {sr(sTB)}, 2
    s_add_u32 {sr(sT0)}, {sr(sT0)}, {sr(sT1)}
    s_add_u32 {sr(sT0)}, {sr(sT0)}, {WS_MB}
    v_lshlrev_b32 v12, 7, v0
    v_mov_b32 v13, 1
    s_mov_b64 exec, 0xff
    buffer_store_dword v13, v12, {sr(SRD_WS,4)}, {sr(sT0)} offen sc1
    s_mov_b64 exec, -1
    """)

def wo_piece(i, half):
    return [f"s_add_u32 {sr(sT0)}, {sr(sROT)}, {i}", f"s_and_b32 {sr(sT0)}, {sr(sT0)}, 15", f"s_lshl_b32 {sr(sT0)}, {sr(sT0)}, 17",
            f"s_add_u32 {sr(sT0)}, {sr(sT0)}, {sr(sWOFF)}"] + ([f"s_add_u32 {sr(sT0)}, {sr(sT0)}, 16384"] if half else []) + \
           [f"s_add_u32 m0, {sr(sLDSW3)}, {(i % NSLOT3) * 16384 + half * 1024}", "s_nop 0",
            f"buffer_load_dwordx4 {vr(vDW3)}, {sr(SRD_WO,4)}, {sr(sT0)} offen lds"]

def attn_stage(a, opt, kind, s_=None):
    prio = opt.get("prio", 1)
    def sp(n): return [f"s_setprio {n}"] if prio else []
    for t in range(4):
        h0 = {0: [rd(KF, t + 1, 0)], 1: [rd(VF + 4, t, 3)], 2: ["s_waitcnt lgkmcnt(2)"],
              3: [rd(KF + 4, t + 1, 1)], 4: ["s_waitcnt lgkmcnt(2)"]}
        h1 = {0: ["s_waitcnt lgkmcnt(1)"], 1: [], 2: ["s_waitcnt lgkmcnt(0)"], 3: [], 4: [rd(VF, t + 1, 2)]}
        if t == 0:
            h0[0] += sp(2)
            h0[4] += [f"s_mov_b32 {sr(sNXT)}, {sr(sSLOT)}"]
            h1[1] = [f"s_add_u32 {sr(sSRC)}, {sr(sSRC)}, 16384"]
            h1[3] = [f"s_and_b32 {sr(sSRC)}, {sr(sSRC)}, 0x3ffff"]
        if t == 1:
            h0[0] += sp(1)
            h1[1] = [f"s_add_u32 {sr(sSLOT)}, {sr(sSLOT)}, 32768"]
            h1[3] = [f"s_and_b32 {sr(sSLOT)}, {sr(sSLOT)}, 0x1ffff"]
            if kind == 0:
                h1[4] += ["s_waitcnt vmcnt(0)", "s_barrier"]
            if kind == 3 and s_ == 13:
                h0[2] += wo_piece(8, 0)
                h0[4] += wo_piece(8, 1)
                h1[0] += wo_piece(9, 0)
                h1[2] += wo_piece(9, 1)
            if kind == 1:
                go = a.label("go")
                lanestamp(a, 203, opt, 0)
                a(f"s_cmp_eq_u32 {sr(sW)}, 0")
                a(f"s_cbranch_scc0 {go}")
                poll_mailbox(a, False)
                a(f"{go}:")
                lanestamp(a, 203, opt, 1)
                a("s_barrier")
                lanestamp(a, 203, opt, 2)
                for st in (2, 3):
                    a(f"""
                    s_lshl_b32 {sr(sT0)}, {sr(sTB)}, 1
                    s_add_u32 {sr(sT0)}, {sr(sT0)}, {st}
                    s_and_b32 {sr(sT0)}, {sr(sT0)}, 15
                    s_lshl_b32 {sr(sOFFS)}, {sr(sT0)}, 14
                    s_add_u32 m0, {sr(sLDSW)}, {st * 32768}
                    s_nop 0
                    """)
                    for p in range(4):
                        a(kv_dma(p, sOFFS))
        if t == 2:
            h0[0] += sp(0)
            h1[1] = [f"s_add_u32 m0, {sr(sSLOT)}, {sr(sLDSW)}"]
            h1[3] = [f"s_add_u32 {sr(sJ)}, {sr(sJ)}, 1"]
            if kind == 0:
                h1[4] += ["s_barrier"] + sp(3)
                np_ = a.label("np")
                a(f"s_cmp_eq_u32 {sr(sW)}, 0")
                a(f"s_cbranch_scc0 {np_}")
                publish(a)
                a(f"{np_}:")
            elif kind == 3 and s_ == 15:
                h1[4] += ["s_barrier"] + sp(3)
            elif kind == 3:
                h1[4] += ["s_waitcnt vmcnt(8)", "s_barrier"] + sp(3)
            elif kind != 1:
                h1[4] += ["s_waitcnt vmcnt(4)", "s_barrier"] + sp(3)
        if t == 3:
            if kind == 3:
                q = s_ - 13
                h0[2] += wo_piece(2 * q, 0)
                h0[4] += wo_piece(2 * q, 1)
                h1[1] = wo_piece(2 * q + 1, 0)
                h1[3] = wo_piece(2 * q + 1, 1)
            elif kind != 0:
                h0[2] += [kv_dma(0, sSRC)]
                h0[4] += [kv_dma(1, sSRC)]
                h1[1] = [kv_dma(2, sSRC)]
                h1[3] = [kv_dma(3, sSRC)]
            if kind == 1:
                go = a.label("go")
                a(f"s_cmp_eq_u32 {sr(sW)}, 0")
                a(f"s_cbranch_scc0 {go}")
                poll_mailbox(a, True)
                a(f"{go}:")
                a("s_waitcnt vmcnt(4)")
                a("s_barrier")
                for x in sp(3): a(x)
        first = kind == 0 and t == 0
        attn_unit(a, t, 0, h0, skip_prev=first, c_zero=first)
        attn_unit(a, t, 1, h1, c_zero=first)
    a(f"v_mov_b32 {vr(vCUR)}, {vr(vNXT)}")
    a(f"v_add_u32 {vr(vNXT)}, {sr(sNXT)}, {vr(vKVB)}")

def attention(a, opt):
    a(f"""
    v_bfe_u32 v12, v0, 2, 1
    v_and_b32 v13, 3, v0
    v_mov_b32 v14, 0x3f803f80
    v_cmp_gt_u32 vcc, 2, v13
    s_nop 1
    v_cndmask_b32 v14, 0, v14, vcc
    v_cmp_eq_u32 vcc, 0, v12
    s_nop 1
    v_cndmask_b32 v{ONES}, 0, v14, vcc
    v_cndmask_b32 v{ONES+2}, v14, 0, vcc
    v_mov_b32 v{ONES+1}, v{ONES}
    v_mov_b32 v{ONES+3}, v{ONES+2}
    v_mov_b32 v14, 0x4444
    v_mov_b32 v12, 0xeeee
    v_cmp_eq_u32 vcc, 1, v13
    s_nop 1
    v_cndmask_b32 v{IDX}, v14, v12, vcc
    s_lshl_b32 {sr(sT0)}, {sr(sHH)}, 14
    v_add_u32 {vr(vKVB)}, {sr(sT0)}, {vr(vL16)}
    v_mov_b32 {vr(vCUR)}, {vr(vKVB)}
    v_add_u32 {vr(vNXT)}, 32768, {vr(vKVB)}
    s_lshl_b32 {sr(sT1)}, {sr(sTQ)}, 12
    s_add_u32 {sr(sLDSW)}, {sr(sT0)}, {sr(sT1)}
    s_add_u32 {sr(sKVSRC)}, {sr(sKVSRC)}, {sr(sT1)}
    v_add_u32 {vr(vDMA)}, {sr(sKVSRC)}, {vr(vL16)}
    s_lshl_b32 {sr(sSRC)}, {sr(sTB)}, 1
    s_add_u32 {sr(sSRC)}, {sr(sSRC)}, 2
    s_and_b32 {sr(sSRC)}, {sr(sSRC)}, 15
    s_lshl_b32 {sr(sSRC)}, {sr(sSRC)}, 14
    s_mov_b32 {sr(sSLOT)}, {2 * 32768}
    s_mov_b32 {sr(sJ)}, 0
    v_lshrrev_b32 v12, 3, v0
    v_and_b32 v13, 7, v0
    v_bfe_u32 v14, v12, 1, 1
    v_lshlrev_b32 v14, 2, v14
    v_xor_b32 v13, v13, v14
    s_lshl_b32 {sr(sT0)}, {sr(sTQ)}, 4
    v_add_u32 v12, {sr(sT0)}, v12
    v_lshlrev_b32 {vr(vDW3)}, 11, v12
    v_lshl_add_u32 {vr(vDW3)}, v13, 4, {vr(vDW3)}
    s_lshl_b32 {sr(sWOFF)}, {sr(sCB)}, 7
    s_lshl_b32 {sr(sLDSW3)}, {sr(sHH)}, 13
    s_lshl_b32 {sr(sT0)}, {sr(sTQ)}, 11
    s_add_u32 {sr(sLDSW3)}, {sr(sLDSW3)}, {sr(sT0)}
    """)
    for i in range(8): a(f"v_mov_b32 v{LA+i}, 0")
    for x in range(2):
        S = SS + 16 * x
        a(f"v_max3_f32 v12, v{S}, v{S+1}, v{S+2}")
        for i in range(3, 15, 2):
            a(f"v_max3_f32 v12, v12, v{S+i}, v{S+i+1}")
        a(f"v_max_f32 v12, v12, v{S+15}")
        a(f"""
        v_mov_b32 v13, v12
        s_nop 1
        v_permlane32_swap_b32 v13, v12
        s_nop 1
        v_max_f32 v12, v12, v13
        v_sub_f32 v12, 0, v12
        """)
        for i in range(16):
            a(f"v_mov_b32 v{NM+16*x+i}, v12")
    a("s_waitcnt lgkmcnt(0)")
    a("s_barrier")
    a(rd(KF, 0, 0)); a(rd(KF + 4, 0, 1)); a(rd(VF, 0, 2))
    a("s_waitcnt lgkmcnt(1)")
    a(f"v_mfma_f32_32x32x16_bf16 {vr(SS,16)}, {vr(KF,4)}, {vr(QF,4)}, {vr(NM,16)}")
    a(f"v_mfma_f32_32x32x16_bf16 {vr(SS,16)}, {vr(KF+4,4)}, {vr(QF+4,4)}, {vr(SS,16)}")
    lanestamp(a, 203, opt, 3)
    a("s_waitcnt lgkmcnt(0)")
    a("s_nop 15")
    attn_stage(a, opt, 0)
    lanestamp(a, 202, opt, 0)
    attn_stage(a, opt, 1)
    lanestamp(a, 202, opt, 1)
    loop = a.label("attn")
    a(".p2align 6")
    a(f"{loop}:")
    attn_stage(a, opt, 2)
    lanestamp(a, 202, opt, "m")
    a(f"s_cmp_lt_u32 {sr(sJ)}, 13")
    a(f"s_cbranch_scc1 {loop}")
    for s_ in (13, 14, 15):
        attn_stage(a, opt, 3, s_)
        lanestamp(a, 202, opt, s_)
    a("s_setprio 0")
    a("s_nop 1")
    a(f"v_mfma_f32_32x32x16_bf16 {vr(OA+16,16)}, {vr(VF+4,4)}, {vr(PP+4,4)}, {vr(OA+16,16)}")
    a(smf(LA + 4))
    a("s_waitcnt lgkmcnt(0)")

def attn_epilogue(a, opt):
    a(f"""
    s_lshl_b32 {sr(sT0)}, {sr(sTB)}, 3
    s_lshl_b32 {sr(sT1)}, {sr(sTQ)}, 1
    s_add_u32 {sr(sT0)}, {sr(sT0)}, {sr(sT1)}
    s_lshl_b32 {sr(sT0)}, {sr(sT0)}, 17
    s_lshl_b32 {sr(sT1)}, {sr(sHP)}, 1
    s_add_u32 {sr(sT1)}, {sr(sT1)}, {sr(sHH)}
    s_lshl_b32 {sr(sT1)}, {sr(sT1)}, 11
    s_add_u32 {sr(sT0)}, {sr(sT0)}, {sr(sT1)}
    s_add_u32 {sr(sOOFF)}, {sr(sT0)}, {WS_O}
    s_mov_b32 {sr(sT2)}, {hex(f2u(2.0**24))}
    s_nop 7
    """)
    ok = a.label("ok")
    a("v_mov_b32 v12, 0")
    a("v_mov_b32 v13, 0")
    a(f"v_add_f32 v{LA}, v{LA}, v{LA+1}")
    a(f"v_add_f32 v{LA+4}, v{LA+4}, v{LA+5}")
    for i in range(16):
        a(f"v_pk_fma_f32 v[12:13], {vr(OA+2*i,2)}, 0, v[12:13] op_sel_hi:[1,0,1]")
    a(f"v_cmp_nle_f32 {sr(sM,2)}, v{LA}, {sr(sT2)}")
    a(f"v_cmp_nle_f32 {sr(sM2,2)}, v{LA+4}, {sr(sT2)}")
    a("v_cmp_u_f32 vcc, v12, v13")
    a(f"s_or_b64 {sr(sM,2)}, {sr(sM,2)}, {sr(sM2,2)}")
    a(f"s_or_b64 {sr(sM,2)}, {sr(sM,2)}, vcc")
    if opt.get("force_fallback"):
        a(f"s_mov_b64 {sr(sM,2)}, -1")
    a(f"s_cmp_eq_u64 {sr(sM,2)}, 0")
    a(f"s_cbranch_scc1 {ok}")
    fallback(a, opt)
    a(f"{ok}:")
    a(f"v_rcp_f32 v12, v{LA}")
    a(f"v_rcp_f32 v14, v{LA+4}")
    for x in range(2):
        r = (12, 14)[x]
        a(f"v_mov_b32 v{r+1}, v{r}" if x == 1 else f"v_mov_b32 v13, v12")
        b = OA + 16 * x
        for i in range(8):
            a(f"v_pk_mul_f32 {vr(b+2*i,2)}, {vr(b+2*i,2)}, {vr(r,2)}")
        for i in range(8):
            a(f"v_cvt_pk_bf16_f32 v{b+i}, v{b+2*i}, v{b+2*i+1}")
        if x == 1:
            a(f"s_add_u32 {sr(sOOFF)}, {sr(sOOFF)}, 131072")
        a(f"buffer_store_dwordx4 {vr(b,4)}, {vr(vL16)}, {sr(SRD_WS,4)}, {sr(sOOFF)} offen sc1")
        a(f"buffer_store_dwordx4 {vr(b+4,4)}, {vr(vL16)}, {sr(SRD_WS,4)}, {sr(sOOFF)} offen offset:1024 sc1")

def phase3(a, opt):
    vm = VmTracker()
    ACC3, AF, OF, DEPTH, NSLOT = 16, 48, 72, opt.get("depth", 16), NSLOT3
    vRD = [7, 8, 9, 11, 4, 5]
    vG, vOUT = 14, 13
    a("s_waitcnt vmcnt(0)")
    a("s_barrier")
    timestamp(a, 4, opt)
    np_ = a.label("np3")
    a(f"s_cmp_eq_u32 {sr(sW)}, 0")
    a(f"s_cbranch_scc0 {np_}")
    a(f"""
    s_lshl_b32 {sr(sT0)}, {sr(sTB)}, 12
    s_lshl_b32 {sr(sT1)}, {sr(sHP)}, 2
    s_add_u32 {sr(sT0)}, {sr(sT0)}, {sr(sT1)}
    s_add_u32 {sr(sT0)}, {sr(sT0)}, {WS_MB2}
    v_lshlrev_b32 v12, 7, v0
    v_mov_b32 v15, 1
    s_mov_b32 exec_lo, -1
    s_mov_b32 exec_hi, 0
    buffer_store_dword v15, v12, {sr(SRD_WS,4)}, {sr(sT0)} offen sc1
    s_mov_b64 exec, -1
    """)
    poll = a.label("poll3"); done = a.label("pd3")
    a(f"s_mov_b32 {sr(sT1)}, 400000")
    a(f"v_lshlrev_b32 v12, 2, v0")
    a("s_mov_b32 exec_lo, -1")
    a("s_mov_b32 exec_hi, 0")
    a(f"{poll}:")
    a(f"buffer_load_dword v15, v12, {sr(SRD_WS,4)}, {sr(sMB2)} offen sc1")
    a("s_waitcnt vmcnt(0)")
    a("v_cmp_eq_u32 vcc, 1, v15")
    a("s_nop 3")
    a("s_cmp_eq_u32 vcc_lo, -1")
    a(f"s_cbranch_scc1 {done}")
    a(f"s_sub_u32 {sr(sT1)}, {sr(sT1)}, 1")
    a(f"s_cbranch_scc1 {done}")
    a("s_sleep 1")
    a(f"s_branch {poll}")
    a(f"{done}:")
    a("s_mov_b64 exec, -1")
    a(f"{np_}:")
    def wdma(i):
        for half in range(2):
            for x in wo_piece(i, half): a(x)
            vm.issue(("w", i))
    wdma(6); wdma(7)
    a(f"""
    v_and_b32 v12, 31, v0
    s_lshl_b32 {sr(sT0)}, {sr(sTB3)}, 7
    s_lshl_b32 {sr(sT2)}, {sr(sTQ)}, 5
    s_add_u32 {sr(sT0)}, {sr(sT0)}, {sr(sT2)}
    v_add_u32 v12, {sr(sT0)}, v12                  ; token
    v_lshlrev_b32 v3, 2, v12
    v_lshrrev_b32 {vr(vG)}, 5, v0                  ; h
    v_lshlrev_b32 {vr(vOUT)}, 11, v12
    v_lshl_add_u32 {vr(vOUT)}, {vr(vG)}, 4, {vr(vOUT)}
    v_bfe_u32 v15, v0, 2, 2                        ; r
    v_lshl_add_u32 v12, {vr(vG)}, 2, v15           ; 4h + r
    v_lshlrev_b32 v2, 7, v12
    v_and_b32 v12, 1, v0                           ; h'
    v_bfe_u32 v1, v0, 1, 1                         ; a
    v_bfe_u32 v5, v0, 4, 1                         ; g
    v_lshl_add_u32 v12, v5, 1, v12                 ; chunk16 = 2g + h'
    v_lshrrev_b32 v15, 1, v15
    v_lshlrev_b32 v15, 2, v15
    v_xor_b32 v12, v12, v15
    v_lshl_add_u32 v2, v12, 4, v2
    v_lshl_add_u32 v2, v1, 3, v2
    s_lshl_b32 {sr(sT0)}, {sr(sHH)}, 13
    v_add_u32 v{vRD[0]}, {sr(sT0)}, v2
    v_xor_b32 v{vRD[1]}, 64, v{vRD[0]}
    v_add_u32 v{vRD[2]}, 0x10000, v{vRD[0]}
    v_add_u32 v{vRD[3]}, 0x10000, v{vRD[1]}
    v_add_u32 v{vRD[4]}, 0x20000, v{vRD[0]}
    v_add_u32 v{vRD[5]}, 0x20000, v{vRD[1]}
    s_lshl_b32 {sr(sT0)}, {sr(sTB3)}, 2
    s_add_u32 {sr(sT0)}, {sr(sT0)}, {sr(sTQ)}
    s_lshl_b32 {sr(sAOFF)}, {sr(sT0)}, 17
    s_lshl_b32 {sr(sT1)}, {sr(sHH)}, 16
    s_add_u32 {sr(sAOFF)}, {sr(sAOFF)}, {sr(sT1)}
    s_add_u32 {sr(sAOFF)}, {sr(sAOFF)}, {WS_O}
    """)
    a("s_barrier")
    timestamp(a, 5, opt)
    def oload(kk):
        d = kk % DEPTH
        if kk % 4 == 0:
            a(f"s_add_u32 {sr(sT1)}, {sr(sROT)}, {kk // 4}")
            a(f"s_and_b32 {sr(sT1)}, {sr(sT1)}, 15")
            a(f"s_lshl_b32 {sr(sT1)}, {sr(sT1)}, 12")
            a(f"s_add_u32 {sr(sT1)}, {sr(sT1)}, {sr(sAOFF)}")
        if opt.get("p3_noload") and kk >= DEPTH: return
        sc = "" if opt.get("p3_plain") else " sc1"
        a(f"buffer_load_dwordx4 {vr(OF+4*d,4)}, {vr(vL16)}, {sr(SRD_WS,4)}, {sr(sT1)} offen offset:{(kk%4)*1024}{sc}")
        vm.issue(("o", kk))
    for kk in range(DEPTH): oload(kk)
    a(f"s_mov_b32 {sr(sT2)}, {WS_G}")
    a(f"buffer_load_dword {vr(vG)}, v3, {sr(SRD_WS,4)}, {sr(sT2)} offen sc1")
    vm.issue(("g", 0))
    def wreads(st, ks, set_):
        r = []
        slot = st % NSLOT
        win, off = divmod(slot * 16384, 65536)
        for ct in range(2):
            base = AF + 8 * set_ + 4 * ct
            reg = vRD[2 * win + ct]
            r.append(f"ds_read_b64_tr_b16 {vr(base,2)}, {vr(reg)} offset:{off + ks*2048}")
            r.append(f"ds_read_b64_tr_b16 {vr(base+2,2)}, {vr(reg)} offset:{off + ks*2048+1024}")
        return r
    def wr(kk): return wreads(kk // 4, kk % 4, kk % 3)
    for x in wr(0) + wr(1): a(x)
    pend = []
    for st in range(16):
        for ks in range(4):
            kk = 4 * st + ks
            d = kk % DEPTH
            cur = kk % 3
            bar = ks == 2 and st in (5, 9)
            if bar:
                need = ("w", 7) if st == 5 else ("w", 15)
                n = vm.wait_count(lambda t: t in (need, ("o", kk)))
                a(f"s_waitcnt vmcnt({n}) lgkmcnt(0)")
                a("s_barrier")
                if st == 5:
                    pend = [(i, h) for i in range(10, 16) for h in range(2)]
            else:
                n = vm.wait_count(lambda t: t == ("o", kk))
                a(f"s_waitcnt vmcnt({n}) lgkmcnt({4 if kk < 63 else 0})")
            nxt = wr(kk + 2) if kk + 2 < 64 else []
            for ct in range(2):
                c = "0" if kk == 0 else vr(ACC3+16*ct,16)
                a(f"v_mfma_f32_32x32x16_bf16 {vr(ACC3+16*ct,16)}, {vr(AF+8*cur+4*ct,4)}, {vr(OF+4*d,4)}, {c}")
                for x in nxt[2*ct:2*ct+2]: a(x)
            if kk + DEPTH < 64:
                oload(kk + DEPTH)
            for i, h in pend[:2]:
                if opt.get("p3_nowo"): continue
                for x in wo_piece(i, h): a(x)
                vm.issue(("w", i))
            pend = pend[2:]
    timestamp(a, 6, opt)
    XA = 6 * 16384
    a(f"""
    s_lshl_b32 {sr(sT0)}, {sr(sTQ)}, 12
    s_lshl_b32 {sr(sT1)}, {sr(sHH)}, 11
    s_add_u32 {sr(sT2)}, {sr(sT0)}, {sr(sT1)}
    s_xor_b32 {sr(sT1)}, {sr(sT1)}, 2048
    s_add_u32 {sr(sT3)}, {sr(sT0)}, {sr(sT1)}
    s_add_u32 {sr(sT2)}, {sr(sT2)}, {XA}
    s_add_u32 {sr(sT3)}, {sr(sT3)}, {XA}
    v_add_u32 v12, {sr(sT2)}, {vr(vL16)}
    v_add_u32 v1, {sr(sT3)}, {vr(vL16)}
    v_sub_f32 v2, 1.0, {vr(vG)}
    v_cvt_pk_bf16_f32 v2, v2, v2
    v_lshlrev_b32 v2, 16, v2
    s_lshl_b32 {sr(sT0)}, {sr(sCB)}, 7
    s_lshl_b32 {sr(sT1)}, {sr(sHH)}, 6
    s_add_u32 {sr(sT0)}, {sr(sT0)}, {sr(sT1)}
    """)
    brb, fin = a.label("brb"), a.label("fin")
    a(f"s_cmp_eq_u32 {sr(sHH)}, 0")
    a(f"s_cbranch_scc0 {brb}")
    for br in range(2):
        K, S_ = ACC3 + 16 * br, ACC3 + 16 * (br ^ 1)
        own, rcv = (vG, 2) if br == 0 else (2, vG)
        a(f"v_mov_b32 v60, v{own}\nv_mov_b32 v61, v{own}\nv_mov_b32 v62, v{rcv}\nv_mov_b32 v63, v{rcv}")
        for i in range(8):
            a(f"v_cvt_pk_bf16_f32 v{48+i}, v{S_+2*i}, v{S_+2*i+1}")
        a("ds_write_b128 v12, v[48:51]")
        a("ds_write_b128 v12, v[52:55] offset:1024")
        a("s_waitcnt lgkmcnt(0)")
        a("s_barrier")
        a("ds_read_b128 v[48:51], v1")
        a("ds_read_b128 v[52:55], v1 offset:1024")
        for i in range(8):
            if i == 0: a("s_waitcnt lgkmcnt(1)")
            if i == 4: a("s_waitcnt lgkmcnt(0)")
            a(f"v_lshlrev_b32 v56, 16, v{48+i}")
            a(f"v_and_b32 v57, 0xffff0000, v{48+i}")
            a(f"v_pk_mul_f32 v[56:57], v[56:57], v[62:63]")
            a(f"v_pk_fma_f32 v[56:57], {vr(K+2*i,2)}, v[60:61], v[56:57]")
            a(f"v_cvt_pk_bf16_f32 v{K+i}, v56, v57")
            if i == 3:
                a(f"buffer_store_dwordx4 {vr(K,4)}, {vr(vOUT)}, {sr(SRD_OUT,4)}, {sr(sT0)} offen")
        a(f"buffer_store_dwordx4 {vr(K+4,4)}, {vr(vOUT)}, {sr(SRD_OUT,4)}, {sr(sT0)} offen offset:32")
        if br == 0:
            a(f"s_branch {fin}")
            a(f"{brb}:")
    a(f"{fin}:")

def fallback(a, opt):
    MX = NM
    a(f"s_lshl_b32 {sr(sT0)}, {sr(sHP)}, 1")
    a(f"s_add_u32 {sr(sT0)}, {sr(sT0)}, {sr(sHH)}")
    a(f"s_lshl_b32 {sr(sBLK)}, {sr(sT0)}, 18")
    for i in range(32): a(f"v_mov_b32 v{OA+i}, 0")
    for i in range(8): a(f"v_mov_b32 v{LA+i}, 0")
    a(f"v_mov_b32 v{MX}, 0xff800000")
    a(f"v_mov_b32 v{MX+16}, 0xff800000")
    a(f"s_mov_b32 {sr(sJ)}, 0")
    loop = a.label("fb")
    a(f"{loop}:")
    a(f"buffer_load_dwordx4 {vr(KF,4)}, {vr(vL16)}, {sr(SRD_WS,4)}, {sr(sBLK)} offen sc1")
    a(f"buffer_load_dwordx4 {vr(KF+4,4)}, {vr(vL16)}, {sr(SRD_WS,4)}, {sr(sBLK)} offen offset:1024 sc1")
    a(f"buffer_load_dwordx4 {vr(VF,4)}, {vr(vL16)}, {sr(SRD_WS,4)}, {sr(sBLK)} offen offset:2048 sc1")
    a(f"buffer_load_dwordx4 {vr(VF+4,4)}, {vr(vL16)}, {sr(SRD_WS,4)}, {sr(sBLK)} offen offset:3072 sc1")
    a("s_waitcnt vmcnt(0)")
    for x in range(2):
        S, Q, O, L, mx = SS, QF + 8 * x, OA + 16 * x, LA + 4 * x, MX + 16 * x
        a(f"v_mfma_f32_32x32x16_bf16 {vr(S,16)}, {vr(KF,4)}, {vr(Q,4)}, 0")
        a(f"v_mfma_f32_32x32x16_bf16 {vr(S,16)}, {vr(KF+4,4)}, {vr(Q+4,4)}, {vr(S,16)}")
        a("s_nop 15")
        a(f"v_max3_f32 v12, v{S}, v{S+1}, v{S+2}")
        for i in range(3, 15, 2):
            a(f"v_max3_f32 v12, v12, v{S+i}, v{S+i+1}")
        a(f"v_max_f32 v12, v12, v{S+15}")
        a(f"""
        v_mov_b32 v13, v12
        s_nop 1
        v_permlane32_swap_b32 v13, v12
        s_nop 1
        v_max3_f32 v12, v12, v13, v{mx}
        v_sub_f32 v13, v{mx}, v12
        v_cmp_eq_f32 vcc, v{mx}, v12
        v_exp_f32 v13, v13
        s_nop 1
        v_cndmask_b32 v13, v13, 1.0, vcc
        v_mov_b32 v{mx}, v12
        """)
        for i in range(16):
            a(f"v_mul_f32 v{O+i}, v13, v{O+i}")
        for i in range(4):
            a(f"v_mul_f32 v{L+i}, v13, v{L+i}")
        for i in range(16):
            a(f"v_sub_f32 v{S+i}, v{S+i}, v12")
        for i in range(16):
            a(f"v_exp_f32 v{S+i}, v{S+i}")
        a("s_nop 0")
        for i in range(8):
            a(f"v_cvt_pk_bf16_f32 v{PP+i}, v{S+2*i}, v{S+2*i+1}")
        a("s_nop 1")
        a(f"v_mfma_f32_32x32x16_bf16 {vr(O,16)}, {vr(VF,4)}, {vr(PP,4)}, {vr(O,16)}")
        a(f"v_mfma_f32_32x32x16_bf16 {vr(O,16)}, {vr(VF+4,4)}, {vr(PP+4,4)}, {vr(O,16)}")
        a(smf(L))
        a("s_nop 15")
    a(f"s_add_u32 {sr(sBLK)}, {sr(sBLK)}, 4096")
    a(f"s_add_u32 {sr(sJ)}, {sr(sJ)}, 1")
    a(f"s_cmp_lt_u32 {sr(sJ)}, 64")
    a(f"s_cbranch_scc1 {loop}")
    a(f"v_add_f32 v{LA}, v{LA}, v{LA+1}")
    a(f"v_add_f32 v{LA+4}, v{LA+4}, v{LA+5}")

def gstamp(a, reg):
    a("s_memtime s[70:71]")
    a("s_waitcnt lgkmcnt(0)")
    a("s_mov_b32 s69, m0")
    a("s_mov_b32 m0, s87")
    a(f"v_writelane_b32 v{reg-100}, s70, m0")
    a("s_mov_b32 m0, s69")

def lanestamp(a, reg, opt, lane=None):
    if not opt.get("stamps2"):
        return
    a("s_memtime s[70:71]")
    a("s_waitcnt lgkmcnt(0)")
    if lane == "m":
        a(f"s_mov_b32 s69, m0")
        a(f"s_sub_u32 m0, {sr(sJ)}, 1")
        a(f"v_writelane_b32 v{reg}, s70, m0")
        a(f"s_mov_b32 m0, s69")
    elif lane is None:
        a(f"s_mov_b32 s69, m0")
        a(f"s_mov_b32 m0, {sr(sJ)}")
        a(f"v_writelane_b32 v{reg}, s70, m0")
        a(f"s_mov_b32 m0, s69")
    else:
        a(f"v_writelane_b32 v{reg}, s70, {lane}")

def timestamp(a, idx, opt):
    if not opt.get("stamps"):
        return
    a(f"s_memtime s[70:71]")
    a(f"s_memrealtime s[92:93]")
    a("s_waitcnt lgkmcnt(0)")
    a(f"s_mov_b32 s{72+idx}, s70")
    a(f"s_mov_b32 s{80+idx}, s92")

def stamps_out(a, n, opt):
    if opt.get("stampsg"):
        a(f"""
        s_lshl_b32 {sr(sT1)}, s2, 3
        s_add_u32 {sr(sT1)}, {sr(sT1)}, {sr(sW)}
        s_lshl_b32 {sr(sT1)}, {sr(sT1)}, 10
        s_add_u32 {sr(sT1)}, {sr(sT1)}, {WS_DBG + (12 << 20)}
        v_lshlrev_b32 v12, 2, v0
        buffer_store_dword v104, v12, {sr(SRD_WS,4)}, {sr(sT1)} offen
        buffer_store_dword v105, v12, {sr(SRD_WS,4)}, {sr(sT1)} offen offset:256
        buffer_store_dword v106, v12, {sr(SRD_WS,4)}, {sr(sT1)} offen offset:512
        """)
    if opt.get("stamps2"):
        a(f"""
        s_lshl_b32 {sr(sT1)}, s2, 3
        s_add_u32 {sr(sT1)}, {sr(sT1)}, {sr(sW)}
        s_lshl_b32 {sr(sT1)}, {sr(sT1)}, 10
        s_add_u32 {sr(sT1)}, {sr(sT1)}, {WS_DBG + (10 << 20)}
        v_lshlrev_b32 v12, 2, v0
        buffer_store_dword v200, v12, {sr(SRD_WS,4)}, {sr(sT1)} offen
        buffer_store_dword v201, v12, {sr(SRD_WS,4)}, {sr(sT1)} offen offset:256
        buffer_store_dword v202, v12, {sr(SRD_WS,4)}, {sr(sT1)} offen offset:512
        buffer_store_dword v203, v12, {sr(SRD_WS,4)}, {sr(sT1)} offen offset:768
        """)
    if not opt.get("stamps"):
        return
    a(f"""
    s_lshl_b32 {sr(sT1)}, s2, 3
    s_add_u32 {sr(sT1)}, {sr(sT1)}, {sr(sW)}
    s_lshl_b32 {sr(sT1)}, {sr(sT1)}, 6
    s_add_u32 {sr(sT1)}, {sr(sT1)}, {WS_DBG + (8 << 20)}
    v_mov_b32 v13, 0
    """)
    for i in range(n):
        a(f"v_writelane_b32 v13, s{72+i}, {i}")
        a(f"v_writelane_b32 v13, s{80+i}, {8+i}")
    a(f"""
    v_lshlrev_b32 v12, 2, v0
    v_cmp_gt_u32 vcc, 16, v0
    s_and_saveexec_b64 {sr(sM,2)}, vcc
    buffer_store_dword v13, v12, {sr(SRD_WS,4)}, {sr(sT1)} offen
    s_mov_b64 exec, {sr(sM,2)}
    """)

def dbg_span(a, which):
    w = {"start": 4, "gemm": 12, "attn": 20, "end": 28, "first": 36}[which]
    sk = a.label("sk")
    a(f"s_cmp_eq_u32 {sr(sW)}, 0")
    a(f"s_cbranch_scc0 {sk}")
    a("s_memrealtime s[92:93]")
    a("s_waitcnt lgkmcnt(0)")
    a(f"v_mov_b32 v12, s92")
    a(f"s_mov_b32 s93, {w}")
    a("s_mov_b64 exec, 1")
    a(f"buffer_atomic_umax v12, off, {sr(SRD_DBG,4)}, s93 sc1")
    a("s_mov_b64 exec, -1")
    a(f"{sk}:")

OPT = {}
def k12(opt):
    OPT.clear(); OPT.update(opt)
    a = Asm()
    a(f".globl {NAME12}\n.p2align 8\n.type {NAME12},@function\n{NAME12}:")
    timestamp(a, 0, opt)
    if opt.get("dbg_span"):
        a("s_memrealtime s[84:85]")
    prologue(a, opt)
    if opt.get("dbg_span"):
        sk = a.label("sk")
        a(f"s_cmp_eq_u32 {sr(sW)}, 0")
        a(f"s_cbranch_scc0 {sk}")
        a("s_waitcnt lgkmcnt(0)")
        a("s_not_b32 s84, s84")
        a("v_mov_b32 v12, s84")
        a("s_mov_b32 s93, 4")
        a("s_mov_b64 exec, 1")
        a(f"buffer_atomic_umax v12, off, {sr(SRD_DBG,4)}, s93 sc1")
        a("s_mov_b64 exec, -1")
        a(f"{sk}:")
    gemm(a, opt)
    if opt.get("dbg_span"): dbg_span(a, "gemm")
    if opt.get("stamps_start"):
        timestamp(a, 7, opt)
        opt = dict(opt); opt["stamps"] = 0
        gemm_epilogue(a, opt)
        a("s_waitcnt vmcnt(0) lgkmcnt(0)")
        opt["stamps"] = 1
        stamps_out(a, 8, opt)
        a("L_end12:\ns_endpgm")
        return a.text()
    timestamp(a, 1, opt)
    gemm_epilogue(a, opt)
    if opt.get("stop_after_gemm"):
        a("s_waitcnt vmcnt(0) lgkmcnt(0)")
        timestamp(a, 2, opt)
        stamps_out(a, 3, opt)
    else:
        timestamp(a, 2, opt)
        attention(a, opt)
        timestamp(a, 3, opt)
        if opt.get("dbg_span"): dbg_span(a, "attn")
        attn_epilogue(a, opt)
        if opt.get("fused"):
            phase3(a, opt)
            if opt.get("stamps"):
                a("s_waitcnt vmcnt(0)")
                timestamp(a, 7, opt)
            stamps_out(a, 8, opt)
            if opt.get("dbg_span"):
                a("s_waitcnt vmcnt(0)")
                dbg_span(a, "end")
        else:
            a("s_waitcnt vmcnt(0)")
            timestamp(a, 4, opt)
            stamps_out(a, 5, opt)
    a("L_end12:\ns_endpgm")
    return a.text()

KD12 = f"""
.section .rodata,"a"
.p2align 6
.amdhsa_kernel {NAME12}
  .amdhsa_next_free_vgpr 256
  .amdhsa_next_free_sgpr 102
  .amdhsa_accum_offset 256
  .amdhsa_group_segment_fixed_size 0
  .amdhsa_kernarg_size 80
  .amdhsa_user_sgpr_count 2
  .amdhsa_user_sgpr_kernarg_segment_ptr 1
  .amdhsa_system_sgpr_workgroup_id_x 1
  .amdhsa_float_denorm_mode_32 3
.end_amdhsa_kernel
"""
```

```python
from asm import Asm, vr, sr, VmTracker

NAME12 = "gated_mix__mha_block__softmax_full_mha__prompt_kernel"
WS_KV = 0
WS_O = 16 << 20
WS_G = 24 << 20
WS_MB = 25 << 20
WS_MB2 = WS_MB + 65536
WS_DBG = 32 << 20
WS_SIZE = 0x10000000
LOG2E = 1.4426950408889634
QSCALE = LOG2E / (32 ** 0.5)

import struct
def f2u(x): return struct.unpack("<I", struct.pack("<f", x))[0]

SRD_X, SRD_W, SRD_WS, SRD_DBG, SRD_GW = 8, 12, 16, 20, 24
sW, sHH, sTQ, sHP, sTB = 28, 29, 30, 31, 32
sW1K = 33
sXJ = 34
sWJ = 35
sRING = 36
sRINGW = 37
sJ = 38
sT0, sT1, sT2, sT3 = 40, 41, 42, 43
sXQ = 44
sKVSRC = 45
sSLOT = 46
sBLK = 47
sM = 48
sM2 = 50
sOOFF = 52
sCNT = 53
sMB = 54
sLDSW = 55
sSRC = 39
sOFFS = 64
sNXT = 65
sCHKJ = 66
sARRJ = 67
sGOFF = 68
SRD_WO, SRD_OUT = 4, 56
sTB3, sCB, sROT, sMB2 = 60, 61, 62, 63
sAOFF, sWOFF = 100, 101
sLDSW3 = 34
vDW3 = 6
vLANE = 0
vDX, vDW, vXP, vWP, vXA, vW0 = 2, 3, 4, 5, 6, 7
vL16 = 10
vXB = 11
vT = 12
FR = [64, 84]
ACC = 160
QF = 16
OA = 32
LA = 64
NM = 72
SS = 104
PP = 136
KF = 144
VF = 152
ONES = 160
IDX = 164
vCUR, vNXT = 2, 3
vKVB, vDMA = 4, 5
vCHK = 15

RING = 20 * 8192
NSLOT3 = 10

def wrap_add(a, dst, src, const, tmp):
    a(f"s_add_u32 {sr(tmp)}, {sr(src)}, {const}")
    a(f"s_sub_u32 {dst}, {sr(tmp)}, {RING}")
    a(f"s_cselect_b32 {dst}, {sr(tmp)}, {dst}")

def prologue(a, opt):
    a(f"""
    s_cmp_ge_u32 s2, 256
    s_cbranch_scc1 L_end12
    s_load_dwordx4 s[56:59], s[0:1], 0
    s_load_dwordx2 s[60:61], s[0:1], 32
    s_load_dwordx2 s[62:63], s[0:1], 48
    s_load_dwordx4 s[88:91], s[0:1], 64
    s_load_dwordx2 s[94:95], s[0:1], 16
    s_load_dwordx2 s[96:97], s[0:1], 40
    s_load_dwordx2 s[98:99], s[0:1], 56
    v_lshrrev_b32 v1, 6, v0
    v_and_b32 v0, 63, v0
    s_and_b32 s3, s2, 7
    v_readfirstlane_b32 {sr(sW)}, v1
    s_lshr_b32 s4, s2, 3
    s_and_b32 s5, s4, 3
    s_lshl_b32 s3, s3, 2
    s_add_u32 {sr(sHP)}, s3, s5
    s_lshr_b32 {sr(sTB)}, s4, 2
    s_lshr_b32 {sr(sHH)}, {sr(sW)}, 2
    s_and_b32 {sr(sTQ)}, {sr(sW)}, 3
    s_lshl_b32 {sr(sW1K)}, {sr(sW)}, 10
    """)
    a(f"""
    v_lshrrev_b32 v13, 3, v0                 ; r8
    v_and_b32 v14, 7, v0                     ; c'
    s_and_b32 {sr(sT0)}, {sr(sW)}, 1
    s_lshl_b32 {sr(sT0)}, {sr(sT0)}, 2
    v_lshrrev_b32 v15, 1, v13                ; r8>>1 (0..3)
    v_add_u32 v1, {sr(sT0)}, v15             ; 4*(w&1) + (r8>>1)
    v_xor_b32 v1, v1, v14                    ; cX
    s_lshl_b32 {sr(sT1)}, {sr(sW)}, 3
    v_add_u32 v13, {sr(sT1)}, v13            ; 8w + r8
    v_lshlrev_b32 {vr(vDX)}, 11, v13
    v_lshl_add_u32 {vr(vDX)}, v1, 4, {vr(vDX)}
    v_and_b32 v15, 1, v15
    v_lshlrev_b32 v15, 2, v15
    v_xor_b32 v15, v15, v14                  ; cW
    s_mov_b32 {sr(sT1)}, 6144
    v_mul_lo_u32 {vr(vDW)}, v13, {sr(sT1)}
    v_lshl_add_u32 {vr(vDW)}, v15, 4, {vr(vDW)}
    s_lshl_b32 {sr(sXJ)}, {sr(sTB)}, 19          ; tb*256*2048
    s_and_b32 {sr(sWJ)}, {sr(sHP)}, 15
    s_lshl_b32 {sr(sWJ)}, {sr(sWJ)}, 7           ; hpl*128
    s_waitcnt lgkmcnt(0)
    """)
    if opt.get("stamps_start"): timestamp(a, 1, opt)
    a(f"""
    s_mov_b32 {sr(SRD_X)}, s56
    s_mov_b32 {sr(SRD_X+1)}, s57
    s_mov_b32 {sr(SRD_X+2)}, {2048*1024*2}
    s_mov_b32 {sr(SRD_X+3)}, 0x00020000
    s_cmp_ge_u32 {sr(sHP)}, 16
    s_cselect_b32 {sr(SRD_W)}, s60, s58
    s_cselect_b32 {sr(SRD_W+1)}, s61, s59
    s_mov_b32 {sr(SRD_W+2)}, {1024*3072*2}
    s_mov_b32 {sr(SRD_W+3)}, 0x00020000
    """)
    for g in range(20):
        dma_unit_static(a, g)
        if g == 6 and opt.get("stamps_start"): timestamp(a, 2, opt)
    if opt.get("stamps_start"): timestamp(a, 3, opt)
    a(f"""
    s_mov_b32 {sr(SRD_WS)}, s90
    s_mov_b32 {sr(SRD_WS+1)}, s91
    s_mov_b32 {sr(SRD_WS+2)}, {WS_SIZE}
    s_mov_b32 {sr(SRD_WS+3)}, 0x00020000
    s_mov_b32 {sr(SRD_DBG)}, s88
    s_mov_b32 {sr(SRD_DBG+1)}, s89
    s_mov_b32 {sr(SRD_DBG+2)}, 256
    s_mov_b32 {sr(SRD_DBG+3)}, 0x00020000
    s_mov_b32 {sr(SRD_GW)}, s62
    s_mov_b32 {sr(SRD_GW+1)}, s63
    s_mov_b32 {sr(SRD_GW+2)}, 2048
    s_mov_b32 {sr(SRD_GW+3)}, 0x00020000
    """)
    a(f"""
    s_and_b32 s3, s2, 7
    s_lshr_b32 {sr(sT1)}, s2, 3
    s_lshr_b32 {sr(sT2)}, s3, 1
    s_lshl_b32 {sr(sT2)}, {sr(sT2)}, 2
    s_and_b32 {sr(sT3)}, {sr(sT1)}, 3
    s_add_u32 {sr(sTB3)}, {sr(sT2)}, {sr(sT3)}
    s_and_b32 {sr(sT2)}, s3, 1
    s_lshl_b32 {sr(sT2)}, {sr(sT2)}, 3
    s_lshr_b32 {sr(sT1)}, {sr(sT1)}, 2
    s_add_u32 {sr(sCB)}, {sr(sT2)}, {sr(sT1)}
    s_add_u32 {sr(sROT)}, {sr(sTB3)}, {sr(sCB)}
    s_and_b32 {sr(sROT)}, {sr(sROT)}, 15
    s_lshl_b32 {sr(sMB2)}, {sr(sTB3)}, 4
    s_add_u32 {sr(sMB2)}, {sr(sMB2)}, {sr(sCB)}
    s_lshl_b32 {sr(sMB2)}, {sr(sMB2)}, 7
    s_add_u32 {sr(sMB2)}, {sr(sMB2)}, {WS_MB2}
    s_cmp_eq_u32 {sr(sHH)}, 1
    s_cselect_b32 {sr(SRD_WO)}, s96, s94
    s_cselect_b32 {sr(SRD_WO+1)}, s97, s95
    s_mov_b32 {sr(SRD_WO+2)}, {1024*1024*2}
    s_mov_b32 {sr(SRD_WO+3)}, 0x00020000
    s_mov_b32 {sr(SRD_OUT)}, s98
    s_mov_b32 {sr(SRD_OUT+1)}, s99
    s_mov_b32 {sr(SRD_OUT+2)}, {2048*1024*2}
    s_mov_b32 {sr(SRD_OUT+3)}, 0x00020000
    """)
    nr = a.label("nr")
    a(f"""
    s_lshl_b32 {sr(sMB)}, {sr(sHP)}, 3
    s_add_u32 {sr(sMB)}, {sr(sMB)}, {sr(sTB)}
    s_lshl_b32 {sr(sMB)}, {sr(sMB)}, 7
    s_add_u32 {sr(sMB)}, {sr(sMB)}, {WS_MB}
    s_lshl_b32 {sr(sCNT)}, {sr(sHP)}, 3
    s_cmp_eq_u32 {sr(sW)}, 0
    s_cselect_b32 {sr(sCHKJ)}, 5, 0xffff
    s_cselect_b32 {sr(sARRJ)}, 11, 0xffff
    s_cbranch_scc0 {nr}
    v_lshlrev_b32 v12, 2, v0
    s_sub_u32 {sr(sT0)}, {sr(sMB2)}, 128
    v_mov_b32 v13, {sr(sMB)}
    v_mov_b32 v14, {sr(sT0)}
    v_cmp_gt_u32 vcc, 32, v0
    s_nop 1
    v_cndmask_b32 v13, v14, v13, vcc
    v_add_u32 v12, v12, v13
    v_mov_b32 v13, 0
    buffer_store_dword v13, v12, {sr(SRD_WS,4)}, 0 offen sc1
    {nr}:
    """)
    a(f"""
    s_lshl_b32 {sr(sT0)}, {sr(sTB)}, 8
    s_lshl_b32 {sr(sT1)}, {sr(sHP)}, 3
    s_add_u32 {sr(sT0)}, {sr(sT0)}, {sr(sT1)}
    s_add_u32 {sr(sT0)}, {sr(sT0)}, {sr(sW)}
    s_lshl_b32 {sr(sT2)}, {sr(sT0)}, 11
    v_lshlrev_b32 v12, 5, v0
    buffer_load_dwordx4 v[16:19], v12, {sr(SRD_X,4)}, {sr(sT2)} offen
    buffer_load_dwordx4 v[20:23], v12, {sr(SRD_X,4)}, {sr(sT2)} offen offset:16
    buffer_load_dwordx4 v[24:27], v12, {sr(SRD_GW,4)}, 0 offen
    buffer_load_dwordx4 v[28:31], v12, {sr(SRD_GW,4)}, 0 offen offset:16
    s_lshl_b32 {sr(sGOFF)}, {sr(sT0)}, 2
    """)
    if opt.get("warm", 0):
        a(f"""
        s_lshl_b32 {sr(sT0)}, s2, 14
        s_lshl_b32 {sr(sT1)}, {sr(sW)}, 11
        s_add_u32 {sr(sT0)}, {sr(sT0)}, {sr(sT1)}
        v_lshlrev_b32 v12, 4, v0
        buffer_load_dwordx4 v[32:35], v12, {sr(SRD_X,4)}, {sr(sT0)} offen
        buffer_load_dwordx4 v[36:39], v12, {sr(SRD_X,4)}, {sr(sT0)} offen offset:1024
        """)
        a(f"""
        s_and_b32 {sr(sT0)}, {sr(sHP)}, 15
        s_lshl_b32 {sr(sT0)}, {sr(sT0)}, 3
        s_add_u32 {sr(sT0)}, {sr(sT0)}, {sr(sTB)}
        s_mul_i32 {sr(sT0)}, {sr(sT0)}, 49152
        s_mul_i32 {sr(sT1)}, {sr(sW)}, 6144
        s_add_u32 {sr(sT0)}, {sr(sT0)}, {sr(sT1)}
        s_add_u32 {sr(sT1)}, {sr(sT0)}, 4096
        """)
        for i in range(6):
            so = sT0 if i < 4 else sT1
            a(f"buffer_load_dwordx4 v[{40+4*i}:{43+4*i}], v12, {sr(SRD_W,4)}, {sr(so)} offen offset:{(i % 4) * 1024}")
        NWARM = 8
        a(f"""
        s_lshl_b32 {sr(sT0)}, {sr(sHP)}, 19
        s_lshl_b32 {sr(sT1)}, {sr(sTB)}, 20
        s_add_u32 {sr(sT1)}, {sr(sT1)}, {WS_O}
        s_lshl_b32 {sr(sT2)}, {sr(sTB3)}, 19
        s_add_u32 {sr(sT2)}, {sr(sT2)}, {WS_O}
        s_lshl_b32 {sr(sT3)}, {sr(sTB3)}, 18
        buffer_load_dword v104, off, {sr(SRD_WS,4)}, {sr(sT0)}
        buffer_load_dword v105, off, {sr(SRD_WS,4)}, {sr(sT1)}
        buffer_load_dword v106, off, {sr(SRD_WS,4)}, {sr(sT2)}
        buffer_load_dword v107, off, {sr(SRD_WO,4)}, 0
        buffer_load_dword v108, off, {sr(SRD_OUT,4)}, {sr(sT3)}
        """)
    a(f"""
    v_and_b32 v13, 31, v0
    v_lshrrev_b32 v14, 5, v0                 ; h
    v_bfe_u32 v15, v13, 1, 3
    v_xor_b32 v15, v15, v14
    v_lshlrev_b32 {vr(vXP)}, 7, v13
    v_lshl_add_u32 {vr(vXP)}, v15, 4, {vr(vXP)}
    v_bfe_u32 v13, v0, 2, 2                  ; r
    v_lshl_add_u32 v1, v14, 3, v13           ; 8h + r
    v_lshlrev_b32 {vr(vWP)}, 7, v1
    v_bfe_u32 v15, v0, 4, 1                  ; g
    v_lshlrev_b32 v15, 1, v15
    v_bfe_u32 v1, v0, 1, 1                   ; c>>1
    v_add_u32 v15, v15, v1
    s_lshl_b32 {sr(sT1)}, {sr(sHH)}, 2
    v_add_u32 v15, {sr(sT1)}, v15            ; cc
    v_lshrrev_b32 v13, 1, v13
    v_lshlrev_b32 v13, 2, v13
    v_xor_b32 v15, v15, v13
    v_lshl_add_u32 {vr(vWP)}, v15, 4, {vr(vWP)}
    v_and_b32 v1, 1, v0
    v_lshl_add_u32 {vr(vWP)}, v1, 3, {vr(vWP)}
    v_lshlrev_b32 {vr(vL16)}, 4, v0
    s_add_u32 {sr(sXQ)}, {sr(sTQ)}, 3
    s_lshl_b32 {sr(sXQ)}, {sr(sXQ)}, 13
    """)

def dma_unit_static(a, g):
    j, u = divmod(g, 7)
    a(f"s_add_u32 m0, {sr(sW1K)}, {(g % 20) * 8192}")
    if u < 3:
        a(f"s_add_u32 {sr(sT0)}, {sr(sWJ)}, {j * 64 * 6144 + u * 2048}")
        a(f"buffer_load_dwordx4 {vr(vDW)}, {sr(SRD_W,4)}, {sr(sT0)} offen lds")
    else:
        a(f"s_add_u32 {sr(sT0)}, {sr(sXJ)}, {j * 128 + (u - 3) * 131072}")
        a(f"buffer_load_dwordx4 {vr(vDX)}, {sr(SRD_X,4)}, {sr(sT0)} offen lds")

def gate_instrs():
    c = ["v_mov_b32 v12, 0"]
    for i in range(8):
        x, w = 16 + i, 24 + i
        c += [f"v_lshlrev_b32 v13, 16, v{x}", f"v_and_b32 v14, 0xffff0000, v{x}", f"v_lshlrev_b32 v32, 16, v{w}",
              f"v_and_b32 v1, 0xffff0000, v{w}", "v_mul_f32 v13, v13, v32", "v_mul_f32 v14, v14, v1",
              "v_cvt_pk_bf16_f32 v13, v13, v14", "v_lshlrev_b32 v14, 16, v13", "v_and_b32 v13, 0xffff0000, v13",
              "v_add_f32 v12, v12, v14", "v_add_f32 v12, v12, v13"]
    for sh in (1, 2, 4, 8):
        c += [f"s_nop 1\nv_add_f32_dpp v12, v12, v12 row_shr:{sh} row_mask:0xf bank_mask:0xf bound_ctrl:0"]
    c += ["s_nop 1\nv_add_f32_dpp v12, v12, v12 row_bcast:15 row_mask:0xa bank_mask:0xf"]
    c += ["s_nop 1\nv_add_f32_dpp v12, v12, v12 row_bcast:31 row_mask:0xc bank_mask:0xf"]
    c += ["s_nop 1\nv_cvt_pk_bf16_f32 v12, v12, v12", "v_lshlrev_b32 v12, 16, v12", f"v_mul_f32 v12, {hex(f2u(-LOG2E))}, v12",
          "v_exp_f32 v12, v12\ns_nop 0\nv_add_f32 v12, 1.0, v12", "v_rcp_f32 v12, v12\ns_nop 0\nv_cvt_pk_bf16_f32 v12, v12, v12",
          "v_lshlrev_b32 v12, 16, v12", f"v_mov_b32 v13, {WS_G}"]
    st = [f"""s_mov_b32 exec_lo, 0
    s_mov_b32 exec_hi, 0x80000000
    buffer_store_dword v12, v13, {sr(SRD_WS,4)}, {sr(sGOFF)} offen sc1
    s_mov_b64 exec, -1"""]
    return c, st

def frag(set_, name):
    off = {"X0": 0, "X1": 4, "Wq": 8, "Wk": 12, "Wv": 16}[name]
    return FR[set_] + off

def gemm_reads(ks, set_):
    r = []
    r.append(f"ds_read_b128 {vr(frag(set_,'X0'),4)}, {vr(vXA)}")
    for u, nm in enumerate(("Wq", "Wk", "Wv")):
        b = frag(set_, nm)
        r.append(f"ds_read_b64_tr_b16 {vr(b,2)}, {vr(vW0+u)} offset:{ks*2048}")
        r.append(f"ds_read_b64_tr_b16 {vr(b+2,2)}, {vr(vW0+u)} offset:{ks*2048+512}")
        if u == 0:
            r.append(f"ds_read_b128 {vr(frag(set_,'X1'),4)}, {vr(vXA)} offset:4096")
    return r

def gemm_mfmas(set_, first=False):
    m = []
    X0, X1 = frag(set_, "X0"), frag(set_, "X1")
    Wq, Wk, Wv = frag(set_, "Wq"), frag(set_, "Wk"), frag(set_, "Wv")
    def mf(acc, A, B): return f"v_mfma_f32_32x32x16_bf16 {vr(acc,16)}, {vr(A,4)}, {vr(B,4)}, {'0' if first else vr(acc,16)}"
    m.append(mf(ACC + 0, Wq, X0))
    m.append(mf(ACC + 32, Wk, X0))
    m.append(mf(ACC + 64, X0, Wv))
    m.append(mf(ACC + 16, Wq, X1))
    m.append(mf(ACC + 48, Wk, X1))
    m.append(mf(ACC + 80, X1, Wv))
    return m

def wrap_list(dst, src, const, tmp):
    return [f"s_add_u32 {sr(tmp)}, {sr(src)}, {const}", f"s_sub_u32 {dst}, {sr(tmp)}, {RING}", f"s_cselect_b32 {dst}, {sr(tmp)}, {dst}"]

def read_bases_list():
    r = [f"v_add_u32 {vr(vW0)}, {sr(sRING)}, {vr(vWP)}"]
    for u in (1, 2):
        r += wrap_list(sr(sT1), sRING, u * 8192, sT0)
        r.append(f"v_add_u32 {vr(vW0+u)}, {sr(sT1)}, {vr(vWP)}")
    r += [f"s_add_u32 {sr(sT0)}, {sr(sRING)}, {sr(sXQ)}", f"s_sub_u32 {sr(sT1)}, {sr(sT0)}, {RING}",
          f"s_cselect_b32 {sr(sT1)}, {sr(sT0)}, {sr(sT1)}", f"v_add_u32 {vr(vXB)}, {sr(sT1)}, {vr(vXP)}",
          f"v_mov_b32 {vr(vXA)}, {vr(vXB)}"]
    return r

def dma_group(i):
    if OPT.get("g_nodma"): return []
    s = [f"s_add_u32 {sr(sT2)}, {sr(sRINGW)}, {i * 8192}", f"s_sub_u32 m0, {sr(sT2)}, {RING}", f"s_cselect_b32 m0, {sr(sT2)}, m0"]
    if i == 0:
        s.append(f"s_add_u32 {sr(sT3)}, {sr(sXJ)}, {3 * 131072 - 128}")
        s.append(f"buffer_load_dwordx4 {vr(vDX)}, {sr(SRD_X,4)}, {sr(sT3)} offen lds")
    elif i <= 3:
        s.append(f"s_add_u32 {sr(sT3)}, {sr(sWJ)}, {(i - 1) * 2048}")
        s.append(f"buffer_load_dwordx4 {vr(vDW)}, {sr(SRD_W,4)}, {sr(sT3)} offen lds")
    else:
        s.append(f"s_add_u32 {sr(sT3)}, {sr(sXJ)}, {(i - 4) * 131072}")
        s.append(f"buffer_load_dwordx4 {vr(vDX)}, {sr(SRD_X,4)}, {sr(sT3)} offen lds")
    return s

def kstep(a, cur, next_ks, gaps_extra, first=False):
    m = gemm_mfmas(cur, first)
    r = gemm_reads(next_ks, cur ^ 1) if next_ks is not None else []
    gaps = [[] for _ in range(6)]
    for i, x in enumerate(r):
        gaps[min(i // 3, 5)].append(x)
    for g in range(6):
        gaps[g] += gaps_extra.get(g, [])
    for i in range(6):
        a(m[i])
        for x in gaps[i]:
            a(x)

def gemm_stage(a, pending, new_batch, vm_wait, first=False, last=False, valu=None, after_bar=None):
    prio = OPT.get("gprio", 1)
    sp = lambda n: [f"s_setprio {n}"] if prio else []
    valu = list(valu or [])
    per = (len(valu) + 2) // 3
    for ks in range(3):
        ex = {}
        mine = [i for i in pending if (i - 2) // 2 == ks]
        if mine:
            ex[2] = dma_group(mine[0])
        if len(mine) > 1:
            ex[4] = dma_group(mine[1])
        chunk = valu[ks * per:(ks + 1) * per]
        n3 = (len(chunk) + 2) // 3
        for k, g in enumerate((1, 3, 5)):
            ex[g] = ex.get(g, []) + chunk[k * n3:(k + 1) * n3]
        ex[0] = sp(2 - ks)
        if ks < 2:
            ex[5] = ex.get(5, []) + [f"v_xor_b32 {vr(vXA)}, {(ks + 2) << 5}, {vr(vXB)}"]
        else:
            upd = [f"s_add_u32 {sr(sRINGW)}, {sr(sRING)}, {sr(sW1K)}", f"s_add_u32 {sr(sXJ)}, {sr(sXJ)}, 128",
                   f"s_add_u32 {sr(sWJ)}, {sr(sWJ)}, {64 * 6144}"] + wrap_list(sr(sRING), sRING, 7 * 8192, sT0)
            ex[3] = ex.get(3, []) + upd
            if not last:
                ex[4] = ex.get(4, []) + read_bases_list()
        a("s_waitcnt lgkmcnt(0)")
        kstep(a, ks & 1, ks + 1, ex, first=(first and ks == 0))
    if OPT.get("stampsg"):
        a("s_waitcnt lgkmcnt(0)")
        gstamp(a, 204)
    if vm_wait is not None:
        a(f"s_waitcnt vmcnt({vm_wait}) lgkmcnt(0)")
    else:
        a("s_waitcnt lgkmcnt(0)")
    if OPT.get("stampsg"): gstamp(a, 205)
    if not OPT.get("g_nobar"): a("s_barrier")
    if OPT.get("stampsg"):
        gstamp(a, 206)
        a("s_add_u32 s87, s87, 1")
    ex = {0: sp(3)}
    if len(new_batch) > 0: ex[2] = dma_group(new_batch[0])
    if len(new_batch) > 1: ex[4] = dma_group(new_batch[1])
    if not last:
        ex[5] = [f"v_xor_b32 {vr(vXA)}, {1 << 5}, {vr(vXB)}"]
    if after_bar:
        ex[5] = ex.get(5, []) + after_bar
    kstep(a, 1, None if last else 0, ex)

def gemm(a, opt):
    if OPT.get("stampsg"): a("s_mov_b32 s87, 0")
    a(f"s_add_u32 {sr(sXJ)}, {sr(sXJ)}, {2 * 128}")
    a(f"s_add_u32 {sr(sWJ)}, {sr(sWJ)}, {2 * 64 * 6144}")
    a(f"s_mov_b32 {sr(sRING)}, 0")
    for x in read_bases_list(): a(x)
    if opt.get("stamps_start"): timestamp(a, 4, opt)
    nw = 13 if opt.get("warm", 0) else 0
    a(f"s_waitcnt vmcnt({17 + nw})")
    if opt.get("stamps_start"): timestamp(a, 5, opt)
    a("s_barrier")
    if opt.get("stamps_start"): timestamp(a, 6, opt)
    for x in gemm_reads(0, 0):
        a(x)
    a(f"v_xor_b32 {vr(vXA)}, {1 << 5}, {vr(vXB)}")
    gemm_stage(a, [], [0, 1], 10 + nw, first=True)
    a(f"s_mov_b32 {sr(sJ)}, 12")
    lab = a.label("gemm")
    a(".p2align 6")
    a(f"{lab}:")
    gemm_stage(a, [2, 3, 4, 5, 6], [0, 1], 6)
    nc = a.label("nc"); nd = a.label("nd")
    a(f"s_cmp_eq_u32 {sr(sJ)}, {sr(sARRJ)}")
    a(f"s_cbranch_scc0 {nd}")
    a(f"""
    v_mov_b32 v12, 1
    s_mov_b64 exec, 1
    buffer_atomic_add v12, off, {sr(SRD_DBG,4)}, {sr(sCNT)} sc1
    s_mov_b64 exec, -1
    s_nop 3
    """)
    a(f"{nd}:")
    a(f"s_cmp_eq_u32 {sr(sJ)}, {sr(sCHKJ)}")
    a(f"s_cbranch_scc0 {nc}")
    a(f"v_lshlrev_b32 v12, 2, v0")
    a(f"buffer_load_dword {vr(vCHK)}, v12, {sr(SRD_DBG,4)}, 0 offen sc1")
    a(f"{nc}:")
    a(f"s_sub_u32 {sr(sJ)}, {sr(sJ)}, 1")
    a(f"s_cmp_lg_u32 {sr(sJ)}, 0")
    a(f"s_cbranch_scc1 {lab}")
    gc, gs = gate_instrs()
    gemm_stage(a, [2, 3, 4, 5, 6], [0], 6)
    gemm_stage(a, [], [], 0, valu=gc, after_bar=gs + ["s_nop 3"])
    gemm_stage(a, [], [], None, last=True)
    a("s_setprio 0")
    a("s_nop 15")

def gemm_epilogue(a, opt):
    for tile in (2, 3, 4, 5):
        b = ACC + 16 * tile
        for i in range(8):
            a(f"v_cvt_pk_bf16_f32 v{b+i}, v{b+2*i}, v{b+2*i+1}")
    a(f"""
    s_lshl_b32 {sr(sT1)}, {sr(sHP)}, 1
    s_add_u32 {sr(sT1)}, {sr(sT1)}, {sr(sHH)}
    s_lshl_b32 {sr(sKVSRC)}, {sr(sT1)}, 18
    s_lshl_b32 {sr(sT1)}, {sr(sTB)}, 15
    s_lshl_b32 {sr(sT2)}, {sr(sTQ)}, 13
    s_add_u32 {sr(sT1)}, {sr(sT1)}, {sr(sT2)}
    s_add_u32 {sr(sT1)}, {sr(sT1)}, {sr(sKVSRC)}
    s_add_u32 {sr(sT2)}, {sr(sT1)}, 4096
    """)
    for tt in range(2):
        so = sT1 if tt == 0 else sT2
        kb, vb = ACC + 32 + 16 * tt, ACC + 64 + 16 * tt
        a(f"buffer_store_dwordx4 {vr(kb,4)}, {vr(vL16)}, {sr(SRD_WS,4)}, {sr(so)} offen sc1")
        a(f"buffer_store_dwordx4 {vr(kb+4,4)}, {vr(vL16)}, {sr(SRD_WS,4)}, {sr(so)} offen offset:1024 sc1")
        a(f"buffer_store_dwordx4 {vr(vb,4)}, {vr(vL16)}, {sr(SRD_WS,4)}, {sr(so)} offen offset:2048 sc1")
        a(f"buffer_store_dwordx4 {vr(vb+4,4)}, {vr(vL16)}, {sr(SRD_WS,4)}, {sr(so)} offen offset:3072 sc1")
    a(f"s_mov_b32 {sr(sT2)}, {hex(f2u(QSCALE))}")
    a(f"s_mov_b32 {sr(sT3)}, {hex(f2u(QSCALE))}")
    for tt in range(2):
        b = ACC + 16 * tt
        for i in range(8):
            a(f"v_pk_mul_f32 {vr(b+2*i,2)}, {vr(b+2*i,2)}, {sr(sT2,2)}")
        for i in range(8):
            a(f"v_cvt_pk_bf16_f32 v{QF+8*tt+i}, v{b+2*i}, v{b+2*i+1}")
    kb = ACC + 32
    a("s_nop 1")
    for x in range(2):
        S, Q = SS + 16 * x, QF + 8 * x
        a(f"v_mfma_f32_32x32x16_bf16 {vr(S,16)}, {vr(kb,4)}, {vr(Q,4)}, 0")
        a(f"v_mfma_f32_32x32x16_bf16 {vr(S,16)}, {vr(kb+4,4)}, {vr(Q+4,4)}, {vr(S,16)}")
    a(f"""
    s_lshr_b32 {sr(sT1)}, {sr(sTQ)}, 1
    s_lshl_b32 {sr(sT1)}, {sr(sT1)}, 15
    s_lshl_b32 {sr(sT2)}, {sr(sHH)}, 14
    s_add_u32 {sr(sT1)}, {sr(sT1)}, {sr(sT2)}
    s_and_b32 {sr(sT2)}, {sr(sTQ)}, 1
    s_lshl_b32 {sr(sT2)}, {sr(sT2)}, 13
    s_add_u32 {sr(sT1)}, {sr(sT1)}, {sr(sT2)}
    v_add_u32 v12, {sr(sT1)}, {vr(vL16)}
    """)
    for tt in range(2):
        kb, vb = ACC + 32 + 16 * tt, ACC + 64 + 16 * tt
        a(f"ds_write_b128 v12, {vr(kb,4)} offset:{tt*4096}")
        a(f"ds_write_b128 v12, {vr(kb+4,4)} offset:{tt*4096+1024}")
        a(f"ds_write_b128 v12, {vr(vb,4)} offset:{tt*4096+2048}")
        a(f"ds_write_b128 v12, {vr(vb+4,4)} offset:{tt*4096+3072}")
    if opt.get("dump_q"):
        a(f"""
        s_lshl_b32 {sr(sT1)}, s2, 3
        s_add_u32 {sr(sT1)}, {sr(sT1)}, {sr(sW)}
        s_lshl_b32 {sr(sT1)}, {sr(sT1)}, 12
        s_add_u32 {sr(sT1)}, {sr(sT1)}, {WS_DBG}
        """)
        for i in range(4):
            a(f"buffer_store_dwordx4 {vr(QF+4*i,4)}, {vr(vL16)}, {sr(SRD_WS,4)}, {sr(sT1)} offen offset:{i*1024}")

def smf(L):
    return f"v_smfmac_f32_16x16x64_bf16 {vr(L,4)}, {vr(ONES,4)}, {vr(PP,8)}, {vr(IDX)}"

def attn_unit(a, t, x, hooks, skip_prev=False, c_zero=False):
    S = SS + 16 * x
    Sn = SS + 16 * (x ^ 1)
    xn = xp = x ^ 1
    Qn = QF + 8 * xn
    P0, P1 = PP, PP + 4
    def M(d, A, B, C): return f"v_mfma_f32_32x32x16_bf16 {vr(d,16)}, {vr(A,4)}, {vr(B,4)}, {C}"
    e = lambda i: f"v_exp_f32 v{S+i}, v{S+i}"
    c = lambda i: f"v_cvt_pk_bf16_f32 v{PP+i}, v{S+2*i}, v{S+2*i+1}"
    mf = [M(Sn, KF, Qn, vr(NM + 16 * xn, 16)),
          None if skip_prev else M(OA + 16 * xp, VF + 4, P1, vr(OA + 16 * xp, 16)),
          None if skip_prev else smf(LA + 4 * xp),
          M(Sn, KF + 4, Qn + 4, vr(Sn, 16)),
          M(OA + 16 * x, VF, P0, "0" if c_zero else vr(OA + 16 * x, 16))]
    va = [[e(0), e(1), e(2)], [e(3), e(4), e(5)], [e(6), e(7), c(0), c(1), c(2), c(3)],
          [e(8), e(9), e(10)], [e(11), e(12), e(13), e(14), e(15), c(4), c(5), c(6), c(7)]]
    for g in range(5):
        if mf[g]: a(mf[g])
        for h in hooks.get(g, []):
            a(h)
        for v in va[g]:
            a(v)

def kv_addr(tile, f):
    if tile < 4:
        return vCUR, tile * 4096 + f * 1024
    return vNXT, f * 1024

def rd(dst, tile, f):
    b, o = kv_addr(tile, f)
    return f"ds_read_b128 {vr(dst,4)}, {vr(b)} offset:{o}"

def kv_dma(p, so):
    return f"buffer_load_dwordx4 {vr(vDMA)}, {sr(SRD_WS,4)}, {sr(so)} offen offset:{p*1024} sc1 lds"

def poll_mailbox(a, want_all):
    poll, done = a.label("poll"), a.label("pdone")
    a(f"s_mov_b32 {sr(sT1)}, 400000")
    a(f"v_lshlrev_b32 v13, 2, v0")
    a(f"s_add_u32 {sr(sT2)}, {sr(sTB)}, 1")
    a(f"s_and_b32 {sr(sT2)}, {sr(sT2)}, 7")
    a(f"s_lshl_b32 {sr(sT2)}, 1, {sr(sT2)}")
    if want_all:
        a(f"s_mov_b32 {sr(sT2)}, 0xff")
    a("s_mov_b64 exec, 0xff")
    a(f"{poll}:")
    a(f"buffer_load_dword v12, v13, {sr(SRD_WS,4)}, {sr(sMB)} offen sc1")
    a("s_waitcnt vmcnt(0)")
    a("v_cmp_eq_u32 vcc, 1, v12")
    a("s_nop 3")
    a(f"s_and_b32 {sr(sT3)}, vcc_lo, {sr(sT2)}")
    a(f"s_cmp_eq_u32 {sr(sT3)}, {sr(sT2)}")
    a(f"s_cbranch_scc1 {done}")
    a(f"s_sub_u32 {sr(sT1)}, {sr(sT1)}, 1")
    a(f"s_cbranch_scc1 {done}")
    a("s_sleep 1")
    a(f"s_branch {poll}")
    a(f"{done}:")
    a("s_mov_b64 exec, -1")

def publish(a):
    spin, ok = a.label("rdy"), a.label("rdyok")
    a(f"s_mov_b32 {sr(sT1)}, 400000")
    a(f"s_mov_b32 {sr(sT2)}, 0x55555555")
    a(f"v_lshlrev_b32 v12, 2, v0")
    a(f"{spin}:")
    a(f"v_cmp_eq_u32 vcc, 8, {vr(vCHK)}")
    a("s_nop 3")
    a(f"s_and_b32 {sr(sT0)}, vcc_lo, {sr(sT2)}")
    a(f"s_and_b32 {sr(sT3)}, vcc_hi, {sr(sT2)}")
    a(f"s_and_b32 {sr(sT0)}, {sr(sT0)}, {sr(sT3)}")
    a(f"s_cmp_eq_u32 {sr(sT0)}, {sr(sT2)}")
    a(f"s_cbranch_scc1 {ok}")
    a(f"s_sub_u32 {sr(sT1)}, {sr(sT1)}, 1")
    a(f"s_cbranch_scc1 {ok}")
    a(f"buffer_load_dword {vr(vCHK)}, v12, {sr(SRD_DBG,4)}, 0 offen sc1")
    a("s_waitcnt vmcnt(0)")
    a(f"s_branch {spin}")
    a(f"{ok}:")
    a(f"""
    s_lshl_b32 {sr(sT0)}, {sr(sHP)}, 10
    s_lshl_b32 {sr(sT1)}, {sr(sTB)}, 2
    s_add_u32 {sr(sT0)}, {sr(sT0)}, {sr(sT1)}
    s_add_u32 {sr(sT0)}, {sr(sT0)}, {WS_MB}
    v_lshlrev_b32 v12, 7, v0
    v_mov_b32 v13, 1
    s_mov_b64 exec, 0xff
    buffer_store_dword v13, v12, {sr(SRD_WS,4)}, {sr(sT0)} offen sc1
    s_mov_b64 exec, -1
    """)

def wo_piece(i, half):
    return [f"s_add_u32 {sr(sT0)}, {sr(sROT)}, {i}", f"s_and_b32 {sr(sT0)}, {sr(sT0)}, 15", f"s_lshl_b32 {sr(sT0)}, {sr(sT0)}, 17",
            f"s_add_u32 {sr(sT0)}, {sr(sT0)}, {sr(sWOFF)}"] + ([f"s_add_u32 {sr(sT0)}, {sr(sT0)}, 16384"] if half else []) + \
           [f"s_add_u32 m0, {sr(sLDSW3)}, {(i % NSLOT3) * 16384 + half * 1024}", "s_nop 0",
            f"buffer_load_dwordx4 {vr(vDW3)}, {sr(SRD_WO,4)}, {sr(sT0)} offen lds"]

def attn_stage(a, opt, kind, s_=None):
    prio = opt.get("prio", 1)
    def sp(n): return [f"s_setprio {n}"] if prio else []
    for t in range(4):
        h0 = {0: [rd(KF, t + 1, 0)], 1: [rd(VF + 4, t, 3)], 2: ["s_waitcnt lgkmcnt(2)"],
              3: [rd(KF + 4, t + 1, 1)], 4: ["s_waitcnt lgkmcnt(2)"]}
        h1 = {0: ["s_waitcnt lgkmcnt(1)"], 1: [], 2: ["s_waitcnt lgkmcnt(0)"], 3: [], 4: [rd(VF, t + 1, 2)]}
        if t == 0:
            h0[0] += sp(2)
            h0[4] += [f"s_mov_b32 {sr(sNXT)}, {sr(sSLOT)}"]
            h1[1] = [f"s_add_u32 {sr(sSRC)}, {sr(sSRC)}, 16384"]
            h1[3] = [f"s_and_b32 {sr(sSRC)}, {sr(sSRC)}, 0x3ffff"]
        if t == 1:
            h0[0] += sp(1)
            h1[1] = [f"s_add_u32 {sr(sSLOT)}, {sr(sSLOT)}, 32768"]
            h1[3] = [f"s_and_b32 {sr(sSLOT)}, {sr(sSLOT)}, 0x1ffff"]
            if kind == 0:
                h1[4] += ["s_waitcnt vmcnt(0)", "s_barrier"]
            if kind == 3 and s_ == 13:
                h0[2] += wo_piece(8, 0)
                h0[4] += wo_piece(8, 1)
                h1[0] += wo_piece(9, 0)
                h1[2] += wo_piece(9, 1)
            if kind == 1:
                go = a.label("go")
                lanestamp(a, 203, opt, 0)
                a(f"s_cmp_eq_u32 {sr(sW)}, 0")
                a(f"s_cbranch_scc0 {go}")
                poll_mailbox(a, False)
                a(f"{go}:")
                lanestamp(a, 203, opt, 1)
                a("s_barrier")
                lanestamp(a, 203, opt, 2)
                for st in (2, 3):
                    a(f"""
                    s_lshl_b32 {sr(sT0)}, {sr(sTB)}, 1
                    s_add_u32 {sr(sT0)}, {sr(sT0)}, {st}
                    s_and_b32 {sr(sT0)}, {sr(sT0)}, 15
                    s_lshl_b32 {sr(sOFFS)}, {sr(sT0)}, 14
                    s_add_u32 m0, {sr(sLDSW)}, {st * 32768}
                    s_nop 0
                    """)
                    for p in range(4):
                        a(kv_dma(p, sOFFS))
        if t == 2:
            h0[0] += sp(0)
            h1[1] = [f"s_add_u32 m0, {sr(sSLOT)}, {sr(sLDSW)}"]
            h1[3] = [f"s_add_u32 {sr(sJ)}, {sr(sJ)}, 1"]
            if kind == 0:
                h1[4] += ["s_barrier"] + sp(3)
                np_ = a.label("np")
                a(f"s_cmp_eq_u32 {sr(sW)}, 0")
                a(f"s_cbranch_scc0 {np_}")
                publish(a)
                a(f"{np_}:")
            elif kind == 3 and s_ == 15:
                h1[4] += ["s_barrier"] + sp(3)
            elif kind == 3:
                h1[4] += ["s_waitcnt vmcnt(8)", "s_barrier"] + sp(3)
            elif kind != 1:
                h1[4] += ["s_waitcnt vmcnt(4)", "s_barrier"] + sp(3)
        if t == 3:
            if kind == 3:
                q = s_ - 13
                h0[2] += wo_piece(2 * q, 0)
                h0[4] += wo_piece(2 * q, 1)
                h1[1] = wo_piece(2 * q + 1, 0)
                h1[3] = wo_piece(2 * q + 1, 1)
            elif kind != 0:
                h0[2] += [kv_dma(0, sSRC)]
                h0[4] += [kv_dma(1, sSRC)]
                h1[1] = [kv_dma(2, sSRC)]
                h1[3] = [kv_dma(3, sSRC)]
            if kind == 1:
                go = a.label("go")
                a(f"s_cmp_eq_u32 {sr(sW)}, 0")
                a(f"s_cbranch_scc0 {go}")
                poll_mailbox(a, True)
                a(f"{go}:")
                a("s_waitcnt vmcnt(4)")
                a("s_barrier")
                for x in sp(3): a(x)
        first = kind == 0 and t == 0
        attn_unit(a, t, 0, h0, skip_prev=first, c_zero=first)
        attn_unit(a, t, 1, h1, c_zero=first)
    a(f"v_mov_b32 {vr(vCUR)}, {vr(vNXT)}")
    a(f"v_add_u32 {vr(vNXT)}, {sr(sNXT)}, {vr(vKVB)}")

def attention(a, opt):
    a(f"""
    v_bfe_u32 v12, v0, 2, 1
    v_and_b32 v13, 3, v0
    v_mov_b32 v14, 0x3f803f80
    v_cmp_gt_u32 vcc, 2, v13
    s_nop 1
    v_cndmask_b32 v14, 0, v14, vcc
    v_cmp_eq_u32 vcc, 0, v12
    s_nop 1
    v_cndmask_b32 v{ONES}, 0, v14, vcc
    v_cndmask_b32 v{ONES+2}, v14, 0, vcc
    v_mov_b32 v{ONES+1}, v{ONES}
    v_mov_b32 v{ONES+3}, v{ONES+2}
    v_mov_b32 v14, 0x4444
    v_mov_b32 v12, 0xeeee
    v_cmp_eq_u32 vcc, 1, v13
    s_nop 1
    v_cndmask_b32 v{IDX}, v14, v12, vcc
    s_lshl_b32 {sr(sT0)}, {sr(sHH)}, 14
    v_add_u32 {vr(vKVB)}, {sr(sT0)}, {vr(vL16)}
    v_mov_b32 {vr(vCUR)}, {vr(vKVB)}
    v_add_u32 {vr(vNXT)}, 32768, {vr(vKVB)}
    s_lshl_b32 {sr(sT1)}, {sr(sTQ)}, 12
    s_add_u32 {sr(sLDSW)}, {sr(sT0)}, {sr(sT1)}
    s_add_u32 {sr(sKVSRC)}, {sr(sKVSRC)}, {sr(sT1)}
    v_add_u32 {vr(vDMA)}, {sr(sKVSRC)}, {vr(vL16)}
    s_lshl_b32 {sr(sSRC)}, {sr(sTB)}, 1
    s_add_u32 {sr(sSRC)}, {sr(sSRC)}, 2
    s_and_b32 {sr(sSRC)}, {sr(sSRC)}, 15
    s_lshl_b32 {sr(sSRC)}, {sr(sSRC)}, 14
    s_mov_b32 {sr(sSLOT)}, {2 * 32768}
    s_mov_b32 {sr(sJ)}, 0
    v_lshrrev_b32 v12, 3, v0
    v_and_b32 v13, 7, v0
    v_bfe_u32 v14, v12, 1, 1
    v_lshlrev_b32 v14, 2, v14
    v_xor_b32 v13, v13, v14
    s_lshl_b32 {sr(sT0)}, {sr(sTQ)}, 4
    v_add_u32 v12, {sr(sT0)}, v12
    v_lshlrev_b32 {vr(vDW3)}, 11, v12
    v_lshl_add_u32 {vr(vDW3)}, v13, 4, {vr(vDW3)}
    s_lshl_b32 {sr(sWOFF)}, {sr(sCB)}, 7
    s_lshl_b32 {sr(sLDSW3)}, {sr(sHH)}, 13
    s_lshl_b32 {sr(sT0)}, {sr(sTQ)}, 11
    s_add_u32 {sr(sLDSW3)}, {sr(sLDSW3)}, {sr(sT0)}
    """)
    for i in range(8): a(f"v_mov_b32 v{LA+i}, 0")
    for x in range(2):
        S = SS + 16 * x
        a(f"v_max3_f32 v12, v{S}, v{S+1}, v{S+2}")
        for i in range(3, 15, 2):
            a(f"v_max3_f32 v12, v12, v{S+i}, v{S+i+1}")
        a(f"v_max_f32 v12, v12, v{S+15}")
        a(f"""
        v_mov_b32 v13, v12
        s_nop 1
        v_permlane32_swap_b32 v13, v12
        s_nop 1
        v_max_f32 v12, v12, v13
        v_sub_f32 v12, 0, v12
        """)
        for i in range(16):
            a(f"v_mov_b32 v{NM+16*x+i}, v12")
    a("s_waitcnt lgkmcnt(0)")
    a("s_barrier")
    a(rd(KF, 0, 0)); a(rd(KF + 4, 0, 1)); a(rd(VF, 0, 2))
    a("s_waitcnt lgkmcnt(1)")
    a(f"v_mfma_f32_32x32x16_bf16 {vr(SS,16)}, {vr(KF,4)}, {vr(QF,4)}, {vr(NM,16)}")
    a(f"v_mfma_f32_32x32x16_bf16 {vr(SS,16)}, {vr(KF+4,4)}, {vr(QF+4,4)}, {vr(SS,16)}")
    lanestamp(a, 203, opt, 3)
    a("s_waitcnt lgkmcnt(0)")
    a("s_nop 15")
    attn_stage(a, opt, 0)
    lanestamp(a, 202, opt, 0)
    attn_stage(a, opt, 1)
    lanestamp(a, 202, opt, 1)
    loop = a.label("attn")
    a(".p2align 6")
    a(f"{loop}:")
    attn_stage(a, opt, 2)
    lanestamp(a, 202, opt, "m")
    a(f"s_cmp_lt_u32 {sr(sJ)}, 13")
    a(f"s_cbranch_scc1 {loop}")
    for s_ in (13, 14, 15):
        attn_stage(a, opt, 3, s_)
        lanestamp(a, 202, opt, s_)
    a("s_setprio 0")
    a("s_nop 1")
    a(f"v_mfma_f32_32x32x16_bf16 {vr(OA+16,16)}, {vr(VF+4,4)}, {vr(PP+4,4)}, {vr(OA+16,16)}")
    a(smf(LA + 4))
    a("s_waitcnt lgkmcnt(0)")

def attn_epilogue(a, opt):
    a(f"""
    s_lshl_b32 {sr(sT0)}, {sr(sTB)}, 3
    s_lshl_b32 {sr(sT1)}, {sr(sTQ)}, 1
    s_add_u32 {sr(sT0)}, {sr(sT0)}, {sr(sT1)}
    s_lshl_b32 {sr(sT0)}, {sr(sT0)}, 17
    s_lshl_b32 {sr(sT1)}, {sr(sHP)}, 1
    s_add_u32 {sr(sT1)}, {sr(sT1)}, {sr(sHH)}
    s_lshl_b32 {sr(sT1)}, {sr(sT1)}, 11
    s_add_u32 {sr(sT0)}, {sr(sT0)}, {sr(sT1)}
    s_add_u32 {sr(sOOFF)}, {sr(sT0)}, {WS_O}
    s_mov_b32 {sr(sT2)}, {hex(f2u(2.0**24))}
    s_nop 7
    """)
    ok = a.label("ok")
    a("v_mov_b32 v12, 0")
    a("v_mov_b32 v13, 0")
    a(f"v_add_f32 v{LA}, v{LA}, v{LA+1}")
    a(f"v_add_f32 v{LA+4}, v{LA+4}, v{LA+5}")
    for i in range(16):
        a(f"v_pk_fma_f32 v[12:13], {vr(OA+2*i,2)}, 0, v[12:13] op_sel_hi:[1,0,1]")
    a(f"v_cmp_nle_f32 {sr(sM,2)}, v{LA}, {sr(sT2)}")
    a(f"v_cmp_nle_f32 {sr(sM2,2)}, v{LA+4}, {sr(sT2)}")
    a("v_cmp_u_f32 vcc, v12, v13")
    a(f"s_or_b64 {sr(sM,2)}, {sr(sM,2)}, {sr(sM2,2)}")
    a(f"s_or_b64 {sr(sM,2)}, {sr(sM,2)}, vcc")
    if opt.get("force_fallback"):
        a(f"s_mov_b64 {sr(sM,2)}, -1")
    a(f"s_cmp_eq_u64 {sr(sM,2)}, 0")
    a(f"s_cbranch_scc1 {ok}")
    fallback(a, opt)
    a(f"{ok}:")
    a(f"v_rcp_f32 v12, v{LA}")
    a(f"v_rcp_f32 v14, v{LA+4}")
    for x in range(2):
        r = (12, 14)[x]
        a(f"v_mov_b32 v{r+1}, v{r}" if x == 1 else f"v_mov_b32 v13, v12")
        b = OA + 16 * x
        for i in range(8):
            a(f"v_pk_mul_f32 {vr(b+2*i,2)}, {vr(b+2*i,2)}, {vr(r,2)}")
        for i in range(8):
            a(f"v_cvt_pk_bf16_f32 v{b+i}, v{b+2*i}, v{b+2*i+1}")
        if x == 1:
            a(f"s_add_u32 {sr(sOOFF)}, {sr(sOOFF)}, 131072")
        a(f"buffer_store_dwordx4 {vr(b,4)}, {vr(vL16)}, {sr(SRD_WS,4)}, {sr(sOOFF)} offen sc1")
        a(f"buffer_store_dwordx4 {vr(b+4,4)}, {vr(vL16)}, {sr(SRD_WS,4)}, {sr(sOOFF)} offen offset:1024 sc1")

def phase3(a, opt):
    vm = VmTracker()
    ACC3, AF, OF, DEPTH, NSLOT = 16, 48, 72, opt.get("depth", 16), NSLOT3
    vRD = [7, 8, 9, 11, 4, 5]
    vG, vOUT = 14, 13
    a("s_waitcnt vmcnt(0)")
    a("s_barrier")
    timestamp(a, 4, opt)
    np_ = a.label("np3")
    a(f"s_cmp_eq_u32 {sr(sW)}, 0")
    a(f"s_cbranch_scc0 {np_}")
    a(f"""
    s_lshl_b32 {sr(sT0)}, {sr(sTB)}, 12
    s_lshl_b32 {sr(sT1)}, {sr(sHP)}, 2
    s_add_u32 {sr(sT0)}, {sr(sT0)}, {sr(sT1)}
    s_add_u32 {sr(sT0)}, {sr(sT0)}, {WS_MB2}
    v_lshlrev_b32 v12, 7, v0
    v_mov_b32 v15, 1
    s_mov_b32 exec_lo, -1
    s_mov_b32 exec_hi, 0
    buffer_store_dword v15, v12, {sr(SRD_WS,4)}, {sr(sT0)} offen sc1
    s_mov_b64 exec, -1
    """)
    poll = a.label("poll3"); done = a.label("pd3")
    a(f"s_mov_b32 {sr(sT1)}, 400000")
    a(f"v_lshlrev_b32 v12, 2, v0")
    a("s_mov_b32 exec_lo, -1")
    a("s_mov_b32 exec_hi, 0")
    a(f"{poll}:")
    a(f"buffer_load_dword v15, v12, {sr(SRD_WS,4)}, {sr(sMB2)} offen sc1")
    a("s_waitcnt vmcnt(0)")
    a("v_cmp_eq_u32 vcc, 1, v15")
    a("s_nop 3")
    a("s_cmp_eq_u32 vcc_lo, -1")
    a(f"s_cbranch_scc1 {done}")
    a(f"s_sub_u32 {sr(sT1)}, {sr(sT1)}, 1")
    a(f"s_cbranch_scc1 {done}")
    a("s_sleep 1")
    a(f"s_branch {poll}")
    a(f"{done}:")
    a("s_mov_b64 exec, -1")
    a(f"{np_}:")
    def wdma(i):
        for half in range(2):
            for x in wo_piece(i, half): a(x)
            vm.issue(("w", i))
    wdma(6); wdma(7)
    a(f"""
    v_and_b32 v12, 31, v0
    s_lshl_b32 {sr(sT0)}, {sr(sTB3)}, 7
    s_lshl_b32 {sr(sT2)}, {sr(sTQ)}, 5
    s_add_u32 {sr(sT0)}, {sr(sT0)}, {sr(sT2)}
    v_add_u32 v12, {sr(sT0)}, v12                  ; token
    v_lshlrev_b32 v3, 2, v12
    v_lshrrev_b32 {vr(vG)}, 5, v0                  ; h
    v_lshlrev_b32 {vr(vOUT)}, 11, v12
    v_lshl_add_u32 {vr(vOUT)}, {vr(vG)}, 4, {vr(vOUT)}
    v_bfe_u32 v15, v0, 2, 2                        ; r
    v_lshl_add_u32 v12, {vr(vG)}, 2, v15           ; 4h + r
    v_lshlrev_b32 v2, 7, v12
    v_and_b32 v12, 1, v0                           ; h'
    v_bfe_u32 v1, v0, 1, 1                         ; a
    v_bfe_u32 v5, v0, 4, 1                         ; g
    v_lshl_add_u32 v12, v5, 1, v12                 ; chunk16 = 2g + h'
    v_lshrrev_b32 v15, 1, v15
    v_lshlrev_b32 v15, 2, v15
    v_xor_b32 v12, v12, v15
    v_lshl_add_u32 v2, v12, 4, v2
    v_lshl_add_u32 v2, v1, 3, v2
    s_lshl_b32 {sr(sT0)}, {sr(sHH)}, 13
    v_add_u32 v{vRD[0]}, {sr(sT0)}, v2
    v_xor_b32 v{vRD[1]}, 64, v{vRD[0]}
    v_add_u32 v{vRD[2]}, 0x10000, v{vRD[0]}
    v_add_u32 v{vRD[3]}, 0x10000, v{vRD[1]}
    v_add_u32 v{vRD[4]}, 0x20000, v{vRD[0]}
    v_add_u32 v{vRD[5]}, 0x20000, v{vRD[1]}
    s_lshl_b32 {sr(sT0)}, {sr(sTB3)}, 2
    s_add_u32 {sr(sT0)}, {sr(sT0)}, {sr(sTQ)}
    s_lshl_b32 {sr(sAOFF)}, {sr(sT0)}, 17
    s_lshl_b32 {sr(sT1)}, {sr(sHH)}, 16
    s_add_u32 {sr(sAOFF)}, {sr(sAOFF)}, {sr(sT1)}
    s_add_u32 {sr(sAOFF)}, {sr(sAOFF)}, {WS_O}
    """)
    a("s_barrier")
    timestamp(a, 5, opt)
    def oload(kk):
        d = kk % DEPTH
        if kk % 4 == 0:
            a(f"s_add_u32 {sr(sT1)}, {sr(sROT)}, {kk // 4}")
            a(f"s_and_b32 {sr(sT1)}, {sr(sT1)}, 15")
            a(f"s_lshl_b32 {sr(sT1)}, {sr(sT1)}, 12")
            a(f"s_add_u32 {sr(sT1)}, {sr(sT1)}, {sr(sAOFF)}")
        if opt.get("p3_noload") and kk >= DEPTH: return
        sc = "" if opt.get("p3_plain") else " sc1"
        a(f"buffer_load_dwordx4 {vr(OF+4*d,4)}, {vr(vL16)}, {sr(SRD_WS,4)}, {sr(sT1)} offen offset:{(kk%4)*1024}{sc}")
        vm.issue(("o", kk))
    for kk in range(DEPTH): oload(kk)
    a(f"s_mov_b32 {sr(sT2)}, {WS_G}")
    a(f"buffer_load_dword {vr(vG)}, v3, {sr(SRD_WS,4)}, {sr(sT2)} offen sc1")
    vm.issue(("g", 0))
    def wreads(st, ks, set_):
        r = []
        slot = st % NSLOT
        win, off = divmod(slot * 16384, 65536)
        for ct in range(2):
            base = AF + 8 * set_ + 4 * ct
            reg = vRD[2 * win + ct]
            r.append(f"ds_read_b64_tr_b16 {vr(base,2)}, {vr(reg)} offset:{off + ks*2048}")
            r.append(f"ds_read_b64_tr_b16 {vr(base+2,2)}, {vr(reg)} offset:{off + ks*2048+1024}")
        return r
    def wr(kk): return wreads(kk // 4, kk % 4, kk % 3)
    for x in wr(0) + wr(1): a(x)
    pend = []
    for st in range(16):
        for ks in range(4):
            kk = 4 * st + ks
            d = kk % DEPTH
            cur = kk % 3
            bar = ks == 2 and st in (5, 9)
            if bar:
                need = ("w", 7) if st == 5 else ("w", 15)
                n = vm.wait_count(lambda t: t in (need, ("o", kk)))
                a(f"s_waitcnt vmcnt({n}) lgkmcnt(0)")
                a("s_barrier")
                if st == 5:
                    pend = [(i, h) for i in range(10, 16) for h in range(2)]
            else:
                n = vm.wait_count(lambda t: t == ("o", kk))
                a(f"s_waitcnt vmcnt({n}) lgkmcnt({4 if kk < 63 else 0})")
            nxt = wr(kk + 2) if kk + 2 < 64 else []
            for ct in range(2):
                c = "0" if kk == 0 else vr(ACC3+16*ct,16)
                a(f"v_mfma_f32_32x32x16_bf16 {vr(ACC3+16*ct,16)}, {vr(AF+8*cur+4*ct,4)}, {vr(OF+4*d,4)}, {c}")
                for x in nxt[2*ct:2*ct+2]: a(x)
            if kk + DEPTH < 64:
                oload(kk + DEPTH)
            for i, h in pend[:2]:
                if opt.get("p3_nowo"): continue
                for x in wo_piece(i, h): a(x)
                vm.issue(("w", i))
            pend = pend[2:]
    timestamp(a, 6, opt)
    XA = 6 * 16384
    a(f"""
    s_lshl_b32 {sr(sT0)}, {sr(sTQ)}, 12
    s_lshl_b32 {sr(sT1)}, {sr(sHH)}, 11
    s_add_u32 {sr(sT2)}, {sr(sT0)}, {sr(sT1)}
    s_xor_b32 {sr(sT1)}, {sr(sT1)}, 2048
    s_add_u32 {sr(sT3)}, {sr(sT0)}, {sr(sT1)}
    s_add_u32 {sr(sT2)}, {sr(sT2)}, {XA}
    s_add_u32 {sr(sT3)}, {sr(sT3)}, {XA}
    v_add_u32 v12, {sr(sT2)}, {vr(vL16)}
    v_add_u32 v1, {sr(sT3)}, {vr(vL16)}
    v_sub_f32 v2, 1.0, {vr(vG)}
    v_cvt_pk_bf16_f32 v2, v2, v2
    v_lshlrev_b32 v2, 16, v2
    s_lshl_b32 {sr(sT0)}, {sr(sCB)}, 7
    s_lshl_b32 {sr(sT1)}, {sr(sHH)}, 6
    s_add_u32 {sr(sT0)}, {sr(sT0)}, {sr(sT1)}
    """)
    brb, fin = a.label("brb"), a.label("fin")
    a(f"s_cmp_eq_u32 {sr(sHH)}, 0")
    a(f"s_cbranch_scc0 {brb}")
    for br in range(2):
        K, S_ = ACC3 + 16 * br, ACC3 + 16 * (br ^ 1)
        own, rcv = (vG, 2) if br == 0 else (2, vG)
        a(f"v_mov_b32 v60, v{own}\nv_mov_b32 v61, v{own}\nv_mov_b32 v62, v{rcv}\nv_mov_b32 v63, v{rcv}")
        for i in range(8):
            a(f"v_cvt_pk_bf16_f32 v{48+i}, v{S_+2*i}, v{S_+2*i+1}")
        a("ds_write_b128 v12, v[48:51]")
        a("ds_write_b128 v12, v[52:55] offset:1024")
        a("s_waitcnt lgkmcnt(0)")
        a("s_barrier")
        a("ds_read_b128 v[48:51], v1")
        a("ds_read_b128 v[52:55], v1 offset:1024")
        for i in range(8):
            if i == 0: a("s_waitcnt lgkmcnt(1)")
            if i == 4: a("s_waitcnt lgkmcnt(0)")
            a(f"v_lshlrev_b32 v56, 16, v{48+i}")
            a(f"v_and_b32 v57, 0xffff0000, v{48+i}")
            a(f"v_pk_mul_f32 v[56:57], v[56:57], v[62:63]")
            a(f"v_pk_fma_f32 v[56:57], {vr(K+2*i,2)}, v[60:61], v[56:57]")
            if opt.get("perturb") and br == 0 and i == 0:
                a(f"s_cmp_eq_u32 s2, 0")
                a(f"s_cselect_b32 {sr(sT1)}, {hex(f2u(opt['perturb']))}, 0")
                a(f"s_cmp_eq_u32 {sr(sW)}, 0")
                a(f"s_cselect_b32 {sr(sT1)}, {sr(sT1)}, 0")
                a(f"v_mov_b32 v58, {sr(sT1)}")
                a(f"v_cmp_eq_u32 vcc, 0, v0")
                a("s_nop 1")
                a(f"v_cndmask_b32 v58, 0, v58, vcc")
                a(f"v_add_f32 v56, v56, v58")
            a(f"v_cvt_pk_bf16_f32 v{K+i}, v56, v57")
            if i == 3:
                a(f"buffer_store_dwordx4 {vr(K,4)}, {vr(vOUT)}, {sr(SRD_OUT,4)}, {sr(sT0)} offen")
        a(f"buffer_store_dwordx4 {vr(K+4,4)}, {vr(vOUT)}, {sr(SRD_OUT,4)}, {sr(sT0)} offen offset:32")
        if br == 0:
            a(f"s_branch {fin}")
            a(f"{brb}:")
    a(f"{fin}:")

def fallback(a, opt):
    MX = NM
    a(f"s_lshl_b32 {sr(sT0)}, {sr(sHP)}, 1")
    a(f"s_add_u32 {sr(sT0)}, {sr(sT0)}, {sr(sHH)}")
    a(f"s_lshl_b32 {sr(sBLK)}, {sr(sT0)}, 18")
    for i in range(32): a(f"v_mov_b32 v{OA+i}, 0")
    for i in range(8): a(f"v_mov_b32 v{LA+i}, 0")
    a(f"v_mov_b32 v{MX}, 0xff800000")
    a(f"v_mov_b32 v{MX+16}, 0xff800000")
    a(f"s_mov_b32 {sr(sJ)}, 0")
    loop = a.label("fb")
    a(f"{loop}:")
    a(f"buffer_load_dwordx4 {vr(KF,4)}, {vr(vL16)}, {sr(SRD_WS,4)}, {sr(sBLK)} offen sc1")
    a(f"buffer_load_dwordx4 {vr(KF+4,4)}, {vr(vL16)}, {sr(SRD_WS,4)}, {sr(sBLK)} offen offset:1024 sc1")
    a(f"buffer_load_dwordx4 {vr(VF,4)}, {vr(vL16)}, {sr(SRD_WS,4)}, {sr(sBLK)} offen offset:2048 sc1")
    a(f"buffer_load_dwordx4 {vr(VF+4,4)}, {vr(vL16)}, {sr(SRD_WS,4)}, {sr(sBLK)} offen offset:3072 sc1")
    a("s_waitcnt vmcnt(0)")
    for x in range(2):
        S, Q, O, L, mx = SS, QF + 8 * x, OA + 16 * x, LA + 4 * x, MX + 16 * x
        a(f"v_mfma_f32_32x32x16_bf16 {vr(S,16)}, {vr(KF,4)}, {vr(Q,4)}, 0")
        a(f"v_mfma_f32_32x32x16_bf16 {vr(S,16)}, {vr(KF+4,4)}, {vr(Q+4,4)}, {vr(S,16)}")
        a("s_nop 15")
        a(f"v_max3_f32 v12, v{S}, v{S+1}, v{S+2}")
        for i in range(3, 15, 2):
            a(f"v_max3_f32 v12, v12, v{S+i}, v{S+i+1}")
        a(f"v_max_f32 v12, v12, v{S+15}")
        a(f"""
        v_mov_b32 v13, v12
        s_nop 1
        v_permlane32_swap_b32 v13, v12
        s_nop 1
        v_max3_f32 v12, v12, v13, v{mx}
        v_sub_f32 v13, v{mx}, v12
        v_cmp_eq_f32 vcc, v{mx}, v12
        v_exp_f32 v13, v13
        s_nop 1
        v_cndmask_b32 v13, v13, 1.0, vcc
        v_mov_b32 v{mx}, v12
        """)
        for i in range(16):
            a(f"v_mul_f32 v{O+i}, v13, v{O+i}")
        for i in range(4):
            a(f"v_mul_f32 v{L+i}, v13, v{L+i}")
        for i in range(16):
            a(f"v_sub_f32 v{S+i}, v{S+i}, v12")
        for i in range(16):
            a(f"v_exp_f32 v{S+i}, v{S+i}")
        a("s_nop 0")
        for i in range(8):
            a(f"v_cvt_pk_bf16_f32 v{PP+i}, v{S+2*i}, v{S+2*i+1}")
        a("s_nop 1")
        a(f"v_mfma_f32_32x32x16_bf16 {vr(O,16)}, {vr(VF,4)}, {vr(PP,4)}, {vr(O,16)}")
        a(f"v_mfma_f32_32x32x16_bf16 {vr(O,16)}, {vr(VF+4,4)}, {vr(PP+4,4)}, {vr(O,16)}")
        a(smf(L))
        a("s_nop 15")
    a(f"s_add_u32 {sr(sBLK)}, {sr(sBLK)}, 4096")
    a(f"s_add_u32 {sr(sJ)}, {sr(sJ)}, 1")
    a(f"s_cmp_lt_u32 {sr(sJ)}, 64")
    a(f"s_cbranch_scc1 {loop}")
    a(f"v_add_f32 v{LA}, v{LA}, v{LA+1}")
    a(f"v_add_f32 v{LA+4}, v{LA+4}, v{LA+5}")

def gstamp(a, reg):
    a("s_memtime s[70:71]")
    a("s_waitcnt lgkmcnt(0)")
    a("s_mov_b32 s69, m0")
    a("s_mov_b32 m0, s87")
    a(f"v_writelane_b32 v{reg-100}, s70, m0")
    a("s_mov_b32 m0, s69")

def lanestamp(a, reg, opt, lane=None):
    if not opt.get("stamps2"):
        return
    a("s_memtime s[70:71]")
    a("s_waitcnt lgkmcnt(0)")
    if lane == "m":
        a(f"s_mov_b32 s69, m0")
        a(f"s_sub_u32 m0, {sr(sJ)}, 1")
        a(f"v_writelane_b32 v{reg}, s70, m0")
        a(f"s_mov_b32 m0, s69")
    elif lane is None:
        a(f"s_mov_b32 s69, m0")
        a(f"s_mov_b32 m0, {sr(sJ)}")
        a(f"v_writelane_b32 v{reg}, s70, m0")
        a(f"s_mov_b32 m0, s69")
    else:
        a(f"v_writelane_b32 v{reg}, s70, {lane}")

def timestamp(a, idx, opt):
    if not opt.get("stamps"):
        return
    a(f"s_memtime s[70:71]")
    a(f"s_memrealtime s[92:93]")
    a("s_waitcnt lgkmcnt(0)")
    a(f"s_mov_b32 s{72+idx}, s70")
    a(f"s_mov_b32 s{80+idx}, s92")

def stamps_out(a, n, opt):
    if opt.get("stampsg"):
        a(f"""
        s_lshl_b32 {sr(sT1)}, s2, 3
        s_add_u32 {sr(sT1)}, {sr(sT1)}, {sr(sW)}
        s_lshl_b32 {sr(sT1)}, {sr(sT1)}, 10
        s_add_u32 {sr(sT1)}, {sr(sT1)}, {WS_DBG + (12 << 20)}
        v_lshlrev_b32 v12, 2, v0
        buffer_store_dword v104, v12, {sr(SRD_WS,4)}, {sr(sT1)} offen
        buffer_store_dword v105, v12, {sr(SRD_WS,4)}, {sr(sT1)} offen offset:256
        buffer_store_dword v106, v12, {sr(SRD_WS,4)}, {sr(sT1)} offen offset:512
        """)
    if opt.get("stamps2"):
        a(f"""
        s_lshl_b32 {sr(sT1)}, s2, 3
        s_add_u32 {sr(sT1)}, {sr(sT1)}, {sr(sW)}
        s_lshl_b32 {sr(sT1)}, {sr(sT1)}, 10
        s_add_u32 {sr(sT1)}, {sr(sT1)}, {WS_DBG + (10 << 20)}
        v_lshlrev_b32 v12, 2, v0
        buffer_store_dword v200, v12, {sr(SRD_WS,4)}, {sr(sT1)} offen
        buffer_store_dword v201, v12, {sr(SRD_WS,4)}, {sr(sT1)} offen offset:256
        buffer_store_dword v202, v12, {sr(SRD_WS,4)}, {sr(sT1)} offen offset:512
        buffer_store_dword v203, v12, {sr(SRD_WS,4)}, {sr(sT1)} offen offset:768
        """)
    if not opt.get("stamps"):
        return
    a(f"""
    s_lshl_b32 {sr(sT1)}, s2, 3
    s_add_u32 {sr(sT1)}, {sr(sT1)}, {sr(sW)}
    s_lshl_b32 {sr(sT1)}, {sr(sT1)}, 6
    s_add_u32 {sr(sT1)}, {sr(sT1)}, {WS_DBG + (8 << 20)}
    v_mov_b32 v13, 0
    """)
    for i in range(n):
        a(f"v_writelane_b32 v13, s{72+i}, {i}")
        a(f"v_writelane_b32 v13, s{80+i}, {8+i}")
    a(f"""
    v_lshlrev_b32 v12, 2, v0
    v_cmp_gt_u32 vcc, 16, v0
    s_and_saveexec_b64 {sr(sM,2)}, vcc
    buffer_store_dword v13, v12, {sr(SRD_WS,4)}, {sr(sT1)} offen
    s_mov_b64 exec, {sr(sM,2)}
    """)

def dbg_span(a, which):
    w = {"start": 4, "gemm": 12, "attn": 20, "end": 28, "first": 36}[which]
    sk = a.label("sk")
    a(f"s_cmp_eq_u32 {sr(sW)}, 0")
    a(f"s_cbranch_scc0 {sk}")
    a("s_memrealtime s[92:93]")
    a("s_waitcnt lgkmcnt(0)")
    a(f"v_mov_b32 v12, s92")
    a(f"s_mov_b32 s93, {w}")
    a("s_mov_b64 exec, 1")
    a(f"buffer_atomic_umax v12, off, {sr(SRD_DBG,4)}, s93 sc1")
    a("s_mov_b64 exec, -1")
    a(f"{sk}:")

OPT = {}
def k12(opt):
    OPT.clear(); OPT.update(opt)
    a = Asm()
    a(f".globl {NAME12}\n.p2align 8\n.type {NAME12},@function\n{NAME12}:")
    timestamp(a, 0, opt)
    if opt.get("dbg_span"):
        a("s_memrealtime s[84:85]")
    prologue(a, opt)
    if opt.get("dbg_span"):
        sk = a.label("sk")
        a(f"s_cmp_eq_u32 {sr(sW)}, 0")
        a(f"s_cbranch_scc0 {sk}")
        a("s_waitcnt lgkmcnt(0)")
        a("s_not_b32 s84, s84")
        a("v_mov_b32 v12, s84")
        a("s_mov_b32 s93, 4")
        a("s_mov_b64 exec, 1")
        a(f"buffer_atomic_umax v12, off, {sr(SRD_DBG,4)}, s93 sc1")
        a("s_mov_b64 exec, -1")
        a(f"{sk}:")
    gemm(a, opt)
    if opt.get("dbg_span"): dbg_span(a, "gemm")
    if opt.get("stamps_start"):
        timestamp(a, 7, opt)
        opt = dict(opt); opt["stamps"] = 0
        gemm_epilogue(a, opt)
        a("s_waitcnt vmcnt(0) lgkmcnt(0)")
        opt["stamps"] = 1
        stamps_out(a, 8, opt)
        a("L_end12:\ns_endpgm")
        return a.text()
    timestamp(a, 1, opt)
    gemm_epilogue(a, opt)
    if opt.get("stop_after_gemm"):
        a("s_waitcnt vmcnt(0) lgkmcnt(0)")
        timestamp(a, 2, opt)
        stamps_out(a, 3, opt)
    else:
        timestamp(a, 2, opt)
        attention(a, opt)
        timestamp(a, 3, opt)
        if opt.get("dbg_span"): dbg_span(a, "attn")
        attn_epilogue(a, opt)
        if opt.get("fused"):
            phase3(a, opt)
            if opt.get("stamps"):
                a("s_waitcnt vmcnt(0)")
                timestamp(a, 7, opt)
            stamps_out(a, 8, opt)
            if opt.get("dbg_span"):
                a("s_waitcnt vmcnt(0)")
                dbg_span(a, "end")
        else:
            a("s_waitcnt vmcnt(0)")
            timestamp(a, 4, opt)
            stamps_out(a, 5, opt)
    a("L_end12:\ns_endpgm")
    return a.text()

KD12 = f"""
.section .rodata,"a"
.p2align 6
.amdhsa_kernel {NAME12}
  .amdhsa_next_free_vgpr 256
  .amdhsa_next_free_sgpr 102
  .amdhsa_accum_offset 256
  .amdhsa_group_segment_fixed_size 0
  .amdhsa_kernarg_size 80
  .amdhsa_user_sgpr_count 2
  .amdhsa_user_sgpr_kernarg_segment_ptr 1
  .amdhsa_system_sgpr_workgroup_id_x 1
  .amdhsa_float_denorm_mode_32 3
.end_amdhsa_kernel
"""
```

```python
from asm import Asm, vr, sr, VmTracker

NAME12 = "gated_mix__mha_block__softmax_full_mha__prompt_kernel"
WS_KV = 0
WS_O = 16 << 20
WS_G = 24 << 20
WS_MB = 25 << 20
WS_MB2 = WS_MB + 65536
WS_DBG = 32 << 20
WS_SIZE = 0x10000000
LOG2E = 1.4426950408889634
QSCALE = LOG2E / (32 ** 0.5)

import struct
def f2u(x): return struct.unpack("<I", struct.pack("<f", x))[0]

SRD_X, SRD_W, SRD_WS, SRD_DBG, SRD_GW = 8, 12, 16, 20, 24
sW, sHH, sTQ, sHP, sTB = 28, 29, 30, 31, 32
sW1K = 33
sXJ = 34
sWJ = 35
sRING = 36
sRINGW = 37
sJ = 38
sT0, sT1, sT2, sT3 = 40, 41, 42, 43
sXQ = 44
sKVSRC = 45
sSLOT = 46
sBLK = 47
sM = 48
sM2 = 50
sOOFF = 52
sCNT = 53
sMB = 54
sLDSW = 55
sSRC = 39
sOFFS = 64
sNXT = 65
sCHKJ = 66
sARRJ = 67
sGOFF = 68
SRD_WO, SRD_OUT = 4, 56
sTB3, sCB, sROT, sMB2 = 60, 61, 62, 63
sAOFF, sWOFF = 100, 101
sLDSW3 = 34
vDW3 = 6
vLANE = 0
vDX, vDW, vXP, vWP, vXA, vW0 = 2, 3, 4, 5, 6, 7
vL16 = 10
vXB = 11
vT = 12
FR = [64, 84]
ACC = 160
QF = 16
OA = 32
LA = 64
NM = 72
SS = 104
PP = 136
KF = 144
VF = 152
ONES = 160
IDX = 164
vCUR, vNXT = 2, 3
vKVB, vDMA = 4, 5
vCHK = 15

RING = 20 * 8192
NSLOT3 = 10

def wrap_add(a, dst, src, const, tmp):
    a(f"s_add_u32 {sr(tmp)}, {sr(src)}, {const}")
    a(f"s_sub_u32 {dst}, {sr(tmp)}, {RING}")
    a(f"s_cselect_b32 {dst}, {sr(tmp)}, {dst}")

def prologue(a, opt):
    a(f"""
    s_cmp_ge_u32 s2, 256
    s_cbranch_scc1 L_end12
    """)
    if opt.get("codepf", 1):
        a("""
        s_getpc_b64 s[92:93]
        L_pc12:
        s_mov_b32 s3, L_end12-L_pc12
        v_lshlrev_b32 v1, 6, v0
        v_min_u32 v1, s3, v1
        global_load_dword v33, v1, s[92:93]
        """)
    a(f"""
    s_load_dwordx4 s[56:59], s[0:1], 0
    s_load_dwordx2 s[60:61], s[0:1], 32
    s_load_dwordx2 s[62:63], s[0:1], 48
    s_load_dwordx4 s[88:91], s[0:1], 64
    s_load_dwordx2 s[94:95], s[0:1], 16
    s_load_dwordx2 s[96:97], s[0:1], 40
    s_load_dwordx2 s[98:99], s[0:1], 56
    v_lshrrev_b32 v1, 6, v0
    v_and_b32 v0, 63, v0
    s_and_b32 s3, s2, 7
    v_readfirstlane_b32 {sr(sW)}, v1
    s_lshr_b32 s4, s2, 3
    s_and_b32 s5, s4, 3
    s_lshl_b32 s3, s3, 2
    s_add_u32 {sr(sHP)}, s3, s5
    s_lshr_b32 {sr(sTB)}, s4, 2
    s_lshr_b32 {sr(sHH)}, {sr(sW)}, 2
    s_and_b32 {sr(sTQ)}, {sr(sW)}, 3
    s_lshl_b32 {sr(sW1K)}, {sr(sW)}, 10
    """)
    a(f"""
    v_lshrrev_b32 v13, 3, v0                 ; r8
    v_and_b32 v14, 7, v0                     ; c'
    s_and_b32 {sr(sT0)}, {sr(sW)}, 1
    s_lshl_b32 {sr(sT0)}, {sr(sT0)}, 2
    v_lshrrev_b32 v15, 1, v13                ; r8>>1 (0..3)
    v_add_u32 v1, {sr(sT0)}, v15             ; 4*(w&1) + (r8>>1)
    v_xor_b32 v1, v1, v14                    ; cX
    s_lshl_b32 {sr(sT1)}, {sr(sW)}, 3
    v_add_u32 v13, {sr(sT1)}, v13            ; 8w + r8
    v_lshlrev_b32 {vr(vDX)}, 11, v13
    v_lshl_add_u32 {vr(vDX)}, v1, 4, {vr(vDX)}
    v_and_b32 v15, 1, v15
    v_lshlrev_b32 v15, 2, v15
    v_xor_b32 v15, v15, v14                  ; cW
    s_mov_b32 {sr(sT1)}, 6144
    v_mul_lo_u32 {vr(vDW)}, v13, {sr(sT1)}
    v_lshl_add_u32 {vr(vDW)}, v15, 4, {vr(vDW)}
    s_lshl_b32 {sr(sXJ)}, {sr(sTB)}, 19          ; tb*256*2048
    s_and_b32 {sr(sWJ)}, {sr(sHP)}, 15
    s_lshl_b32 {sr(sWJ)}, {sr(sWJ)}, 7           ; hpl*128
    s_waitcnt lgkmcnt(0)
    """)
    if opt.get("stamps_start"): timestamp(a, 1, opt)
    a(f"""
    s_mov_b32 {sr(SRD_X)}, s56
    s_mov_b32 {sr(SRD_X+1)}, s57
    s_mov_b32 {sr(SRD_X+2)}, {2048*1024*2}
    s_mov_b32 {sr(SRD_X+3)}, 0x00020000
    s_cmp_ge_u32 {sr(sHP)}, 16
    s_cselect_b32 {sr(SRD_W)}, s60, s58
    s_cselect_b32 {sr(SRD_W+1)}, s61, s59
    s_mov_b32 {sr(SRD_W+2)}, {1024*3072*2}
    s_mov_b32 {sr(SRD_W+3)}, 0x00020000
    """)
    for g in range(20):
        dma_unit_static(a, g)
        if g == 6 and opt.get("stamps_start"): timestamp(a, 2, opt)
    if opt.get("stamps_start"): timestamp(a, 3, opt)
    a(f"""
    s_mov_b32 {sr(SRD_WS)}, s90
    s_mov_b32 {sr(SRD_WS+1)}, s91
    s_mov_b32 {sr(SRD_WS+2)}, {WS_SIZE}
    s_mov_b32 {sr(SRD_WS+3)}, 0x00020000
    s_mov_b32 {sr(SRD_DBG)}, s88
    s_mov_b32 {sr(SRD_DBG+1)}, s89
    s_mov_b32 {sr(SRD_DBG+2)}, 256
    s_mov_b32 {sr(SRD_DBG+3)}, 0x00020000
    s_mov_b32 {sr(SRD_GW)}, s62
    s_mov_b32 {sr(SRD_GW+1)}, s63
    s_mov_b32 {sr(SRD_GW+2)}, 2048
    s_mov_b32 {sr(SRD_GW+3)}, 0x00020000
    """)
    a(f"""
    s_and_b32 s3, s2, 7
    s_lshr_b32 {sr(sT1)}, s2, 3
    s_lshr_b32 {sr(sT2)}, s3, 1
    s_lshl_b32 {sr(sT2)}, {sr(sT2)}, 2
    s_and_b32 {sr(sT3)}, {sr(sT1)}, 3
    s_add_u32 {sr(sTB3)}, {sr(sT2)}, {sr(sT3)}
    s_and_b32 {sr(sT2)}, s3, 1
    s_lshl_b32 {sr(sT2)}, {sr(sT2)}, 3
    s_lshr_b32 {sr(sT1)}, {sr(sT1)}, 2
    s_add_u32 {sr(sCB)}, {sr(sT2)}, {sr(sT1)}
    s_add_u32 {sr(sROT)}, {sr(sTB3)}, {sr(sCB)}
    s_and_b32 {sr(sROT)}, {sr(sROT)}, 15
    s_lshl_b32 {sr(sMB2)}, {sr(sTB3)}, 4
    s_add_u32 {sr(sMB2)}, {sr(sMB2)}, {sr(sCB)}
    s_lshl_b32 {sr(sMB2)}, {sr(sMB2)}, 7
    s_add_u32 {sr(sMB2)}, {sr(sMB2)}, {WS_MB2}
    s_cmp_eq_u32 {sr(sHH)}, 1
    s_cselect_b32 {sr(SRD_WO)}, s96, s94
    s_cselect_b32 {sr(SRD_WO+1)}, s97, s95
    s_mov_b32 {sr(SRD_WO+2)}, {1024*1024*2}
    s_mov_b32 {sr(SRD_WO+3)}, 0x00020000
    s_mov_b32 {sr(SRD_OUT)}, s98
    s_mov_b32 {sr(SRD_OUT+1)}, s99
    s_mov_b32 {sr(SRD_OUT+2)}, {2048*1024*2}
    s_mov_b32 {sr(SRD_OUT+3)}, 0x00020000
    """)
    nr = a.label("nr")
    a(f"""
    s_lshl_b32 {sr(sMB)}, {sr(sHP)}, 3
    s_add_u32 {sr(sMB)}, {sr(sMB)}, {sr(sTB)}
    s_lshl_b32 {sr(sMB)}, {sr(sMB)}, 7
    s_add_u32 {sr(sMB)}, {sr(sMB)}, {WS_MB}
    s_lshl_b32 {sr(sCNT)}, {sr(sHP)}, 3
    s_cmp_eq_u32 {sr(sW)}, 0
    s_cselect_b32 {sr(sCHKJ)}, 5, 0xffff
    s_cselect_b32 {sr(sARRJ)}, 11, 0xffff
    s_cbranch_scc0 {nr}
    v_lshlrev_b32 v12, 2, v0
    s_sub_u32 {sr(sT0)}, {sr(sMB2)}, 128
    v_mov_b32 v13, {sr(sMB)}
    v_mov_b32 v14, {sr(sT0)}
    v_cmp_gt_u32 vcc, 32, v0
    s_nop 1
    v_cndmask_b32 v13, v14, v13, vcc
    v_add_u32 v12, v12, v13
    v_mov_b32 v13, 0
    buffer_store_dword v13, v12, {sr(SRD_WS,4)}, 0 offen sc1
    {nr}:
    """)
    a(f"""
    s_lshl_b32 {sr(sT0)}, {sr(sTB)}, 8
    s_lshl_b32 {sr(sT1)}, {sr(sHP)}, 3
    s_add_u32 {sr(sT0)}, {sr(sT0)}, {sr(sT1)}
    s_add_u32 {sr(sT0)}, {sr(sT0)}, {sr(sW)}
    s_lshl_b32 {sr(sT2)}, {sr(sT0)}, 11
    v_lshlrev_b32 v12, 5, v0
    buffer_load_dwordx4 v[16:19], v12, {sr(SRD_X,4)}, {sr(sT2)} offen
    buffer_load_dwordx4 v[20:23], v12, {sr(SRD_X,4)}, {sr(sT2)} offen offset:16
    buffer_load_dwordx4 v[24:27], v12, {sr(SRD_GW,4)}, 0 offen
    buffer_load_dwordx4 v[28:31], v12, {sr(SRD_GW,4)}, 0 offen offset:16
    s_lshl_b32 {sr(sGOFF)}, {sr(sT0)}, 2
    """)
    if opt.get("warm", 0):
        a(f"""
        s_lshl_b32 {sr(sT0)}, s2, 14
        s_lshl_b32 {sr(sT1)}, {sr(sW)}, 11
        s_add_u32 {sr(sT0)}, {sr(sT0)}, {sr(sT1)}
        v_lshlrev_b32 v12, 4, v0
        buffer_load_dwordx4 v[32:35], v12, {sr(SRD_X,4)}, {sr(sT0)} offen
        buffer_load_dwordx4 v[36:39], v12, {sr(SRD_X,4)}, {sr(sT0)} offen offset:1024
        """)
        a(f"""
        s_and_b32 {sr(sT0)}, {sr(sHP)}, 15
        s_lshl_b32 {sr(sT0)}, {sr(sT0)}, 3
        s_add_u32 {sr(sT0)}, {sr(sT0)}, {sr(sTB)}
        s_mul_i32 {sr(sT0)}, {sr(sT0)}, 49152
        s_mul_i32 {sr(sT1)}, {sr(sW)}, 6144
        s_add_u32 {sr(sT0)}, {sr(sT0)}, {sr(sT1)}
        s_add_u32 {sr(sT1)}, {sr(sT0)}, 4096
        """)
        for i in range(6):
            so = sT0 if i < 4 else sT1
            a(f"buffer_load_dwordx4 v[{40+4*i}:{43+4*i}], v12, {sr(SRD_W,4)}, {sr(so)} offen offset:{(i % 4) * 1024}")
        NWARM = 8
        a(f"""
        s_lshl_b32 {sr(sT0)}, {sr(sHP)}, 19
        s_lshl_b32 {sr(sT1)}, {sr(sTB)}, 20
        s_add_u32 {sr(sT1)}, {sr(sT1)}, {WS_O}
        s_lshl_b32 {sr(sT2)}, {sr(sTB3)}, 19
        s_add_u32 {sr(sT2)}, {sr(sT2)}, {WS_O}
        s_lshl_b32 {sr(sT3)}, {sr(sTB3)}, 18
        buffer_load_dword v104, off, {sr(SRD_WS,4)}, {sr(sT0)}
        buffer_load_dword v105, off, {sr(SRD_WS,4)}, {sr(sT1)}
        buffer_load_dword v106, off, {sr(SRD_WS,4)}, {sr(sT2)}
        buffer_load_dword v107, off, {sr(SRD_WO,4)}, 0
        buffer_load_dword v108, off, {sr(SRD_OUT,4)}, {sr(sT3)}
        """)
    a(f"""
    v_and_b32 v13, 31, v0
    v_lshrrev_b32 v14, 5, v0                 ; h
    v_bfe_u32 v15, v13, 1, 3
    v_xor_b32 v15, v15, v14
    v_lshlrev_b32 {vr(vXP)}, 7, v13
    v_lshl_add_u32 {vr(vXP)}, v15, 4, {vr(vXP)}
    v_bfe_u32 v13, v0, 2, 2                  ; r
    v_lshl_add_u32 v1, v14, 3, v13           ; 8h + r
    v_lshlrev_b32 {vr(vWP)}, 7, v1
    v_bfe_u32 v15, v0, 4, 1                  ; g
    v_lshlrev_b32 v15, 1, v15
    v_bfe_u32 v1, v0, 1, 1                   ; c>>1
    v_add_u32 v15, v15, v1
    s_lshl_b32 {sr(sT1)}, {sr(sHH)}, 2
    v_add_u32 v15, {sr(sT1)}, v15            ; cc
    v_lshrrev_b32 v13, 1, v13
    v_lshlrev_b32 v13, 2, v13
    v_xor_b32 v15, v15, v13
    v_lshl_add_u32 {vr(vWP)}, v15, 4, {vr(vWP)}
    v_and_b32 v1, 1, v0
    v_lshl_add_u32 {vr(vWP)}, v1, 3, {vr(vWP)}
    v_lshlrev_b32 {vr(vL16)}, 4, v0
    s_add_u32 {sr(sXQ)}, {sr(sTQ)}, 3
    s_lshl_b32 {sr(sXQ)}, {sr(sXQ)}, 13
    """)

def dma_unit_static(a, g):
    j, u = divmod(g, 7)
    a(f"s_add_u32 m0, {sr(sW1K)}, {(g % 20) * 8192}")
    if u < 3:
        a(f"s_add_u32 {sr(sT0)}, {sr(sWJ)}, {j * 64 * 6144 + u * 2048}")
        a(f"buffer_load_dwordx4 {vr(vDW)}, {sr(SRD_W,4)}, {sr(sT0)} offen lds")
    else:
        a(f"s_add_u32 {sr(sT0)}, {sr(sXJ)}, {j * 128 + (u - 3) * 131072}")
        a(f"buffer_load_dwordx4 {vr(vDX)}, {sr(SRD_X,4)}, {sr(sT0)} offen lds")

def gate_instrs():
    c = ["v_mov_b32 v12, 0"]
    for i in range(8):
        x, w = 16 + i, 24 + i
        c += [f"v_lshlrev_b32 v13, 16, v{x}", f"v_and_b32 v14, 0xffff0000, v{x}", f"v_lshlrev_b32 v32, 16, v{w}",
              f"v_and_b32 v1, 0xffff0000, v{w}", "v_mul_f32 v13, v13, v32", "v_mul_f32 v14, v14, v1",
              "v_cvt_pk_bf16_f32 v13, v13, v14", "v_lshlrev_b32 v14, 16, v13", "v_and_b32 v13, 0xffff0000, v13",
              "v_add_f32 v12, v12, v14", "v_add_f32 v12, v12, v13"]
    for sh in (1, 2, 4, 8):
        c += [f"s_nop 1\nv_add_f32_dpp v12, v12, v12 row_shr:{sh} row_mask:0xf bank_mask:0xf bound_ctrl:0"]
    c += ["s_nop 1\nv_add_f32_dpp v12, v12, v12 row_bcast:15 row_mask:0xa bank_mask:0xf"]
    c += ["s_nop 1\nv_add_f32_dpp v12, v12, v12 row_bcast:31 row_mask:0xc bank_mask:0xf"]
    c += ["s_nop 1\nv_cvt_pk_bf16_f32 v12, v12, v12", "v_lshlrev_b32 v12, 16, v12", f"v_mul_f32 v12, {hex(f2u(-LOG2E))}, v12",
          "v_exp_f32 v12, v12\ns_nop 0\nv_add_f32 v12, 1.0, v12", "v_rcp_f32 v12, v12\ns_nop 0\nv_cvt_pk_bf16_f32 v12, v12, v12",
          "v_lshlrev_b32 v12, 16, v12", f"v_mov_b32 v13, {WS_G}"]
    st = [f"""s_mov_b32 exec_lo, 0
    s_mov_b32 exec_hi, 0x80000000
    buffer_store_dword v12, v13, {sr(SRD_WS,4)}, {sr(sGOFF)} offen sc1
    s_mov_b64 exec, -1"""]
    return c, st

def frag(set_, name):
    off = {"X0": 0, "X1": 4, "Wq": 8, "Wk": 12, "Wv": 16}[name]
    return FR[set_] + off

def gemm_reads(ks, set_):
    r = []
    r.append(f"ds_read_b128 {vr(frag(set_,'X0'),4)}, {vr(vXA)}")
    for u, nm in enumerate(("Wq", "Wk", "Wv")):
        b = frag(set_, nm)
        r.append(f"ds_read_b64_tr_b16 {vr(b,2)}, {vr(vW0+u)} offset:{ks*2048}")
        r.append(f"ds_read_b64_tr_b16 {vr(b+2,2)}, {vr(vW0+u)} offset:{ks*2048+512}")
        if u == 0:
            r.append(f"ds_read_b128 {vr(frag(set_,'X1'),4)}, {vr(vXA)} offset:4096")
    return r

def gemm_mfmas(set_, first=False):
    m = []
    X0, X1 = frag(set_, "X0"), frag(set_, "X1")
    Wq, Wk, Wv = frag(set_, "Wq"), frag(set_, "Wk"), frag(set_, "Wv")
    def mf(acc, A, B): return f"v_mfma_f32_32x32x16_bf16 {vr(acc,16)}, {vr(A,4)}, {vr(B,4)}, {'0' if first else vr(acc,16)}"
    m.append(mf(ACC + 0, Wq, X0))
    m.append(mf(ACC + 32, Wk, X0))
    m.append(mf(ACC + 64, X0, Wv))
    m.append(mf(ACC + 16, Wq, X1))
    m.append(mf(ACC + 48, Wk, X1))
    m.append(mf(ACC + 80, X1, Wv))
    return m

def wrap_list(dst, src, const, tmp):
    return [f"s_add_u32 {sr(tmp)}, {sr(src)}, {const}", f"s_sub_u32 {dst}, {sr(tmp)}, {RING}", f"s_cselect_b32 {dst}, {sr(tmp)}, {dst}"]

def read_bases_list():
    r = [f"v_add_u32 {vr(vW0)}, {sr(sRING)}, {vr(vWP)}"]
    for u in (1, 2):
        r += wrap_list(sr(sT1), sRING, u * 8192, sT0)
        r.append(f"v_add_u32 {vr(vW0+u)}, {sr(sT1)}, {vr(vWP)}")
    r += [f"s_add_u32 {sr(sT0)}, {sr(sRING)}, {sr(sXQ)}", f"s_sub_u32 {sr(sT1)}, {sr(sT0)}, {RING}",
          f"s_cselect_b32 {sr(sT1)}, {sr(sT0)}, {sr(sT1)}", f"v_add_u32 {vr(vXB)}, {sr(sT1)}, {vr(vXP)}",
          f"v_mov_b32 {vr(vXA)}, {vr(vXB)}"]
    return r

def dma_group(i):
    if OPT.get("g_nodma"): return []
    s = [f"s_add_u32 {sr(sT2)}, {sr(sRINGW)}, {i * 8192}", f"s_sub_u32 m0, {sr(sT2)}, {RING}", f"s_cselect_b32 m0, {sr(sT2)}, m0"]
    if i == 0:
        s.append(f"s_add_u32 {sr(sT3)}, {sr(sXJ)}, {3 * 131072 - 128}")
        s.append(f"buffer_load_dwordx4 {vr(vDX)}, {sr(SRD_X,4)}, {sr(sT3)} offen lds")
    elif i <= 3:
        s.append(f"s_add_u32 {sr(sT3)}, {sr(sWJ)}, {(i - 1) * 2048}")
        s.append(f"buffer_load_dwordx4 {vr(vDW)}, {sr(SRD_W,4)}, {sr(sT3)} offen lds")
    else:
        s.append(f"s_add_u32 {sr(sT3)}, {sr(sXJ)}, {(i - 4) * 131072}")
        s.append(f"buffer_load_dwordx4 {vr(vDX)}, {sr(SRD_X,4)}, {sr(sT3)} offen lds")
    return s

def kstep(a, cur, next_ks, gaps_extra, first=False):
    m = gemm_mfmas(cur, first)
    r = gemm_reads(next_ks, cur ^ 1) if next_ks is not None else []
    gaps = [[] for _ in range(6)]
    for i, x in enumerate(r):
        gaps[min(i // 3, 5)].append(x)
    for g in range(6):
        gaps[g] += gaps_extra.get(g, [])
    for i in range(6):
        a(m[i])
        for x in gaps[i]:
            a(x)

def gemm_stage(a, pending, new_batch, vm_wait, first=False, last=False, valu=None, after_bar=None):
    prio = OPT.get("gprio", 1)
    sp = lambda n: [f"s_setprio {n}"] if prio else []
    valu = list(valu or [])
    per = (len(valu) + 2) // 3
    for ks in range(3):
        ex = {}
        mine = [i for i in pending if (i - 2) // 2 == ks]
        if mine:
            ex[2] = dma_group(mine[0])
        if len(mine) > 1:
            ex[4] = dma_group(mine[1])
        chunk = valu[ks * per:(ks + 1) * per]
        n3 = (len(chunk) + 2) // 3
        for k, g in enumerate((1, 3, 5)):
            ex[g] = ex.get(g, []) + chunk[k * n3:(k + 1) * n3]
        ex[0] = sp(2 - ks)
        if ks < 2:
            ex[5] = ex.get(5, []) + [f"v_xor_b32 {vr(vXA)}, {(ks + 2) << 5}, {vr(vXB)}"]
        else:
            upd = [f"s_add_u32 {sr(sRINGW)}, {sr(sRING)}, {sr(sW1K)}", f"s_add_u32 {sr(sXJ)}, {sr(sXJ)}, 128",
                   f"s_add_u32 {sr(sWJ)}, {sr(sWJ)}, {64 * 6144}"] + wrap_list(sr(sRING), sRING, 7 * 8192, sT0)
            ex[3] = ex.get(3, []) + upd
            if not last:
                ex[4] = ex.get(4, []) + read_bases_list()
        a("s_waitcnt lgkmcnt(0)")
        kstep(a, ks & 1, ks + 1, ex, first=(first and ks == 0))
    if OPT.get("stampsg"):
        a("s_waitcnt lgkmcnt(0)")
        gstamp(a, 204)
    if vm_wait is not None:
        a(f"s_waitcnt vmcnt({vm_wait}) lgkmcnt(0)")
    else:
        a("s_waitcnt lgkmcnt(0)")
    if OPT.get("stampsg"): gstamp(a, 205)
    if not OPT.get("g_nobar"): a("s_barrier")
    if OPT.get("stampsg"):
        gstamp(a, 206)
        a("s_add_u32 s87, s87, 1")
    ex = {0: sp(3)}
    if len(new_batch) > 0: ex[2] = dma_group(new_batch[0])
    if len(new_batch) > 1: ex[4] = dma_group(new_batch[1])
    if not last:
        ex[5] = [f"v_xor_b32 {vr(vXA)}, {1 << 5}, {vr(vXB)}"]
    if after_bar:
        ex[5] = ex.get(5, []) + after_bar
    kstep(a, 1, None if last else 0, ex)

def gemm(a, opt):
    if OPT.get("stampsg"): a("s_mov_b32 s87, 0")
    a(f"s_add_u32 {sr(sXJ)}, {sr(sXJ)}, {2 * 128}")
    a(f"s_add_u32 {sr(sWJ)}, {sr(sWJ)}, {2 * 64 * 6144}")
    a(f"s_mov_b32 {sr(sRING)}, 0")
    for x in read_bases_list(): a(x)
    if opt.get("stamps_start"): timestamp(a, 4, opt)
    nw = 13 if opt.get("warm", 0) else 0
    a(f"s_waitcnt vmcnt({17 + nw})")
    if opt.get("stamps_start"): timestamp(a, 5, opt)
    a("s_barrier")
    if opt.get("dbg_span"): dbg_span(a, "g0")
    if opt.get("stamps_start"): timestamp(a, 6, opt)
    for x in gemm_reads(0, 0):
        a(x)
    a(f"v_xor_b32 {vr(vXA)}, {1 << 5}, {vr(vXB)}")
    gemm_stage(a, [], [0, 1], 10 + nw, first=True)
    a(f"s_mov_b32 {sr(sJ)}, 12")
    lab = a.label("gemm")
    a(".p2align 6")
    a(f"{lab}:")
    gemm_stage(a, [2, 3, 4, 5, 6], [0, 1], 6)
    nc = a.label("nc"); nd = a.label("nd")
    a(f"s_cmp_eq_u32 {sr(sJ)}, {sr(sARRJ)}")
    a(f"s_cbranch_scc0 {nd}")
    a(f"""
    v_mov_b32 v12, 1
    s_mov_b64 exec, 1
    buffer_atomic_add v12, off, {sr(SRD_DBG,4)}, {sr(sCNT)} sc1
    s_mov_b64 exec, -1
    s_nop 3
    """)
    a(f"{nd}:")
    a(f"s_cmp_eq_u32 {sr(sJ)}, {sr(sCHKJ)}")
    a(f"s_cbranch_scc0 {nc}")
    a(f"v_lshlrev_b32 v12, 2, v0")
    a(f"buffer_load_dword {vr(vCHK)}, v12, {sr(SRD_DBG,4)}, 0 offen sc1")
    a(f"{nc}:")
    a(f"s_sub_u32 {sr(sJ)}, {sr(sJ)}, 1")
    a(f"s_cmp_lg_u32 {sr(sJ)}, 0")
    a(f"s_cbranch_scc1 {lab}")
    gc, gs = gate_instrs()
    gemm_stage(a, [2, 3, 4, 5, 6], [0], 6)
    gemm_stage(a, [], [], 0, valu=gc, after_bar=gs + ["s_nop 3"])
    gemm_stage(a, [], [], None, last=True)
    a("s_setprio 0")
    a("s_nop 15")

def gemm_epilogue(a, opt):
    for tile in (2, 3, 4, 5):
        b = ACC + 16 * tile
        for i in range(8):
            a(f"v_cvt_pk_bf16_f32 v{b+i}, v{b+2*i}, v{b+2*i+1}")
    a(f"""
    s_lshl_b32 {sr(sT1)}, {sr(sHP)}, 1
    s_add_u32 {sr(sT1)}, {sr(sT1)}, {sr(sHH)}
    s_lshl_b32 {sr(sKVSRC)}, {sr(sT1)}, 18
    s_lshl_b32 {sr(sT1)}, {sr(sTB)}, 15
    s_lshl_b32 {sr(sT2)}, {sr(sTQ)}, 13
    s_add_u32 {sr(sT1)}, {sr(sT1)}, {sr(sT2)}
    s_add_u32 {sr(sT1)}, {sr(sT1)}, {sr(sKVSRC)}
    s_add_u32 {sr(sT2)}, {sr(sT1)}, 4096
    """)
    for tt in range(2):
        so = sT1 if tt == 0 else sT2
        kb, vb = ACC + 32 + 16 * tt, ACC + 64 + 16 * tt
        a(f"buffer_store_dwordx4 {vr(kb,4)}, {vr(vL16)}, {sr(SRD_WS,4)}, {sr(so)} offen sc1")
        a(f"buffer_store_dwordx4 {vr(kb+4,4)}, {vr(vL16)}, {sr(SRD_WS,4)}, {sr(so)} offen offset:1024 sc1")
        a(f"buffer_store_dwordx4 {vr(vb,4)}, {vr(vL16)}, {sr(SRD_WS,4)}, {sr(so)} offen offset:2048 sc1")
        a(f"buffer_store_dwordx4 {vr(vb+4,4)}, {vr(vL16)}, {sr(SRD_WS,4)}, {sr(so)} offen offset:3072 sc1")
    a(f"s_mov_b32 {sr(sT2)}, {hex(f2u(QSCALE))}")
    a(f"s_mov_b32 {sr(sT3)}, {hex(f2u(QSCALE))}")
    for tt in range(2):
        b = ACC + 16 * tt
        for i in range(8):
            a(f"v_pk_mul_f32 {vr(b+2*i,2)}, {vr(b+2*i,2)}, {sr(sT2,2)}")
        for i in range(8):
            a(f"v_cvt_pk_bf16_f32 v{QF+8*tt+i}, v{b+2*i}, v{b+2*i+1}")
    kb = ACC + 32
    a("s_nop 1")
    for x in range(2):
        S, Q = SS + 16 * x, QF + 8 * x
        a(f"v_mfma_f32_32x32x16_bf16 {vr(S,16)}, {vr(kb,4)}, {vr(Q,4)}, 0")
        a(f"v_mfma_f32_32x32x16_bf16 {vr(S,16)}, {vr(kb+4,4)}, {vr(Q+4,4)}, {vr(S,16)}")
    a(f"""
    s_lshr_b32 {sr(sT1)}, {sr(sTQ)}, 1
    s_lshl_b32 {sr(sT1)}, {sr(sT1)}, 15
    s_lshl_b32 {sr(sT2)}, {sr(sHH)}, 14
    s_add_u32 {sr(sT1)}, {sr(sT1)}, {sr(sT2)}
    s_and_b32 {sr(sT2)}, {sr(sTQ)}, 1
    s_lshl_b32 {sr(sT2)}, {sr(sT2)}, 13
    s_add_u32 {sr(sT1)}, {sr(sT1)}, {sr(sT2)}
    v_add_u32 v12, {sr(sT1)}, {vr(vL16)}
    """)
    for tt in range(2):
        kb, vb = ACC + 32 + 16 * tt, ACC + 64 + 16 * tt
        a(f"ds_write_b128 v12, {vr(kb,4)} offset:{tt*4096}")
        a(f"ds_write_b128 v12, {vr(kb+4,4)} offset:{tt*4096+1024}")
        a(f"ds_write_b128 v12, {vr(vb,4)} offset:{tt*4096+2048}")
        a(f"ds_write_b128 v12, {vr(vb+4,4)} offset:{tt*4096+3072}")
    if opt.get("dump_q"):
        a(f"""
        s_lshl_b32 {sr(sT1)}, s2, 3
        s_add_u32 {sr(sT1)}, {sr(sT1)}, {sr(sW)}
        s_lshl_b32 {sr(sT1)}, {sr(sT1)}, 12
        s_add_u32 {sr(sT1)}, {sr(sT1)}, {WS_DBG}
        """)
        for i in range(4):
            a(f"buffer_store_dwordx4 {vr(QF+4*i,4)}, {vr(vL16)}, {sr(SRD_WS,4)}, {sr(sT1)} offen offset:{i*1024}")

def smf(L):
    return f"v_smfmac_f32_16x16x64_bf16 {vr(L,4)}, {vr(ONES,4)}, {vr(PP,8)}, {vr(IDX)}"

def attn_unit(a, t, x, hooks, skip_prev=False, c_zero=False):
    S = SS + 16 * x
    Sn = SS + 16 * (x ^ 1)
    xn = xp = x ^ 1
    Qn = QF + 8 * xn
    P0, P1 = PP, PP + 4
    def M(d, A, B, C): return f"v_mfma_f32_32x32x16_bf16 {vr(d,16)}, {vr(A,4)}, {vr(B,4)}, {C}"
    e = lambda i: f"v_exp_f32 v{S+i}, v{S+i}"
    c = lambda i: f"v_cvt_pk_bf16_f32 v{PP+i}, v{S+2*i}, v{S+2*i+1}"
    mf = [M(Sn, KF, Qn, vr(NM + 16 * xn, 16)),
          None if skip_prev else M(OA + 16 * xp, VF + 4, P1, vr(OA + 16 * xp, 16)),
          None if skip_prev else smf(LA + 4 * xp),
          M(Sn, KF + 4, Qn + 4, vr(Sn, 16)),
          M(OA + 16 * x, VF, P0, "0" if c_zero else vr(OA + 16 * x, 16))]
    va = [[e(0), e(1), e(2)], [e(3), e(4), e(5)], [e(6), e(7), c(0), c(1), c(2), c(3)],
          [e(8), e(9), e(10)], [e(11), e(12), e(13), e(14), e(15), c(4), c(5), c(6), c(7)]]
    for g in range(5):
        if mf[g]: a(mf[g])
        for h in hooks.get(g, []):
            a(h)
        for v in va[g]:
            a(v)

def kv_addr(tile, f):
    if tile < 4:
        return vCUR, tile * 4096 + f * 1024
    return vNXT, f * 1024

def rd(dst, tile, f):
    b, o = kv_addr(tile, f)
    return f"ds_read_b128 {vr(dst,4)}, {vr(b)} offset:{o}"

def kv_dma(p, so):
    return f"buffer_load_dwordx4 {vr(vDMA)}, {sr(SRD_WS,4)}, {sr(so)} offen offset:{p*1024} sc1 lds"

def poll_mailbox(a, want_all):
    poll, done = a.label("poll"), a.label("pdone")
    a(f"s_mov_b32 {sr(sT1)}, 400000")
    a(f"v_lshlrev_b32 v13, 2, v0")
    a(f"s_add_u32 {sr(sT2)}, {sr(sTB)}, 1")
    a(f"s_and_b32 {sr(sT2)}, {sr(sT2)}, 7")
    a(f"s_lshl_b32 {sr(sT2)}, 1, {sr(sT2)}")
    if want_all:
        a(f"s_mov_b32 {sr(sT2)}, 0xff")
    a("s_mov_b64 exec, 0xff")
    a(f"{poll}:")
    a(f"buffer_load_dword v12, v13, {sr(SRD_WS,4)}, {sr(sMB)} offen sc1")
    a("s_waitcnt vmcnt(0)")
    a("v_cmp_eq_u32 vcc, 1, v12")
    a("s_nop 3")
    a(f"s_and_b32 {sr(sT3)}, vcc_lo, {sr(sT2)}")
    a(f"s_cmp_eq_u32 {sr(sT3)}, {sr(sT2)}")
    a(f"s_cbranch_scc1 {done}")
    a(f"s_sub_u32 {sr(sT1)}, {sr(sT1)}, 1")
    a(f"s_cbranch_scc1 {done}")
    a("s_sleep 1")
    a(f"s_branch {poll}")
    a(f"{done}:")
    a("s_mov_b64 exec, -1")

def publish(a):
    spin, ok = a.label("rdy"), a.label("rdyok")
    a(f"s_mov_b32 {sr(sT1)}, 400000")
    a(f"s_mov_b32 {sr(sT2)}, 0x55555555")
    a(f"v_lshlrev_b32 v12, 2, v0")
    a(f"{spin}:")
    a(f"v_cmp_eq_u32 vcc, 8, {vr(vCHK)}")
    a("s_nop 3")
    a(f"s_and_b32 {sr(sT0)}, vcc_lo, {sr(sT2)}")
    a(f"s_and_b32 {sr(sT3)}, vcc_hi, {sr(sT2)}")
    a(f"s_and_b32 {sr(sT0)}, {sr(sT0)}, {sr(sT3)}")
    a(f"s_cmp_eq_u32 {sr(sT0)}, {sr(sT2)}")
    a(f"s_cbranch_scc1 {ok}")
    a(f"s_sub_u32 {sr(sT1)}, {sr(sT1)}, 1")
    a(f"s_cbranch_scc1 {ok}")
    a(f"buffer_load_dword {vr(vCHK)}, v12, {sr(SRD_DBG,4)}, 0 offen sc1")
    a("s_waitcnt vmcnt(0)")
    a(f"s_branch {spin}")
    a(f"{ok}:")
    a(f"""
    s_lshl_b32 {sr(sT0)}, {sr(sHP)}, 10
    s_lshl_b32 {sr(sT1)}, {sr(sTB)}, 2
    s_add_u32 {sr(sT0)}, {sr(sT0)}, {sr(sT1)}
    s_add_u32 {sr(sT0)}, {sr(sT0)}, {WS_MB}
    v_lshlrev_b32 v12, 7, v0
    v_mov_b32 v13, 1
    s_mov_b64 exec, 0xff
    buffer_store_dword v13, v12, {sr(SRD_WS,4)}, {sr(sT0)} offen sc1
    s_mov_b64 exec, -1
    """)

def wo_piece(i, half):
    return [f"s_add_u32 {sr(sT0)}, {sr(sROT)}, {i}", f"s_and_b32 {sr(sT0)}, {sr(sT0)}, 15", f"s_lshl_b32 {sr(sT0)}, {sr(sT0)}, 17",
            f"s_add_u32 {sr(sT0)}, {sr(sT0)}, {sr(sWOFF)}"] + ([f"s_add_u32 {sr(sT0)}, {sr(sT0)}, 16384"] if half else []) + \
           [f"s_add_u32 m0, {sr(sLDSW3)}, {(i % NSLOT3) * 16384 + half * 1024}", "s_nop 0",
            f"buffer_load_dwordx4 {vr(vDW3)}, {sr(SRD_WO,4)}, {sr(sT0)} offen lds"]

def attn_stage(a, opt, kind, s_=None):
    prio = opt.get("prio", 1)
    def sp(n): return [f"s_setprio {n}"] if prio else []
    for t in range(4):
        h0 = {0: [rd(KF, t + 1, 0)], 1: [rd(VF + 4, t, 3)], 2: ["s_waitcnt lgkmcnt(2)"],
              3: [rd(KF + 4, t + 1, 1)], 4: ["s_waitcnt lgkmcnt(2)"]}
        h1 = {0: ["s_waitcnt lgkmcnt(1)"], 1: [], 2: ["s_waitcnt lgkmcnt(0)"], 3: [], 4: [rd(VF, t + 1, 2)]}
        if t == 0:
            h0[0] += sp(2)
            h0[4] += [f"s_mov_b32 {sr(sNXT)}, {sr(sSLOT)}"]
            h1[1] = [f"s_add_u32 {sr(sSRC)}, {sr(sSRC)}, 16384"]
            h1[3] = [f"s_and_b32 {sr(sSRC)}, {sr(sSRC)}, 0x3ffff"]
        if t == 1:
            h0[0] += sp(1)
            h1[1] = [f"s_add_u32 {sr(sSLOT)}, {sr(sSLOT)}, 32768"]
            h1[3] = [f"s_and_b32 {sr(sSLOT)}, {sr(sSLOT)}, 0x1ffff"]
            if kind == 0:
                h1[4] += ["s_waitcnt vmcnt(0)", "s_barrier"]
            if kind == 3 and s_ == 13:
                h0[2] += wo_piece(8, 0)
                h0[4] += wo_piece(8, 1)
                h1[0] += wo_piece(9, 0)
                h1[2] += wo_piece(9, 1)
            if kind == 1:
                go = a.label("go")
                lanestamp(a, 203, opt, 0)
                a(f"s_cmp_eq_u32 {sr(sW)}, 0")
                a(f"s_cbranch_scc0 {go}")
                poll_mailbox(a, False)
                a(f"{go}:")
                lanestamp(a, 203, opt, 1)
                a("s_barrier")
                lanestamp(a, 203, opt, 2)
                for st in (2, 3):
                    a(f"""
                    s_lshl_b32 {sr(sT0)}, {sr(sTB)}, 1
                    s_add_u32 {sr(sT0)}, {sr(sT0)}, {st}
                    s_and_b32 {sr(sT0)}, {sr(sT0)}, 15
                    s_lshl_b32 {sr(sOFFS)}, {sr(sT0)}, 14
                    s_add_u32 m0, {sr(sLDSW)}, {st * 32768}
                    s_nop 0
                    """)
                    for p in range(4):
                        a(kv_dma(p, sOFFS))
        if t == 2:
            h0[0] += sp(0)
            h1[1] = [f"s_add_u32 m0, {sr(sSLOT)}, {sr(sLDSW)}"]
            h1[3] = [f"s_add_u32 {sr(sJ)}, {sr(sJ)}, 1"]
            if kind == 0:
                h1[4] += ["s_barrier"] + sp(3)
                np_ = a.label("np")
                a(f"s_cmp_eq_u32 {sr(sW)}, 0")
                a(f"s_cbranch_scc0 {np_}")
                publish(a)
                a(f"{np_}:")
            elif kind == 3 and s_ == 15:
                h1[4] += ["s_barrier"] + sp(3)
            elif kind == 3:
                h1[4] += ["s_waitcnt vmcnt(8)", "s_barrier"] + sp(3)
            elif kind != 1:
                h1[4] += ["s_waitcnt vmcnt(4)", "s_barrier"] + sp(3)
        if t == 3:
            if kind == 3:
                q = s_ - 13
                h0[2] += wo_piece(2 * q, 0)
                h0[4] += wo_piece(2 * q, 1)
                h1[1] = wo_piece(2 * q + 1, 0)
                h1[3] = wo_piece(2 * q + 1, 1)
            elif kind != 0:
                h0[2] += [kv_dma(0, sSRC)]
                h0[4] += [kv_dma(1, sSRC)]
                h1[1] = [kv_dma(2, sSRC)]
                h1[3] = [kv_dma(3, sSRC)]
            if kind == 1:
                go = a.label("go")
                a(f"s_cmp_eq_u32 {sr(sW)}, 0")
                a(f"s_cbranch_scc0 {go}")
                poll_mailbox(a, True)
                a(f"{go}:")
                a("s_waitcnt vmcnt(4)")
                a("s_barrier")
                for x in sp(3): a(x)
        first = kind == 0 and t == 0
        attn_unit(a, t, 0, h0, skip_prev=first, c_zero=first)
        attn_unit(a, t, 1, h1, c_zero=first)
    a(f"v_mov_b32 {vr(vCUR)}, {vr(vNXT)}")
    a(f"v_add_u32 {vr(vNXT)}, {sr(sNXT)}, {vr(vKVB)}")

def attention(a, opt):
    a(f"""
    v_bfe_u32 v12, v0, 2, 1
    v_and_b32 v13, 3, v0
    v_mov_b32 v14, 0x3f803f80
    v_cmp_gt_u32 vcc, 2, v13
    s_nop 1
    v_cndmask_b32 v14, 0, v14, vcc
    v_cmp_eq_u32 vcc, 0, v12
    s_nop 1
    v_cndmask_b32 v{ONES}, 0, v14, vcc
    v_cndmask_b32 v{ONES+2}, v14, 0, vcc
    v_mov_b32 v{ONES+1}, v{ONES}
    v_mov_b32 v{ONES+3}, v{ONES+2}
    v_mov_b32 v14, 0x4444
    v_mov_b32 v12, 0xeeee
    v_cmp_eq_u32 vcc, 1, v13
    s_nop 1
    v_cndmask_b32 v{IDX}, v14, v12, vcc
    s_lshl_b32 {sr(sT0)}, {sr(sHH)}, 14
    v_add_u32 {vr(vKVB)}, {sr(sT0)}, {vr(vL16)}
    v_mov_b32 {vr(vCUR)}, {vr(vKVB)}
    v_add_u32 {vr(vNXT)}, 32768, {vr(vKVB)}
    s_lshl_b32 {sr(sT1)}, {sr(sTQ)}, 12
    s_add_u32 {sr(sLDSW)}, {sr(sT0)}, {sr(sT1)}
    s_add_u32 {sr(sKVSRC)}, {sr(sKVSRC)}, {sr(sT1)}
    v_add_u32 {vr(vDMA)}, {sr(sKVSRC)}, {vr(vL16)}
    s_lshl_b32 {sr(sSRC)}, {sr(sTB)}, 1
    s_add_u32 {sr(sSRC)}, {sr(sSRC)}, 2
    s_and_b32 {sr(sSRC)}, {sr(sSRC)}, 15
    s_lshl_b32 {sr(sSRC)}, {sr(sSRC)}, 14
    s_mov_b32 {sr(sSLOT)}, {2 * 32768}
    s_mov_b32 {sr(sJ)}, 0
    v_lshrrev_b32 v12, 3, v0
    v_and_b32 v13, 7, v0
    v_bfe_u32 v14, v12, 1, 1
    v_lshlrev_b32 v14, 2, v14
    v_xor_b32 v13, v13, v14
    s_lshl_b32 {sr(sT0)}, {sr(sTQ)}, 4
    v_add_u32 v12, {sr(sT0)}, v12
    v_lshlrev_b32 {vr(vDW3)}, 11, v12
    v_lshl_add_u32 {vr(vDW3)}, v13, 4, {vr(vDW3)}
    s_lshl_b32 {sr(sWOFF)}, {sr(sCB)}, 7
    s_lshl_b32 {sr(sLDSW3)}, {sr(sHH)}, 13
    s_lshl_b32 {sr(sT0)}, {sr(sTQ)}, 11
    s_add_u32 {sr(sLDSW3)}, {sr(sLDSW3)}, {sr(sT0)}
    """)
    for i in range(8): a(f"v_mov_b32 v{LA+i}, 0")
    for x in range(2):
        S = SS + 16 * x
        a(f"v_max3_f32 v12, v{S}, v{S+1}, v{S+2}")
        for i in range(3, 15, 2):
            a(f"v_max3_f32 v12, v12, v{S+i}, v{S+i+1}")
        a(f"v_max_f32 v12, v12, v{S+15}")
        a(f"""
        v_mov_b32 v13, v12
        s_nop 1
        v_permlane32_swap_b32 v13, v12
        s_nop 1
        v_max_f32 v12, v12, v13
        v_sub_f32 v12, 0, v12
        """)
        for i in range(16):
            a(f"v_mov_b32 v{NM+16*x+i}, v12")
    a("s_waitcnt lgkmcnt(0)")
    a("s_barrier")
    a(rd(KF, 0, 0)); a(rd(KF + 4, 0, 1)); a(rd(VF, 0, 2))
    a("s_waitcnt lgkmcnt(1)")
    a(f"v_mfma_f32_32x32x16_bf16 {vr(SS,16)}, {vr(KF,4)}, {vr(QF,4)}, {vr(NM,16)}")
    a(f"v_mfma_f32_32x32x16_bf16 {vr(SS,16)}, {vr(KF+4,4)}, {vr(QF+4,4)}, {vr(SS,16)}")
    lanestamp(a, 203, opt, 3)
    a("s_waitcnt lgkmcnt(0)")
    a("s_nop 15")
    attn_stage(a, opt, 0)
    lanestamp(a, 202, opt, 0)
    attn_stage(a, opt, 1)
    lanestamp(a, 202, opt, 1)
    loop = a.label("attn")
    a(".p2align 6")
    a(f"{loop}:")
    attn_stage(a, opt, 2)
    lanestamp(a, 202, opt, "m")
    a(f"s_cmp_lt_u32 {sr(sJ)}, 13")
    a(f"s_cbranch_scc1 {loop}")
    for s_ in (13, 14, 15):
        attn_stage(a, opt, 3, s_)
        lanestamp(a, 202, opt, s_)
    a("s_setprio 0")
    a("s_nop 1")
    a(f"v_mfma_f32_32x32x16_bf16 {vr(OA+16,16)}, {vr(VF+4,4)}, {vr(PP+4,4)}, {vr(OA+16,16)}")
    a(smf(LA + 4))
    a("s_waitcnt lgkmcnt(0)")

def attn_epilogue(a, opt):
    a(f"""
    s_lshl_b32 {sr(sT0)}, {sr(sTB)}, 3
    s_lshl_b32 {sr(sT1)}, {sr(sTQ)}, 1
    s_add_u32 {sr(sT0)}, {sr(sT0)}, {sr(sT1)}
    s_lshl_b32 {sr(sT0)}, {sr(sT0)}, 17
    s_lshl_b32 {sr(sT1)}, {sr(sHP)}, 1
    s_add_u32 {sr(sT1)}, {sr(sT1)}, {sr(sHH)}
    s_lshl_b32 {sr(sT1)}, {sr(sT1)}, 11
    s_add_u32 {sr(sT0)}, {sr(sT0)}, {sr(sT1)}
    s_add_u32 {sr(sOOFF)}, {sr(sT0)}, {WS_O}
    s_mov_b32 {sr(sT2)}, {hex(f2u(2.0**24))}
    s_nop 7
    """)
    ok = a.label("ok")
    a("v_mov_b32 v12, 0")
    a("v_mov_b32 v13, 0")
    a(f"v_add_f32 v{LA}, v{LA}, v{LA+1}")
    a(f"v_add_f32 v{LA+4}, v{LA+4}, v{LA+5}")
    for i in range(16):
        a(f"v_pk_fma_f32 v[12:13], {vr(OA+2*i,2)}, 0, v[12:13] op_sel_hi:[1,0,1]")
    a(f"v_cmp_nle_f32 {sr(sM,2)}, v{LA}, {sr(sT2)}")
    a(f"v_cmp_nle_f32 {sr(sM2,2)}, v{LA+4}, {sr(sT2)}")
    a("v_cmp_u_f32 vcc, v12, v13")
    a(f"s_or_b64 {sr(sM,2)}, {sr(sM,2)}, {sr(sM2,2)}")
    a(f"s_or_b64 {sr(sM,2)}, {sr(sM,2)}, vcc")
    if opt.get("force_fallback"):
        a(f"s_mov_b64 {sr(sM,2)}, -1")
    a(f"s_cmp_eq_u64 {sr(sM,2)}, 0")
    a(f"s_cbranch_scc1 {ok}")
    fallback(a, opt)
    a(f"{ok}:")
    a(f"v_rcp_f32 v12, v{LA}")
    a(f"v_rcp_f32 v14, v{LA+4}")
    for x in range(2):
        r = (12, 14)[x]
        a(f"v_mov_b32 v{r+1}, v{r}" if x == 1 else f"v_mov_b32 v13, v12")
        b = OA + 16 * x
        for i in range(8):
            a(f"v_pk_mul_f32 {vr(b+2*i,2)}, {vr(b+2*i,2)}, {vr(r,2)}")
        for i in range(8):
            a(f"v_cvt_pk_bf16_f32 v{b+i}, v{b+2*i}, v{b+2*i+1}")
        if x == 1:
            a(f"s_add_u32 {sr(sOOFF)}, {sr(sOOFF)}, 131072")
        a(f"buffer_store_dwordx4 {vr(b,4)}, {vr(vL16)}, {sr(SRD_WS,4)}, {sr(sOOFF)} offen sc1")
        a(f"buffer_store_dwordx4 {vr(b+4,4)}, {vr(vL16)}, {sr(SRD_WS,4)}, {sr(sOOFF)} offen offset:1024 sc1")

def phase3(a, opt):
    vm = VmTracker()
    ACC3, AF, OF, DEPTH, NSLOT = 16, 48, 72, opt.get("depth", 16), NSLOT3
    vRD = [7, 8, 9, 11, 4, 5]
    vG, vOUT = 14, 13
    a("s_waitcnt vmcnt(0)")
    a("s_barrier")
    timestamp(a, 4, opt)
    np_ = a.label("np3")
    a(f"s_cmp_eq_u32 {sr(sW)}, 0")
    a(f"s_cbranch_scc0 {np_}")
    a(f"""
    s_lshl_b32 {sr(sT0)}, {sr(sTB)}, 12
    s_lshl_b32 {sr(sT1)}, {sr(sHP)}, 2
    s_add_u32 {sr(sT0)}, {sr(sT0)}, {sr(sT1)}
    s_add_u32 {sr(sT0)}, {sr(sT0)}, {WS_MB2}
    v_lshlrev_b32 v12, 7, v0
    v_mov_b32 v15, 1
    s_mov_b32 exec_lo, -1
    s_mov_b32 exec_hi, 0
    buffer_store_dword v15, v12, {sr(SRD_WS,4)}, {sr(sT0)} offen sc1
    s_mov_b64 exec, -1
    """)
    poll = a.label("poll3"); done = a.label("pd3")
    a(f"s_mov_b32 {sr(sT1)}, 400000")
    a(f"v_lshlrev_b32 v12, 2, v0")
    a("s_mov_b32 exec_lo, -1")
    a("s_mov_b32 exec_hi, 0")
    a(f"{poll}:")
    a(f"buffer_load_dword v15, v12, {sr(SRD_WS,4)}, {sr(sMB2)} offen sc1")
    a("s_waitcnt vmcnt(0)")
    a("v_cmp_eq_u32 vcc, 1, v15")
    a("s_nop 3")
    a("s_cmp_eq_u32 vcc_lo, -1")
    a(f"s_cbranch_scc1 {done}")
    a(f"s_sub_u32 {sr(sT1)}, {sr(sT1)}, 1")
    a(f"s_cbranch_scc1 {done}")
    a("s_sleep 1")
    a(f"s_branch {poll}")
    a(f"{done}:")
    a("s_mov_b64 exec, -1")
    a(f"{np_}:")
    def wdma(i):
        for half in range(2):
            for x in wo_piece(i, half): a(x)
            vm.issue(("w", i))
    wdma(6); wdma(7)
    a(f"""
    v_and_b32 v12, 31, v0
    s_lshl_b32 {sr(sT0)}, {sr(sTB3)}, 7
    s_lshl_b32 {sr(sT2)}, {sr(sTQ)}, 5
    s_add_u32 {sr(sT0)}, {sr(sT0)}, {sr(sT2)}
    v_add_u32 v12, {sr(sT0)}, v12                  ; token
    v_lshlrev_b32 v3, 2, v12
    v_lshrrev_b32 {vr(vG)}, 5, v0                  ; h
    v_lshlrev_b32 {vr(vOUT)}, 11, v12
    v_lshl_add_u32 {vr(vOUT)}, {vr(vG)}, 4, {vr(vOUT)}
    v_bfe_u32 v15, v0, 2, 2                        ; r
    v_lshl_add_u32 v12, {vr(vG)}, 2, v15           ; 4h + r
    v_lshlrev_b32 v2, 7, v12
    v_and_b32 v12, 1, v0                           ; h'
    v_bfe_u32 v1, v0, 1, 1                         ; a
    v_bfe_u32 v5, v0, 4, 1                         ; g
    v_lshl_add_u32 v12, v5, 1, v12                 ; chunk16 = 2g + h'
    v_lshrrev_b32 v15, 1, v15
    v_lshlrev_b32 v15, 2, v15
    v_xor_b32 v12, v12, v15
    v_lshl_add_u32 v2, v12, 4, v2
    v_lshl_add_u32 v2, v1, 3, v2
    s_lshl_b32 {sr(sT0)}, {sr(sHH)}, 13
    v_add_u32 v{vRD[0]}, {sr(sT0)}, v2
    v_xor_b32 v{vRD[1]}, 64, v{vRD[0]}
    v_add_u32 v{vRD[2]}, 0x10000, v{vRD[0]}
    v_add_u32 v{vRD[3]}, 0x10000, v{vRD[1]}
    v_add_u32 v{vRD[4]}, 0x20000, v{vRD[0]}
    v_add_u32 v{vRD[5]}, 0x20000, v{vRD[1]}
    s_lshl_b32 {sr(sT0)}, {sr(sTB3)}, 2
    s_add_u32 {sr(sT0)}, {sr(sT0)}, {sr(sTQ)}
    s_lshl_b32 {sr(sAOFF)}, {sr(sT0)}, 17
    s_lshl_b32 {sr(sT1)}, {sr(sHH)}, 16
    s_add_u32 {sr(sAOFF)}, {sr(sAOFF)}, {sr(sT1)}
    s_add_u32 {sr(sAOFF)}, {sr(sAOFF)}, {WS_O}
    """)
    a("s_barrier")
    timestamp(a, 5, opt)
    if opt.get("dbg_span"): dbg_span(a, "e3")
    def oload(kk):
        d = kk % DEPTH
        if kk % 4 == 0:
            a(f"s_add_u32 {sr(sT1)}, {sr(sROT)}, {kk // 4}")
            a(f"s_and_b32 {sr(sT1)}, {sr(sT1)}, 15")
            a(f"s_lshl_b32 {sr(sT1)}, {sr(sT1)}, 12")
            a(f"s_add_u32 {sr(sT1)}, {sr(sT1)}, {sr(sAOFF)}")
        if opt.get("p3_noload") and kk >= DEPTH: return
        sc = "" if opt.get("p3_plain") else " sc1"
        a(f"buffer_load_dwordx4 {vr(OF+4*d,4)}, {vr(vL16)}, {sr(SRD_WS,4)}, {sr(sT1)} offen offset:{(kk%4)*1024}{sc}")
        vm.issue(("o", kk))
    for kk in range(DEPTH): oload(kk)
    a(f"s_mov_b32 {sr(sT2)}, {WS_G}")
    a(f"buffer_load_dword {vr(vG)}, v3, {sr(SRD_WS,4)}, {sr(sT2)} offen sc1")
    vm.issue(("g", 0))
    def wreads(st, ks, set_):
        r = []
        slot = st % NSLOT
        win, off = divmod(slot * 16384, 65536)
        for ct in range(2):
            base = AF + 8 * set_ + 4 * ct
            reg = vRD[2 * win + ct]
            r.append(f"ds_read_b64_tr_b16 {vr(base,2)}, {vr(reg)} offset:{off + ks*2048}")
            r.append(f"ds_read_b64_tr_b16 {vr(base+2,2)}, {vr(reg)} offset:{off + ks*2048+1024}")
        return r
    def wr(kk): return wreads(kk // 4, kk % 4, kk % 3)
    for x in wr(0) + wr(1): a(x)
    pend = []
    for st in range(16):
        for ks in range(4):
            kk = 4 * st + ks
            d = kk % DEPTH
            cur = kk % 3
            bar = ks == 2 and st in (5, 9)
            if bar:
                need = ("w", 7) if st == 5 else ("w", 15)
                n = vm.wait_count(lambda t: t in (need, ("o", kk)))
                a(f"s_waitcnt vmcnt({n}) lgkmcnt(0)")
                a("s_barrier")
                if st == 5:
                    pend = [(i, h) for i in range(10, 16) for h in range(2)]
            else:
                n = vm.wait_count(lambda t: t == ("o", kk))
                a(f"s_waitcnt vmcnt({n}) lgkmcnt({4 if kk < 63 else 0})")
            nxt = wr(kk + 2) if kk + 2 < 64 else []
            for ct in range(2):
                c = "0" if kk == 0 else vr(ACC3+16*ct,16)
                a(f"v_mfma_f32_32x32x16_bf16 {vr(ACC3+16*ct,16)}, {vr(AF+8*cur+4*ct,4)}, {vr(OF+4*d,4)}, {c}")
                for x in nxt[2*ct:2*ct+2]: a(x)
            if kk + DEPTH < 64:
                oload(kk + DEPTH)
            for i, h in pend[:2]:
                if opt.get("p3_nowo"): continue
                for x in wo_piece(i, h): a(x)
                vm.issue(("w", i))
            pend = pend[2:]
    timestamp(a, 6, opt)
    XA = 6 * 16384
    a(f"""
    s_lshl_b32 {sr(sT0)}, {sr(sTQ)}, 12
    s_lshl_b32 {sr(sT1)}, {sr(sHH)}, 11
    s_add_u32 {sr(sT2)}, {sr(sT0)}, {sr(sT1)}
    s_xor_b32 {sr(sT1)}, {sr(sT1)}, 2048
    s_add_u32 {sr(sT3)}, {sr(sT0)}, {sr(sT1)}
    s_add_u32 {sr(sT2)}, {sr(sT2)}, {XA}
    s_add_u32 {sr(sT3)}, {sr(sT3)}, {XA}
    v_add_u32 v12, {sr(sT2)}, {vr(vL16)}
    v_add_u32 v1, {sr(sT3)}, {vr(vL16)}
    v_sub_f32 v2, 1.0, {vr(vG)}
    v_cvt_pk_bf16_f32 v2, v2, v2
    v_lshlrev_b32 v2, 16, v2
    s_lshl_b32 {sr(sT0)}, {sr(sCB)}, 7
    s_lshl_b32 {sr(sT1)}, {sr(sHH)}, 6
    s_add_u32 {sr(sT0)}, {sr(sT0)}, {sr(sT1)}
    """)
    brb, fin = a.label("brb"), a.label("fin")
    a(f"s_cmp_eq_u32 {sr(sHH)}, 0")
    a(f"s_cbranch_scc0 {brb}")
    for br in range(2):
        K, S_ = ACC3 + 16 * br, ACC3 + 16 * (br ^ 1)
        own, rcv = (vG, 2) if br == 0 else (2, vG)
        a(f"v_mov_b32 v60, v{own}\nv_mov_b32 v61, v{own}\nv_mov_b32 v62, v{rcv}\nv_mov_b32 v63, v{rcv}")
        for i in range(8):
            a(f"v_cvt_pk_bf16_f32 v{48+i}, v{S_+2*i}, v{S_+2*i+1}")
        a("ds_write_b128 v12, v[48:51]")
        a("ds_write_b128 v12, v[52:55] offset:1024")
        a("s_waitcnt lgkmcnt(0)")
        a("s_barrier")
        a("ds_read_b128 v[48:51], v1")
        a("ds_read_b128 v[52:55], v1 offset:1024")
        for i in range(8):
            if i == 0: a("s_waitcnt lgkmcnt(1)")
            if i == 4: a("s_waitcnt lgkmcnt(0)")
            a(f"v_lshlrev_b32 v56, 16, v{48+i}")
            a(f"v_and_b32 v57, 0xffff0000, v{48+i}")
            a(f"v_pk_mul_f32 v[56:57], v[56:57], v[62:63]")
            a(f"v_pk_fma_f32 v[56:57], {vr(K+2*i,2)}, v[60:61], v[56:57]")
            if opt.get("perturb") and br == 0 and i == 0:
                a(f"s_cmp_eq_u32 s2, 0")
                a(f"s_cselect_b32 {sr(sT1)}, {hex(f2u(opt['perturb']))}, 0")
                a(f"s_cmp_eq_u32 {sr(sW)}, 0")
                a(f"s_cselect_b32 {sr(sT1)}, {sr(sT1)}, 0")
                a(f"v_mov_b32 v58, {sr(sT1)}")
                a(f"v_cmp_eq_u32 vcc, 0, v0")
                a("s_nop 1")
                a(f"v_cndmask_b32 v58, 0, v58, vcc")
                a(f"v_add_f32 v56, v56, v58")
            a(f"v_cvt_pk_bf16_f32 v{K+i}, v56, v57")
            if i == 3:
                a(f"buffer_store_dwordx4 {vr(K,4)}, {vr(vOUT)}, {sr(SRD_OUT,4)}, {sr(sT0)} offen")
        a(f"buffer_store_dwordx4 {vr(K+4,4)}, {vr(vOUT)}, {sr(SRD_OUT,4)}, {sr(sT0)} offen offset:32")
        if br == 0:
            a(f"s_branch {fin}")
            a(f"{brb}:")
    a(f"{fin}:")

def fallback(a, opt):
    MX = NM
    a(f"s_lshl_b32 {sr(sT0)}, {sr(sHP)}, 1")
    a(f"s_add_u32 {sr(sT0)}, {sr(sT0)}, {sr(sHH)}")
    a(f"s_lshl_b32 {sr(sBLK)}, {sr(sT0)}, 18")
    for i in range(32): a(f"v_mov_b32 v{OA+i}, 0")
    for i in range(8): a(f"v_mov_b32 v{LA+i}, 0")
    a(f"v_mov_b32 v{MX}, 0xff800000")
    a(f"v_mov_b32 v{MX+16}, 0xff800000")
    a(f"s_mov_b32 {sr(sJ)}, 0")
    loop = a.label("fb")
    a(f"{loop}:")
    a(f"buffer_load_dwordx4 {vr(KF,4)}, {vr(vL16)}, {sr(SRD_WS,4)}, {sr(sBLK)} offen sc1")
    a(f"buffer_load_dwordx4 {vr(KF+4,4)}, {vr(vL16)}, {sr(SRD_WS,4)}, {sr(sBLK)} offen offset:1024 sc1")
    a(f"buffer_load_dwordx4 {vr(VF,4)}, {vr(vL16)}, {sr(SRD_WS,4)}, {sr(sBLK)} offen offset:2048 sc1")
    a(f"buffer_load_dwordx4 {vr(VF+4,4)}, {vr(vL16)}, {sr(SRD_WS,4)}, {sr(sBLK)} offen offset:3072 sc1")
    a("s_waitcnt vmcnt(0)")
    for x in range(2):
        S, Q, O, L, mx = SS, QF + 8 * x, OA + 16 * x, LA + 4 * x, MX + 16 * x
        a(f"v_mfma_f32_32x32x16_bf16 {vr(S,16)}, {vr(KF,4)}, {vr(Q,4)}, 0")
        a(f"v_mfma_f32_32x32x16_bf16 {vr(S,16)}, {vr(KF+4,4)}, {vr(Q+4,4)}, {vr(S,16)}")
        a("s_nop 15")
        a(f"v_max3_f32 v12, v{S}, v{S+1}, v{S+2}")
        for i in range(3, 15, 2):
            a(f"v_max3_f32 v12, v12, v{S+i}, v{S+i+1}")
        a(f"v_max_f32 v12, v12, v{S+15}")
        a(f"""
        v_mov_b32 v13, v12
        s_nop 1
        v_permlane32_swap_b32 v13, v12
        s_nop 1
        v_max3_f32 v12, v12, v13, v{mx}
        v_sub_f32 v13, v{mx}, v12
        v_cmp_eq_f32 vcc, v{mx}, v12
        v_exp_f32 v13, v13
        s_nop 1
        v_cndmask_b32 v13, v13, 1.0, vcc
        v_mov_b32 v{mx}, v12
        """)
        for i in range(16):
            a(f"v_mul_f32 v{O+i}, v13, v{O+i}")
        for i in range(4):
            a(f"v_mul_f32 v{L+i}, v13, v{L+i}")
        for i in range(16):
            a(f"v_sub_f32 v{S+i}, v{S+i}, v12")
        for i in range(16):
            a(f"v_exp_f32 v{S+i}, v{S+i}")
        a("s_nop 0")
        for i in range(8):
            a(f"v_cvt_pk_bf16_f32 v{PP+i}, v{S+2*i}, v{S+2*i+1}")
        a("s_nop 1")
        a(f"v_mfma_f32_32x32x16_bf16 {vr(O,16)}, {vr(VF,4)}, {vr(PP,4)}, {vr(O,16)}")
        a(f"v_mfma_f32_32x32x16_bf16 {vr(O,16)}, {vr(VF+4,4)}, {vr(PP+4,4)}, {vr(O,16)}")
        a(smf(L))
        a("s_nop 15")
    a(f"s_add_u32 {sr(sBLK)}, {sr(sBLK)}, 4096")
    a(f"s_add_u32 {sr(sJ)}, {sr(sJ)}, 1")
    a(f"s_cmp_lt_u32 {sr(sJ)}, 64")
    a(f"s_cbranch_scc1 {loop}")
    a(f"v_add_f32 v{LA}, v{LA}, v{LA+1}")
    a(f"v_add_f32 v{LA+4}, v{LA+4}, v{LA+5}")

def gstamp(a, reg):
    a("s_memtime s[70:71]")
    a("s_waitcnt lgkmcnt(0)")
    a("s_mov_b32 s69, m0")
    a("s_mov_b32 m0, s87")
    a(f"v_writelane_b32 v{reg-100}, s70, m0")
    a("s_mov_b32 m0, s69")

def lanestamp(a, reg, opt, lane=None):
    if not opt.get("stamps2"):
        return
    a("s_memtime s[70:71]")
    a("s_waitcnt lgkmcnt(0)")
    if lane == "m":
        a(f"s_mov_b32 s69, m0")
        a(f"s_sub_u32 m0, {sr(sJ)}, 1")
        a(f"v_writelane_b32 v{reg}, s70, m0")
        a(f"s_mov_b32 m0, s69")
    elif lane is None:
        a(f"s_mov_b32 s69, m0")
        a(f"s_mov_b32 m0, {sr(sJ)}")
        a(f"v_writelane_b32 v{reg}, s70, m0")
        a(f"s_mov_b32 m0, s69")
    else:
        a(f"v_writelane_b32 v{reg}, s70, {lane}")

def timestamp(a, idx, opt):
    if not opt.get("stamps"):
        return
    a(f"s_memtime s[70:71]")
    a(f"s_memrealtime s[92:93]")
    a("s_waitcnt lgkmcnt(0)")
    a(f"s_mov_b32 s{72+idx}, s70")
    a(f"s_mov_b32 s{80+idx}, s92")

def stamps_out(a, n, opt):
    if opt.get("stampsg"):
        a(f"""
        s_lshl_b32 {sr(sT1)}, s2, 3
        s_add_u32 {sr(sT1)}, {sr(sT1)}, {sr(sW)}
        s_lshl_b32 {sr(sT1)}, {sr(sT1)}, 10
        s_add_u32 {sr(sT1)}, {sr(sT1)}, {WS_DBG + (12 << 20)}
        v_lshlrev_b32 v12, 2, v0
        buffer_store_dword v104, v12, {sr(SRD_WS,4)}, {sr(sT1)} offen
        buffer_store_dword v105, v12, {sr(SRD_WS,4)}, {sr(sT1)} offen offset:256
        buffer_store_dword v106, v12, {sr(SRD_WS,4)}, {sr(sT1)} offen offset:512
        """)
    if opt.get("stamps2"):
        a(f"""
        s_lshl_b32 {sr(sT1)}, s2, 3
        s_add_u32 {sr(sT1)}, {sr(sT1)}, {sr(sW)}
        s_lshl_b32 {sr(sT1)}, {sr(sT1)}, 10
        s_add_u32 {sr(sT1)}, {sr(sT1)}, {WS_DBG + (10 << 20)}
        v_lshlrev_b32 v12, 2, v0
        buffer_store_dword v200, v12, {sr(SRD_WS,4)}, {sr(sT1)} offen
        buffer_store_dword v201, v12, {sr(SRD_WS,4)}, {sr(sT1)} offen offset:256
        buffer_store_dword v202, v12, {sr(SRD_WS,4)}, {sr(sT1)} offen offset:512
        buffer_store_dword v203, v12, {sr(SRD_WS,4)}, {sr(sT1)} offen offset:768
        """)
    if not opt.get("stamps"):
        return
    a(f"""
    s_lshl_b32 {sr(sT1)}, s2, 3
    s_add_u32 {sr(sT1)}, {sr(sT1)}, {sr(sW)}
    s_lshl_b32 {sr(sT1)}, {sr(sT1)}, 6
    s_add_u32 {sr(sT1)}, {sr(sT1)}, {WS_DBG + (8 << 20)}
    v_mov_b32 v13, 0
    """)
    for i in range(n):
        a(f"v_writelane_b32 v13, s{72+i}, {i}")
        a(f"v_writelane_b32 v13, s{80+i}, {8+i}")
    a(f"""
    v_lshlrev_b32 v12, 2, v0
    v_cmp_gt_u32 vcc, 16, v0
    s_and_saveexec_b64 {sr(sM,2)}, vcc
    buffer_store_dword v13, v12, {sr(SRD_WS,4)}, {sr(sT1)} offen
    s_mov_b64 exec, {sr(sM,2)}
    """)

def dbg_span(a, which):
    w = {"start": 4, "gemm": 12, "attn": 20, "end": 28, "e3": 36, "g0": 44, "hook": 52}[which]
    sk = a.label("sk")
    a(f"s_cmp_eq_u32 {sr(sW)}, 0")
    a(f"s_cbranch_scc0 {sk}")
    a("s_memrealtime s[92:93]")
    a("s_waitcnt lgkmcnt(0)")
    a(f"v_mov_b32 v12, s92")
    a(f"s_mov_b32 s93, {w}")
    a("s_mov_b64 exec, 1")
    a(f"buffer_atomic_umax v12, off, {sr(SRD_DBG,4)}, s93 sc1")
    a("s_mov_b64 exec, -1")
    a(f"{sk}:")

OPT = {}
def k12(opt):
    OPT.clear(); OPT.update(opt)
    a = Asm()
    a(f".globl {NAME12}\n.p2align 8\n.type {NAME12},@function\n{NAME12}:")
    timestamp(a, 0, opt)
    if opt.get("dbg_span"):
        a("s_memrealtime s[84:85]")
    prologue(a, opt)
    if opt.get("dbg_span"):
        sk = a.label("sk")
        a(f"s_cmp_eq_u32 {sr(sW)}, 0")
        a(f"s_cbranch_scc0 {sk}")
        a("s_waitcnt lgkmcnt(0)")
        a("s_not_b32 s84, s84")
        a("v_mov_b32 v12, s84")
        a("s_mov_b32 s93, 4")
        a("s_mov_b64 exec, 1")
        a(f"buffer_atomic_umax v12, off, {sr(SRD_DBG,4)}, s93 sc1")
        a("s_mov_b64 exec, -1")
        a(f"{sk}:")
    gemm(a, opt)
    if opt.get("dbg_span"): dbg_span(a, "gemm")
    if opt.get("stamps_start"):
        timestamp(a, 7, opt)
        opt = dict(opt); opt["stamps"] = 0
        gemm_epilogue(a, opt)
        a("s_waitcnt vmcnt(0) lgkmcnt(0)")
        opt["stamps"] = 1
        stamps_out(a, 8, opt)
        a("L_end12:\ns_endpgm")
        return a.text()
    timestamp(a, 1, opt)
    gemm_epilogue(a, opt)
    if opt.get("stop_after_gemm"):
        a("s_waitcnt vmcnt(0) lgkmcnt(0)")
        timestamp(a, 2, opt)
        stamps_out(a, 3, opt)
    else:
        timestamp(a, 2, opt)
        attention(a, opt)
        timestamp(a, 3, opt)
        if opt.get("dbg_span"): dbg_span(a, "attn")
        attn_epilogue(a, opt)
        if opt.get("fused"):
            phase3(a, opt)
            if opt.get("stamps"):
                a("s_waitcnt vmcnt(0)")
                timestamp(a, 7, opt)
            stamps_out(a, 8, opt)
            if opt.get("dbg_span"):
                a("s_waitcnt vmcnt(0)")
                dbg_span(a, "end")
        else:
            a("s_waitcnt vmcnt(0)")
            timestamp(a, 4, opt)
            stamps_out(a, 5, opt)
    a("L_end12:\ns_endpgm")
    return a.text()

KD12 = f"""
.section .rodata,"a"
.p2align 6
.amdhsa_kernel {NAME12}
  .amdhsa_next_free_vgpr 256
  .amdhsa_next_free_sgpr 102
  .amdhsa_accum_offset 256
  .amdhsa_group_segment_fixed_size 0
  .amdhsa_kernarg_size 80
  .amdhsa_user_sgpr_count 2
  .amdhsa_user_sgpr_kernarg_segment_ptr 1
  .amdhsa_system_sgpr_workgroup_id_x 1
  .amdhsa_float_denorm_mode_32 3
.end_amdhsa_kernel
"""
```

```python
from asm import Asm, vr, sr, VmTracker

NAME12 = "gated_mix__mha_block__softmax_full_mha__prompt_kernel"
WS_KV = 0
WS_O = 16 << 20
WS_G = 24 << 20
WS_MB = 25 << 20
WS_MB2 = WS_MB + 65536
WS_DBG = 32 << 20
WS_SIZE = 0x10000000
LOG2E = 1.4426950408889634
QSCALE = LOG2E / (32 ** 0.5)

import struct
def f2u(x): return struct.unpack("<I", struct.pack("<f", x))[0]

SRD_X, SRD_W, SRD_WS, SRD_DBG, SRD_GW = 8, 12, 16, 20, 24
sW, sHH, sTQ, sHP, sTB = 28, 29, 30, 31, 32
sW1K = 33
sXJ = 34
sWJ = 35
sRING = 36
sRINGW = 37
sJ = 38
sT0, sT1, sT2, sT3 = 40, 41, 42, 43
sXQ = 44
sKVSRC = 45
sSLOT = 46
sBLK = 47
sM = 48
sM2 = 50
sOOFF = 52
sCNT = 53
sMB = 54
sLDSW = 55
sSRC = 39
sOFFS = 64
sNXT = 65
sCHKJ = 66
sARRJ = 67
sGOFF = 68
SRD_WO, SRD_OUT = 4, 56
sTB3, sCB, sROT, sMB2 = 60, 61, 62, 63
sAOFF, sWOFF = 100, 101
sLDSW3 = 34
vDW3 = 6
vLANE = 0
vDX, vDW, vXP, vWP, vXA, vW0 = 2, 3, 4, 5, 6, 7
vL16 = 10
vXB = 11
vT = 12
FR = [64, 84]
ACC = 160
QF = 16
OA = 32
LA = 64
NM = 72
SS = 104
PP = 136
KF = 144
VF = 152
ONES = 160
IDX = 164
vCUR, vNXT = 2, 3
vKVB, vDMA = 4, 5
vCHK = 15

RING = 20 * 8192
NSLOT3 = 10

def wrap_add(a, dst, src, const, tmp):
    a(f"s_add_u32 {sr(tmp)}, {sr(src)}, {const}")
    a(f"s_sub_u32 {dst}, {sr(tmp)}, {RING}")
    a(f"s_cselect_b32 {dst}, {sr(tmp)}, {dst}")

def prologue(a, opt):
    a(f"""
    s_cmp_ge_u32 s2, 256
    s_cbranch_scc1 L_end12
    """)
    if opt.get("codepf", 1):
        a("""
        s_getpc_b64 s[92:93]
        L_pc12:
        s_mov_b32 s3, L_end12-L_pc12
        v_lshlrev_b32 v1, 6, v0
        v_min_u32 v1, s3, v1
        global_load_dword v33, v1, s[92:93]
        """)
    a(f"""
    s_load_dwordx4 s[56:59], s[0:1], 0
    s_load_dwordx2 s[60:61], s[0:1], 32
    s_load_dwordx2 s[62:63], s[0:1], 48
    s_load_dwordx4 s[88:91], s[0:1], 64
    s_load_dwordx2 s[94:95], s[0:1], 16
    s_load_dwordx2 s[96:97], s[0:1], 40
    s_load_dwordx2 s[98:99], s[0:1], 56
    v_lshrrev_b32 v1, 6, v0
    v_and_b32 v0, 63, v0
    s_and_b32 s3, s2, 7
    v_readfirstlane_b32 {sr(sW)}, v1
    s_lshr_b32 s4, s2, 3
    s_and_b32 s5, s4, 3
    s_lshl_b32 s3, s3, 2
    s_add_u32 {sr(sHP)}, s3, s5
    s_lshr_b32 {sr(sTB)}, s4, 2
    s_lshr_b32 {sr(sHH)}, {sr(sW)}, 2
    s_and_b32 {sr(sTQ)}, {sr(sW)}, 3
    s_lshl_b32 {sr(sW1K)}, {sr(sW)}, 10
    """)
    a(f"""
    v_lshrrev_b32 v13, 3, v0                 ; r8
    v_and_b32 v14, 7, v0                     ; c'
    s_and_b32 {sr(sT0)}, {sr(sW)}, 1
    s_lshl_b32 {sr(sT0)}, {sr(sT0)}, 2
    v_lshrrev_b32 v15, 1, v13                ; r8>>1 (0..3)
    v_add_u32 v1, {sr(sT0)}, v15             ; 4*(w&1) + (r8>>1)
    v_xor_b32 v1, v1, v14                    ; cX
    s_lshl_b32 {sr(sT1)}, {sr(sW)}, 3
    v_add_u32 v13, {sr(sT1)}, v13            ; 8w + r8
    v_lshlrev_b32 {vr(vDX)}, 11, v13
    v_lshl_add_u32 {vr(vDX)}, v1, 4, {vr(vDX)}
    v_and_b32 v15, 1, v15
    v_lshlrev_b32 v15, 2, v15
    v_xor_b32 v15, v15, v14                  ; cW
    s_mov_b32 {sr(sT1)}, 6144
    v_mul_lo_u32 {vr(vDW)}, v13, {sr(sT1)}
    v_lshl_add_u32 {vr(vDW)}, v15, 4, {vr(vDW)}
    s_lshl_b32 {sr(sXJ)}, {sr(sTB)}, 19          ; tb*256*2048
    s_and_b32 {sr(sWJ)}, {sr(sHP)}, 15
    s_lshl_b32 {sr(sWJ)}, {sr(sWJ)}, 7           ; hpl*128
    s_waitcnt lgkmcnt(0)
    """)
    if opt.get("stamps_start"): timestamp(a, 1, opt)
    if opt.get("span2"): a("s_memrealtime s[78:79]")
    a(f"""
    s_mov_b32 {sr(SRD_X)}, s56
    s_mov_b32 {sr(SRD_X+1)}, s57
    s_mov_b32 {sr(SRD_X+2)}, {2048*1024*2}
    s_mov_b32 {sr(SRD_X+3)}, 0x00020000
    s_cmp_ge_u32 {sr(sHP)}, 16
    s_cselect_b32 {sr(SRD_W)}, s60, s58
    s_cselect_b32 {sr(SRD_W+1)}, s61, s59
    s_mov_b32 {sr(SRD_W+2)}, {1024*3072*2}
    s_mov_b32 {sr(SRD_W+3)}, 0x00020000
    """)
    for g in range(20):
        dma_unit_static(a, g)
        if g == 6 and opt.get("stamps_start"): timestamp(a, 2, opt)
    if opt.get("stamps_start"): timestamp(a, 3, opt)
    if opt.get("span2"): a("s_memrealtime s[80:81]")
    a(f"""
    s_mov_b32 {sr(SRD_WS)}, s90
    s_mov_b32 {sr(SRD_WS+1)}, s91
    s_mov_b32 {sr(SRD_WS+2)}, {WS_SIZE}
    s_mov_b32 {sr(SRD_WS+3)}, 0x00020000
    s_mov_b32 {sr(SRD_DBG)}, s88
    s_mov_b32 {sr(SRD_DBG+1)}, s89
    s_mov_b32 {sr(SRD_DBG+2)}, 256
    s_mov_b32 {sr(SRD_DBG+3)}, 0x00020000
    s_mov_b32 {sr(SRD_GW)}, s62
    s_mov_b32 {sr(SRD_GW+1)}, s63
    s_mov_b32 {sr(SRD_GW+2)}, 2048
    s_mov_b32 {sr(SRD_GW+3)}, 0x00020000
    """)
    a(f"""
    s_and_b32 s3, s2, 7
    s_lshr_b32 {sr(sT1)}, s2, 3
    s_lshr_b32 {sr(sT2)}, s3, 1
    s_lshl_b32 {sr(sT2)}, {sr(sT2)}, 2
    s_and_b32 {sr(sT3)}, {sr(sT1)}, 3
    s_add_u32 {sr(sTB3)}, {sr(sT2)}, {sr(sT3)}
    s_and_b32 {sr(sT2)}, s3, 1
    s_lshl_b32 {sr(sT2)}, {sr(sT2)}, 3
    s_lshr_b32 {sr(sT1)}, {sr(sT1)}, 2
    s_add_u32 {sr(sCB)}, {sr(sT2)}, {sr(sT1)}
    s_add_u32 {sr(sROT)}, {sr(sTB3)}, {sr(sCB)}
    s_and_b32 {sr(sROT)}, {sr(sROT)}, 15
    s_lshl_b32 {sr(sMB2)}, {sr(sTB3)}, 4
    s_add_u32 {sr(sMB2)}, {sr(sMB2)}, {sr(sCB)}
    s_lshl_b32 {sr(sMB2)}, {sr(sMB2)}, 7
    s_add_u32 {sr(sMB2)}, {sr(sMB2)}, {WS_MB2}
    s_cmp_eq_u32 {sr(sHH)}, 1
    s_cselect_b32 {sr(SRD_WO)}, s96, s94
    s_cselect_b32 {sr(SRD_WO+1)}, s97, s95
    s_mov_b32 {sr(SRD_WO+2)}, {1024*1024*2}
    s_mov_b32 {sr(SRD_WO+3)}, 0x00020000
    s_mov_b32 {sr(SRD_OUT)}, s98
    s_mov_b32 {sr(SRD_OUT+1)}, s99
    s_mov_b32 {sr(SRD_OUT+2)}, {2048*1024*2}
    s_mov_b32 {sr(SRD_OUT+3)}, 0x00020000
    """)
    nr = a.label("nr")
    a(f"""
    s_lshl_b32 {sr(sMB)}, {sr(sHP)}, 3
    s_add_u32 {sr(sMB)}, {sr(sMB)}, {sr(sTB)}
    s_lshl_b32 {sr(sMB)}, {sr(sMB)}, 7
    s_add_u32 {sr(sMB)}, {sr(sMB)}, {WS_MB}
    s_lshl_b32 {sr(sCNT)}, {sr(sHP)}, 3
    s_cmp_eq_u32 {sr(sW)}, 0
    s_cselect_b32 {sr(sCHKJ)}, 5, 0xffff
    s_cselect_b32 {sr(sARRJ)}, 11, 0xffff
    s_cbranch_scc0 {nr}
    v_lshlrev_b32 v12, 2, v0
    s_sub_u32 {sr(sT0)}, {sr(sMB2)}, 128
    v_mov_b32 v13, {sr(sMB)}
    v_mov_b32 v14, {sr(sT0)}
    v_cmp_gt_u32 vcc, 32, v0
    s_nop 1
    v_cndmask_b32 v13, v14, v13, vcc
    v_add_u32 v12, v12, v13
    v_mov_b32 v13, 0
    buffer_store_dword v13, v12, {sr(SRD_WS,4)}, 0 offen sc1
    {nr}:
    """)
    a(f"""
    s_lshl_b32 {sr(sT0)}, {sr(sTB)}, 8
    s_lshl_b32 {sr(sT1)}, {sr(sHP)}, 3
    s_add_u32 {sr(sT0)}, {sr(sT0)}, {sr(sT1)}
    s_add_u32 {sr(sT0)}, {sr(sT0)}, {sr(sW)}
    s_lshl_b32 {sr(sT2)}, {sr(sT0)}, 11
    v_lshlrev_b32 v12, 5, v0
    buffer_load_dwordx4 v[16:19], v12, {sr(SRD_X,4)}, {sr(sT2)} offen
    buffer_load_dwordx4 v[20:23], v12, {sr(SRD_X,4)}, {sr(sT2)} offen offset:16
    buffer_load_dwordx4 v[24:27], v12, {sr(SRD_GW,4)}, 0 offen
    buffer_load_dwordx4 v[28:31], v12, {sr(SRD_GW,4)}, 0 offen offset:16
    s_lshl_b32 {sr(sGOFF)}, {sr(sT0)}, 2
    """)
    if opt.get("warm", 0):
        a(f"""
        s_lshl_b32 {sr(sT0)}, s2, 14
        s_lshl_b32 {sr(sT1)}, {sr(sW)}, 11
        s_add_u32 {sr(sT0)}, {sr(sT0)}, {sr(sT1)}
        v_lshlrev_b32 v12, 4, v0
        buffer_load_dwordx4 v[32:35], v12, {sr(SRD_X,4)}, {sr(sT0)} offen
        buffer_load_dwordx4 v[36:39], v12, {sr(SRD_X,4)}, {sr(sT0)} offen offset:1024
        """)
        a(f"""
        s_and_b32 {sr(sT0)}, {sr(sHP)}, 15
        s_lshl_b32 {sr(sT0)}, {sr(sT0)}, 3
        s_add_u32 {sr(sT0)}, {sr(sT0)}, {sr(sTB)}
        s_mul_i32 {sr(sT0)}, {sr(sT0)}, 49152
        s_mul_i32 {sr(sT1)}, {sr(sW)}, 6144
        s_add_u32 {sr(sT0)}, {sr(sT0)}, {sr(sT1)}
        s_add_u32 {sr(sT1)}, {sr(sT0)}, 4096
        """)
        for i in range(6):
            so = sT0 if i < 4 else sT1
            a(f"buffer_load_dwordx4 v[{40+4*i}:{43+4*i}], v12, {sr(SRD_W,4)}, {sr(so)} offen offset:{(i % 4) * 1024}")
        NWARM = 8
        a(f"""
        s_lshl_b32 {sr(sT0)}, {sr(sHP)}, 19
        s_lshl_b32 {sr(sT1)}, {sr(sTB)}, 20
        s_add_u32 {sr(sT1)}, {sr(sT1)}, {WS_O}
        s_lshl_b32 {sr(sT2)}, {sr(sTB3)}, 19
        s_add_u32 {sr(sT2)}, {sr(sT2)}, {WS_O}
        s_lshl_b32 {sr(sT3)}, {sr(sTB3)}, 18
        buffer_load_dword v104, off, {sr(SRD_WS,4)}, {sr(sT0)}
        buffer_load_dword v105, off, {sr(SRD_WS,4)}, {sr(sT1)}
        buffer_load_dword v106, off, {sr(SRD_WS,4)}, {sr(sT2)}
        buffer_load_dword v107, off, {sr(SRD_WO,4)}, 0
        buffer_load_dword v108, off, {sr(SRD_OUT,4)}, {sr(sT3)}
        """)
    a(f"""
    v_and_b32 v13, 31, v0
    v_lshrrev_b32 v14, 5, v0                 ; h
    v_bfe_u32 v15, v13, 1, 3
    v_xor_b32 v15, v15, v14
    v_lshlrev_b32 {vr(vXP)}, 7, v13
    v_lshl_add_u32 {vr(vXP)}, v15, 4, {vr(vXP)}
    v_bfe_u32 v13, v0, 2, 2                  ; r
    v_lshl_add_u32 v1, v14, 3, v13           ; 8h + r
    v_lshlrev_b32 {vr(vWP)}, 7, v1
    v_bfe_u32 v15, v0, 4, 1                  ; g
    v_lshlrev_b32 v15, 1, v15
    v_bfe_u32 v1, v0, 1, 1                   ; c>>1
    v_add_u32 v15, v15, v1
    s_lshl_b32 {sr(sT1)}, {sr(sHH)}, 2
    v_add_u32 v15, {sr(sT1)}, v15            ; cc
    v_lshrrev_b32 v13, 1, v13
    v_lshlrev_b32 v13, 2, v13
    v_xor_b32 v15, v15, v13
    v_lshl_add_u32 {vr(vWP)}, v15, 4, {vr(vWP)}
    v_and_b32 v1, 1, v0
    v_lshl_add_u32 {vr(vWP)}, v1, 3, {vr(vWP)}
    v_lshlrev_b32 {vr(vL16)}, 4, v0
    s_add_u32 {sr(sXQ)}, {sr(sTQ)}, 3
    s_lshl_b32 {sr(sXQ)}, {sr(sXQ)}, 13
    """)

def dma_unit_static(a, g):
    j, u = divmod(g, 7)
    a(f"s_add_u32 m0, {sr(sW1K)}, {(g % 20) * 8192}")
    if u < 3:
        a(f"s_add_u32 {sr(sT0)}, {sr(sWJ)}, {j * 64 * 6144 + u * 2048}")
        a(f"buffer_load_dwordx4 {vr(vDW)}, {sr(SRD_W,4)}, {sr(sT0)} offen lds")
    else:
        a(f"s_add_u32 {sr(sT0)}, {sr(sXJ)}, {j * 128 + (u - 3) * 131072}")
        a(f"buffer_load_dwordx4 {vr(vDX)}, {sr(SRD_X,4)}, {sr(sT0)} offen lds")

def gate_instrs():
    c = ["v_mov_b32 v12, 0"]
    for i in range(8):
        x, w = 16 + i, 24 + i
        c += [f"v_lshlrev_b32 v13, 16, v{x}", f"v_and_b32 v14, 0xffff0000, v{x}", f"v_lshlrev_b32 v32, 16, v{w}",
              f"v_and_b32 v1, 0xffff0000, v{w}", "v_mul_f32 v13, v13, v32", "v_mul_f32 v14, v14, v1",
              "v_cvt_pk_bf16_f32 v13, v13, v14", "v_lshlrev_b32 v14, 16, v13", "v_and_b32 v13, 0xffff0000, v13",
              "v_add_f32 v12, v12, v14", "v_add_f32 v12, v12, v13"]
    for sh in (1, 2, 4, 8):
        c += [f"s_nop 1\nv_add_f32_dpp v12, v12, v12 row_shr:{sh} row_mask:0xf bank_mask:0xf bound_ctrl:0"]
    c += ["s_nop 1\nv_add_f32_dpp v12, v12, v12 row_bcast:15 row_mask:0xa bank_mask:0xf"]
    c += ["s_nop 1\nv_add_f32_dpp v12, v12, v12 row_bcast:31 row_mask:0xc bank_mask:0xf"]
    c += ["s_nop 1\nv_cvt_pk_bf16_f32 v12, v12, v12", "v_lshlrev_b32 v12, 16, v12", f"v_mul_f32 v12, {hex(f2u(-LOG2E))}, v12",
          "v_exp_f32 v12, v12\ns_nop 0\nv_add_f32 v12, 1.0, v12", "v_rcp_f32 v12, v12\ns_nop 0\nv_cvt_pk_bf16_f32 v12, v12, v12",
          "v_lshlrev_b32 v12, 16, v12", f"v_mov_b32 v13, {WS_G}"]
    st = [f"""s_mov_b32 exec_lo, 0
    s_mov_b32 exec_hi, 0x80000000
    buffer_store_dword v12, v13, {sr(SRD_WS,4)}, {sr(sGOFF)} offen sc1
    s_mov_b64 exec, -1"""]
    return c, st

def frag(set_, name):
    off = {"X0": 0, "X1": 4, "Wq": 8, "Wk": 12, "Wv": 16}[name]
    return FR[set_] + off

def gemm_reads(ks, set_):
    r = []
    r.append(f"ds_read_b128 {vr(frag(set_,'X0'),4)}, {vr(vXA)}")
    for u, nm in enumerate(("Wq", "Wk", "Wv")):
        b = frag(set_, nm)
        r.append(f"ds_read_b64_tr_b16 {vr(b,2)}, {vr(vW0+u)} offset:{ks*2048}")
        r.append(f"ds_read_b64_tr_b16 {vr(b+2,2)}, {vr(vW0+u)} offset:{ks*2048+512}")
        if u == 0:
            r.append(f"ds_read_b128 {vr(frag(set_,'X1'),4)}, {vr(vXA)} offset:4096")
    return r

def gemm_mfmas(set_, first=False):
    m = []
    X0, X1 = frag(set_, "X0"), frag(set_, "X1")
    Wq, Wk, Wv = frag(set_, "Wq"), frag(set_, "Wk"), frag(set_, "Wv")
    def mf(acc, A, B): return f"v_mfma_f32_32x32x16_bf16 {vr(acc,16)}, {vr(A,4)}, {vr(B,4)}, {'0' if first else vr(acc,16)}"
    m.append(mf(ACC + 0, Wq, X0))
    m.append(mf(ACC + 32, Wk, X0))
    m.append(mf(ACC + 64, X0, Wv))
    m.append(mf(ACC + 16, Wq, X1))
    m.append(mf(ACC + 48, Wk, X1))
    m.append(mf(ACC + 80, X1, Wv))
    return m

def wrap_list(dst, src, const, tmp):
    return [f"s_add_u32 {sr(tmp)}, {sr(src)}, {const}", f"s_sub_u32 {dst}, {sr(tmp)}, {RING}", f"s_cselect_b32 {dst}, {sr(tmp)}, {dst}"]

def read_bases_list():
    r = [f"v_add_u32 {vr(vW0)}, {sr(sRING)}, {vr(vWP)}"]
    for u in (1, 2):
        r += wrap_list(sr(sT1), sRING, u * 8192, sT0)
        r.append(f"v_add_u32 {vr(vW0+u)}, {sr(sT1)}, {vr(vWP)}")
    r += [f"s_add_u32 {sr(sT0)}, {sr(sRING)}, {sr(sXQ)}", f"s_sub_u32 {sr(sT1)}, {sr(sT0)}, {RING}",
          f"s_cselect_b32 {sr(sT1)}, {sr(sT0)}, {sr(sT1)}", f"v_add_u32 {vr(vXB)}, {sr(sT1)}, {vr(vXP)}",
          f"v_mov_b32 {vr(vXA)}, {vr(vXB)}"]
    return r

def dma_group(i):
    if OPT.get("g_nodma"): return []
    s = [f"s_add_u32 {sr(sT2)}, {sr(sRINGW)}, {i * 8192}", f"s_sub_u32 m0, {sr(sT2)}, {RING}", f"s_cselect_b32 m0, {sr(sT2)}, m0"]
    if i == 0:
        s.append(f"s_add_u32 {sr(sT3)}, {sr(sXJ)}, {3 * 131072 - 128}")
        s.append(f"buffer_load_dwordx4 {vr(vDX)}, {sr(SRD_X,4)}, {sr(sT3)} offen lds")
    elif i <= 3:
        s.append(f"s_add_u32 {sr(sT3)}, {sr(sWJ)}, {(i - 1) * 2048}")
        s.append(f"buffer_load_dwordx4 {vr(vDW)}, {sr(SRD_W,4)}, {sr(sT3)} offen lds")
    else:
        s.append(f"s_add_u32 {sr(sT3)}, {sr(sXJ)}, {(i - 4) * 131072}")
        s.append(f"buffer_load_dwordx4 {vr(vDX)}, {sr(SRD_X,4)}, {sr(sT3)} offen lds")
    return s

def kstep(a, cur, next_ks, gaps_extra, first=False):
    m = gemm_mfmas(cur, first)
    r = gemm_reads(next_ks, cur ^ 1) if next_ks is not None else []
    gaps = [[] for _ in range(6)]
    for i, x in enumerate(r):
        gaps[min(i // 3, 5)].append(x)
    for g in range(6):
        gaps[g] += gaps_extra.get(g, [])
    for i in range(6):
        a(m[i])
        for x in gaps[i]:
            a(x)

def gemm_stage(a, pending, new_batch, vm_wait, first=False, last=False, valu=None, after_bar=None):
    prio = OPT.get("gprio", 1)
    sp = lambda n: [f"s_setprio {n}"] if prio else []
    valu = list(valu or [])
    per = (len(valu) + 2) // 3
    for ks in range(3):
        ex = {}
        mine = [i for i in pending if (i - 2) // 2 == ks]
        if mine:
            ex[2] = dma_group(mine[0])
        if len(mine) > 1:
            ex[4] = dma_group(mine[1])
        chunk = valu[ks * per:(ks + 1) * per]
        n3 = (len(chunk) + 2) // 3
        for k, g in enumerate((1, 3, 5)):
            ex[g] = ex.get(g, []) + chunk[k * n3:(k + 1) * n3]
        ex[0] = sp(2 - ks)
        if ks < 2:
            ex[5] = ex.get(5, []) + [f"v_xor_b32 {vr(vXA)}, {(ks + 2) << 5}, {vr(vXB)}"]
        else:
            upd = [f"s_add_u32 {sr(sRINGW)}, {sr(sRING)}, {sr(sW1K)}", f"s_add_u32 {sr(sXJ)}, {sr(sXJ)}, 128",
                   f"s_add_u32 {sr(sWJ)}, {sr(sWJ)}, {64 * 6144}"] + wrap_list(sr(sRING), sRING, 7 * 8192, sT0)
            ex[3] = ex.get(3, []) + upd
            if not last:
                ex[4] = ex.get(4, []) + read_bases_list()
        a("s_waitcnt lgkmcnt(0)")
        kstep(a, ks & 1, ks + 1, ex, first=(first and ks == 0))
    if OPT.get("stampsg"):
        a("s_waitcnt lgkmcnt(0)")
        gstamp(a, 204)
    if vm_wait is not None:
        a(f"s_waitcnt vmcnt({vm_wait}) lgkmcnt(0)")
    else:
        a("s_waitcnt lgkmcnt(0)")
    if OPT.get("stampsg"): gstamp(a, 205)
    if not OPT.get("g_nobar"): a("s_barrier")
    if OPT.get("stampsg"):
        gstamp(a, 206)
        a("s_add_u32 s87, s87, 1")
    ex = {0: sp(3)}
    if len(new_batch) > 0: ex[2] = dma_group(new_batch[0])
    if len(new_batch) > 1: ex[4] = dma_group(new_batch[1])
    if not last:
        ex[5] = [f"v_xor_b32 {vr(vXA)}, {1 << 5}, {vr(vXB)}"]
    if after_bar:
        ex[5] = ex.get(5, []) + after_bar
    kstep(a, 1, None if last else 0, ex)

def gemm(a, opt):
    if OPT.get("stampsg"): a("s_mov_b32 s87, 0")
    a(f"s_add_u32 {sr(sXJ)}, {sr(sXJ)}, {2 * 128}")
    a(f"s_add_u32 {sr(sWJ)}, {sr(sWJ)}, {2 * 64 * 6144}")
    a(f"s_mov_b32 {sr(sRING)}, 0")
    for x in read_bases_list(): a(x)
    if opt.get("stamps_start"): timestamp(a, 4, opt)
    if opt.get("span2"): a("s_memrealtime s[82:83]")
    nw = 13 if opt.get("warm", 0) else 0
    a(f"s_waitcnt vmcnt({17 + nw})")
    if opt.get("stamps_start"): timestamp(a, 5, opt)
    a("s_barrier")
    if opt.get("dbg_span"): dbg_span(a, "g0")
    if opt.get("span2"):
        sk = a.label("sk2")
        a(f"s_memrealtime s[76:77]")
        a(f"s_cmp_eq_u32 {sr(sW)}, 0")
        a(f"s_cbranch_scc0 {sk}")
        a("s_waitcnt lgkmcnt(0)")
        a("s_not_b32 s75, s84")
        for reg, off in ((75, 4), (84, 60), (78, 20), (80, 36), (82, 52), (76, 44)):
            a(f"v_mov_b32 v12, s{reg}")
            a(f"s_mov_b32 s93, {off}")
            a("s_mov_b64 exec, 1")
            a(f"buffer_atomic_umax v12, off, {sr(SRD_DBG,4)}, s93 sc1")
            a("s_mov_b64 exec, -1")
        a(f"{sk}:")
    if opt.get("stamps_start"): timestamp(a, 6, opt)
    for x in gemm_reads(0, 0):
        a(x)
    a(f"v_xor_b32 {vr(vXA)}, {1 << 5}, {vr(vXB)}")
    gemm_stage(a, [], [0, 1], 10 + nw, first=True)
    a(f"s_mov_b32 {sr(sJ)}, 12")
    lab = a.label("gemm")
    a(".p2align 6")
    a(f"{lab}:")
    gemm_stage(a, [2, 3, 4, 5, 6], [0, 1], 6)
    nc = a.label("nc"); nd = a.label("nd")
    a(f"s_cmp_eq_u32 {sr(sJ)}, {sr(sARRJ)}")
    a(f"s_cbranch_scc0 {nd}")
    a(f"""
    v_mov_b32 v12, 1
    s_mov_b64 exec, 1
    buffer_atomic_add v12, off, {sr(SRD_DBG,4)}, {sr(sCNT)} sc1
    s_mov_b64 exec, -1
    s_nop 3
    """)
    a(f"{nd}:")
    a(f"s_cmp_eq_u32 {sr(sJ)}, {sr(sCHKJ)}")
    a(f"s_cbranch_scc0 {nc}")
    a(f"v_lshlrev_b32 v12, 2, v0")
    a(f"buffer_load_dword {vr(vCHK)}, v12, {sr(SRD_DBG,4)}, 0 offen sc1")
    a(f"{nc}:")
    a(f"s_sub_u32 {sr(sJ)}, {sr(sJ)}, 1")
    a(f"s_cmp_lg_u32 {sr(sJ)}, 0")
    a(f"s_cbranch_scc1 {lab}")
    gc, gs = gate_instrs()
    gemm_stage(a, [2, 3, 4, 5, 6], [0], 6)
    gemm_stage(a, [], [], 0, valu=gc, after_bar=gs + ["s_nop 3"])
    gemm_stage(a, [], [], None, last=True)
    a("s_setprio 0")
    a("s_nop 15")

def gemm_epilogue(a, opt):
    for tile in (2, 3, 4, 5):
        b = ACC + 16 * tile
        for i in range(8):
            a(f"v_cvt_pk_bf16_f32 v{b+i}, v{b+2*i}, v{b+2*i+1}")
    a(f"""
    s_lshl_b32 {sr(sT1)}, {sr(sHP)}, 1
    s_add_u32 {sr(sT1)}, {sr(sT1)}, {sr(sHH)}
    s_lshl_b32 {sr(sKVSRC)}, {sr(sT1)}, 18
    s_lshl_b32 {sr(sT1)}, {sr(sTB)}, 15
    s_lshl_b32 {sr(sT2)}, {sr(sTQ)}, 13
    s_add_u32 {sr(sT1)}, {sr(sT1)}, {sr(sT2)}
    s_add_u32 {sr(sT1)}, {sr(sT1)}, {sr(sKVSRC)}
    s_add_u32 {sr(sT2)}, {sr(sT1)}, 4096
    """)
    for tt in range(2):
        so = sT1 if tt == 0 else sT2
        kb, vb = ACC + 32 + 16 * tt, ACC + 64 + 16 * tt
        a(f"buffer_store_dwordx4 {vr(kb,4)}, {vr(vL16)}, {sr(SRD_WS,4)}, {sr(so)} offen sc1")
        a(f"buffer_store_dwordx4 {vr(kb+4,4)}, {vr(vL16)}, {sr(SRD_WS,4)}, {sr(so)} offen offset:1024 sc1")
        a(f"buffer_store_dwordx4 {vr(vb,4)}, {vr(vL16)}, {sr(SRD_WS,4)}, {sr(so)} offen offset:2048 sc1")
        a(f"buffer_store_dwordx4 {vr(vb+4,4)}, {vr(vL16)}, {sr(SRD_WS,4)}, {sr(so)} offen offset:3072 sc1")
    a(f"s_mov_b32 {sr(sT2)}, {hex(f2u(QSCALE))}")
    a(f"s_mov_b32 {sr(sT3)}, {hex(f2u(QSCALE))}")
    for tt in range(2):
        b = ACC + 16 * tt
        for i in range(8):
            a(f"v_pk_mul_f32 {vr(b+2*i,2)}, {vr(b+2*i,2)}, {sr(sT2,2)}")
        for i in range(8):
            a(f"v_cvt_pk_bf16_f32 v{QF+8*tt+i}, v{b+2*i}, v{b+2*i+1}")
    kb = ACC + 32
    a("s_nop 1")
    for x in range(2):
        S, Q = SS + 16 * x, QF + 8 * x
        a(f"v_mfma_f32_32x32x16_bf16 {vr(S,16)}, {vr(kb,4)}, {vr(Q,4)}, 0")
        a(f"v_mfma_f32_32x32x16_bf16 {vr(S,16)}, {vr(kb+4,4)}, {vr(Q+4,4)}, {vr(S,16)}")
    a(f"""
    s_lshr_b32 {sr(sT1)}, {sr(sTQ)}, 1
    s_lshl_b32 {sr(sT1)}, {sr(sT1)}, 15
    s_lshl_b32 {sr(sT2)}, {sr(sHH)}, 14
    s_add_u32 {sr(sT1)}, {sr(sT1)}, {sr(sT2)}
    s_and_b32 {sr(sT2)}, {sr(sTQ)}, 1
    s_lshl_b32 {sr(sT2)}, {sr(sT2)}, 13
    s_add_u32 {sr(sT1)}, {sr(sT1)}, {sr(sT2)}
    v_add_u32 v12, {sr(sT1)}, {vr(vL16)}
    """)
    for tt in range(2):
        kb, vb = ACC + 32 + 16 * tt, ACC + 64 + 16 * tt
        a(f"ds_write_b128 v12, {vr(kb,4)} offset:{tt*4096}")
        a(f"ds_write_b128 v12, {vr(kb+4,4)} offset:{tt*4096+1024}")
        a(f"ds_write_b128 v12, {vr(vb,4)} offset:{tt*4096+2048}")
        a(f"ds_write_b128 v12, {vr(vb+4,4)} offset:{tt*4096+3072}")
    if opt.get("dump_q"):
        a(f"""
        s_lshl_b32 {sr(sT1)}, s2, 3
        s_add_u32 {sr(sT1)}, {sr(sT1)}, {sr(sW)}
        s_lshl_b32 {sr(sT1)}, {sr(sT1)}, 12
        s_add_u32 {sr(sT1)}, {sr(sT1)}, {WS_DBG}
        """)
        for i in range(4):
            a(f"buffer_store_dwordx4 {vr(QF+4*i,4)}, {vr(vL16)}, {sr(SRD_WS,4)}, {sr(sT1)} offen offset:{i*1024}")

def smf(L):
    return f"v_smfmac_f32_16x16x64_bf16 {vr(L,4)}, {vr(ONES,4)}, {vr(PP,8)}, {vr(IDX)}"

def attn_unit(a, t, x, hooks, skip_prev=False, c_zero=False):
    S = SS + 16 * x
    Sn = SS + 16 * (x ^ 1)
    xn = xp = x ^ 1
    Qn = QF + 8 * xn
    P0, P1 = PP, PP + 4
    def M(d, A, B, C): return f"v_mfma_f32_32x32x16_bf16 {vr(d,16)}, {vr(A,4)}, {vr(B,4)}, {C}"
    e = lambda i: f"v_exp_f32 v{S+i}, v{S+i}"
    c = lambda i: f"v_cvt_pk_bf16_f32 v{PP+i}, v{S+2*i}, v{S+2*i+1}"
    mf = [M(Sn, KF, Qn, vr(NM + 16 * xn, 16)),
          None if skip_prev else M(OA + 16 * xp, VF + 4, P1, vr(OA + 16 * xp, 16)),
          None if skip_prev else smf(LA + 4 * xp),
          M(Sn, KF + 4, Qn + 4, vr(Sn, 16)),
          M(OA + 16 * x, VF, P0, "0" if c_zero else vr(OA + 16 * x, 16))]
    va = [[e(0), e(1), e(2)], [e(3), e(4), e(5)], [e(6), e(7), c(0), c(1), c(2), c(3)],
          [e(8), e(9), e(10)], [e(11), e(12), e(13), e(14), e(15), c(4), c(5), c(6), c(7)]]
    for g in range(5):
        if mf[g]: a(mf[g])
        for h in hooks.get(g, []):
            a(h)
        for v in va[g]:
            a(v)

def kv_addr(tile, f):
    if tile < 4:
        return vCUR, tile * 4096 + f * 1024
    return vNXT, f * 1024

def rd(dst, tile, f):
    b, o = kv_addr(tile, f)
    return f"ds_read_b128 {vr(dst,4)}, {vr(b)} offset:{o}"

def kv_dma(p, so):
    return f"buffer_load_dwordx4 {vr(vDMA)}, {sr(SRD_WS,4)}, {sr(so)} offen offset:{p*1024} sc1 lds"

def poll_mailbox(a, want_all):
    poll, done = a.label("poll"), a.label("pdone")
    a(f"s_mov_b32 {sr(sT1)}, 400000")
    a(f"v_lshlrev_b32 v13, 2, v0")
    a(f"s_add_u32 {sr(sT2)}, {sr(sTB)}, 1")
    a(f"s_and_b32 {sr(sT2)}, {sr(sT2)}, 7")
    a(f"s_lshl_b32 {sr(sT2)}, 1, {sr(sT2)}")
    if want_all:
        a(f"s_mov_b32 {sr(sT2)}, 0xff")
    a("s_mov_b64 exec, 0xff")
    a(f"{poll}:")
    a(f"buffer_load_dword v12, v13, {sr(SRD_WS,4)}, {sr(sMB)} offen sc1")
    a("s_waitcnt vmcnt(0)")
    a("v_cmp_eq_u32 vcc, 1, v12")
    a("s_nop 3")
    a(f"s_and_b32 {sr(sT3)}, vcc_lo, {sr(sT2)}")
    a(f"s_cmp_eq_u32 {sr(sT3)}, {sr(sT2)}")
    a(f"s_cbranch_scc1 {done}")
    a(f"s_sub_u32 {sr(sT1)}, {sr(sT1)}, 1")
    a(f"s_cbranch_scc1 {done}")
    a("s_sleep 1")
    a(f"s_branch {poll}")
    a(f"{done}:")
    a("s_mov_b64 exec, -1")

def publish(a):
    spin, ok = a.label("rdy"), a.label("rdyok")
    a(f"s_mov_b32 {sr(sT1)}, 400000")
    a(f"s_mov_b32 {sr(sT2)}, 0x55555555")
    a(f"v_lshlrev_b32 v12, 2, v0")
    a(f"{spin}:")
    a(f"v_cmp_eq_u32 vcc, 8, {vr(vCHK)}")
    a("s_nop 3")
    a(f"s_and_b32 {sr(sT0)}, vcc_lo, {sr(sT2)}")
    a(f"s_and_b32 {sr(sT3)}, vcc_hi, {sr(sT2)}")
    a(f"s_and_b32 {sr(sT0)}, {sr(sT0)}, {sr(sT3)}")
    a(f"s_cmp_eq_u32 {sr(sT0)}, {sr(sT2)}")
    a(f"s_cbranch_scc1 {ok}")
    a(f"s_sub_u32 {sr(sT1)}, {sr(sT1)}, 1")
    a(f"s_cbranch_scc1 {ok}")
    a(f"buffer_load_dword {vr(vCHK)}, v12, {sr(SRD_DBG,4)}, 0 offen sc1")
    a("s_waitcnt vmcnt(0)")
    a(f"s_branch {spin}")
    a(f"{ok}:")
    a(f"""
    s_lshl_b32 {sr(sT0)}, {sr(sHP)}, 10
    s_lshl_b32 {sr(sT1)}, {sr(sTB)}, 2
    s_add_u32 {sr(sT0)}, {sr(sT0)}, {sr(sT1)}
    s_add_u32 {sr(sT0)}, {sr(sT0)}, {WS_MB}
    v_lshlrev_b32 v12, 7, v0
    v_mov_b32 v13, 1
    s_mov_b64 exec, 0xff
    buffer_store_dword v13, v12, {sr(SRD_WS,4)}, {sr(sT0)} offen sc1
    s_mov_b64 exec, -1
    """)

def wo_piece(i, half):
    return [f"s_add_u32 {sr(sT0)}, {sr(sROT)}, {i}", f"s_and_b32 {sr(sT0)}, {sr(sT0)}, 15", f"s_lshl_b32 {sr(sT0)}, {sr(sT0)}, 17",
            f"s_add_u32 {sr(sT0)}, {sr(sT0)}, {sr(sWOFF)}"] + ([f"s_add_u32 {sr(sT0)}, {sr(sT0)}, 16384"] if half else []) + \
           [f"s_add_u32 m0, {sr(sLDSW3)}, {(i % NSLOT3) * 16384 + half * 1024}", "s_nop 0",
            f"buffer_load_dwordx4 {vr(vDW3)}, {sr(SRD_WO,4)}, {sr(sT0)} offen lds"]

def attn_stage(a, opt, kind, s_=None):
    prio = opt.get("prio", 1)
    def sp(n): return [f"s_setprio {n}"] if prio else []
    for t in range(4):
        h0 = {0: [rd(KF, t + 1, 0)], 1: [rd(VF + 4, t, 3)], 2: ["s_waitcnt lgkmcnt(2)"],
              3: [rd(KF + 4, t + 1, 1)], 4: ["s_waitcnt lgkmcnt(2)"]}
        h1 = {0: ["s_waitcnt lgkmcnt(1)"], 1: [], 2: ["s_waitcnt lgkmcnt(0)"], 3: [], 4: [rd(VF, t + 1, 2)]}
        if t == 0:
            h0[0] += sp(2)
            h0[4] += [f"s_mov_b32 {sr(sNXT)}, {sr(sSLOT)}"]
            h1[1] = [f"s_add_u32 {sr(sSRC)}, {sr(sSRC)}, 16384"]
            h1[3] = [f"s_and_b32 {sr(sSRC)}, {sr(sSRC)}, 0x3ffff"]
        if t == 1:
            h0[0] += sp(1)
            h1[1] = [f"s_add_u32 {sr(sSLOT)}, {sr(sSLOT)}, 32768"]
            h1[3] = [f"s_and_b32 {sr(sSLOT)}, {sr(sSLOT)}, 0x1ffff"]
            if kind == 0:
                h1[4] += ["s_waitcnt vmcnt(0)", "s_barrier"]
            if kind == 3 and s_ == 13:
                h0[2] += wo_piece(8, 0)
                h0[4] += wo_piece(8, 1)
                h1[0] += wo_piece(9, 0)
                h1[2] += wo_piece(9, 1)
            if kind == 1:
                go = a.label("go")
                lanestamp(a, 203, opt, 0)
                a(f"s_cmp_eq_u32 {sr(sW)}, 0")
                a(f"s_cbranch_scc0 {go}")
                poll_mailbox(a, False)
                a(f"{go}:")
                lanestamp(a, 203, opt, 1)
                a("s_barrier")
                lanestamp(a, 203, opt, 2)
                for st in (2, 3):
                    a(f"""
                    s_lshl_b32 {sr(sT0)}, {sr(sTB)}, 1
                    s_add_u32 {sr(sT0)}, {sr(sT0)}, {st}
                    s_and_b32 {sr(sT0)}, {sr(sT0)}, 15
                    s_lshl_b32 {sr(sOFFS)}, {sr(sT0)}, 14
                    s_add_u32 m0, {sr(sLDSW)}, {st * 32768}
                    s_nop 0
                    """)
                    for p in range(4):
                        a(kv_dma(p, sOFFS))
        if t == 2:
            h0[0] += sp(0)
            h1[1] = [f"s_add_u32 m0, {sr(sSLOT)}, {sr(sLDSW)}"]
            h1[3] = [f"s_add_u32 {sr(sJ)}, {sr(sJ)}, 1"]
            if kind == 0:
                h1[4] += ["s_barrier"] + sp(3)
                np_ = a.label("np")
                a(f"s_cmp_eq_u32 {sr(sW)}, 0")
                a(f"s_cbranch_scc0 {np_}")
                publish(a)
                a(f"{np_}:")
            elif kind == 3 and s_ == 15:
                h1[4] += ["s_barrier"] + sp(3)
            elif kind == 3:
                h1[4] += ["s_waitcnt vmcnt(8)", "s_barrier"] + sp(3)
            elif kind != 1:
                h1[4] += ["s_waitcnt vmcnt(4)", "s_barrier"] + sp(3)
        if t == 3:
            if kind == 3:
                q = s_ - 13
                h0[2] += wo_piece(2 * q, 0)
                h0[4] += wo_piece(2 * q, 1)
                h1[1] = wo_piece(2 * q + 1, 0)
                h1[3] = wo_piece(2 * q + 1, 1)
            elif kind != 0:
                h0[2] += [kv_dma(0, sSRC)]
                h0[4] += [kv_dma(1, sSRC)]
                h1[1] = [kv_dma(2, sSRC)]
                h1[3] = [kv_dma(3, sSRC)]
            if kind == 1:
                go = a.label("go")
                a(f"s_cmp_eq_u32 {sr(sW)}, 0")
                a(f"s_cbranch_scc0 {go}")
                poll_mailbox(a, True)
                a(f"{go}:")
                a("s_waitcnt vmcnt(4)")
                a("s_barrier")
                for x in sp(3): a(x)
        first = kind == 0 and t == 0
        attn_unit(a, t, 0, h0, skip_prev=first, c_zero=first)
        attn_unit(a, t, 1, h1, c_zero=first)
    a(f"v_mov_b32 {vr(vCUR)}, {vr(vNXT)}")
    a(f"v_add_u32 {vr(vNXT)}, {sr(sNXT)}, {vr(vKVB)}")

def attention(a, opt):
    a(f"""
    v_bfe_u32 v12, v0, 2, 1
    v_and_b32 v13, 3, v0
    v_mov_b32 v14, 0x3f803f80
    v_cmp_gt_u32 vcc, 2, v13
    s_nop 1
    v_cndmask_b32 v14, 0, v14, vcc
    v_cmp_eq_u32 vcc, 0, v12
    s_nop 1
    v_cndmask_b32 v{ONES}, 0, v14, vcc
    v_cndmask_b32 v{ONES+2}, v14, 0, vcc
    v_mov_b32 v{ONES+1}, v{ONES}
    v_mov_b32 v{ONES+3}, v{ONES+2}
    v_mov_b32 v14, 0x4444
    v_mov_b32 v12, 0xeeee
    v_cmp_eq_u32 vcc, 1, v13
    s_nop 1
    v_cndmask_b32 v{IDX}, v14, v12, vcc
    s_lshl_b32 {sr(sT0)}, {sr(sHH)}, 14
    v_add_u32 {vr(vKVB)}, {sr(sT0)}, {vr(vL16)}
    v_mov_b32 {vr(vCUR)}, {vr(vKVB)}
    v_add_u32 {vr(vNXT)}, 32768, {vr(vKVB)}
    s_lshl_b32 {sr(sT1)}, {sr(sTQ)}, 12
    s_add_u32 {sr(sLDSW)}, {sr(sT0)}, {sr(sT1)}
    s_add_u32 {sr(sKVSRC)}, {sr(sKVSRC)}, {sr(sT1)}
    v_add_u32 {vr(vDMA)}, {sr(sKVSRC)}, {vr(vL16)}
    s_lshl_b32 {sr(sSRC)}, {sr(sTB)}, 1
    s_add_u32 {sr(sSRC)}, {sr(sSRC)}, 2
    s_and_b32 {sr(sSRC)}, {sr(sSRC)}, 15
    s_lshl_b32 {sr(sSRC)}, {sr(sSRC)}, 14
    s_mov_b32 {sr(sSLOT)}, {2 * 32768}
    s_mov_b32 {sr(sJ)}, 0
    v_lshrrev_b32 v12, 3, v0
    v_and_b32 v13, 7, v0
    v_bfe_u32 v14, v12, 1, 1
    v_lshlrev_b32 v14, 2, v14
    v_xor_b32 v13, v13, v14
    s_lshl_b32 {sr(sT0)}, {sr(sTQ)}, 4
    v_add_u32 v12, {sr(sT0)}, v12
    v_lshlrev_b32 {vr(vDW3)}, 11, v12
    v_lshl_add_u32 {vr(vDW3)}, v13, 4, {vr(vDW3)}
    s_lshl_b32 {sr(sWOFF)}, {sr(sCB)}, 7
    s_lshl_b32 {sr(sLDSW3)}, {sr(sHH)}, 13
    s_lshl_b32 {sr(sT0)}, {sr(sTQ)}, 11
    s_add_u32 {sr(sLDSW3)}, {sr(sLDSW3)}, {sr(sT0)}
    """)
    for i in range(8): a(f"v_mov_b32 v{LA+i}, 0")
    for x in range(2):
        S = SS + 16 * x
        a(f"v_max3_f32 v12, v{S}, v{S+1}, v{S+2}")
        for i in range(3, 15, 2):
            a(f"v_max3_f32 v12, v12, v{S+i}, v{S+i+1}")
        a(f"v_max_f32 v12, v12, v{S+15}")
        a(f"""
        v_mov_b32 v13, v12
        s_nop 1
        v_permlane32_swap_b32 v13, v12
        s_nop 1
        v_max_f32 v12, v12, v13
        v_sub_f32 v12, 0, v12
        """)
        for i in range(16):
            a(f"v_mov_b32 v{NM+16*x+i}, v12")
    a("s_waitcnt lgkmcnt(0)")
    a("s_barrier")
    a(rd(KF, 0, 0)); a(rd(KF + 4, 0, 1)); a(rd(VF, 0, 2))
    a("s_waitcnt lgkmcnt(1)")
    a(f"v_mfma_f32_32x32x16_bf16 {vr(SS,16)}, {vr(KF,4)}, {vr(QF,4)}, {vr(NM,16)}")
    a(f"v_mfma_f32_32x32x16_bf16 {vr(SS,16)}, {vr(KF+4,4)}, {vr(QF+4,4)}, {vr(SS,16)}")
    lanestamp(a, 203, opt, 3)
    a("s_waitcnt lgkmcnt(0)")
    a("s_nop 15")
    attn_stage(a, opt, 0)
    lanestamp(a, 202, opt, 0)
    attn_stage(a, opt, 1)
    lanestamp(a, 202, opt, 1)
    loop = a.label("attn")
    a(".p2align 6")
    a(f"{loop}:")
    attn_stage(a, opt, 2)
    lanestamp(a, 202, opt, "m")
    a(f"s_cmp_lt_u32 {sr(sJ)}, 13")
    a(f"s_cbranch_scc1 {loop}")
    for s_ in (13, 14, 15):
        attn_stage(a, opt, 3, s_)
        lanestamp(a, 202, opt, s_)
    a("s_setprio 0")
    a("s_nop 1")
    a(f"v_mfma_f32_32x32x16_bf16 {vr(OA+16,16)}, {vr(VF+4,4)}, {vr(PP+4,4)}, {vr(OA+16,16)}")
    a(smf(LA + 4))
    a("s_waitcnt lgkmcnt(0)")

def attn_epilogue(a, opt):
    a(f"""
    s_lshl_b32 {sr(sT0)}, {sr(sTB)}, 3
    s_lshl_b32 {sr(sT1)}, {sr(sTQ)}, 1
    s_add_u32 {sr(sT0)}, {sr(sT0)}, {sr(sT1)}
    s_lshl_b32 {sr(sT0)}, {sr(sT0)}, 17
    s_lshl_b32 {sr(sT1)}, {sr(sHP)}, 1
    s_add_u32 {sr(sT1)}, {sr(sT1)}, {sr(sHH)}
    s_lshl_b32 {sr(sT1)}, {sr(sT1)}, 11
    s_add_u32 {sr(sT0)}, {sr(sT0)}, {sr(sT1)}
    s_add_u32 {sr(sOOFF)}, {sr(sT0)}, {WS_O}
    s_mov_b32 {sr(sT2)}, {hex(f2u(2.0**24))}
    s_nop 7
    """)
    ok = a.label("ok")
    a("v_mov_b32 v12, 0")
    a("v_mov_b32 v13, 0")
    a(f"v_add_f32 v{LA}, v{LA}, v{LA+1}")
    a(f"v_add_f32 v{LA+4}, v{LA+4}, v{LA+5}")
    for i in range(16):
        a(f"v_pk_fma_f32 v[12:13], {vr(OA+2*i,2)}, 0, v[12:13] op_sel_hi:[1,0,1]")
    a(f"v_cmp_nle_f32 {sr(sM,2)}, v{LA}, {sr(sT2)}")
    a(f"v_cmp_nle_f32 {sr(sM2,2)}, v{LA+4}, {sr(sT2)}")
    a("v_cmp_u_f32 vcc, v12, v13")
    a(f"s_or_b64 {sr(sM,2)}, {sr(sM,2)}, {sr(sM2,2)}")
    a(f"s_or_b64 {sr(sM,2)}, {sr(sM,2)}, vcc")
    if opt.get("force_fallback"):
        a(f"s_mov_b64 {sr(sM,2)}, -1")
    a(f"s_cmp_eq_u64 {sr(sM,2)}, 0")
    a(f"s_cbranch_scc1 {ok}")
    fallback(a, opt)
    a(f"{ok}:")
    a(f"v_rcp_f32 v12, v{LA}")
    a(f"v_rcp_f32 v14, v{LA+4}")
    for x in range(2):
        r = (12, 14)[x]
        a(f"v_mov_b32 v{r+1}, v{r}" if x == 1 else f"v_mov_b32 v13, v12")
        b = OA + 16 * x
        for i in range(8):
            a(f"v_pk_mul_f32 {vr(b+2*i,2)}, {vr(b+2*i,2)}, {vr(r,2)}")
        for i in range(8):
            a(f"v_cvt_pk_bf16_f32 v{b+i}, v{b+2*i}, v{b+2*i+1}")
        if x == 1:
            a(f"s_add_u32 {sr(sOOFF)}, {sr(sOOFF)}, 131072")
        a(f"buffer_store_dwordx4 {vr(b,4)}, {vr(vL16)}, {sr(SRD_WS,4)}, {sr(sOOFF)} offen sc1")
        a(f"buffer_store_dwordx4 {vr(b+4,4)}, {vr(vL16)}, {sr(SRD_WS,4)}, {sr(sOOFF)} offen offset:1024 sc1")

def phase3(a, opt):
    vm = VmTracker()
    ACC3, AF, OF, DEPTH, NSLOT = 16, 48, 72, opt.get("depth", 16), NSLOT3
    vRD = [7, 8, 9, 11, 4, 5]
    vG, vOUT = 14, 13
    a("s_waitcnt vmcnt(0)")
    a("s_barrier")
    timestamp(a, 4, opt)
    np_ = a.label("np3")
    a(f"s_cmp_eq_u32 {sr(sW)}, 0")
    a(f"s_cbranch_scc0 {np_}")
    a(f"""
    s_lshl_b32 {sr(sT0)}, {sr(sTB)}, 12
    s_lshl_b32 {sr(sT1)}, {sr(sHP)}, 2
    s_add_u32 {sr(sT0)}, {sr(sT0)}, {sr(sT1)}
    s_add_u32 {sr(sT0)}, {sr(sT0)}, {WS_MB2}
    v_lshlrev_b32 v12, 7, v0
    v_mov_b32 v15, 1
    s_mov_b32 exec_lo, -1
    s_mov_b32 exec_hi, 0
    buffer_store_dword v15, v12, {sr(SRD_WS,4)}, {sr(sT0)} offen sc1
    s_mov_b64 exec, -1
    """)
    poll = a.label("poll3"); done = a.label("pd3")
    a(f"s_mov_b32 {sr(sT1)}, 400000")
    a(f"v_lshlrev_b32 v12, 2, v0")
    a("s_mov_b32 exec_lo, -1")
    a("s_mov_b32 exec_hi, 0")
    a(f"{poll}:")
    a(f"buffer_load_dword v15, v12, {sr(SRD_WS,4)}, {sr(sMB2)} offen sc1")
    a("s_waitcnt vmcnt(0)")
    a("v_cmp_eq_u32 vcc, 1, v15")
    a("s_nop 3")
    a("s_cmp_eq_u32 vcc_lo, -1")
    a(f"s_cbranch_scc1 {done}")
    a(f"s_sub_u32 {sr(sT1)}, {sr(sT1)}, 1")
    a(f"s_cbranch_scc1 {done}")
    a("s_sleep 1")
    a(f"s_branch {poll}")
    a(f"{done}:")
    a("s_mov_b64 exec, -1")
    a(f"{np_}:")
    def wdma(i):
        for half in range(2):
            for x in wo_piece(i, half): a(x)
            vm.issue(("w", i))
    wdma(6); wdma(7)
    a(f"""
    v_and_b32 v12, 31, v0
    s_lshl_b32 {sr(sT0)}, {sr(sTB3)}, 7
    s_lshl_b32 {sr(sT2)}, {sr(sTQ)}, 5
    s_add_u32 {sr(sT0)}, {sr(sT0)}, {sr(sT2)}
    v_add_u32 v12, {sr(sT0)}, v12                  ; token
    v_lshlrev_b32 v3, 2, v12
    v_lshrrev_b32 {vr(vG)}, 5, v0                  ; h
    v_lshlrev_b32 {vr(vOUT)}, 11, v12
    v_lshl_add_u32 {vr(vOUT)}, {vr(vG)}, 4, {vr(vOUT)}
    v_bfe_u32 v15, v0, 2, 2                        ; r
    v_lshl_add_u32 v12, {vr(vG)}, 2, v15           ; 4h + r
    v_lshlrev_b32 v2, 7, v12
    v_and_b32 v12, 1, v0                           ; h'
    v_bfe_u32 v1, v0, 1, 1                         ; a
    v_bfe_u32 v5, v0, 4, 1                         ; g
    v_lshl_add_u32 v12, v5, 1, v12                 ; chunk16 = 2g + h'
    v_lshrrev_b32 v15, 1, v15
    v_lshlrev_b32 v15, 2, v15
    v_xor_b32 v12, v12, v15
    v_lshl_add_u32 v2, v12, 4, v2
    v_lshl_add_u32 v2, v1, 3, v2
    s_lshl_b32 {sr(sT0)}, {sr(sHH)}, 13
    v_add_u32 v{vRD[0]}, {sr(sT0)}, v2
    v_xor_b32 v{vRD[1]}, 64, v{vRD[0]}
    v_add_u32 v{vRD[2]}, 0x10000, v{vRD[0]}
    v_add_u32 v{vRD[3]}, 0x10000, v{vRD[1]}
    v_add_u32 v{vRD[4]}, 0x20000, v{vRD[0]}
    v_add_u32 v{vRD[5]}, 0x20000, v{vRD[1]}
    s_lshl_b32 {sr(sT0)}, {sr(sTB3)}, 2
    s_add_u32 {sr(sT0)}, {sr(sT0)}, {sr(sTQ)}
    s_lshl_b32 {sr(sAOFF)}, {sr(sT0)}, 17
    s_lshl_b32 {sr(sT1)}, {sr(sHH)}, 16
    s_add_u32 {sr(sAOFF)}, {sr(sAOFF)}, {sr(sT1)}
    s_add_u32 {sr(sAOFF)}, {sr(sAOFF)}, {WS_O}
    """)
    a("s_barrier")
    timestamp(a, 5, opt)
    if opt.get("dbg_span"): dbg_span(a, "e3")
    def oload(kk):
        d = kk % DEPTH
        if kk % 4 == 0:
            a(f"s_add_u32 {sr(sT1)}, {sr(sROT)}, {kk // 4}")
            a(f"s_and_b32 {sr(sT1)}, {sr(sT1)}, 15")
            a(f"s_lshl_b32 {sr(sT1)}, {sr(sT1)}, 12")
            a(f"s_add_u32 {sr(sT1)}, {sr(sT1)}, {sr(sAOFF)}")
        if opt.get("p3_noload") and kk >= DEPTH: return
        sc = "" if opt.get("p3_plain") else " sc1"
        a(f"buffer_load_dwordx4 {vr(OF+4*d,4)}, {vr(vL16)}, {sr(SRD_WS,4)}, {sr(sT1)} offen offset:{(kk%4)*1024}{sc}")
        vm.issue(("o", kk))
    for kk in range(DEPTH): oload(kk)
    a(f"s_mov_b32 {sr(sT2)}, {WS_G}")
    a(f"buffer_load_dword {vr(vG)}, v3, {sr(SRD_WS,4)}, {sr(sT2)} offen sc1")
    vm.issue(("g", 0))
    def wreads(st, ks, set_):
        r = []
        slot = st % NSLOT
        win, off = divmod(slot * 16384, 65536)
        for ct in range(2):
            base = AF + 8 * set_ + 4 * ct
            reg = vRD[2 * win + ct]
            r.append(f"ds_read_b64_tr_b16 {vr(base,2)}, {vr(reg)} offset:{off + ks*2048}")
            r.append(f"ds_read_b64_tr_b16 {vr(base+2,2)}, {vr(reg)} offset:{off + ks*2048+1024}")
        return r
    def wr(kk): return wreads(kk // 4, kk % 4, kk % 3)
    for x in wr(0) + wr(1): a(x)
    pend = []
    for st in range(16):
        for ks in range(4):
            kk = 4 * st + ks
            d = kk % DEPTH
            cur = kk % 3
            bar = ks == 2 and st in (5, 9)
            if bar:
                need = ("w", 7) if st == 5 else ("w", 15)
                n = vm.wait_count(lambda t: t in (need, ("o", kk)))
                a(f"s_waitcnt vmcnt({n}) lgkmcnt(0)")
                a("s_barrier")
                if st == 5:
                    pend = [(i, h) for i in range(10, 16) for h in range(2)]
            else:
                n = vm.wait_count(lambda t: t == ("o", kk))
                a(f"s_waitcnt vmcnt({n}) lgkmcnt({4 if kk < 63 else 0})")
            nxt = wr(kk + 2) if kk + 2 < 64 else []
            for ct in range(2):
                c = "0" if kk == 0 else vr(ACC3+16*ct,16)
                a(f"v_mfma_f32_32x32x16_bf16 {vr(ACC3+16*ct,16)}, {vr(AF+8*cur+4*ct,4)}, {vr(OF+4*d,4)}, {c}")
                for x in nxt[2*ct:2*ct+2]: a(x)
            if kk + DEPTH < 64:
                oload(kk + DEPTH)
            for i, h in pend[:2]:
                if opt.get("p3_nowo"): continue
                for x in wo_piece(i, h): a(x)
                vm.issue(("w", i))
            pend = pend[2:]
    timestamp(a, 6, opt)
    XA = 6 * 16384
    a(f"""
    s_lshl_b32 {sr(sT0)}, {sr(sTQ)}, 12
    s_lshl_b32 {sr(sT1)}, {sr(sHH)}, 11
    s_add_u32 {sr(sT2)}, {sr(sT0)}, {sr(sT1)}
    s_xor_b32 {sr(sT1)}, {sr(sT1)}, 2048
    s_add_u32 {sr(sT3)}, {sr(sT0)}, {sr(sT1)}
    s_add_u32 {sr(sT2)}, {sr(sT2)}, {XA}
    s_add_u32 {sr(sT3)}, {sr(sT3)}, {XA}
    v_add_u32 v12, {sr(sT2)}, {vr(vL16)}
    v_add_u32 v1, {sr(sT3)}, {vr(vL16)}
    v_sub_f32 v2, 1.0, {vr(vG)}
    v_cvt_pk_bf16_f32 v2, v2, v2
    v_lshlrev_b32 v2, 16, v2
    s_lshl_b32 {sr(sT0)}, {sr(sCB)}, 7
    s_lshl_b32 {sr(sT1)}, {sr(sHH)}, 6
    s_add_u32 {sr(sT0)}, {sr(sT0)}, {sr(sT1)}
    """)
    brb, fin = a.label("brb"), a.label("fin")
    a(f"s_cmp_eq_u32 {sr(sHH)}, 0")
    a(f"s_cbranch_scc0 {brb}")
    for br in range(2):
        K, S_ = ACC3 + 16 * br, ACC3 + 16 * (br ^ 1)
        own, rcv = (vG, 2) if br == 0 else (2, vG)
        a(f"v_mov_b32 v60, v{own}\nv_mov_b32 v61, v{own}\nv_mov_b32 v62, v{rcv}\nv_mov_b32 v63, v{rcv}")
        for i in range(8):
            a(f"v_cvt_pk_bf16_f32 v{48+i}, v{S_+2*i}, v{S_+2*i+1}")
        a("ds_write_b128 v12, v[48:51]")
        a("ds_write_b128 v12, v[52:55] offset:1024")
        a("s_waitcnt lgkmcnt(0)")
        a("s_barrier")
        a("ds_read_b128 v[48:51], v1")
        a("ds_read_b128 v[52:55], v1 offset:1024")
        for i in range(8):
            if i == 0: a("s_waitcnt lgkmcnt(1)")
            if i == 4: a("s_waitcnt lgkmcnt(0)")
            a(f"v_lshlrev_b32 v56, 16, v{48+i}")
            a(f"v_and_b32 v57, 0xffff0000, v{48+i}")
            a(f"v_pk_mul_f32 v[56:57], v[56:57], v[62:63]")
            a(f"v_pk_fma_f32 v[56:57], {vr(K+2*i,2)}, v[60:61], v[56:57]")
            if opt.get("perturb") and br == 0 and i == 0:
                a(f"s_cmp_eq_u32 s2, 0")
                a(f"s_cselect_b32 {sr(sT1)}, {hex(f2u(opt['perturb']))}, 0")
                a(f"s_cmp_eq_u32 {sr(sW)}, 0")
                a(f"s_cselect_b32 {sr(sT1)}, {sr(sT1)}, 0")
                a(f"v_mov_b32 v58, {sr(sT1)}")
                a(f"v_cmp_eq_u32 vcc, 0, v0")
                a("s_nop 1")
                a(f"v_cndmask_b32 v58, 0, v58, vcc")
                a(f"v_add_f32 v56, v56, v58")
            a(f"v_cvt_pk_bf16_f32 v{K+i}, v56, v57")
            if i == 3:
                a(f"buffer_store_dwordx4 {vr(K,4)}, {vr(vOUT)}, {sr(SRD_OUT,4)}, {sr(sT0)} offen")
        a(f"buffer_store_dwordx4 {vr(K+4,4)}, {vr(vOUT)}, {sr(SRD_OUT,4)}, {sr(sT0)} offen offset:32")
        if br == 0:
            a(f"s_branch {fin}")
            a(f"{brb}:")
    a(f"{fin}:")

def fallback(a, opt):
    MX = NM
    a(f"s_lshl_b32 {sr(sT0)}, {sr(sHP)}, 1")
    a(f"s_add_u32 {sr(sT0)}, {sr(sT0)}, {sr(sHH)}")
    a(f"s_lshl_b32 {sr(sBLK)}, {sr(sT0)}, 18")
    for i in range(32): a(f"v_mov_b32 v{OA+i}, 0")
    for i in range(8): a(f"v_mov_b32 v{LA+i}, 0")
    a(f"v_mov_b32 v{MX}, 0xff800000")
    a(f"v_mov_b32 v{MX+16}, 0xff800000")
    a(f"s_mov_b32 {sr(sJ)}, 0")
    loop = a.label("fb")
    a(f"{loop}:")
    a(f"buffer_load_dwordx4 {vr(KF,4)}, {vr(vL16)}, {sr(SRD_WS,4)}, {sr(sBLK)} offen sc1")
    a(f"buffer_load_dwordx4 {vr(KF+4,4)}, {vr(vL16)}, {sr(SRD_WS,4)}, {sr(sBLK)} offen offset:1024 sc1")
    a(f"buffer_load_dwordx4 {vr(VF,4)}, {vr(vL16)}, {sr(SRD_WS,4)}, {sr(sBLK)} offen offset:2048 sc1")
    a(f"buffer_load_dwordx4 {vr(VF+4,4)}, {vr(vL16)}, {sr(SRD_WS,4)}, {sr(sBLK)} offen offset:3072 sc1")
    a("s_waitcnt vmcnt(0)")
    for x in range(2):
        S, Q, O, L, mx = SS, QF + 8 * x, OA + 16 * x, LA + 4 * x, MX + 16 * x
        a(f"v_mfma_f32_32x32x16_bf16 {vr(S,16)}, {vr(KF,4)}, {vr(Q,4)}, 0")
        a(f"v_mfma_f32_32x32x16_bf16 {vr(S,16)}, {vr(KF+4,4)}, {vr(Q+4,4)}, {vr(S,16)}")
        a("s_nop 15")
        a(f"v_max3_f32 v12, v{S}, v{S+1}, v{S+2}")
        for i in range(3, 15, 2):
            a(f"v_max3_f32 v12, v12, v{S+i}, v{S+i+1}")
        a(f"v_max_f32 v12, v12, v{S+15}")
        a(f"""
        v_mov_b32 v13, v12
        s_nop 1
        v_permlane32_swap_b32 v13, v12
        s_nop 1
        v_max3_f32 v12, v12, v13, v{mx}
        v_sub_f32 v13, v{mx}, v12
        v_cmp_eq_f32 vcc, v{mx}, v12
        v_exp_f32 v13, v13
        s_nop 1
        v_cndmask_b32 v13, v13, 1.0, vcc
        v_mov_b32 v{mx}, v12
        """)
        for i in range(16):
            a(f"v_mul_f32 v{O+i}, v13, v{O+i}")
        for i in range(4):
            a(f"v_mul_f32 v{L+i}, v13, v{L+i}")
        for i in range(16):
            a(f"v_sub_f32 v{S+i}, v{S+i}, v12")
        for i in range(16):
            a(f"v_exp_f32 v{S+i}, v{S+i}")
        a("s_nop 0")
        for i in range(8):
            a(f"v_cvt_pk_bf16_f32 v{PP+i}, v{S+2*i}, v{S+2*i+1}")
        a("s_nop 1")
        a(f"v_mfma_f32_32x32x16_bf16 {vr(O,16)}, {vr(VF,4)}, {vr(PP,4)}, {vr(O,16)}")
        a(f"v_mfma_f32_32x32x16_bf16 {vr(O,16)}, {vr(VF+4,4)}, {vr(PP+4,4)}, {vr(O,16)}")
        a(smf(L))
        a("s_nop 15")
    a(f"s_add_u32 {sr(sBLK)}, {sr(sBLK)}, 4096")
    a(f"s_add_u32 {sr(sJ)}, {sr(sJ)}, 1")
    a(f"s_cmp_lt_u32 {sr(sJ)}, 64")
    a(f"s_cbranch_scc1 {loop}")
    a(f"v_add_f32 v{LA}, v{LA}, v{LA+1}")
    a(f"v_add_f32 v{LA+4}, v{LA+4}, v{LA+5}")

def gstamp(a, reg):
    a("s_memtime s[70:71]")
    a("s_waitcnt lgkmcnt(0)")
    a("s_mov_b32 s69, m0")
    a("s_mov_b32 m0, s87")
    a(f"v_writelane_b32 v{reg-100}, s70, m0")
    a("s_mov_b32 m0, s69")

def lanestamp(a, reg, opt, lane=None):
    if not opt.get("stamps2"):
        return
    a("s_memtime s[70:71]")
    a("s_waitcnt lgkmcnt(0)")
    if lane == "m":
        a(f"s_mov_b32 s69, m0")
        a(f"s_sub_u32 m0, {sr(sJ)}, 1")
        a(f"v_writelane_b32 v{reg}, s70, m0")
        a(f"s_mov_b32 m0, s69")
    elif lane is None:
        a(f"s_mov_b32 s69, m0")
        a(f"s_mov_b32 m0, {sr(sJ)}")
        a(f"v_writelane_b32 v{reg}, s70, m0")
        a(f"s_mov_b32 m0, s69")
    else:
        a(f"v_writelane_b32 v{reg}, s70, {lane}")

def timestamp(a, idx, opt):
    if not opt.get("stamps"):
        return
    a(f"s_memtime s[70:71]")
    a(f"s_memrealtime s[92:93]")
    a("s_waitcnt lgkmcnt(0)")
    a(f"s_mov_b32 s{72+idx}, s70")
    a(f"s_mov_b32 s{80+idx}, s92")

def stamps_out(a, n, opt):
    if opt.get("stampsg"):
        a(f"""
        s_lshl_b32 {sr(sT1)}, s2, 3
        s_add_u32 {sr(sT1)}, {sr(sT1)}, {sr(sW)}
        s_lshl_b32 {sr(sT1)}, {sr(sT1)}, 10
        s_add_u32 {sr(sT1)}, {sr(sT1)}, {WS_DBG + (12 << 20)}
        v_lshlrev_b32 v12, 2, v0
        buffer_store_dword v104, v12, {sr(SRD_WS,4)}, {sr(sT1)} offen
        buffer_store_dword v105, v12, {sr(SRD_WS,4)}, {sr(sT1)} offen offset:256
        buffer_store_dword v106, v12, {sr(SRD_WS,4)}, {sr(sT1)} offen offset:512
        """)
    if opt.get("stamps2"):
        a(f"""
        s_lshl_b32 {sr(sT1)}, s2, 3
        s_add_u32 {sr(sT1)}, {sr(sT1)}, {sr(sW)}
        s_lshl_b32 {sr(sT1)}, {sr(sT1)}, 10
        s_add_u32 {sr(sT1)}, {sr(sT1)}, {WS_DBG + (10 << 20)}
        v_lshlrev_b32 v12, 2, v0
        buffer_store_dword v200, v12, {sr(SRD_WS,4)}, {sr(sT1)} offen
        buffer_store_dword v201, v12, {sr(SRD_WS,4)}, {sr(sT1)} offen offset:256
        buffer_store_dword v202, v12, {sr(SRD_WS,4)}, {sr(sT1)} offen offset:512
        buffer_store_dword v203, v12, {sr(SRD_WS,4)}, {sr(sT1)} offen offset:768
        """)
    if not opt.get("stamps"):
        return
    a(f"""
    s_lshl_b32 {sr(sT1)}, s2, 3
    s_add_u32 {sr(sT1)}, {sr(sT1)}, {sr(sW)}
    s_lshl_b32 {sr(sT1)}, {sr(sT1)}, 6
    s_add_u32 {sr(sT1)}, {sr(sT1)}, {WS_DBG + (8 << 20)}
    v_mov_b32 v13, 0
    """)
    for i in range(n):
        a(f"v_writelane_b32 v13, s{72+i}, {i}")
        a(f"v_writelane_b32 v13, s{80+i}, {8+i}")
    a(f"""
    v_lshlrev_b32 v12, 2, v0
    v_cmp_gt_u32 vcc, 16, v0
    s_and_saveexec_b64 {sr(sM,2)}, vcc
    buffer_store_dword v13, v12, {sr(SRD_WS,4)}, {sr(sT1)} offen
    s_mov_b64 exec, {sr(sM,2)}
    """)

def dbg_span(a, which):
    w = {"start": 4, "gemm": 12, "attn": 20, "end": 28, "e3": 36, "g0": 44, "hook": 52, "karg": 20, "dma": 36, "prew": 52, "smax": 60}[which]
    sk = a.label("sk")
    a(f"s_cmp_eq_u32 {sr(sW)}, 0")
    a(f"s_cbranch_scc0 {sk}")
    a("s_memrealtime s[92:93]")
    a("s_waitcnt lgkmcnt(0)")
    a(f"v_mov_b32 v12, s92")
    a(f"s_mov_b32 s93, {w}")
    a("s_mov_b64 exec, 1")
    a(f"buffer_atomic_umax v12, off, {sr(SRD_DBG,4)}, s93 sc1")
    a("s_mov_b64 exec, -1")
    a(f"{sk}:")

OPT = {}
def k12(opt):
    OPT.clear(); OPT.update(opt)
    a = Asm()
    a(f".globl {NAME12}\n.p2align 8\n.type {NAME12},@function\n{NAME12}:")
    timestamp(a, 0, opt)
    if opt.get("dbg_span") or opt.get("span2"):
        a("s_memrealtime s[84:85]")
    prologue(a, opt)
    if opt.get("dbg_span"):
        sk = a.label("sk")
        a(f"s_cmp_eq_u32 {sr(sW)}, 0")
        a(f"s_cbranch_scc0 {sk}")
        a("s_waitcnt lgkmcnt(0)")
        a("s_not_b32 s84, s84")
        a("v_mov_b32 v12, s84")
        a("s_mov_b32 s93, 4")
        a("s_mov_b64 exec, 1")
        a(f"buffer_atomic_umax v12, off, {sr(SRD_DBG,4)}, s93 sc1")
        a("s_mov_b64 exec, -1")
        a(f"{sk}:")
    gemm(a, opt)
    if opt.get("dbg_span") or opt.get("span2"): dbg_span(a, "gemm")
    if opt.get("stamps_start"):
        timestamp(a, 7, opt)
        opt = dict(opt); opt["stamps"] = 0
        gemm_epilogue(a, opt)
        a("s_waitcnt vmcnt(0) lgkmcnt(0)")
        opt["stamps"] = 1
        stamps_out(a, 8, opt)
        a("L_end12:\ns_endpgm")
        return a.text()
    timestamp(a, 1, opt)
    gemm_epilogue(a, opt)
    if opt.get("stop_after_gemm"):
        a("s_waitcnt vmcnt(0) lgkmcnt(0)")
        timestamp(a, 2, opt)
        stamps_out(a, 3, opt)
    else:
        timestamp(a, 2, opt)
        attention(a, opt)
        timestamp(a, 3, opt)
        if opt.get("dbg_span"): dbg_span(a, "attn")
        attn_epilogue(a, opt)
        if opt.get("fused"):
            phase3(a, opt)
            if opt.get("stamps"):
                a("s_waitcnt vmcnt(0)")
                timestamp(a, 7, opt)
            stamps_out(a, 8, opt)
            if opt.get("dbg_span") or opt.get("span2"):
                a("s_waitcnt vmcnt(0)")
                dbg_span(a, "end")
        else:
            a("s_waitcnt vmcnt(0)")
            timestamp(a, 4, opt)
            stamps_out(a, 5, opt)
    a("L_end12:\ns_endpgm")
    return a.text()

KD12 = f"""
.section .rodata,"a"
.p2align 6
.amdhsa_kernel {NAME12}
  .amdhsa_next_free_vgpr 256
  .amdhsa_next_free_sgpr 102
  .amdhsa_accum_offset 256
  .amdhsa_group_segment_fixed_size 0
  .amdhsa_kernarg_size 80
  .amdhsa_user_sgpr_count 2
  .amdhsa_user_sgpr_kernarg_segment_ptr 1
  .amdhsa_system_sgpr_workgroup_id_x 1
  .amdhsa_float_denorm_mode_32 3
.end_amdhsa_kernel
"""
```

```python
from asm import Asm, vr, sr, VmTracker

NAME12 = "gated_mix__mha_block__softmax_full_mha__prompt_kernel"
WS_KV = 0
WS_O = 16 << 20
WS_G = 24 << 20
WS_MB = 25 << 20
WS_MB2 = WS_MB + 65536
WS_DBG = 32 << 20
WS_SIZE = 0x10000000
LOG2E = 1.4426950408889634
QSCALE = LOG2E / (32 ** 0.5)

import struct
def f2u(x): return struct.unpack("<I", struct.pack("<f", x))[0]

SRD_X, SRD_W, SRD_WS, SRD_DBG, SRD_GW = 8, 12, 16, 20, 24
sW, sHH, sTQ, sHP, sTB = 28, 29, 30, 31, 32
sW1K = 33
sXJ = 34
sWJ = 35
sRING = 36
sRINGW = 37
sJ = 38
sT0, sT1, sT2, sT3 = 40, 41, 42, 43
sXQ = 44
sKVSRC = 45
sSLOT = 46
sBLK = 47
sM = 48
sM2 = 50
sOOFF = 52
sCNT = 53
sMB = 54
sLDSW = 55
sSRC = 39
sOFFS = 64
sNXT = 65
sCHKJ = 66
sARRJ = 67
sGOFF = 68
SRD_WO, SRD_OUT = 4, 56
sTB3, sCB, sROT, sMB2 = 60, 61, 62, 63
sAOFF, sWOFF = 100, 101
sLDSW3 = 34
vDW3 = 6
vLANE = 0
vDX, vDW, vXP, vWP, vXA, vW0 = 2, 3, 4, 5, 6, 7
vL16 = 10
vXB = 11
vT = 12
FR = [64, 84]
ACC = 160
QF = 16
OA = 32
LA = 64
NM = 72
SS = 104
PP = 136
KF = 144
VF = 152
ONES = 160
IDX = 164
vCUR, vNXT = 2, 3
vKVB, vDMA = 4, 5
vCHK = 15

RING = 20 * 8192
NSLOT3 = 10

def wrap_add(a, dst, src, const, tmp):
    a(f"s_add_u32 {sr(tmp)}, {sr(src)}, {const}")
    a(f"s_sub_u32 {dst}, {sr(tmp)}, {RING}")
    a(f"s_cselect_b32 {dst}, {sr(tmp)}, {dst}")

def prologue(a, opt):
    a(f"""
    s_cmp_ge_u32 s2, 256
    s_cbranch_scc1 L_end12
    """)
    if opt.get("codepf", 1):
        a("""
        s_getpc_b64 s[92:93]
        L_pc12:
        s_mov_b32 s3, L_end12-L_pc12
        v_lshlrev_b32 v1, 6, v0
        v_min_u32 v1, s3, v1
        global_load_dword v33, v1, s[92:93]
        """)
    a(f"""
    s_load_dwordx4 s[56:59], s[0:1], 0
    s_load_dwordx2 s[60:61], s[0:1], 32
    s_load_dwordx2 s[62:63], s[0:1], 48
    s_load_dwordx4 s[88:91], s[0:1], 64
    s_load_dwordx2 s[94:95], s[0:1], 16
    s_load_dwordx2 s[96:97], s[0:1], 40
    s_load_dwordx2 s[98:99], s[0:1], 56
    v_lshrrev_b32 v1, 6, v0
    v_and_b32 v0, 63, v0
    s_and_b32 s3, s2, 7
    v_readfirstlane_b32 {sr(sW)}, v1
    s_lshr_b32 s4, s2, 3
    s_and_b32 s5, s4, 3
    s_lshl_b32 s3, s3, 2
    s_add_u32 {sr(sHP)}, s3, s5
    s_lshr_b32 {sr(sTB)}, s4, 2
    s_lshr_b32 {sr(sHH)}, {sr(sW)}, 2
    s_and_b32 {sr(sTQ)}, {sr(sW)}, 3
    s_lshl_b32 {sr(sW1K)}, {sr(sW)}, 10
    """)
    a(f"""
    v_lshrrev_b32 v13, 3, v0                 ; r8
    v_and_b32 v14, 7, v0                     ; c'
    s_and_b32 {sr(sT0)}, {sr(sW)}, 1
    s_lshl_b32 {sr(sT0)}, {sr(sT0)}, 2
    v_lshrrev_b32 v15, 1, v13                ; r8>>1 (0..3)
    v_add_u32 v1, {sr(sT0)}, v15             ; 4*(w&1) + (r8>>1)
    v_xor_b32 v1, v1, v14                    ; cX
    s_lshl_b32 {sr(sT1)}, {sr(sW)}, 3
    v_add_u32 v13, {sr(sT1)}, v13            ; 8w + r8
    v_lshlrev_b32 {vr(vDX)}, 11, v13
    v_lshl_add_u32 {vr(vDX)}, v1, 4, {vr(vDX)}
    v_and_b32 v15, 1, v15
    v_lshlrev_b32 v15, 2, v15
    v_xor_b32 v15, v15, v14                  ; cW
    s_mov_b32 {sr(sT1)}, 6144
    v_mul_lo_u32 {vr(vDW)}, v13, {sr(sT1)}
    v_lshl_add_u32 {vr(vDW)}, v15, 4, {vr(vDW)}
    s_lshl_b32 {sr(sXJ)}, {sr(sTB)}, 19          ; tb*256*2048
    s_and_b32 {sr(sWJ)}, {sr(sHP)}, 15
    s_lshl_b32 {sr(sWJ)}, {sr(sWJ)}, 7           ; hpl*128
    s_waitcnt lgkmcnt(0)
    """)
    if opt.get("stamps_start"): timestamp(a, 1, opt)
    if opt.get("span2"): a("s_memrealtime s[78:79]")
    a(f"""
    s_mov_b32 {sr(SRD_X)}, s56
    s_mov_b32 {sr(SRD_X+1)}, s57
    s_mov_b32 {sr(SRD_X+2)}, {2048*1024*2}
    s_mov_b32 {sr(SRD_X+3)}, 0x00020000
    s_cmp_ge_u32 {sr(sHP)}, 16
    s_cselect_b32 {sr(SRD_W)}, s60, s58
    s_cselect_b32 {sr(SRD_W+1)}, s61, s59
    s_mov_b32 {sr(SRD_W+2)}, {1024*3072*2}
    s_mov_b32 {sr(SRD_W+3)}, 0x00020000
    """)
    for g in range(20):
        dma_unit_static(a, g)
        if g == 6 and opt.get("stamps_start"): timestamp(a, 2, opt)
    if opt.get("stamps_start"): timestamp(a, 3, opt)
    if opt.get("span2"): a("s_memrealtime s[80:81]")
    a(f"""
    s_mov_b32 {sr(SRD_WS)}, s90
    s_mov_b32 {sr(SRD_WS+1)}, s91
    s_mov_b32 {sr(SRD_WS+2)}, {WS_SIZE}
    s_mov_b32 {sr(SRD_WS+3)}, 0x00020000
    s_mov_b32 {sr(SRD_DBG)}, s88
    s_mov_b32 {sr(SRD_DBG+1)}, s89
    s_mov_b32 {sr(SRD_DBG+2)}, 256
    s_mov_b32 {sr(SRD_DBG+3)}, 0x00020000
    s_mov_b32 {sr(SRD_GW)}, s62
    s_mov_b32 {sr(SRD_GW+1)}, s63
    s_mov_b32 {sr(SRD_GW+2)}, 2048
    s_mov_b32 {sr(SRD_GW+3)}, 0x00020000
    """)
    a(f"""
    s_and_b32 s3, s2, 7
    s_lshr_b32 {sr(sT1)}, s2, 3
    s_lshr_b32 {sr(sT2)}, s3, 1
    s_lshl_b32 {sr(sT2)}, {sr(sT2)}, 2
    s_and_b32 {sr(sT3)}, {sr(sT1)}, 3
    s_add_u32 {sr(sTB3)}, {sr(sT2)}, {sr(sT3)}
    s_and_b32 {sr(sT2)}, s3, 1
    s_lshl_b32 {sr(sT2)}, {sr(sT2)}, 3
    s_lshr_b32 {sr(sT1)}, {sr(sT1)}, 2
    s_add_u32 {sr(sCB)}, {sr(sT2)}, {sr(sT1)}
    s_add_u32 {sr(sROT)}, {sr(sTB3)}, {sr(sCB)}
    s_and_b32 {sr(sROT)}, {sr(sROT)}, 15
    s_lshl_b32 {sr(sMB2)}, {sr(sTB3)}, 4
    s_add_u32 {sr(sMB2)}, {sr(sMB2)}, {sr(sCB)}
    s_lshl_b32 {sr(sMB2)}, {sr(sMB2)}, 7
    s_add_u32 {sr(sMB2)}, {sr(sMB2)}, {WS_MB2}
    s_cmp_eq_u32 {sr(sHH)}, 1
    s_cselect_b32 {sr(SRD_WO)}, s96, s94
    s_cselect_b32 {sr(SRD_WO+1)}, s97, s95
    s_mov_b32 {sr(SRD_WO+2)}, {1024*1024*2}
    s_mov_b32 {sr(SRD_WO+3)}, 0x00020000
    s_mov_b32 {sr(SRD_OUT)}, s98
    s_mov_b32 {sr(SRD_OUT+1)}, s99
    s_mov_b32 {sr(SRD_OUT+2)}, {2048*1024*2}
    s_mov_b32 {sr(SRD_OUT+3)}, 0x00020000
    """)
    nr = a.label("nr")
    a(f"""
    s_lshl_b32 {sr(sMB)}, {sr(sHP)}, 3
    s_add_u32 {sr(sMB)}, {sr(sMB)}, {sr(sTB)}
    s_lshl_b32 {sr(sMB)}, {sr(sMB)}, 7
    s_add_u32 {sr(sMB)}, {sr(sMB)}, {WS_MB}
    s_lshl_b32 {sr(sCNT)}, {sr(sHP)}, 3
    s_cmp_eq_u32 {sr(sW)}, 0
    s_cselect_b32 {sr(sCHKJ)}, 5, 0xffff
    s_cselect_b32 {sr(sARRJ)}, 11, 0xffff
    s_cbranch_scc0 {nr}
    v_lshlrev_b32 v12, 2, v0
    s_sub_u32 {sr(sT0)}, {sr(sMB2)}, 128
    v_mov_b32 v13, {sr(sMB)}
    v_mov_b32 v14, {sr(sT0)}
    v_cmp_gt_u32 vcc, 32, v0
    s_nop 1
    v_cndmask_b32 v13, v14, v13, vcc
    v_add_u32 v12, v12, v13
    v_mov_b32 v13, 0
    buffer_store_dword v13, v12, {sr(SRD_WS,4)}, 0 offen sc1
    {nr}:
    """)
    a(f"""
    s_lshl_b32 {sr(sT0)}, {sr(sTB)}, 8
    s_lshl_b32 {sr(sT1)}, {sr(sHP)}, 3
    s_add_u32 {sr(sT0)}, {sr(sT0)}, {sr(sT1)}
    s_add_u32 {sr(sT0)}, {sr(sT0)}, {sr(sW)}
    s_lshl_b32 {sr(sT2)}, {sr(sT0)}, 11
    v_lshlrev_b32 v12, 5, v0
    buffer_load_dwordx4 v[16:19], v12, {sr(SRD_X,4)}, {sr(sT2)} offen
    buffer_load_dwordx4 v[20:23], v12, {sr(SRD_X,4)}, {sr(sT2)} offen offset:16
    buffer_load_dwordx4 v[24:27], v12, {sr(SRD_GW,4)}, 0 offen
    buffer_load_dwordx4 v[28:31], v12, {sr(SRD_GW,4)}, 0 offen offset:16
    s_lshl_b32 {sr(sGOFF)}, {sr(sT0)}, 2
    """)
    if opt.get("warm", 0):
        a(f"""
        s_lshl_b32 {sr(sT0)}, s2, 14
        s_lshl_b32 {sr(sT1)}, {sr(sW)}, 11
        s_add_u32 {sr(sT0)}, {sr(sT0)}, {sr(sT1)}
        v_lshlrev_b32 v12, 4, v0
        buffer_load_dwordx4 v[32:35], v12, {sr(SRD_X,4)}, {sr(sT0)} offen
        buffer_load_dwordx4 v[36:39], v12, {sr(SRD_X,4)}, {sr(sT0)} offen offset:1024
        """)
        a(f"""
        s_and_b32 {sr(sT0)}, {sr(sHP)}, 15
        s_lshl_b32 {sr(sT0)}, {sr(sT0)}, 3
        s_add_u32 {sr(sT0)}, {sr(sT0)}, {sr(sTB)}
        s_mul_i32 {sr(sT0)}, {sr(sT0)}, 49152
        s_mul_i32 {sr(sT1)}, {sr(sW)}, 6144
        s_add_u32 {sr(sT0)}, {sr(sT0)}, {sr(sT1)}
        s_add_u32 {sr(sT1)}, {sr(sT0)}, 4096
        """)
        for i in range(6):
            so = sT0 if i < 4 else sT1
            a(f"buffer_load_dwordx4 v[{40+4*i}:{43+4*i}], v12, {sr(SRD_W,4)}, {sr(so)} offen offset:{(i % 4) * 1024}")
    if opt.get("touch", 1):
        a(f"""
        s_lshl_b32 {sr(sT0)}, {sr(sHP)}, 19
        s_lshl_b32 {sr(sT1)}, {sr(sTB)}, 20
        s_add_u32 {sr(sT1)}, {sr(sT1)}, {WS_O}
        s_lshl_b32 {sr(sT2)}, {sr(sTB3)}, 19
        s_add_u32 {sr(sT2)}, {sr(sT2)}, {WS_O}
        s_lshl_b32 {sr(sT3)}, {sr(sTB3)}, 18
        buffer_load_dword v104, off, {sr(SRD_WS,4)}, {sr(sT0)}
        buffer_load_dword v105, off, {sr(SRD_WS,4)}, {sr(sT1)}
        buffer_load_dword v106, off, {sr(SRD_WS,4)}, {sr(sT2)}
        buffer_load_dword v107, off, {sr(SRD_WO,4)}, 0
        buffer_load_dword v108, off, {sr(SRD_OUT,4)}, {sr(sT3)}
        s_mov_b32 {sr(sT0)}, {1024*1024*2 - 4}
        buffer_load_dword v109, off, {sr(SRD_WO,4)}, {sr(sT0)}
        """)
    a(f"""
    v_and_b32 v13, 31, v0
    v_lshrrev_b32 v14, 5, v0                 ; h
    v_bfe_u32 v15, v13, 1, 3
    v_xor_b32 v15, v15, v14
    v_lshlrev_b32 {vr(vXP)}, 7, v13
    v_lshl_add_u32 {vr(vXP)}, v15, 4, {vr(vXP)}
    v_bfe_u32 v13, v0, 2, 2                  ; r
    v_lshl_add_u32 v1, v14, 3, v13           ; 8h + r
    v_lshlrev_b32 {vr(vWP)}, 7, v1
    v_bfe_u32 v15, v0, 4, 1                  ; g
    v_lshlrev_b32 v15, 1, v15
    v_bfe_u32 v1, v0, 1, 1                   ; c>>1
    v_add_u32 v15, v15, v1
    s_lshl_b32 {sr(sT1)}, {sr(sHH)}, 2
    v_add_u32 v15, {sr(sT1)}, v15            ; cc
    v_lshrrev_b32 v13, 1, v13
    v_lshlrev_b32 v13, 2, v13
    v_xor_b32 v15, v15, v13
    v_lshl_add_u32 {vr(vWP)}, v15, 4, {vr(vWP)}
    v_and_b32 v1, 1, v0
    v_lshl_add_u32 {vr(vWP)}, v1, 3, {vr(vWP)}
    v_lshlrev_b32 {vr(vL16)}, 4, v0
    s_add_u32 {sr(sXQ)}, {sr(sTQ)}, 3
    s_lshl_b32 {sr(sXQ)}, {sr(sXQ)}, 13
    """)

def dma_unit_static(a, g):
    j, u = divmod(g, 7)
    a(f"s_add_u32 m0, {sr(sW1K)}, {(g % 20) * 8192}")
    if u < 3:
        a(f"s_add_u32 {sr(sT0)}, {sr(sWJ)}, {j * 64 * 6144 + u * 2048}")
        a(f"buffer_load_dwordx4 {vr(vDW)}, {sr(SRD_W,4)}, {sr(sT0)} offen lds")
    else:
        a(f"s_add_u32 {sr(sT0)}, {sr(sXJ)}, {j * 128 + (u - 3) * 131072}")
        a(f"buffer_load_dwordx4 {vr(vDX)}, {sr(SRD_X,4)}, {sr(sT0)} offen lds")

def gate_instrs():
    c = ["v_mov_b32 v12, 0"]
    for i in range(8):
        x, w = 16 + i, 24 + i
        c += [f"v_lshlrev_b32 v13, 16, v{x}", f"v_and_b32 v14, 0xffff0000, v{x}", f"v_lshlrev_b32 v32, 16, v{w}",
              f"v_and_b32 v1, 0xffff0000, v{w}", "v_mul_f32 v13, v13, v32", "v_mul_f32 v14, v14, v1",
              "v_cvt_pk_bf16_f32 v13, v13, v14", "v_lshlrev_b32 v14, 16, v13", "v_and_b32 v13, 0xffff0000, v13",
              "v_add_f32 v12, v12, v14", "v_add_f32 v12, v12, v13"]
    for sh in (1, 2, 4, 8):
        c += [f"s_nop 1\nv_add_f32_dpp v12, v12, v12 row_shr:{sh} row_mask:0xf bank_mask:0xf bound_ctrl:0"]
    c += ["s_nop 1\nv_add_f32_dpp v12, v12, v12 row_bcast:15 row_mask:0xa bank_mask:0xf"]
    c += ["s_nop 1\nv_add_f32_dpp v12, v12, v12 row_bcast:31 row_mask:0xc bank_mask:0xf"]
    c += ["s_nop 1\nv_cvt_pk_bf16_f32 v12, v12, v12", "v_lshlrev_b32 v12, 16, v12", f"v_mul_f32 v12, {hex(f2u(-LOG2E))}, v12",
          "v_exp_f32 v12, v12\ns_nop 0\nv_add_f32 v12, 1.0, v12", "v_rcp_f32 v12, v12\ns_nop 0\nv_cvt_pk_bf16_f32 v12, v12, v12",
          "v_lshlrev_b32 v12, 16, v12", f"v_mov_b32 v13, {WS_G}"]
    st = [f"""s_mov_b32 exec_lo, 0
    s_mov_b32 exec_hi, 0x80000000
    buffer_store_dword v12, v13, {sr(SRD_WS,4)}, {sr(sGOFF)} offen sc1
    s_mov_b64 exec, -1"""]
    return c, st

def frag(set_, name):
    off = {"X0": 0, "X1": 4, "Wq": 8, "Wk": 12, "Wv": 16}[name]
    return FR[set_] + off

def gemm_reads(ks, set_):
    r = []
    r.append(f"ds_read_b128 {vr(frag(set_,'X0'),4)}, {vr(vXA)}")
    for u, nm in enumerate(("Wq", "Wk", "Wv")):
        b = frag(set_, nm)
        r.append(f"ds_read_b64_tr_b16 {vr(b,2)}, {vr(vW0+u)} offset:{ks*2048}")
        r.append(f"ds_read_b64_tr_b16 {vr(b+2,2)}, {vr(vW0+u)} offset:{ks*2048+512}")
        if u == 0:
            r.append(f"ds_read_b128 {vr(frag(set_,'X1'),4)}, {vr(vXA)} offset:4096")
    return r

def gemm_mfmas(set_, first=False):
    m = []
    X0, X1 = frag(set_, "X0"), frag(set_, "X1")
    Wq, Wk, Wv = frag(set_, "Wq"), frag(set_, "Wk"), frag(set_, "Wv")
    def mf(acc, A, B): return f"v_mfma_f32_32x32x16_bf16 {vr(acc,16)}, {vr(A,4)}, {vr(B,4)}, {'0' if first else vr(acc,16)}"
    m.append(mf(ACC + 0, Wq, X0))
    m.append(mf(ACC + 32, Wk, X0))
    m.append(mf(ACC + 64, X0, Wv))
    m.append(mf(ACC + 16, Wq, X1))
    m.append(mf(ACC + 48, Wk, X1))
    m.append(mf(ACC + 80, X1, Wv))
    return m

def wrap_list(dst, src, const, tmp):
    return [f"s_add_u32 {sr(tmp)}, {sr(src)}, {const}", f"s_sub_u32 {dst}, {sr(tmp)}, {RING}", f"s_cselect_b32 {dst}, {sr(tmp)}, {dst}"]

def read_bases_list():
    r = [f"v_add_u32 {vr(vW0)}, {sr(sRING)}, {vr(vWP)}"]
    for u in (1, 2):
        r += wrap_list(sr(sT1), sRING, u * 8192, sT0)
        r.append(f"v_add_u32 {vr(vW0+u)}, {sr(sT1)}, {vr(vWP)}")
    r += [f"s_add_u32 {sr(sT0)}, {sr(sRING)}, {sr(sXQ)}", f"s_sub_u32 {sr(sT1)}, {sr(sT0)}, {RING}",
          f"s_cselect_b32 {sr(sT1)}, {sr(sT0)}, {sr(sT1)}", f"v_add_u32 {vr(vXB)}, {sr(sT1)}, {vr(vXP)}",
          f"v_mov_b32 {vr(vXA)}, {vr(vXB)}"]
    return r

def dma_group(i):
    if OPT.get("g_nodma"): return []
    s = [f"s_add_u32 {sr(sT2)}, {sr(sRINGW)}, {i * 8192}", f"s_sub_u32 m0, {sr(sT2)}, {RING}", f"s_cselect_b32 m0, {sr(sT2)}, m0"]
    if i == 0:
        s.append(f"s_add_u32 {sr(sT3)}, {sr(sXJ)}, {3 * 131072 - 128}")
        s.append(f"buffer_load_dwordx4 {vr(vDX)}, {sr(SRD_X,4)}, {sr(sT3)} offen lds")
    elif i <= 3:
        s.append(f"s_add_u32 {sr(sT3)}, {sr(sWJ)}, {(i - 1) * 2048}")
        s.append(f"buffer_load_dwordx4 {vr(vDW)}, {sr(SRD_W,4)}, {sr(sT3)} offen lds")
    else:
        s.append(f"s_add_u32 {sr(sT3)}, {sr(sXJ)}, {(i - 4) * 131072}")
        s.append(f"buffer_load_dwordx4 {vr(vDX)}, {sr(SRD_X,4)}, {sr(sT3)} offen lds")
    return s

def kstep(a, cur, next_ks, gaps_extra, first=False):
    m = gemm_mfmas(cur, first)
    r = gemm_reads(next_ks, cur ^ 1) if next_ks is not None else []
    gaps = [[] for _ in range(6)]
    for i, x in enumerate(r):
        gaps[min(i // 3, 5)].append(x)
    for g in range(6):
        gaps[g] += gaps_extra.get(g, [])
    for i in range(6):
        a(m[i])
        for x in gaps[i]:
            a(x)

def gemm_stage(a, pending, new_batch, vm_wait, first=False, last=False, valu=None, after_bar=None):
    prio = OPT.get("gprio", 1)
    sp = lambda n: [f"s_setprio {n}"] if prio else []
    valu = list(valu or [])
    per = (len(valu) + 2) // 3
    for ks in range(3):
        ex = {}
        mine = [i for i in pending if (i - 2) // 2 == ks]
        if mine:
            ex[2] = dma_group(mine[0])
        if len(mine) > 1:
            ex[4] = dma_group(mine[1])
        chunk = valu[ks * per:(ks + 1) * per]
        n3 = (len(chunk) + 2) // 3
        for k, g in enumerate((1, 3, 5)):
            ex[g] = ex.get(g, []) + chunk[k * n3:(k + 1) * n3]
        ex[0] = sp(2 - ks)
        if ks < 2:
            ex[5] = ex.get(5, []) + [f"v_xor_b32 {vr(vXA)}, {(ks + 2) << 5}, {vr(vXB)}"]
        else:
            upd = [f"s_add_u32 {sr(sRINGW)}, {sr(sRING)}, {sr(sW1K)}", f"s_add_u32 {sr(sXJ)}, {sr(sXJ)}, 128",
                   f"s_add_u32 {sr(sWJ)}, {sr(sWJ)}, {64 * 6144}"] + wrap_list(sr(sRING), sRING, 7 * 8192, sT0)
            ex[3] = ex.get(3, []) + upd
            if not last:
                ex[4] = ex.get(4, []) + read_bases_list()
        a("s_waitcnt lgkmcnt(0)")
        kstep(a, ks & 1, ks + 1, ex, first=(first and ks == 0))
    if OPT.get("stampsg"):
        a("s_waitcnt lgkmcnt(0)")
        gstamp(a, 204)
    if vm_wait is not None:
        a(f"s_waitcnt vmcnt({vm_wait}) lgkmcnt(0)")
    else:
        a("s_waitcnt lgkmcnt(0)")
    if OPT.get("stampsg"): gstamp(a, 205)
    if not OPT.get("g_nobar"): a("s_barrier")
    if OPT.get("stampsg"):
        gstamp(a, 206)
        a("s_add_u32 s87, s87, 1")
    ex = {0: sp(3)}
    if len(new_batch) > 0: ex[2] = dma_group(new_batch[0])
    if len(new_batch) > 1: ex[4] = dma_group(new_batch[1])
    if not last:
        ex[5] = [f"v_xor_b32 {vr(vXA)}, {1 << 5}, {vr(vXB)}"]
    if after_bar:
        ex[5] = ex.get(5, []) + after_bar
    kstep(a, 1, None if last else 0, ex)

def gemm(a, opt):
    if OPT.get("stampsg"): a("s_mov_b32 s87, 0")
    a(f"s_add_u32 {sr(sXJ)}, {sr(sXJ)}, {2 * 128}")
    a(f"s_add_u32 {sr(sWJ)}, {sr(sWJ)}, {2 * 64 * 6144}")
    a(f"s_mov_b32 {sr(sRING)}, 0")
    for x in read_bases_list(): a(x)
    if opt.get("stamps_start"): timestamp(a, 4, opt)
    if opt.get("span2"): a("s_memrealtime s[82:83]")
    nw = (8 if opt.get("warm", 0) else 0) + (6 if opt.get("touch", 1) else 0)
    a(f"s_waitcnt vmcnt({17 + nw})")
    if opt.get("stamps_start"): timestamp(a, 5, opt)
    a("s_barrier")
    if opt.get("dbg_span"): dbg_span(a, "g0")
    if opt.get("span2"):
        sk = a.label("sk2")
        a(f"s_memrealtime s[76:77]")
        a(f"s_cmp_eq_u32 {sr(sW)}, 0")
        a(f"s_cbranch_scc0 {sk}")
        a("s_waitcnt lgkmcnt(0)")
        a("s_not_b32 s75, s84")
        for reg, off in ((75, 4), (84, 60), (78, 20), (80, 36), (82, 52), (76, 44)):
            a(f"v_mov_b32 v12, s{reg}")
            a(f"s_mov_b32 s93, {off}")
            a("s_mov_b64 exec, 1")
            a(f"buffer_atomic_umax v12, off, {sr(SRD_DBG,4)}, s93 sc1")
            a("s_mov_b64 exec, -1")
        a(f"{sk}:")
    if opt.get("stamps_start"): timestamp(a, 6, opt)
    for x in gemm_reads(0, 0):
        a(x)
    a(f"v_xor_b32 {vr(vXA)}, {1 << 5}, {vr(vXB)}")
    gemm_stage(a, [], [0, 1], 10 + nw, first=True)
    a(f"s_mov_b32 {sr(sJ)}, 12")
    lab = a.label("gemm")
    a(".p2align 6")
    a(f"{lab}:")
    gemm_stage(a, [2, 3, 4, 5, 6], [0, 1], 6)
    nc = a.label("nc"); nd = a.label("nd")
    a(f"s_cmp_eq_u32 {sr(sJ)}, {sr(sARRJ)}")
    a(f"s_cbranch_scc0 {nd}")
    a(f"""
    v_mov_b32 v12, 1
    s_mov_b64 exec, 1
    buffer_atomic_add v12, off, {sr(SRD_DBG,4)}, {sr(sCNT)} sc1
    s_mov_b64 exec, -1
    s_nop 3
    """)
    a(f"{nd}:")
    a(f"s_cmp_eq_u32 {sr(sJ)}, {sr(sCHKJ)}")
    a(f"s_cbranch_scc0 {nc}")
    a(f"v_lshlrev_b32 v12, 2, v0")
    a(f"buffer_load_dword {vr(vCHK)}, v12, {sr(SRD_DBG,4)}, 0 offen sc1")
    a(f"{nc}:")
    a(f"s_sub_u32 {sr(sJ)}, {sr(sJ)}, 1")
    a(f"s_cmp_lg_u32 {sr(sJ)}, 0")
    a(f"s_cbranch_scc1 {lab}")
    gc, gs = gate_instrs()
    gemm_stage(a, [2, 3, 4, 5, 6], [0], 6)
    gemm_stage(a, [], [], 0, valu=gc, after_bar=gs + ["s_nop 3"])
    gemm_stage(a, [], [], None, last=True)
    a("s_setprio 0")
    a("s_nop 15")

def gemm_epilogue(a, opt):
    for tile in (2, 3, 4, 5):
        b = ACC + 16 * tile
        for i in range(8):
            a(f"v_cvt_pk_bf16_f32 v{b+i}, v{b+2*i}, v{b+2*i+1}")
    a(f"""
    s_lshl_b32 {sr(sT1)}, {sr(sHP)}, 1
    s_add_u32 {sr(sT1)}, {sr(sT1)}, {sr(sHH)}
    s_lshl_b32 {sr(sKVSRC)}, {sr(sT1)}, 18
    s_lshl_b32 {sr(sT1)}, {sr(sTB)}, 15
    s_lshl_b32 {sr(sT2)}, {sr(sTQ)}, 13
    s_add_u32 {sr(sT1)}, {sr(sT1)}, {sr(sT2)}
    s_add_u32 {sr(sT1)}, {sr(sT1)}, {sr(sKVSRC)}
    s_add_u32 {sr(sT2)}, {sr(sT1)}, 4096
    """)
    for tt in range(2):
        so = sT1 if tt == 0 else sT2
        kb, vb = ACC + 32 + 16 * tt, ACC + 64 + 16 * tt
        a(f"buffer_store_dwordx4 {vr(kb,4)}, {vr(vL16)}, {sr(SRD_WS,4)}, {sr(so)} offen sc1")
        a(f"buffer_store_dwordx4 {vr(kb+4,4)}, {vr(vL16)}, {sr(SRD_WS,4)}, {sr(so)} offen offset:1024 sc1")
        a(f"buffer_store_dwordx4 {vr(vb,4)}, {vr(vL16)}, {sr(SRD_WS,4)}, {sr(so)} offen offset:2048 sc1")
        a(f"buffer_store_dwordx4 {vr(vb+4,4)}, {vr(vL16)}, {sr(SRD_WS,4)}, {sr(so)} offen offset:3072 sc1")
    a(f"s_mov_b32 {sr(sT2)}, {hex(f2u(QSCALE))}")
    a(f"s_mov_b32 {sr(sT3)}, {hex(f2u(QSCALE))}")
    for tt in range(2):
        b = ACC + 16 * tt
        for i in range(8):
            a(f"v_pk_mul_f32 {vr(b+2*i,2)}, {vr(b+2*i,2)}, {sr(sT2,2)}")
        for i in range(8):
            a(f"v_cvt_pk_bf16_f32 v{QF+8*tt+i}, v{b+2*i}, v{b+2*i+1}")
    kb = ACC + 32
    a("s_nop 1")
    for x in range(2):
        S, Q = SS + 16 * x, QF + 8 * x
        a(f"v_mfma_f32_32x32x16_bf16 {vr(S,16)}, {vr(kb,4)}, {vr(Q,4)}, 0")
        a(f"v_mfma_f32_32x32x16_bf16 {vr(S,16)}, {vr(kb+4,4)}, {vr(Q+4,4)}, {vr(S,16)}")
    a(f"""
    s_lshr_b32 {sr(sT1)}, {sr(sTQ)}, 1
    s_lshl_b32 {sr(sT1)}, {sr(sT1)}, 15
    s_lshl_b32 {sr(sT2)}, {sr(sHH)}, 14
    s_add_u32 {sr(sT1)}, {sr(sT1)}, {sr(sT2)}
    s_and_b32 {sr(sT2)}, {sr(sTQ)}, 1
    s_lshl_b32 {sr(sT2)}, {sr(sT2)}, 13
    s_add_u32 {sr(sT1)}, {sr(sT1)}, {sr(sT2)}
    v_add_u32 v12, {sr(sT1)}, {vr(vL16)}
    """)
    for tt in range(2):
        kb, vb = ACC + 32 + 16 * tt, ACC + 64 + 16 * tt
        a(f"ds_write_b128 v12, {vr(kb,4)} offset:{tt*4096}")
        a(f"ds_write_b128 v12, {vr(kb+4,4)} offset:{tt*4096+1024}")
        a(f"ds_write_b128 v12, {vr(vb,4)} offset:{tt*4096+2048}")
        a(f"ds_write_b128 v12, {vr(vb+4,4)} offset:{tt*4096+3072}")
    if opt.get("dump_q"):
        a(f"""
        s_lshl_b32 {sr(sT1)}, s2, 3
        s_add_u32 {sr(sT1)}, {sr(sT1)}, {sr(sW)}
        s_lshl_b32 {sr(sT1)}, {sr(sT1)}, 12
        s_add_u32 {sr(sT1)}, {sr(sT1)}, {WS_DBG}
        """)
        for i in range(4):
            a(f"buffer_store_dwordx4 {vr(QF+4*i,4)}, {vr(vL16)}, {sr(SRD_WS,4)}, {sr(sT1)} offen offset:{i*1024}")

def smf(L):
    return f"v_smfmac_f32_16x16x64_bf16 {vr(L,4)}, {vr(ONES,4)}, {vr(PP,8)}, {vr(IDX)}"

def attn_unit(a, t, x, hooks, skip_prev=False, c_zero=False):
    S = SS + 16 * x
    Sn = SS + 16 * (x ^ 1)
    xn = xp = x ^ 1
    Qn = QF + 8 * xn
    P0, P1 = PP, PP + 4
    def M(d, A, B, C): return f"v_mfma_f32_32x32x16_bf16 {vr(d,16)}, {vr(A,4)}, {vr(B,4)}, {C}"
    e = lambda i: f"v_exp_f32 v{S+i}, v{S+i}"
    c = lambda i: f"v_cvt_pk_bf16_f32 v{PP+i}, v{S+2*i}, v{S+2*i+1}"
    mf = [M(Sn, KF, Qn, vr(NM + 16 * xn, 16)),
          None if skip_prev else M(OA + 16 * xp, VF + 4, P1, vr(OA + 16 * xp, 16)),
          None if skip_prev else smf(LA + 4 * xp),
          M(Sn, KF + 4, Qn + 4, vr(Sn, 16)),
          M(OA + 16 * x, VF, P0, "0" if c_zero else vr(OA + 16 * x, 16))]
    va = [[e(0), e(1), e(2)], [e(3), e(4), e(5)], [e(6), e(7), c(0), c(1), c(2), c(3)],
          [e(8), e(9), e(10)], [e(11), e(12), e(13), e(14), e(15), c(4), c(5), c(6), c(7)]]
    for g in range(5):
        if mf[g]: a(mf[g])
        for h in hooks.get(g, []):
            a(h)
        for v in va[g]:
            a(v)

def kv_addr(tile, f):
    if tile < 4:
        return vCUR, tile * 4096 + f * 1024
    return vNXT, f * 1024

def rd(dst, tile, f):
    b, o = kv_addr(tile, f)
    return f"ds_read_b128 {vr(dst,4)}, {vr(b)} offset:{o}"

def kv_dma(p, so):
    return f"buffer_load_dwordx4 {vr(vDMA)}, {sr(SRD_WS,4)}, {sr(so)} offen offset:{p*1024} sc1 lds"

def poll_mailbox(a, want_all):
    poll, done = a.label("poll"), a.label("pdone")
    a(f"s_mov_b32 {sr(sT1)}, 400000")
    a(f"v_lshlrev_b32 v13, 2, v0")
    a(f"s_add_u32 {sr(sT2)}, {sr(sTB)}, 1")
    a(f"s_and_b32 {sr(sT2)}, {sr(sT2)}, 7")
    a(f"s_lshl_b32 {sr(sT2)}, 1, {sr(sT2)}")
    if want_all:
        a(f"s_mov_b32 {sr(sT2)}, 0xff")
    a("s_mov_b64 exec, 0xff")
    a(f"{poll}:")
    a(f"buffer_load_dword v12, v13, {sr(SRD_WS,4)}, {sr(sMB)} offen sc1")
    a("s_waitcnt vmcnt(0)")
    a("v_cmp_eq_u32 vcc, 1, v12")
    a("s_nop 3")
    a(f"s_and_b32 {sr(sT3)}, vcc_lo, {sr(sT2)}")
    a(f"s_cmp_eq_u32 {sr(sT3)}, {sr(sT2)}")
    a(f"s_cbranch_scc1 {done}")
    a(f"s_sub_u32 {sr(sT1)}, {sr(sT1)}, 1")
    a(f"s_cbranch_scc1 {done}")
    a("s_sleep 1")
    a(f"s_branch {poll}")
    a(f"{done}:")
    a("s_mov_b64 exec, -1")

def publish(a):
    spin, ok = a.label("rdy"), a.label("rdyok")
    a(f"s_mov_b32 {sr(sT1)}, 400000")
    a(f"s_mov_b32 {sr(sT2)}, 0x55555555")
    a(f"v_lshlrev_b32 v12, 2, v0")
    a(f"{spin}:")
    a(f"v_cmp_eq_u32 vcc, 8, {vr(vCHK)}")
    a("s_nop 3")
    a(f"s_and_b32 {sr(sT0)}, vcc_lo, {sr(sT2)}")
    a(f"s_and_b32 {sr(sT3)}, vcc_hi, {sr(sT2)}")
    a(f"s_and_b32 {sr(sT0)}, {sr(sT0)}, {sr(sT3)}")
    a(f"s_cmp_eq_u32 {sr(sT0)}, {sr(sT2)}")
    a(f"s_cbranch_scc1 {ok}")
    a(f"s_sub_u32 {sr(sT1)}, {sr(sT1)}, 1")
    a(f"s_cbranch_scc1 {ok}")
    a(f"buffer_load_dword {vr(vCHK)}, v12, {sr(SRD_DBG,4)}, 0 offen sc1")
    a("s_waitcnt vmcnt(0)")
    a(f"s_branch {spin}")
    a(f"{ok}:")
    a(f"""
    s_lshl_b32 {sr(sT0)}, {sr(sHP)}, 10
    s_lshl_b32 {sr(sT1)}, {sr(sTB)}, 2
    s_add_u32 {sr(sT0)}, {sr(sT0)}, {sr(sT1)}
    s_add_u32 {sr(sT0)}, {sr(sT0)}, {WS_MB}
    v_lshlrev_b32 v12, 7, v0
    v_mov_b32 v13, 1
    s_mov_b64 exec, 0xff
    buffer_store_dword v13, v12, {sr(SRD_WS,4)}, {sr(sT0)} offen sc1
    s_mov_b64 exec, -1
    """)

def wo_piece(i, half):
    return [f"s_add_u32 {sr(sT0)}, {sr(sROT)}, {i}", f"s_and_b32 {sr(sT0)}, {sr(sT0)}, 15", f"s_lshl_b32 {sr(sT0)}, {sr(sT0)}, 17",
            f"s_add_u32 {sr(sT0)}, {sr(sT0)}, {sr(sWOFF)}"] + ([f"s_add_u32 {sr(sT0)}, {sr(sT0)}, 16384"] if half else []) + \
           [f"s_add_u32 m0, {sr(sLDSW3)}, {(i % NSLOT3) * 16384 + half * 1024}", "s_nop 0",
            f"buffer_load_dwordx4 {vr(vDW3)}, {sr(SRD_WO,4)}, {sr(sT0)} offen lds"]

def attn_stage(a, opt, kind, s_=None):
    prio = opt.get("prio", 1)
    def sp(n): return [f"s_setprio {n}"] if prio else []
    for t in range(4):
        h0 = {0: [rd(KF, t + 1, 0)], 1: [rd(VF + 4, t, 3)], 2: ["s_waitcnt lgkmcnt(2)"],
              3: [rd(KF + 4, t + 1, 1)], 4: ["s_waitcnt lgkmcnt(2)"]}
        h1 = {0: ["s_waitcnt lgkmcnt(1)"], 1: [], 2: ["s_waitcnt lgkmcnt(0)"], 3: [], 4: [rd(VF, t + 1, 2)]}
        if t == 0:
            h0[0] += sp(2)
            h0[4] += [f"s_mov_b32 {sr(sNXT)}, {sr(sSLOT)}"]
            h1[1] = [f"s_add_u32 {sr(sSRC)}, {sr(sSRC)}, 16384"]
            h1[3] = [f"s_and_b32 {sr(sSRC)}, {sr(sSRC)}, 0x3ffff"]
        if t == 1:
            h0[0] += sp(1)
            h1[1] = [f"s_add_u32 {sr(sSLOT)}, {sr(sSLOT)}, 32768"]
            h1[3] = [f"s_and_b32 {sr(sSLOT)}, {sr(sSLOT)}, 0x1ffff"]
            if kind == 0:
                h1[4] += ["s_waitcnt vmcnt(0)", "s_barrier"]
            if kind == 3 and s_ == 13:
                h0[2] += wo_piece(8, 0)
                h0[4] += wo_piece(8, 1)
                h1[0] += wo_piece(9, 0)
                h1[2] += wo_piece(9, 1)
            if kind == 1:
                go = a.label("go")
                lanestamp(a, 203, opt, 0)
                a(f"s_cmp_eq_u32 {sr(sW)}, 0")
                a(f"s_cbranch_scc0 {go}")
                poll_mailbox(a, False)
                a(f"{go}:")
                lanestamp(a, 203, opt, 1)
                a("s_barrier")
                lanestamp(a, 203, opt, 2)
                for st in (2, 3):
                    a(f"""
                    s_lshl_b32 {sr(sT0)}, {sr(sTB)}, 1
                    s_add_u32 {sr(sT0)}, {sr(sT0)}, {st}
                    s_and_b32 {sr(sT0)}, {sr(sT0)}, 15
                    s_lshl_b32 {sr(sOFFS)}, {sr(sT0)}, 14
                    s_add_u32 m0, {sr(sLDSW)}, {st * 32768}
                    s_nop 0
                    """)
                    for p in range(4):
                        a(kv_dma(p, sOFFS))
        if t == 2:
            h0[0] += sp(0)
            h1[1] = [f"s_add_u32 m0, {sr(sSLOT)}, {sr(sLDSW)}"]
            h1[3] = [f"s_add_u32 {sr(sJ)}, {sr(sJ)}, 1"]
            if kind == 0:
                h1[4] += ["s_barrier"] + sp(3)
                np_ = a.label("np")
                a(f"s_cmp_eq_u32 {sr(sW)}, 0")
                a(f"s_cbranch_scc0 {np_}")
                publish(a)
                a(f"{np_}:")
            elif kind == 3 and s_ == 15:
                h1[4] += ["s_barrier"] + sp(3)
            elif kind == 3:
                h1[4] += ["s_waitcnt vmcnt(8)", "s_barrier"] + sp(3)
            elif kind != 1:
                h1[4] += ["s_waitcnt vmcnt(4)", "s_barrier"] + sp(3)
        if t == 3:
            if kind == 3:
                q = s_ - 13
                h0[2] += wo_piece(2 * q, 0)
                h0[4] += wo_piece(2 * q, 1)
                h1[1] = wo_piece(2 * q + 1, 0)
                h1[3] = wo_piece(2 * q + 1, 1)
            elif kind != 0:
                h0[2] += [kv_dma(0, sSRC)]
                h0[4] += [kv_dma(1, sSRC)]
                h1[1] = [kv_dma(2, sSRC)]
                h1[3] = [kv_dma(3, sSRC)]
            if kind == 1:
                go = a.label("go")
                a(f"s_cmp_eq_u32 {sr(sW)}, 0")
                a(f"s_cbranch_scc0 {go}")
                poll_mailbox(a, True)
                a(f"{go}:")
                a("s_waitcnt vmcnt(4)")
                a("s_barrier")
                for x in sp(3): a(x)
        first = kind == 0 and t == 0
        attn_unit(a, t, 0, h0, skip_prev=first, c_zero=first)
        attn_unit(a, t, 1, h1, c_zero=first)
    a(f"v_mov_b32 {vr(vCUR)}, {vr(vNXT)}")
    a(f"v_add_u32 {vr(vNXT)}, {sr(sNXT)}, {vr(vKVB)}")

def attention(a, opt):
    a(f"""
    v_bfe_u32 v12, v0, 2, 1
    v_and_b32 v13, 3, v0
    v_mov_b32 v14, 0x3f803f80
    v_cmp_gt_u32 vcc, 2, v13
    s_nop 1
    v_cndmask_b32 v14, 0, v14, vcc
    v_cmp_eq_u32 vcc, 0, v12
    s_nop 1
    v_cndmask_b32 v{ONES}, 0, v14, vcc
    v_cndmask_b32 v{ONES+2}, v14, 0, vcc
    v_mov_b32 v{ONES+1}, v{ONES}
    v_mov_b32 v{ONES+3}, v{ONES+2}
    v_mov_b32 v14, 0x4444
    v_mov_b32 v12, 0xeeee
    v_cmp_eq_u32 vcc, 1, v13
    s_nop 1
    v_cndmask_b32 v{IDX}, v14, v12, vcc
    s_lshl_b32 {sr(sT0)}, {sr(sHH)}, 14
    v_add_u32 {vr(vKVB)}, {sr(sT0)}, {vr(vL16)}
    v_mov_b32 {vr(vCUR)}, {vr(vKVB)}
    v_add_u32 {vr(vNXT)}, 32768, {vr(vKVB)}
    s_lshl_b32 {sr(sT1)}, {sr(sTQ)}, 12
    s_add_u32 {sr(sLDSW)}, {sr(sT0)}, {sr(sT1)}
    s_add_u32 {sr(sKVSRC)}, {sr(sKVSRC)}, {sr(sT1)}
    v_add_u32 {vr(vDMA)}, {sr(sKVSRC)}, {vr(vL16)}
    s_lshl_b32 {sr(sSRC)}, {sr(sTB)}, 1
    s_add_u32 {sr(sSRC)}, {sr(sSRC)}, 2
    s_and_b32 {sr(sSRC)}, {sr(sSRC)}, 15
    s_lshl_b32 {sr(sSRC)}, {sr(sSRC)}, 14
    s_mov_b32 {sr(sSLOT)}, {2 * 32768}
    s_mov_b32 {sr(sJ)}, 0
    v_lshrrev_b32 v12, 3, v0
    v_and_b32 v13, 7, v0
    v_bfe_u32 v14, v12, 1, 1
    v_lshlrev_b32 v14, 2, v14
    v_xor_b32 v13, v13, v14
    s_lshl_b32 {sr(sT0)}, {sr(sTQ)}, 4
    v_add_u32 v12, {sr(sT0)}, v12
    v_lshlrev_b32 {vr(vDW3)}, 11, v12
    v_lshl_add_u32 {vr(vDW3)}, v13, 4, {vr(vDW3)}
    s_lshl_b32 {sr(sWOFF)}, {sr(sCB)}, 7
    s_lshl_b32 {sr(sLDSW3)}, {sr(sHH)}, 13
    s_lshl_b32 {sr(sT0)}, {sr(sTQ)}, 11
    s_add_u32 {sr(sLDSW3)}, {sr(sLDSW3)}, {sr(sT0)}
    """)
    for i in range(8): a(f"v_mov_b32 v{LA+i}, 0")
    for x in range(2):
        S = SS + 16 * x
        a(f"v_max3_f32 v12, v{S}, v{S+1}, v{S+2}")
        for i in range(3, 15, 2):
            a(f"v_max3_f32 v12, v12, v{S+i}, v{S+i+1}")
        a(f"v_max_f32 v12, v12, v{S+15}")
        a(f"""
        v_mov_b32 v13, v12
        s_nop 1
        v_permlane32_swap_b32 v13, v12
        s_nop 1
        v_max_f32 v12, v12, v13
        v_sub_f32 v12, 0, v12
        """)
        for i in range(16):
            a(f"v_mov_b32 v{NM+16*x+i}, v12")
    a("s_waitcnt lgkmcnt(0)")
    a("s_barrier")
    a(rd(KF, 0, 0)); a(rd(KF + 4, 0, 1)); a(rd(VF, 0, 2))
    a("s_waitcnt lgkmcnt(1)")
    a(f"v_mfma_f32_32x32x16_bf16 {vr(SS,16)}, {vr(KF,4)}, {vr(QF,4)}, {vr(NM,16)}")
    a(f"v_mfma_f32_32x32x16_bf16 {vr(SS,16)}, {vr(KF+4,4)}, {vr(QF+4,4)}, {vr(SS,16)}")
    lanestamp(a, 203, opt, 3)
    a("s_waitcnt lgkmcnt(0)")
    a("s_nop 15")
    attn_stage(a, opt, 0)
    lanestamp(a, 202, opt, 0)
    attn_stage(a, opt, 1)
    lanestamp(a, 202, opt, 1)
    loop = a.label("attn")
    a(".p2align 6")
    a(f"{loop}:")
    attn_stage(a, opt, 2)
    lanestamp(a, 202, opt, "m")
    a(f"s_cmp_lt_u32 {sr(sJ)}, 13")
    a(f"s_cbranch_scc1 {loop}")
    for s_ in (13, 14, 15):
        attn_stage(a, opt, 3, s_)
        lanestamp(a, 202, opt, s_)
    a("s_setprio 0")
    a("s_nop 1")
    a(f"v_mfma_f32_32x32x16_bf16 {vr(OA+16,16)}, {vr(VF+4,4)}, {vr(PP+4,4)}, {vr(OA+16,16)}")
    a(smf(LA + 4))
    a("s_waitcnt lgkmcnt(0)")

def attn_epilogue(a, opt):
    a(f"""
    s_lshl_b32 {sr(sT0)}, {sr(sTB)}, 3
    s_lshl_b32 {sr(sT1)}, {sr(sTQ)}, 1
    s_add_u32 {sr(sT0)}, {sr(sT0)}, {sr(sT1)}
    s_lshl_b32 {sr(sT0)}, {sr(sT0)}, 17
    s_lshl_b32 {sr(sT1)}, {sr(sHP)}, 1
    s_add_u32 {sr(sT1)}, {sr(sT1)}, {sr(sHH)}
    s_lshl_b32 {sr(sT1)}, {sr(sT1)}, 11
    s_add_u32 {sr(sT0)}, {sr(sT0)}, {sr(sT1)}
    s_add_u32 {sr(sOOFF)}, {sr(sT0)}, {WS_O}
    s_mov_b32 {sr(sT2)}, {hex(f2u(2.0**24))}
    s_nop 7
    """)
    ok = a.label("ok")
    a("v_mov_b32 v12, 0")
    a("v_mov_b32 v13, 0")
    a(f"v_add_f32 v{LA}, v{LA}, v{LA+1}")
    a(f"v_add_f32 v{LA+4}, v{LA+4}, v{LA+5}")
    for i in range(16):
        a(f"v_pk_fma_f32 v[12:13], {vr(OA+2*i,2)}, 0, v[12:13] op_sel_hi:[1,0,1]")
    a(f"v_cmp_nle_f32 {sr(sM,2)}, v{LA}, {sr(sT2)}")
    a(f"v_cmp_nle_f32 {sr(sM2,2)}, v{LA+4}, {sr(sT2)}")
    a("v_cmp_u_f32 vcc, v12, v13")
    a(f"s_or_b64 {sr(sM,2)}, {sr(sM,2)}, {sr(sM2,2)}")
    a(f"s_or_b64 {sr(sM,2)}, {sr(sM,2)}, vcc")
    if opt.get("force_fallback"):
        a(f"s_mov_b64 {sr(sM,2)}, -1")
    a(f"s_cmp_eq_u64 {sr(sM,2)}, 0")
    a(f"s_cbranch_scc1 {ok}")
    fallback(a, opt)
    a(f"{ok}:")
    a(f"v_rcp_f32 v12, v{LA}")
    a(f"v_rcp_f32 v14, v{LA+4}")
    for x in range(2):
        r = (12, 14)[x]
        a(f"v_mov_b32 v{r+1}, v{r}" if x == 1 else f"v_mov_b32 v13, v12")
        b = OA + 16 * x
        for i in range(8):
            a(f"v_pk_mul_f32 {vr(b+2*i,2)}, {vr(b+2*i,2)}, {vr(r,2)}")
        for i in range(8):
            a(f"v_cvt_pk_bf16_f32 v{b+i}, v{b+2*i}, v{b+2*i+1}")
        if x == 1:
            a(f"s_add_u32 {sr(sOOFF)}, {sr(sOOFF)}, 131072")
        a(f"buffer_store_dwordx4 {vr(b,4)}, {vr(vL16)}, {sr(SRD_WS,4)}, {sr(sOOFF)} offen sc1")
        a(f"buffer_store_dwordx4 {vr(b+4,4)}, {vr(vL16)}, {sr(SRD_WS,4)}, {sr(sOOFF)} offen offset:1024 sc1")

def phase3(a, opt):
    vm = VmTracker()
    ACC3, AF, OF, DEPTH, NSLOT = 16, 48, 72, opt.get("depth", 16), NSLOT3
    vRD = [7, 8, 9, 11, 4, 5]
    vG, vOUT = 14, 13
    a("s_waitcnt vmcnt(0)")
    a("s_barrier")
    timestamp(a, 4, opt)
    np_ = a.label("np3")
    a(f"s_cmp_eq_u32 {sr(sW)}, 0")
    a(f"s_cbranch_scc0 {np_}")
    a(f"""
    s_lshl_b32 {sr(sT0)}, {sr(sTB)}, 12
    s_lshl_b32 {sr(sT1)}, {sr(sHP)}, 2
    s_add_u32 {sr(sT0)}, {sr(sT0)}, {sr(sT1)}
    s_add_u32 {sr(sT0)}, {sr(sT0)}, {WS_MB2}
    v_lshlrev_b32 v12, 7, v0
    v_mov_b32 v15, 1
    s_mov_b32 exec_lo, -1
    s_mov_b32 exec_hi, 0
    buffer_store_dword v15, v12, {sr(SRD_WS,4)}, {sr(sT0)} offen sc1
    s_mov_b64 exec, -1
    """)
    poll = a.label("poll3"); done = a.label("pd3")
    a(f"s_mov_b32 {sr(sT1)}, 400000")
    a(f"v_lshlrev_b32 v12, 2, v0")
    a("s_mov_b32 exec_lo, -1")
    a("s_mov_b32 exec_hi, 0")
    a(f"{poll}:")
    a(f"buffer_load_dword v15, v12, {sr(SRD_WS,4)}, {sr(sMB2)} offen sc1")
    a("s_waitcnt vmcnt(0)")
    a("v_cmp_eq_u32 vcc, 1, v15")
    a("s_nop 3")
    a("s_cmp_eq_u32 vcc_lo, -1")
    a(f"s_cbranch_scc1 {done}")
    a(f"s_sub_u32 {sr(sT1)}, {sr(sT1)}, 1")
    a(f"s_cbranch_scc1 {done}")
    a("s_sleep 1")
    a(f"s_branch {poll}")
    a(f"{done}:")
    a("s_mov_b64 exec, -1")
    a(f"{np_}:")
    def wdma(i):
        for half in range(2):
            for x in wo_piece(i, half): a(x)
            vm.issue(("w", i))
    wdma(6); wdma(7)
    a(f"""
    v_and_b32 v12, 31, v0
    s_lshl_b32 {sr(sT0)}, {sr(sTB3)}, 7
    s_lshl_b32 {sr(sT2)}, {sr(sTQ)}, 5
    s_add_u32 {sr(sT0)}, {sr(sT0)}, {sr(sT2)}
    v_add_u32 v12, {sr(sT0)}, v12                  ; token
    v_lshlrev_b32 v3, 2, v12
    v_lshrrev_b32 {vr(vG)}, 5, v0                  ; h
    v_lshlrev_b32 {vr(vOUT)}, 11, v12
    v_lshl_add_u32 {vr(vOUT)}, {vr(vG)}, 4, {vr(vOUT)}
    v_bfe_u32 v15, v0, 2, 2                        ; r
    v_lshl_add_u32 v12, {vr(vG)}, 2, v15           ; 4h + r
    v_lshlrev_b32 v2, 7, v12
    v_and_b32 v12, 1, v0                           ; h'
    v_bfe_u32 v1, v0, 1, 1                         ; a
    v_bfe_u32 v5, v0, 4, 1                         ; g
    v_lshl_add_u32 v12, v5, 1, v12                 ; chunk16 = 2g + h'
    v_lshrrev_b32 v15, 1, v15
    v_lshlrev_b32 v15, 2, v15
    v_xor_b32 v12, v12, v15
    v_lshl_add_u32 v2, v12, 4, v2
    v_lshl_add_u32 v2, v1, 3, v2
    s_lshl_b32 {sr(sT0)}, {sr(sHH)}, 13
    v_add_u32 v{vRD[0]}, {sr(sT0)}, v2
    v_xor_b32 v{vRD[1]}, 64, v{vRD[0]}
    v_add_u32 v{vRD[2]}, 0x10000, v{vRD[0]}
    v_add_u32 v{vRD[3]}, 0x10000, v{vRD[1]}
    v_add_u32 v{vRD[4]}, 0x20000, v{vRD[0]}
    v_add_u32 v{vRD[5]}, 0x20000, v{vRD[1]}
    s_lshl_b32 {sr(sT0)}, {sr(sTB3)}, 2
    s_add_u32 {sr(sT0)}, {sr(sT0)}, {sr(sTQ)}
    s_lshl_b32 {sr(sAOFF)}, {sr(sT0)}, 17
    s_lshl_b32 {sr(sT1)}, {sr(sHH)}, 16
    s_add_u32 {sr(sAOFF)}, {sr(sAOFF)}, {sr(sT1)}
    s_add_u32 {sr(sAOFF)}, {sr(sAOFF)}, {WS_O}
    """)
    a("s_barrier")
    timestamp(a, 5, opt)
    if opt.get("dbg_span"): dbg_span(a, "e3")
    def oload(kk):
        d = kk % DEPTH
        if kk % 4 == 0:
            a(f"s_add_u32 {sr(sT1)}, {sr(sROT)}, {kk // 4}")
            a(f"s_and_b32 {sr(sT1)}, {sr(sT1)}, 15")
            a(f"s_lshl_b32 {sr(sT1)}, {sr(sT1)}, 12")
            a(f"s_add_u32 {sr(sT1)}, {sr(sT1)}, {sr(sAOFF)}")
        if opt.get("p3_noload") and kk >= DEPTH: return
        sc = "" if opt.get("p3_plain") else " sc1"
        a(f"buffer_load_dwordx4 {vr(OF+4*d,4)}, {vr(vL16)}, {sr(SRD_WS,4)}, {sr(sT1)} offen offset:{(kk%4)*1024}{sc}")
        vm.issue(("o", kk))
    for kk in range(DEPTH): oload(kk)
    a(f"s_mov_b32 {sr(sT2)}, {WS_G}")
    a(f"buffer_load_dword {vr(vG)}, v3, {sr(SRD_WS,4)}, {sr(sT2)} offen sc1")
    vm.issue(("g", 0))
    def wreads(st, ks, set_):
        r = []
        slot = st % NSLOT
        win, off = divmod(slot * 16384, 65536)
        for ct in range(2):
            base = AF + 8 * set_ + 4 * ct
            reg = vRD[2 * win + ct]
            r.append(f"ds_read_b64_tr_b16 {vr(base,2)}, {vr(reg)} offset:{off + ks*2048}")
            r.append(f"ds_read_b64_tr_b16 {vr(base+2,2)}, {vr(reg)} offset:{off + ks*2048+1024}")
        return r
    def wr(kk): return wreads(kk // 4, kk % 4, kk % 3)
    for x in wr(0) + wr(1): a(x)
    pend = []
    for st in range(16):
        for ks in range(4):
            kk = 4 * st + ks
            d = kk % DEPTH
            cur = kk % 3
            bar = ks == 2 and st in (5, 9)
            if bar:
                need = ("w", 7) if st == 5 else ("w", 15)
                n = vm.wait_count(lambda t: t in (need, ("o", kk)))
                a(f"s_waitcnt vmcnt({n}) lgkmcnt(0)")
                a("s_barrier")
                if st == 5:
                    pend = [(i, h) for i in range(10, 16) for h in range(2)]
            else:
                n = vm.wait_count(lambda t: t == ("o", kk))
                a(f"s_waitcnt vmcnt({n}) lgkmcnt({4 if kk < 63 else 0})")
            nxt = wr(kk + 2) if kk + 2 < 64 else []
            for ct in range(2):
                c = "0" if kk == 0 else vr(ACC3+16*ct,16)
                a(f"v_mfma_f32_32x32x16_bf16 {vr(ACC3+16*ct,16)}, {vr(AF+8*cur+4*ct,4)}, {vr(OF+4*d,4)}, {c}")
                for x in nxt[2*ct:2*ct+2]: a(x)
            if kk + DEPTH < 64:
                oload(kk + DEPTH)
            for i, h in pend[:2]:
                if opt.get("p3_nowo"): continue
                for x in wo_piece(i, h): a(x)
                vm.issue(("w", i))
            pend = pend[2:]
    timestamp(a, 6, opt)
    XA = 6 * 16384
    a(f"""
    s_lshl_b32 {sr(sT0)}, {sr(sTQ)}, 12
    s_lshl_b32 {sr(sT1)}, {sr(sHH)}, 11
    s_add_u32 {sr(sT2)}, {sr(sT0)}, {sr(sT1)}
    s_xor_b32 {sr(sT1)}, {sr(sT1)}, 2048
    s_add_u32 {sr(sT3)}, {sr(sT0)}, {sr(sT1)}
    s_add_u32 {sr(sT2)}, {sr(sT2)}, {XA}
    s_add_u32 {sr(sT3)}, {sr(sT3)}, {XA}
    v_add_u32 v12, {sr(sT2)}, {vr(vL16)}
    v_add_u32 v1, {sr(sT3)}, {vr(vL16)}
    v_sub_f32 v2, 1.0, {vr(vG)}
    v_cvt_pk_bf16_f32 v2, v2, v2
    v_lshlrev_b32 v2, 16, v2
    s_lshl_b32 {sr(sT0)}, {sr(sCB)}, 7
    s_lshl_b32 {sr(sT1)}, {sr(sHH)}, 6
    s_add_u32 {sr(sT0)}, {sr(sT0)}, {sr(sT1)}
    """)
    brb, fin = a.label("brb"), a.label("fin")
    a(f"s_cmp_eq_u32 {sr(sHH)}, 0")
    a(f"s_cbranch_scc0 {brb}")
    for br in range(2):
        K, S_ = ACC3 + 16 * br, ACC3 + 16 * (br ^ 1)
        own, rcv = (vG, 2) if br == 0 else (2, vG)
        a(f"v_mov_b32 v60, v{own}\nv_mov_b32 v61, v{own}\nv_mov_b32 v62, v{rcv}\nv_mov_b32 v63, v{rcv}")
        for i in range(8):
            a(f"v_cvt_pk_bf16_f32 v{48+i}, v{S_+2*i}, v{S_+2*i+1}")
        a("ds_write_b128 v12, v[48:51]")
        a("ds_write_b128 v12, v[52:55] offset:1024")
        a("s_waitcnt lgkmcnt(0)")
        a("s_barrier")
        a("ds_read_b128 v[48:51], v1")
        a("ds_read_b128 v[52:55], v1 offset:1024")
        for i in range(8):
            if i == 0: a("s_waitcnt lgkmcnt(1)")
            if i == 4: a("s_waitcnt lgkmcnt(0)")
            a(f"v_lshlrev_b32 v56, 16, v{48+i}")
            a(f"v_and_b32 v57, 0xffff0000, v{48+i}")
            a(f"v_pk_mul_f32 v[56:57], v[56:57], v[62:63]")
            a(f"v_pk_fma_f32 v[56:57], {vr(K+2*i,2)}, v[60:61], v[56:57]")
            if opt.get("perturb") and br == 0 and i == 0:
                a(f"s_cmp_eq_u32 s2, 0")
                a(f"s_cselect_b32 {sr(sT1)}, {hex(f2u(opt['perturb']))}, 0")
                a(f"s_cmp_eq_u32 {sr(sW)}, 0")
                a(f"s_cselect_b32 {sr(sT1)}, {sr(sT1)}, 0")
                a(f"v_mov_b32 v58, {sr(sT1)}")
                a(f"v_cmp_eq_u32 vcc, 0, v0")
                a("s_nop 1")
                a(f"v_cndmask_b32 v58, 0, v58, vcc")
                a(f"v_add_f32 v56, v56, v58")
            a(f"v_cvt_pk_bf16_f32 v{K+i}, v56, v57")
            if i == 3:
                a(f"buffer_store_dwordx4 {vr(K,4)}, {vr(vOUT)}, {sr(SRD_OUT,4)}, {sr(sT0)} offen")
        a(f"buffer_store_dwordx4 {vr(K+4,4)}, {vr(vOUT)}, {sr(SRD_OUT,4)}, {sr(sT0)} offen offset:32")
        if br == 0:
            a(f"s_branch {fin}")
            a(f"{brb}:")
    a(f"{fin}:")

def fallback(a, opt):
    MX = NM
    a(f"s_lshl_b32 {sr(sT0)}, {sr(sHP)}, 1")
    a(f"s_add_u32 {sr(sT0)}, {sr(sT0)}, {sr(sHH)}")
    a(f"s_lshl_b32 {sr(sBLK)}, {sr(sT0)}, 18")
    for i in range(32): a(f"v_mov_b32 v{OA+i}, 0")
    for i in range(8): a(f"v_mov_b32 v{LA+i}, 0")
    a(f"v_mov_b32 v{MX}, 0xff800000")
    a(f"v_mov_b32 v{MX+16}, 0xff800000")
    a(f"s_mov_b32 {sr(sJ)}, 0")
    loop = a.label("fb")
    a(f"{loop}:")
    a(f"buffer_load_dwordx4 {vr(KF,4)}, {vr(vL16)}, {sr(SRD_WS,4)}, {sr(sBLK)} offen sc1")
    a(f"buffer_load_dwordx4 {vr(KF+4,4)}, {vr(vL16)}, {sr(SRD_WS,4)}, {sr(sBLK)} offen offset:1024 sc1")
    a(f"buffer_load_dwordx4 {vr(VF,4)}, {vr(vL16)}, {sr(SRD_WS,4)}, {sr(sBLK)} offen offset:2048 sc1")
    a(f"buffer_load_dwordx4 {vr(VF+4,4)}, {vr(vL16)}, {sr(SRD_WS,4)}, {sr(sBLK)} offen offset:3072 sc1")
    a("s_waitcnt vmcnt(0)")
    for x in range(2):
        S, Q, O, L, mx = SS, QF + 8 * x, OA + 16 * x, LA + 4 * x, MX + 16 * x
        a(f"v_mfma_f32_32x32x16_bf16 {vr(S,16)}, {vr(KF,4)}, {vr(Q,4)}, 0")
        a(f"v_mfma_f32_32x32x16_bf16 {vr(S,16)}, {vr(KF+4,4)}, {vr(Q+4,4)}, {vr(S,16)}")
        a("s_nop 15")
        a(f"v_max3_f32 v12, v{S}, v{S+1}, v{S+2}")
        for i in range(3, 15, 2):
            a(f"v_max3_f32 v12, v12, v{S+i}, v{S+i+1}")
        a(f"v_max_f32 v12, v12, v{S+15}")
        a(f"""
        v_mov_b32 v13, v12
        s_nop 1
        v_permlane32_swap_b32 v13, v12
        s_nop 1
        v_max3_f32 v12, v12, v13, v{mx}
        v_sub_f32 v13, v{mx}, v12
        v_cmp_eq_f32 vcc, v{mx}, v12
        v_exp_f32 v13, v13
        s_nop 1
        v_cndmask_b32 v13, v13, 1.0, vcc
        v_mov_b32 v{mx}, v12
        """)
        for i in range(16):
            a(f"v_mul_f32 v{O+i}, v13, v{O+i}")
        for i in range(4):
            a(f"v_mul_f32 v{L+i}, v13, v{L+i}")
        for i in range(16):
            a(f"v_sub_f32 v{S+i}, v{S+i}, v12")
        for i in range(16):
            a(f"v_exp_f32 v{S+i}, v{S+i}")
        a("s_nop 0")
        for i in range(8):
            a(f"v_cvt_pk_bf16_f32 v{PP+i}, v{S+2*i}, v{S+2*i+1}")
        a("s_nop 1")
        a(f"v_mfma_f32_32x32x16_bf16 {vr(O,16)}, {vr(VF,4)}, {vr(PP,4)}, {vr(O,16)}")
        a(f"v_mfma_f32_32x32x16_bf16 {vr(O,16)}, {vr(VF+4,4)}, {vr(PP+4,4)}, {vr(O,16)}")
        a(smf(L))
        a("s_nop 15")
    a(f"s_add_u32 {sr(sBLK)}, {sr(sBLK)}, 4096")
    a(f"s_add_u32 {sr(sJ)}, {sr(sJ)}, 1")
    a(f"s_cmp_lt_u32 {sr(sJ)}, 64")
    a(f"s_cbranch_scc1 {loop}")
    a(f"v_add_f32 v{LA}, v{LA}, v{LA+1}")
    a(f"v_add_f32 v{LA+4}, v{LA+4}, v{LA+5}")

def gstamp(a, reg):
    a("s_memtime s[70:71]")
    a("s_waitcnt lgkmcnt(0)")
    a("s_mov_b32 s69, m0")
    a("s_mov_b32 m0, s87")
    a(f"v_writelane_b32 v{reg-100}, s70, m0")
    a("s_mov_b32 m0, s69")

def lanestamp(a, reg, opt, lane=None):
    if not opt.get("stamps2"):
        return
    a("s_memtime s[70:71]")
    a("s_waitcnt lgkmcnt(0)")
    if lane == "m":
        a(f"s_mov_b32 s69, m0")
        a(f"s_sub_u32 m0, {sr(sJ)}, 1")
        a(f"v_writelane_b32 v{reg}, s70, m0")
        a(f"s_mov_b32 m0, s69")
    elif lane is None:
        a(f"s_mov_b32 s69, m0")
        a(f"s_mov_b32 m0, {sr(sJ)}")
        a(f"v_writelane_b32 v{reg}, s70, m0")
        a(f"s_mov_b32 m0, s69")
    else:
        a(f"v_writelane_b32 v{reg}, s70, {lane}")

def timestamp(a, idx, opt):
    if not opt.get("stamps"):
        return
    a(f"s_memtime s[70:71]")
    a(f"s_memrealtime s[92:93]")
    a("s_waitcnt lgkmcnt(0)")
    a(f"s_mov_b32 s{72+idx}, s70")
    a(f"s_mov_b32 s{80+idx}, s92")

def stamps_out(a, n, opt):
    if opt.get("stampsg"):
        a(f"""
        s_lshl_b32 {sr(sT1)}, s2, 3
        s_add_u32 {sr(sT1)}, {sr(sT1)}, {sr(sW)}
        s_lshl_b32 {sr(sT1)}, {sr(sT1)}, 10
        s_add_u32 {sr(sT1)}, {sr(sT1)}, {WS_DBG + (12 << 20)}
        v_lshlrev_b32 v12, 2, v0
        buffer_store_dword v104, v12, {sr(SRD_WS,4)}, {sr(sT1)} offen
        buffer_store_dword v105, v12, {sr(SRD_WS,4)}, {sr(sT1)} offen offset:256
        buffer_store_dword v106, v12, {sr(SRD_WS,4)}, {sr(sT1)} offen offset:512
        """)
    if opt.get("stamps2"):
        a(f"""
        s_lshl_b32 {sr(sT1)}, s2, 3
        s_add_u32 {sr(sT1)}, {sr(sT1)}, {sr(sW)}
        s_lshl_b32 {sr(sT1)}, {sr(sT1)}, 10
        s_add_u32 {sr(sT1)}, {sr(sT1)}, {WS_DBG + (10 << 20)}
        v_lshlrev_b32 v12, 2, v0
        buffer_store_dword v200, v12, {sr(SRD_WS,4)}, {sr(sT1)} offen
        buffer_store_dword v201, v12, {sr(SRD_WS,4)}, {sr(sT1)} offen offset:256
        buffer_store_dword v202, v12, {sr(SRD_WS,4)}, {sr(sT1)} offen offset:512
        buffer_store_dword v203, v12, {sr(SRD_WS,4)}, {sr(sT1)} offen offset:768
        """)
    if not opt.get("stamps"):
        return
    a(f"""
    s_lshl_b32 {sr(sT1)}, s2, 3
    s_add_u32 {sr(sT1)}, {sr(sT1)}, {sr(sW)}
    s_lshl_b32 {sr(sT1)}, {sr(sT1)}, 6
    s_add_u32 {sr(sT1)}, {sr(sT1)}, {WS_DBG + (8 << 20)}
    v_mov_b32 v13, 0
    """)
    for i in range(n):
        a(f"v_writelane_b32 v13, s{72+i}, {i}")
        a(f"v_writelane_b32 v13, s{80+i}, {8+i}")
    a(f"""
    v_lshlrev_b32 v12, 2, v0
    v_cmp_gt_u32 vcc, 16, v0
    s_and_saveexec_b64 {sr(sM,2)}, vcc
    buffer_store_dword v13, v12, {sr(SRD_WS,4)}, {sr(sT1)} offen
    s_mov_b64 exec, {sr(sM,2)}
    """)

def dbg_span(a, which):
    w = {"start": 4, "gemm": 12, "attn": 20, "end": 28, "e3": 36, "g0": 44, "hook": 52, "karg": 20, "dma": 36, "prew": 52, "smax": 60}[which]
    sk = a.label("sk")
    a(f"s_cmp_eq_u32 {sr(sW)}, 0")
    a(f"s_cbranch_scc0 {sk}")
    a("s_memrealtime s[92:93]")
    a("s_waitcnt lgkmcnt(0)")
    a(f"v_mov_b32 v12, s92")
    a(f"s_mov_b32 s93, {w}")
    a("s_mov_b64 exec, 1")
    a(f"buffer_atomic_umax v12, off, {sr(SRD_DBG,4)}, s93 sc1")
    a("s_mov_b64 exec, -1")
    a(f"{sk}:")

OPT = {}
def k12(opt):
    OPT.clear(); OPT.update(opt)
    a = Asm()
    a(f".globl {NAME12}\n.p2align 8\n.type {NAME12},@function\n{NAME12}:")
    timestamp(a, 0, opt)
    if opt.get("dbg_span") or opt.get("span2"):
        a("s_memrealtime s[84:85]")
    prologue(a, opt)
    if opt.get("dbg_span"):
        sk = a.label("sk")
        a(f"s_cmp_eq_u32 {sr(sW)}, 0")
        a(f"s_cbranch_scc0 {sk}")
        a("s_waitcnt lgkmcnt(0)")
        a("s_not_b32 s84, s84")
        a("v_mov_b32 v12, s84")
        a("s_mov_b32 s93, 4")
        a("s_mov_b64 exec, 1")
        a(f"buffer_atomic_umax v12, off, {sr(SRD_DBG,4)}, s93 sc1")
        a("s_mov_b64 exec, -1")
        a(f"{sk}:")
    gemm(a, opt)
    if opt.get("dbg_span") or opt.get("span2"): dbg_span(a, "gemm")
    if opt.get("stamps_start"):
        timestamp(a, 7, opt)
        opt = dict(opt); opt["stamps"] = 0
        gemm_epilogue(a, opt)
        a("s_waitcnt vmcnt(0) lgkmcnt(0)")
        opt["stamps"] = 1
        stamps_out(a, 8, opt)
        a("L_end12:\ns_endpgm")
        return a.text()
    timestamp(a, 1, opt)
    gemm_epilogue(a, opt)
    if opt.get("stop_after_gemm"):
        a("s_waitcnt vmcnt(0) lgkmcnt(0)")
        timestamp(a, 2, opt)
        stamps_out(a, 3, opt)
    else:
        timestamp(a, 2, opt)
        attention(a, opt)
        timestamp(a, 3, opt)
        if opt.get("dbg_span"): dbg_span(a, "attn")
        attn_epilogue(a, opt)
        if opt.get("fused"):
            phase3(a, opt)
            if opt.get("stamps"):
                a("s_waitcnt vmcnt(0)")
                timestamp(a, 7, opt)
            stamps_out(a, 8, opt)
            if opt.get("dbg_span") or opt.get("span2"):
                a("s_waitcnt vmcnt(0)")
                dbg_span(a, "end")
        else:
            a("s_waitcnt vmcnt(0)")
            timestamp(a, 4, opt)
            stamps_out(a, 5, opt)
    a("L_end12:\ns_endpgm")
    return a.text()

KD12 = f"""
.section .rodata,"a"
.p2align 6
.amdhsa_kernel {NAME12}
  .amdhsa_next_free_vgpr 256
  .amdhsa_next_free_sgpr 102
  .amdhsa_accum_offset 256
  .amdhsa_group_segment_fixed_size 0
  .amdhsa_kernarg_size 80
  .amdhsa_user_sgpr_count 2
  .amdhsa_user_sgpr_kernarg_segment_ptr 1
  .amdhsa_system_sgpr_workgroup_id_x 1
  .amdhsa_float_denorm_mode_32 3
.end_amdhsa_kernel
"""
```

```python
from asm import Asm, vr, sr, VmTracker

NAME12 = "gated_mix__mha_block__softmax_full_mha__prompt_kernel"
WS_KV = 0
WS_O = 16 << 20
WS_G = 24 << 20
WS_MB = 25 << 20
WS_MB2 = WS_MB + 65536
WS_DBG = 32 << 20
WS_SIZE = 0x10000000
LOG2E = 1.4426950408889634
QSCALE = LOG2E / (32 ** 0.5)

import struct
def f2u(x): return struct.unpack("<I", struct.pack("<f", x))[0]

SRD_X, SRD_W, SRD_WS, SRD_DBG, SRD_GW = 8, 12, 16, 20, 24
sW, sHH, sTQ, sHP, sTB = 28, 29, 30, 31, 32
sW1K = 33
sXJ = 34
sWJ = 35
sRING = 36
sRINGW = 37
sJ = 38
sT0, sT1, sT2, sT3 = 40, 41, 42, 43
sXQ = 44
sKVSRC = 45
sSLOT = 46
sBLK = 47
sM = 48
sM2 = 50
sOOFF = 52
sCNT = 53
sMB = 54
sLDSW = 55
sSRC = 39
sOFFS = 64
sNXT = 65
sCHKJ = 66
sARRJ = 67
sGOFF = 68
SRD_WO, SRD_OUT = 4, 56
sTB3, sCB, sROT, sMB2 = 60, 61, 62, 63
sAOFF, sWOFF = 100, 101
sLDSW3 = 34
vDW3 = 6
vLANE = 0
vDX, vDW, vXP, vWP, vXA, vW0 = 2, 3, 4, 5, 6, 7
vL16 = 10
vXB = 11
vT = 12
FR = [64, 84]
ACC = 160
QF = 16
OA = 32
LA = 64
NM = 72
SS = 104
PP = 136
KF = 144
VF = 152
ONES = 160
IDX = 164
vCUR, vNXT = 2, 3
vKVB, vDMA = 4, 5
vCHK = 15

RING = 20 * 8192
NSLOT3 = 10

def wrap_add(a, dst, src, const, tmp):
    a(f"s_add_u32 {sr(tmp)}, {sr(src)}, {const}")
    a(f"s_sub_u32 {dst}, {sr(tmp)}, {RING}")
    a(f"s_cselect_b32 {dst}, {sr(tmp)}, {dst}")

def prologue(a, opt):
    a(f"""
    s_cmp_ge_u32 s2, 256
    s_cbranch_scc1 L_end12
    """)
    if opt.get("codepf", 1):
        a("""
        s_getpc_b64 s[92:93]
        L_pc12:
        s_mov_b32 s3, L_end12-L_pc12
        v_lshlrev_b32 v1, 6, v0
        v_min_u32 v1, s3, v1
        global_load_dword v33, v1, s[92:93]
        """)
    a(f"""
    s_load_dwordx4 s[56:59], s[0:1], 0
    s_load_dwordx2 s[60:61], s[0:1], 32
    s_load_dwordx2 s[62:63], s[0:1], 48
    s_load_dwordx4 s[88:91], s[0:1], 64
    s_load_dwordx2 s[94:95], s[0:1], 16
    s_load_dwordx2 s[96:97], s[0:1], 40
    s_load_dwordx2 s[98:99], s[0:1], 56
    v_lshrrev_b32 v1, 6, v0
    v_and_b32 v0, 63, v0
    s_and_b32 s3, s2, 7
    v_readfirstlane_b32 {sr(sW)}, v1
    s_lshr_b32 s4, s2, 3
    s_and_b32 s5, s4, 3
    s_lshl_b32 s3, s3, 2
    s_add_u32 {sr(sHP)}, s3, s5
    s_lshr_b32 {sr(sTB)}, s4, 2
    s_lshr_b32 {sr(sHH)}, {sr(sW)}, 2
    s_and_b32 {sr(sTQ)}, {sr(sW)}, 3
    s_lshl_b32 {sr(sW1K)}, {sr(sW)}, 10
    """)
    a(f"""
    v_lshrrev_b32 v13, 3, v0                 ; r8
    v_and_b32 v14, 7, v0                     ; c'
    s_and_b32 {sr(sT0)}, {sr(sW)}, 1
    s_lshl_b32 {sr(sT0)}, {sr(sT0)}, 2
    v_lshrrev_b32 v15, 1, v13                ; r8>>1 (0..3)
    v_add_u32 v1, {sr(sT0)}, v15             ; 4*(w&1) + (r8>>1)
    v_xor_b32 v1, v1, v14                    ; cX
    s_lshl_b32 {sr(sT1)}, {sr(sW)}, 3
    v_add_u32 v13, {sr(sT1)}, v13            ; 8w + r8
    v_lshlrev_b32 {vr(vDX)}, 11, v13
    v_lshl_add_u32 {vr(vDX)}, v1, 4, {vr(vDX)}
    v_and_b32 v15, 1, v15
    v_lshlrev_b32 v15, 2, v15
    v_xor_b32 v15, v15, v14                  ; cW
    s_mov_b32 {sr(sT1)}, 6144
    v_mul_lo_u32 {vr(vDW)}, v13, {sr(sT1)}
    v_lshl_add_u32 {vr(vDW)}, v15, 4, {vr(vDW)}
    s_lshl_b32 {sr(sXJ)}, {sr(sTB)}, 19          ; tb*256*2048
    s_and_b32 {sr(sWJ)}, {sr(sHP)}, 15
    s_lshl_b32 {sr(sWJ)}, {sr(sWJ)}, 7           ; hpl*128
    s_waitcnt lgkmcnt(0)
    """)
    if opt.get("stamps_start"): timestamp(a, 1, opt)
    if opt.get("span2") or opt.get("span3"): a("s_memrealtime s[78:79]")
    a(f"""
    s_mov_b32 {sr(SRD_X)}, s56
    s_mov_b32 {sr(SRD_X+1)}, s57
    s_mov_b32 {sr(SRD_X+2)}, {2048*1024*2}
    s_mov_b32 {sr(SRD_X+3)}, 0x00020000
    s_cmp_ge_u32 {sr(sHP)}, 16
    s_cselect_b32 {sr(SRD_W)}, s60, s58
    s_cselect_b32 {sr(SRD_W+1)}, s61, s59
    s_mov_b32 {sr(SRD_W+2)}, {1024*3072*2}
    s_mov_b32 {sr(SRD_W+3)}, 0x00020000
    """)
    for g in range(20):
        dma_unit_static(a, g)
        if g == 6 and opt.get("stamps_start"): timestamp(a, 2, opt)
    if opt.get("stamps_start"): timestamp(a, 3, opt)
    if opt.get("span2") or opt.get("span3"): a("s_memrealtime s[80:81]")
    a(f"""
    s_mov_b32 {sr(SRD_WS)}, s90
    s_mov_b32 {sr(SRD_WS+1)}, s91
    s_mov_b32 {sr(SRD_WS+2)}, {WS_SIZE}
    s_mov_b32 {sr(SRD_WS+3)}, 0x00020000
    s_mov_b32 {sr(SRD_DBG)}, s88
    s_mov_b32 {sr(SRD_DBG+1)}, s89
    s_mov_b32 {sr(SRD_DBG+2)}, 256
    s_mov_b32 {sr(SRD_DBG+3)}, 0x00020000
    s_mov_b32 {sr(SRD_GW)}, s62
    s_mov_b32 {sr(SRD_GW+1)}, s63
    s_mov_b32 {sr(SRD_GW+2)}, 2048
    s_mov_b32 {sr(SRD_GW+3)}, 0x00020000
    """)
    a(f"""
    s_and_b32 s3, s2, 7
    s_lshr_b32 {sr(sT1)}, s2, 3
    s_lshr_b32 {sr(sT2)}, s3, 1
    s_lshl_b32 {sr(sT2)}, {sr(sT2)}, 2
    s_and_b32 {sr(sT3)}, {sr(sT1)}, 3
    s_add_u32 {sr(sTB3)}, {sr(sT2)}, {sr(sT3)}
    s_and_b32 {sr(sT2)}, s3, 1
    s_lshl_b32 {sr(sT2)}, {sr(sT2)}, 3
    s_lshr_b32 {sr(sT1)}, {sr(sT1)}, 2
    s_add_u32 {sr(sCB)}, {sr(sT2)}, {sr(sT1)}
    s_add_u32 {sr(sROT)}, {sr(sTB3)}, {sr(sCB)}
    s_and_b32 {sr(sROT)}, {sr(sROT)}, 15
    s_lshl_b32 {sr(sMB2)}, {sr(sTB3)}, 4
    s_add_u32 {sr(sMB2)}, {sr(sMB2)}, {sr(sCB)}
    s_lshl_b32 {sr(sMB2)}, {sr(sMB2)}, 7
    s_add_u32 {sr(sMB2)}, {sr(sMB2)}, {WS_MB2}
    s_cmp_eq_u32 {sr(sHH)}, 1
    s_cselect_b32 {sr(SRD_WO)}, s96, s94
    s_cselect_b32 {sr(SRD_WO+1)}, s97, s95
    s_mov_b32 {sr(SRD_WO+2)}, {1024*1024*2}
    s_mov_b32 {sr(SRD_WO+3)}, 0x00020000
    s_mov_b32 {sr(SRD_OUT)}, s98
    s_mov_b32 {sr(SRD_OUT+1)}, s99
    s_mov_b32 {sr(SRD_OUT+2)}, {2048*1024*2}
    s_mov_b32 {sr(SRD_OUT+3)}, 0x00020000
    """)
    nr = a.label("nr")
    a(f"""
    s_lshl_b32 {sr(sMB)}, {sr(sHP)}, 3
    s_add_u32 {sr(sMB)}, {sr(sMB)}, {sr(sTB)}
    s_lshl_b32 {sr(sMB)}, {sr(sMB)}, 7
    s_add_u32 {sr(sMB)}, {sr(sMB)}, {WS_MB}
    s_lshl_b32 {sr(sCNT)}, {sr(sHP)}, 3
    s_cmp_eq_u32 {sr(sW)}, 0
    s_cselect_b32 {sr(sCHKJ)}, 5, 0xffff
    s_cselect_b32 {sr(sARRJ)}, 11, 0xffff
    s_cbranch_scc0 {nr}
    v_lshlrev_b32 v12, 2, v0
    s_sub_u32 {sr(sT0)}, {sr(sMB2)}, 128
    v_mov_b32 v13, {sr(sMB)}
    v_mov_b32 v14, {sr(sT0)}
    v_cmp_gt_u32 vcc, 32, v0
    s_nop 1
    v_cndmask_b32 v13, v14, v13, vcc
    v_add_u32 v12, v12, v13
    v_mov_b32 v13, 0
    buffer_store_dword v13, v12, {sr(SRD_WS,4)}, 0 offen sc1
    {nr}:
    """)
    a(f"""
    s_lshl_b32 {sr(sT0)}, {sr(sTB)}, 8
    s_lshl_b32 {sr(sT1)}, {sr(sHP)}, 3
    s_add_u32 {sr(sT0)}, {sr(sT0)}, {sr(sT1)}
    s_add_u32 {sr(sT0)}, {sr(sT0)}, {sr(sW)}
    s_lshl_b32 {sr(sT2)}, {sr(sT0)}, 11
    v_lshlrev_b32 v12, 5, v0
    buffer_load_dwordx4 v[16:19], v12, {sr(SRD_X,4)}, {sr(sT2)} offen
    buffer_load_dwordx4 v[20:23], v12, {sr(SRD_X,4)}, {sr(sT2)} offen offset:16
    buffer_load_dwordx4 v[24:27], v12, {sr(SRD_GW,4)}, 0 offen
    buffer_load_dwordx4 v[28:31], v12, {sr(SRD_GW,4)}, 0 offen offset:16
    s_lshl_b32 {sr(sGOFF)}, {sr(sT0)}, 2
    """)
    if opt.get("warm", 0):
        a(f"""
        s_lshl_b32 {sr(sT0)}, s2, 14
        s_lshl_b32 {sr(sT1)}, {sr(sW)}, 11
        s_add_u32 {sr(sT0)}, {sr(sT0)}, {sr(sT1)}
        v_lshlrev_b32 v12, 4, v0
        buffer_load_dwordx4 v[32:35], v12, {sr(SRD_X,4)}, {sr(sT0)} offen
        buffer_load_dwordx4 v[36:39], v12, {sr(SRD_X,4)}, {sr(sT0)} offen offset:1024
        """)
        a(f"""
        s_and_b32 {sr(sT0)}, {sr(sHP)}, 15
        s_lshl_b32 {sr(sT0)}, {sr(sT0)}, 3
        s_add_u32 {sr(sT0)}, {sr(sT0)}, {sr(sTB)}
        s_mul_i32 {sr(sT0)}, {sr(sT0)}, 49152
        s_mul_i32 {sr(sT1)}, {sr(sW)}, 6144
        s_add_u32 {sr(sT0)}, {sr(sT0)}, {sr(sT1)}
        s_add_u32 {sr(sT1)}, {sr(sT0)}, 4096
        """)
        for i in range(6):
            so = sT0 if i < 4 else sT1
            a(f"buffer_load_dwordx4 v[{40+4*i}:{43+4*i}], v12, {sr(SRD_W,4)}, {sr(so)} offen offset:{(i % 4) * 1024}")
    if opt.get("touch", 1):
        a(f"""
        s_lshl_b32 {sr(sT0)}, {sr(sHP)}, 19
        s_lshl_b32 {sr(sT1)}, {sr(sTB)}, 20
        s_add_u32 {sr(sT1)}, {sr(sT1)}, {WS_O}
        s_lshl_b32 {sr(sT2)}, {sr(sTB3)}, 19
        s_add_u32 {sr(sT2)}, {sr(sT2)}, {WS_O}
        s_lshl_b32 {sr(sT3)}, {sr(sTB3)}, 18
        buffer_load_dword v104, off, {sr(SRD_WS,4)}, {sr(sT0)}
        buffer_load_dword v105, off, {sr(SRD_WS,4)}, {sr(sT1)}
        buffer_load_dword v106, off, {sr(SRD_WS,4)}, {sr(sT2)}
        buffer_load_dword v107, off, {sr(SRD_WO,4)}, 0
        buffer_load_dword v108, off, {sr(SRD_OUT,4)}, {sr(sT3)}
        s_mov_b32 {sr(sT0)}, {1024*1024*2 - 4}
        buffer_load_dword v109, off, {sr(SRD_WO,4)}, {sr(sT0)}
        """)
    a(f"""
    v_and_b32 v13, 31, v0
    v_lshrrev_b32 v14, 5, v0                 ; h
    v_bfe_u32 v15, v13, 1, 3
    v_xor_b32 v15, v15, v14
    v_lshlrev_b32 {vr(vXP)}, 7, v13
    v_lshl_add_u32 {vr(vXP)}, v15, 4, {vr(vXP)}
    v_bfe_u32 v13, v0, 2, 2                  ; r
    v_lshl_add_u32 v1, v14, 3, v13           ; 8h + r
    v_lshlrev_b32 {vr(vWP)}, 7, v1
    v_bfe_u32 v15, v0, 4, 1                  ; g
    v_lshlrev_b32 v15, 1, v15
    v_bfe_u32 v1, v0, 1, 1                   ; c>>1
    v_add_u32 v15, v15, v1
    s_lshl_b32 {sr(sT1)}, {sr(sHH)}, 2
    v_add_u32 v15, {sr(sT1)}, v15            ; cc
    v_lshrrev_b32 v13, 1, v13
    v_lshlrev_b32 v13, 2, v13
    v_xor_b32 v15, v15, v13
    v_lshl_add_u32 {vr(vWP)}, v15, 4, {vr(vWP)}
    v_and_b32 v1, 1, v0
    v_lshl_add_u32 {vr(vWP)}, v1, 3, {vr(vWP)}
    v_lshlrev_b32 {vr(vL16)}, 4, v0
    s_add_u32 {sr(sXQ)}, {sr(sTQ)}, 3
    s_lshl_b32 {sr(sXQ)}, {sr(sXQ)}, 13
    """)

def dma_unit_static(a, g):
    j, u = divmod(g, 7)
    a(f"s_add_u32 m0, {sr(sW1K)}, {(g % 20) * 8192}")
    if u < 3:
        a(f"s_add_u32 {sr(sT0)}, {sr(sWJ)}, {j * 64 * 6144 + u * 2048}")
        a(f"buffer_load_dwordx4 {vr(vDW)}, {sr(SRD_W,4)}, {sr(sT0)} offen lds")
    else:
        a(f"s_add_u32 {sr(sT0)}, {sr(sXJ)}, {j * 128 + (u - 3) * 131072}")
        a(f"buffer_load_dwordx4 {vr(vDX)}, {sr(SRD_X,4)}, {sr(sT0)} offen lds")

def gate_instrs():
    c = ["v_mov_b32 v12, 0"]
    for i in range(8):
        x, w = 16 + i, 24 + i
        c += [f"v_lshlrev_b32 v13, 16, v{x}", f"v_and_b32 v14, 0xffff0000, v{x}", f"v_lshlrev_b32 v32, 16, v{w}",
              f"v_and_b32 v1, 0xffff0000, v{w}", "v_mul_f32 v13, v13, v32", "v_mul_f32 v14, v14, v1",
              "v_cvt_pk_bf16_f32 v13, v13, v14", "v_lshlrev_b32 v14, 16, v13", "v_and_b32 v13, 0xffff0000, v13",
              "v_add_f32 v12, v12, v14", "v_add_f32 v12, v12, v13"]
    for sh in (1, 2, 4, 8):
        c += [f"s_nop 1\nv_add_f32_dpp v12, v12, v12 row_shr:{sh} row_mask:0xf bank_mask:0xf bound_ctrl:0"]
    c += ["s_nop 1\nv_add_f32_dpp v12, v12, v12 row_bcast:15 row_mask:0xa bank_mask:0xf"]
    c += ["s_nop 1\nv_add_f32_dpp v12, v12, v12 row_bcast:31 row_mask:0xc bank_mask:0xf"]
    c += ["s_nop 1\nv_cvt_pk_bf16_f32 v12, v12, v12", "v_lshlrev_b32 v12, 16, v12", f"v_mul_f32 v12, {hex(f2u(-LOG2E))}, v12",
          "v_exp_f32 v12, v12\ns_nop 0\nv_add_f32 v12, 1.0, v12", "v_rcp_f32 v12, v12\ns_nop 0\nv_cvt_pk_bf16_f32 v12, v12, v12",
          "v_lshlrev_b32 v12, 16, v12", f"v_mov_b32 v13, {WS_G}"]
    st = [f"""s_mov_b32 exec_lo, 0
    s_mov_b32 exec_hi, 0x80000000
    buffer_store_dword v12, v13, {sr(SRD_WS,4)}, {sr(sGOFF)} offen sc1
    s_mov_b64 exec, -1"""]
    return c, st

def frag(set_, name):
    off = {"X0": 0, "X1": 4, "Wq": 8, "Wk": 12, "Wv": 16}[name]
    return FR[set_] + off

def gemm_reads(ks, set_):
    r = []
    r.append(f"ds_read_b128 {vr(frag(set_,'X0'),4)}, {vr(vXA)}")
    for u, nm in enumerate(("Wq", "Wk", "Wv")):
        b = frag(set_, nm)
        r.append(f"ds_read_b64_tr_b16 {vr(b,2)}, {vr(vW0+u)} offset:{ks*2048}")
        r.append(f"ds_read_b64_tr_b16 {vr(b+2,2)}, {vr(vW0+u)} offset:{ks*2048+512}")
        if u == 0:
            r.append(f"ds_read_b128 {vr(frag(set_,'X1'),4)}, {vr(vXA)} offset:4096")
    return r

def gemm_mfmas(set_, first=False):
    m = []
    X0, X1 = frag(set_, "X0"), frag(set_, "X1")
    Wq, Wk, Wv = frag(set_, "Wq"), frag(set_, "Wk"), frag(set_, "Wv")
    def mf(acc, A, B): return f"v_mfma_f32_32x32x16_bf16 {vr(acc,16)}, {vr(A,4)}, {vr(B,4)}, {'0' if first else vr(acc,16)}"
    m.append(mf(ACC + 0, Wq, X0))
    m.append(mf(ACC + 32, Wk, X0))
    m.append(mf(ACC + 64, X0, Wv))
    m.append(mf(ACC + 16, Wq, X1))
    m.append(mf(ACC + 48, Wk, X1))
    m.append(mf(ACC + 80, X1, Wv))
    return m

def wrap_list(dst, src, const, tmp):
    return [f"s_add_u32 {sr(tmp)}, {sr(src)}, {const}", f"s_sub_u32 {dst}, {sr(tmp)}, {RING}", f"s_cselect_b32 {dst}, {sr(tmp)}, {dst}"]

def read_bases_list():
    r = [f"v_add_u32 {vr(vW0)}, {sr(sRING)}, {vr(vWP)}"]
    for u in (1, 2):
        r += wrap_list(sr(sT1), sRING, u * 8192, sT0)
        r.append(f"v_add_u32 {vr(vW0+u)}, {sr(sT1)}, {vr(vWP)}")
    r += [f"s_add_u32 {sr(sT0)}, {sr(sRING)}, {sr(sXQ)}", f"s_sub_u32 {sr(sT1)}, {sr(sT0)}, {RING}",
          f"s_cselect_b32 {sr(sT1)}, {sr(sT0)}, {sr(sT1)}", f"v_add_u32 {vr(vXB)}, {sr(sT1)}, {vr(vXP)}",
          f"v_mov_b32 {vr(vXA)}, {vr(vXB)}"]
    return r

def dma_group(i):
    if OPT.get("g_nodma"): return []
    s = [f"s_add_u32 {sr(sT2)}, {sr(sRINGW)}, {i * 8192}", f"s_sub_u32 m0, {sr(sT2)}, {RING}", f"s_cselect_b32 m0, {sr(sT2)}, m0"]
    if i == 0:
        s.append(f"s_add_u32 {sr(sT3)}, {sr(sXJ)}, {3 * 131072 - 128}")
        s.append(f"buffer_load_dwordx4 {vr(vDX)}, {sr(SRD_X,4)}, {sr(sT3)} offen lds")
    elif i <= 3:
        s.append(f"s_add_u32 {sr(sT3)}, {sr(sWJ)}, {(i - 1) * 2048}")
        s.append(f"buffer_load_dwordx4 {vr(vDW)}, {sr(SRD_W,4)}, {sr(sT3)} offen lds")
    else:
        s.append(f"s_add_u32 {sr(sT3)}, {sr(sXJ)}, {(i - 4) * 131072}")
        s.append(f"buffer_load_dwordx4 {vr(vDX)}, {sr(SRD_X,4)}, {sr(sT3)} offen lds")
    return s

def kstep(a, cur, next_ks, gaps_extra, first=False):
    m = gemm_mfmas(cur, first)
    r = gemm_reads(next_ks, cur ^ 1) if next_ks is not None else []
    gaps = [[] for _ in range(6)]
    for i, x in enumerate(r):
        gaps[min(i // 3, 5)].append(x)
    for g in range(6):
        gaps[g] += gaps_extra.get(g, [])
    for i in range(6):
        a(m[i])
        for x in gaps[i]:
            a(x)

def gemm_stage(a, pending, new_batch, vm_wait, first=False, last=False, valu=None, after_bar=None):
    prio = OPT.get("gprio", 1)
    sp = lambda n: [f"s_setprio {n}"] if prio else []
    valu = list(valu or [])
    per = (len(valu) + 2) // 3
    for ks in range(3):
        ex = {}
        mine = [i for i in pending if (i - 2) // 2 == ks]
        if mine:
            ex[2] = dma_group(mine[0])
        if len(mine) > 1:
            ex[4] = dma_group(mine[1])
        chunk = valu[ks * per:(ks + 1) * per]
        n3 = (len(chunk) + 2) // 3
        for k, g in enumerate((1, 3, 5)):
            ex[g] = ex.get(g, []) + chunk[k * n3:(k + 1) * n3]
        ex[0] = sp(2 - ks)
        if ks < 2:
            ex[5] = ex.get(5, []) + [f"v_xor_b32 {vr(vXA)}, {(ks + 2) << 5}, {vr(vXB)}"]
        else:
            upd = [f"s_add_u32 {sr(sRINGW)}, {sr(sRING)}, {sr(sW1K)}", f"s_add_u32 {sr(sXJ)}, {sr(sXJ)}, 128",
                   f"s_add_u32 {sr(sWJ)}, {sr(sWJ)}, {64 * 6144}"] + wrap_list(sr(sRING), sRING, 7 * 8192, sT0)
            ex[3] = ex.get(3, []) + upd
            if not last:
                ex[4] = ex.get(4, []) + read_bases_list()
        a("s_waitcnt lgkmcnt(0)")
        kstep(a, ks & 1, ks + 1, ex, first=(first and ks == 0))
    if OPT.get("stampsg"):
        a("s_waitcnt lgkmcnt(0)")
        gstamp(a, 204)
    if vm_wait is not None:
        a(f"s_waitcnt vmcnt({vm_wait}) lgkmcnt(0)")
    else:
        a("s_waitcnt lgkmcnt(0)")
    if OPT.get("stampsg"): gstamp(a, 205)
    if not OPT.get("g_nobar"): a("s_barrier")
    if OPT.get("stampsg"):
        gstamp(a, 206)
        a("s_add_u32 s87, s87, 1")
    ex = {0: sp(3)}
    if len(new_batch) > 0: ex[2] = dma_group(new_batch[0])
    if len(new_batch) > 1: ex[4] = dma_group(new_batch[1])
    if not last:
        ex[5] = [f"v_xor_b32 {vr(vXA)}, {1 << 5}, {vr(vXB)}"]
    if after_bar:
        ex[5] = ex.get(5, []) + after_bar
    kstep(a, 1, None if last else 0, ex)

def gemm(a, opt):
    if OPT.get("stampsg"): a("s_mov_b32 s87, 0")
    a(f"s_add_u32 {sr(sXJ)}, {sr(sXJ)}, {2 * 128}")
    a(f"s_add_u32 {sr(sWJ)}, {sr(sWJ)}, {2 * 64 * 6144}")
    a(f"s_mov_b32 {sr(sRING)}, 0")
    for x in read_bases_list(): a(x)
    if opt.get("stamps_start"): timestamp(a, 4, opt)
    if opt.get("span2") or opt.get("span3"): a("s_memrealtime s[82:83]")
    nw = (8 if opt.get("warm", 0) else 0) + (6 if opt.get("touch", 1) else 0)
    a(f"s_waitcnt vmcnt({17 + nw})")
    if opt.get("stamps_start"): timestamp(a, 5, opt)
    a("s_barrier")
    if opt.get("dbg_span"): dbg_span(a, "g0")
    if opt.get("span3"):
        sk = a.label("sk3")
        a(f"s_memrealtime s[76:77]")
        a(f"s_cmp_eq_u32 s2, {opt['span3']}")
        a(f"s_cbranch_scc0 {sk}")
        a(f"s_cmp_eq_u32 {sr(sW)}, 0")
        a(f"s_cbranch_scc0 {sk}")
        a("s_waitcnt lgkmcnt(0)")
        for reg, off in ((84, 4), (78, 12), (80, 20), (82, 28), (76, 36)):
            a(f"v_mov_b32 v12, s{reg}")
            a(f"s_mov_b32 s93, {off}")
            a("s_mov_b64 exec, 1")
            a(f"buffer_store_dword v12, off, {sr(SRD_DBG,4)}, s93 sc1")
            a("s_mov_b64 exec, -1")
        a(f"{sk}:")
    if opt.get("span2"):
        sk = a.label("sk2")
        a(f"s_memrealtime s[76:77]")
        a(f"s_cmp_eq_u32 {sr(sW)}, 0")
        a(f"s_cbranch_scc0 {sk}")
        a("s_waitcnt lgkmcnt(0)")
        a("s_not_b32 s75, s84")
        for reg, off in ((75, 4), (84, 60), (78, 20), (80, 36), (82, 52), (76, 44)):
            a(f"v_mov_b32 v12, s{reg}")
            a(f"s_mov_b32 s93, {off}")
            a("s_mov_b64 exec, 1")
            a(f"buffer_atomic_umax v12, off, {sr(SRD_DBG,4)}, s93 sc1")
            a("s_mov_b64 exec, -1")
        a(f"{sk}:")
    if opt.get("stamps_start"): timestamp(a, 6, opt)
    for x in gemm_reads(0, 0):
        a(x)
    a(f"v_xor_b32 {vr(vXA)}, {1 << 5}, {vr(vXB)}")
    gemm_stage(a, [], [0, 1], 10 + nw, first=True)
    a(f"s_mov_b32 {sr(sJ)}, 12")
    lab = a.label("gemm")
    a(".p2align 6")
    a(f"{lab}:")
    gemm_stage(a, [2, 3, 4, 5, 6], [0, 1], 6)
    nc = a.label("nc"); nd = a.label("nd")
    a(f"s_cmp_eq_u32 {sr(sJ)}, {sr(sARRJ)}")
    a(f"s_cbranch_scc0 {nd}")
    a(f"""
    v_mov_b32 v12, 1
    s_mov_b64 exec, 1
    buffer_atomic_add v12, off, {sr(SRD_DBG,4)}, {sr(sCNT)} sc1
    s_mov_b64 exec, -1
    s_nop 3
    """)
    a(f"{nd}:")
    a(f"s_cmp_eq_u32 {sr(sJ)}, {sr(sCHKJ)}")
    a(f"s_cbranch_scc0 {nc}")
    a(f"v_lshlrev_b32 v12, 2, v0")
    a(f"buffer_load_dword {vr(vCHK)}, v12, {sr(SRD_DBG,4)}, 0 offen sc1")
    a(f"{nc}:")
    a(f"s_sub_u32 {sr(sJ)}, {sr(sJ)}, 1")
    a(f"s_cmp_lg_u32 {sr(sJ)}, 0")
    a(f"s_cbranch_scc1 {lab}")
    gc, gs = gate_instrs()
    gemm_stage(a, [2, 3, 4, 5, 6], [0], 6)
    gemm_stage(a, [], [], 0, valu=gc, after_bar=gs + ["s_nop 3"])
    gemm_stage(a, [], [], None, last=True)
    a("s_setprio 0")
    a("s_nop 15")

def gemm_epilogue(a, opt):
    for tile in (2, 3, 4, 5):
        b = ACC + 16 * tile
        for i in range(8):
            a(f"v_cvt_pk_bf16_f32 v{b+i}, v{b+2*i}, v{b+2*i+1}")
    a(f"""
    s_lshl_b32 {sr(sT1)}, {sr(sHP)}, 1
    s_add_u32 {sr(sT1)}, {sr(sT1)}, {sr(sHH)}
    s_lshl_b32 {sr(sKVSRC)}, {sr(sT1)}, 18
    s_lshl_b32 {sr(sT1)}, {sr(sTB)}, 15
    s_lshl_b32 {sr(sT2)}, {sr(sTQ)}, 13
    s_add_u32 {sr(sT1)}, {sr(sT1)}, {sr(sT2)}
    s_add_u32 {sr(sT1)}, {sr(sT1)}, {sr(sKVSRC)}
    s_add_u32 {sr(sT2)}, {sr(sT1)}, 4096
    """)
    for tt in range(2):
        so = sT1 if tt == 0 else sT2
        kb, vb = ACC + 32 + 16 * tt, ACC + 64 + 16 * tt
        a(f"buffer_store_dwordx4 {vr(kb,4)}, {vr(vL16)}, {sr(SRD_WS,4)}, {sr(so)} offen sc1")
        a(f"buffer_store_dwordx4 {vr(kb+4,4)}, {vr(vL16)}, {sr(SRD_WS,4)}, {sr(so)} offen offset:1024 sc1")
        a(f"buffer_store_dwordx4 {vr(vb,4)}, {vr(vL16)}, {sr(SRD_WS,4)}, {sr(so)} offen offset:2048 sc1")
        a(f"buffer_store_dwordx4 {vr(vb+4,4)}, {vr(vL16)}, {sr(SRD_WS,4)}, {sr(so)} offen offset:3072 sc1")
    a(f"s_mov_b32 {sr(sT2)}, {hex(f2u(QSCALE))}")
    a(f"s_mov_b32 {sr(sT3)}, {hex(f2u(QSCALE))}")
    for tt in range(2):
        b = ACC + 16 * tt
        for i in range(8):
            a(f"v_pk_mul_f32 {vr(b+2*i,2)}, {vr(b+2*i,2)}, {sr(sT2,2)}")
        for i in range(8):
            a(f"v_cvt_pk_bf16_f32 v{QF+8*tt+i}, v{b+2*i}, v{b+2*i+1}")
    kb = ACC + 32
    a("s_nop 1")
    for x in range(2):
        S, Q = SS + 16 * x, QF + 8 * x
        a(f"v_mfma_f32_32x32x16_bf16 {vr(S,16)}, {vr(kb,4)}, {vr(Q,4)}, 0")
        a(f"v_mfma_f32_32x32x16_bf16 {vr(S,16)}, {vr(kb+4,4)}, {vr(Q+4,4)}, {vr(S,16)}")
    a(f"""
    s_lshr_b32 {sr(sT1)}, {sr(sTQ)}, 1
    s_lshl_b32 {sr(sT1)}, {sr(sT1)}, 15
    s_lshl_b32 {sr(sT2)}, {sr(sHH)}, 14
    s_add_u32 {sr(sT1)}, {sr(sT1)}, {sr(sT2)}
    s_and_b32 {sr(sT2)}, {sr(sTQ)}, 1
    s_lshl_b32 {sr(sT2)}, {sr(sT2)}, 13
    s_add_u32 {sr(sT1)}, {sr(sT1)}, {sr(sT2)}
    v_add_u32 v12, {sr(sT1)}, {vr(vL16)}
    """)
    for tt in range(2):
        kb, vb = ACC + 32 + 16 * tt, ACC + 64 + 16 * tt
        a(f"ds_write_b128 v12, {vr(kb,4)} offset:{tt*4096}")
        a(f"ds_write_b128 v12, {vr(kb+4,4)} offset:{tt*4096+1024}")
        a(f"ds_write_b128 v12, {vr(vb,4)} offset:{tt*4096+2048}")
        a(f"ds_write_b128 v12, {vr(vb+4,4)} offset:{tt*4096+3072}")
    if opt.get("dump_q"):
        a(f"""
        s_lshl_b32 {sr(sT1)}, s2, 3
        s_add_u32 {sr(sT1)}, {sr(sT1)}, {sr(sW)}
        s_lshl_b32 {sr(sT1)}, {sr(sT1)}, 12
        s_add_u32 {sr(sT1)}, {sr(sT1)}, {WS_DBG}
        """)
        for i in range(4):
            a(f"buffer_store_dwordx4 {vr(QF+4*i,4)}, {vr(vL16)}, {sr(SRD_WS,4)}, {sr(sT1)} offen offset:{i*1024}")

def smf(L):
    return f"v_smfmac_f32_16x16x64_bf16 {vr(L,4)}, {vr(ONES,4)}, {vr(PP,8)}, {vr(IDX)}"

def attn_unit(a, t, x, hooks, skip_prev=False, c_zero=False):
    S = SS + 16 * x
    Sn = SS + 16 * (x ^ 1)
    xn = xp = x ^ 1
    Qn = QF + 8 * xn
    P0, P1 = PP, PP + 4
    def M(d, A, B, C): return f"v_mfma_f32_32x32x16_bf16 {vr(d,16)}, {vr(A,4)}, {vr(B,4)}, {C}"
    e = lambda i: f"v_exp_f32 v{S+i}, v{S+i}"
    c = lambda i: f"v_cvt_pk_bf16_f32 v{PP+i}, v{S+2*i}, v{S+2*i+1}"
    mf = [M(Sn, KF, Qn, vr(NM + 16 * xn, 16)),
          None if skip_prev else M(OA + 16 * xp, VF + 4, P1, vr(OA + 16 * xp, 16)),
          None if skip_prev else smf(LA + 4 * xp),
          M(Sn, KF + 4, Qn + 4, vr(Sn, 16)),
          M(OA + 16 * x, VF, P0, "0" if c_zero else vr(OA + 16 * x, 16))]
    va = [[e(0), e(1), e(2)], [e(3), e(4), e(5)], [e(6), e(7), c(0), c(1), c(2), c(3)],
          [e(8), e(9), e(10)], [e(11), e(12), e(13), e(14), e(15), c(4), c(5), c(6), c(7)]]
    for g in range(5):
        if mf[g]: a(mf[g])
        for h in hooks.get(g, []):
            a(h)
        for v in va[g]:
            a(v)

def kv_addr(tile, f):
    if tile < 4:
        return vCUR, tile * 4096 + f * 1024
    return vNXT, f * 1024

def rd(dst, tile, f):
    b, o = kv_addr(tile, f)
    return f"ds_read_b128 {vr(dst,4)}, {vr(b)} offset:{o}"

def kv_dma(p, so):
    return f"buffer_load_dwordx4 {vr(vDMA)}, {sr(SRD_WS,4)}, {sr(so)} offen offset:{p*1024} sc1 lds"

def poll_mailbox(a, want_all):
    poll, done = a.label("poll"), a.label("pdone")
    a(f"s_mov_b32 {sr(sT1)}, 400000")
    a(f"v_lshlrev_b32 v13, 2, v0")
    a(f"s_add_u32 {sr(sT2)}, {sr(sTB)}, 1")
    a(f"s_and_b32 {sr(sT2)}, {sr(sT2)}, 7")
    a(f"s_lshl_b32 {sr(sT2)}, 1, {sr(sT2)}")
    if want_all:
        a(f"s_mov_b32 {sr(sT2)}, 0xff")
    a("s_mov_b64 exec, 0xff")
    a(f"{poll}:")
    a(f"buffer_load_dword v12, v13, {sr(SRD_WS,4)}, {sr(sMB)} offen sc1")
    a("s_waitcnt vmcnt(0)")
    a("v_cmp_eq_u32 vcc, 1, v12")
    a("s_nop 3")
    a(f"s_and_b32 {sr(sT3)}, vcc_lo, {sr(sT2)}")
    a(f"s_cmp_eq_u32 {sr(sT3)}, {sr(sT2)}")
    a(f"s_cbranch_scc1 {done}")
    a(f"s_sub_u32 {sr(sT1)}, {sr(sT1)}, 1")
    a(f"s_cbranch_scc1 {done}")
    a("s_sleep 1")
    a(f"s_branch {poll}")
    a(f"{done}:")
    a("s_mov_b64 exec, -1")

def publish(a):
    spin, ok = a.label("rdy"), a.label("rdyok")
    a(f"s_mov_b32 {sr(sT1)}, 400000")
    a(f"s_mov_b32 {sr(sT2)}, 0x55555555")
    a(f"v_lshlrev_b32 v12, 2, v0")
    a(f"{spin}:")
    a(f"v_cmp_eq_u32 vcc, 8, {vr(vCHK)}")
    a("s_nop 3")
    a(f"s_and_b32 {sr(sT0)}, vcc_lo, {sr(sT2)}")
    a(f"s_and_b32 {sr(sT3)}, vcc_hi, {sr(sT2)}")
    a(f"s_and_b32 {sr(sT0)}, {sr(sT0)}, {sr(sT3)}")
    a(f"s_cmp_eq_u32 {sr(sT0)}, {sr(sT2)}")
    a(f"s_cbranch_scc1 {ok}")
    a(f"s_sub_u32 {sr(sT1)}, {sr(sT1)}, 1")
    a(f"s_cbranch_scc1 {ok}")
    a(f"buffer_load_dword {vr(vCHK)}, v12, {sr(SRD_DBG,4)}, 0 offen sc1")
    a("s_waitcnt vmcnt(0)")
    a(f"s_branch {spin}")
    a(f"{ok}:")
    a(f"""
    s_lshl_b32 {sr(sT0)}, {sr(sHP)}, 10
    s_lshl_b32 {sr(sT1)}, {sr(sTB)}, 2
    s_add_u32 {sr(sT0)}, {sr(sT0)}, {sr(sT1)}
    s_add_u32 {sr(sT0)}, {sr(sT0)}, {WS_MB}
    v_lshlrev_b32 v12, 7, v0
    v_mov_b32 v13, 1
    s_mov_b64 exec, 0xff
    buffer_store_dword v13, v12, {sr(SRD_WS,4)}, {sr(sT0)} offen sc1
    s_mov_b64 exec, -1
    """)

def wo_piece(i, half):
    return [f"s_add_u32 {sr(sT0)}, {sr(sROT)}, {i}", f"s_and_b32 {sr(sT0)}, {sr(sT0)}, 15", f"s_lshl_b32 {sr(sT0)}, {sr(sT0)}, 17",
            f"s_add_u32 {sr(sT0)}, {sr(sT0)}, {sr(sWOFF)}"] + ([f"s_add_u32 {sr(sT0)}, {sr(sT0)}, 16384"] if half else []) + \
           [f"s_add_u32 m0, {sr(sLDSW3)}, {(i % NSLOT3) * 16384 + half * 1024}", "s_nop 0",
            f"buffer_load_dwordx4 {vr(vDW3)}, {sr(SRD_WO,4)}, {sr(sT0)} offen lds"]

def attn_stage(a, opt, kind, s_=None):
    prio = opt.get("prio", 1)
    def sp(n): return [f"s_setprio {n}"] if prio else []
    for t in range(4):
        h0 = {0: [rd(KF, t + 1, 0)], 1: [rd(VF + 4, t, 3)], 2: ["s_waitcnt lgkmcnt(2)"],
              3: [rd(KF + 4, t + 1, 1)], 4: ["s_waitcnt lgkmcnt(2)"]}
        h1 = {0: ["s_waitcnt lgkmcnt(1)"], 1: [], 2: ["s_waitcnt lgkmcnt(0)"], 3: [], 4: [rd(VF, t + 1, 2)]}
        if t == 0:
            h0[0] += sp(2)
            h0[4] += [f"s_mov_b32 {sr(sNXT)}, {sr(sSLOT)}"]
            h1[1] = [f"s_add_u32 {sr(sSRC)}, {sr(sSRC)}, 16384"]
            h1[3] = [f"s_and_b32 {sr(sSRC)}, {sr(sSRC)}, 0x3ffff"]
        if t == 1:
            h0[0] += sp(1)
            h1[1] = [f"s_add_u32 {sr(sSLOT)}, {sr(sSLOT)}, 32768"]
            h1[3] = [f"s_and_b32 {sr(sSLOT)}, {sr(sSLOT)}, 0x1ffff"]
            if kind == 0:
                h1[4] += ["s_waitcnt vmcnt(0)", "s_barrier"]
            if kind == 3 and s_ == 13:
                h0[2] += wo_piece(8, 0)
                h0[4] += wo_piece(8, 1)
                h1[0] += wo_piece(9, 0)
                h1[2] += wo_piece(9, 1)
            if kind == 1:
                go = a.label("go")
                lanestamp(a, 203, opt, 0)
                a(f"s_cmp_eq_u32 {sr(sW)}, 0")
                a(f"s_cbranch_scc0 {go}")
                poll_mailbox(a, False)
                a(f"{go}:")
                lanestamp(a, 203, opt, 1)
                a("s_barrier")
                lanestamp(a, 203, opt, 2)
                for st in (2, 3):
                    a(f"""
                    s_lshl_b32 {sr(sT0)}, {sr(sTB)}, 1
                    s_add_u32 {sr(sT0)}, {sr(sT0)}, {st}
                    s_and_b32 {sr(sT0)}, {sr(sT0)}, 15
                    s_lshl_b32 {sr(sOFFS)}, {sr(sT0)}, 14
                    s_add_u32 m0, {sr(sLDSW)}, {st * 32768}
                    s_nop 0
                    """)
                    for p in range(4):
                        a(kv_dma(p, sOFFS))
        if t == 2:
            h0[0] += sp(0)
            h1[1] = [f"s_add_u32 m0, {sr(sSLOT)}, {sr(sLDSW)}"]
            h1[3] = [f"s_add_u32 {sr(sJ)}, {sr(sJ)}, 1"]
            if kind == 0:
                h1[4] += ["s_barrier"] + sp(3)
                np_ = a.label("np")
                a(f"s_cmp_eq_u32 {sr(sW)}, 0")
                a(f"s_cbranch_scc0 {np_}")
                publish(a)
                a(f"{np_}:")
            elif kind == 3 and s_ == 15:
                h1[4] += ["s_barrier"] + sp(3)
            elif kind == 3:
                h1[4] += ["s_waitcnt vmcnt(8)", "s_barrier"] + sp(3)
            elif kind != 1:
                h1[4] += ["s_waitcnt vmcnt(4)", "s_barrier"] + sp(3)
        if t == 3:
            if kind == 3:
                q = s_ - 13
                h0[2] += wo_piece(2 * q, 0)
                h0[4] += wo_piece(2 * q, 1)
                h1[1] = wo_piece(2 * q + 1, 0)
                h1[3] = wo_piece(2 * q + 1, 1)
            elif kind != 0:
                h0[2] += [kv_dma(0, sSRC)]
                h0[4] += [kv_dma(1, sSRC)]
                h1[1] = [kv_dma(2, sSRC)]
                h1[3] = [kv_dma(3, sSRC)]
            if kind == 1:
                go = a.label("go")
                a(f"s_cmp_eq_u32 {sr(sW)}, 0")
                a(f"s_cbranch_scc0 {go}")
                poll_mailbox(a, True)
                a(f"{go}:")
                a("s_waitcnt vmcnt(4)")
                a("s_barrier")
                for x in sp(3): a(x)
        first = kind == 0 and t == 0
        attn_unit(a, t, 0, h0, skip_prev=first, c_zero=first)
        attn_unit(a, t, 1, h1, c_zero=first)
    a(f"v_mov_b32 {vr(vCUR)}, {vr(vNXT)}")
    a(f"v_add_u32 {vr(vNXT)}, {sr(sNXT)}, {vr(vKVB)}")

def attention(a, opt):
    a(f"""
    v_bfe_u32 v12, v0, 2, 1
    v_and_b32 v13, 3, v0
    v_mov_b32 v14, 0x3f803f80
    v_cmp_gt_u32 vcc, 2, v13
    s_nop 1
    v_cndmask_b32 v14, 0, v14, vcc
    v_cmp_eq_u32 vcc, 0, v12
    s_nop 1
    v_cndmask_b32 v{ONES}, 0, v14, vcc
    v_cndmask_b32 v{ONES+2}, v14, 0, vcc
    v_mov_b32 v{ONES+1}, v{ONES}
    v_mov_b32 v{ONES+3}, v{ONES+2}
    v_mov_b32 v14, 0x4444
    v_mov_b32 v12, 0xeeee
    v_cmp_eq_u32 vcc, 1, v13
    s_nop 1
    v_cndmask_b32 v{IDX}, v14, v12, vcc
    s_lshl_b32 {sr(sT0)}, {sr(sHH)}, 14
    v_add_u32 {vr(vKVB)}, {sr(sT0)}, {vr(vL16)}
    v_mov_b32 {vr(vCUR)}, {vr(vKVB)}
    v_add_u32 {vr(vNXT)}, 32768, {vr(vKVB)}
    s_lshl_b32 {sr(sT1)}, {sr(sTQ)}, 12
    s_add_u32 {sr(sLDSW)}, {sr(sT0)}, {sr(sT1)}
    s_add_u32 {sr(sKVSRC)}, {sr(sKVSRC)}, {sr(sT1)}
    v_add_u32 {vr(vDMA)}, {sr(sKVSRC)}, {vr(vL16)}
    s_lshl_b32 {sr(sSRC)}, {sr(sTB)}, 1
    s_add_u32 {sr(sSRC)}, {sr(sSRC)}, 2
    s_and_b32 {sr(sSRC)}, {sr(sSRC)}, 15
    s_lshl_b32 {sr(sSRC)}, {sr(sSRC)}, 14
    s_mov_b32 {sr(sSLOT)}, {2 * 32768}
    s_mov_b32 {sr(sJ)}, 0
    v_lshrrev_b32 v12, 3, v0
    v_and_b32 v13, 7, v0
    v_bfe_u32 v14, v12, 1, 1
    v_lshlrev_b32 v14, 2, v14
    v_xor_b32 v13, v13, v14
    s_lshl_b32 {sr(sT0)}, {sr(sTQ)}, 4
    v_add_u32 v12, {sr(sT0)}, v12
    v_lshlrev_b32 {vr(vDW3)}, 11, v12
    v_lshl_add_u32 {vr(vDW3)}, v13, 4, {vr(vDW3)}
    s_lshl_b32 {sr(sWOFF)}, {sr(sCB)}, 7
    s_lshl_b32 {sr(sLDSW3)}, {sr(sHH)}, 13
    s_lshl_b32 {sr(sT0)}, {sr(sTQ)}, 11
    s_add_u32 {sr(sLDSW3)}, {sr(sLDSW3)}, {sr(sT0)}
    """)
    for i in range(8): a(f"v_mov_b32 v{LA+i}, 0")
    for x in range(2):
        S = SS + 16 * x
        a(f"v_max3_f32 v12, v{S}, v{S+1}, v{S+2}")
        for i in range(3, 15, 2):
            a(f"v_max3_f32 v12, v12, v{S+i}, v{S+i+1}")
        a(f"v_max_f32 v12, v12, v{S+15}")
        a(f"""
        v_mov_b32 v13, v12
        s_nop 1
        v_permlane32_swap_b32 v13, v12
        s_nop 1
        v_max_f32 v12, v12, v13
        v_sub_f32 v12, 0, v12
        """)
        for i in range(16):
            a(f"v_mov_b32 v{NM+16*x+i}, v12")
    a("s_waitcnt lgkmcnt(0)")
    a("s_barrier")
    a(rd(KF, 0, 0)); a(rd(KF + 4, 0, 1)); a(rd(VF, 0, 2))
    a("s_waitcnt lgkmcnt(1)")
    a(f"v_mfma_f32_32x32x16_bf16 {vr(SS,16)}, {vr(KF,4)}, {vr(QF,4)}, {vr(NM,16)}")
    a(f"v_mfma_f32_32x32x16_bf16 {vr(SS,16)}, {vr(KF+4,4)}, {vr(QF+4,4)}, {vr(SS,16)}")
    lanestamp(a, 203, opt, 3)
    a("s_waitcnt lgkmcnt(0)")
    a("s_nop 15")
    attn_stage(a, opt, 0)
    lanestamp(a, 202, opt, 0)
    attn_stage(a, opt, 1)
    lanestamp(a, 202, opt, 1)
    loop = a.label("attn")
    a(".p2align 6")
    a(f"{loop}:")
    attn_stage(a, opt, 2)
    lanestamp(a, 202, opt, "m")
    a(f"s_cmp_lt_u32 {sr(sJ)}, 13")
    a(f"s_cbranch_scc1 {loop}")
    for s_ in (13, 14, 15):
        attn_stage(a, opt, 3, s_)
        lanestamp(a, 202, opt, s_)
    a("s_setprio 0")
    a("s_nop 1")
    a(f"v_mfma_f32_32x32x16_bf16 {vr(OA+16,16)}, {vr(VF+4,4)}, {vr(PP+4,4)}, {vr(OA+16,16)}")
    a(smf(LA + 4))
    a("s_waitcnt lgkmcnt(0)")

def attn_epilogue(a, opt):
    a(f"""
    s_lshl_b32 {sr(sT0)}, {sr(sTB)}, 3
    s_lshl_b32 {sr(sT1)}, {sr(sTQ)}, 1
    s_add_u32 {sr(sT0)}, {sr(sT0)}, {sr(sT1)}
    s_lshl_b32 {sr(sT0)}, {sr(sT0)}, 17
    s_lshl_b32 {sr(sT1)}, {sr(sHP)}, 1
    s_add_u32 {sr(sT1)}, {sr(sT1)}, {sr(sHH)}
    s_lshl_b32 {sr(sT1)}, {sr(sT1)}, 11
    s_add_u32 {sr(sT0)}, {sr(sT0)}, {sr(sT1)}
    s_add_u32 {sr(sOOFF)}, {sr(sT0)}, {WS_O}
    s_mov_b32 {sr(sT2)}, {hex(f2u(2.0**24))}
    s_nop 7
    """)
    ok = a.label("ok")
    a("v_mov_b32 v12, 0")
    a("v_mov_b32 v13, 0")
    a(f"v_add_f32 v{LA}, v{LA}, v{LA+1}")
    a(f"v_add_f32 v{LA+4}, v{LA+4}, v{LA+5}")
    for i in range(16):
        a(f"v_pk_fma_f32 v[12:13], {vr(OA+2*i,2)}, 0, v[12:13] op_sel_hi:[1,0,1]")
    a(f"v_cmp_nle_f32 {sr(sM,2)}, v{LA}, {sr(sT2)}")
    a(f"v_cmp_nle_f32 {sr(sM2,2)}, v{LA+4}, {sr(sT2)}")
    a("v_cmp_u_f32 vcc, v12, v13")
    a(f"s_or_b64 {sr(sM,2)}, {sr(sM,2)}, {sr(sM2,2)}")
    a(f"s_or_b64 {sr(sM,2)}, {sr(sM,2)}, vcc")
    if opt.get("force_fallback"):
        a(f"s_mov_b64 {sr(sM,2)}, -1")
    a(f"s_cmp_eq_u64 {sr(sM,2)}, 0")
    a(f"s_cbranch_scc1 {ok}")
    fallback(a, opt)
    a(f"{ok}:")
    a(f"v_rcp_f32 v12, v{LA}")
    a(f"v_rcp_f32 v14, v{LA+4}")
    for x in range(2):
        r = (12, 14)[x]
        a(f"v_mov_b32 v{r+1}, v{r}" if x == 1 else f"v_mov_b32 v13, v12")
        b = OA + 16 * x
        for i in range(8):
            a(f"v_pk_mul_f32 {vr(b+2*i,2)}, {vr(b+2*i,2)}, {vr(r,2)}")
        for i in range(8):
            a(f"v_cvt_pk_bf16_f32 v{b+i}, v{b+2*i}, v{b+2*i+1}")
        if x == 1:
            a(f"s_add_u32 {sr(sOOFF)}, {sr(sOOFF)}, 131072")
        a(f"buffer_store_dwordx4 {vr(b,4)}, {vr(vL16)}, {sr(SRD_WS,4)}, {sr(sOOFF)} offen sc1")
        a(f"buffer_store_dwordx4 {vr(b+4,4)}, {vr(vL16)}, {sr(SRD_WS,4)}, {sr(sOOFF)} offen offset:1024 sc1")

def phase3(a, opt):
    vm = VmTracker()
    ACC3, AF, OF, DEPTH, NSLOT = 16, 48, 72, opt.get("depth", 16), NSLOT3
    vRD = [7, 8, 9, 11, 4, 5]
    vG, vOUT = 14, 13
    a("s_waitcnt vmcnt(0)")
    a("s_barrier")
    timestamp(a, 4, opt)
    np_ = a.label("np3")
    a(f"s_cmp_eq_u32 {sr(sW)}, 0")
    a(f"s_cbranch_scc0 {np_}")
    a(f"""
    s_lshl_b32 {sr(sT0)}, {sr(sTB)}, 12
    s_lshl_b32 {sr(sT1)}, {sr(sHP)}, 2
    s_add_u32 {sr(sT0)}, {sr(sT0)}, {sr(sT1)}
    s_add_u32 {sr(sT0)}, {sr(sT0)}, {WS_MB2}
    v_lshlrev_b32 v12, 7, v0
    v_mov_b32 v15, 1
    s_mov_b32 exec_lo, -1
    s_mov_b32 exec_hi, 0
    buffer_store_dword v15, v12, {sr(SRD_WS,4)}, {sr(sT0)} offen sc1
    s_mov_b64 exec, -1
    """)
    poll = a.label("poll3"); done = a.label("pd3")
    a(f"s_mov_b32 {sr(sT1)}, 400000")
    a(f"v_lshlrev_b32 v12, 2, v0")
    a("s_mov_b32 exec_lo, -1")
    a("s_mov_b32 exec_hi, 0")
    a(f"{poll}:")
    a(f"buffer_load_dword v15, v12, {sr(SRD_WS,4)}, {sr(sMB2)} offen sc1")
    a("s_waitcnt vmcnt(0)")
    a("v_cmp_eq_u32 vcc, 1, v15")
    a("s_nop 3")
    a("s_cmp_eq_u32 vcc_lo, -1")
    a(f"s_cbranch_scc1 {done}")
    a(f"s_sub_u32 {sr(sT1)}, {sr(sT1)}, 1")
    a(f"s_cbranch_scc1 {done}")
    a("s_sleep 1")
    a(f"s_branch {poll}")
    a(f"{done}:")
    a("s_mov_b64 exec, -1")
    a(f"{np_}:")
    def wdma(i):
        for half in range(2):
            for x in wo_piece(i, half): a(x)
            vm.issue(("w", i))
    wdma(6); wdma(7)
    a(f"""
    v_and_b32 v12, 31, v0
    s_lshl_b32 {sr(sT0)}, {sr(sTB3)}, 7
    s_lshl_b32 {sr(sT2)}, {sr(sTQ)}, 5
    s_add_u32 {sr(sT0)}, {sr(sT0)}, {sr(sT2)}
    v_add_u32 v12, {sr(sT0)}, v12                  ; token
    v_lshlrev_b32 v3, 2, v12
    v_lshrrev_b32 {vr(vG)}, 5, v0                  ; h
    v_lshlrev_b32 {vr(vOUT)}, 11, v12
    v_lshl_add_u32 {vr(vOUT)}, {vr(vG)}, 4, {vr(vOUT)}
    v_bfe_u32 v15, v0, 2, 2                        ; r
    v_lshl_add_u32 v12, {vr(vG)}, 2, v15           ; 4h + r
    v_lshlrev_b32 v2, 7, v12
    v_and_b32 v12, 1, v0                           ; h'
    v_bfe_u32 v1, v0, 1, 1                         ; a
    v_bfe_u32 v5, v0, 4, 1                         ; g
    v_lshl_add_u32 v12, v5, 1, v12                 ; chunk16 = 2g + h'
    v_lshrrev_b32 v15, 1, v15
    v_lshlrev_b32 v15, 2, v15
    v_xor_b32 v12, v12, v15
    v_lshl_add_u32 v2, v12, 4, v2
    v_lshl_add_u32 v2, v1, 3, v2
    s_lshl_b32 {sr(sT0)}, {sr(sHH)}, 13
    v_add_u32 v{vRD[0]}, {sr(sT0)}, v2
    v_xor_b32 v{vRD[1]}, 64, v{vRD[0]}
    v_add_u32 v{vRD[2]}, 0x10000, v{vRD[0]}
    v_add_u32 v{vRD[3]}, 0x10000, v{vRD[1]}
    v_add_u32 v{vRD[4]}, 0x20000, v{vRD[0]}
    v_add_u32 v{vRD[5]}, 0x20000, v{vRD[1]}
    s_lshl_b32 {sr(sT0)}, {sr(sTB3)}, 2
    s_add_u32 {sr(sT0)}, {sr(sT0)}, {sr(sTQ)}
    s_lshl_b32 {sr(sAOFF)}, {sr(sT0)}, 17
    s_lshl_b32 {sr(sT1)}, {sr(sHH)}, 16
    s_add_u32 {sr(sAOFF)}, {sr(sAOFF)}, {sr(sT1)}
    s_add_u32 {sr(sAOFF)}, {sr(sAOFF)}, {WS_O}
    """)
    a("s_barrier")
    timestamp(a, 5, opt)
    if opt.get("dbg_span"): dbg_span(a, "e3")
    def oload(kk):
        d = kk % DEPTH
        if kk % 4 == 0:
            a(f"s_add_u32 {sr(sT1)}, {sr(sROT)}, {kk // 4}")
            a(f"s_and_b32 {sr(sT1)}, {sr(sT1)}, 15")
            a(f"s_lshl_b32 {sr(sT1)}, {sr(sT1)}, 12")
            a(f"s_add_u32 {sr(sT1)}, {sr(sT1)}, {sr(sAOFF)}")
        if opt.get("p3_noload") and kk >= DEPTH: return
        sc = "" if opt.get("p3_plain") else " sc1"
        a(f"buffer_load_dwordx4 {vr(OF+4*d,4)}, {vr(vL16)}, {sr(SRD_WS,4)}, {sr(sT1)} offen offset:{(kk%4)*1024}{sc}")
        vm.issue(("o", kk))
    for kk in range(DEPTH): oload(kk)
    a(f"s_mov_b32 {sr(sT2)}, {WS_G}")
    a(f"buffer_load_dword {vr(vG)}, v3, {sr(SRD_WS,4)}, {sr(sT2)} offen sc1")
    vm.issue(("g", 0))
    def wreads(st, ks, set_):
        r = []
        slot = st % NSLOT
        win, off = divmod(slot * 16384, 65536)
        for ct in range(2):
            base = AF + 8 * set_ + 4 * ct
            reg = vRD[2 * win + ct]
            r.append(f"ds_read_b64_tr_b16 {vr(base,2)}, {vr(reg)} offset:{off + ks*2048}")
            r.append(f"ds_read_b64_tr_b16 {vr(base+2,2)}, {vr(reg)} offset:{off + ks*2048+1024}")
        return r
    def wr(kk): return wreads(kk // 4, kk % 4, kk % 3)
    for x in wr(0) + wr(1): a(x)
    pend = []
    for st in range(16):
        for ks in range(4):
            kk = 4 * st + ks
            d = kk % DEPTH
            cur = kk % 3
            bar = ks == 2 and st in (5, 9)
            if bar:
                need = ("w", 7) if st == 5 else ("w", 15)
                n = vm.wait_count(lambda t: t in (need, ("o", kk)))
                a(f"s_waitcnt vmcnt({n}) lgkmcnt(0)")
                a("s_barrier")
                if st == 5:
                    pend = [(i, h) for i in range(10, 16) for h in range(2)]
            else:
                n = vm.wait_count(lambda t: t == ("o", kk))
                a(f"s_waitcnt vmcnt({n}) lgkmcnt({4 if kk < 63 else 0})")
            nxt = wr(kk + 2) if kk + 2 < 64 else []
            for ct in range(2):
                c = "0" if kk == 0 else vr(ACC3+16*ct,16)
                a(f"v_mfma_f32_32x32x16_bf16 {vr(ACC3+16*ct,16)}, {vr(AF+8*cur+4*ct,4)}, {vr(OF+4*d,4)}, {c}")
                for x in nxt[2*ct:2*ct+2]: a(x)
            if kk + DEPTH < 64:
                oload(kk + DEPTH)
            for i, h in pend[:2]:
                if opt.get("p3_nowo"): continue
                for x in wo_piece(i, h): a(x)
                vm.issue(("w", i))
            pend = pend[2:]
    timestamp(a, 6, opt)
    XA = 6 * 16384
    a(f"""
    s_lshl_b32 {sr(sT0)}, {sr(sTQ)}, 12
    s_lshl_b32 {sr(sT1)}, {sr(sHH)}, 11
    s_add_u32 {sr(sT2)}, {sr(sT0)}, {sr(sT1)}
    s_xor_b32 {sr(sT1)}, {sr(sT1)}, 2048
    s_add_u32 {sr(sT3)}, {sr(sT0)}, {sr(sT1)}
    s_add_u32 {sr(sT2)}, {sr(sT2)}, {XA}
    s_add_u32 {sr(sT3)}, {sr(sT3)}, {XA}
    v_add_u32 v12, {sr(sT2)}, {vr(vL16)}
    v_add_u32 v1, {sr(sT3)}, {vr(vL16)}
    v_sub_f32 v2, 1.0, {vr(vG)}
    v_cvt_pk_bf16_f32 v2, v2, v2
    v_lshlrev_b32 v2, 16, v2
    s_lshl_b32 {sr(sT0)}, {sr(sCB)}, 7
    s_lshl_b32 {sr(sT1)}, {sr(sHH)}, 6
    s_add_u32 {sr(sT0)}, {sr(sT0)}, {sr(sT1)}
    """)
    brb, fin = a.label("brb"), a.label("fin")
    a(f"s_cmp_eq_u32 {sr(sHH)}, 0")
    a(f"s_cbranch_scc0 {brb}")
    for br in range(2):
        K, S_ = ACC3 + 16 * br, ACC3 + 16 * (br ^ 1)
        own, rcv = (vG, 2) if br == 0 else (2, vG)
        a(f"v_mov_b32 v60, v{own}\nv_mov_b32 v61, v{own}\nv_mov_b32 v62, v{rcv}\nv_mov_b32 v63, v{rcv}")
        for i in range(8):
            a(f"v_cvt_pk_bf16_f32 v{48+i}, v{S_+2*i}, v{S_+2*i+1}")
        a("ds_write_b128 v12, v[48:51]")
        a("ds_write_b128 v12, v[52:55] offset:1024")
        a("s_waitcnt lgkmcnt(0)")
        a("s_barrier")
        a("ds_read_b128 v[48:51], v1")
        a("ds_read_b128 v[52:55], v1 offset:1024")
        for i in range(8):
            if i == 0: a("s_waitcnt lgkmcnt(1)")
            if i == 4: a("s_waitcnt lgkmcnt(0)")
            a(f"v_lshlrev_b32 v56, 16, v{48+i}")
            a(f"v_and_b32 v57, 0xffff0000, v{48+i}")
            a(f"v_pk_mul_f32 v[56:57], v[56:57], v[62:63]")
            a(f"v_pk_fma_f32 v[56:57], {vr(K+2*i,2)}, v[60:61], v[56:57]")
            if opt.get("perturb") and br == 0 and i == 0:
                a(f"s_cmp_eq_u32 s2, 0")
                a(f"s_cselect_b32 {sr(sT1)}, {hex(f2u(opt['perturb']))}, 0")
                a(f"s_cmp_eq_u32 {sr(sW)}, 0")
                a(f"s_cselect_b32 {sr(sT1)}, {sr(sT1)}, 0")
                a(f"v_mov_b32 v58, {sr(sT1)}")
                a(f"v_cmp_eq_u32 vcc, 0, v0")
                a("s_nop 1")
                a(f"v_cndmask_b32 v58, 0, v58, vcc")
                a(f"v_add_f32 v56, v56, v58")
            a(f"v_cvt_pk_bf16_f32 v{K+i}, v56, v57")
            if i == 3:
                a(f"buffer_store_dwordx4 {vr(K,4)}, {vr(vOUT)}, {sr(SRD_OUT,4)}, {sr(sT0)} offen")
        a(f"buffer_store_dwordx4 {vr(K+4,4)}, {vr(vOUT)}, {sr(SRD_OUT,4)}, {sr(sT0)} offen offset:32")
        if br == 0:
            a(f"s_branch {fin}")
            a(f"{brb}:")
    a(f"{fin}:")

def fallback(a, opt):
    MX = NM
    a(f"s_lshl_b32 {sr(sT0)}, {sr(sHP)}, 1")
    a(f"s_add_u32 {sr(sT0)}, {sr(sT0)}, {sr(sHH)}")
    a(f"s_lshl_b32 {sr(sBLK)}, {sr(sT0)}, 18")
    for i in range(32): a(f"v_mov_b32 v{OA+i}, 0")
    for i in range(8): a(f"v_mov_b32 v{LA+i}, 0")
    a(f"v_mov_b32 v{MX}, 0xff800000")
    a(f"v_mov_b32 v{MX+16}, 0xff800000")
    a(f"s_mov_b32 {sr(sJ)}, 0")
    loop = a.label("fb")
    a(f"{loop}:")
    a(f"buffer_load_dwordx4 {vr(KF,4)}, {vr(vL16)}, {sr(SRD_WS,4)}, {sr(sBLK)} offen sc1")
    a(f"buffer_load_dwordx4 {vr(KF+4,4)}, {vr(vL16)}, {sr(SRD_WS,4)}, {sr(sBLK)} offen offset:1024 sc1")
    a(f"buffer_load_dwordx4 {vr(VF,4)}, {vr(vL16)}, {sr(SRD_WS,4)}, {sr(sBLK)} offen offset:2048 sc1")
    a(f"buffer_load_dwordx4 {vr(VF+4,4)}, {vr(vL16)}, {sr(SRD_WS,4)}, {sr(sBLK)} offen offset:3072 sc1")
    a("s_waitcnt vmcnt(0)")
    for x in range(2):
        S, Q, O, L, mx = SS, QF + 8 * x, OA + 16 * x, LA + 4 * x, MX + 16 * x
        a(f"v_mfma_f32_32x32x16_bf16 {vr(S,16)}, {vr(KF,4)}, {vr(Q,4)}, 0")
        a(f"v_mfma_f32_32x32x16_bf16 {vr(S,16)}, {vr(KF+4,4)}, {vr(Q+4,4)}, {vr(S,16)}")
        a("s_nop 15")
        a(f"v_max3_f32 v12, v{S}, v{S+1}, v{S+2}")
        for i in range(3, 15, 2):
            a(f"v_max3_f32 v12, v12, v{S+i}, v{S+i+1}")
        a(f"v_max_f32 v12, v12, v{S+15}")
        a(f"""
        v_mov_b32 v13, v12
        s_nop 1
        v_permlane32_swap_b32 v13, v12
        s_nop 1
        v_max3_f32 v12, v12, v13, v{mx}
        v_sub_f32 v13, v{mx}, v12
        v_cmp_eq_f32 vcc, v{mx}, v12
        v_exp_f32 v13, v13
        s_nop 1
        v_cndmask_b32 v13, v13, 1.0, vcc
        v_mov_b32 v{mx}, v12
        """)
        for i in range(16):
            a(f"v_mul_f32 v{O+i}, v13, v{O+i}")
        for i in range(4):
            a(f"v_mul_f32 v{L+i}, v13, v{L+i}")
        for i in range(16):
            a(f"v_sub_f32 v{S+i}, v{S+i}, v12")
        for i in range(16):
            a(f"v_exp_f32 v{S+i}, v{S+i}")
        a("s_nop 0")
        for i in range(8):
            a(f"v_cvt_pk_bf16_f32 v{PP+i}, v{S+2*i}, v{S+2*i+1}")
        a("s_nop 1")
        a(f"v_mfma_f32_32x32x16_bf16 {vr(O,16)}, {vr(VF,4)}, {vr(PP,4)}, {vr(O,16)}")
        a(f"v_mfma_f32_32x32x16_bf16 {vr(O,16)}, {vr(VF+4,4)}, {vr(PP+4,4)}, {vr(O,16)}")
        a(smf(L))
        a("s_nop 15")
    a(f"s_add_u32 {sr(sBLK)}, {sr(sBLK)}, 4096")
    a(f"s_add_u32 {sr(sJ)}, {sr(sJ)}, 1")
    a(f"s_cmp_lt_u32 {sr(sJ)}, 64")
    a(f"s_cbranch_scc1 {loop}")
    a(f"v_add_f32 v{LA}, v{LA}, v{LA+1}")
    a(f"v_add_f32 v{LA+4}, v{LA+4}, v{LA+5}")

def gstamp(a, reg):
    a("s_memtime s[70:71]")
    a("s_waitcnt lgkmcnt(0)")
    a("s_mov_b32 s69, m0")
    a("s_mov_b32 m0, s87")
    a(f"v_writelane_b32 v{reg-100}, s70, m0")
    a("s_mov_b32 m0, s69")

def lanestamp(a, reg, opt, lane=None):
    if not opt.get("stamps2"):
        return
    a("s_memtime s[70:71]")
    a("s_waitcnt lgkmcnt(0)")
    if lane == "m":
        a(f"s_mov_b32 s69, m0")
        a(f"s_sub_u32 m0, {sr(sJ)}, 1")
        a(f"v_writelane_b32 v{reg}, s70, m0")
        a(f"s_mov_b32 m0, s69")
    elif lane is None:
        a(f"s_mov_b32 s69, m0")
        a(f"s_mov_b32 m0, {sr(sJ)}")
        a(f"v_writelane_b32 v{reg}, s70, m0")
        a(f"s_mov_b32 m0, s69")
    else:
        a(f"v_writelane_b32 v{reg}, s70, {lane}")

def timestamp(a, idx, opt):
    if not opt.get("stamps"):
        return
    a(f"s_memtime s[70:71]")
    a(f"s_memrealtime s[92:93]")
    a("s_waitcnt lgkmcnt(0)")
    a(f"s_mov_b32 s{72+idx}, s70")
    a(f"s_mov_b32 s{80+idx}, s92")

def stamps_out(a, n, opt):
    if opt.get("stampsg"):
        a(f"""
        s_lshl_b32 {sr(sT1)}, s2, 3
        s_add_u32 {sr(sT1)}, {sr(sT1)}, {sr(sW)}
        s_lshl_b32 {sr(sT1)}, {sr(sT1)}, 10
        s_add_u32 {sr(sT1)}, {sr(sT1)}, {WS_DBG + (12 << 20)}
        v_lshlrev_b32 v12, 2, v0
        buffer_store_dword v104, v12, {sr(SRD_WS,4)}, {sr(sT1)} offen
        buffer_store_dword v105, v12, {sr(SRD_WS,4)}, {sr(sT1)} offen offset:256
        buffer_store_dword v106, v12, {sr(SRD_WS,4)}, {sr(sT1)} offen offset:512
        """)
    if opt.get("stamps2"):
        a(f"""
        s_lshl_b32 {sr(sT1)}, s2, 3
        s_add_u32 {sr(sT1)}, {sr(sT1)}, {sr(sW)}
        s_lshl_b32 {sr(sT1)}, {sr(sT1)}, 10
        s_add_u32 {sr(sT1)}, {sr(sT1)}, {WS_DBG + (10 << 20)}
        v_lshlrev_b32 v12, 2, v0
        buffer_store_dword v200, v12, {sr(SRD_WS,4)}, {sr(sT1)} offen
        buffer_store_dword v201, v12, {sr(SRD_WS,4)}, {sr(sT1)} offen offset:256
        buffer_store_dword v202, v12, {sr(SRD_WS,4)}, {sr(sT1)} offen offset:512
        buffer_store_dword v203, v12, {sr(SRD_WS,4)}, {sr(sT1)} offen offset:768
        """)
    if not opt.get("stamps"):
        return
    a(f"""
    s_lshl_b32 {sr(sT1)}, s2, 3
    s_add_u32 {sr(sT1)}, {sr(sT1)}, {sr(sW)}
    s_lshl_b32 {sr(sT1)}, {sr(sT1)}, 6
    s_add_u32 {sr(sT1)}, {sr(sT1)}, {WS_DBG + (8 << 20)}
    v_mov_b32 v13, 0
    """)
    for i in range(n):
        a(f"v_writelane_b32 v13, s{72+i}, {i}")
        a(f"v_writelane_b32 v13, s{80+i}, {8+i}")
    a(f"""
    v_lshlrev_b32 v12, 2, v0
    v_cmp_gt_u32 vcc, 16, v0
    s_and_saveexec_b64 {sr(sM,2)}, vcc
    buffer_store_dword v13, v12, {sr(SRD_WS,4)}, {sr(sT1)} offen
    s_mov_b64 exec, {sr(sM,2)}
    """)

def span3(a, opt, off):
    if not opt.get("span3"): return
    sk = a.label("sk3")
    a(f"s_cmp_eq_u32 s2, {opt['span3']}")
    a(f"s_cbranch_scc0 {sk}")
    a(f"s_cmp_eq_u32 {sr(sW)}, 0")
    a(f"s_cbranch_scc0 {sk}")
    a("s_memrealtime s[92:93]")
    a("s_waitcnt lgkmcnt(0)")
    a(f"v_mov_b32 v12, s92")
    a(f"s_mov_b32 s93, {off}")
    a("s_mov_b64 exec, 1")
    a(f"buffer_store_dword v12, off, {sr(SRD_DBG,4)}, s93 sc1")
    a("s_mov_b64 exec, -1")
    a(f"{sk}:")

def dbg_span(a, which):
    w = {"start": 4, "gemm": 12, "attn": 20, "end": 28, "e3": 36, "g0": 44, "hook": 52, "karg": 20, "dma": 36, "prew": 52, "smax": 60}[which]
    sk = a.label("sk")
    a(f"s_cmp_eq_u32 {sr(sW)}, 0")
    a(f"s_cbranch_scc0 {sk}")
    a("s_memrealtime s[92:93]")
    a("s_waitcnt lgkmcnt(0)")
    a(f"v_mov_b32 v12, s92")
    a(f"s_mov_b32 s93, {w}")
    a("s_mov_b64 exec, 1")
    a(f"buffer_atomic_umax v12, off, {sr(SRD_DBG,4)}, s93 sc1")
    a("s_mov_b64 exec, -1")
    a(f"{sk}:")

OPT = {}
def k12(opt):
    OPT.clear(); OPT.update(opt)
    a = Asm()
    a(f".globl {NAME12}\n.p2align 8\n.type {NAME12},@function\n{NAME12}:")
    timestamp(a, 0, opt)
    if opt.get("dbg_span") or opt.get("span2") or opt.get("span3"):
        a("s_memrealtime s[84:85]")
    prologue(a, opt)
    if opt.get("dbg_span"):
        sk = a.label("sk")
        a(f"s_cmp_eq_u32 {sr(sW)}, 0")
        a(f"s_cbranch_scc0 {sk}")
        a("s_waitcnt lgkmcnt(0)")
        a("s_not_b32 s84, s84")
        a("v_mov_b32 v12, s84")
        a("s_mov_b32 s93, 4")
        a("s_mov_b64 exec, 1")
        a(f"buffer_atomic_umax v12, off, {sr(SRD_DBG,4)}, s93 sc1")
        a("s_mov_b64 exec, -1")
        a(f"{sk}:")
    gemm(a, opt)
    if opt.get("dbg_span") or opt.get("span2"): dbg_span(a, "gemm")
    span3(a, opt, 44)
    if opt.get("stamps_start"):
        timestamp(a, 7, opt)
        opt = dict(opt); opt["stamps"] = 0
        gemm_epilogue(a, opt)
        a("s_waitcnt vmcnt(0) lgkmcnt(0)")
        opt["stamps"] = 1
        stamps_out(a, 8, opt)
        a("L_end12:\ns_endpgm")
        return a.text()
    timestamp(a, 1, opt)
    gemm_epilogue(a, opt)
    if opt.get("stop_after_gemm"):
        a("s_waitcnt vmcnt(0) lgkmcnt(0)")
        timestamp(a, 2, opt)
        stamps_out(a, 3, opt)
    else:
        timestamp(a, 2, opt)
        attention(a, opt)
        timestamp(a, 3, opt)
        if opt.get("dbg_span"): dbg_span(a, "attn")
        span3(a, opt, 52)
        attn_epilogue(a, opt)
        if opt.get("fused"):
            phase3(a, opt)
            if opt.get("stamps"):
                a("s_waitcnt vmcnt(0)")
                timestamp(a, 7, opt)
            stamps_out(a, 8, opt)
            if opt.get("span3"):
                a("s_waitcnt vmcnt(0)")
                span3(a, opt, 60)
            if opt.get("dbg_span") or opt.get("span2"):
                a("s_waitcnt vmcnt(0)")
                dbg_span(a, "end")
        else:
            a("s_waitcnt vmcnt(0)")
            timestamp(a, 4, opt)
            stamps_out(a, 5, opt)
    a("L_end12:\ns_endpgm")
    return a.text()

KD12 = f"""
.section .rodata,"a"
.p2align 6
.amdhsa_kernel {NAME12}
  .amdhsa_next_free_vgpr 256
  .amdhsa_next_free_sgpr 102
  .amdhsa_accum_offset 256
  .amdhsa_group_segment_fixed_size 0
  .amdhsa_kernarg_size 80
  .amdhsa_user_sgpr_count 2
  .amdhsa_user_sgpr_kernarg_segment_ptr 1
  .amdhsa_system_sgpr_workgroup_id_x 1
  .amdhsa_float_denorm_mode_32 3
.end_amdhsa_kernel
"""
```

```python
from asm import Asm, vr, sr, VmTracker

NAME12 = "gated_mix__mha_block__softmax_full_mha__prompt_kernel"
WS_KV = 0
WS_O = 16 << 20
WS_G = 24 << 20
WS_MB = 25 << 20
WS_MB2 = WS_MB + 65536
WS_DBG = 32 << 20
WS_SIZE = 0x10000000
LOG2E = 1.4426950408889634
QSCALE = LOG2E / (32 ** 0.5)

import struct
def f2u(x): return struct.unpack("<I", struct.pack("<f", x))[0]

SRD_X, SRD_W, SRD_WS, SRD_DBG, SRD_GW = 8, 12, 16, 20, 24
sW, sHH, sTQ, sHP, sTB = 28, 29, 30, 31, 32
sW1K = 33
sXJ = 34
sWJ = 35
sRING = 36
sRINGW = 37
sJ = 38
sT0, sT1, sT2, sT3 = 40, 41, 42, 43
sXQ = 44
sKVSRC = 45
sSLOT = 46
sBLK = 47
sM = 48
sM2 = 50
sOOFF = 52
sCNT = 53
sMB = 54
sLDSW = 55
sSRC = 39
sOFFS = 64
sNXT = 65
sCHKJ = 66
sARRJ = 67
sGOFF = 68
sKVO = 35
sPF = 47
SRD_WO, SRD_OUT = 4, 56
sTB3, sCB, sROT, sMB2 = 60, 61, 62, 63
sAOFF, sWOFF = 100, 101
sLDSW3 = 34
vDW3 = 6
vLANE = 0
vDX, vDW, vXP, vWP, vXA, vW0 = 2, 3, 4, 5, 6, 7
vL16 = 10
vXB = 11
vT = 12
FR = [64, 84]
ACC = 160
QF = 16
OA = 32
LA = 64
NM = 72
SS = 104
PP = 136
KF = 144
VF = 152
ONES = 160
IDX = 164
vCUR, vNXT = 2, 3
vKVB, vDMA = 4, 5
vCHK = 15
vPA, vPV = 165, 166

RING = 20 * 8192
NSLOT3 = 10

def wrap_add(a, dst, src, const, tmp):
    a(f"s_add_u32 {sr(tmp)}, {sr(src)}, {const}")
    a(f"s_sub_u32 {dst}, {sr(tmp)}, {RING}")
    a(f"s_cselect_b32 {dst}, {sr(tmp)}, {dst}")

def prologue(a, opt):
    a(f"""
    s_cmp_ge_u32 s2, 256
    s_cbranch_scc1 L_end12
    """)
    if opt.get("codepf", 1):
        a("""
        s_getpc_b64 s[92:93]
        L_pc12:
        s_mov_b32 s3, L_end12-L_pc12
        v_lshlrev_b32 v1, 6, v0
        v_min_u32 v1, s3, v1
        global_load_dword v33, v1, s[92:93]
        """)
    a(f"""
    s_load_dwordx4 s[56:59], s[0:1], 0
    s_load_dwordx2 s[60:61], s[0:1], 32
    s_load_dwordx2 s[62:63], s[0:1], 48
    s_load_dwordx4 s[88:91], s[0:1], 64
    s_load_dwordx2 s[94:95], s[0:1], 16
    s_load_dwordx2 s[96:97], s[0:1], 40
    s_load_dwordx2 s[98:99], s[0:1], 56
    v_lshrrev_b32 v1, 6, v0
    v_and_b32 v0, 63, v0
    s_and_b32 s3, s2, 7
    v_readfirstlane_b32 {sr(sW)}, v1
    s_lshr_b32 s4, s2, 3
    s_add_u32 s5, s4, {opt.get("hpshift", 0)}
    s_and_b32 s5, s5, 3
    s_lshl_b32 s3, s3, 2
    s_add_u32 {sr(sHP)}, s3, s5
    s_lshr_b32 {sr(sTB)}, s4, 2
    s_lshr_b32 {sr(sHH)}, {sr(sW)}, 2
    s_and_b32 {sr(sTQ)}, {sr(sW)}, 3
    s_lshl_b32 {sr(sW1K)}, {sr(sW)}, 10
    """)
    a(f"""
    v_lshrrev_b32 v13, 3, v0                 ; r8
    v_and_b32 v14, 7, v0                     ; c'
    s_and_b32 {sr(sT0)}, {sr(sW)}, 1
    s_lshl_b32 {sr(sT0)}, {sr(sT0)}, 2
    v_lshrrev_b32 v15, 1, v13                ; r8>>1 (0..3)
    v_add_u32 v1, {sr(sT0)}, v15             ; 4*(w&1) + (r8>>1)
    v_xor_b32 v1, v1, v14                    ; cX
    s_lshl_b32 {sr(sT1)}, {sr(sW)}, 3
    v_add_u32 v13, {sr(sT1)}, v13            ; 8w + r8
    v_lshlrev_b32 {vr(vDX)}, 11, v13
    v_lshl_add_u32 {vr(vDX)}, v1, 4, {vr(vDX)}
    v_and_b32 v15, 1, v15
    v_lshlrev_b32 v15, 2, v15
    v_xor_b32 v15, v15, v14                  ; cW
    s_mov_b32 {sr(sT1)}, 6144
    v_mul_lo_u32 {vr(vDW)}, v13, {sr(sT1)}
    v_lshl_add_u32 {vr(vDW)}, v15, 4, {vr(vDW)}
    s_lshl_b32 {sr(sXJ)}, {sr(sTB)}, 19          ; tb*256*2048
    s_and_b32 {sr(sWJ)}, {sr(sHP)}, 15
    s_lshl_b32 {sr(sWJ)}, {sr(sWJ)}, 7           ; hpl*128
    """)
    a(f"""
    v_and_b32 v13, 31, v0
    v_lshrrev_b32 v14, 5, v0                 ; h
    v_bfe_u32 v15, v13, 1, 3
    v_xor_b32 v15, v15, v14
    v_lshlrev_b32 {vr(vXP)}, 7, v13
    v_lshl_add_u32 {vr(vXP)}, v15, 4, {vr(vXP)}
    v_bfe_u32 v13, v0, 2, 2                  ; r
    v_lshl_add_u32 v1, v14, 3, v13           ; 8h + r
    v_lshlrev_b32 {vr(vWP)}, 7, v1
    v_bfe_u32 v15, v0, 4, 1                  ; g
    v_lshlrev_b32 v15, 1, v15
    v_bfe_u32 v1, v0, 1, 1                   ; c>>1
    v_add_u32 v15, v15, v1
    s_lshl_b32 {sr(sT1)}, {sr(sHH)}, 2
    v_add_u32 v15, {sr(sT1)}, v15            ; cc
    v_lshrrev_b32 v13, 1, v13
    v_lshlrev_b32 v13, 2, v13
    v_xor_b32 v15, v15, v13
    v_lshl_add_u32 {vr(vWP)}, v15, 4, {vr(vWP)}
    v_and_b32 v1, 1, v0
    v_lshl_add_u32 {vr(vWP)}, v1, 3, {vr(vWP)}
    v_lshlrev_b32 {vr(vL16)}, 4, v0
    s_add_u32 {sr(sXQ)}, {sr(sTQ)}, 3
    s_lshl_b32 {sr(sXQ)}, {sr(sXQ)}, 13
    """)
    a("s_waitcnt lgkmcnt(0)")
    if opt.get("stamps_start"): timestamp(a, 1, opt)
    if opt.get("span2") or opt.get("span3"): a("s_memrealtime s[78:79]")
    a(f"""
    s_mov_b32 {sr(SRD_X)}, s56
    s_mov_b32 {sr(SRD_X+1)}, s57
    s_mov_b32 {sr(SRD_X+2)}, {2048*1024*2}
    s_mov_b32 {sr(SRD_X+3)}, 0x00020000
    s_cmp_ge_u32 {sr(sHP)}, 16
    s_cselect_b32 {sr(SRD_W)}, s60, s58
    s_cselect_b32 {sr(SRD_W+1)}, s61, s59
    s_mov_b32 {sr(SRD_W+2)}, {1024*3072*2}
    s_mov_b32 {sr(SRD_W+3)}, 0x00020000
    """)
    for g in range(14):
        dma_unit_static(a, g)
        if g == 6 and opt.get("stamps_start"): timestamp(a, 2, opt)
    if opt.get("stamps_start"): timestamp(a, 3, opt)
    if opt.get("span2") or opt.get("span3"): a("s_memrealtime s[80:81]")
    if opt.get("dbg_span") or opt.get("span2") or opt.get("span3"):
        a(f"""
        s_mov_b32 {sr(SRD_DBG)}, s88
        s_mov_b32 {sr(SRD_DBG+1)}, s89
        s_mov_b32 {sr(SRD_DBG+2)}, 256
        s_mov_b32 {sr(SRD_DBG+3)}, 0x00020000
        """)
    ex = []
    for u in range(6):
        g = 14 + u
        if u < 3:
            ex.append(f"""s_add_u32 m0, {sr(sW1K)}, {g * 8192}
            s_add_u32 {sr(sT0)}, {sr(sWJ)}, {u * 2048}
            buffer_load_dwordx4 {vr(vDW)}, {sr(SRD_W,4)}, {sr(sT0)} offen lds""")
        else:
            ex.append(f"""s_add_u32 m0, {sr(sW1K)}, {g * 8192}
            s_add_u32 {sr(sT0)}, {sr(sXJ)}, {(u - 3) * 131072}
            buffer_load_dwordx4 {vr(vDX)}, {sr(SRD_X,4)}, {sr(sT0)} offen lds""")
    ex.append(f"""
    s_mov_b32 {sr(SRD_WS)}, s90
    s_mov_b32 {sr(SRD_WS+1)}, s91
    s_mov_b32 {sr(SRD_WS+2)}, {WS_SIZE}
    s_mov_b32 {sr(SRD_WS+3)}, 0x00020000
    """)
    ex.append(f"""
    s_mov_b32 {sr(SRD_DBG)}, s88
    s_mov_b32 {sr(SRD_DBG+1)}, s89
    s_mov_b32 {sr(SRD_DBG+2)}, 256
    s_mov_b32 {sr(SRD_DBG+3)}, 0x00020000
    """)
    ex.append(f"""
    s_mov_b32 {sr(SRD_GW)}, s62
    s_mov_b32 {sr(SRD_GW+1)}, s63
    s_mov_b32 {sr(SRD_GW+2)}, 2048
    s_mov_b32 {sr(SRD_GW+3)}, 0x00020000
    """)
    ex.append(f"""
    s_and_b32 s3, s2, 7
    s_lshr_b32 {sr(sT1)}, s2, 3
    s_lshr_b32 {sr(sT0)}, s3, 1
    s_lshl_b32 {sr(sT0)}, {sr(sT0)}, 2
    s_and_b32 {sr(sTB3)}, {sr(sT1)}, 3
    s_add_u32 {sr(sTB3)}, {sr(sT0)}, {sr(sTB3)}
    s_and_b32 {sr(sT0)}, s3, 1
    s_lshl_b32 {sr(sT0)}, {sr(sT0)}, 3
    s_lshr_b32 {sr(sT1)}, {sr(sT1)}, 2
    s_add_u32 {sr(sCB)}, {sr(sT0)}, {sr(sT1)}
    """)
    ex.append(f"""
    s_add_u32 {sr(sROT)}, {sr(sTB3)}, {sr(sCB)}
    s_and_b32 {sr(sROT)}, {sr(sROT)}, 15
    s_lshl_b32 {sr(sMB2)}, {sr(sTB3)}, 4
    s_add_u32 {sr(sMB2)}, {sr(sMB2)}, {sr(sCB)}
    s_lshl_b32 {sr(sMB2)}, {sr(sMB2)}, 7
    s_add_u32 {sr(sMB2)}, {sr(sMB2)}, {WS_MB2}
    """)
    ex.append(f"""
    s_cmp_eq_u32 {sr(sHH)}, 1
    s_cselect_b32 {sr(SRD_WO)}, s96, s94
    s_cselect_b32 {sr(SRD_WO+1)}, s97, s95
    s_mov_b32 {sr(SRD_WO+2)}, {1024*1024*2}
    s_mov_b32 {sr(SRD_WO+3)}, 0x00020000
    """)
    ex.append(f"""
    s_mov_b32 {sr(SRD_OUT)}, s98
    s_mov_b32 {sr(SRD_OUT+1)}, s99
    s_mov_b32 {sr(SRD_OUT+2)}, {2048*1024*2}
    s_mov_b32 {sr(SRD_OUT+3)}, 0x00020000
    """)
    ex.append(f"""
    s_lshl_b32 {sr(sMB)}, {sr(sHP)}, 3
    s_add_u32 {sr(sMB)}, {sr(sMB)}, {sr(sTB)}
    s_lshl_b32 {sr(sMB)}, {sr(sMB)}, 7
    s_add_u32 {sr(sMB)}, {sr(sMB)}, {WS_MB}
    s_lshl_b32 {sr(sCNT)}, {sr(sHP)}, 3
    """)
    nr = a.label("nr")
    ex.append(f"""
    s_cmp_eq_u32 {sr(sW)}, 0
    s_cselect_b32 {sr(sCHKJ)}, 5, 0xffff
    s_cselect_b32 {sr(sARRJ)}, 11, 0xffff
    s_cbranch_scc0 {nr}
    v_lshlrev_b32 v12, 2, v0
    s_sub_u32 {sr(sT0)}, {sr(sMB2)}, 128
    v_mov_b32 v13, {sr(sMB)}
    v_mov_b32 v14, {sr(sT0)}
    v_cmp_gt_u32 vcc, 32, v0
    s_nop 1
    v_cndmask_b32 v13, v14, v13, vcc
    v_add_u32 v12, v12, v13
    v_mov_b32 v13, 0
    buffer_store_dword v13, v12, {sr(SRD_WS,4)}, 0 offen sc1
    {nr}:
    """)
    ex.append(f"""
    s_and_b32 {sr(sT0)}, {sr(sHP)}, 15
    s_lshl_b32 {sr(sT0)}, {sr(sT0)}, 3
    s_add_u32 {sr(sT0)}, {sr(sT0)}, {sr(sTB)}
    s_lshl_b32 {sr(sT0)}, {sr(sT0)}, 3
    s_add_u32 {sr(sT0)}, {sr(sT0)}, {sr(sW)}
    s_lshl_b32 {sr(sT0)}, {sr(sT0)}, 10
    s_add_u32 {sr(sPF)}, {sr(sT0)}, {3 * 64 * 6144}
    """)
    ex.append(f"""
    s_lshl_b32 {sr(sT0)}, {sr(sTB)}, 8
    s_lshl_b32 {sr(sT1)}, {sr(sHP)}, 3
    s_add_u32 {sr(sT0)}, {sr(sT0)}, {sr(sT1)}
    s_add_u32 {sr(sT0)}, {sr(sT0)}, {sr(sW)}
    s_lshl_b32 {sr(sGOFF)}, {sr(sT0)}, 2
    s_lshl_b32 {sr(sT1)}, {sr(sT0)}, 11
    v_lshlrev_b32 v12, 5, v0
    buffer_load_dwordx4 v[16:19], v12, {sr(SRD_X,4)}, {sr(sT1)} offen
    buffer_load_dwordx4 v[20:23], v12, {sr(SRD_X,4)}, {sr(sT1)} offen offset:16
    """)
    ex.append(f"""
    v_lshlrev_b32 v12, 5, v0
    buffer_load_dwordx4 v[24:27], v12, {sr(SRD_GW,4)}, 0 offen
    buffer_load_dwordx4 v[28:31], v12, {sr(SRD_GW,4)}, 0 offen offset:16
    """)
    if opt.get("xpf", 1):
        ex.append(f"""
        s_lshl_b32 {sr(sT0)}, s2, 3
        s_add_u32 {sr(sT0)}, {sr(sT0)}, {sr(sW)}
        s_lshl_b32 {sr(sT0)}, {sr(sT0)}, 11
        buffer_load_dwordx4 v[40:43], {vr(vL16)}, {sr(SRD_X,4)}, {sr(sT0)} offen
        buffer_load_dwordx4 v[44:47], {vr(vL16)}, {sr(SRD_X,4)}, {sr(sT0)} offen offset:1024
        """)
    if opt.get("touch", 1):
        ex.append(f"""
        s_lshl_b32 {sr(sT0)}, {sr(sHP)}, 19
        s_lshl_b32 {sr(sT1)}, {sr(sTB)}, 20
        s_add_u32 {sr(sT1)}, {sr(sT1)}, {WS_O}
        buffer_load_dword v104, off, {sr(SRD_WS,4)}, {sr(sT0)}
        buffer_load_dword v105, off, {sr(SRD_WS,4)}, {sr(sT1)}
        """)
        ex.append(f"""
        s_lshl_b32 {sr(sT0)}, {sr(sTB3)}, 19
        s_add_u32 {sr(sT0)}, {sr(sT0)}, {WS_O}
        s_lshl_b32 {sr(sT1)}, {sr(sTB3)}, 18
        buffer_load_dword v106, off, {sr(SRD_WS,4)}, {sr(sT0)}
        buffer_load_dword v108, off, {sr(SRD_OUT,4)}, {sr(sT1)}
        """)
        ex.append(f"""
        s_mov_b32 {sr(sT0)}, {1024*1024*2 - 4}
        buffer_load_dword v107, off, {sr(SRD_WO,4)}, 0
        buffer_load_dword v109, off, {sr(SRD_WO,4)}, {sr(sT0)}
        """)
    return ex

def dma_unit_static(a, g):
    j, u = divmod(g, 7)
    a(f"s_add_u32 m0, {sr(sW1K)}, {(g % 20) * 8192}")
    if u < 3:
        a(f"s_add_u32 {sr(sT0)}, {sr(sWJ)}, {j * 64 * 6144 + u * 2048}")
        a(f"buffer_load_dwordx4 {vr(vDW)}, {sr(SRD_W,4)}, {sr(sT0)} offen lds")
    else:
        a(f"s_add_u32 {sr(sT0)}, {sr(sXJ)}, {j * 128 + (u - 3) * 131072}")
        a(f"buffer_load_dwordx4 {vr(vDX)}, {sr(SRD_X,4)}, {sr(sT0)} offen lds")

def gate_instrs():
    c = ["v_mov_b32 v12, 0"]
    for i in range(8):
        x, w = 16 + i, 24 + i
        c += [f"v_lshlrev_b32 v13, 16, v{x}", f"v_and_b32 v14, 0xffff0000, v{x}", f"v_lshlrev_b32 v32, 16, v{w}",
              f"v_and_b32 v1, 0xffff0000, v{w}", "v_mul_f32 v13, v13, v32", "v_mul_f32 v14, v14, v1",
              "v_cvt_pk_bf16_f32 v13, v13, v14", "v_lshlrev_b32 v14, 16, v13", "v_and_b32 v13, 0xffff0000, v13",
              "v_add_f32 v12, v12, v14", "v_add_f32 v12, v12, v13"]
    for sh in (1, 2, 4, 8):
        c += [f"s_nop 1\nv_add_f32_dpp v12, v12, v12 row_shr:{sh} row_mask:0xf bank_mask:0xf bound_ctrl:0"]
    c += ["s_nop 1\nv_add_f32_dpp v12, v12, v12 row_bcast:15 row_mask:0xa bank_mask:0xf"]
    c += ["s_nop 1\nv_add_f32_dpp v12, v12, v12 row_bcast:31 row_mask:0xc bank_mask:0xf"]
    c += ["s_nop 1\nv_cvt_pk_bf16_f32 v12, v12, v12", "v_lshlrev_b32 v12, 16, v12", f"v_mul_f32 v12, {hex(f2u(-LOG2E))}, v12",
          "v_exp_f32 v12, v12\ns_nop 0\nv_add_f32 v12, 1.0, v12", "v_rcp_f32 v12, v12\ns_nop 0\nv_cvt_pk_bf16_f32 v12, v12, v12",
          "v_lshlrev_b32 v12, 16, v12", f"v_mov_b32 v13, {WS_G}"]
    st = [f"""s_mov_b32 exec_lo, 0
    s_mov_b32 exec_hi, 0x80000000
    buffer_store_dword v12, v13, {sr(SRD_WS,4)}, {sr(sGOFF)} offen sc1
    s_mov_b64 exec, -1"""]
    return c, st

def frag(set_, name):
    off = {"X0": 0, "X1": 4, "Wq": 8, "Wk": 12, "Wv": 16}[name]
    return FR[set_] + off

def gemm_reads(ks, set_):
    r = []
    r.append(f"ds_read_b128 {vr(frag(set_,'X0'),4)}, {vr(vXA)}")
    for u, nm in enumerate(("Wq", "Wk", "Wv")):
        b = frag(set_, nm)
        r.append(f"ds_read_b64_tr_b16 {vr(b,2)}, {vr(vW0+u)} offset:{ks*2048}")
        r.append(f"ds_read_b64_tr_b16 {vr(b+2,2)}, {vr(vW0+u)} offset:{ks*2048+512}")
        if u == 0:
            r.append(f"ds_read_b128 {vr(frag(set_,'X1'),4)}, {vr(vXA)} offset:4096")
    return r

def gemm_mfmas(set_, first=False):
    m = []
    X0, X1 = frag(set_, "X0"), frag(set_, "X1")
    Wq, Wk, Wv = frag(set_, "Wq"), frag(set_, "Wk"), frag(set_, "Wv")
    def mf(acc, A, B): return f"v_mfma_f32_32x32x16_bf16 {vr(acc,16)}, {vr(A,4)}, {vr(B,4)}, {'0' if first else vr(acc,16)}"
    m.append(mf(ACC + 0, Wq, X0))
    m.append(mf(ACC + 32, Wk, X0))
    m.append(mf(ACC + 64, X0, Wv))
    m.append(mf(ACC + 16, Wq, X1))
    m.append(mf(ACC + 48, Wk, X1))
    m.append(mf(ACC + 80, X1, Wv))
    return m

def wrap_list(dst, src, const, tmp):
    return [f"s_add_u32 {sr(tmp)}, {sr(src)}, {const}", f"s_sub_u32 {dst}, {sr(tmp)}, {RING}", f"s_cselect_b32 {dst}, {sr(tmp)}, {dst}"]

def read_bases_list():
    r = [f"v_add_u32 {vr(vW0)}, {sr(sRING)}, {vr(vWP)}"]
    for u in (1, 2):
        r += wrap_list(sr(sT1), sRING, u * 8192, sT0)
        r.append(f"v_add_u32 {vr(vW0+u)}, {sr(sT1)}, {vr(vWP)}")
    r += [f"s_add_u32 {sr(sT0)}, {sr(sRING)}, {sr(sXQ)}", f"s_sub_u32 {sr(sT1)}, {sr(sT0)}, {RING}",
          f"s_cselect_b32 {sr(sT1)}, {sr(sT0)}, {sr(sT1)}", f"v_add_u32 {vr(vXB)}, {sr(sT1)}, {vr(vXP)}",
          f"v_mov_b32 {vr(vXA)}, {vr(vXB)}"]
    return r

def dma_group(i):
    if OPT.get("g_nodma"): return []
    s = [f"s_add_u32 {sr(sT2)}, {sr(sRINGW)}, {i * 8192}", f"s_sub_u32 m0, {sr(sT2)}, {RING}", f"s_cselect_b32 m0, {sr(sT2)}, m0"]
    if i == 0:
        s.append(f"s_add_u32 {sr(sT3)}, {sr(sXJ)}, {3 * 131072 - 128}")
        s.append(f"buffer_load_dwordx4 {vr(vDX)}, {sr(SRD_X,4)}, {sr(sT3)} offen lds")
    elif i <= 3:
        s.append(f"s_add_u32 {sr(sT3)}, {sr(sWJ)}, {(i - 1) * 2048}")
        s.append(f"buffer_load_dwordx4 {vr(vDW)}, {sr(SRD_W,4)}, {sr(sT3)} offen lds")
    else:
        s.append(f"s_add_u32 {sr(sT3)}, {sr(sXJ)}, {(i - 4) * 131072}")
        s.append(f"buffer_load_dwordx4 {vr(vDX)}, {sr(SRD_X,4)}, {sr(sT3)} offen lds")
    return s

def w_readahead():
    if not OPT.get("wpf", 1): return []
    return [f"buffer_load_dwordx4 v[36:39], {vr(vL16)}, {sr(SRD_W,4)}, {sr(sPF)} offen", f"s_add_u32 {sr(sPF)}, {sr(sPF)}, {1 << 20}"]

def kstep(a, cur, next_ks, gaps_extra, first=False):
    m = gemm_mfmas(cur, first)
    r = gemm_reads(next_ks, cur ^ 1) if next_ks is not None else []
    gaps = [[] for _ in range(6)]
    for i, x in enumerate(r):
        gaps[min(i // 3, 5)].append(x)
    for g in range(6):
        gaps[g] += gaps_extra.get(g, [])
    for i in range(6):
        a(m[i])
        for x in gaps[i]:
            a(x)

def gemm_stage(a, pending, new_batch, vm_wait, first=False, last=False, valu=None, after_bar=None):
    prio = OPT.get("gprio", 1)
    sp = lambda n: [f"s_setprio {n}"] if prio else []
    valu = list(valu or [])
    per = (len(valu) + 2) // 3
    for ks in range(3):
        ex = {}
        mine = [i for i in pending if (i - 2) // 2 == ks]
        if mine:
            ex[2] = dma_group(mine[0])
        if len(mine) > 1:
            ex[4] = dma_group(mine[1])
        chunk = valu[ks * per:(ks + 1) * per]
        n3 = (len(chunk) + 2) // 3
        for k, g in enumerate((1, 3, 5)):
            ex[g] = ex.get(g, []) + chunk[k * n3:(k + 1) * n3]
        ex[0] = sp(2 - ks)
        if ks < 2:
            ex[5] = ex.get(5, []) + [f"v_xor_b32 {vr(vXA)}, {(ks + 2) << 5}, {vr(vXB)}"]
        else:
            upd = [f"s_add_u32 {sr(sRINGW)}, {sr(sRING)}, {sr(sW1K)}", f"s_add_u32 {sr(sXJ)}, {sr(sXJ)}, 128",
                   f"s_add_u32 {sr(sWJ)}, {sr(sWJ)}, {64 * 6144}"] + wrap_list(sr(sRING), sRING, 7 * 8192, sT0)
            ex[3] = ex.get(3, []) + upd
            if not last:
                ex[4] = ex.get(4, []) + read_bases_list()
        a("s_waitcnt lgkmcnt(0)")
        kstep(a, ks & 1, ks + 1, ex, first=(first and ks == 0))
    if OPT.get("stampsg"):
        a("s_waitcnt lgkmcnt(0)")
        gstamp(a, 204)
    if vm_wait is not None:
        a(f"s_waitcnt vmcnt({vm_wait}) lgkmcnt(0)")
    else:
        a("s_waitcnt lgkmcnt(0)")
    if OPT.get("stampsg"): gstamp(a, 205)
    if not OPT.get("g_nobar"): a("s_barrier")
    if OPT.get("stampsg"):
        gstamp(a, 206)
        a("s_add_u32 s87, s87, 1")
    ex = {0: sp(3)}
    if len(new_batch) > 0: ex[2] = dma_group(new_batch[0])
    if len(new_batch) > 1: ex[4] = dma_group(new_batch[1]) + w_readahead()
    if not last:
        ex[5] = [f"v_xor_b32 {vr(vXA)}, {1 << 5}, {vr(vXB)}"]
    if after_bar:
        ex[5] = ex.get(5, []) + after_bar
    kstep(a, 1, None if last else 0, ex)

def gemm(a, opt, extras):
    if OPT.get("stampsg"): a("s_mov_b32 s87, 0")
    a(f"s_add_u32 {sr(sXJ)}, {sr(sXJ)}, {2 * 128}")
    a(f"s_add_u32 {sr(sWJ)}, {sr(sWJ)}, {2 * 64 * 6144}")
    a(f"s_mov_b32 {sr(sRING)}, 0")
    for x in read_bases_list(): a(x)
    if opt.get("stamps_start"): timestamp(a, 4, opt)
    if opt.get("span2") or opt.get("span3"): a("s_memrealtime s[82:83]")
    nw = (6 if opt.get("touch", 1) else 0) + (2 if opt.get("xpf", 1) else 0)
    a(f"s_waitcnt vmcnt(7)")
    if opt.get("stamps_start"): timestamp(a, 5, opt)
    a("s_barrier")
    if opt.get("dbg_span"): dbg_span(a, "g0")
    if opt.get("span3"):
        sk = a.label("sk3")
        a(f"s_memrealtime s[76:77]")
        a(f"s_cmp_eq_u32 s2, {opt['span3']}")
        a(f"s_cbranch_scc0 {sk}")
        a(f"s_cmp_eq_u32 {sr(sW)}, 0")
        a(f"s_cbranch_scc0 {sk}")
        a("s_waitcnt lgkmcnt(0)")
        for reg, off in ((84, 4), (78, 12), (80, 20), (82, 28), (76, 36)):
            a(f"v_mov_b32 v12, s{reg}")
            a(f"s_mov_b32 s93, {off}")
            a("s_mov_b64 exec, 1")
            a(f"buffer_store_dword v12, off, {sr(SRD_DBG,4)}, s93 sc1")
            a("s_mov_b64 exec, -1")
        a(f"{sk}:")
    if opt.get("span2"):
        sk = a.label("sk2")
        a(f"s_memrealtime s[76:77]")
        a(f"s_cmp_eq_u32 {sr(sW)}, 0")
        a(f"s_cbranch_scc0 {sk}")
        a("s_waitcnt lgkmcnt(0)")
        a("s_not_b32 s75, s84")
        for reg, off in ((75, 4), (84, 60), (78, 20), (80, 36), (82, 52), (76, 44)):
            a(f"v_mov_b32 v12, s{reg}")
            a(f"s_mov_b32 s93, {off}")
            a("s_mov_b64 exec, 1")
            a(f"buffer_atomic_umax v12, off, {sr(SRD_DBG,4)}, s93 sc1")
            a("s_mov_b64 exec, -1")
        a(f"{sk}:")
    if opt.get("stamps_start"): timestamp(a, 6, opt)
    for x in gemm_reads(0, 0):
        a(x)
    a(f"v_xor_b32 {vr(vXA)}, {1 << 5}, {vr(vXB)}")
    gemm_stage(a, [], [0, 1], 10 + nw, first=True, valu=extras)
    a(f"s_mov_b32 {sr(sJ)}, 12")
    lab = a.label("gemm")
    a(".p2align 6")
    a(f"{lab}:")
    npf = 1 if opt.get("wpf", 1) else 0
    gemm_stage(a, [2, 3, 4, 5, 6], [0, 1], 6 + npf)
    nc = a.label("nc"); nd = a.label("nd")
    a(f"s_cmp_eq_u32 {sr(sJ)}, {sr(sARRJ)}")
    a(f"s_cbranch_scc0 {nd}")
    a(f"""
    v_mov_b32 v12, 1
    s_mov_b64 exec, 1
    buffer_atomic_add v12, off, {sr(SRD_DBG,4)}, {sr(sCNT)} sc1
    s_mov_b64 exec, -1
    s_nop 3
    """)
    a(f"{nd}:")
    a(f"s_cmp_eq_u32 {sr(sJ)}, {sr(sCHKJ)}")
    a(f"s_cbranch_scc0 {nc}")
    a(f"v_lshlrev_b32 v12, 2, v0")
    a(f"buffer_load_dword {vr(vCHK)}, v12, {sr(SRD_DBG,4)}, 0 offen sc1")
    a(f"{nc}:")
    a(f"s_sub_u32 {sr(sJ)}, {sr(sJ)}, 1")
    a(f"s_cmp_lg_u32 {sr(sJ)}, 0")
    a(f"s_cbranch_scc1 {lab}")
    gc, gs = gate_instrs()
    gemm_stage(a, [2, 3, 4, 5, 6], [0], 6 + npf)
    gemm_stage(a, [], [], 0, valu=gc, after_bar=gs + ["s_nop 3"])
    gemm_stage(a, [], [], None, last=True)
    a("s_setprio 0")
    a("s_nop 15")

def gemm_epilogue(a, opt):
    for tile in (2, 3, 4, 5):
        b = ACC + 16 * tile
        for i in range(8):
            a(f"v_cvt_pk_bf16_f32 v{b+i}, v{b+2*i}, v{b+2*i+1}")
    a(f"""
    s_lshl_b32 {sr(sT1)}, {sr(sHP)}, 1
    s_add_u32 {sr(sT1)}, {sr(sT1)}, {sr(sHH)}
    s_lshl_b32 {sr(sKVSRC)}, {sr(sT1)}, 18
    s_lshl_b32 {sr(sT1)}, {sr(sTB)}, 15
    s_lshl_b32 {sr(sT2)}, {sr(sTQ)}, 13
    s_add_u32 {sr(sT1)}, {sr(sT1)}, {sr(sT2)}
    s_add_u32 {sr(sKVO)}, {sr(sT1)}, {sr(sKVSRC)}
    """)
    if opt.get("half", 1):
        late = a.label("late")
        a(f"s_cmp_lt_u32 {sr(sTQ)}, 2")
        a(f"s_cbranch_scc0 {late}")
        kv_stores(a)
        a(f"{late}:")
    else:
        kv_stores(a)
    a(f"s_mov_b32 {sr(sT2)}, {hex(f2u(QSCALE))}")
    a(f"s_mov_b32 {sr(sT3)}, {hex(f2u(QSCALE))}")
    for tt in range(2):
        b = ACC + 16 * tt
        for i in range(8):
            a(f"v_pk_mul_f32 {vr(b+2*i,2)}, {vr(b+2*i,2)}, {sr(sT2,2)}")
        for i in range(8):
            a(f"v_cvt_pk_bf16_f32 v{QF+8*tt+i}, v{b+2*i}, v{b+2*i+1}")
    kb = ACC + 32
    a("s_nop 1")
    for x in range(2):
        S, Q = SS + 16 * x, QF + 8 * x
        a(f"v_mfma_f32_32x32x16_bf16 {vr(S,16)}, {vr(kb,4)}, {vr(Q,4)}, 0")
        a(f"v_mfma_f32_32x32x16_bf16 {vr(S,16)}, {vr(kb+4,4)}, {vr(Q+4,4)}, {vr(S,16)}")
    a(f"""
    s_lshr_b32 {sr(sT1)}, {sr(sTQ)}, 1
    s_lshl_b32 {sr(sT1)}, {sr(sT1)}, 15
    s_lshl_b32 {sr(sT2)}, {sr(sHH)}, 14
    s_add_u32 {sr(sT1)}, {sr(sT1)}, {sr(sT2)}
    s_and_b32 {sr(sT2)}, {sr(sTQ)}, 1
    s_lshl_b32 {sr(sT2)}, {sr(sT2)}, 13
    s_add_u32 {sr(sT1)}, {sr(sT1)}, {sr(sT2)}
    v_add_u32 v12, {sr(sT1)}, {vr(vL16)}
    """)
    for tt in range(2):
        kb, vb = ACC + 32 + 16 * tt, ACC + 64 + 16 * tt
        a(f"ds_write_b128 v12, {vr(kb,4)} offset:{tt*4096}")
        a(f"ds_write_b128 v12, {vr(kb+4,4)} offset:{tt*4096+1024}")
        a(f"ds_write_b128 v12, {vr(vb,4)} offset:{tt*4096+2048}")
        a(f"ds_write_b128 v12, {vr(vb+4,4)} offset:{tt*4096+3072}")
    if opt.get("dump_q"):
        a(f"""
        s_lshl_b32 {sr(sT1)}, s2, 3
        s_add_u32 {sr(sT1)}, {sr(sT1)}, {sr(sW)}
        s_lshl_b32 {sr(sT1)}, {sr(sT1)}, 12
        s_add_u32 {sr(sT1)}, {sr(sT1)}, {WS_DBG}
        """)
        for i in range(4):
            a(f"buffer_store_dwordx4 {vr(QF+4*i,4)}, {vr(vL16)}, {sr(SRD_WS,4)}, {sr(sT1)} offen offset:{i*1024}")

def smf(L):
    return f"v_smfmac_f32_16x16x64_bf16 {vr(L,4)}, {vr(ONES,4)}, {vr(PP,8)}, {vr(IDX)}"

def attn_unit(a, t, x, hooks, skip_prev=False, c_zero=False):
    S = SS + 16 * x
    Sn = SS + 16 * (x ^ 1)
    xn = xp = x ^ 1
    Qn = QF + 8 * xn
    P0, P1 = PP, PP + 4
    def M(d, A, B, C): return f"v_mfma_f32_32x32x16_bf16 {vr(d,16)}, {vr(A,4)}, {vr(B,4)}, {C}"
    e = lambda i: f"v_exp_f32 v{S+i}, v{S+i}"
    c = lambda i: f"v_cvt_pk_bf16_f32 v{PP+i}, v{S+2*i}, v{S+2*i+1}"
    mf = [M(Sn, KF, Qn, vr(NM + 16 * xn, 16)),
          None if skip_prev else M(OA + 16 * xp, VF + 4, P1, vr(OA + 16 * xp, 16)),
          None if skip_prev else smf(LA + 4 * xp),
          M(Sn, KF + 4, Qn + 4, vr(Sn, 16)),
          M(OA + 16 * x, VF, P0, "0" if c_zero else vr(OA + 16 * x, 16))]
    va = [[e(0), e(1), e(2)], [e(3), e(4), e(5)], [e(6), e(7), c(0), c(1), c(2), c(3)],
          [e(8), e(9), e(10)], [e(11), e(12), e(13), e(14), e(15), c(4), c(5), c(6), c(7)]]
    for g in range(5):
        if mf[g]: a(mf[g])
        for h in hooks.get(g, []):
            a(h)
        for v in va[g]:
            a(v)

def kv_addr(tile, f):
    if tile < 4:
        return vCUR, tile * 4096 + f * 1024
    return vNXT, f * 1024

def rd(dst, tile, f):
    b, o = kv_addr(tile, f)
    return f"ds_read_b128 {vr(dst,4)}, {vr(b)} offset:{o}"

def kv_dma(p, so):
    return f"buffer_load_dwordx4 {vr(vDMA)}, {sr(SRD_WS,4)}, {sr(so)} offen offset:{p*1024} sc1 lds"

def sample_mailbox(a, off_s, lanes):
    sk = a.label("smp")
    a(f"s_cmp_eq_u32 {sr(sW)}, 0")
    a(f"s_cbranch_scc0 {sk}")
    a(f"v_lshlrev_b32 {vr(vPA)}, 2, v0")
    a(f"s_mov_b32 exec_lo, {hex(lanes)}")
    a("s_mov_b32 exec_hi, 0")
    a(f"buffer_load_dword {vr(vPV)}, {vr(vPA)}, {sr(SRD_WS,4)}, {sr(off_s)} offen sc1")
    a("s_mov_b64 exec, -1")
    a("s_nop 3")
    a(f"{sk}:")

def poll_mailbox(a, want_all):
    poll, done = a.label("poll"), a.label("pdone")
    a(f"s_mov_b32 {sr(sT1)}, 400000")
    a(f"s_add_u32 {sr(sT2)}, {sr(sTB)}, 1")
    a(f"s_and_b32 {sr(sT2)}, {sr(sT2)}, 7")
    a(f"s_lshl_b32 {sr(sT2)}, 1, {sr(sT2)}")
    if want_all:
        a(f"s_mov_b32 {sr(sT2)}, {0xffff if OPT.get('half', 1) else 0xff}")
    a("s_mov_b64 exec, 0xffff")
    a(f"{poll}:")
    a("s_waitcnt vmcnt(0)")
    a(f"v_cmp_eq_u32 vcc, 1, {vr(vPV)}")
    a("s_nop 3")
    a(f"s_and_b32 {sr(sT3)}, vcc_lo, {sr(sT2)}")
    a(f"s_cmp_eq_u32 {sr(sT3)}, {sr(sT2)}")
    a(f"s_cbranch_scc1 {done}")
    a(f"s_sub_u32 {sr(sT1)}, {sr(sT1)}, 1")
    a(f"s_cbranch_scc1 {done}")
    a(f"buffer_load_dword {vr(vPV)}, {vr(vPA)}, {sr(SRD_WS,4)}, {sr(sMB)} offen sc1")
    a(f"s_branch {poll}")
    a(f"{done}:")
    a("s_mov_b64 exec, -1")

def publish(a):
    spin, ok = a.label("rdy"), a.label("rdyok")
    a(f"s_mov_b32 {sr(sT1)}, 400000")
    a(f"s_mov_b32 {sr(sT2)}, 0x55555555")
    a(f"v_lshlrev_b32 v12, 2, v0")
    a(f"{spin}:")
    a(f"v_cmp_eq_u32 vcc, 8, {vr(vCHK)}")
    a("s_nop 3")
    a(f"s_and_b32 {sr(sT0)}, vcc_lo, {sr(sT2)}")
    a(f"s_and_b32 {sr(sT3)}, vcc_hi, {sr(sT2)}")
    a(f"s_and_b32 {sr(sT0)}, {sr(sT0)}, {sr(sT3)}")
    a(f"s_cmp_eq_u32 {sr(sT0)}, {sr(sT2)}")
    a(f"s_cbranch_scc1 {ok}")
    a(f"s_sub_u32 {sr(sT1)}, {sr(sT1)}, 1")
    a(f"s_cbranch_scc1 {ok}")
    a(f"buffer_load_dword {vr(vCHK)}, v12, {sr(SRD_DBG,4)}, 0 offen sc1")
    a("s_waitcnt vmcnt(0)")
    a(f"s_branch {spin}")
    a(f"{ok}:")
    a(f"""
    s_lshl_b32 {sr(sT0)}, {sr(sHP)}, 10
    s_lshl_b32 {sr(sT1)}, {sr(sTB)}, 2
    s_add_u32 {sr(sT0)}, {sr(sT0)}, {sr(sT1)}
    s_add_u32 {sr(sT0)}, {sr(sT0)}, {WS_MB}
    v_lshlrev_b32 v12, 7, v0
    v_mov_b32 v13, 1
    s_mov_b64 exec, 0xff
    buffer_store_dword v13, v12, {sr(SRD_WS,4)}, {sr(sT0)} offen sc1
    s_mov_b64 exec, -1
    """)

def publish_b(a):
    a(f"""
    s_lshl_b32 {sr(sT0)}, {sr(sHP)}, 10
    s_lshl_b32 {sr(sT1)}, {sr(sTB)}, 2
    s_add_u32 {sr(sT0)}, {sr(sT0)}, {sr(sT1)}
    s_add_u32 {sr(sT0)}, {sr(sT0)}, {WS_MB + 32}
    v_lshlrev_b32 v12, 7, v0
    v_mov_b32 v13, 1
    s_mov_b64 exec, 0xff
    buffer_store_dword v13, v12, {sr(SRD_WS,4)}, {sr(sT0)} offen sc1
    s_mov_b64 exec, -1
    """)

def kv_stores(a):
    a(f"s_add_u32 {sr(sT2)}, {sr(sKVO)}, 4096")
    for tt in range(2):
        so = sKVO if tt == 0 else sT2
        kb, vb = ACC + 32 + 16 * tt, ACC + 64 + 16 * tt
        a(f"buffer_store_dwordx4 {vr(kb,4)}, {vr(vL16)}, {sr(SRD_WS,4)}, {sr(so)} offen sc1")
        a(f"buffer_store_dwordx4 {vr(kb+4,4)}, {vr(vL16)}, {sr(SRD_WS,4)}, {sr(so)} offen offset:1024 sc1")
        a(f"buffer_store_dwordx4 {vr(vb,4)}, {vr(vL16)}, {sr(SRD_WS,4)}, {sr(so)} offen offset:2048 sc1")
        a(f"buffer_store_dwordx4 {vr(vb+4,4)}, {vr(vL16)}, {sr(SRD_WS,4)}, {sr(so)} offen offset:3072 sc1")

def wo_piece(i, half):
    return [f"s_add_u32 {sr(sT0)}, {sr(sROT)}, {i}", f"s_and_b32 {sr(sT0)}, {sr(sT0)}, 15", f"s_lshl_b32 {sr(sT0)}, {sr(sT0)}, 17",
            f"s_add_u32 {sr(sT0)}, {sr(sT0)}, {sr(sWOFF)}"] + ([f"s_add_u32 {sr(sT0)}, {sr(sT0)}, 16384"] if half else []) + \
           [f"s_add_u32 m0, {sr(sLDSW3)}, {(i % NSLOT3) * 16384 + half * 1024}", "s_nop 0",
            f"buffer_load_dwordx4 {vr(vDW3)}, {sr(SRD_WO,4)}, {sr(sT0)} offen lds"]

def attn_stage(a, opt, kind, s_=None):
    prio = opt.get("prio", 1)
    def sp(n): return [f"s_setprio {n}"] if prio else []
    for t in range(4):
        h0 = {0: [rd(KF, t + 1, 0)], 1: [rd(VF + 4, t, 3)], 2: ["s_waitcnt lgkmcnt(2)"],
              3: [rd(KF + 4, t + 1, 1)], 4: ["s_waitcnt lgkmcnt(2)"]}
        h1 = {0: ["s_waitcnt lgkmcnt(1)"], 1: [], 2: ["s_waitcnt lgkmcnt(0)"], 3: [], 4: [rd(VF, t + 1, 2)]}
        if kind == 1 and t in (0, 2):
            sample_mailbox(a, sMB, 0xffff)
        if t == 0:
            h0[0] += sp(2)
            h0[4] += [f"s_mov_b32 {sr(sNXT)}, {sr(sSLOT)}"]
            h1[1] = [f"s_add_u32 {sr(sSRC)}, {sr(sSRC)}, 16384"]
            h1[3] = [f"s_and_b32 {sr(sSRC)}, {sr(sSRC)}, 0x3ffff"]
        if t == 1:
            h0[0] += sp(1)
            h1[1] = [f"s_add_u32 {sr(sSLOT)}, {sr(sSLOT)}, 32768"]
            h1[3] = [f"s_and_b32 {sr(sSLOT)}, {sr(sSLOT)}, 0x1ffff"]
            if kind == 0:
                h1[4] += ["s_waitcnt vmcnt(0)", "s_barrier"]
            if kind == 3 and s_ == 13:
                h0[2] += wo_piece(8, 0)
                h0[4] += wo_piece(8, 1)
                h1[0] += wo_piece(9, 0)
                h1[2] += wo_piece(9, 1)
            if kind == 1:
                go = a.label("go")
                lanestamp(a, 203, opt, 0)
                half = opt.get("half", 1)
                if half: a("s_waitcnt vmcnt(0)")
                a(f"s_cmp_eq_u32 {sr(sW)}, 0")
                a(f"s_cbranch_scc0 {go}")
                poll_mailbox(a, False)
                a(f"{go}:")
                lanestamp(a, 203, opt, 1)
                a("s_barrier")
                lanestamp(a, 203, opt, 2)
                for st in ((2,) if half else (2, 3)):
                    a(f"""
                    s_lshl_b32 {sr(sT0)}, {sr(sTB)}, 1
                    s_add_u32 {sr(sT0)}, {sr(sT0)}, {st}
                    s_and_b32 {sr(sT0)}, {sr(sT0)}, 15
                    s_lshl_b32 {sr(sOFFS)}, {sr(sT0)}, 14
                    s_add_u32 m0, {sr(sLDSW)}, {st * 32768}
                    s_nop 0
                    """)
                    for p in range(4):
                        a(kv_dma(p, sOFFS))
                if half:
                    nb = a.label("nb")
                    a(f"s_cmp_eq_u32 {sr(sW)}, 0")
                    a(f"s_cbranch_scc0 {nb}")
                    publish_b(a)
                    a(f"{nb}:")
        if t == 2:
            h0[0] += sp(0)
            h1[1] = [f"s_add_u32 m0, {sr(sSLOT)}, {sr(sLDSW)}"]
            h1[3] = [f"s_add_u32 {sr(sJ)}, {sr(sJ)}, 1"]
            if kind == 0:
                h1[4] += ["s_barrier"] + sp(3)
                if opt.get("half", 1):
                    ns = a.label("ns")
                    a(f"s_cmp_ge_u32 {sr(sTQ)}, 2")
                    a(f"s_cbranch_scc0 {ns}")
                    kv_stores(a)
                    a(f"{ns}:")
                np_ = a.label("np")
                a(f"s_cmp_eq_u32 {sr(sW)}, 0")
                a(f"s_cbranch_scc0 {np_}")
                publish(a)
                a(f"{np_}:")
            elif kind == 3 and s_ == 15:
                h1[4] += ["s_barrier"] + sp(3)
            elif kind == 3:
                h1[4] += ["s_waitcnt vmcnt(8)", "s_barrier"] + sp(3)
            elif kind != 1:
                h1[4] += ["s_waitcnt vmcnt(4)", "s_barrier"] + sp(3)
        if t == 3:
            if kind == 3:
                q = s_ - 13
                h0[2] += wo_piece(2 * q, 0)
                h0[4] += wo_piece(2 * q, 1)
                h1[1] = wo_piece(2 * q + 1, 0)
                h1[3] = wo_piece(2 * q + 1, 1)
            elif kind != 0:
                h0[2] += [kv_dma(0, sSRC)]
                h0[4] += [kv_dma(1, sSRC)]
                h1[1] = [kv_dma(2, sSRC)]
                h1[3] = [kv_dma(3, sSRC)]
            if kind == 1:
                go = a.label("go")
                a(f"s_cmp_eq_u32 {sr(sW)}, 0")
                a(f"s_cbranch_scc0 {go}")
                poll_mailbox(a, True)
                a(f"{go}:")
                if opt.get("half", 1):
                    a("s_waitcnt vmcnt(0)")
                    a("s_barrier")
                    a(f"""
                    s_lshl_b32 {sr(sT0)}, {sr(sTB)}, 1
                    s_add_u32 {sr(sT0)}, {sr(sT0)}, 3
                    s_and_b32 {sr(sT0)}, {sr(sT0)}, 15
                    s_lshl_b32 {sr(sOFFS)}, {sr(sT0)}, 14
                    s_add_u32 m0, {sr(sLDSW)}, {3 * 32768}
                    s_nop 0
                    """)
                    for p in range(4):
                        a(kv_dma(p, sOFFS))
                    a(f"s_add_u32 m0, {sr(sSLOT)}, {sr(sLDSW)}")
                else:
                    a("s_waitcnt vmcnt(4)")
                    a("s_barrier")
                for x in sp(3): a(x)
        first = kind == 0 and t == 0
        attn_unit(a, t, 0, h0, skip_prev=first, c_zero=first)
        attn_unit(a, t, 1, h1, c_zero=first)
    a(f"v_mov_b32 {vr(vCUR)}, {vr(vNXT)}")
    a(f"v_add_u32 {vr(vNXT)}, {sr(sNXT)}, {vr(vKVB)}")

def attention(a, opt):
    a(f"""
    v_bfe_u32 v12, v0, 2, 1
    v_and_b32 v13, 3, v0
    v_mov_b32 v14, 0x3f803f80
    v_cmp_gt_u32 vcc, 2, v13
    s_nop 1
    v_cndmask_b32 v14, 0, v14, vcc
    v_cmp_eq_u32 vcc, 0, v12
    s_nop 1
    v_cndmask_b32 v{ONES}, 0, v14, vcc
    v_cndmask_b32 v{ONES+2}, v14, 0, vcc
    v_mov_b32 v{ONES+1}, v{ONES}
    v_mov_b32 v{ONES+3}, v{ONES+2}
    v_mov_b32 v14, 0x4444
    v_mov_b32 v12, 0xeeee
    v_cmp_eq_u32 vcc, 1, v13
    s_nop 1
    v_cndmask_b32 v{IDX}, v14, v12, vcc
    s_lshl_b32 {sr(sT0)}, {sr(sHH)}, 14
    v_add_u32 {vr(vKVB)}, {sr(sT0)}, {vr(vL16)}
    v_mov_b32 {vr(vCUR)}, {vr(vKVB)}
    v_add_u32 {vr(vNXT)}, 32768, {vr(vKVB)}
    s_lshl_b32 {sr(sT1)}, {sr(sTQ)}, 12
    s_add_u32 {sr(sLDSW)}, {sr(sT0)}, {sr(sT1)}
    s_add_u32 {sr(sKVSRC)}, {sr(sKVSRC)}, {sr(sT1)}
    v_add_u32 {vr(vDMA)}, {sr(sKVSRC)}, {vr(vL16)}
    s_lshl_b32 {sr(sSRC)}, {sr(sTB)}, 1
    s_add_u32 {sr(sSRC)}, {sr(sSRC)}, 2
    s_and_b32 {sr(sSRC)}, {sr(sSRC)}, 15
    s_lshl_b32 {sr(sSRC)}, {sr(sSRC)}, 14
    s_mov_b32 {sr(sSLOT)}, {2 * 32768}
    s_mov_b32 {sr(sJ)}, 0
    v_lshrrev_b32 v12, 3, v0
    v_and_b32 v13, 7, v0
    v_bfe_u32 v14, v12, 1, 1
    v_lshlrev_b32 v14, 2, v14
    v_xor_b32 v13, v13, v14
    s_lshl_b32 {sr(sT0)}, {sr(sTQ)}, 4
    v_add_u32 v12, {sr(sT0)}, v12
    v_lshlrev_b32 {vr(vDW3)}, 11, v12
    v_lshl_add_u32 {vr(vDW3)}, v13, 4, {vr(vDW3)}
    s_lshl_b32 {sr(sWOFF)}, {sr(sCB)}, 7
    s_lshl_b32 {sr(sLDSW3)}, {sr(sHH)}, 13
    s_lshl_b32 {sr(sT0)}, {sr(sTQ)}, 11
    s_add_u32 {sr(sLDSW3)}, {sr(sLDSW3)}, {sr(sT0)}
    """)
    for i in range(8): a(f"v_mov_b32 v{LA+i}, 0")
    for x in range(2):
        S = SS + 16 * x
        a(f"v_max3_f32 v12, v{S}, v{S+1}, v{S+2}")
        for i in range(3, 15, 2):
            a(f"v_max3_f32 v12, v12, v{S+i}, v{S+i+1}")
        a(f"v_max_f32 v12, v12, v{S+15}")
        a(f"""
        v_mov_b32 v13, v12
        s_nop 1
        v_permlane32_swap_b32 v13, v12
        s_nop 1
        v_max_f32 v12, v12, v13
        v_sub_f32 v12, 0, v12
        """)
        for i in range(16):
            a(f"v_mov_b32 v{NM+16*x+i}, v12")
    a("s_waitcnt lgkmcnt(0)")
    a("s_barrier")
    a(rd(KF, 0, 0)); a(rd(KF + 4, 0, 1)); a(rd(VF, 0, 2))
    a("s_waitcnt lgkmcnt(1)")
    a(f"v_mfma_f32_32x32x16_bf16 {vr(SS,16)}, {vr(KF,4)}, {vr(QF,4)}, {vr(NM,16)}")
    a(f"v_mfma_f32_32x32x16_bf16 {vr(SS,16)}, {vr(KF+4,4)}, {vr(QF+4,4)}, {vr(SS,16)}")
    lanestamp(a, 203, opt, 3)
    a("s_waitcnt lgkmcnt(0)")
    a("s_nop 15")
    attn_stage(a, opt, 0)
    lanestamp(a, 202, opt, 0)
    attn_stage(a, opt, 1)
    lanestamp(a, 202, opt, 1)
    loop = a.label("attn")
    a(".p2align 6")
    a(f"{loop}:")
    attn_stage(a, opt, 2)
    lanestamp(a, 202, opt, "m")
    a(f"s_cmp_lt_u32 {sr(sJ)}, 13")
    a(f"s_cbranch_scc1 {loop}")
    for s_ in (13, 14, 15):
        attn_stage(a, opt, 3, s_)
        lanestamp(a, 202, opt, s_)
    a("s_setprio 0")
    a("s_nop 1")
    a(f"v_mfma_f32_32x32x16_bf16 {vr(OA+16,16)}, {vr(VF+4,4)}, {vr(PP+4,4)}, {vr(OA+16,16)}")
    a(smf(LA + 4))
    a("s_waitcnt lgkmcnt(0)")

def attn_epilogue(a, opt):
    a(f"""
    s_lshl_b32 {sr(sT0)}, {sr(sTB)}, 3
    s_lshl_b32 {sr(sT1)}, {sr(sTQ)}, 1
    s_add_u32 {sr(sT0)}, {sr(sT0)}, {sr(sT1)}
    s_lshl_b32 {sr(sT0)}, {sr(sT0)}, 17
    s_lshl_b32 {sr(sT1)}, {sr(sHP)}, 1
    s_add_u32 {sr(sT1)}, {sr(sT1)}, {sr(sHH)}
    s_lshl_b32 {sr(sT1)}, {sr(sT1)}, 11
    s_add_u32 {sr(sT0)}, {sr(sT0)}, {sr(sT1)}
    s_add_u32 {sr(sOOFF)}, {sr(sT0)}, {WS_O}
    s_mov_b32 {sr(sT2)}, {hex(f2u(2.0**24))}
    s_nop 7
    """)
    ok = a.label("ok")
    a("v_mov_b32 v12, 0")
    a("v_mov_b32 v13, 0")
    a(f"v_add_f32 v{LA}, v{LA}, v{LA+1}")
    a(f"v_add_f32 v{LA+4}, v{LA+4}, v{LA+5}")
    for i in range(16):
        a(f"v_pk_fma_f32 v[12:13], {vr(OA+2*i,2)}, 0, v[12:13] op_sel_hi:[1,0,1]")
    a(f"v_cmp_nle_f32 {sr(sM,2)}, v{LA}, {sr(sT2)}")
    a(f"v_cmp_nle_f32 {sr(sM2,2)}, v{LA+4}, {sr(sT2)}")
    a("v_cmp_u_f32 vcc, v12, v13")
    a(f"s_or_b64 {sr(sM,2)}, {sr(sM,2)}, {sr(sM2,2)}")
    a(f"s_or_b64 {sr(sM,2)}, {sr(sM,2)}, vcc")
    if opt.get("force_fallback"):
        a(f"s_mov_b64 {sr(sM,2)}, -1")
    a(f"s_cmp_eq_u64 {sr(sM,2)}, 0")
    a(f"s_cbranch_scc1 {ok}")
    fallback(a, opt)
    a(f"{ok}:")
    a(f"v_rcp_f32 v12, v{LA}")
    a(f"v_rcp_f32 v14, v{LA+4}")
    for x in range(2):
        r = (12, 14)[x]
        a(f"v_mov_b32 v{r+1}, v{r}" if x == 1 else f"v_mov_b32 v13, v12")
        b = OA + 16 * x
        for i in range(8):
            a(f"v_pk_mul_f32 {vr(b+2*i,2)}, {vr(b+2*i,2)}, {vr(r,2)}")
        for i in range(8):
            a(f"v_cvt_pk_bf16_f32 v{b+i}, v{b+2*i}, v{b+2*i+1}")
        if x == 1:
            a(f"s_add_u32 {sr(sOOFF)}, {sr(sOOFF)}, 131072")
        a(f"buffer_store_dwordx4 {vr(b,4)}, {vr(vL16)}, {sr(SRD_WS,4)}, {sr(sOOFF)} offen sc1")
        a(f"buffer_store_dwordx4 {vr(b+4,4)}, {vr(vL16)}, {sr(SRD_WS,4)}, {sr(sOOFF)} offen offset:1024 sc1")

def phase3(a, opt):
    vm = VmTracker()
    ACC3, AF, OF, DEPTH, NSLOT = 16, 48, 72, opt.get("depth", 16), NSLOT3
    vRD = [7, 8, 9, 11, 4, 5]
    vG, vOUT = 14, 13
    sample_mailbox(a, sMB2, 0xffffffff)
    a("s_waitcnt vmcnt(0)")
    a("s_barrier")
    timestamp(a, 4, opt)
    np_ = a.label("np3")
    a(f"s_cmp_eq_u32 {sr(sW)}, 0")
    a(f"s_cbranch_scc0 {np_}")
    a(f"""
    s_lshl_b32 {sr(sT0)}, {sr(sTB)}, 12
    s_lshl_b32 {sr(sT1)}, {sr(sHP)}, 2
    s_add_u32 {sr(sT0)}, {sr(sT0)}, {sr(sT1)}
    s_add_u32 {sr(sT0)}, {sr(sT0)}, {WS_MB2}
    v_lshlrev_b32 v12, 7, v0
    v_mov_b32 v15, 1
    s_mov_b32 exec_lo, -1
    s_mov_b32 exec_hi, 0
    buffer_store_dword v15, v12, {sr(SRD_WS,4)}, {sr(sT0)} offen sc1
    s_mov_b64 exec, -1
    """)
    poll = a.label("poll3"); done = a.label("pd3")
    a(f"""
    s_mov_b32 {sr(sT1)}, 400000
    s_lshr_b32 {sr(sT2)}, {sr(sTB3)}, 1
    s_cmp_eq_u32 {sr(sT2)}, {sr(sTB)}
    s_cselect_b32 {sr(sT2)}, 1, 0
    s_lshl_b32 {sr(sT2)}, {sr(sT2)}, {sr(sHP)}
    s_mov_b32 exec_lo, -1
    s_mov_b32 exec_hi, 0
    """)
    a(f"{poll}:")
    a(f"v_cmp_eq_u32 vcc, 1, {vr(vPV)}")
    a("s_nop 3")
    a(f"s_or_b32 {sr(sT3)}, vcc_lo, {sr(sT2)}")
    a(f"s_cmp_eq_u32 {sr(sT3)}, -1")
    a(f"s_cbranch_scc1 {done}")
    a(f"s_sub_u32 {sr(sT1)}, {sr(sT1)}, 1")
    a(f"s_cbranch_scc1 {done}")
    a(f"buffer_load_dword {vr(vPV)}, {vr(vPA)}, {sr(SRD_WS,4)}, {sr(sMB2)} offen sc1")
    a("s_waitcnt vmcnt(0)")
    a(f"s_branch {poll}")
    a(f"{done}:")
    a("s_mov_b64 exec, -1")
    a(f"{np_}:")
    def wdma(i):
        for half in range(2):
            for x in wo_piece(i, half): a(x)
            vm.issue(("w", i))
    wdma(6); wdma(7)
    a(f"""
    v_and_b32 v12, 31, v0
    s_lshl_b32 {sr(sT0)}, {sr(sTB3)}, 7
    s_lshl_b32 {sr(sT2)}, {sr(sTQ)}, 5
    s_add_u32 {sr(sT0)}, {sr(sT0)}, {sr(sT2)}
    v_add_u32 v12, {sr(sT0)}, v12                  ; token
    v_lshlrev_b32 v3, 2, v12
    v_lshrrev_b32 {vr(vG)}, 5, v0                  ; h
    v_lshlrev_b32 {vr(vOUT)}, 11, v12
    v_lshl_add_u32 {vr(vOUT)}, {vr(vG)}, 4, {vr(vOUT)}
    v_bfe_u32 v15, v0, 2, 2                        ; r
    v_lshl_add_u32 v12, {vr(vG)}, 2, v15           ; 4h + r
    v_lshlrev_b32 v2, 7, v12
    v_and_b32 v12, 1, v0                           ; h'
    v_bfe_u32 v1, v0, 1, 1                         ; a
    v_bfe_u32 v5, v0, 4, 1                         ; g
    v_lshl_add_u32 v12, v5, 1, v12                 ; chunk16 = 2g + h'
    v_lshrrev_b32 v15, 1, v15
    v_lshlrev_b32 v15, 2, v15
    v_xor_b32 v12, v12, v15
    v_lshl_add_u32 v2, v12, 4, v2
    v_lshl_add_u32 v2, v1, 3, v2
    s_lshl_b32 {sr(sT0)}, {sr(sHH)}, 13
    v_add_u32 v{vRD[0]}, {sr(sT0)}, v2
    v_xor_b32 v{vRD[1]}, 64, v{vRD[0]}
    v_add_u32 v{vRD[2]}, 0x10000, v{vRD[0]}
    v_add_u32 v{vRD[3]}, 0x10000, v{vRD[1]}
    v_add_u32 v{vRD[4]}, 0x20000, v{vRD[0]}
    v_add_u32 v{vRD[5]}, 0x20000, v{vRD[1]}
    s_lshl_b32 {sr(sT0)}, {sr(sTB3)}, 2
    s_add_u32 {sr(sT0)}, {sr(sT0)}, {sr(sTQ)}
    s_lshl_b32 {sr(sAOFF)}, {sr(sT0)}, 17
    s_lshl_b32 {sr(sT1)}, {sr(sHH)}, 16
    s_add_u32 {sr(sAOFF)}, {sr(sAOFF)}, {sr(sT1)}
    s_add_u32 {sr(sAOFF)}, {sr(sAOFF)}, {WS_O}
    """)
    a("s_barrier")
    timestamp(a, 5, opt)
    if opt.get("dbg_span"): dbg_span(a, "e3")
    def oload(kk):
        d = kk % DEPTH
        if kk % 4 == 0:
            a(f"s_add_u32 {sr(sT1)}, {sr(sROT)}, {kk // 4}")
            a(f"s_and_b32 {sr(sT1)}, {sr(sT1)}, 15")
            a(f"s_lshl_b32 {sr(sT1)}, {sr(sT1)}, 12")
            a(f"s_add_u32 {sr(sT1)}, {sr(sT1)}, {sr(sAOFF)}")
        if opt.get("p3_noload") and kk >= DEPTH: return
        sc = "" if opt.get("p3_plain") else " sc1"
        a(f"buffer_load_dwordx4 {vr(OF+4*d,4)}, {vr(vL16)}, {sr(SRD_WS,4)}, {sr(sT1)} offen offset:{(kk%4)*1024}{sc}")
        vm.issue(("o", kk))
    for kk in range(DEPTH): oload(kk)
    a(f"s_mov_b32 {sr(sT2)}, {WS_G}")
    a(f"buffer_load_dword {vr(vG)}, v3, {sr(SRD_WS,4)}, {sr(sT2)} offen sc1")
    vm.issue(("g", 0))
    def wreads(st, ks, set_):
        r = []
        slot = st % NSLOT
        win, off = divmod(slot * 16384, 65536)
        for ct in range(2):
            base = AF + 8 * set_ + 4 * ct
            reg = vRD[2 * win + ct]
            r.append(f"ds_read_b64_tr_b16 {vr(base,2)}, {vr(reg)} offset:{off + ks*2048}")
            r.append(f"ds_read_b64_tr_b16 {vr(base+2,2)}, {vr(reg)} offset:{off + ks*2048+1024}")
        return r
    def wr(kk): return wreads(kk // 4, kk % 4, kk % 3)
    for x in wr(0) + wr(1): a(x)
    pend = []
    for st in range(16):
        for ks in range(4):
            kk = 4 * st + ks
            d = kk % DEPTH
            cur = kk % 3
            bar = ks == 2 and st in (5, 9)
            if bar:
                need = ("w", 7) if st == 5 else ("w", 15)
                n = vm.wait_count(lambda t: t in (need, ("o", kk)))
                a(f"s_waitcnt vmcnt({n}) lgkmcnt(0)")
                a("s_barrier")
                if st == 5:
                    pend = [(i, h) for i in range(10, 16) for h in range(2)]
            else:
                n = vm.wait_count(lambda t: t == ("o", kk))
                a(f"s_waitcnt vmcnt({n}) lgkmcnt({4 if kk < 63 else 0})")
            nxt = wr(kk + 2) if kk + 2 < 64 else []
            for ct in range(2):
                c = "0" if kk == 0 else vr(ACC3+16*ct,16)
                a(f"v_mfma_f32_32x32x16_bf16 {vr(ACC3+16*ct,16)}, {vr(AF+8*cur+4*ct,4)}, {vr(OF+4*d,4)}, {c}")
                for x in nxt[2*ct:2*ct+2]: a(x)
            if kk + DEPTH < 64:
                oload(kk + DEPTH)
            for i, h in pend[:2]:
                if opt.get("p3_nowo"): continue
                for x in wo_piece(i, h): a(x)
                vm.issue(("w", i))
            pend = pend[2:]
    timestamp(a, 6, opt)
    XA = 6 * 16384
    a(f"""
    s_lshl_b32 {sr(sT0)}, {sr(sTQ)}, 12
    s_lshl_b32 {sr(sT1)}, {sr(sHH)}, 11
    s_add_u32 {sr(sT2)}, {sr(sT0)}, {sr(sT1)}
    s_xor_b32 {sr(sT1)}, {sr(sT1)}, 2048
    s_add_u32 {sr(sT3)}, {sr(sT0)}, {sr(sT1)}
    s_add_u32 {sr(sT2)}, {sr(sT2)}, {XA}
    s_add_u32 {sr(sT3)}, {sr(sT3)}, {XA}
    v_add_u32 v12, {sr(sT2)}, {vr(vL16)}
    v_add_u32 v1, {sr(sT3)}, {vr(vL16)}
    v_sub_f32 v2, 1.0, {vr(vG)}
    v_cvt_pk_bf16_f32 v2, v2, v2
    v_lshlrev_b32 v2, 16, v2
    s_lshl_b32 {sr(sT0)}, {sr(sCB)}, 7
    s_lshl_b32 {sr(sT1)}, {sr(sHH)}, 6
    s_add_u32 {sr(sT0)}, {sr(sT0)}, {sr(sT1)}
    """)
    brb, fin = a.label("brb"), a.label("fin")
    a(f"s_cmp_eq_u32 {sr(sHH)}, 0")
    a(f"s_cbranch_scc0 {brb}")
    for br in range(2):
        K, S_ = ACC3 + 16 * br, ACC3 + 16 * (br ^ 1)
        own, rcv = (vG, 2) if br == 0 else (2, vG)
        a(f"v_mov_b32 v60, v{own}\nv_mov_b32 v61, v{own}\nv_mov_b32 v62, v{rcv}\nv_mov_b32 v63, v{rcv}")
        for i in range(8):
            a(f"v_cvt_pk_bf16_f32 v{48+i}, v{S_+2*i}, v{S_+2*i+1}")
        a("ds_write_b128 v12, v[48:51]")
        a("ds_write_b128 v12, v[52:55] offset:1024")
        a("s_waitcnt lgkmcnt(0)")
        a("s_barrier")
        a("ds_read_b128 v[48:51], v1")
        a("ds_read_b128 v[52:55], v1 offset:1024")
        for i in range(8):
            if i == 0: a("s_waitcnt lgkmcnt(1)")
            if i == 4: a("s_waitcnt lgkmcnt(0)")
            a(f"v_lshlrev_b32 v56, 16, v{48+i}")
            a(f"v_and_b32 v57, 0xffff0000, v{48+i}")
            a(f"v_pk_mul_f32 v[56:57], v[56:57], v[62:63]")
            a(f"v_pk_fma_f32 v[56:57], {vr(K+2*i,2)}, v[60:61], v[56:57]")
            if opt.get("perturb") and br == 0 and i == 0:
                a(f"s_cmp_eq_u32 s2, 0")
                a(f"s_cselect_b32 {sr(sT1)}, {hex(f2u(opt['perturb']))}, 0")
                a(f"s_cmp_eq_u32 {sr(sW)}, 0")
                a(f"s_cselect_b32 {sr(sT1)}, {sr(sT1)}, 0")
                a(f"v_mov_b32 v58, {sr(sT1)}")
                a(f"v_cmp_eq_u32 vcc, 0, v0")
                a("s_nop 1")
                a(f"v_cndmask_b32 v58, 0, v58, vcc")
                a(f"v_add_f32 v56, v56, v58")
            a(f"v_cvt_pk_bf16_f32 v{K+i}, v56, v57")
            if i == 3:
                a(f"buffer_store_dwordx4 {vr(K,4)}, {vr(vOUT)}, {sr(SRD_OUT,4)}, {sr(sT0)} offen {opt.get('outflag', '')}")
        a(f"buffer_store_dwordx4 {vr(K+4,4)}, {vr(vOUT)}, {sr(SRD_OUT,4)}, {sr(sT0)} offen offset:32 {opt.get('outflag', '')}")
        if br == 0:
            a(f"s_branch {fin}")
            a(f"{brb}:")
    a(f"{fin}:")

def fallback(a, opt):
    MX = NM
    a(f"s_lshl_b32 {sr(sT0)}, {sr(sHP)}, 1")
    a(f"s_add_u32 {sr(sT0)}, {sr(sT0)}, {sr(sHH)}")
    a(f"s_lshl_b32 {sr(sBLK)}, {sr(sT0)}, 18")
    for i in range(32): a(f"v_mov_b32 v{OA+i}, 0")
    for i in range(8): a(f"v_mov_b32 v{LA+i}, 0")
    a(f"v_mov_b32 v{MX}, 0xff800000")
    a(f"v_mov_b32 v{MX+16}, 0xff800000")
    a(f"s_mov_b32 {sr(sJ)}, 0")
    loop = a.label("fb")
    a(f"{loop}:")
    a(f"buffer_load_dwordx4 {vr(KF,4)}, {vr(vL16)}, {sr(SRD_WS,4)}, {sr(sBLK)} offen sc1")
    a(f"buffer_load_dwordx4 {vr(KF+4,4)}, {vr(vL16)}, {sr(SRD_WS,4)}, {sr(sBLK)} offen offset:1024 sc1")
    a(f"buffer_load_dwordx4 {vr(VF,4)}, {vr(vL16)}, {sr(SRD_WS,4)}, {sr(sBLK)} offen offset:2048 sc1")
    a(f"buffer_load_dwordx4 {vr(VF+4,4)}, {vr(vL16)}, {sr(SRD_WS,4)}, {sr(sBLK)} offen offset:3072 sc1")
    a("s_waitcnt vmcnt(0)")
    for x in range(2):
        S, Q, O, L, mx = SS, QF + 8 * x, OA + 16 * x, LA + 4 * x, MX + 16 * x
        a(f"v_mfma_f32_32x32x16_bf16 {vr(S,16)}, {vr(KF,4)}, {vr(Q,4)}, 0")
        a(f"v_mfma_f32_32x32x16_bf16 {vr(S,16)}, {vr(KF+4,4)}, {vr(Q+4,4)}, {vr(S,16)}")
        a("s_nop 15")
        a(f"v_max3_f32 v12, v{S}, v{S+1}, v{S+2}")
        for i in range(3, 15, 2):
            a(f"v_max3_f32 v12, v12, v{S+i}, v{S+i+1}")
        a(f"v_max_f32 v12, v12, v{S+15}")
        a(f"""
        v_mov_b32 v13, v12
        s_nop 1
        v_permlane32_swap_b32 v13, v12
        s_nop 1
        v_max3_f32 v12, v12, v13, v{mx}
        v_sub_f32 v13, v{mx}, v12
        v_cmp_eq_f32 vcc, v{mx}, v12
        v_exp_f32 v13, v13
        s_nop 1
        v_cndmask_b32 v13, v13, 1.0, vcc
        v_mov_b32 v{mx}, v12
        """)
        for i in range(16):
            a(f"v_mul_f32 v{O+i}, v13, v{O+i}")
        for i in range(4):
            a(f"v_mul_f32 v{L+i}, v13, v{L+i}")
        for i in range(16):
            a(f"v_sub_f32 v{S+i}, v{S+i}, v12")
        for i in range(16):
            a(f"v_exp_f32 v{S+i}, v{S+i}")
        a("s_nop 0")
        for i in range(8):
            a(f"v_cvt_pk_bf16_f32 v{PP+i}, v{S+2*i}, v{S+2*i+1}")
        a("s_nop 1")
        a(f"v_mfma_f32_32x32x16_bf16 {vr(O,16)}, {vr(VF,4)}, {vr(PP,4)}, {vr(O,16)}")
        a(f"v_mfma_f32_32x32x16_bf16 {vr(O,16)}, {vr(VF+4,4)}, {vr(PP+4,4)}, {vr(O,16)}")
        a(smf(L))
        a("s_nop 15")
    a(f"s_add_u32 {sr(sBLK)}, {sr(sBLK)}, 4096")
    a(f"s_add_u32 {sr(sJ)}, {sr(sJ)}, 1")
    a(f"s_cmp_lt_u32 {sr(sJ)}, 64")
    a(f"s_cbranch_scc1 {loop}")
    a(f"v_add_f32 v{LA}, v{LA}, v{LA+1}")
    a(f"v_add_f32 v{LA+4}, v{LA+4}, v{LA+5}")

def gstamp(a, reg):
    a("s_memtime s[70:71]")
    a("s_waitcnt lgkmcnt(0)")
    a("s_mov_b32 s69, m0")
    a("s_mov_b32 m0, s87")
    a(f"v_writelane_b32 v{reg-100}, s70, m0")
    a("s_mov_b32 m0, s69")

def lanestamp(a, reg, opt, lane=None):
    if not opt.get("stamps2"):
        return
    a("s_memtime s[70:71]")
    a("s_waitcnt lgkmcnt(0)")
    if lane == "m":
        a(f"s_mov_b32 s69, m0")
        a(f"s_sub_u32 m0, {sr(sJ)}, 1")
        a(f"v_writelane_b32 v{reg}, s70, m0")
        a(f"s_mov_b32 m0, s69")
    elif lane is None:
        a(f"s_mov_b32 s69, m0")
        a(f"s_mov_b32 m0, {sr(sJ)}")
        a(f"v_writelane_b32 v{reg}, s70, m0")
        a(f"s_mov_b32 m0, s69")
    else:
        a(f"v_writelane_b32 v{reg}, s70, {lane}")

def timestamp(a, idx, opt):
    if not opt.get("stamps"):
        return
    a(f"s_memtime s[70:71]")
    a(f"s_memrealtime s[92:93]")
    a("s_waitcnt lgkmcnt(0)")
    a(f"s_mov_b32 s{72+idx}, s70")
    a(f"s_mov_b32 s{80+idx}, s92")

def stamps_out(a, n, opt):
    if opt.get("stampsg"):
        a(f"""
        s_lshl_b32 {sr(sT1)}, s2, 3
        s_add_u32 {sr(sT1)}, {sr(sT1)}, {sr(sW)}
        s_lshl_b32 {sr(sT1)}, {sr(sT1)}, 10
        s_add_u32 {sr(sT1)}, {sr(sT1)}, {WS_DBG + (12 << 20)}
        v_lshlrev_b32 v12, 2, v0
        buffer_store_dword v104, v12, {sr(SRD_WS,4)}, {sr(sT1)} offen
        buffer_store_dword v105, v12, {sr(SRD_WS,4)}, {sr(sT1)} offen offset:256
        buffer_store_dword v106, v12, {sr(SRD_WS,4)}, {sr(sT1)} offen offset:512
        """)
    if opt.get("stamps2"):
        a(f"""
        s_lshl_b32 {sr(sT1)}, s2, 3
        s_add_u32 {sr(sT1)}, {sr(sT1)}, {sr(sW)}
        s_lshl_b32 {sr(sT1)}, {sr(sT1)}, 10
        s_add_u32 {sr(sT1)}, {sr(sT1)}, {WS_DBG + (10 << 20)}
        v_lshlrev_b32 v12, 2, v0
        buffer_store_dword v200, v12, {sr(SRD_WS,4)}, {sr(sT1)} offen
        buffer_store_dword v201, v12, {sr(SRD_WS,4)}, {sr(sT1)} offen offset:256
        buffer_store_dword v202, v12, {sr(SRD_WS,4)}, {sr(sT1)} offen offset:512
        buffer_store_dword v203, v12, {sr(SRD_WS,4)}, {sr(sT1)} offen offset:768
        """)
    if not opt.get("stamps"):
        return
    a(f"""
    s_lshl_b32 {sr(sT1)}, s2, 3
    s_add_u32 {sr(sT1)}, {sr(sT1)}, {sr(sW)}
    s_lshl_b32 {sr(sT1)}, {sr(sT1)}, 6
    s_add_u32 {sr(sT1)}, {sr(sT1)}, {WS_DBG + (8 << 20)}
    v_mov_b32 v13, 0
    """)
    for i in range(n):
        a(f"v_writelane_b32 v13, s{72+i}, {i}")
        a(f"v_writelane_b32 v13, s{80+i}, {8+i}")
    a(f"""
    v_lshlrev_b32 v12, 2, v0
    v_cmp_gt_u32 vcc, 16, v0
    s_and_saveexec_b64 {sr(sM,2)}, vcc
    buffer_store_dword v13, v12, {sr(SRD_WS,4)}, {sr(sT1)} offen
    s_mov_b64 exec, {sr(sM,2)}
    """)

def span3(a, opt, off):
    if not opt.get("span3"): return
    sk = a.label("sk3")
    a(f"s_cmp_eq_u32 s2, {opt['span3']}")
    a(f"s_cbranch_scc0 {sk}")
    a(f"s_cmp_eq_u32 {sr(sW)}, 0")
    a(f"s_cbranch_scc0 {sk}")
    a("s_memrealtime s[92:93]")
    a("s_waitcnt lgkmcnt(0)")
    a(f"v_mov_b32 v12, s92")
    a(f"s_mov_b32 s93, {off}")
    a("s_mov_b64 exec, 1")
    a(f"buffer_store_dword v12, off, {sr(SRD_DBG,4)}, s93 sc1")
    a("s_mov_b64 exec, -1")
    a(f"{sk}:")

def dbg_span(a, which):
    w = {"start": 4, "gemm": 12, "attn": 20, "end": 28, "e3": 36, "g0": 44, "hook": 52, "karg": 20, "dma": 36, "prew": 52, "smax": 60}[which]
    sk = a.label("sk")
    a(f"s_cmp_eq_u32 {sr(sW)}, 0")
    a(f"s_cbranch_scc0 {sk}")
    a("s_memrealtime s[92:93]")
    a("s_waitcnt lgkmcnt(0)")
    a(f"v_mov_b32 v12, s92")
    a(f"s_mov_b32 s93, {w}")
    a("s_mov_b64 exec, 1")
    a(f"buffer_atomic_umax v12, off, {sr(SRD_DBG,4)}, s93 sc1")
    a("s_mov_b64 exec, -1")
    a(f"{sk}:")

OPT = {}
def k12(opt):
    OPT.clear(); OPT.update(opt)
    a = Asm()
    a(f".globl {NAME12}\n.p2align 8\n.type {NAME12},@function\n{NAME12}:")
    timestamp(a, 0, opt)
    if opt.get("dbg_span") or opt.get("span2") or opt.get("span3"):
        a("s_memrealtime s[84:85]")
    extras = prologue(a, opt)
    if opt.get("dbg_span"):
        sk = a.label("sk")
        a(f"s_cmp_eq_u32 {sr(sW)}, 0")
        a(f"s_cbranch_scc0 {sk}")
        a("s_waitcnt lgkmcnt(0)")
        a("s_not_b32 s84, s84")
        a("v_mov_b32 v12, s84")
        a("s_mov_b32 s93, 4")
        a("s_mov_b64 exec, 1")
        a(f"buffer_atomic_umax v12, off, {sr(SRD_DBG,4)}, s93 sc1")
        a("s_mov_b64 exec, -1")
        a(f"{sk}:")
    gemm(a, opt, extras)
    if opt.get("dbg_span") or opt.get("span2"): dbg_span(a, "gemm")
    span3(a, opt, 44)
    if opt.get("stamps_start"):
        timestamp(a, 7, opt)
        opt = dict(opt); opt["stamps"] = 0
        gemm_epilogue(a, opt)
        a("s_waitcnt vmcnt(0) lgkmcnt(0)")
        opt["stamps"] = 1
        stamps_out(a, 8, opt)
        a("L_end12:\ns_endpgm")
        return a.text()
    timestamp(a, 1, opt)
    gemm_epilogue(a, opt)
    if opt.get("stop_after_gemm"):
        a("s_waitcnt vmcnt(0) lgkmcnt(0)")
        timestamp(a, 2, opt)
        stamps_out(a, 3, opt)
    else:
        timestamp(a, 2, opt)
        attention(a, opt)
        timestamp(a, 3, opt)
        if opt.get("dbg_span"): dbg_span(a, "attn")
        span3(a, opt, 52)
        attn_epilogue(a, opt)
        if opt.get("fused"):
            phase3(a, opt)
            if opt.get("stamps"):
                a("s_waitcnt vmcnt(0)")
                timestamp(a, 7, opt)
            stamps_out(a, 8, opt)
            if opt.get("span3"):
                a("s_waitcnt vmcnt(0)")
                span3(a, opt, 60)
            if opt.get("dbg_span") or opt.get("span2"):
                a("s_waitcnt vmcnt(0)")
                dbg_span(a, "end")
        else:
            a("s_waitcnt vmcnt(0)")
            timestamp(a, 4, opt)
            stamps_out(a, 5, opt)
    a("L_end12:\ns_endpgm")
    return a.text()

KD12 = f"""
.section .rodata,"a"
.p2align 6
.amdhsa_kernel {NAME12}
  .amdhsa_next_free_vgpr 256
  .amdhsa_next_free_sgpr 102
  .amdhsa_accum_offset 256
  .amdhsa_group_segment_fixed_size 0
  .amdhsa_kernarg_size 80
  .amdhsa_user_sgpr_count 2
  .amdhsa_user_sgpr_kernarg_segment_ptr 1
  .amdhsa_system_sgpr_workgroup_id_x 1
  .amdhsa_float_denorm_mode_32 3
.end_amdhsa_kernel
"""
```

```python
from asm import Asm, vr, sr, VmTracker

NAME12 = "gated_mix__mha_block__softmax_full_mha__prompt_kernel"
WS_KV = 0
WS_O = 16 << 20
WS_G = 24 << 20
WS_MB = 25 << 20
WS_MB2 = WS_MB + 65536
WS_DBG = 32 << 20
WS_SIZE = 0x10000000
LOG2E = 1.4426950408889634
QSCALE = LOG2E / (32 ** 0.5)

import struct
def f2u(x): return struct.unpack("<I", struct.pack("<f", x))[0]

SRD_X, SRD_W, SRD_WS, SRD_DBG, SRD_GW = 8, 12, 16, 20, 24
sW, sHH, sTQ, sHP, sTB = 28, 29, 30, 31, 32
sW1K = 33
sXJ = 34
sWJ = 35
sRING = 36
sRINGW = 37
sJ = 38
sT0, sT1, sT2, sT3 = 40, 41, 42, 43
sXQ = 44
sKVSRC = 45
sSLOT = 46
sBLK = 47
sM = 48
sM2 = 50
sOOFF = 52
sCNT = 53
sMB = 54
sLDSW = 55
sSRC = 39
sOFFS = 64
sNXT = 65
sCHKJ = 66
sARRJ = 67
sGOFF = 68
sKVO = 35
sPF = 47
SRD_WO, SRD_OUT = 4, 56
sTB3, sCB, sROT, sMB2 = 60, 61, 62, 63
sAOFF, sWOFF = 100, 101
sLDSW3 = 34
vDW3 = 6
vLANE = 0
vDX, vDW, vXP, vWP, vXA, vW0 = 2, 3, 4, 5, 6, 7
vL16 = 10
vXB = 11
vT = 12
FR = [64, 84]
ACC = 160
QF = 16
OA = 32
LA = 64
NM = 72
SS = 104
PP = 136
KF = 144
VF = 152
ONES = 160
IDX = 164
vCUR, vNXT = 2, 3
vKVB, vDMA = 4, 5
vCHK = 15
vPA, vPV = 165, 166

RING = 20 * 8192
NSLOT3 = 10

def wrap_add(a, dst, src, const, tmp):
    a(f"s_add_u32 {sr(tmp)}, {sr(src)}, {const}")
    a(f"s_sub_u32 {dst}, {sr(tmp)}, {RING}")
    a(f"s_cselect_b32 {dst}, {sr(tmp)}, {dst}")

def prologue(a, opt):
    a(f"""
    s_cmp_ge_u32 s2, 256
    s_cbranch_scc1 L_end12
    """)
    if opt.get("codepf", 1):
        a("""
        s_getpc_b64 s[92:93]
        L_pc12:
        s_mov_b32 s3, L_end12-L_pc12
        v_lshlrev_b32 v1, 6, v0
        v_min_u32 v1, s3, v1
        global_load_dword v33, v1, s[92:93]
        """)
    a(f"""
    s_load_dwordx4 s[56:59], s[0:1], 0
    s_load_dwordx2 s[60:61], s[0:1], 32
    s_load_dwordx2 s[62:63], s[0:1], 48
    s_load_dwordx4 s[88:91], s[0:1], 64
    s_load_dwordx2 s[94:95], s[0:1], 16
    s_load_dwordx2 s[96:97], s[0:1], 40
    s_load_dwordx2 s[98:99], s[0:1], 56
    v_lshrrev_b32 v1, 6, v0
    v_and_b32 v0, 63, v0
    s_and_b32 s3, s2, 7
    v_readfirstlane_b32 {sr(sW)}, v1
    s_lshr_b32 s4, s2, 3
    s_add_u32 s5, s4, {opt.get("hpshift", 0)}
    s_and_b32 s5, s5, 3
    s_lshl_b32 s3, s3, 2
    s_add_u32 {sr(sHP)}, s3, s5
    s_lshr_b32 {sr(sTB)}, s4, 2
    s_lshr_b32 {sr(sHH)}, {sr(sW)}, 2
    s_and_b32 {sr(sTQ)}, {sr(sW)}, 3
    s_lshl_b32 {sr(sW1K)}, {sr(sW)}, 10
    """)
    a(f"""
    v_lshrrev_b32 v13, 3, v0                 ; r8
    v_and_b32 v14, 7, v0                     ; c'
    s_and_b32 {sr(sT0)}, {sr(sW)}, 1
    s_lshl_b32 {sr(sT0)}, {sr(sT0)}, 2
    v_lshrrev_b32 v15, 1, v13                ; r8>>1 (0..3)
    v_add_u32 v1, {sr(sT0)}, v15             ; 4*(w&1) + (r8>>1)
    v_xor_b32 v1, v1, v14                    ; cX
    s_lshl_b32 {sr(sT1)}, {sr(sW)}, 3
    v_add_u32 v13, {sr(sT1)}, v13            ; 8w + r8
    v_lshlrev_b32 {vr(vDX)}, 11, v13
    v_lshl_add_u32 {vr(vDX)}, v1, 4, {vr(vDX)}
    v_and_b32 v15, 1, v15
    v_lshlrev_b32 v15, 2, v15
    v_xor_b32 v15, v15, v14                  ; cW
    s_mov_b32 {sr(sT1)}, 6144
    v_mul_lo_u32 {vr(vDW)}, v13, {sr(sT1)}
    v_lshl_add_u32 {vr(vDW)}, v15, 4, {vr(vDW)}
    s_lshl_b32 {sr(sXJ)}, {sr(sTB)}, 19          ; tb*256*2048
    s_and_b32 {sr(sWJ)}, {sr(sHP)}, 15
    s_lshl_b32 {sr(sWJ)}, {sr(sWJ)}, 7           ; hpl*128
    """)
    a(f"""
    v_and_b32 v13, 31, v0
    v_lshrrev_b32 v14, 5, v0                 ; h
    v_bfe_u32 v15, v13, 1, 3
    v_xor_b32 v15, v15, v14
    v_lshlrev_b32 {vr(vXP)}, 7, v13
    v_lshl_add_u32 {vr(vXP)}, v15, 4, {vr(vXP)}
    v_bfe_u32 v13, v0, 2, 2                  ; r
    v_lshl_add_u32 v1, v14, 3, v13           ; 8h + r
    v_lshlrev_b32 {vr(vWP)}, 7, v1
    v_bfe_u32 v15, v0, 4, 1                  ; g
    v_lshlrev_b32 v15, 1, v15
    v_bfe_u32 v1, v0, 1, 1                   ; c>>1
    v_add_u32 v15, v15, v1
    s_lshl_b32 {sr(sT1)}, {sr(sHH)}, 2
    v_add_u32 v15, {sr(sT1)}, v15            ; cc
    v_lshrrev_b32 v13, 1, v13
    v_lshlrev_b32 v13, 2, v13
    v_xor_b32 v15, v15, v13
    v_lshl_add_u32 {vr(vWP)}, v15, 4, {vr(vWP)}
    v_and_b32 v1, 1, v0
    v_lshl_add_u32 {vr(vWP)}, v1, 3, {vr(vWP)}
    v_lshlrev_b32 {vr(vL16)}, 4, v0
    s_add_u32 {sr(sXQ)}, {sr(sTQ)}, 3
    s_lshl_b32 {sr(sXQ)}, {sr(sXQ)}, 13
    """)
    a("s_waitcnt lgkmcnt(0)")
    if opt.get("stamps_start"): timestamp(a, 1, opt)
    if opt.get("span2") or opt.get("span3"): a("s_memrealtime s[78:79]")
    a(f"""
    s_mov_b32 {sr(SRD_X)}, s56
    s_mov_b32 {sr(SRD_X+1)}, s57
    s_mov_b32 {sr(SRD_X+2)}, {2048*1024*2}
    s_mov_b32 {sr(SRD_X+3)}, 0x00020000
    s_cmp_ge_u32 {sr(sHP)}, 16
    s_cselect_b32 {sr(SRD_W)}, s60, s58
    s_cselect_b32 {sr(SRD_W+1)}, s61, s59
    s_mov_b32 {sr(SRD_W+2)}, {1024*3072*2}
    s_mov_b32 {sr(SRD_W+3)}, 0x00020000
    """)
    for g in range(14):
        dma_unit_static(a, g)
        if g == 6 and opt.get("stamps_start"): timestamp(a, 2, opt)
    if opt.get("stamps_start"): timestamp(a, 3, opt)
    if opt.get("span2") or opt.get("span3"): a("s_memrealtime s[80:81]")
    if opt.get("dbg_span") or opt.get("span2") or opt.get("span3"):
        a(f"""
        s_mov_b32 {sr(SRD_DBG)}, s88
        s_mov_b32 {sr(SRD_DBG+1)}, s89
        s_mov_b32 {sr(SRD_DBG+2)}, 256
        s_mov_b32 {sr(SRD_DBG+3)}, 0x00020000
        """)
    ex = []
    for u in range(6):
        g = 14 + u
        if u < 3:
            ex.append(f"""s_add_u32 m0, {sr(sW1K)}, {g * 8192}
            s_add_u32 {sr(sT0)}, {sr(sWJ)}, {u * 2048}
            buffer_load_dwordx4 {vr(vDW)}, {sr(SRD_W,4)}, {sr(sT0)} offen lds""")
        else:
            ex.append(f"""s_add_u32 m0, {sr(sW1K)}, {g * 8192}
            s_add_u32 {sr(sT0)}, {sr(sXJ)}, {(u - 3) * 131072}
            buffer_load_dwordx4 {vr(vDX)}, {sr(SRD_X,4)}, {sr(sT0)} offen lds""")
    ex.append(f"""
    s_mov_b32 {sr(SRD_WS)}, s90
    s_mov_b32 {sr(SRD_WS+1)}, s91
    s_mov_b32 {sr(SRD_WS+2)}, {WS_SIZE}
    s_mov_b32 {sr(SRD_WS+3)}, 0x00020000
    """)
    ex.append(f"""
    s_mov_b32 {sr(SRD_DBG)}, s88
    s_mov_b32 {sr(SRD_DBG+1)}, s89
    s_mov_b32 {sr(SRD_DBG+2)}, 256
    s_mov_b32 {sr(SRD_DBG+3)}, 0x00020000
    """)
    ex.append(f"""
    s_mov_b32 {sr(SRD_GW)}, s62
    s_mov_b32 {sr(SRD_GW+1)}, s63
    s_mov_b32 {sr(SRD_GW+2)}, 2048
    s_mov_b32 {sr(SRD_GW+3)}, 0x00020000
    """)
    ex.append(f"""
    s_and_b32 s3, s2, 7
    s_lshr_b32 {sr(sT1)}, s2, 3
    s_lshr_b32 {sr(sT0)}, s3, 1
    s_lshl_b32 {sr(sT0)}, {sr(sT0)}, 2
    s_and_b32 {sr(sTB3)}, {sr(sT1)}, 3
    s_add_u32 {sr(sTB3)}, {sr(sT0)}, {sr(sTB3)}
    s_and_b32 {sr(sT0)}, s3, 1
    s_lshl_b32 {sr(sT0)}, {sr(sT0)}, 3
    s_lshr_b32 {sr(sT1)}, {sr(sT1)}, 2
    s_add_u32 {sr(sCB)}, {sr(sT0)}, {sr(sT1)}
    """)
    ex.append(f"""
    s_add_u32 {sr(sROT)}, {sr(sTB3)}, {sr(sCB)}
    s_and_b32 {sr(sROT)}, {sr(sROT)}, 15
    s_lshl_b32 {sr(sMB2)}, {sr(sTB3)}, 4
    s_add_u32 {sr(sMB2)}, {sr(sMB2)}, {sr(sCB)}
    s_lshl_b32 {sr(sMB2)}, {sr(sMB2)}, 7
    s_add_u32 {sr(sMB2)}, {sr(sMB2)}, {WS_MB2}
    """)
    ex.append(f"""
    s_cmp_eq_u32 {sr(sHH)}, 1
    s_cselect_b32 {sr(SRD_WO)}, s96, s94
    s_cselect_b32 {sr(SRD_WO+1)}, s97, s95
    s_mov_b32 {sr(SRD_WO+2)}, {1024*1024*2}
    s_mov_b32 {sr(SRD_WO+3)}, 0x00020000
    """)
    ex.append(f"""
    s_mov_b32 {sr(SRD_OUT)}, s98
    s_mov_b32 {sr(SRD_OUT+1)}, s99
    s_mov_b32 {sr(SRD_OUT+2)}, {2048*1024*2}
    s_mov_b32 {sr(SRD_OUT+3)}, 0x00020000
    """)
    ex.append(f"""
    s_lshl_b32 {sr(sMB)}, {sr(sHP)}, 3
    s_add_u32 {sr(sMB)}, {sr(sMB)}, {sr(sTB)}
    s_lshl_b32 {sr(sMB)}, {sr(sMB)}, 7
    s_add_u32 {sr(sMB)}, {sr(sMB)}, {WS_MB}
    s_lshl_b32 {sr(sCNT)}, {sr(sHP)}, 3
    """)
    nr = a.label("nr")
    ex.append(f"""
    s_cmp_eq_u32 {sr(sW)}, 0
    s_cselect_b32 {sr(sCHKJ)}, 5, 0xffff
    s_cselect_b32 {sr(sARRJ)}, 11, 0xffff
    s_cbranch_scc0 {nr}
    v_lshlrev_b32 v12, 2, v0
    s_sub_u32 {sr(sT0)}, {sr(sMB2)}, 128
    v_mov_b32 v13, {sr(sMB)}
    v_mov_b32 v14, {sr(sT0)}
    v_cmp_gt_u32 vcc, 32, v0
    s_nop 1
    v_cndmask_b32 v13, v14, v13, vcc
    v_add_u32 v12, v12, v13
    v_mov_b32 v13, 0
    buffer_store_dword v13, v12, {sr(SRD_WS,4)}, 0 offen sc1
    {nr}:
    """)
    ex.append(f"""
    s_and_b32 {sr(sT0)}, {sr(sHP)}, 15
    s_lshl_b32 {sr(sT0)}, {sr(sT0)}, 3
    s_add_u32 {sr(sT0)}, {sr(sT0)}, {sr(sTB)}
    s_lshl_b32 {sr(sT0)}, {sr(sT0)}, 3
    s_add_u32 {sr(sT0)}, {sr(sT0)}, {sr(sW)}
    s_lshl_b32 {sr(sT0)}, {sr(sT0)}, 10
    s_add_u32 {sr(sPF)}, {sr(sT0)}, {3 * 64 * 6144}
    """)
    ex.append(f"""
    s_lshl_b32 {sr(sT0)}, {sr(sTB)}, 8
    s_lshl_b32 {sr(sT1)}, {sr(sHP)}, 3
    s_add_u32 {sr(sT0)}, {sr(sT0)}, {sr(sT1)}
    s_add_u32 {sr(sT0)}, {sr(sT0)}, {sr(sW)}
    s_lshl_b32 {sr(sGOFF)}, {sr(sT0)}, 2
    s_lshl_b32 {sr(sT1)}, {sr(sT0)}, 11
    v_lshlrev_b32 v12, 5, v0
    buffer_load_dwordx4 v[16:19], v12, {sr(SRD_X,4)}, {sr(sT1)} offen
    buffer_load_dwordx4 v[20:23], v12, {sr(SRD_X,4)}, {sr(sT1)} offen offset:16
    """)
    ex.append(f"""
    v_lshlrev_b32 v12, 5, v0
    buffer_load_dwordx4 v[24:27], v12, {sr(SRD_GW,4)}, 0 offen
    buffer_load_dwordx4 v[28:31], v12, {sr(SRD_GW,4)}, 0 offen offset:16
    """)
    if opt.get("xpf", 1):
        ex.append(f"""
        s_lshl_b32 {sr(sT0)}, s2, 3
        s_add_u32 {sr(sT0)}, {sr(sT0)}, {sr(sW)}
        s_lshl_b32 {sr(sT0)}, {sr(sT0)}, 11
        buffer_load_dwordx4 v[40:43], {vr(vL16)}, {sr(SRD_X,4)}, {sr(sT0)} offen
        buffer_load_dwordx4 v[44:47], {vr(vL16)}, {sr(SRD_X,4)}, {sr(sT0)} offen offset:1024
        """)
    if opt.get("touch", 1):
        ex.append(f"""
        s_lshl_b32 {sr(sT0)}, {sr(sHP)}, 19
        s_lshl_b32 {sr(sT1)}, {sr(sTB)}, 20
        s_add_u32 {sr(sT1)}, {sr(sT1)}, {WS_O}
        buffer_load_dword v104, off, {sr(SRD_WS,4)}, {sr(sT0)}
        buffer_load_dword v105, off, {sr(SRD_WS,4)}, {sr(sT1)}
        """)
        ex.append(f"""
        s_lshl_b32 {sr(sT0)}, {sr(sTB3)}, 19
        s_add_u32 {sr(sT0)}, {sr(sT0)}, {WS_O}
        s_lshl_b32 {sr(sT1)}, {sr(sTB3)}, 18
        buffer_load_dword v106, off, {sr(SRD_WS,4)}, {sr(sT0)}
        buffer_load_dword v108, off, {sr(SRD_OUT,4)}, {sr(sT1)}
        """)
        ex.append(f"""
        s_mov_b32 {sr(sT0)}, {1024*1024*2 - 4}
        buffer_load_dword v107, off, {sr(SRD_WO,4)}, 0
        buffer_load_dword v109, off, {sr(SRD_WO,4)}, {sr(sT0)}
        """)
    return ex

def dma_unit_static(a, g):
    j, u = divmod(g, 7)
    a(f"s_add_u32 m0, {sr(sW1K)}, {(g % 20) * 8192}")
    if u < 3:
        a(f"s_add_u32 {sr(sT0)}, {sr(sWJ)}, {j * 64 * 6144 + u * 2048}")
        a(f"buffer_load_dwordx4 {vr(vDW)}, {sr(SRD_W,4)}, {sr(sT0)} offen lds")
    else:
        a(f"s_add_u32 {sr(sT0)}, {sr(sXJ)}, {j * 128 + (u - 3) * 131072}")
        a(f"buffer_load_dwordx4 {vr(vDX)}, {sr(SRD_X,4)}, {sr(sT0)} offen lds")

def gate_instrs():
    c = ["v_mov_b32 v12, 0"]
    for i in range(8):
        x, w = 16 + i, 24 + i
        c += [f"v_lshlrev_b32 v13, 16, v{x}", f"v_and_b32 v14, 0xffff0000, v{x}", f"v_lshlrev_b32 v32, 16, v{w}",
              f"v_and_b32 v1, 0xffff0000, v{w}", "v_mul_f32 v13, v13, v32", "v_mul_f32 v14, v14, v1",
              "v_cvt_pk_bf16_f32 v13, v13, v14", "v_lshlrev_b32 v14, 16, v13", "v_and_b32 v13, 0xffff0000, v13",
              "v_add_f32 v12, v12, v14", "v_add_f32 v12, v12, v13"]
    for sh in (1, 2, 4, 8):
        c += [f"s_nop 1\nv_add_f32_dpp v12, v12, v12 row_shr:{sh} row_mask:0xf bank_mask:0xf bound_ctrl:0"]
    c += ["s_nop 1\nv_add_f32_dpp v12, v12, v12 row_bcast:15 row_mask:0xa bank_mask:0xf"]
    c += ["s_nop 1\nv_add_f32_dpp v12, v12, v12 row_bcast:31 row_mask:0xc bank_mask:0xf"]
    c += ["s_nop 1\nv_cvt_pk_bf16_f32 v12, v12, v12", "v_lshlrev_b32 v12, 16, v12", f"v_mul_f32 v12, {hex(f2u(-LOG2E))}, v12",
          "v_exp_f32 v12, v12\ns_nop 0\nv_add_f32 v12, 1.0, v12", "v_rcp_f32 v12, v12\ns_nop 0\nv_cvt_pk_bf16_f32 v12, v12, v12",
          "v_lshlrev_b32 v12, 16, v12", f"v_mov_b32 v13, {WS_G}"]
    st = [f"""s_mov_b32 exec_lo, 0
    s_mov_b32 exec_hi, 0x80000000
    buffer_store_dword v12, v13, {sr(SRD_WS,4)}, {sr(sGOFF)} offen sc1
    s_mov_b64 exec, -1"""]
    return c, st

def frag(set_, name):
    off = {"X0": 0, "X1": 4, "Wq": 8, "Wk": 12, "Wv": 16}[name]
    return FR[set_] + off

def gemm_reads(ks, set_):
    r = []
    r.append(f"ds_read_b128 {vr(frag(set_,'X0'),4)}, {vr(vXA)}")
    for u, nm in enumerate(("Wq", "Wk", "Wv")):
        b = frag(set_, nm)
        r.append(f"ds_read_b64_tr_b16 {vr(b,2)}, {vr(vW0+u)} offset:{ks*2048}")
        r.append(f"ds_read_b64_tr_b16 {vr(b+2,2)}, {vr(vW0+u)} offset:{ks*2048+512}")
        if u == 0:
            r.append(f"ds_read_b128 {vr(frag(set_,'X1'),4)}, {vr(vXA)} offset:4096")
    return r

def gemm_mfmas(set_, first=False):
    m = []
    X0, X1 = frag(set_, "X0"), frag(set_, "X1")
    Wq, Wk, Wv = frag(set_, "Wq"), frag(set_, "Wk"), frag(set_, "Wv")
    def mf(acc, A, B): return f"v_mfma_f32_32x32x16_bf16 {vr(acc,16)}, {vr(A,4)}, {vr(B,4)}, {'0' if first else vr(acc,16)}"
    m.append(mf(ACC + 0, Wq, X0))
    m.append(mf(ACC + 32, Wk, X0))
    m.append(mf(ACC + 64, X0, Wv))
    m.append(mf(ACC + 16, Wq, X1))
    m.append(mf(ACC + 48, Wk, X1))
    m.append(mf(ACC + 80, X1, Wv))
    return m

def wrap_list(dst, src, const, tmp):
    return [f"s_add_u32 {sr(tmp)}, {sr(src)}, {const}", f"s_sub_u32 {dst}, {sr(tmp)}, {RING}", f"s_cselect_b32 {dst}, {sr(tmp)}, {dst}"]

def read_bases_list():
    r = [f"v_add_u32 {vr(vW0)}, {sr(sRING)}, {vr(vWP)}"]
    for u in (1, 2):
        r += wrap_list(sr(sT1), sRING, u * 8192, sT0)
        r.append(f"v_add_u32 {vr(vW0+u)}, {sr(sT1)}, {vr(vWP)}")
    r += [f"s_add_u32 {sr(sT0)}, {sr(sRING)}, {sr(sXQ)}", f"s_sub_u32 {sr(sT1)}, {sr(sT0)}, {RING}",
          f"s_cselect_b32 {sr(sT1)}, {sr(sT0)}, {sr(sT1)}", f"v_add_u32 {vr(vXB)}, {sr(sT1)}, {vr(vXP)}",
          f"v_mov_b32 {vr(vXA)}, {vr(vXB)}"]
    return r

def dma_group(i):
    if OPT.get("g_nodma"): return []
    s = [f"s_add_u32 {sr(sT2)}, {sr(sRINGW)}, {i * 8192}", f"s_sub_u32 m0, {sr(sT2)}, {RING}", f"s_cselect_b32 m0, {sr(sT2)}, m0"]
    if i == 0:
        s.append(f"s_add_u32 {sr(sT3)}, {sr(sXJ)}, {3 * 131072 - 128}")
        s.append(f"buffer_load_dwordx4 {vr(vDX)}, {sr(SRD_X,4)}, {sr(sT3)} offen lds")
    elif i <= 3:
        s.append(f"s_add_u32 {sr(sT3)}, {sr(sWJ)}, {(i - 1) * 2048}")
        s.append(f"buffer_load_dwordx4 {vr(vDW)}, {sr(SRD_W,4)}, {sr(sT3)} offen lds")
    else:
        s.append(f"s_add_u32 {sr(sT3)}, {sr(sXJ)}, {(i - 4) * 131072}")
        s.append(f"buffer_load_dwordx4 {vr(vDX)}, {sr(SRD_X,4)}, {sr(sT3)} offen lds")
    return s

def w_readahead():
    if not OPT.get("wpf", 1): return []
    return [f"buffer_load_dwordx4 v[36:39], {vr(vL16)}, {sr(SRD_W,4)}, {sr(sPF)} offen", f"s_add_u32 {sr(sPF)}, {sr(sPF)}, {1 << 20}"]

def kstep(a, cur, next_ks, gaps_extra, first=False):
    m = gemm_mfmas(cur, first)
    r = gemm_reads(next_ks, cur ^ 1) if next_ks is not None else []
    gaps = [[] for _ in range(6)]
    for i, x in enumerate(r):
        gaps[min(i // 3, 5)].append(x)
    for g in range(6):
        gaps[g] += gaps_extra.get(g, [])
    for i in range(6):
        a(m[i])
        for x in gaps[i]:
            a(x)

def gemm_stage(a, pending, new_batch, vm_wait, first=False, last=False, valu=None, after_bar=None):
    prio = OPT.get("gprio", 1)
    sp = lambda n: [f"s_setprio {n}"] if prio else []
    valu = list(valu or [])
    per = (len(valu) + 2) // 3
    for ks in range(3):
        ex = {}
        mine = [i for i in pending if (i - 2) // 2 == ks]
        if mine:
            ex[2] = dma_group(mine[0])
        if len(mine) > 1:
            ex[4] = dma_group(mine[1])
        chunk = valu[ks * per:(ks + 1) * per]
        n3 = (len(chunk) + 2) // 3
        for k, g in enumerate((1, 3, 5)):
            ex[g] = ex.get(g, []) + chunk[k * n3:(k + 1) * n3]
        ex[0] = sp(2 - ks)
        if ks < 2:
            ex[5] = ex.get(5, []) + [f"v_xor_b32 {vr(vXA)}, {(ks + 2) << 5}, {vr(vXB)}"]
        else:
            upd = [f"s_add_u32 {sr(sRINGW)}, {sr(sRING)}, {sr(sW1K)}", f"s_add_u32 {sr(sXJ)}, {sr(sXJ)}, 128",
                   f"s_add_u32 {sr(sWJ)}, {sr(sWJ)}, {64 * 6144}"] + wrap_list(sr(sRING), sRING, 7 * 8192, sT0)
            ex[3] = ex.get(3, []) + upd
            if not last:
                ex[4] = ex.get(4, []) + read_bases_list()
        a("s_waitcnt lgkmcnt(0)")
        kstep(a, ks & 1, ks + 1, ex, first=(first and ks == 0))
    if OPT.get("stampsg"):
        a("s_waitcnt lgkmcnt(0)")
        gstamp(a, 204)
    if vm_wait is not None:
        a(f"s_waitcnt vmcnt({vm_wait}) lgkmcnt(0)")
    else:
        a("s_waitcnt lgkmcnt(0)")
    if OPT.get("stampsg"): gstamp(a, 205)
    if not OPT.get("g_nobar"): a("s_barrier")
    if OPT.get("stampsg"):
        gstamp(a, 206)
        a("s_add_u32 s87, s87, 1")
    ex = {0: sp(3)}
    if len(new_batch) > 0: ex[2] = dma_group(new_batch[0])
    if len(new_batch) > 1: ex[4] = dma_group(new_batch[1]) + w_readahead()
    if not last:
        ex[5] = [f"v_xor_b32 {vr(vXA)}, {1 << 5}, {vr(vXB)}"]
    if after_bar:
        ex[5] = ex.get(5, []) + after_bar
    kstep(a, 1, None if last else 0, ex)

def gemm(a, opt, extras):
    if OPT.get("stampsg"): a("s_mov_b32 s87, 0")
    a(f"s_add_u32 {sr(sXJ)}, {sr(sXJ)}, {2 * 128}")
    a(f"s_add_u32 {sr(sWJ)}, {sr(sWJ)}, {2 * 64 * 6144}")
    a(f"s_mov_b32 {sr(sRING)}, 0")
    for x in read_bases_list(): a(x)
    if opt.get("stamps_start"): timestamp(a, 4, opt)
    if opt.get("span2") or opt.get("span3"): a("s_memrealtime s[82:83]")
    nw = (6 if opt.get("touch", 1) else 0) + (2 if opt.get("xpf", 1) else 0)
    a(f"s_waitcnt vmcnt(7)")
    if opt.get("stamps_start"): timestamp(a, 5, opt)
    a("s_barrier")
    if opt.get("dbg_span"): dbg_span(a, "g0")
    if opt.get("span3"):
        sk = a.label("sk3")
        a(f"s_memrealtime s[76:77]")
        a(f"s_cmp_eq_u32 s2, {opt['span3']}")
        a(f"s_cbranch_scc0 {sk}")
        a(f"s_cmp_eq_u32 {sr(sW)}, 0")
        a(f"s_cbranch_scc0 {sk}")
        a("s_waitcnt lgkmcnt(0)")
        for reg, off in ((84, 4), (78, 12), (80, 20), (82, 28), (76, 36)):
            a(f"v_mov_b32 v12, s{reg}")
            a(f"s_mov_b32 s93, {off}")
            a("s_mov_b64 exec, 1")
            a(f"buffer_store_dword v12, off, {sr(SRD_DBG,4)}, s93 sc1")
            a("s_mov_b64 exec, -1")
        a(f"{sk}:")
    if opt.get("span2"):
        sk = a.label("sk2")
        a(f"s_memrealtime s[76:77]")
        a(f"s_cmp_eq_u32 {sr(sW)}, 0")
        a(f"s_cbranch_scc0 {sk}")
        a("s_waitcnt lgkmcnt(0)")
        a("s_not_b32 s75, s84")
        for reg, off in ((75, 4), (84, 60), (78, 20), (80, 36), (82, 52), (76, 44)):
            a(f"v_mov_b32 v12, s{reg}")
            a(f"s_mov_b32 s93, {off}")
            a("s_mov_b64 exec, 1")
            a(f"buffer_atomic_umax v12, off, {sr(SRD_DBG,4)}, s93 sc1")
            a("s_mov_b64 exec, -1")
        a(f"{sk}:")
    if opt.get("stamps_start"): timestamp(a, 6, opt)
    for x in gemm_reads(0, 0):
        a(x)
    a(f"v_xor_b32 {vr(vXA)}, {1 << 5}, {vr(vXB)}")
    gemm_stage(a, [], [0, 1], 10 + nw, first=True, valu=extras)
    a(f"s_mov_b32 {sr(sJ)}, 12")
    lab = a.label("gemm")
    a(".p2align 6")
    a(f"{lab}:")
    npf = 1 if opt.get("wpf", 1) else 0
    gemm_stage(a, [2, 3, 4, 5, 6], [0, 1], 6 + npf)
    nc = a.label("nc"); nd = a.label("nd")
    a(f"s_cmp_eq_u32 {sr(sJ)}, {sr(sARRJ)}")
    a(f"s_cbranch_scc0 {nd}")
    a(f"""
    v_mov_b32 v12, 1
    s_mov_b64 exec, 1
    buffer_atomic_add v12, off, {sr(SRD_DBG,4)}, {sr(sCNT)} sc1
    s_mov_b64 exec, -1
    s_nop 3
    """)
    a(f"{nd}:")
    a(f"s_cmp_eq_u32 {sr(sJ)}, {sr(sCHKJ)}")
    a(f"s_cbranch_scc0 {nc}")
    a(f"v_lshlrev_b32 v12, 2, v0")
    a(f"buffer_load_dword {vr(vCHK)}, v12, {sr(SRD_DBG,4)}, 0 offen sc1")
    a(f"{nc}:")
    a(f"s_sub_u32 {sr(sJ)}, {sr(sJ)}, 1")
    a(f"s_cmp_lg_u32 {sr(sJ)}, 0")
    a(f"s_cbranch_scc1 {lab}")
    gc, gs = gate_instrs()
    gemm_stage(a, [2, 3, 4, 5, 6], [0], 6 + npf)
    gemm_stage(a, [], [], 0, valu=gc, after_bar=gs + ["s_nop 3"])
    gemm_stage(a, [], [], None, last=True)
    a("s_setprio 0")
    a("s_nop 15")

def gemm_epilogue(a, opt):
    for tile in (2, 3, 4, 5):
        b = ACC + 16 * tile
        for i in range(8):
            a(f"v_cvt_pk_bf16_f32 v{b+i}, v{b+2*i}, v{b+2*i+1}")
    a(f"""
    s_lshl_b32 {sr(sT1)}, {sr(sHP)}, 1
    s_add_u32 {sr(sT1)}, {sr(sT1)}, {sr(sHH)}
    s_lshl_b32 {sr(sKVSRC)}, {sr(sT1)}, 18
    s_lshl_b32 {sr(sT1)}, {sr(sTB)}, 15
    s_lshl_b32 {sr(sT2)}, {sr(sTQ)}, 13
    s_add_u32 {sr(sT1)}, {sr(sT1)}, {sr(sT2)}
    s_add_u32 {sr(sKVO)}, {sr(sT1)}, {sr(sKVSRC)}
    """)
    if opt.get("half", 1):
        late = a.label("late")
        a(f"s_cmp_lt_u32 {sr(sTQ)}, 2")
        a(f"s_cbranch_scc0 {late}")
        kv_stores(a)
        a(f"{late}:")
    else:
        kv_stores(a)
    a(f"s_mov_b32 {sr(sT2)}, {hex(f2u(QSCALE))}")
    a(f"s_mov_b32 {sr(sT3)}, {hex(f2u(QSCALE))}")
    for tt in range(2):
        b = ACC + 16 * tt
        for i in range(8):
            a(f"v_pk_mul_f32 {vr(b+2*i,2)}, {vr(b+2*i,2)}, {sr(sT2,2)}")
        for i in range(8):
            a(f"v_cvt_pk_bf16_f32 v{QF+8*tt+i}, v{b+2*i}, v{b+2*i+1}")
    kb = ACC + 32
    a("s_nop 1")
    for x in range(2):
        S, Q = SS + 16 * x, QF + 8 * x
        a(f"v_mfma_f32_32x32x16_bf16 {vr(S,16)}, {vr(kb,4)}, {vr(Q,4)}, 0")
        a(f"v_mfma_f32_32x32x16_bf16 {vr(S,16)}, {vr(kb+4,4)}, {vr(Q+4,4)}, {vr(S,16)}")
    a(f"""
    s_lshr_b32 {sr(sT1)}, {sr(sTQ)}, 1
    s_lshl_b32 {sr(sT1)}, {sr(sT1)}, 15
    s_lshl_b32 {sr(sT2)}, {sr(sHH)}, 14
    s_add_u32 {sr(sT1)}, {sr(sT1)}, {sr(sT2)}
    s_and_b32 {sr(sT2)}, {sr(sTQ)}, 1
    s_lshl_b32 {sr(sT2)}, {sr(sT2)}, 13
    s_add_u32 {sr(sT1)}, {sr(sT1)}, {sr(sT2)}
    v_add_u32 v12, {sr(sT1)}, {vr(vL16)}
    """)
    for tt in range(2):
        kb, vb = ACC + 32 + 16 * tt, ACC + 64 + 16 * tt
        a(f"ds_write_b128 v12, {vr(kb,4)} offset:{tt*4096}")
        a(f"ds_write_b128 v12, {vr(kb+4,4)} offset:{tt*4096+1024}")
        a(f"ds_write_b128 v12, {vr(vb,4)} offset:{tt*4096+2048}")
        a(f"ds_write_b128 v12, {vr(vb+4,4)} offset:{tt*4096+3072}")
    if opt.get("dump_q"):
        a(f"""
        s_lshl_b32 {sr(sT1)}, s2, 3
        s_add_u32 {sr(sT1)}, {sr(sT1)}, {sr(sW)}
        s_lshl_b32 {sr(sT1)}, {sr(sT1)}, 12
        s_add_u32 {sr(sT1)}, {sr(sT1)}, {WS_DBG}
        """)
        for i in range(4):
            a(f"buffer_store_dwordx4 {vr(QF+4*i,4)}, {vr(vL16)}, {sr(SRD_WS,4)}, {sr(sT1)} offen offset:{i*1024}")

def smf(L):
    return f"v_smfmac_f32_16x16x64_bf16 {vr(L,4)}, {vr(ONES,4)}, {vr(PP,8)}, {vr(IDX)}"

def attn_unit(a, t, x, hooks, skip_prev=False, c_zero=False):
    S = SS + 16 * x
    Sn = SS + 16 * (x ^ 1)
    xn = xp = x ^ 1
    Qn = QF + 8 * xn
    P0, P1 = PP, PP + 4
    def M(d, A, B, C): return f"v_mfma_f32_32x32x16_bf16 {vr(d,16)}, {vr(A,4)}, {vr(B,4)}, {C}"
    e = lambda i: f"v_exp_f32 v{S+i}, v{S+i}"
    c = lambda i: f"v_cvt_pk_bf16_f32 v{PP+i}, v{S+2*i}, v{S+2*i+1}"
    mf = [M(Sn, KF, Qn, vr(NM + 16 * xn, 16)),
          None if skip_prev else M(OA + 16 * xp, VF + 4, P1, vr(OA + 16 * xp, 16)),
          None if skip_prev else smf(LA + 4 * xp),
          M(Sn, KF + 4, Qn + 4, vr(Sn, 16)),
          M(OA + 16 * x, VF, P0, "0" if c_zero else vr(OA + 16 * x, 16))]
    va = [[e(0), e(1), e(2)], [e(3), e(4), e(5)], [e(6), e(7), c(0), c(1), c(2), c(3)],
          [e(8), e(9), e(10)], [e(11), e(12), e(13), e(14), e(15), c(4), c(5), c(6), c(7)]]
    for g in range(5):
        if mf[g]: a(mf[g])
        for h in hooks.get(g, []):
            a(h)
        for v in va[g]:
            a(v)

def kv_addr(tile, f):
    if tile < 4:
        return vCUR, tile * 4096 + f * 1024
    return vNXT, f * 1024

def rd(dst, tile, f):
    b, o = kv_addr(tile, f)
    return f"ds_read_b128 {vr(dst,4)}, {vr(b)} offset:{o}"

def kv_dma(p, so):
    return f"buffer_load_dwordx4 {vr(vDMA)}, {sr(SRD_WS,4)}, {sr(so)} offen offset:{p*1024} sc1 lds"

def sample_mailbox(a, off_s, lanes):
    sk = a.label("smp")
    a(f"s_cmp_eq_u32 {sr(sW)}, 0")
    a(f"s_cbranch_scc0 {sk}")
    a(f"v_lshlrev_b32 {vr(vPA)}, 2, v0")
    a(f"s_mov_b32 exec_lo, {hex(lanes)}")
    a("s_mov_b32 exec_hi, 0")
    a(f"buffer_load_dword {vr(vPV)}, {vr(vPA)}, {sr(SRD_WS,4)}, {sr(off_s)} offen sc1")
    a("s_mov_b64 exec, -1")
    a("s_nop 3")
    a(f"{sk}:")

def poll_mailbox(a, want_all):
    poll, done = a.label("poll"), a.label("pdone")
    a(f"s_mov_b32 {sr(sT1)}, 400000")
    a(f"s_add_u32 {sr(sT2)}, {sr(sTB)}, 1")
    a(f"s_and_b32 {sr(sT2)}, {sr(sT2)}, 7")
    a(f"s_lshl_b32 {sr(sT2)}, 1, {sr(sT2)}")
    if want_all:
        a(f"s_mov_b32 {sr(sT2)}, {0xffff if OPT.get('half', 1) else 0xff}")
    a("s_mov_b64 exec, 0xffff")
    a(f"{poll}:")
    a("s_waitcnt vmcnt(0)")
    a(f"v_cmp_eq_u32 vcc, 1, {vr(vPV)}")
    a("s_nop 3")
    a(f"s_and_b32 {sr(sT3)}, vcc_lo, {sr(sT2)}")
    a(f"s_cmp_eq_u32 {sr(sT3)}, {sr(sT2)}")
    a(f"s_cbranch_scc1 {done}")
    a(f"s_sub_u32 {sr(sT1)}, {sr(sT1)}, 1")
    a(f"s_cbranch_scc1 {done}")
    a(f"buffer_load_dword {vr(vPV)}, {vr(vPA)}, {sr(SRD_WS,4)}, {sr(sMB)} offen sc1")
    a(f"s_branch {poll}")
    a(f"{done}:")
    a("s_mov_b64 exec, -1")

def publish(a):
    spin, ok = a.label("rdy"), a.label("rdyok")
    a(f"s_mov_b32 {sr(sT1)}, 400000")
    a(f"s_mov_b32 {sr(sT2)}, 0x55555555")
    a(f"v_lshlrev_b32 v12, 2, v0")
    a(f"{spin}:")
    a(f"v_cmp_eq_u32 vcc, 8, {vr(vCHK)}")
    a("s_nop 3")
    a(f"s_and_b32 {sr(sT0)}, vcc_lo, {sr(sT2)}")
    a(f"s_and_b32 {sr(sT3)}, vcc_hi, {sr(sT2)}")
    a(f"s_and_b32 {sr(sT0)}, {sr(sT0)}, {sr(sT3)}")
    a(f"s_cmp_eq_u32 {sr(sT0)}, {sr(sT2)}")
    a(f"s_cbranch_scc1 {ok}")
    a(f"s_sub_u32 {sr(sT1)}, {sr(sT1)}, 1")
    a(f"s_cbranch_scc1 {ok}")
    a(f"buffer_load_dword {vr(vCHK)}, v12, {sr(SRD_DBG,4)}, 0 offen sc1")
    a("s_waitcnt vmcnt(0)")
    a(f"s_branch {spin}")
    a(f"{ok}:")
    a(f"""
    s_lshl_b32 {sr(sT0)}, {sr(sHP)}, 10
    s_lshl_b32 {sr(sT1)}, {sr(sTB)}, 2
    s_add_u32 {sr(sT0)}, {sr(sT0)}, {sr(sT1)}
    s_add_u32 {sr(sT0)}, {sr(sT0)}, {WS_MB}
    v_lshlrev_b32 v12, 7, v0
    v_mov_b32 v13, 1
    s_mov_b64 exec, 0xff
    buffer_store_dword v13, v12, {sr(SRD_WS,4)}, {sr(sT0)} offen sc1
    s_mov_b64 exec, -1
    """)

def publish_b(a):
    a(f"""
    s_lshl_b32 {sr(sT0)}, {sr(sHP)}, 10
    s_lshl_b32 {sr(sT1)}, {sr(sTB)}, 2
    s_add_u32 {sr(sT0)}, {sr(sT0)}, {sr(sT1)}
    s_add_u32 {sr(sT0)}, {sr(sT0)}, {WS_MB + 32}
    v_lshlrev_b32 v12, 7, v0
    v_mov_b32 v13, 1
    s_mov_b64 exec, 0xff
    buffer_store_dword v13, v12, {sr(SRD_WS,4)}, {sr(sT0)} offen sc1
    s_mov_b64 exec, -1
    """)

def kv_stores(a):
    a(f"s_add_u32 {sr(sT2)}, {sr(sKVO)}, 4096")
    for tt in range(2):
        so = sKVO if tt == 0 else sT2
        kb, vb = ACC + 32 + 16 * tt, ACC + 64 + 16 * tt
        a(f"buffer_store_dwordx4 {vr(kb,4)}, {vr(vL16)}, {sr(SRD_WS,4)}, {sr(so)} offen sc1")
        a(f"buffer_store_dwordx4 {vr(kb+4,4)}, {vr(vL16)}, {sr(SRD_WS,4)}, {sr(so)} offen offset:1024 sc1")
        a(f"buffer_store_dwordx4 {vr(vb,4)}, {vr(vL16)}, {sr(SRD_WS,4)}, {sr(so)} offen offset:2048 sc1")
        a(f"buffer_store_dwordx4 {vr(vb+4,4)}, {vr(vL16)}, {sr(SRD_WS,4)}, {sr(so)} offen offset:3072 sc1")

def wo_piece(i, half):
    return [f"s_add_u32 {sr(sT0)}, {sr(sROT)}, {i}", f"s_and_b32 {sr(sT0)}, {sr(sT0)}, 15", f"s_lshl_b32 {sr(sT0)}, {sr(sT0)}, 17",
            f"s_add_u32 {sr(sT0)}, {sr(sT0)}, {sr(sWOFF)}"] + ([f"s_add_u32 {sr(sT0)}, {sr(sT0)}, 16384"] if half else []) + \
           [f"s_add_u32 m0, {sr(sLDSW3)}, {(i % NSLOT3) * 16384 + half * 1024}", "s_nop 0",
            f"buffer_load_dwordx4 {vr(vDW3)}, {sr(SRD_WO,4)}, {sr(sT0)} offen lds"]

def attn_stage(a, opt, kind, s_=None):
    prio = opt.get("prio", 1)
    def sp(n): return [f"s_setprio {n}"] if prio else []
    for t in range(4):
        h0 = {0: [rd(KF, t + 1, 0)], 1: [rd(VF + 4, t, 3)], 2: ["s_waitcnt lgkmcnt(2)"],
              3: [rd(KF + 4, t + 1, 1)], 4: ["s_waitcnt lgkmcnt(2)"]}
        h1 = {0: ["s_waitcnt lgkmcnt(1)"], 1: [], 2: ["s_waitcnt lgkmcnt(0)"], 3: [], 4: [rd(VF, t + 1, 2)]}
        if kind == 1 and t in (0, 2):
            sample_mailbox(a, sMB, 0xffff)
        if t == 0:
            h0[0] += sp(2)
            h0[4] += [f"s_mov_b32 {sr(sNXT)}, {sr(sSLOT)}"]
            h1[1] = [f"s_add_u32 {sr(sSRC)}, {sr(sSRC)}, 16384"]
            h1[3] = [f"s_and_b32 {sr(sSRC)}, {sr(sSRC)}, 0x3ffff"]
        if t == 1:
            h0[0] += sp(1)
            h1[1] = [f"s_add_u32 {sr(sSLOT)}, {sr(sSLOT)}, 32768"]
            h1[3] = [f"s_and_b32 {sr(sSLOT)}, {sr(sSLOT)}, 0x1ffff"]
            if kind == 0:
                h1[4] += ["s_waitcnt vmcnt(0)", "s_barrier"]
            if kind == 3 and s_ == 13:
                h0[2] += wo_piece(8, 0)
                h0[4] += wo_piece(8, 1)
                h1[0] += wo_piece(9, 0)
                h1[2] += wo_piece(9, 1)
            if kind == 1:
                go = a.label("go")
                lanestamp(a, 203, opt, 0)
                half = opt.get("half", 1)
                if half: a("s_waitcnt vmcnt(0)")
                a(f"s_cmp_eq_u32 {sr(sW)}, 0")
                a(f"s_cbranch_scc0 {go}")
                poll_mailbox(a, False)
                a(f"{go}:")
                lanestamp(a, 203, opt, 1)
                a("s_barrier")
                lanestamp(a, 203, opt, 2)
                for st in ((2,) if half else (2, 3)):
                    a(f"""
                    s_lshl_b32 {sr(sT0)}, {sr(sTB)}, 1
                    s_add_u32 {sr(sT0)}, {sr(sT0)}, {st}
                    s_and_b32 {sr(sT0)}, {sr(sT0)}, 15
                    s_lshl_b32 {sr(sOFFS)}, {sr(sT0)}, 14
                    s_add_u32 m0, {sr(sLDSW)}, {st * 32768}
                    s_nop 0
                    """)
                    for p in range(4):
                        a(kv_dma(p, sOFFS))
                if half:
                    nb = a.label("nb")
                    a(f"s_cmp_eq_u32 {sr(sW)}, 0")
                    a(f"s_cbranch_scc0 {nb}")
                    publish_b(a)
                    a(f"{nb}:")
        if t == 2:
            h0[0] += sp(0)
            h1[1] = [f"s_add_u32 m0, {sr(sSLOT)}, {sr(sLDSW)}"]
            h1[3] = [f"s_add_u32 {sr(sJ)}, {sr(sJ)}, 1"]
            if kind == 0:
                h1[4] += ["s_barrier"] + sp(3)
                if opt.get("half", 1):
                    ns = a.label("ns")
                    a(f"s_cmp_ge_u32 {sr(sTQ)}, 2")
                    a(f"s_cbranch_scc0 {ns}")
                    kv_stores(a)
                    a(f"{ns}:")
                np_ = a.label("np")
                a(f"s_cmp_eq_u32 {sr(sW)}, 0")
                a(f"s_cbranch_scc0 {np_}")
                publish(a)
                a(f"{np_}:")
            elif kind == 3 and s_ == 15:
                h1[4] += ["s_barrier"] + sp(3)
            elif kind == 3:
                h1[4] += ["s_waitcnt vmcnt(8)", "s_barrier"] + sp(3)
            elif kind != 1:
                h1[4] += ["s_waitcnt vmcnt(4)", "s_barrier"] + sp(3)
        if t == 3:
            if kind == 3:
                q = s_ - 13
                h0[2] += wo_piece(2 * q, 0)
                h0[4] += wo_piece(2 * q, 1)
                h1[1] = wo_piece(2 * q + 1, 0)
                h1[3] = wo_piece(2 * q + 1, 1)
            elif kind != 0:
                h0[2] += [kv_dma(0, sSRC)]
                h0[4] += [kv_dma(1, sSRC)]
                h1[1] = [kv_dma(2, sSRC)]
                h1[3] = [kv_dma(3, sSRC)]
            if kind == 1:
                go = a.label("go")
                a(f"s_cmp_eq_u32 {sr(sW)}, 0")
                a(f"s_cbranch_scc0 {go}")
                poll_mailbox(a, True)
                a(f"{go}:")
                if opt.get("half", 1):
                    a("s_waitcnt vmcnt(0)")
                    a("s_barrier")
                    a(f"""
                    s_lshl_b32 {sr(sT0)}, {sr(sTB)}, 1
                    s_add_u32 {sr(sT0)}, {sr(sT0)}, 3
                    s_and_b32 {sr(sT0)}, {sr(sT0)}, 15
                    s_lshl_b32 {sr(sOFFS)}, {sr(sT0)}, 14
                    s_add_u32 m0, {sr(sLDSW)}, {3 * 32768}
                    s_nop 0
                    """)
                    for p in range(4):
                        a(kv_dma(p, sOFFS))
                    a(f"s_add_u32 m0, {sr(sSLOT)}, {sr(sLDSW)}")
                else:
                    a("s_waitcnt vmcnt(4)")
                    a("s_barrier")
                for x in sp(3): a(x)
        first = kind == 0 and t == 0
        attn_unit(a, t, 0, h0, skip_prev=first, c_zero=first)
        attn_unit(a, t, 1, h1, c_zero=first)
    a(f"v_mov_b32 {vr(vCUR)}, {vr(vNXT)}")
    a(f"v_add_u32 {vr(vNXT)}, {sr(sNXT)}, {vr(vKVB)}")

def attention(a, opt):
    a(f"""
    v_bfe_u32 v12, v0, 2, 1
    v_and_b32 v13, 3, v0
    v_mov_b32 v14, 0x3f803f80
    v_cmp_gt_u32 vcc, 2, v13
    s_nop 1
    v_cndmask_b32 v14, 0, v14, vcc
    v_cmp_eq_u32 vcc, 0, v12
    s_nop 1
    v_cndmask_b32 v{ONES}, 0, v14, vcc
    v_cndmask_b32 v{ONES+2}, v14, 0, vcc
    v_mov_b32 v{ONES+1}, v{ONES}
    v_mov_b32 v{ONES+3}, v{ONES+2}
    v_mov_b32 v14, 0x4444
    v_mov_b32 v12, 0xeeee
    v_cmp_eq_u32 vcc, 1, v13
    s_nop 1
    v_cndmask_b32 v{IDX}, v14, v12, vcc
    s_lshl_b32 {sr(sT0)}, {sr(sHH)}, 14
    v_add_u32 {vr(vKVB)}, {sr(sT0)}, {vr(vL16)}
    v_mov_b32 {vr(vCUR)}, {vr(vKVB)}
    v_add_u32 {vr(vNXT)}, 32768, {vr(vKVB)}
    s_lshl_b32 {sr(sT1)}, {sr(sTQ)}, 12
    s_add_u32 {sr(sLDSW)}, {sr(sT0)}, {sr(sT1)}
    s_add_u32 {sr(sKVSRC)}, {sr(sKVSRC)}, {sr(sT1)}
    v_add_u32 {vr(vDMA)}, {sr(sKVSRC)}, {vr(vL16)}
    s_lshl_b32 {sr(sSRC)}, {sr(sTB)}, 1
    s_add_u32 {sr(sSRC)}, {sr(sSRC)}, 2
    s_and_b32 {sr(sSRC)}, {sr(sSRC)}, 15
    s_lshl_b32 {sr(sSRC)}, {sr(sSRC)}, 14
    s_mov_b32 {sr(sSLOT)}, {2 * 32768}
    s_mov_b32 {sr(sJ)}, 0
    v_lshrrev_b32 v12, 3, v0
    v_and_b32 v13, 7, v0
    v_bfe_u32 v14, v12, 1, 1
    v_lshlrev_b32 v14, 2, v14
    v_xor_b32 v13, v13, v14
    s_lshl_b32 {sr(sT0)}, {sr(sTQ)}, 4
    v_add_u32 v12, {sr(sT0)}, v12
    v_lshlrev_b32 {vr(vDW3)}, 11, v12
    v_lshl_add_u32 {vr(vDW3)}, v13, 4, {vr(vDW3)}
    s_lshl_b32 {sr(sWOFF)}, {sr(sCB)}, 7
    s_lshl_b32 {sr(sLDSW3)}, {sr(sHH)}, 13
    s_lshl_b32 {sr(sT0)}, {sr(sTQ)}, 11
    s_add_u32 {sr(sLDSW3)}, {sr(sLDSW3)}, {sr(sT0)}
    """)
    for i in range(8): a(f"v_mov_b32 v{LA+i}, 0")
    for x in range(2):
        S = SS + 16 * x
        a(f"v_max3_f32 v12, v{S}, v{S+1}, v{S+2}")
        for i in range(3, 15, 2):
            a(f"v_max3_f32 v12, v12, v{S+i}, v{S+i+1}")
        a(f"v_max_f32 v12, v12, v{S+15}")
        a(f"""
        v_mov_b32 v13, v12
        s_nop 1
        v_permlane32_swap_b32 v13, v12
        s_nop 1
        v_max_f32 v12, v12, v13
        v_sub_f32 v12, 0, v12
        """)
        for i in range(16):
            a(f"v_mov_b32 v{NM+16*x+i}, v12")
    a("s_waitcnt lgkmcnt(0)")
    a("s_barrier")
    a(rd(KF, 0, 0)); a(rd(KF + 4, 0, 1)); a(rd(VF, 0, 2))
    a("s_waitcnt lgkmcnt(1)")
    a(f"v_mfma_f32_32x32x16_bf16 {vr(SS,16)}, {vr(KF,4)}, {vr(QF,4)}, {vr(NM,16)}")
    a(f"v_mfma_f32_32x32x16_bf16 {vr(SS,16)}, {vr(KF+4,4)}, {vr(QF+4,4)}, {vr(SS,16)}")
    lanestamp(a, 203, opt, 3)
    a("s_waitcnt lgkmcnt(0)")
    a("s_nop 15")
    attn_stage(a, opt, 0)
    lanestamp(a, 202, opt, 0)
    attn_stage(a, opt, 1)
    lanestamp(a, 202, opt, 1)
    loop = a.label("attn")
    a(".p2align 6")
    a(f"{loop}:")
    attn_stage(a, opt, 2)
    lanestamp(a, 202, opt, "m")
    a(f"s_cmp_lt_u32 {sr(sJ)}, 13")
    a(f"s_cbranch_scc1 {loop}")
    for s_ in (13, 14, 15):
        attn_stage(a, opt, 3, s_)
        lanestamp(a, 202, opt, s_)
    a("s_setprio 0")
    a("s_nop 1")
    a(f"v_mfma_f32_32x32x16_bf16 {vr(OA+16,16)}, {vr(VF+4,4)}, {vr(PP+4,4)}, {vr(OA+16,16)}")
    a(smf(LA + 4))
    a("s_waitcnt lgkmcnt(0)")

def attn_epilogue(a, opt):
    a(f"""
    s_lshl_b32 {sr(sT0)}, {sr(sTB)}, 3
    s_lshl_b32 {sr(sT1)}, {sr(sTQ)}, 1
    s_add_u32 {sr(sT0)}, {sr(sT0)}, {sr(sT1)}
    s_lshl_b32 {sr(sT0)}, {sr(sT0)}, 17
    s_lshl_b32 {sr(sT1)}, {sr(sHP)}, 1
    s_add_u32 {sr(sT1)}, {sr(sT1)}, {sr(sHH)}
    s_lshl_b32 {sr(sT1)}, {sr(sT1)}, 11
    s_add_u32 {sr(sT0)}, {sr(sT0)}, {sr(sT1)}
    s_add_u32 {sr(sOOFF)}, {sr(sT0)}, {WS_O}
    s_mov_b32 {sr(sT2)}, {hex(f2u(2.0**24))}
    s_nop 7
    """)
    ok = a.label("ok")
    a("v_mov_b32 v12, 0")
    a("v_mov_b32 v13, 0")
    a(f"v_add_f32 v{LA}, v{LA}, v{LA+1}")
    a(f"v_add_f32 v{LA+4}, v{LA+4}, v{LA+5}")
    for i in range(16):
        a(f"v_pk_fma_f32 v[12:13], {vr(OA+2*i,2)}, 0, v[12:13] op_sel_hi:[1,0,1]")
    a(f"v_cmp_nle_f32 {sr(sM,2)}, v{LA}, {sr(sT2)}")
    a(f"v_cmp_nle_f32 {sr(sM2,2)}, v{LA+4}, {sr(sT2)}")
    a("v_cmp_u_f32 vcc, v12, v13")
    a(f"s_or_b64 {sr(sM,2)}, {sr(sM,2)}, {sr(sM2,2)}")
    a(f"s_or_b64 {sr(sM,2)}, {sr(sM,2)}, vcc")
    if opt.get("force_fallback"):
        a(f"s_mov_b64 {sr(sM,2)}, -1")
    a(f"s_cmp_eq_u64 {sr(sM,2)}, 0")
    a(f"s_cbranch_scc1 {ok}")
    fallback(a, opt)
    a(f"{ok}:")
    a(f"v_rcp_f32 v12, v{LA}")
    a(f"v_rcp_f32 v14, v{LA+4}")
    for x in range(2):
        r = (12, 14)[x]
        a(f"v_mov_b32 v{r+1}, v{r}" if x == 1 else f"v_mov_b32 v13, v12")
        b = OA + 16 * x
        for i in range(8):
            a(f"v_pk_mul_f32 {vr(b+2*i,2)}, {vr(b+2*i,2)}, {vr(r,2)}")
        for i in range(8):
            a(f"v_cvt_pk_bf16_f32 v{b+i}, v{b+2*i}, v{b+2*i+1}")
        if x == 1:
            a(f"s_add_u32 {sr(sOOFF)}, {sr(sOOFF)}, 131072")
        a(f"buffer_store_dwordx4 {vr(b,4)}, {vr(vL16)}, {sr(SRD_WS,4)}, {sr(sOOFF)} offen sc1")
        a(f"buffer_store_dwordx4 {vr(b+4,4)}, {vr(vL16)}, {sr(SRD_WS,4)}, {sr(sOOFF)} offen offset:1024 sc1")

def phase3(a, opt):
    vm = VmTracker()
    ACC3, AF, OF, DEPTH, NSLOT = 16, 48, 72, opt.get("depth", 16), NSLOT3
    vRD = [7, 8, 9, 11, 4, 5]
    vG, vOUT = 14, 13
    sample_mailbox(a, sMB2, 0xffffffff)
    a("s_waitcnt vmcnt(0)")
    a("s_barrier")
    timestamp(a, 4, opt)
    np_ = a.label("np3")
    a(f"s_cmp_eq_u32 {sr(sW)}, 0")
    a(f"s_cbranch_scc0 {np_}")
    a(f"""
    s_lshl_b32 {sr(sT0)}, {sr(sTB)}, 12
    s_lshl_b32 {sr(sT1)}, {sr(sHP)}, 2
    s_add_u32 {sr(sT0)}, {sr(sT0)}, {sr(sT1)}
    s_add_u32 {sr(sT0)}, {sr(sT0)}, {WS_MB2}
    v_lshlrev_b32 v12, 7, v0
    v_mov_b32 v15, 1
    s_mov_b32 exec_lo, -1
    s_mov_b32 exec_hi, 0
    buffer_store_dword v15, v12, {sr(SRD_WS,4)}, {sr(sT0)} offen sc1
    s_mov_b64 exec, -1
    """)
    poll = a.label("poll3"); done = a.label("pd3")
    a(f"""
    s_mov_b32 {sr(sT1)}, 400000
    s_lshr_b32 {sr(sT2)}, {sr(sTB3)}, 1
    s_cmp_eq_u32 {sr(sT2)}, {sr(sTB)}
    s_cselect_b32 {sr(sT2)}, 1, 0
    s_lshl_b32 {sr(sT2)}, {sr(sT2)}, {sr(sHP)}
    s_mov_b32 exec_lo, -1
    s_mov_b32 exec_hi, 0
    """)
    a(f"{poll}:")
    a(f"v_cmp_eq_u32 vcc, 1, {vr(vPV)}")
    a("s_nop 3")
    a(f"s_or_b32 {sr(sT3)}, vcc_lo, {sr(sT2)}")
    a(f"s_cmp_eq_u32 {sr(sT3)}, -1")
    a(f"s_cbranch_scc1 {done}")
    a(f"s_sub_u32 {sr(sT1)}, {sr(sT1)}, 1")
    a(f"s_cbranch_scc1 {done}")
    a(f"buffer_load_dword {vr(vPV)}, {vr(vPA)}, {sr(SRD_WS,4)}, {sr(sMB2)} offen sc1")
    a("s_waitcnt vmcnt(0)")
    a(f"s_branch {poll}")
    a(f"{done}:")
    a("s_mov_b64 exec, -1")
    a(f"{np_}:")
    def wdma(i):
        for half in range(2):
            for x in wo_piece(i, half): a(x)
            vm.issue(("w", i))
    wdma(6); wdma(7)
    a(f"""
    v_and_b32 v12, 31, v0
    s_lshl_b32 {sr(sT0)}, {sr(sTB3)}, 7
    s_lshl_b32 {sr(sT2)}, {sr(sTQ)}, 5
    s_add_u32 {sr(sT0)}, {sr(sT0)}, {sr(sT2)}
    v_add_u32 v12, {sr(sT0)}, v12                  ; token
    v_lshlrev_b32 v3, 2, v12
    v_lshrrev_b32 {vr(vG)}, 5, v0                  ; h
    v_lshlrev_b32 {vr(vOUT)}, 11, v12
    v_lshl_add_u32 {vr(vOUT)}, {vr(vG)}, 4, {vr(vOUT)}
    v_bfe_u32 v15, v0, 2, 2                        ; r
    v_lshl_add_u32 v12, {vr(vG)}, 2, v15           ; 4h + r
    v_lshlrev_b32 v2, 7, v12
    v_and_b32 v12, 1, v0                           ; h'
    v_bfe_u32 v1, v0, 1, 1                         ; a
    v_bfe_u32 v5, v0, 4, 1                         ; g
    v_lshl_add_u32 v12, v5, 1, v12                 ; chunk16 = 2g + h'
    v_lshrrev_b32 v15, 1, v15
    v_lshlrev_b32 v15, 2, v15
    v_xor_b32 v12, v12, v15
    v_lshl_add_u32 v2, v12, 4, v2
    v_lshl_add_u32 v2, v1, 3, v2
    s_lshl_b32 {sr(sT0)}, {sr(sHH)}, 13
    v_add_u32 v{vRD[0]}, {sr(sT0)}, v2
    v_xor_b32 v{vRD[1]}, 64, v{vRD[0]}
    v_add_u32 v{vRD[2]}, 0x10000, v{vRD[0]}
    v_add_u32 v{vRD[3]}, 0x10000, v{vRD[1]}
    v_add_u32 v{vRD[4]}, 0x20000, v{vRD[0]}
    v_add_u32 v{vRD[5]}, 0x20000, v{vRD[1]}
    s_lshl_b32 {sr(sT0)}, {sr(sTB3)}, 2
    s_add_u32 {sr(sT0)}, {sr(sT0)}, {sr(sTQ)}
    s_lshl_b32 {sr(sAOFF)}, {sr(sT0)}, 17
    s_lshl_b32 {sr(sT1)}, {sr(sHH)}, 16
    s_add_u32 {sr(sAOFF)}, {sr(sAOFF)}, {sr(sT1)}
    s_add_u32 {sr(sAOFF)}, {sr(sAOFF)}, {WS_O}
    """)
    a("s_barrier")
    timestamp(a, 5, opt)
    if opt.get("dbg_span"): dbg_span(a, "e3")
    def oload(kk):
        d = kk % DEPTH
        if kk % 4 == 0:
            a(f"s_add_u32 {sr(sT1)}, {sr(sROT)}, {kk // 4}")
            a(f"s_and_b32 {sr(sT1)}, {sr(sT1)}, 15")
            a(f"s_lshl_b32 {sr(sT1)}, {sr(sT1)}, 12")
            a(f"s_add_u32 {sr(sT1)}, {sr(sT1)}, {sr(sAOFF)}")
        if opt.get("p3_noload") and kk >= DEPTH: return
        sc = "" if opt.get("p3_plain") else " sc1"
        a(f"buffer_load_dwordx4 {vr(OF+4*d,4)}, {vr(vL16)}, {sr(SRD_WS,4)}, {sr(sT1)} offen offset:{(kk%4)*1024}{sc}")
        vm.issue(("o", kk))
    for kk in range(DEPTH): oload(kk)
    a(f"s_mov_b32 {sr(sT2)}, {WS_G}")
    a(f"buffer_load_dword {vr(vG)}, v3, {sr(SRD_WS,4)}, {sr(sT2)} offen sc1")
    vm.issue(("g", 0))
    def wreads(st, ks, set_):
        r = []
        slot = st % NSLOT
        win, off = divmod(slot * 16384, 65536)
        for ct in range(2):
            base = AF + 8 * set_ + 4 * ct
            reg = vRD[2 * win + ct]
            r.append(f"ds_read_b64_tr_b16 {vr(base,2)}, {vr(reg)} offset:{off + ks*2048}")
            r.append(f"ds_read_b64_tr_b16 {vr(base+2,2)}, {vr(reg)} offset:{off + ks*2048+1024}")
        return r
    def wr(kk): return wreads(kk // 4, kk % 4, kk % 3)
    for x in wr(0) + wr(1): a(x)
    pend = []
    for st in range(16):
        for ks in range(4):
            kk = 4 * st + ks
            d = kk % DEPTH
            cur = kk % 3
            bar = ks == 2 and st in (5, 9)
            if bar:
                need = ("w", 7) if st == 5 else ("w", 15)
                n = vm.wait_count(lambda t: t in (need, ("o", kk)))
                a(f"s_waitcnt vmcnt({n}) lgkmcnt(0)")
                a("s_barrier")
                if st == 5:
                    pend = [(i, h) for i in range(10, 16) for h in range(2)]
            else:
                n = vm.wait_count(lambda t: t == ("o", kk))
                a(f"s_waitcnt vmcnt({n}) lgkmcnt({4 if kk < 63 else 0})")
            nxt = wr(kk + 2) if kk + 2 < 64 else []
            for ct in range(2):
                c = "0" if kk == 0 else vr(ACC3+16*ct,16)
                a(f"v_mfma_f32_32x32x16_bf16 {vr(ACC3+16*ct,16)}, {vr(AF+8*cur+4*ct,4)}, {vr(OF+4*d,4)}, {c}")
                for x in nxt[2*ct:2*ct+2]: a(x)
            if kk + DEPTH < 64:
                oload(kk + DEPTH)
            for i, h in pend[:2]:
                if opt.get("p3_nowo"): continue
                for x in wo_piece(i, h): a(x)
                vm.issue(("w", i))
            pend = pend[2:]
    timestamp(a, 6, opt)
    if opt.get("fullrow", 1):
        XA = 6 * 16384
        a(f"""
        v_sub_f32 v2, 1.0, {vr(vG)}
        v_cvt_pk_bf16_f32 v2, v2, v2
        v_lshlrev_b32 v2, 16, v2
        s_cmp_eq_u32 {sr(sHH)}, 0
        s_cselect_b64 vcc, -1, 0
        v_and_b32 v12, 31, v0                          ; t
        v_lshrrev_b32 v1, 5, v0                        ; h'
        v_cndmask_b32 v60, v2, {vr(vG)}, vcc
        v_and_b32 v3, 7, v12
        v_xor_b32 v1, v1, v3
        v_mov_b32 v61, v60
        s_lshl_b32 {sr(sT0)}, {sr(sHH)}, 14
        s_lshl_b32 {sr(sT1)}, {sr(sTQ)}, 12
        s_add_u32 {sr(sT0)}, {sr(sT0)}, {sr(sT1)}
        s_add_u32 {sr(sT0)}, {sr(sT0)}, {XA}
        v_lshlrev_b32 v12, 7, v12
        v_lshl_add_u32 v12, v1, 4, v12
        v_add_u32 v12, {sr(sT0)}, v12
        v_xor_b32 v56, 32, v12
        v_xor_b32 v57, 64, v12
        v_xor_b32 v58, 96, v12
        """)
        for ct in range(2):
            b = ACC3 + 16 * ct
            for i in range(8):
                a(f"v_pk_mul_f32 {vr(b+2*i,2)}, {vr(b+2*i,2)}, v[60:61]")
            for i in range(8):
                a(f"v_cvt_pk_bf16_f32 v{b+i}, v{b+2*i}, v{b+2*i+1}")
            a(f"ds_write_b128 v{12 if ct == 0 else 57}, {vr(b,4)}")
            a(f"ds_write_b128 v{56 if ct == 0 else 58}, {vr(b+4,4)}")
        a(f"""
        v_lshrrev_b32 v1, 3, v0
        v_and_b32 v3, 7, v0
        v_xor_b32 v2, v3, v1
        s_lshl_b32 {sr(sT0)}, {sr(sW)}, 4
        v_add_u32 v1, {sr(sT0)}, v1                    ; row (p = 0)
        v_lshlrev_b32 v12, 7, v1
        v_lshl_add_u32 v12, v2, 4, v12
        v_add_u32 v12, {XA}, v12
        s_lshl_b32 {sr(sT0)}, {sr(sTB3)}, 7
        v_add_u32 v1, {sr(sT0)}, v1                    ; token
        v_lshlrev_b32 {vr(vOUT)}, 11, v1
        v_lshl_add_u32 {vr(vOUT)}, v3, 4, {vr(vOUT)}
        s_lshl_b32 {sr(sT0)}, {sr(sCB)}, 7
        s_add_u32 {sr(sT1)}, {sr(sT0)}, {8 * 2048}
        s_waitcnt lgkmcnt(0)
        s_barrier
        ds_read_b128 v[16:19], v12
        ds_read_b128 v[20:23], v12 offset:16384
        ds_read_b128 v[24:27], v12 offset:1024
        ds_read_b128 v[28:31], v12 offset:{16384 + 1024}
        """)
        for p_ in range(2):
            a(f"s_waitcnt lgkmcnt({2 if p_ == 0 else 0})")
            A, B, O = 16 + 8 * p_, 20 + 8 * p_, 32 + 4 * p_
            for i in range(4):
                a(f"v_lshlrev_b32 v48, 16, v{A+i}")
                a(f"v_and_b32 v49, 0xffff0000, v{A+i}")
                a(f"v_lshlrev_b32 v50, 16, v{B+i}")
                a(f"v_and_b32 v51, 0xffff0000, v{B+i}")
                a(f"v_pk_add_f32 v[48:49], v[48:49], v[50:51]")
                a(f"v_cvt_pk_bf16_f32 v{O+i}, v48, v49")
            a(f"buffer_store_dwordx4 {vr(O,4)}, {vr(vOUT)}, {sr(SRD_OUT,4)}, {sr(sT0 if p_ == 0 else sT1)} offen {opt.get('outflag', '')}")
        return
    XA = 6 * 16384
    a(f"""
    s_lshl_b32 {sr(sT0)}, {sr(sTQ)}, 12
    s_lshl_b32 {sr(sT1)}, {sr(sHH)}, 11
    s_add_u32 {sr(sT2)}, {sr(sT0)}, {sr(sT1)}
    s_xor_b32 {sr(sT1)}, {sr(sT1)}, 2048
    s_add_u32 {sr(sT3)}, {sr(sT0)}, {sr(sT1)}
    s_add_u32 {sr(sT2)}, {sr(sT2)}, {XA}
    s_add_u32 {sr(sT3)}, {sr(sT3)}, {XA}
    v_add_u32 v12, {sr(sT2)}, {vr(vL16)}
    v_add_u32 v1, {sr(sT3)}, {vr(vL16)}
    v_sub_f32 v2, 1.0, {vr(vG)}
    v_cvt_pk_bf16_f32 v2, v2, v2
    v_lshlrev_b32 v2, 16, v2
    s_lshl_b32 {sr(sT0)}, {sr(sCB)}, 7
    s_lshl_b32 {sr(sT1)}, {sr(sHH)}, 6
    s_add_u32 {sr(sT0)}, {sr(sT0)}, {sr(sT1)}
    """)
    brb, fin = a.label("brb"), a.label("fin")
    a(f"s_cmp_eq_u32 {sr(sHH)}, 0")
    a(f"s_cbranch_scc0 {brb}")
    for br in range(2):
        K, S_ = ACC3 + 16 * br, ACC3 + 16 * (br ^ 1)
        own, rcv = (vG, 2) if br == 0 else (2, vG)
        a(f"v_mov_b32 v60, v{own}\nv_mov_b32 v61, v{own}\nv_mov_b32 v62, v{rcv}\nv_mov_b32 v63, v{rcv}")
        for i in range(8):
            a(f"v_cvt_pk_bf16_f32 v{48+i}, v{S_+2*i}, v{S_+2*i+1}")
        a("ds_write_b128 v12, v[48:51]")
        a("ds_write_b128 v12, v[52:55] offset:1024")
        a("s_waitcnt lgkmcnt(0)")
        a("s_barrier")
        a("ds_read_b128 v[48:51], v1")
        a("ds_read_b128 v[52:55], v1 offset:1024")
        for i in range(8):
            if i == 0: a("s_waitcnt lgkmcnt(1)")
            if i == 4: a("s_waitcnt lgkmcnt(0)")
            a(f"v_lshlrev_b32 v56, 16, v{48+i}")
            a(f"v_and_b32 v57, 0xffff0000, v{48+i}")
            a(f"v_pk_mul_f32 v[56:57], v[56:57], v[62:63]")
            a(f"v_pk_fma_f32 v[56:57], {vr(K+2*i,2)}, v[60:61], v[56:57]")
            if opt.get("perturb") and br == 0 and i == 0:
                a(f"s_cmp_eq_u32 s2, 0")
                a(f"s_cselect_b32 {sr(sT1)}, {hex(f2u(opt['perturb']))}, 0")
                a(f"s_cmp_eq_u32 {sr(sW)}, 0")
                a(f"s_cselect_b32 {sr(sT1)}, {sr(sT1)}, 0")
                a(f"v_mov_b32 v58, {sr(sT1)}")
                a(f"v_cmp_eq_u32 vcc, 0, v0")
                a("s_nop 1")
                a(f"v_cndmask_b32 v58, 0, v58, vcc")
                a(f"v_add_f32 v56, v56, v58")
            a(f"v_cvt_pk_bf16_f32 v{K+i}, v56, v57")
            if i == 3:
                a(f"buffer_store_dwordx4 {vr(K,4)}, {vr(vOUT)}, {sr(SRD_OUT,4)}, {sr(sT0)} offen {opt.get('outflag', '')}")
        a(f"buffer_store_dwordx4 {vr(K+4,4)}, {vr(vOUT)}, {sr(SRD_OUT,4)}, {sr(sT0)} offen offset:32 {opt.get('outflag', '')}")
        if br == 0:
            a(f"s_branch {fin}")
            a(f"{brb}:")
    a(f"{fin}:")

def fallback(a, opt):
    MX = NM
    a(f"s_lshl_b32 {sr(sT0)}, {sr(sHP)}, 1")
    a(f"s_add_u32 {sr(sT0)}, {sr(sT0)}, {sr(sHH)}")
    a(f"s_lshl_b32 {sr(sBLK)}, {sr(sT0)}, 18")
    for i in range(32): a(f"v_mov_b32 v{OA+i}, 0")
    for i in range(8): a(f"v_mov_b32 v{LA+i}, 0")
    a(f"v_mov_b32 v{MX}, 0xff800000")
    a(f"v_mov_b32 v{MX+16}, 0xff800000")
    a(f"s_mov_b32 {sr(sJ)}, 0")
    loop = a.label("fb")
    a(f"{loop}:")
    a(f"buffer_load_dwordx4 {vr(KF,4)}, {vr(vL16)}, {sr(SRD_WS,4)}, {sr(sBLK)} offen sc1")
    a(f"buffer_load_dwordx4 {vr(KF+4,4)}, {vr(vL16)}, {sr(SRD_WS,4)}, {sr(sBLK)} offen offset:1024 sc1")
    a(f"buffer_load_dwordx4 {vr(VF,4)}, {vr(vL16)}, {sr(SRD_WS,4)}, {sr(sBLK)} offen offset:2048 sc1")
    a(f"buffer_load_dwordx4 {vr(VF+4,4)}, {vr(vL16)}, {sr(SRD_WS,4)}, {sr(sBLK)} offen offset:3072 sc1")
    a("s_waitcnt vmcnt(0)")
    for x in range(2):
        S, Q, O, L, mx = SS, QF + 8 * x, OA + 16 * x, LA + 4 * x, MX + 16 * x
        a(f"v_mfma_f32_32x32x16_bf16 {vr(S,16)}, {vr(KF,4)}, {vr(Q,4)}, 0")
        a(f"v_mfma_f32_32x32x16_bf16 {vr(S,16)}, {vr(KF+4,4)}, {vr(Q+4,4)}, {vr(S,16)}")
        a("s_nop 15")
        a(f"v_max3_f32 v12, v{S}, v{S+1}, v{S+2}")
        for i in range(3, 15, 2):
            a(f"v_max3_f32 v12, v12, v{S+i}, v{S+i+1}")
        a(f"v_max_f32 v12, v12, v{S+15}")
        a(f"""
        v_mov_b32 v13, v12
        s_nop 1
        v_permlane32_swap_b32 v13, v12
        s_nop 1
        v_max3_f32 v12, v12, v13, v{mx}
        v_sub_f32 v13, v{mx}, v12
        v_cmp_eq_f32 vcc, v{mx}, v12
        v_exp_f32 v13, v13
        s_nop 1
        v_cndmask_b32 v13, v13, 1.0, vcc
        v_mov_b32 v{mx}, v12
        """)
        for i in range(16):
            a(f"v_mul_f32 v{O+i}, v13, v{O+i}")
        for i in range(4):
            a(f"v_mul_f32 v{L+i}, v13, v{L+i}")
        for i in range(16):
            a(f"v_sub_f32 v{S+i}, v{S+i}, v12")
        for i in range(16):
            a(f"v_exp_f32 v{S+i}, v{S+i}")
        a("s_nop 0")
        for i in range(8):
            a(f"v_cvt_pk_bf16_f32 v{PP+i}, v{S+2*i}, v{S+2*i+1}")
        a("s_nop 1")
        a(f"v_mfma_f32_32x32x16_bf16 {vr(O,16)}, {vr(VF,4)}, {vr(PP,4)}, {vr(O,16)}")
        a(f"v_mfma_f32_32x32x16_bf16 {vr(O,16)}, {vr(VF+4,4)}, {vr(PP+4,4)}, {vr(O,16)}")
        a(smf(L))
        a("s_nop 15")
    a(f"s_add_u32 {sr(sBLK)}, {sr(sBLK)}, 4096")
    a(f"s_add_u32 {sr(sJ)}, {sr(sJ)}, 1")
    a(f"s_cmp_lt_u32 {sr(sJ)}, 64")
    a(f"s_cbranch_scc1 {loop}")
    a(f"v_add_f32 v{LA}, v{LA}, v{LA+1}")
    a(f"v_add_f32 v{LA+4}, v{LA+4}, v{LA+5}")

def gstamp(a, reg):
    a("s_memtime s[70:71]")
    a("s_waitcnt lgkmcnt(0)")
    a("s_mov_b32 s69, m0")
    a("s_mov_b32 m0, s87")
    a(f"v_writelane_b32 v{reg-100}, s70, m0")
    a("s_mov_b32 m0, s69")

def lanestamp(a, reg, opt, lane=None):
    if not opt.get("stamps2"):
        return
    a("s_memtime s[70:71]")
    a("s_waitcnt lgkmcnt(0)")
    if lane == "m":
        a(f"s_mov_b32 s69, m0")
        a(f"s_sub_u32 m0, {sr(sJ)}, 1")
        a(f"v_writelane_b32 v{reg}, s70, m0")
        a(f"s_mov_b32 m0, s69")
    elif lane is None:
        a(f"s_mov_b32 s69, m0")
        a(f"s_mov_b32 m0, {sr(sJ)}")
        a(f"v_writelane_b32 v{reg}, s70, m0")
        a(f"s_mov_b32 m0, s69")
    else:
        a(f"v_writelane_b32 v{reg}, s70, {lane}")

def timestamp(a, idx, opt):
    if not opt.get("stamps"):
        return
    a(f"s_memtime s[70:71]")
    a(f"s_memrealtime s[92:93]")
    a("s_waitcnt lgkmcnt(0)")
    a(f"s_mov_b32 s{72+idx}, s70")
    a(f"s_mov_b32 s{80+idx}, s92")

def stamps_out(a, n, opt):
    if opt.get("stampsg"):
        a(f"""
        s_lshl_b32 {sr(sT1)}, s2, 3
        s_add_u32 {sr(sT1)}, {sr(sT1)}, {sr(sW)}
        s_lshl_b32 {sr(sT1)}, {sr(sT1)}, 10
        s_add_u32 {sr(sT1)}, {sr(sT1)}, {WS_DBG + (12 << 20)}
        v_lshlrev_b32 v12, 2, v0
        buffer_store_dword v104, v12, {sr(SRD_WS,4)}, {sr(sT1)} offen
        buffer_store_dword v105, v12, {sr(SRD_WS,4)}, {sr(sT1)} offen offset:256
        buffer_store_dword v106, v12, {sr(SRD_WS,4)}, {sr(sT1)} offen offset:512
        """)
    if opt.get("stamps2"):
        a(f"""
        s_lshl_b32 {sr(sT1)}, s2, 3
        s_add_u32 {sr(sT1)}, {sr(sT1)}, {sr(sW)}
        s_lshl_b32 {sr(sT1)}, {sr(sT1)}, 10
        s_add_u32 {sr(sT1)}, {sr(sT1)}, {WS_DBG + (10 << 20)}
        v_lshlrev_b32 v12, 2, v0
        buffer_store_dword v200, v12, {sr(SRD_WS,4)}, {sr(sT1)} offen
        buffer_store_dword v201, v12, {sr(SRD_WS,4)}, {sr(sT1)} offen offset:256
        buffer_store_dword v202, v12, {sr(SRD_WS,4)}, {sr(sT1)} offen offset:512
        buffer_store_dword v203, v12, {sr(SRD_WS,4)}, {sr(sT1)} offen offset:768
        """)
    if not opt.get("stamps"):
        return
    a(f"""
    s_lshl_b32 {sr(sT1)}, s2, 3
    s_add_u32 {sr(sT1)}, {sr(sT1)}, {sr(sW)}
    s_lshl_b32 {sr(sT1)}, {sr(sT1)}, 6
    s_add_u32 {sr(sT1)}, {sr(sT1)}, {WS_DBG + (8 << 20)}
    v_mov_b32 v13, 0
    """)
    for i in range(n):
        a(f"v_writelane_b32 v13, s{72+i}, {i}")
        a(f"v_writelane_b32 v13, s{80+i}, {8+i}")
    a(f"""
    v_lshlrev_b32 v12, 2, v0
    v_cmp_gt_u32 vcc, 16, v0
    s_and_saveexec_b64 {sr(sM,2)}, vcc
    buffer_store_dword v13, v12, {sr(SRD_WS,4)}, {sr(sT1)} offen
    s_mov_b64 exec, {sr(sM,2)}
    """)

def span3(a, opt, off):
    if not opt.get("span3"): return
    sk = a.label("sk3")
    a(f"s_cmp_eq_u32 s2, {opt['span3']}")
    a(f"s_cbranch_scc0 {sk}")
    a(f"s_cmp_eq_u32 {sr(sW)}, 0")
    a(f"s_cbranch_scc0 {sk}")
    a("s_memrealtime s[92:93]")
    a("s_waitcnt lgkmcnt(0)")
    a(f"v_mov_b32 v12, s92")
    a(f"s_mov_b32 s93, {off}")
    a("s_mov_b64 exec, 1")
    a(f"buffer_store_dword v12, off, {sr(SRD_DBG,4)}, s93 sc1")
    a("s_mov_b64 exec, -1")
    a(f"{sk}:")

def dbg_span(a, which):
    w = {"start": 4, "gemm": 12, "attn": 20, "end": 28, "e3": 36, "g0": 44, "hook": 52, "karg": 20, "dma": 36, "prew": 52, "smax": 60}[which]
    sk = a.label("sk")
    a(f"s_cmp_eq_u32 {sr(sW)}, 0")
    a(f"s_cbranch_scc0 {sk}")
    a("s_memrealtime s[92:93]")
    a("s_waitcnt lgkmcnt(0)")
    a(f"v_mov_b32 v12, s92")
    a(f"s_mov_b32 s93, {w}")
    a("s_mov_b64 exec, 1")
    a(f"buffer_atomic_umax v12, off, {sr(SRD_DBG,4)}, s93 sc1")
    a("s_mov_b64 exec, -1")
    a(f"{sk}:")

OPT = {}
def k12(opt):
    OPT.clear(); OPT.update(opt)
    a = Asm()
    a(f".globl {NAME12}\n.p2align 8\n.type {NAME12},@function\n{NAME12}:")
    timestamp(a, 0, opt)
    if opt.get("dbg_span") or opt.get("span2") or opt.get("span3"):
        a("s_memrealtime s[84:85]")
    extras = prologue(a, opt)
    if opt.get("dbg_span"):
        sk = a.label("sk")
        a(f"s_cmp_eq_u32 {sr(sW)}, 0")
        a(f"s_cbranch_scc0 {sk}")
        a("s_waitcnt lgkmcnt(0)")
        a("s_not_b32 s84, s84")
        a("v_mov_b32 v12, s84")
        a("s_mov_b32 s93, 4")
        a("s_mov_b64 exec, 1")
        a(f"buffer_atomic_umax v12, off, {sr(SRD_DBG,4)}, s93 sc1")
        a("s_mov_b64 exec, -1")
        a(f"{sk}:")
    gemm(a, opt, extras)
    if opt.get("dbg_span") or opt.get("span2"): dbg_span(a, "gemm")
    span3(a, opt, 44)
    if opt.get("stamps_start"):
        timestamp(a, 7, opt)
        opt = dict(opt); opt["stamps"] = 0
        gemm_epilogue(a, opt)
        a("s_waitcnt vmcnt(0) lgkmcnt(0)")
        opt["stamps"] = 1
        stamps_out(a, 8, opt)
        a("L_end12:\ns_endpgm")
        return a.text()
    timestamp(a, 1, opt)
    gemm_epilogue(a, opt)
    if opt.get("stop_after_gemm"):
        a("s_waitcnt vmcnt(0) lgkmcnt(0)")
        timestamp(a, 2, opt)
        stamps_out(a, 3, opt)
    else:
        timestamp(a, 2, opt)
        attention(a, opt)
        timestamp(a, 3, opt)
        if opt.get("dbg_span"): dbg_span(a, "attn")
        span3(a, opt, 52)
        attn_epilogue(a, opt)
        if opt.get("fused"):
            phase3(a, opt)
            if opt.get("stamps"):
                a("s_waitcnt vmcnt(0)")
                timestamp(a, 7, opt)
            stamps_out(a, 8, opt)
            if opt.get("span3"):
                a("s_waitcnt vmcnt(0)")
                span3(a, opt, 60)
            if opt.get("dbg_span") or opt.get("span2"):
                a("s_waitcnt vmcnt(0)")
                dbg_span(a, "end")
        else:
            a("s_waitcnt vmcnt(0)")
            timestamp(a, 4, opt)
            stamps_out(a, 5, opt)
    a("L_end12:\ns_endpgm")
    return a.text()

KD12 = f"""
.section .rodata,"a"
.p2align 6
.amdhsa_kernel {NAME12}
  .amdhsa_next_free_vgpr 256
  .amdhsa_next_free_sgpr 102
  .amdhsa_accum_offset 256
  .amdhsa_group_segment_fixed_size 0
  .amdhsa_kernarg_size 80
  .amdhsa_user_sgpr_count 2
  .amdhsa_user_sgpr_kernarg_segment_ptr 1
  .amdhsa_system_sgpr_workgroup_id_x 1
  .amdhsa_float_denorm_mode_32 3
.end_amdhsa_kernel
"""
```

```python
from asm import Asm, vr, sr, VmTracker

NAME12 = "gated_mix__mha_block__softmax_full_mha__prompt_kernel"
WS_KV = 0
WS_O = 16 << 20
WS_G = 24 << 20
WS_MB = 25 << 20
WS_MB2 = WS_MB + 65536
WS_DBG = 32 << 20
WS_SIZE = 0x10000000
LOG2E = 1.4426950408889634
QSCALE = LOG2E / (32 ** 0.5)

import struct
def f2u(x): return struct.unpack("<I", struct.pack("<f", x))[0]

SRD_X, SRD_W, SRD_WS, SRD_DBG, SRD_GW = 8, 12, 16, 20, 24
sW, sHH, sTQ, sHP, sTB = 28, 29, 30, 31, 32
sW1K = 33
sXJ = 34
sWJ = 35
sRING = 36
sRINGW = 37
sJ = 38
sT0, sT1, sT2, sT3 = 40, 41, 42, 43
sXQ = 44
sKVSRC = 45
sSLOT = 46
sBLK = 47
sM = 48
sM2 = 50
sOOFF = 52
sCNT = 53
sMB = 54
sLDSW = 55
sSRC = 39
sOFFS = 64
sNXT = 65
sCHKJ = 66
sARRJ = 67
sGOFF = 68
sKVO = 35
sPF = 47
SRD_WO, SRD_OUT = 4, 56
sTB3, sCB, sROT, sMB2 = 60, 61, 62, 63
sAOFF, sWOFF = 100, 101
sLDSW3 = 34
vDW3 = 6
vLANE = 0
vDX, vDW, vXP, vWP, vXA, vW0 = 2, 3, 4, 5, 6, 7
vL16 = 10
vXB = 11
vT = 12
FR = [64, 84]
ACC = 160
QF = 16
OA = 32
LA = 64
NM = 72
SS = 104
PP = 136
KF = 144
VF = 152
ONES = 160
IDX = 164
vCUR, vNXT = 2, 3
vKVB, vDMA = 4, 5
vCHK = 15
vPA, vPV = 165, 166

RING = 20 * 8192
NSLOT3 = 10

def wrap_add(a, dst, src, const, tmp):
    a(f"s_add_u32 {sr(tmp)}, {sr(src)}, {const}")
    a(f"s_sub_u32 {dst}, {sr(tmp)}, {RING}")
    a(f"s_cselect_b32 {dst}, {sr(tmp)}, {dst}")

def prologue(a, opt):
    a(f"""
    s_cmp_ge_u32 s2, 256
    s_cbranch_scc1 L_end12
    """)
    if opt.get("codepf", 1):
        a("""
        s_getpc_b64 s[92:93]
        L_pc12:
        s_mov_b32 s3, L_end12-L_pc12
        v_lshlrev_b32 v1, 6, v0
        v_min_u32 v1, s3, v1
        global_load_dword v33, v1, s[92:93]
        """)
    a(f"""
    s_load_dwordx4 s[56:59], s[0:1], 0
    s_load_dwordx2 s[60:61], s[0:1], 32
    s_load_dwordx2 s[62:63], s[0:1], 48
    s_load_dwordx4 s[88:91], s[0:1], 64
    s_load_dwordx2 s[94:95], s[0:1], 16
    s_load_dwordx2 s[96:97], s[0:1], 40
    s_load_dwordx2 s[98:99], s[0:1], 56
    v_lshrrev_b32 v1, 6, v0
    v_and_b32 v0, 63, v0
    s_and_b32 s3, s2, 7
    v_readfirstlane_b32 {sr(sW)}, v1
    s_lshr_b32 s4, s2, 3
    s_add_u32 s5, s4, {opt.get("hpshift", 0)}
    s_and_b32 s5, s5, 3
    s_lshl_b32 s3, s3, 2
    s_add_u32 {sr(sHP)}, s3, s5
    s_lshr_b32 {sr(sTB)}, s4, 2
    s_lshr_b32 {sr(sHH)}, {sr(sW)}, 2
    s_and_b32 {sr(sTQ)}, {sr(sW)}, 3
    s_lshl_b32 {sr(sW1K)}, {sr(sW)}, 10
    """)
    a(f"""
    v_lshrrev_b32 v13, 3, v0                 ; r8
    v_and_b32 v14, 7, v0                     ; c'
    s_and_b32 {sr(sT0)}, {sr(sW)}, 1
    s_lshl_b32 {sr(sT0)}, {sr(sT0)}, 2
    v_lshrrev_b32 v15, 1, v13                ; r8>>1 (0..3)
    v_add_u32 v1, {sr(sT0)}, v15             ; 4*(w&1) + (r8>>1)
    v_xor_b32 v1, v1, v14                    ; cX
    s_lshl_b32 {sr(sT1)}, {sr(sW)}, 3
    v_add_u32 v13, {sr(sT1)}, v13            ; 8w + r8
    v_lshlrev_b32 {vr(vDX)}, 11, v13
    v_lshl_add_u32 {vr(vDX)}, v1, 4, {vr(vDX)}
    v_and_b32 v15, 1, v15
    v_lshlrev_b32 v15, 2, v15
    v_xor_b32 v15, v15, v14                  ; cW
    s_and_b32 {sr(sT1)}, {sr(sW)}, {1 if opt.get("g16", 1) else 0}
    s_lshl_b32 {sr(sT1)}, {sr(sT1)}, 1
    v_xor_b32 v15, {sr(sT1)}, v15
    s_mov_b32 {sr(sT1)}, 6144
    v_mul_lo_u32 {vr(vDW)}, v13, {sr(sT1)}
    v_lshl_add_u32 {vr(vDW)}, v15, 4, {vr(vDW)}
    s_lshl_b32 {sr(sXJ)}, {sr(sTB)}, 19          ; tb*256*2048
    s_and_b32 {sr(sWJ)}, {sr(sHP)}, 15
    s_lshl_b32 {sr(sWJ)}, {sr(sWJ)}, 7           ; hpl*128
    """)
    if opt.get("g16", 1):
        a(f"""
        v_and_b32 v13, 15, v0
        v_lshrrev_b32 v14, 4, v0                 ; g
        v_bfe_u32 v15, v13, 1, 3
        v_xor_b32 v15, v15, v14
        v_lshlrev_b32 {vr(vXP)}, 7, v13
        v_lshl_add_u32 {vr(vXP)}, v15, 4, {vr(vXP)}
        v_bfe_u32 v13, v0, 2, 2                  ; r
        v_lshl_add_u32 v1, v14, 3, v13           ; 8g + r
        v_lshlrev_b32 {vr(vWP)}, 7, v1
        v_bfe_u32 v15, v0, 1, 1                  ; c>>1
        s_lshl_b32 {sr(sT1)}, {sr(sHH)}, 2
        v_add_u32 v15, {sr(sT1)}, v15            ; cc
        v_lshrrev_b32 v13, 1, v13
        v_lshlrev_b32 v13, 2, v13
        v_xor_b32 v15, v15, v13
        v_and_b32 v14, 1, v14
        v_lshlrev_b32 v14, 1, v14
        v_xor_b32 v15, v15, v14
        v_lshl_add_u32 {vr(vWP)}, v15, 4, {vr(vWP)}
        v_and_b32 v1, 1, v0
        v_lshl_add_u32 {vr(vWP)}, v1, 3, {vr(vWP)}
        v_lshlrev_b32 {vr(vL16)}, 4, v0
        s_add_u32 {sr(sXQ)}, {sr(sTQ)}, 3
        s_lshl_b32 {sr(sXQ)}, {sr(sXQ)}, 13
        """)
    else:
        a(f"""
    v_and_b32 v13, 31, v0
    v_lshrrev_b32 v14, 5, v0                 ; h
    v_bfe_u32 v15, v13, 1, 3
    v_xor_b32 v15, v15, v14
    v_lshlrev_b32 {vr(vXP)}, 7, v13
    v_lshl_add_u32 {vr(vXP)}, v15, 4, {vr(vXP)}
    v_bfe_u32 v13, v0, 2, 2                  ; r
    v_lshl_add_u32 v1, v14, 3, v13           ; 8h + r
    v_lshlrev_b32 {vr(vWP)}, 7, v1
    v_bfe_u32 v15, v0, 4, 1                  ; g
    v_lshlrev_b32 v15, 1, v15
    v_bfe_u32 v1, v0, 1, 1                   ; c>>1
    v_add_u32 v15, v15, v1
    s_lshl_b32 {sr(sT1)}, {sr(sHH)}, 2
    v_add_u32 v15, {sr(sT1)}, v15            ; cc
    v_lshrrev_b32 v13, 1, v13
    v_lshlrev_b32 v13, 2, v13
    v_xor_b32 v15, v15, v13
    v_lshl_add_u32 {vr(vWP)}, v15, 4, {vr(vWP)}
    v_and_b32 v1, 1, v0
    v_lshl_add_u32 {vr(vWP)}, v1, 3, {vr(vWP)}
    v_lshlrev_b32 {vr(vL16)}, 4, v0
    s_add_u32 {sr(sXQ)}, {sr(sTQ)}, 3
    s_lshl_b32 {sr(sXQ)}, {sr(sXQ)}, 13
        """)
    a("s_waitcnt lgkmcnt(0)")
    if opt.get("stamps_start"): timestamp(a, 1, opt)
    if opt.get("span2") or opt.get("span3"): a("s_memrealtime s[78:79]")
    a(f"""
    s_mov_b32 {sr(SRD_X)}, s56
    s_mov_b32 {sr(SRD_X+1)}, s57
    s_mov_b32 {sr(SRD_X+2)}, {2048*1024*2}
    s_mov_b32 {sr(SRD_X+3)}, 0x00020000
    s_cmp_ge_u32 {sr(sHP)}, 16
    s_cselect_b32 {sr(SRD_W)}, s60, s58
    s_cselect_b32 {sr(SRD_W+1)}, s61, s59
    s_mov_b32 {sr(SRD_W+2)}, {1024*3072*2}
    s_mov_b32 {sr(SRD_W+3)}, 0x00020000
    """)
    for g in range(14):
        dma_unit_static(a, g)
        if g == 6 and opt.get("stamps_start"): timestamp(a, 2, opt)
    if opt.get("stamps_start"): timestamp(a, 3, opt)
    if opt.get("span2") or opt.get("span3"): a("s_memrealtime s[80:81]")
    if opt.get("dbg_span") or opt.get("span2") or opt.get("span3"):
        a(f"""
        s_mov_b32 {sr(SRD_DBG)}, s88
        s_mov_b32 {sr(SRD_DBG+1)}, s89
        s_mov_b32 {sr(SRD_DBG+2)}, 256
        s_mov_b32 {sr(SRD_DBG+3)}, 0x00020000
        """)
    ex = []
    for u in range(6):
        g = 14 + u
        if u < 3:
            ex.append(f"""s_add_u32 m0, {sr(sW1K)}, {g * 8192}
            s_add_u32 {sr(sT0)}, {sr(sWJ)}, {u * 2048}
            buffer_load_dwordx4 {vr(vDW)}, {sr(SRD_W,4)}, {sr(sT0)} offen lds""")
        else:
            ex.append(f"""s_add_u32 m0, {sr(sW1K)}, {g * 8192}
            s_add_u32 {sr(sT0)}, {sr(sXJ)}, {(u - 3) * 131072}
            buffer_load_dwordx4 {vr(vDX)}, {sr(SRD_X,4)}, {sr(sT0)} offen lds""")
    ex.append(f"""
    s_mov_b32 {sr(SRD_WS)}, s90
    s_mov_b32 {sr(SRD_WS+1)}, s91
    s_mov_b32 {sr(SRD_WS+2)}, {WS_SIZE}
    s_mov_b32 {sr(SRD_WS+3)}, 0x00020000
    """)
    ex.append(f"""
    s_mov_b32 {sr(SRD_DBG)}, s88
    s_mov_b32 {sr(SRD_DBG+1)}, s89
    s_mov_b32 {sr(SRD_DBG+2)}, 256
    s_mov_b32 {sr(SRD_DBG+3)}, 0x00020000
    """)
    ex.append(f"""
    s_mov_b32 {sr(SRD_GW)}, s62
    s_mov_b32 {sr(SRD_GW+1)}, s63
    s_mov_b32 {sr(SRD_GW+2)}, 2048
    s_mov_b32 {sr(SRD_GW+3)}, 0x00020000
    """)
    ex.append(f"""
    s_and_b32 s3, s2, 7
    s_lshr_b32 {sr(sT1)}, s2, 3
    s_lshr_b32 {sr(sT0)}, s3, 1
    s_lshl_b32 {sr(sT0)}, {sr(sT0)}, 2
    s_and_b32 {sr(sTB3)}, {sr(sT1)}, 3
    s_add_u32 {sr(sTB3)}, {sr(sT0)}, {sr(sTB3)}
    s_and_b32 {sr(sT0)}, s3, 1
    s_lshl_b32 {sr(sT0)}, {sr(sT0)}, 3
    s_lshr_b32 {sr(sT1)}, {sr(sT1)}, 2
    s_add_u32 {sr(sCB)}, {sr(sT0)}, {sr(sT1)}
    """)
    ex.append(f"""
    s_add_u32 {sr(sROT)}, {sr(sTB3)}, {sr(sCB)}
    s_and_b32 {sr(sROT)}, {sr(sROT)}, 15
    s_lshl_b32 {sr(sMB2)}, {sr(sTB3)}, 4
    s_add_u32 {sr(sMB2)}, {sr(sMB2)}, {sr(sCB)}
    s_lshl_b32 {sr(sMB2)}, {sr(sMB2)}, 7
    s_add_u32 {sr(sMB2)}, {sr(sMB2)}, {WS_MB2}
    """)
    ex.append(f"""
    s_cmp_eq_u32 {sr(sHH)}, 1
    s_cselect_b32 {sr(SRD_WO)}, s96, s94
    s_cselect_b32 {sr(SRD_WO+1)}, s97, s95
    s_mov_b32 {sr(SRD_WO+2)}, {1024*1024*2}
    s_mov_b32 {sr(SRD_WO+3)}, 0x00020000
    """)
    ex.append(f"""
    s_mov_b32 {sr(SRD_OUT)}, s98
    s_mov_b32 {sr(SRD_OUT+1)}, s99
    s_mov_b32 {sr(SRD_OUT+2)}, {2048*1024*2}
    s_mov_b32 {sr(SRD_OUT+3)}, 0x00020000
    """)
    ex.append(f"""
    s_lshl_b32 {sr(sMB)}, {sr(sHP)}, 3
    s_add_u32 {sr(sMB)}, {sr(sMB)}, {sr(sTB)}
    s_lshl_b32 {sr(sMB)}, {sr(sMB)}, 7
    s_add_u32 {sr(sMB)}, {sr(sMB)}, {WS_MB}
    s_lshl_b32 {sr(sCNT)}, {sr(sHP)}, 3
    """)
    nr = a.label("nr")
    ex.append(f"""
    s_cmp_eq_u32 {sr(sW)}, 0
    s_cselect_b32 {sr(sCHKJ)}, 5, 0xffff
    s_cselect_b32 {sr(sARRJ)}, 11, 0xffff
    s_cbranch_scc0 {nr}
    v_lshlrev_b32 v12, 2, v0
    s_sub_u32 {sr(sT0)}, {sr(sMB2)}, 128
    v_mov_b32 v13, {sr(sMB)}
    v_mov_b32 v14, {sr(sT0)}
    v_cmp_gt_u32 vcc, 32, v0
    s_nop 1
    v_cndmask_b32 v13, v14, v13, vcc
    v_add_u32 v12, v12, v13
    v_mov_b32 v13, 0
    buffer_store_dword v13, v12, {sr(SRD_WS,4)}, 0 offen sc1
    {nr}:
    """)
    ex.append(f"""
    s_and_b32 {sr(sT0)}, {sr(sHP)}, 15
    s_lshl_b32 {sr(sT0)}, {sr(sT0)}, 3
    s_add_u32 {sr(sT0)}, {sr(sT0)}, {sr(sTB)}
    s_lshl_b32 {sr(sT0)}, {sr(sT0)}, 3
    s_add_u32 {sr(sT0)}, {sr(sT0)}, {sr(sW)}
    s_lshl_b32 {sr(sT0)}, {sr(sT0)}, 10
    s_add_u32 {sr(sPF)}, {sr(sT0)}, {3 * 64 * 6144}
    """)
    ex.append(f"""
    s_lshl_b32 {sr(sT0)}, {sr(sTB)}, 8
    s_lshl_b32 {sr(sT1)}, {sr(sHP)}, 3
    s_add_u32 {sr(sT0)}, {sr(sT0)}, {sr(sT1)}
    s_add_u32 {sr(sT0)}, {sr(sT0)}, {sr(sW)}
    s_lshl_b32 {sr(sGOFF)}, {sr(sT0)}, 2
    s_lshl_b32 {sr(sT1)}, {sr(sT0)}, 11
    v_lshlrev_b32 v12, 5, v0
    buffer_load_dwordx4 v[16:19], v12, {sr(SRD_X,4)}, {sr(sT1)} offen
    buffer_load_dwordx4 v[20:23], v12, {sr(SRD_X,4)}, {sr(sT1)} offen offset:16
    """)
    ex.append(f"""
    v_lshlrev_b32 v12, 5, v0
    buffer_load_dwordx4 v[24:27], v12, {sr(SRD_GW,4)}, 0 offen
    buffer_load_dwordx4 v[28:31], v12, {sr(SRD_GW,4)}, 0 offen offset:16
    """)
    if opt.get("xpf", 0):
        ex.append(f"""
        s_lshl_b32 {sr(sT0)}, s2, 3
        s_add_u32 {sr(sT0)}, {sr(sT0)}, {sr(sW)}
        s_lshl_b32 {sr(sT0)}, {sr(sT0)}, 11
        buffer_load_dwordx4 v[40:43], {vr(vL16)}, {sr(SRD_X,4)}, {sr(sT0)} offen
        buffer_load_dwordx4 v[44:47], {vr(vL16)}, {sr(SRD_X,4)}, {sr(sT0)} offen offset:1024
        """)
    if opt.get("touch", 0):
        ex.append(f"""
        s_lshl_b32 {sr(sT0)}, {sr(sHP)}, 19
        s_lshl_b32 {sr(sT1)}, {sr(sTB)}, 20
        s_add_u32 {sr(sT1)}, {sr(sT1)}, {WS_O}
        buffer_load_dword v104, off, {sr(SRD_WS,4)}, {sr(sT0)}
        buffer_load_dword v105, off, {sr(SRD_WS,4)}, {sr(sT1)}
        """)
        ex.append(f"""
        s_lshl_b32 {sr(sT0)}, {sr(sTB3)}, 19
        s_add_u32 {sr(sT0)}, {sr(sT0)}, {WS_O}
        s_lshl_b32 {sr(sT1)}, {sr(sTB3)}, 18
        buffer_load_dword v106, off, {sr(SRD_WS,4)}, {sr(sT0)}
        buffer_load_dword v108, off, {sr(SRD_OUT,4)}, {sr(sT1)}
        """)
        ex.append(f"""
        s_mov_b32 {sr(sT0)}, {1024*1024*2 - 4}
        buffer_load_dword v107, off, {sr(SRD_WO,4)}, 0
        buffer_load_dword v109, off, {sr(SRD_WO,4)}, {sr(sT0)}
        """)
    return ex

def dma_unit_static(a, g):
    j, u = divmod(g, 7)
    a(f"s_add_u32 m0, {sr(sW1K)}, {(g % 20) * 8192}")
    if u < 3:
        a(f"s_add_u32 {sr(sT0)}, {sr(sWJ)}, {j * 64 * 6144 + u * 2048}")
        a(f"buffer_load_dwordx4 {vr(vDW)}, {sr(SRD_W,4)}, {sr(sT0)} offen lds")
    else:
        a(f"s_add_u32 {sr(sT0)}, {sr(sXJ)}, {j * 128 + (u - 3) * 131072}")
        a(f"buffer_load_dwordx4 {vr(vDX)}, {sr(SRD_X,4)}, {sr(sT0)} offen lds")

def gate_instrs():
    c = ["v_mov_b32 v12, 0"]
    for i in range(8):
        x, w = 16 + i, 24 + i
        c += [f"v_lshlrev_b32 v13, 16, v{x}", f"v_and_b32 v14, 0xffff0000, v{x}", f"v_lshlrev_b32 v32, 16, v{w}",
              f"v_and_b32 v1, 0xffff0000, v{w}", "v_mul_f32 v13, v13, v32", "v_mul_f32 v14, v14, v1",
              "v_cvt_pk_bf16_f32 v13, v13, v14", "v_lshlrev_b32 v14, 16, v13", "v_and_b32 v13, 0xffff0000, v13",
              "v_add_f32 v12, v12, v14", "v_add_f32 v12, v12, v13"]
    for sh in (1, 2, 4, 8):
        c += [f"s_nop 1\nv_add_f32_dpp v12, v12, v12 row_shr:{sh} row_mask:0xf bank_mask:0xf bound_ctrl:0"]
    c += ["s_nop 1\nv_add_f32_dpp v12, v12, v12 row_bcast:15 row_mask:0xa bank_mask:0xf"]
    c += ["s_nop 1\nv_add_f32_dpp v12, v12, v12 row_bcast:31 row_mask:0xc bank_mask:0xf"]
    c += ["s_nop 1\nv_cvt_pk_bf16_f32 v12, v12, v12", "v_lshlrev_b32 v12, 16, v12", f"v_mul_f32 v12, {hex(f2u(-LOG2E))}, v12",
          "v_exp_f32 v12, v12\ns_nop 0\nv_add_f32 v12, 1.0, v12", "v_rcp_f32 v12, v12\ns_nop 0\nv_cvt_pk_bf16_f32 v12, v12, v12",
          "v_lshlrev_b32 v12, 16, v12", f"v_mov_b32 v13, {WS_G}"]
    st = [f"""s_mov_b32 exec_lo, 0
    s_mov_b32 exec_hi, 0x80000000
    buffer_store_dword v12, v13, {sr(SRD_WS,4)}, {sr(sGOFF)} offen sc1
    s_mov_b64 exec, -1"""]
    return c, st

def frag(set_, name):
    off = {"X0": 0, "X1": 4, "Wq": 8, "Wk": 12, "Wv": 16}[name]
    return FR[set_] + off

def gemm_reads(ks, set_):
    r = []
    r.append(f"ds_read_b128 {vr(frag(set_,'X0'),4)}, {vr(vXA)}")
    for u, nm in enumerate(("Wq", "Wk", "Wv")):
        b = frag(set_, nm)
        r.append(f"ds_read_b64_tr_b16 {vr(b,2)}, {vr(vW0+u)} offset:{ks*2048}")
        r.append(f"ds_read_b64_tr_b16 {vr(b+2,2)}, {vr(vW0+u)} offset:{ks*2048+512}")
        if u == 0:
            r.append(f"ds_read_b128 {vr(frag(set_,'X1'),4)}, {vr(vXA)} offset:4096")
    return r

def gemm_mfmas(set_, first=False):
    m = []
    X0, X1 = frag(set_, "X0"), frag(set_, "X1")
    Wq, Wk, Wv = frag(set_, "Wq"), frag(set_, "Wk"), frag(set_, "Wv")
    def mf(acc, A, B): return f"v_mfma_f32_32x32x16_bf16 {vr(acc,16)}, {vr(A,4)}, {vr(B,4)}, {'0' if first else vr(acc,16)}"
    m.append(mf(ACC + 0, Wq, X0))
    m.append(mf(ACC + 32, Wk, X0))
    m.append(mf(ACC + 64, X0, Wv))
    m.append(mf(ACC + 16, Wq, X1))
    m.append(mf(ACC + 48, Wk, X1))
    m.append(mf(ACC + 80, X1, Wv))
    return m

def wrap_list(dst, src, const, tmp):
    return [f"s_add_u32 {sr(tmp)}, {sr(src)}, {const}", f"s_sub_u32 {dst}, {sr(tmp)}, {RING}", f"s_cselect_b32 {dst}, {sr(tmp)}, {dst}"]

def read_bases_list():
    r = [f"v_add_u32 {vr(vW0)}, {sr(sRING)}, {vr(vWP)}"]
    for u in (1, 2):
        r += wrap_list(sr(sT1), sRING, u * 8192, sT0)
        r.append(f"v_add_u32 {vr(vW0+u)}, {sr(sT1)}, {vr(vWP)}")
    r += [f"s_add_u32 {sr(sT0)}, {sr(sRING)}, {sr(sXQ)}", f"s_sub_u32 {sr(sT1)}, {sr(sT0)}, {RING}",
          f"s_cselect_b32 {sr(sT1)}, {sr(sT0)}, {sr(sT1)}", f"v_add_u32 {vr(vXB)}, {sr(sT1)}, {vr(vXP)}",
          f"v_mov_b32 {vr(vXA)}, {vr(vXB)}"]
    return r

def dma_group(i):
    if OPT.get("g_nodma"): return []
    s = [f"s_add_u32 {sr(sT2)}, {sr(sRINGW)}, {i * 8192}", f"s_sub_u32 m0, {sr(sT2)}, {RING}", f"s_cselect_b32 m0, {sr(sT2)}, m0"]
    if i == 0:
        s.append(f"s_add_u32 {sr(sT3)}, {sr(sXJ)}, {3 * 131072 - 128}")
        s.append(f"buffer_load_dwordx4 {vr(vDX)}, {sr(SRD_X,4)}, {sr(sT3)} offen lds")
    elif i <= 3:
        s.append(f"s_add_u32 {sr(sT3)}, {sr(sWJ)}, {(i - 1) * 2048}")
        s.append(f"buffer_load_dwordx4 {vr(vDW)}, {sr(SRD_W,4)}, {sr(sT3)} offen lds")
    else:
        s.append(f"s_add_u32 {sr(sT3)}, {sr(sXJ)}, {(i - 4) * 131072}")
        s.append(f"buffer_load_dwordx4 {vr(vDX)}, {sr(SRD_X,4)}, {sr(sT3)} offen lds")
    return s

def w_readahead():
    if not OPT.get("wpf", 1): return []
    return [f"buffer_load_dwordx4 v[36:39], {vr(vL16)}, {sr(SRD_W,4)}, {sr(sPF)} offen", f"s_add_u32 {sr(sPF)}, {sr(sPF)}, {1 << 20}"]

def kstep(a, cur, next_ks, gaps_extra, first=False):
    m = gemm_mfmas(cur, first)
    r = gemm_reads(next_ks, cur ^ 1) if next_ks is not None else []
    gaps = [[] for _ in range(6)]
    for i, x in enumerate(r):
        gaps[min(i // 3, 5)].append(x)
    for g in range(6):
        gaps[g] += gaps_extra.get(g, [])
    for i in range(6):
        a(m[i])
        for x in gaps[i]:
            a(x)

def gemm_stage(a, pending, new_batch, vm_wait, first=False, last=False, valu=None, after_bar=None):
    prio = OPT.get("gprio", 1)
    sp = lambda n: [f"s_setprio {n}"] if prio else []
    valu = list(valu or [])
    per = (len(valu) + 2) // 3
    for ks in range(3):
        ex = {}
        mine = [i for i in pending if (i - 2) // 2 == ks]
        if mine:
            ex[2] = dma_group(mine[0])
        if len(mine) > 1:
            ex[4] = dma_group(mine[1])
        chunk = valu[ks * per:(ks + 1) * per]
        n3 = (len(chunk) + 2) // 3
        for k, g in enumerate((1, 3, 5)):
            ex[g] = ex.get(g, []) + chunk[k * n3:(k + 1) * n3]
        ex[0] = sp(2 - ks)
        if ks < 2:
            ex[5] = ex.get(5, []) + [f"v_xor_b32 {vr(vXA)}, {(ks + 2) << 5}, {vr(vXB)}"]
        else:
            upd = [f"s_add_u32 {sr(sRINGW)}, {sr(sRING)}, {sr(sW1K)}", f"s_add_u32 {sr(sXJ)}, {sr(sXJ)}, 128",
                   f"s_add_u32 {sr(sWJ)}, {sr(sWJ)}, {64 * 6144}"] + wrap_list(sr(sRING), sRING, 7 * 8192, sT0)
            ex[3] = ex.get(3, []) + upd
            if not last:
                ex[4] = ex.get(4, []) + read_bases_list()
        a("s_waitcnt lgkmcnt(0)")
        kstep(a, ks & 1, ks + 1, ex, first=(first and ks == 0))
    if OPT.get("stampsg"):
        a("s_waitcnt lgkmcnt(0)")
        gstamp(a, 204)
    if vm_wait is not None:
        a(f"s_waitcnt vmcnt({vm_wait}) lgkmcnt(0)")
    else:
        a("s_waitcnt lgkmcnt(0)")
    if OPT.get("stampsg"): gstamp(a, 205)
    if not OPT.get("g_nobar"): a("s_barrier")
    if OPT.get("stampsg"):
        gstamp(a, 206)
        a("s_add_u32 s87, s87, 1")
    ex = {0: sp(3)}
    if len(new_batch) > 0: ex[2] = dma_group(new_batch[0])
    if len(new_batch) > 1: ex[4] = dma_group(new_batch[1]) + w_readahead()
    if not last:
        ex[5] = [f"v_xor_b32 {vr(vXA)}, {1 << 5}, {vr(vXB)}"]
    if after_bar:
        ex[5] = ex.get(5, []) + after_bar
    kstep(a, 1, None if last else 0, ex)

FR16 = [64, 104]
vW16 = [7, 8, 9, 48, 49, 50]

def g16_reads(step, set_):
    F = FR16[set_]
    r = []
    xs = [f"ds_read_b128 {vr(F + 4*i, 4)}, {vr(vXA)} offset:{i * 2048}" for i in range(4)]
    ws = []
    for u in range(3):
        for ft in range(2):
            b = F + 16 + 4 * (2 * u + ft)
            reg = vW16[u + 3 * ft]
            ws.append(f"ds_read_b64_tr_b16 {vr(b,2)}, {vr(reg)} offset:{step*4096}")
            ws.append(f"ds_read_b64_tr_b16 {vr(b+2,2)}, {vr(reg)} offset:{step*4096+512}")
    return [ws[0], ws[1], xs[0], xs[1], xs[2], xs[3]] + ws[2:]

def g16_mfmas(set_, first=False):
    F = FR16[set_]
    m = []
    for f in range(6):
        for i in range(4):
            acc = ACC + 4 * (4 * f + i)
            W, X = F + 16 + 4 * f, F + 4 * i
            A, B = (W, X) if f < 4 else (X, W)
            m.append(f"v_mfma_f32_16x16x32_bf16 {vr(acc,4)}, {vr(A,4)}, {vr(B,4)}, {'0' if first else vr(acc,4)}")
    return m

def g16_bases():
    r = [f"v_add_u32 {vr(vW16[0])}, {sr(sRING)}, {vr(vWP)}", f"v_xor_b32 {vr(vW16[3])}, 32, {vr(vW16[0])}"]
    for u in (1, 2):
        r.append("\n".join(wrap_list(sr(sT1), sRING, u * 8192, sT0) + [f"v_add_u32 {vr(vW16[u])}, {sr(sT1)}, {vr(vWP)}"]))
        r.append(f"v_xor_b32 {vr(vW16[3+u])}, 32, {vr(vW16[u])}")
    r.append("\n".join([f"s_add_u32 {sr(sT0)}, {sr(sRING)}, {sr(sXQ)}", f"s_sub_u32 {sr(sT1)}, {sr(sT0)}, {RING}",
          f"s_cselect_b32 {sr(sT1)}, {sr(sT0)}, {sr(sT1)}", f"v_add_u32 {vr(vXB)}, {sr(sT1)}, {vr(vXP)}"]))
    r.append(f"v_mov_b32 {vr(vXA)}, {vr(vXB)}")
    return r

def g16_step(a, cur, next_step, gaps_extra, first=False):
    m = g16_mfmas(cur, first)
    r = g16_reads(next_step, cur ^ 1) if next_step is not None else []
    rp = OPT.get("g16_rp", 1)
    for g in range(24):
        a(m[g])
        for x in r[rp * g:rp * g + rp]: a(x)
        for x in gaps_extra.get(g, []): a(x)

def g16_stage(a, pending, new_batch, vm_wait, first=False, last=False, valu=None, after_bar=None):
    prio = OPT.get("gprio", 1)
    sp = lambda n: [f"s_setprio {n}"] if prio else []
    valu = list(valu or [])
    ex = {g: [] for g in range(24)}
    ex[0] += sp(1); ex[12] += sp(0)
    pg = OPT.get("g16_pg", [3, 7, 11])
    for k, i in enumerate(pending):
        ex[pg[k]] += ["\n".join(dma_group(i))]
    for k, x in enumerate(valu):
        ex[min(k * 16 // max(len(valu), 1), 15) + (0 if first else 0)].append(x)
    upd = [f"s_add_u32 {sr(sRINGW)}, {sr(sRING)}, {sr(sW1K)}", f"s_add_u32 {sr(sXJ)}, {sr(sXJ)}, 128",
           f"s_add_u32 {sr(sWJ)}, {sr(sWJ)}, {64 * 6144}", "\n".join(wrap_list(sr(sRING), sRING, 7 * 8192, sT0))]
    for k, x in enumerate(upd): ex[16 + k // 2].append(x)
    if not last:
        for k, x in enumerate(g16_bases()): ex[18 + k * 5 // 8].append(x)
    a("s_waitcnt lgkmcnt(0)")
    g16_step(a, 0, 1, ex, first=first)
    if vm_wait is not None:
        a(f"s_waitcnt vmcnt({vm_wait}) lgkmcnt(0)")
    else:
        a("s_waitcnt lgkmcnt(0)")
    a("s_barrier")
    ex = {g: [] for g in range(24)}
    ex[0] += sp(3); ex[12] += sp(2)
    ng = OPT.get("g16_ng", [2, 7, 12, 17])
    for k, i in enumerate(new_batch):
        ex[ng[k]] += ["\n".join(dma_group(i))]
    if len(new_batch) > 1:
        ex[19] += w_readahead()
    if not last:
        ex[22].append(f"v_xor_b32 {vr(vXA)}, 64, {vr(vXB)}")
    if after_bar:
        ex[23] += after_bar
    g16_step(a, 1, None if last else 0, ex)

def gemm(a, opt, extras):
    if OPT.get("stampsg"): a("s_mov_b32 s87, 0")
    a(f"s_add_u32 {sr(sXJ)}, {sr(sXJ)}, {2 * 128}")
    a(f"s_add_u32 {sr(sWJ)}, {sr(sWJ)}, {2 * 64 * 6144}")
    a(f"s_mov_b32 {sr(sRING)}, 0")
    g16 = opt.get("g16", 1)
    for x in (g16_bases() if g16 else read_bases_list()): a(x)
    if opt.get("stamps_start"): timestamp(a, 4, opt)
    if opt.get("span2") or opt.get("span3"): a("s_memrealtime s[82:83]")
    nw = (6 if opt.get("touch", 0) else 0) + (2 if opt.get("xpf", 0) else 0)
    a(f"s_waitcnt vmcnt(7)")
    if opt.get("stamps_start"): timestamp(a, 5, opt)
    a("s_barrier")
    if opt.get("dbg_span"): dbg_span(a, "g0")
    if opt.get("span3"):
        sk = a.label("sk3")
        a(f"s_memrealtime s[76:77]")
        a(f"s_cmp_eq_u32 s2, {opt['span3']}")
        a(f"s_cbranch_scc0 {sk}")
        a(f"s_cmp_eq_u32 {sr(sW)}, 0")
        a(f"s_cbranch_scc0 {sk}")
        a("s_waitcnt lgkmcnt(0)")
        for reg, off in ((84, 4), (78, 12), (80, 20), (82, 28), (76, 36)):
            a(f"v_mov_b32 v12, s{reg}")
            a(f"s_mov_b32 s93, {off}")
            a("s_mov_b64 exec, 1")
            a(f"buffer_store_dword v12, off, {sr(SRD_DBG,4)}, s93 sc1")
            a("s_mov_b64 exec, -1")
        a(f"{sk}:")
    if opt.get("span2"):
        sk = a.label("sk2")
        a(f"s_memrealtime s[76:77]")
        a(f"s_cmp_eq_u32 {sr(sW)}, 0")
        a(f"s_cbranch_scc0 {sk}")
        a("s_waitcnt lgkmcnt(0)")
        a("s_not_b32 s75, s84")
        for reg, off in ((75, 4), (84, 60), (78, 20), (80, 36), (82, 52), (76, 44)):
            a(f"v_mov_b32 v12, s{reg}")
            a(f"s_mov_b32 s93, {off}")
            a("s_mov_b64 exec, 1")
            a(f"buffer_atomic_umax v12, off, {sr(SRD_DBG,4)}, s93 sc1")
            a("s_mov_b64 exec, -1")
        a(f"{sk}:")
    if opt.get("stamps_start"): timestamp(a, 6, opt)
    if g16:
        for x in g16_reads(0, 0): a(x)
        a(f"v_xor_b32 {vr(vXA)}, 64, {vr(vXB)}")
        g16_stage(a, [], [0, 1, 2, 3], 10 + nw, first=True, valu=extras)
    else:
        for x in gemm_reads(0, 0):
            a(x)
        a(f"v_xor_b32 {vr(vXA)}, {1 << 5}, {vr(vXB)}")
        gemm_stage(a, [], [0, 1], 10 + nw, first=True, valu=extras)
    a(f"s_mov_b32 {sr(sJ)}, 12")
    lab = a.label("gemm")
    a(".p2align 6")
    a(f"{lab}:")
    npf = 1 if opt.get("wpf", 1) else 0
    if g16: g16_stage(a, [4, 5, 6], [0, 1, 2, 3], 6 + npf)
    else: gemm_stage(a, [2, 3, 4, 5, 6], [0, 1], 6 + npf)
    nc = a.label("nc"); nd = a.label("nd")
    a(f"s_cmp_eq_u32 {sr(sJ)}, {sr(sARRJ)}")
    a(f"s_cbranch_scc0 {nd}")
    a(f"""
    v_mov_b32 v12, 1
    s_mov_b64 exec, 1
    buffer_atomic_add v12, off, {sr(SRD_DBG,4)}, {sr(sCNT)} sc1
    s_mov_b64 exec, -1
    s_nop 3
    """)
    a(f"{nd}:")
    a(f"s_cmp_eq_u32 {sr(sJ)}, {sr(sCHKJ)}")
    a(f"s_cbranch_scc0 {nc}")
    a(f"v_lshlrev_b32 v12, 2, v0")
    a(f"buffer_load_dword {vr(vCHK)}, v12, {sr(SRD_DBG,4)}, 0 offen sc1")
    a(f"{nc}:")
    a(f"s_sub_u32 {sr(sJ)}, {sr(sJ)}, 1")
    a(f"s_cmp_lg_u32 {sr(sJ)}, 0")
    a(f"s_cbranch_scc1 {lab}")
    gc, gs = gate_instrs()
    if g16:
        g16_stage(a, [4, 5, 6], [0], 6 + npf)
        g16_stage(a, [], [], 0, valu=gc, after_bar=gs + ["s_nop 3"])
        g16_stage(a, [], [], None, last=True)
    else:
        gemm_stage(a, [2, 3, 4, 5, 6], [0], 6 + npf)
        gemm_stage(a, [], [], 0, valu=gc, after_bar=gs + ["s_nop 3"])
        gemm_stage(a, [], [], None, last=True)
    a("s_setprio 0")
    a("s_nop 15")

vLK = 7

def g16_pack(a, dst, t0, t1):
    a(f"v_cvt_pk_bf16_f32 v{dst}, v{t0}, v{t0+1}")
    a(f"v_cvt_pk_bf16_f32 v{dst+1}, v{t0+2}, v{t0+3}")
    a(f"v_cvt_pk_bf16_f32 v{dst+2}, v{t1}, v{t1+1}")
    a(f"v_cvt_pk_bf16_f32 v{dst+3}, v{t1+2}, v{t1+3}")

def g16_swap(a, dst):
    a(f"v_permlane16_swap_b32 v{dst}, v{dst+2}")
    a(f"v_permlane16_swap_b32 v{dst+1}, v{dst+3}")

SS16 = SS

def kreg(T, f):
    return ACC + 32 + 16 * f + 8 * T if OPT.get("g16", 1) else ACC + 32 + 16 * T + 4 * f
def vreg(T, t):
    return ACC + 64 + 4 * (2 * T + t) if OPT.get("g16", 1) else ACC + 64 + 16 * T + 4 * t

def gemm_epilogue16(a, opt):
    def tile(f, i): return ACC + 4 * (4 * f + i)
    for T in range(2):
        for ft in range(2):
            g16_pack(a, kreg(T, ft), tile(2 + ft, 2 * T), tile(2 + ft, 2 * T + 1))
    for T in range(2):
        for t in range(2):
            g16_pack(a, vreg(T, t), tile(4, 2 * T + t), tile(5, 2 * T + t))
    for T in range(2):
        for f in range(2): g16_swap(a, kreg(T, f))
    for T in range(2):
        for f in range(2): g16_swap(a, vreg(T, f))
    a(f"""
    v_and_b32 v12, 0x33, v0
    v_bfe_u32 v13, v0, 2, 1
    v_bfe_u32 v14, v0, 3, 1
    v_lshl_add_u32 v12, v13, 3, v12
    v_lshl_add_u32 v12, v14, 2, v12
    v_lshlrev_b32 {vr(vLK)}, 4, v12
    s_lshl_b32 {sr(sT1)}, {sr(sHP)}, 1
    s_add_u32 {sr(sT1)}, {sr(sT1)}, {sr(sHH)}
    s_lshl_b32 {sr(sKVSRC)}, {sr(sT1)}, 18
    s_lshl_b32 {sr(sT1)}, {sr(sTB)}, 15
    s_lshl_b32 {sr(sT2)}, {sr(sTQ)}, 13
    s_add_u32 {sr(sT1)}, {sr(sT1)}, {sr(sT2)}
    s_add_u32 {sr(sKVO)}, {sr(sT1)}, {sr(sKVSRC)}
    """)
    if opt.get("half", 1):
        late = a.label("late")
        a(f"s_cmp_lt_u32 {sr(sTQ)}, 2")
        a(f"s_cbranch_scc0 {late}")
        kv_stores(a)
        a(f"{late}:")
    else:
        kv_stores(a)
    a(f"s_mov_b32 {sr(sT2)}, {hex(f2u(QSCALE))}")
    a(f"s_mov_b32 {sr(sT3)}, {hex(f2u(QSCALE))}")
    for k in range(16):
        a(f"v_pk_mul_f32 {vr(ACC+2*k,2)}, {vr(ACC+2*k,2)}, {sr(sT2,2)}")
    for T in range(2):
        for ft in range(2):
            g16_pack(a, QF + 8 * T + 4 * ft, tile(ft, 2 * T), tile(ft, 2 * T + 1))
    a("s_nop 1")
    for k in range(4): g16_swap(a, QF + 4 * k)
    a("s_nop 1")
    for x in range(2):
        S, Q = SS16 + 16 * x, QF + 8 * x
        a(f"v_mfma_f32_32x32x16_bf16 {vr(S,16)}, {vr(kreg(0,0),4)}, {vr(Q,4)}, 0")
        a(f"v_mfma_f32_32x32x16_bf16 {vr(S,16)}, {vr(kreg(0,1),4)}, {vr(Q+4,4)}, {vr(S,16)}")
    a(f"""
    s_lshr_b32 {sr(sT1)}, {sr(sTQ)}, 1
    s_lshl_b32 {sr(sT1)}, {sr(sT1)}, 15
    s_lshl_b32 {sr(sT2)}, {sr(sHH)}, 14
    s_add_u32 {sr(sT1)}, {sr(sT1)}, {sr(sT2)}
    s_and_b32 {sr(sT2)}, {sr(sTQ)}, 1
    s_lshl_b32 {sr(sT2)}, {sr(sT2)}, 13
    s_add_u32 {sr(sT1)}, {sr(sT1)}, {sr(sT2)}
    v_add_u32 v12, {sr(sT1)}, {vr(vL16)}
    v_add_u32 v13, {sr(sT1)}, {vr(vLK)}
    """)
    for tt in range(2):
        a(f"ds_write_b128 v13, {vr(kreg(tt,0),4)} offset:{tt*4096}")
        a(f"ds_write_b128 v13, {vr(kreg(tt,1),4)} offset:{tt*4096+1024}")
        a(f"ds_write_b128 v12, {vr(vreg(tt,0),4)} offset:{tt*4096+2048}")
        a(f"ds_write_b128 v12, {vr(vreg(tt,1),4)} offset:{tt*4096+3072}")

def gemm_epilogue(a, opt):
    if opt.get("g16", 1):
        return gemm_epilogue16(a, opt)
    for tile in (2, 3, 4, 5):
        b = ACC + 16 * tile
        for i in range(8):
            a(f"v_cvt_pk_bf16_f32 v{b+i}, v{b+2*i}, v{b+2*i+1}")
    a(f"""
    s_lshl_b32 {sr(sT1)}, {sr(sHP)}, 1
    s_add_u32 {sr(sT1)}, {sr(sT1)}, {sr(sHH)}
    s_lshl_b32 {sr(sKVSRC)}, {sr(sT1)}, 18
    s_lshl_b32 {sr(sT1)}, {sr(sTB)}, 15
    s_lshl_b32 {sr(sT2)}, {sr(sTQ)}, 13
    s_add_u32 {sr(sT1)}, {sr(sT1)}, {sr(sT2)}
    s_add_u32 {sr(sKVO)}, {sr(sT1)}, {sr(sKVSRC)}
    """)
    if opt.get("half", 1):
        late = a.label("late")
        a(f"s_cmp_lt_u32 {sr(sTQ)}, 2")
        a(f"s_cbranch_scc0 {late}")
        kv_stores(a)
        a(f"{late}:")
    else:
        kv_stores(a)
    a(f"s_mov_b32 {sr(sT2)}, {hex(f2u(QSCALE))}")
    a(f"s_mov_b32 {sr(sT3)}, {hex(f2u(QSCALE))}")
    for tt in range(2):
        b = ACC + 16 * tt
        for i in range(8):
            a(f"v_pk_mul_f32 {vr(b+2*i,2)}, {vr(b+2*i,2)}, {sr(sT2,2)}")
        for i in range(8):
            a(f"v_cvt_pk_bf16_f32 v{QF+8*tt+i}, v{b+2*i}, v{b+2*i+1}")
    kb = ACC + 32
    a("s_nop 1")
    for x in range(2):
        S, Q = SS + 16 * x, QF + 8 * x
        a(f"v_mfma_f32_32x32x16_bf16 {vr(S,16)}, {vr(kb,4)}, {vr(Q,4)}, 0")
        a(f"v_mfma_f32_32x32x16_bf16 {vr(S,16)}, {vr(kb+4,4)}, {vr(Q+4,4)}, {vr(S,16)}")
    a(f"""
    s_lshr_b32 {sr(sT1)}, {sr(sTQ)}, 1
    s_lshl_b32 {sr(sT1)}, {sr(sT1)}, 15
    s_lshl_b32 {sr(sT2)}, {sr(sHH)}, 14
    s_add_u32 {sr(sT1)}, {sr(sT1)}, {sr(sT2)}
    s_and_b32 {sr(sT2)}, {sr(sTQ)}, 1
    s_lshl_b32 {sr(sT2)}, {sr(sT2)}, 13
    s_add_u32 {sr(sT1)}, {sr(sT1)}, {sr(sT2)}
    v_add_u32 v12, {sr(sT1)}, {vr(vL16)}
    """)
    for tt in range(2):
        kb, vb = ACC + 32 + 16 * tt, ACC + 64 + 16 * tt
        a(f"ds_write_b128 v12, {vr(kb,4)} offset:{tt*4096}")
        a(f"ds_write_b128 v12, {vr(kb+4,4)} offset:{tt*4096+1024}")
        a(f"ds_write_b128 v12, {vr(vb,4)} offset:{tt*4096+2048}")
        a(f"ds_write_b128 v12, {vr(vb+4,4)} offset:{tt*4096+3072}")
    if opt.get("dump_q"):
        a(f"""
        s_lshl_b32 {sr(sT1)}, s2, 3
        s_add_u32 {sr(sT1)}, {sr(sT1)}, {sr(sW)}
        s_lshl_b32 {sr(sT1)}, {sr(sT1)}, 12
        s_add_u32 {sr(sT1)}, {sr(sT1)}, {WS_DBG}
        """)
        for i in range(4):
            a(f"buffer_store_dwordx4 {vr(QF+4*i,4)}, {vr(vL16)}, {sr(SRD_WS,4)}, {sr(sT1)} offen offset:{i*1024}")

def smf(L):
    return f"v_smfmac_f32_16x16x64_bf16 {vr(L,4)}, {vr(ONES,4)}, {vr(PP,8)}, {vr(IDX)}"

def attn_unit(a, t, x, hooks, skip_prev=False, c_zero=False):
    S = SS + 16 * x
    Sn = SS + 16 * (x ^ 1)
    xn = xp = x ^ 1
    Qn = QF + 8 * xn
    P0, P1 = PP, PP + 4
    def M(d, A, B, C): return f"v_mfma_f32_32x32x16_bf16 {vr(d,16)}, {vr(A,4)}, {vr(B,4)}, {C}"
    e = lambda i: f"v_exp_f32 v{S+i}, v{S+i}"
    c = lambda i: f"v_cvt_pk_bf16_f32 v{PP+i}, v{S+2*i}, v{S+2*i+1}"
    mf = [M(Sn, KF, Qn, vr(NM + 16 * xn, 16)),
          None if skip_prev else M(OA + 16 * xp, VF + 4, P1, vr(OA + 16 * xp, 16)),
          None if skip_prev else smf(LA + 4 * xp),
          M(Sn, KF + 4, Qn + 4, vr(Sn, 16)),
          M(OA + 16 * x, VF, P0, "0" if c_zero else vr(OA + 16 * x, 16))]
    va = [[e(0), e(1), e(2)], [e(3), e(4), e(5)], [e(6), e(7), c(0), c(1), c(2), c(3)],
          [e(8), e(9), e(10)], [e(11), e(12), e(13), e(14), e(15), c(4), c(5), c(6), c(7)]]
    for g in range(5):
        if mf[g]: a(mf[g])
        for h in hooks.get(g, []):
            a(h)
        for v in va[g]:
            a(v)

def kv_addr(tile, f):
    if tile < 4:
        return vCUR, tile * 4096 + f * 1024
    return vNXT, f * 1024

def rd(dst, tile, f):
    b, o = kv_addr(tile, f)
    return f"ds_read_b128 {vr(dst,4)}, {vr(b)} offset:{o}"

def kv_dma(p, so):
    return f"buffer_load_dwordx4 {vr(vDMA)}, {sr(SRD_WS,4)}, {sr(so)} offen offset:{p*1024} sc1 lds"

def sample_mailbox(a, off_s, lanes):
    sk = a.label("smp")
    a(f"s_cmp_eq_u32 {sr(sW)}, 0")
    a(f"s_cbranch_scc0 {sk}")
    a(f"v_lshlrev_b32 {vr(vPA)}, 2, v0")
    a(f"s_mov_b32 exec_lo, {hex(lanes)}")
    a("s_mov_b32 exec_hi, 0")
    a(f"buffer_load_dword {vr(vPV)}, {vr(vPA)}, {sr(SRD_WS,4)}, {sr(off_s)} offen sc1")
    a("s_mov_b64 exec, -1")
    a("s_nop 3")
    a(f"{sk}:")

def poll_mailbox(a, want_all):
    poll, done = a.label("poll"), a.label("pdone")
    a(f"s_mov_b32 {sr(sT1)}, 400000")
    a(f"s_add_u32 {sr(sT2)}, {sr(sTB)}, 1")
    a(f"s_and_b32 {sr(sT2)}, {sr(sT2)}, 7")
    a(f"s_lshl_b32 {sr(sT2)}, 1, {sr(sT2)}")
    if want_all:
        a(f"s_mov_b32 {sr(sT2)}, {0xffff if OPT.get('half', 1) else 0xff}")
    a("s_mov_b64 exec, 0xffff")
    a(f"{poll}:")
    a("s_waitcnt vmcnt(0)")
    a(f"v_cmp_eq_u32 vcc, 1, {vr(vPV)}")
    a("s_nop 3")
    a(f"s_and_b32 {sr(sT3)}, vcc_lo, {sr(sT2)}")
    a(f"s_cmp_eq_u32 {sr(sT3)}, {sr(sT2)}")
    a(f"s_cbranch_scc1 {done}")
    a(f"s_sub_u32 {sr(sT1)}, {sr(sT1)}, 1")
    a(f"s_cbranch_scc1 {done}")
    a(f"buffer_load_dword {vr(vPV)}, {vr(vPA)}, {sr(SRD_WS,4)}, {sr(sMB)} offen sc1")
    a(f"s_branch {poll}")
    a(f"{done}:")
    a("s_mov_b64 exec, -1")

def publish(a):
    spin, ok = a.label("rdy"), a.label("rdyok")
    a(f"s_mov_b32 {sr(sT1)}, 400000")
    a(f"s_mov_b32 {sr(sT2)}, 0x55555555")
    a(f"v_lshlrev_b32 v12, 2, v0")
    a(f"{spin}:")
    a(f"v_cmp_eq_u32 vcc, 8, {vr(vCHK)}")
    a("s_nop 3")
    a(f"s_and_b32 {sr(sT0)}, vcc_lo, {sr(sT2)}")
    a(f"s_and_b32 {sr(sT3)}, vcc_hi, {sr(sT2)}")
    a(f"s_and_b32 {sr(sT0)}, {sr(sT0)}, {sr(sT3)}")
    a(f"s_cmp_eq_u32 {sr(sT0)}, {sr(sT2)}")
    a(f"s_cbranch_scc1 {ok}")
    a(f"s_sub_u32 {sr(sT1)}, {sr(sT1)}, 1")
    a(f"s_cbranch_scc1 {ok}")
    a(f"buffer_load_dword {vr(vCHK)}, v12, {sr(SRD_DBG,4)}, 0 offen sc1")
    a("s_waitcnt vmcnt(0)")
    a(f"s_branch {spin}")
    a(f"{ok}:")
    a(f"""
    s_lshl_b32 {sr(sT0)}, {sr(sHP)}, 10
    s_lshl_b32 {sr(sT1)}, {sr(sTB)}, 2
    s_add_u32 {sr(sT0)}, {sr(sT0)}, {sr(sT1)}
    s_add_u32 {sr(sT0)}, {sr(sT0)}, {WS_MB}
    v_lshlrev_b32 v12, 7, v0
    v_mov_b32 v13, 1
    s_mov_b64 exec, 0xff
    buffer_store_dword v13, v12, {sr(SRD_WS,4)}, {sr(sT0)} offen sc1
    s_mov_b64 exec, -1
    """)

def publish_b(a):
    a(f"""
    s_lshl_b32 {sr(sT0)}, {sr(sHP)}, 10
    s_lshl_b32 {sr(sT1)}, {sr(sTB)}, 2
    s_add_u32 {sr(sT0)}, {sr(sT0)}, {sr(sT1)}
    s_add_u32 {sr(sT0)}, {sr(sT0)}, {WS_MB + 32}
    v_lshlrev_b32 v12, 7, v0
    v_mov_b32 v13, 1
    s_mov_b64 exec, 0xff
    buffer_store_dword v13, v12, {sr(SRD_WS,4)}, {sr(sT0)} offen sc1
    s_mov_b64 exec, -1
    """)

def kv_stores(a):
    a(f"s_add_u32 {sr(sT2)}, {sr(sKVO)}, 4096")
    for tt in range(2):
        so = sKVO if tt == 0 else sT2
        vk = vLK if OPT.get("g16", 1) else vL16
        a(f"buffer_store_dwordx4 {vr(kreg(tt,0),4)}, {vr(vk)}, {sr(SRD_WS,4)}, {sr(so)} offen sc1")
        a(f"buffer_store_dwordx4 {vr(kreg(tt,1),4)}, {vr(vk)}, {sr(SRD_WS,4)}, {sr(so)} offen offset:1024 sc1")
        a(f"buffer_store_dwordx4 {vr(vreg(tt,0),4)}, {vr(vL16)}, {sr(SRD_WS,4)}, {sr(so)} offen offset:2048 sc1")
        a(f"buffer_store_dwordx4 {vr(vreg(tt,1),4)}, {vr(vL16)}, {sr(SRD_WS,4)}, {sr(so)} offen offset:3072 sc1")

def wo_piece(i, half):
    return [f"s_add_u32 {sr(sT0)}, {sr(sROT)}, {i}", f"s_and_b32 {sr(sT0)}, {sr(sT0)}, 15", f"s_lshl_b32 {sr(sT0)}, {sr(sT0)}, 17",
            f"s_add_u32 {sr(sT0)}, {sr(sT0)}, {sr(sWOFF)}"] + ([f"s_add_u32 {sr(sT0)}, {sr(sT0)}, 16384"] if half else []) + \
           [f"s_add_u32 m0, {sr(sLDSW3)}, {(i % NSLOT3) * 16384 + half * 1024}", "s_nop 0",
            f"buffer_load_dwordx4 {vr(vDW3)}, {sr(SRD_WO,4)}, {sr(sT0)} offen lds"]

def attn_stage(a, opt, kind, s_=None):
    prio = opt.get("prio", 1)
    def sp(n): return [f"s_setprio {n}"] if prio else []
    for t in range(4):
        h0 = {0: [rd(KF, t + 1, 0)], 1: [rd(VF + 4, t, 3)], 2: ["s_waitcnt lgkmcnt(2)"],
              3: [rd(KF + 4, t + 1, 1)], 4: ["s_waitcnt lgkmcnt(2)"]}
        h1 = {0: ["s_waitcnt lgkmcnt(1)"], 1: [], 2: ["s_waitcnt lgkmcnt(0)"], 3: [], 4: [rd(VF, t + 1, 2)]}
        if kind == 1 and t in (0, 2):
            sample_mailbox(a, sMB, 0xffff)
        if t == 0:
            h0[0] += sp(2)
            h0[4] += [f"s_mov_b32 {sr(sNXT)}, {sr(sSLOT)}"]
            h1[1] = [f"s_add_u32 {sr(sSRC)}, {sr(sSRC)}, 16384"]
            h1[3] = [f"s_and_b32 {sr(sSRC)}, {sr(sSRC)}, 0x3ffff"]
        if t == 1:
            h0[0] += sp(1)
            h1[1] = [f"s_add_u32 {sr(sSLOT)}, {sr(sSLOT)}, 32768"]
            h1[3] = [f"s_and_b32 {sr(sSLOT)}, {sr(sSLOT)}, 0x1ffff"]
            if kind == 0:
                h1[4] += ["s_waitcnt vmcnt(0)", "s_barrier"]
            if kind == 3 and s_ == 13:
                h0[2] += wo_piece(8, 0)
                h0[4] += wo_piece(8, 1)
                h1[0] += wo_piece(9, 0)
                h1[2] += wo_piece(9, 1)
            if kind == 1:
                go = a.label("go")
                lanestamp(a, 203, opt, 0)
                half = opt.get("half", 1)
                if half: a("s_waitcnt vmcnt(0)")
                a(f"s_cmp_eq_u32 {sr(sW)}, 0")
                a(f"s_cbranch_scc0 {go}")
                poll_mailbox(a, False)
                a(f"{go}:")
                lanestamp(a, 203, opt, 1)
                a("s_barrier")
                lanestamp(a, 203, opt, 2)
                for st in ((2,) if half else (2, 3)):
                    a(f"""
                    s_lshl_b32 {sr(sT0)}, {sr(sTB)}, 1
                    s_add_u32 {sr(sT0)}, {sr(sT0)}, {st}
                    s_and_b32 {sr(sT0)}, {sr(sT0)}, 15
                    s_lshl_b32 {sr(sOFFS)}, {sr(sT0)}, 14
                    s_add_u32 m0, {sr(sLDSW)}, {st * 32768}
                    s_nop 0
                    """)
                    for p in range(4):
                        a(kv_dma(p, sOFFS))
                if half:
                    nb = a.label("nb")
                    a(f"s_cmp_eq_u32 {sr(sW)}, 0")
                    a(f"s_cbranch_scc0 {nb}")
                    publish_b(a)
                    a(f"{nb}:")
        if t == 2:
            h0[0] += sp(0)
            h1[1] = [f"s_add_u32 m0, {sr(sSLOT)}, {sr(sLDSW)}"]
            h1[3] = [f"s_add_u32 {sr(sJ)}, {sr(sJ)}, 1"]
            if kind == 0:
                h1[4] += ["s_barrier"] + sp(3)
                if opt.get("half", 1):
                    ns = a.label("ns")
                    a(f"s_cmp_ge_u32 {sr(sTQ)}, 2")
                    a(f"s_cbranch_scc0 {ns}")
                    kv_stores(a)
                    a(f"{ns}:")
                np_ = a.label("np")
                a(f"s_cmp_eq_u32 {sr(sW)}, 0")
                a(f"s_cbranch_scc0 {np_}")
                publish(a)
                a(f"{np_}:")
            elif kind == 3 and s_ == 15:
                h1[4] += ["s_barrier"] + sp(3)
            elif kind == 3:
                h1[4] += ["s_waitcnt vmcnt(8)", "s_barrier"] + sp(3)
            elif kind != 1:
                h1[4] += ["s_waitcnt vmcnt(4)", "s_barrier"] + sp(3)
        if t == 3:
            if kind == 3:
                q = s_ - 13
                h0[2] += wo_piece(2 * q, 0)
                h0[4] += wo_piece(2 * q, 1)
                h1[1] = wo_piece(2 * q + 1, 0)
                h1[3] = wo_piece(2 * q + 1, 1)
            elif kind != 0:
                h0[2] += [kv_dma(0, sSRC)]
                h0[4] += [kv_dma(1, sSRC)]
                h1[1] = [kv_dma(2, sSRC)]
                h1[3] = [kv_dma(3, sSRC)]
            if kind == 1:
                go = a.label("go")
                a(f"s_cmp_eq_u32 {sr(sW)}, 0")
                a(f"s_cbranch_scc0 {go}")
                poll_mailbox(a, True)
                a(f"{go}:")
                if opt.get("half", 1):
                    a("s_waitcnt vmcnt(0)")
                    a("s_barrier")
                    a(f"""
                    s_lshl_b32 {sr(sT0)}, {sr(sTB)}, 1
                    s_add_u32 {sr(sT0)}, {sr(sT0)}, 3
                    s_and_b32 {sr(sT0)}, {sr(sT0)}, 15
                    s_lshl_b32 {sr(sOFFS)}, {sr(sT0)}, 14
                    s_add_u32 m0, {sr(sLDSW)}, {3 * 32768}
                    s_nop 0
                    """)
                    for p in range(4):
                        a(kv_dma(p, sOFFS))
                    a(f"s_add_u32 m0, {sr(sSLOT)}, {sr(sLDSW)}")
                else:
                    a("s_waitcnt vmcnt(4)")
                    a("s_barrier")
                for x in sp(3): a(x)
        first = kind == 0 and t == 0
        attn_unit(a, t, 0, h0, skip_prev=first, c_zero=first)
        attn_unit(a, t, 1, h1, c_zero=first)
    a(f"v_mov_b32 {vr(vCUR)}, {vr(vNXT)}")
    a(f"v_add_u32 {vr(vNXT)}, {sr(sNXT)}, {vr(vKVB)}")

def attention(a, opt):
    a(f"""
    v_bfe_u32 v12, v0, 2, 1
    v_and_b32 v13, 3, v0
    v_mov_b32 v14, 0x3f803f80
    v_cmp_gt_u32 vcc, 2, v13
    s_nop 1
    v_cndmask_b32 v14, 0, v14, vcc
    v_cmp_eq_u32 vcc, 0, v12
    s_nop 1
    v_cndmask_b32 v{ONES}, 0, v14, vcc
    v_cndmask_b32 v{ONES+2}, v14, 0, vcc
    v_mov_b32 v{ONES+1}, v{ONES}
    v_mov_b32 v{ONES+3}, v{ONES+2}
    v_mov_b32 v14, 0x4444
    v_mov_b32 v12, 0xeeee
    v_cmp_eq_u32 vcc, 1, v13
    s_nop 1
    v_cndmask_b32 v{IDX}, v14, v12, vcc
    s_lshl_b32 {sr(sT0)}, {sr(sHH)}, 14
    v_add_u32 {vr(vKVB)}, {sr(sT0)}, {vr(vL16)}
    v_mov_b32 {vr(vCUR)}, {vr(vKVB)}
    v_add_u32 {vr(vNXT)}, 32768, {vr(vKVB)}
    s_lshl_b32 {sr(sT1)}, {sr(sTQ)}, 12
    s_add_u32 {sr(sLDSW)}, {sr(sT0)}, {sr(sT1)}
    s_add_u32 {sr(sKVSRC)}, {sr(sKVSRC)}, {sr(sT1)}
    v_add_u32 {vr(vDMA)}, {sr(sKVSRC)}, {vr(vL16)}
    s_lshl_b32 {sr(sSRC)}, {sr(sTB)}, 1
    s_add_u32 {sr(sSRC)}, {sr(sSRC)}, 2
    s_and_b32 {sr(sSRC)}, {sr(sSRC)}, 15
    s_lshl_b32 {sr(sSRC)}, {sr(sSRC)}, 14
    s_mov_b32 {sr(sSLOT)}, {2 * 32768}
    s_mov_b32 {sr(sJ)}, 0
    v_lshrrev_b32 v12, 3, v0
    v_and_b32 v13, 7, v0
    v_bfe_u32 v14, v12, 1, 1
    v_lshlrev_b32 v14, 2, v14
    v_xor_b32 v13, v13, v14
    s_lshl_b32 {sr(sT0)}, {sr(sTQ)}, 4
    v_add_u32 v12, {sr(sT0)}, v12
    v_lshlrev_b32 {vr(vDW3)}, 11, v12
    v_lshl_add_u32 {vr(vDW3)}, v13, 4, {vr(vDW3)}
    s_lshl_b32 {sr(sWOFF)}, {sr(sCB)}, 7
    s_lshl_b32 {sr(sLDSW3)}, {sr(sHH)}, 13
    s_lshl_b32 {sr(sT0)}, {sr(sTQ)}, 11
    s_add_u32 {sr(sLDSW3)}, {sr(sLDSW3)}, {sr(sT0)}
    """)
    for i in range(8): a(f"v_mov_b32 v{LA+i}, 0")
    for x in range(2):
        S = SS + 16 * x
        a(f"v_max3_f32 v12, v{S}, v{S+1}, v{S+2}")
        for i in range(3, 15, 2):
            a(f"v_max3_f32 v12, v12, v{S+i}, v{S+i+1}")
        a(f"v_max_f32 v12, v12, v{S+15}")
        a(f"""
        v_mov_b32 v13, v12
        s_nop 1
        v_permlane32_swap_b32 v13, v12
        s_nop 1
        v_max_f32 v12, v12, v13
        v_sub_f32 v12, 0, v12
        """)
        for i in range(16):
            a(f"v_mov_b32 v{NM+16*x+i}, v12")
    a("s_waitcnt lgkmcnt(0)")
    a("s_barrier")
    a(rd(KF, 0, 0)); a(rd(KF + 4, 0, 1)); a(rd(VF, 0, 2))
    a("s_waitcnt lgkmcnt(1)")
    a(f"v_mfma_f32_32x32x16_bf16 {vr(SS,16)}, {vr(KF,4)}, {vr(QF,4)}, {vr(NM,16)}")
    a(f"v_mfma_f32_32x32x16_bf16 {vr(SS,16)}, {vr(KF+4,4)}, {vr(QF+4,4)}, {vr(SS,16)}")
    lanestamp(a, 203, opt, 3)
    a("s_waitcnt lgkmcnt(0)")
    a("s_nop 15")
    attn_stage(a, opt, 0)
    lanestamp(a, 202, opt, 0)
    attn_stage(a, opt, 1)
    lanestamp(a, 202, opt, 1)
    loop = a.label("attn")
    a(".p2align 6")
    a(f"{loop}:")
    attn_stage(a, opt, 2)
    lanestamp(a, 202, opt, "m")
    a(f"s_cmp_lt_u32 {sr(sJ)}, 13")
    a(f"s_cbranch_scc1 {loop}")
    for s_ in (13, 14, 15):
        attn_stage(a, opt, 3, s_)
        lanestamp(a, 202, opt, s_)
    a("s_setprio 0")
    a("s_nop 1")
    a(f"v_mfma_f32_32x32x16_bf16 {vr(OA+16,16)}, {vr(VF+4,4)}, {vr(PP+4,4)}, {vr(OA+16,16)}")
    a(smf(LA + 4))
    a("s_waitcnt lgkmcnt(0)")

def attn_epilogue(a, opt):
    a(f"""
    s_lshl_b32 {sr(sT0)}, {sr(sTB)}, 3
    s_lshl_b32 {sr(sT1)}, {sr(sTQ)}, 1
    s_add_u32 {sr(sT0)}, {sr(sT0)}, {sr(sT1)}
    s_lshl_b32 {sr(sT0)}, {sr(sT0)}, 17
    s_lshl_b32 {sr(sT1)}, {sr(sHP)}, 1
    s_add_u32 {sr(sT1)}, {sr(sT1)}, {sr(sHH)}
    s_lshl_b32 {sr(sT1)}, {sr(sT1)}, 11
    s_add_u32 {sr(sT0)}, {sr(sT0)}, {sr(sT1)}
    s_add_u32 {sr(sOOFF)}, {sr(sT0)}, {WS_O}
    s_mov_b32 {sr(sT2)}, {hex(f2u(2.0**24))}
    s_nop 7
    """)
    ok = a.label("ok")
    a("v_mov_b32 v12, 0")
    a("v_mov_b32 v13, 0")
    a(f"v_add_f32 v{LA}, v{LA}, v{LA+1}")
    a(f"v_add_f32 v{LA+4}, v{LA+4}, v{LA+5}")
    for i in range(16):
        a(f"v_pk_fma_f32 v[12:13], {vr(OA+2*i,2)}, 0, v[12:13] op_sel_hi:[1,0,1]")
    a(f"v_cmp_nle_f32 {sr(sM,2)}, v{LA}, {sr(sT2)}")
    a(f"v_cmp_nle_f32 {sr(sM2,2)}, v{LA+4}, {sr(sT2)}")
    a("v_cmp_u_f32 vcc, v12, v13")
    a(f"s_or_b64 {sr(sM,2)}, {sr(sM,2)}, {sr(sM2,2)}")
    a(f"s_or_b64 {sr(sM,2)}, {sr(sM,2)}, vcc")
    if opt.get("force_fallback"):
        a(f"s_mov_b64 {sr(sM,2)}, -1")
    a(f"s_cmp_eq_u64 {sr(sM,2)}, 0")
    a(f"s_cbranch_scc1 {ok}")
    fallback(a, opt)
    a(f"{ok}:")
    a(f"v_rcp_f32 v12, v{LA}")
    a(f"v_rcp_f32 v14, v{LA+4}")
    for x in range(2):
        r = (12, 14)[x]
        a(f"v_mov_b32 v{r+1}, v{r}" if x == 1 else f"v_mov_b32 v13, v12")
        b = OA + 16 * x
        for i in range(8):
            a(f"v_pk_mul_f32 {vr(b+2*i,2)}, {vr(b+2*i,2)}, {vr(r,2)}")
        for i in range(8):
            a(f"v_cvt_pk_bf16_f32 v{b+i}, v{b+2*i}, v{b+2*i+1}")
        if x == 1:
            a(f"s_add_u32 {sr(sOOFF)}, {sr(sOOFF)}, 131072")
        a(f"buffer_store_dwordx4 {vr(b,4)}, {vr(vL16)}, {sr(SRD_WS,4)}, {sr(sOOFF)} offen sc1")
        a(f"buffer_store_dwordx4 {vr(b+4,4)}, {vr(vL16)}, {sr(SRD_WS,4)}, {sr(sOOFF)} offen offset:1024 sc1")

def phase3(a, opt):
    vm = VmTracker()
    ACC3, AF, OF, DEPTH, NSLOT = 16, 48, 72, opt.get("depth", 16), NSLOT3
    vRD = [7, 8, 9, 11, 4, 5]
    vG, vOUT = 14, 13
    sample_mailbox(a, sMB2, 0xffffffff)
    a("s_waitcnt vmcnt(0)")
    a("s_barrier")
    timestamp(a, 4, opt)
    np_ = a.label("np3")
    a(f"s_cmp_eq_u32 {sr(sW)}, 0")
    a(f"s_cbranch_scc0 {np_}")
    a(f"""
    s_lshl_b32 {sr(sT0)}, {sr(sTB)}, 12
    s_lshl_b32 {sr(sT1)}, {sr(sHP)}, 2
    s_add_u32 {sr(sT0)}, {sr(sT0)}, {sr(sT1)}
    s_add_u32 {sr(sT0)}, {sr(sT0)}, {WS_MB2}
    v_lshlrev_b32 v12, 7, v0
    v_mov_b32 v15, 1
    s_mov_b32 exec_lo, -1
    s_mov_b32 exec_hi, 0
    buffer_store_dword v15, v12, {sr(SRD_WS,4)}, {sr(sT0)} offen sc1
    s_mov_b64 exec, -1
    """)
    poll = a.label("poll3"); done = a.label("pd3")
    a(f"""
    s_mov_b32 {sr(sT1)}, 400000
    s_lshr_b32 {sr(sT2)}, {sr(sTB3)}, 1
    s_cmp_eq_u32 {sr(sT2)}, {sr(sTB)}
    s_cselect_b32 {sr(sT2)}, 1, 0
    s_lshl_b32 {sr(sT2)}, {sr(sT2)}, {sr(sHP)}
    s_mov_b32 exec_lo, -1
    s_mov_b32 exec_hi, 0
    """)
    a(f"{poll}:")
    a(f"v_cmp_eq_u32 vcc, 1, {vr(vPV)}")
    a("s_nop 3")
    a(f"s_or_b32 {sr(sT3)}, vcc_lo, {sr(sT2)}")
    a(f"s_cmp_eq_u32 {sr(sT3)}, -1")
    a(f"s_cbranch_scc1 {done}")
    a(f"s_sub_u32 {sr(sT1)}, {sr(sT1)}, 1")
    a(f"s_cbranch_scc1 {done}")
    a(f"buffer_load_dword {vr(vPV)}, {vr(vPA)}, {sr(SRD_WS,4)}, {sr(sMB2)} offen sc1")
    a("s_waitcnt vmcnt(0)")
    a(f"s_branch {poll}")
    a(f"{done}:")
    a("s_mov_b64 exec, -1")
    a(f"{np_}:")
    def wdma(i):
        for half in range(2):
            for x in wo_piece(i, half): a(x)
            vm.issue(("w", i))
    wdma(6); wdma(7)
    a(f"""
    v_and_b32 v12, 31, v0
    s_lshl_b32 {sr(sT0)}, {sr(sTB3)}, 7
    s_lshl_b32 {sr(sT2)}, {sr(sTQ)}, 5
    s_add_u32 {sr(sT0)}, {sr(sT0)}, {sr(sT2)}
    v_add_u32 v12, {sr(sT0)}, v12                  ; token
    v_lshlrev_b32 v3, 2, v12
    v_lshrrev_b32 {vr(vG)}, 5, v0                  ; h
    v_lshlrev_b32 {vr(vOUT)}, 11, v12
    v_lshl_add_u32 {vr(vOUT)}, {vr(vG)}, 4, {vr(vOUT)}
    v_bfe_u32 v15, v0, 2, 2                        ; r
    v_lshl_add_u32 v12, {vr(vG)}, 2, v15           ; 4h + r
    v_lshlrev_b32 v2, 7, v12
    v_and_b32 v12, 1, v0                           ; h'
    v_bfe_u32 v1, v0, 1, 1                         ; a
    v_bfe_u32 v5, v0, 4, 1                         ; g
    v_lshl_add_u32 v12, v5, 1, v12                 ; chunk16 = 2g + h'
    v_lshrrev_b32 v15, 1, v15
    v_lshlrev_b32 v15, 2, v15
    v_xor_b32 v12, v12, v15
    v_lshl_add_u32 v2, v12, 4, v2
    v_lshl_add_u32 v2, v1, 3, v2
    s_lshl_b32 {sr(sT0)}, {sr(sHH)}, 13
    v_add_u32 v{vRD[0]}, {sr(sT0)}, v2
    v_xor_b32 v{vRD[1]}, 64, v{vRD[0]}
    v_add_u32 v{vRD[2]}, 0x10000, v{vRD[0]}
    v_add_u32 v{vRD[3]}, 0x10000, v{vRD[1]}
    v_add_u32 v{vRD[4]}, 0x20000, v{vRD[0]}
    v_add_u32 v{vRD[5]}, 0x20000, v{vRD[1]}
    s_lshl_b32 {sr(sT0)}, {sr(sTB3)}, 2
    s_add_u32 {sr(sT0)}, {sr(sT0)}, {sr(sTQ)}
    s_lshl_b32 {sr(sAOFF)}, {sr(sT0)}, 17
    s_lshl_b32 {sr(sT1)}, {sr(sHH)}, 16
    s_add_u32 {sr(sAOFF)}, {sr(sAOFF)}, {sr(sT1)}
    s_add_u32 {sr(sAOFF)}, {sr(sAOFF)}, {WS_O}
    """)
    a("s_barrier")
    timestamp(a, 5, opt)
    if opt.get("dbg_span"): dbg_span(a, "e3")
    def oload(kk):
        d = kk % DEPTH
        if kk % 4 == 0:
            a(f"s_add_u32 {sr(sT1)}, {sr(sROT)}, {kk // 4}")
            a(f"s_and_b32 {sr(sT1)}, {sr(sT1)}, 15")
            a(f"s_lshl_b32 {sr(sT1)}, {sr(sT1)}, 12")
            a(f"s_add_u32 {sr(sT1)}, {sr(sT1)}, {sr(sAOFF)}")
        if opt.get("p3_noload") and kk >= DEPTH: return
        sc = "" if opt.get("p3_plain") else " sc1"
        a(f"buffer_load_dwordx4 {vr(OF+4*d,4)}, {vr(vL16)}, {sr(SRD_WS,4)}, {sr(sT1)} offen offset:{(kk%4)*1024}{sc}")
        vm.issue(("o", kk))
    for kk in range(DEPTH): oload(kk)
    a(f"s_mov_b32 {sr(sT2)}, {WS_G}")
    a(f"buffer_load_dword {vr(vG)}, v3, {sr(SRD_WS,4)}, {sr(sT2)} offen sc1")
    vm.issue(("g", 0))
    def wreads(st, ks, set_):
        r = []
        slot = st % NSLOT
        win, off = divmod(slot * 16384, 65536)
        for ct in range(2):
            base = AF + 8 * set_ + 4 * ct
            reg = vRD[2 * win + ct]
            r.append(f"ds_read_b64_tr_b16 {vr(base,2)}, {vr(reg)} offset:{off + ks*2048}")
            r.append(f"ds_read_b64_tr_b16 {vr(base+2,2)}, {vr(reg)} offset:{off + ks*2048+1024}")
        return r
    def wr(kk): return wreads(kk // 4, kk % 4, kk % 3)
    for x in wr(0) + wr(1): a(x)
    pend = []
    for st in range(16):
        for ks in range(4):
            kk = 4 * st + ks
            d = kk % DEPTH
            cur = kk % 3
            bar = ks == 2 and st in (5, 9)
            if bar:
                need = ("w", 7) if st == 5 else ("w", 15)
                n = vm.wait_count(lambda t: t in (need, ("o", kk)))
                a(f"s_waitcnt vmcnt({n}) lgkmcnt(0)")
                a("s_barrier")
                if st == 5:
                    pend = [(i, h) for i in range(10, 16) for h in range(2)]
            else:
                n = vm.wait_count(lambda t: t == ("o", kk))
                a(f"s_waitcnt vmcnt({n}) lgkmcnt({4 if kk < 63 else 0})")
            nxt = wr(kk + 2) if kk + 2 < 64 else []
            for ct in range(2):
                c = "0" if kk == 0 else vr(ACC3+16*ct,16)
                a(f"v_mfma_f32_32x32x16_bf16 {vr(ACC3+16*ct,16)}, {vr(AF+8*cur+4*ct,4)}, {vr(OF+4*d,4)}, {c}")
                for x in nxt[2*ct:2*ct+2]: a(x)
            if kk + DEPTH < 64:
                oload(kk + DEPTH)
            for i, h in pend[:2]:
                if opt.get("p3_nowo"): continue
                for x in wo_piece(i, h): a(x)
                vm.issue(("w", i))
            pend = pend[2:]
    timestamp(a, 6, opt)
    if opt.get("fullrow", 1):
        XA = 6 * 16384
        a(f"""
        v_sub_f32 v2, 1.0, {vr(vG)}
        v_cvt_pk_bf16_f32 v2, v2, v2
        v_lshlrev_b32 v2, 16, v2
        s_cmp_eq_u32 {sr(sHH)}, 0
        s_cselect_b64 vcc, -1, 0
        v_and_b32 v12, 31, v0                          ; t
        v_lshrrev_b32 v1, 5, v0                        ; h'
        v_cndmask_b32 v60, v2, {vr(vG)}, vcc
        v_and_b32 v3, 7, v12
        v_xor_b32 v1, v1, v3
        v_mov_b32 v61, v60
        s_lshl_b32 {sr(sT0)}, {sr(sHH)}, 14
        s_lshl_b32 {sr(sT1)}, {sr(sTQ)}, 12
        s_add_u32 {sr(sT0)}, {sr(sT0)}, {sr(sT1)}
        s_add_u32 {sr(sT0)}, {sr(sT0)}, {XA}
        v_lshlrev_b32 v12, 7, v12
        v_lshl_add_u32 v12, v1, 4, v12
        v_add_u32 v12, {sr(sT0)}, v12
        v_xor_b32 v56, 32, v12
        v_xor_b32 v57, 64, v12
        v_xor_b32 v58, 96, v12
        """)
        for ct in range(2):
            b = ACC3 + 16 * ct
            for i in range(8):
                a(f"v_pk_mul_f32 {vr(b+2*i,2)}, {vr(b+2*i,2)}, v[60:61]")
            for i in range(8):
                a(f"v_cvt_pk_bf16_f32 v{b+i}, v{b+2*i}, v{b+2*i+1}")
            a(f"ds_write_b128 v{12 if ct == 0 else 57}, {vr(b,4)}")
            a(f"ds_write_b128 v{56 if ct == 0 else 58}, {vr(b+4,4)}")
        a(f"""
        v_lshrrev_b32 v1, 3, v0
        v_and_b32 v3, 7, v0
        v_xor_b32 v2, v3, v1
        s_lshl_b32 {sr(sT0)}, {sr(sW)}, 4
        v_add_u32 v1, {sr(sT0)}, v1                    ; row (p = 0)
        v_lshlrev_b32 v12, 7, v1
        v_lshl_add_u32 v12, v2, 4, v12
        v_add_u32 v12, {XA}, v12
        s_lshl_b32 {sr(sT0)}, {sr(sTB3)}, 7
        v_add_u32 v1, {sr(sT0)}, v1                    ; token
        v_lshlrev_b32 {vr(vOUT)}, 11, v1
        v_lshl_add_u32 {vr(vOUT)}, v3, 4, {vr(vOUT)}
        s_lshl_b32 {sr(sT0)}, {sr(sCB)}, 7
        s_add_u32 {sr(sT1)}, {sr(sT0)}, {8 * 2048}
        s_waitcnt lgkmcnt(0)
        s_barrier
        ds_read_b128 v[16:19], v12
        ds_read_b128 v[20:23], v12 offset:16384
        ds_read_b128 v[24:27], v12 offset:1024
        ds_read_b128 v[28:31], v12 offset:{16384 + 1024}
        """)
        for p_ in range(2):
            a(f"s_waitcnt lgkmcnt({2 if p_ == 0 else 0})")
            A, B, O = 16 + 8 * p_, 20 + 8 * p_, 32 + 4 * p_
            for i in range(4):
                a(f"v_lshlrev_b32 v48, 16, v{A+i}")
                a(f"v_and_b32 v49, 0xffff0000, v{A+i}")
                a(f"v_lshlrev_b32 v50, 16, v{B+i}")
                a(f"v_and_b32 v51, 0xffff0000, v{B+i}")
                a(f"v_pk_add_f32 v[48:49], v[48:49], v[50:51]")
                a(f"v_cvt_pk_bf16_f32 v{O+i}, v48, v49")
            a(f"buffer_store_dwordx4 {vr(O,4)}, {vr(vOUT)}, {sr(SRD_OUT,4)}, {sr(sT0 if p_ == 0 else sT1)} offen {opt.get('outflag', 'sc1')}")
        return
    XA = 6 * 16384
    a(f"""
    s_lshl_b32 {sr(sT0)}, {sr(sTQ)}, 12
    s_lshl_b32 {sr(sT1)}, {sr(sHH)}, 11
    s_add_u32 {sr(sT2)}, {sr(sT0)}, {sr(sT1)}
    s_xor_b32 {sr(sT1)}, {sr(sT1)}, 2048
    s_add_u32 {sr(sT3)}, {sr(sT0)}, {sr(sT1)}
    s_add_u32 {sr(sT2)}, {sr(sT2)}, {XA}
    s_add_u32 {sr(sT3)}, {sr(sT3)}, {XA}
    v_add_u32 v12, {sr(sT2)}, {vr(vL16)}
    v_add_u32 v1, {sr(sT3)}, {vr(vL16)}
    v_sub_f32 v2, 1.0, {vr(vG)}
    v_cvt_pk_bf16_f32 v2, v2, v2
    v_lshlrev_b32 v2, 16, v2
    s_lshl_b32 {sr(sT0)}, {sr(sCB)}, 7
    s_lshl_b32 {sr(sT1)}, {sr(sHH)}, 6
    s_add_u32 {sr(sT0)}, {sr(sT0)}, {sr(sT1)}
    """)
    brb, fin = a.label("brb"), a.label("fin")
    a(f"s_cmp_eq_u32 {sr(sHH)}, 0")
    a(f"s_cbranch_scc0 {brb}")
    for br in range(2):
        K, S_ = ACC3 + 16 * br, ACC3 + 16 * (br ^ 1)
        own, rcv = (vG, 2) if br == 0 else (2, vG)
        a(f"v_mov_b32 v60, v{own}\nv_mov_b32 v61, v{own}\nv_mov_b32 v62, v{rcv}\nv_mov_b32 v63, v{rcv}")
        for i in range(8):
            a(f"v_cvt_pk_bf16_f32 v{48+i}, v{S_+2*i}, v{S_+2*i+1}")
        a("ds_write_b128 v12, v[48:51]")
        a("ds_write_b128 v12, v[52:55] offset:1024")
        a("s_waitcnt lgkmcnt(0)")
        a("s_barrier")
        a("ds_read_b128 v[48:51], v1")
        a("ds_read_b128 v[52:55], v1 offset:1024")
        for i in range(8):
            if i == 0: a("s_waitcnt lgkmcnt(1)")
            if i == 4: a("s_waitcnt lgkmcnt(0)")
            a(f"v_lshlrev_b32 v56, 16, v{48+i}")
            a(f"v_and_b32 v57, 0xffff0000, v{48+i}")
            a(f"v_pk_mul_f32 v[56:57], v[56:57], v[62:63]")
            a(f"v_pk_fma_f32 v[56:57], {vr(K+2*i,2)}, v[60:61], v[56:57]")
            if opt.get("perturb") and br == 0 and i == 0:
                a(f"s_cmp_eq_u32 s2, 0")
                a(f"s_cselect_b32 {sr(sT1)}, {hex(f2u(opt['perturb']))}, 0")
                a(f"s_cmp_eq_u32 {sr(sW)}, 0")
                a(f"s_cselect_b32 {sr(sT1)}, {sr(sT1)}, 0")
                a(f"v_mov_b32 v58, {sr(sT1)}")
                a(f"v_cmp_eq_u32 vcc, 0, v0")
                a("s_nop 1")
                a(f"v_cndmask_b32 v58, 0, v58, vcc")
                a(f"v_add_f32 v56, v56, v58")
            a(f"v_cvt_pk_bf16_f32 v{K+i}, v56, v57")
            if i == 3:
                a(f"buffer_store_dwordx4 {vr(K,4)}, {vr(vOUT)}, {sr(SRD_OUT,4)}, {sr(sT0)} offen {opt.get('outflag', 'sc1')}")
        a(f"buffer_store_dwordx4 {vr(K+4,4)}, {vr(vOUT)}, {sr(SRD_OUT,4)}, {sr(sT0)} offen offset:32 {opt.get('outflag', 'sc1')}")
        if br == 0:
            a(f"s_branch {fin}")
            a(f"{brb}:")
    a(f"{fin}:")

def fallback(a, opt):
    MX = NM
    a(f"s_lshl_b32 {sr(sT0)}, {sr(sHP)}, 1")
    a(f"s_add_u32 {sr(sT0)}, {sr(sT0)}, {sr(sHH)}")
    a(f"s_lshl_b32 {sr(sBLK)}, {sr(sT0)}, 18")
    for i in range(32): a(f"v_mov_b32 v{OA+i}, 0")
    for i in range(8): a(f"v_mov_b32 v{LA+i}, 0")
    a(f"v_mov_b32 v{MX}, 0xff800000")
    a(f"v_mov_b32 v{MX+16}, 0xff800000")
    a(f"s_mov_b32 {sr(sJ)}, 0")
    loop = a.label("fb")
    a(f"{loop}:")
    a(f"buffer_load_dwordx4 {vr(KF,4)}, {vr(vL16)}, {sr(SRD_WS,4)}, {sr(sBLK)} offen sc1")
    a(f"buffer_load_dwordx4 {vr(KF+4,4)}, {vr(vL16)}, {sr(SRD_WS,4)}, {sr(sBLK)} offen offset:1024 sc1")
    a(f"buffer_load_dwordx4 {vr(VF,4)}, {vr(vL16)}, {sr(SRD_WS,4)}, {sr(sBLK)} offen offset:2048 sc1")
    a(f"buffer_load_dwordx4 {vr(VF+4,4)}, {vr(vL16)}, {sr(SRD_WS,4)}, {sr(sBLK)} offen offset:3072 sc1")
    a("s_waitcnt vmcnt(0)")
    for x in range(2):
        S, Q, O, L, mx = SS, QF + 8 * x, OA + 16 * x, LA + 4 * x, MX + 16 * x
        a(f"v_mfma_f32_32x32x16_bf16 {vr(S,16)}, {vr(KF,4)}, {vr(Q,4)}, 0")
        a(f"v_mfma_f32_32x32x16_bf16 {vr(S,16)}, {vr(KF+4,4)}, {vr(Q+4,4)}, {vr(S,16)}")
        a("s_nop 15")
        a(f"v_max3_f32 v12, v{S}, v{S+1}, v{S+2}")
        for i in range(3, 15, 2):
            a(f"v_max3_f32 v12, v12, v{S+i}, v{S+i+1}")
        a(f"v_max_f32 v12, v12, v{S+15}")
        a(f"""
        v_mov_b32 v13, v12
        s_nop 1
        v_permlane32_swap_b32 v13, v12
        s_nop 1
        v_max3_f32 v12, v12, v13, v{mx}
        v_sub_f32 v13, v{mx}, v12
        v_cmp_eq_f32 vcc, v{mx}, v12
        v_exp_f32 v13, v13
        s_nop 1
        v_cndmask_b32 v13, v13, 1.0, vcc
        v_mov_b32 v{mx}, v12
        """)
        for i in range(16):
            a(f"v_mul_f32 v{O+i}, v13, v{O+i}")
        for i in range(4):
            a(f"v_mul_f32 v{L+i}, v13, v{L+i}")
        for i in range(16):
            a(f"v_sub_f32 v{S+i}, v{S+i}, v12")
        for i in range(16):
            a(f"v_exp_f32 v{S+i}, v{S+i}")
        a("s_nop 0")
        for i in range(8):
            a(f"v_cvt_pk_bf16_f32 v{PP+i}, v{S+2*i}, v{S+2*i+1}")
        a("s_nop 1")
        a(f"v_mfma_f32_32x32x16_bf16 {vr(O,16)}, {vr(VF,4)}, {vr(PP,4)}, {vr(O,16)}")
        a(f"v_mfma_f32_32x32x16_bf16 {vr(O,16)}, {vr(VF+4,4)}, {vr(PP+4,4)}, {vr(O,16)}")
        a(smf(L))
        a("s_nop 15")
    a(f"s_add_u32 {sr(sBLK)}, {sr(sBLK)}, 4096")
    a(f"s_add_u32 {sr(sJ)}, {sr(sJ)}, 1")
    a(f"s_cmp_lt_u32 {sr(sJ)}, 64")
    a(f"s_cbranch_scc1 {loop}")
    a(f"v_add_f32 v{LA}, v{LA}, v{LA+1}")
    a(f"v_add_f32 v{LA+4}, v{LA+4}, v{LA+5}")

def gstamp(a, reg):
    a("s_memtime s[70:71]")
    a("s_waitcnt lgkmcnt(0)")
    a("s_mov_b32 s69, m0")
    a("s_mov_b32 m0, s87")
    a(f"v_writelane_b32 v{reg-100}, s70, m0")
    a("s_mov_b32 m0, s69")

def lanestamp(a, reg, opt, lane=None):
    if not opt.get("stamps2"):
        return
    a("s_memtime s[70:71]")
    a("s_waitcnt lgkmcnt(0)")
    if lane == "m":
        a(f"s_mov_b32 s69, m0")
        a(f"s_sub_u32 m0, {sr(sJ)}, 1")
        a(f"v_writelane_b32 v{reg}, s70, m0")
        a(f"s_mov_b32 m0, s69")
    elif lane is None:
        a(f"s_mov_b32 s69, m0")
        a(f"s_mov_b32 m0, {sr(sJ)}")
        a(f"v_writelane_b32 v{reg}, s70, m0")
        a(f"s_mov_b32 m0, s69")
    else:
        a(f"v_writelane_b32 v{reg}, s70, {lane}")

def timestamp(a, idx, opt):
    if not opt.get("stamps"):
        return
    a(f"s_memtime s[70:71]")
    a(f"s_memrealtime s[92:93]")
    a("s_waitcnt lgkmcnt(0)")
    a(f"s_mov_b32 s{72+idx}, s70")
    a(f"s_mov_b32 s{80+idx}, s92")

def stamps_out(a, n, opt):
    if opt.get("stampsg"):
        a(f"""
        s_lshl_b32 {sr(sT1)}, s2, 3
        s_add_u32 {sr(sT1)}, {sr(sT1)}, {sr(sW)}
        s_lshl_b32 {sr(sT1)}, {sr(sT1)}, 10
        s_add_u32 {sr(sT1)}, {sr(sT1)}, {WS_DBG + (12 << 20)}
        v_lshlrev_b32 v12, 2, v0
        buffer_store_dword v104, v12, {sr(SRD_WS,4)}, {sr(sT1)} offen
        buffer_store_dword v105, v12, {sr(SRD_WS,4)}, {sr(sT1)} offen offset:256
        buffer_store_dword v106, v12, {sr(SRD_WS,4)}, {sr(sT1)} offen offset:512
        """)
    if opt.get("stamps2"):
        a(f"""
        s_lshl_b32 {sr(sT1)}, s2, 3
        s_add_u32 {sr(sT1)}, {sr(sT1)}, {sr(sW)}
        s_lshl_b32 {sr(sT1)}, {sr(sT1)}, 10
        s_add_u32 {sr(sT1)}, {sr(sT1)}, {WS_DBG + (10 << 20)}
        v_lshlrev_b32 v12, 2, v0
        buffer_store_dword v200, v12, {sr(SRD_WS,4)}, {sr(sT1)} offen
        buffer_store_dword v201, v12, {sr(SRD_WS,4)}, {sr(sT1)} offen offset:256
        buffer_store_dword v202, v12, {sr(SRD_WS,4)}, {sr(sT1)} offen offset:512
        buffer_store_dword v203, v12, {sr(SRD_WS,4)}, {sr(sT1)} offen offset:768
        """)
    if not opt.get("stamps"):
        return
    a(f"""
    s_lshl_b32 {sr(sT1)}, s2, 3
    s_add_u32 {sr(sT1)}, {sr(sT1)}, {sr(sW)}
    s_lshl_b32 {sr(sT1)}, {sr(sT1)}, 6
    s_add_u32 {sr(sT1)}, {sr(sT1)}, {WS_DBG + (8 << 20)}
    v_mov_b32 v13, 0
    """)
    for i in range(n):
        a(f"v_writelane_b32 v13, s{72+i}, {i}")
        a(f"v_writelane_b32 v13, s{80+i}, {8+i}")
    a(f"""
    v_lshlrev_b32 v12, 2, v0
    v_cmp_gt_u32 vcc, 16, v0
    s_and_saveexec_b64 {sr(sM,2)}, vcc
    buffer_store_dword v13, v12, {sr(SRD_WS,4)}, {sr(sT1)} offen
    s_mov_b64 exec, {sr(sM,2)}
    """)

def span3(a, opt, off):
    if not opt.get("span3"): return
    sk = a.label("sk3")
    a(f"s_cmp_eq_u32 s2, {opt['span3']}")
    a(f"s_cbranch_scc0 {sk}")
    a(f"s_cmp_eq_u32 {sr(sW)}, 0")
    a(f"s_cbranch_scc0 {sk}")
    a("s_memrealtime s[92:93]")
    a("s_waitcnt lgkmcnt(0)")
    a(f"v_mov_b32 v12, s92")
    a(f"s_mov_b32 s93, {off}")
    a("s_mov_b64 exec, 1")
    a(f"buffer_store_dword v12, off, {sr(SRD_DBG,4)}, s93 sc1")
    a("s_mov_b64 exec, -1")
    a(f"{sk}:")

def dbg_span(a, which):
    w = {"start": 4, "gemm": 12, "attn": 20, "end": 28, "e3": 36, "g0": 44, "hook": 52, "karg": 20, "dma": 36, "prew": 52, "smax": 60}[which]
    sk = a.label("sk")
    a(f"s_cmp_eq_u32 {sr(sW)}, 0")
    a(f"s_cbranch_scc0 {sk}")
    a("s_memrealtime s[92:93]")
    a("s_waitcnt lgkmcnt(0)")
    a(f"v_mov_b32 v12, s92")
    a(f"s_mov_b32 s93, {w}")
    a("s_mov_b64 exec, 1")
    a(f"buffer_atomic_umax v12, off, {sr(SRD_DBG,4)}, s93 sc1")
    a("s_mov_b64 exec, -1")
    a(f"{sk}:")

OPT = {}
def k12(opt):
    OPT.clear(); OPT.update(opt)
    a = Asm()
    a(f".globl {NAME12}\n.p2align 8\n.type {NAME12},@function\n{NAME12}:")
    timestamp(a, 0, opt)
    if opt.get("dbg_span") or opt.get("span2") or opt.get("span3"):
        a("s_memrealtime s[84:85]")
    extras = prologue(a, opt)
    if opt.get("dbg_span"):
        sk = a.label("sk")
        a(f"s_cmp_eq_u32 {sr(sW)}, 0")
        a(f"s_cbranch_scc0 {sk}")
        a("s_waitcnt lgkmcnt(0)")
        a("s_not_b32 s84, s84")
        a("v_mov_b32 v12, s84")
        a("s_mov_b32 s93, 4")
        a("s_mov_b64 exec, 1")
        a(f"buffer_atomic_umax v12, off, {sr(SRD_DBG,4)}, s93 sc1")
        a("s_mov_b64 exec, -1")
        a(f"{sk}:")
    gemm(a, opt, extras)
    if opt.get("dbg_span") or opt.get("span2"): dbg_span(a, "gemm")
    span3(a, opt, 44)
    if opt.get("stamps_start"):
        timestamp(a, 7, opt)
        opt = dict(opt); opt["stamps"] = 0
        gemm_epilogue(a, opt)
        a("s_waitcnt vmcnt(0) lgkmcnt(0)")
        opt["stamps"] = 1
        stamps_out(a, 8, opt)
        a("L_end12:\ns_endpgm")
        return a.text()
    timestamp(a, 1, opt)
    gemm_epilogue(a, opt)
    if opt.get("stop_after_gemm"):
        a("s_waitcnt vmcnt(0) lgkmcnt(0)")
        timestamp(a, 2, opt)
        stamps_out(a, 3, opt)
    else:
        timestamp(a, 2, opt)
        attention(a, opt)
        timestamp(a, 3, opt)
        if opt.get("dbg_span"): dbg_span(a, "attn")
        span3(a, opt, 52)
        attn_epilogue(a, opt)
        if opt.get("fused"):
            phase3(a, opt)
            if opt.get("stamps"):
                a("s_waitcnt vmcnt(0)")
                timestamp(a, 7, opt)
            stamps_out(a, 8, opt)
            if opt.get("span3"):
                a("s_waitcnt vmcnt(0)")
                span3(a, opt, 60)
            if opt.get("dbg_span") or opt.get("span2"):
                a("s_waitcnt vmcnt(0)")
                dbg_span(a, "end")
        else:
            a("s_waitcnt vmcnt(0)")
            timestamp(a, 4, opt)
            stamps_out(a, 5, opt)
    a("L_end12:\ns_endpgm")
    return a.text()

KD12 = f"""
.section .rodata,"a"
.p2align 6
.amdhsa_kernel {NAME12}
  .amdhsa_next_free_vgpr 256
  .amdhsa_next_free_sgpr 102
  .amdhsa_accum_offset 256
  .amdhsa_group_segment_fixed_size 0
  .amdhsa_kernarg_size 80
  .amdhsa_user_sgpr_count 2
  .amdhsa_user_sgpr_kernarg_segment_ptr 1
  .amdhsa_system_sgpr_workgroup_id_x 1
  .amdhsa_float_denorm_mode_32 3
.end_amdhsa_kernel
"""
```

```python
from asm import Asm, vr, sr, VmTracker

NAME12 = "gated_mix__mha_block__softmax_full_mha__prompt_kernel"
WS_KV = 0
WS_O = 16 << 20
WS_G = 24 << 20
WS_MB = 25 << 20
WS_MB2 = WS_MB + 65536
WS_DBG = 32 << 20
WS_SIZE = 0x10000000
LOG2E = 1.4426950408889634
QSCALE = LOG2E / (32 ** 0.5)

import struct
def f2u(x): return struct.unpack("<I", struct.pack("<f", x))[0]

SRD_X, SRD_W, SRD_WS, SRD_DBG, SRD_GW = 8, 12, 16, 20, 24
sW, sHH, sTQ, sHP, sTB = 28, 29, 30, 31, 32
sW1K = 33
sXJ = 34
sWJ = 35
sRING = 36
sRINGW = 37
sJ = 38
sT0, sT1, sT2, sT3 = 40, 41, 42, 43
sXQ = 44
sKVSRC = 45
sSLOT = 46
sBLK = 47
sM = 48
sM2 = 50
sOOFF = 52
sCNT = 53
sMB = 54
sLDSW = 55
sSRC = 39
sOFFS = 64
sNXT = 65
sCHKJ = 66
sARRJ = 67
sGOFF = 68
sKVO = 35
sPF = 47
SRD_WO, SRD_OUT = 4, 56
sTB3, sCB, sROT, sMB2 = 60, 61, 62, 63
sAOFF, sWOFF = 100, 101
sLDSW3 = 34
vDW3 = 6
vLANE = 0
vDX, vDW, vXP, vWP, vXA, vW0 = 2, 3, 4, 5, 6, 7
vL16 = 10
vXB = 11
vT = 12
FR = [64, 84]
ACC = 160
QF = 16
OA = 32
LA = 64
NM = 72
SS = 104
PP = 136
KF = 160
VF = 168
ONES = 144
IDX = 148
vCUR, vNXT = 2, 3
vKVB, vDMA = 4, 5
vCHK = 15
vPA, vPV = 149, 150

RING = 20 * 8192
NSLOT3 = 10

def wrap_add(a, dst, src, const, tmp):
    a(f"s_add_u32 {sr(tmp)}, {sr(src)}, {const}")
    a(f"s_sub_u32 {dst}, {sr(tmp)}, {RING}")
    a(f"s_cselect_b32 {dst}, {sr(tmp)}, {dst}")

def prologue(a, opt):
    a(f"""
    s_cmp_ge_u32 s2, 256
    s_cbranch_scc1 L_end12
    """)
    if opt.get("codepf", 1):
        a("""
        s_getpc_b64 s[92:93]
        L_pc12:
        s_mov_b32 s3, L_end12-L_pc12
        v_lshlrev_b32 v1, 6, v0
        v_min_u32 v1, s3, v1
        global_load_dword v33, v1, s[92:93]
        """)
    a(f"""
    s_load_dwordx4 s[56:59], s[0:1], 0
    s_load_dwordx2 s[60:61], s[0:1], 32
    s_load_dwordx2 s[62:63], s[0:1], 48
    s_load_dwordx4 s[88:91], s[0:1], 64
    s_load_dwordx2 s[94:95], s[0:1], 16
    s_load_dwordx2 s[96:97], s[0:1], 40
    s_load_dwordx2 s[98:99], s[0:1], 56
    v_lshrrev_b32 v1, 6, v0
    v_and_b32 v0, 63, v0
    s_and_b32 s3, s2, 7
    v_readfirstlane_b32 {sr(sW)}, v1
    s_lshr_b32 s4, s2, 3
    s_add_u32 s5, s4, {opt.get("hpshift", 0)}
    s_and_b32 s5, s5, 3
    s_lshl_b32 s3, s3, 2
    s_add_u32 {sr(sHP)}, s3, s5
    s_lshr_b32 {sr(sTB)}, s4, 2
    s_lshr_b32 {sr(sHH)}, {sr(sW)}, 2
    s_and_b32 {sr(sTQ)}, {sr(sW)}, 3
    s_lshl_b32 {sr(sW1K)}, {sr(sW)}, 10
    """)
    a(f"""
    v_lshrrev_b32 v13, 3, v0                 ; r8
    v_and_b32 v14, 7, v0                     ; c'
    s_and_b32 {sr(sT0)}, {sr(sW)}, 1
    s_lshl_b32 {sr(sT0)}, {sr(sT0)}, 2
    v_lshrrev_b32 v15, 1, v13                ; r8>>1 (0..3)
    v_add_u32 v1, {sr(sT0)}, v15             ; 4*(w&1) + (r8>>1)
    v_xor_b32 v1, v1, v14                    ; cX
    s_lshl_b32 {sr(sT1)}, {sr(sW)}, 3
    v_add_u32 v13, {sr(sT1)}, v13            ; 8w + r8
    v_lshlrev_b32 {vr(vDX)}, 11, v13
    v_lshl_add_u32 {vr(vDX)}, v1, 4, {vr(vDX)}
    v_and_b32 v15, 1, v15
    v_lshlrev_b32 v15, 2, v15
    v_xor_b32 v15, v15, v14                  ; cW
    s_and_b32 {sr(sT1)}, {sr(sW)}, {1 if opt.get("g16", 1) else 0}
    s_lshl_b32 {sr(sT1)}, {sr(sT1)}, 1
    v_xor_b32 v15, {sr(sT1)}, v15
    s_mov_b32 {sr(sT1)}, 6144
    v_mul_lo_u32 {vr(vDW)}, v13, {sr(sT1)}
    v_lshl_add_u32 {vr(vDW)}, v15, 4, {vr(vDW)}
    s_lshl_b32 {sr(sXJ)}, {sr(sTB)}, 19          ; tb*256*2048
    s_and_b32 {sr(sWJ)}, {sr(sHP)}, 15
    s_lshl_b32 {sr(sWJ)}, {sr(sWJ)}, 7           ; hpl*128
    """)
    if opt.get("g16", 1):
        a(f"""
        v_and_b32 v13, 15, v0
        v_lshrrev_b32 v14, 4, v0                 ; g
        v_bfe_u32 v15, v13, 1, 3
        v_xor_b32 v15, v15, v14
        v_lshlrev_b32 {vr(vXP)}, 7, v13
        v_lshl_add_u32 {vr(vXP)}, v15, 4, {vr(vXP)}
        v_bfe_u32 v13, v0, 2, 2                  ; r
        v_lshl_add_u32 v1, v14, 3, v13           ; 8g + r
        v_lshlrev_b32 {vr(vWP)}, 7, v1
        v_bfe_u32 v15, v0, 1, 1                  ; c>>1
        s_lshl_b32 {sr(sT1)}, {sr(sHH)}, 2
        v_add_u32 v15, {sr(sT1)}, v15            ; cc
        v_lshrrev_b32 v13, 1, v13
        v_lshlrev_b32 v13, 2, v13
        v_xor_b32 v15, v15, v13
        v_and_b32 v14, 1, v14
        v_lshlrev_b32 v14, 1, v14
        v_xor_b32 v15, v15, v14
        v_lshl_add_u32 {vr(vWP)}, v15, 4, {vr(vWP)}
        v_and_b32 v1, 1, v0
        v_lshl_add_u32 {vr(vWP)}, v1, 3, {vr(vWP)}
        v_lshlrev_b32 {vr(vL16)}, 4, v0
        s_add_u32 {sr(sXQ)}, {sr(sTQ)}, 3
        s_lshl_b32 {sr(sXQ)}, {sr(sXQ)}, 13
        """)
    else:
        a(f"""
    v_and_b32 v13, 31, v0
    v_lshrrev_b32 v14, 5, v0                 ; h
    v_bfe_u32 v15, v13, 1, 3
    v_xor_b32 v15, v15, v14
    v_lshlrev_b32 {vr(vXP)}, 7, v13
    v_lshl_add_u32 {vr(vXP)}, v15, 4, {vr(vXP)}
    v_bfe_u32 v13, v0, 2, 2                  ; r
    v_lshl_add_u32 v1, v14, 3, v13           ; 8h + r
    v_lshlrev_b32 {vr(vWP)}, 7, v1
    v_bfe_u32 v15, v0, 4, 1                  ; g
    v_lshlrev_b32 v15, 1, v15
    v_bfe_u32 v1, v0, 1, 1                   ; c>>1
    v_add_u32 v15, v15, v1
    s_lshl_b32 {sr(sT1)}, {sr(sHH)}, 2
    v_add_u32 v15, {sr(sT1)}, v15            ; cc
    v_lshrrev_b32 v13, 1, v13
    v_lshlrev_b32 v13, 2, v13
    v_xor_b32 v15, v15, v13
    v_lshl_add_u32 {vr(vWP)}, v15, 4, {vr(vWP)}
    v_and_b32 v1, 1, v0
    v_lshl_add_u32 {vr(vWP)}, v1, 3, {vr(vWP)}
    v_lshlrev_b32 {vr(vL16)}, 4, v0
    s_add_u32 {sr(sXQ)}, {sr(sTQ)}, 3
    s_lshl_b32 {sr(sXQ)}, {sr(sXQ)}, 13
        """)
    a("s_waitcnt lgkmcnt(0)")
    if opt.get("stamps_start"): timestamp(a, 1, opt)
    if opt.get("span2") or opt.get("span3"): a("s_memrealtime s[78:79]")
    a(f"""
    s_mov_b32 {sr(SRD_X)}, s56
    s_mov_b32 {sr(SRD_X+1)}, s57
    s_mov_b32 {sr(SRD_X+2)}, {2048*1024*2}
    s_mov_b32 {sr(SRD_X+3)}, 0x00020000
    s_cmp_ge_u32 {sr(sHP)}, 16
    s_cselect_b32 {sr(SRD_W)}, s60, s58
    s_cselect_b32 {sr(SRD_W+1)}, s61, s59
    s_mov_b32 {sr(SRD_W+2)}, {1024*3072*2}
    s_mov_b32 {sr(SRD_W+3)}, 0x00020000
    """)
    for g in range(14):
        dma_unit_static(a, g)
        if g == 6 and opt.get("stamps_start"): timestamp(a, 2, opt)
    if opt.get("stamps_start"): timestamp(a, 3, opt)
    if opt.get("span2") or opt.get("span3"): a("s_memrealtime s[80:81]")
    if opt.get("dbg_span") or opt.get("span2") or opt.get("span3"):
        a(f"""
        s_mov_b32 {sr(SRD_DBG)}, s88
        s_mov_b32 {sr(SRD_DBG+1)}, s89
        s_mov_b32 {sr(SRD_DBG+2)}, 256
        s_mov_b32 {sr(SRD_DBG+3)}, 0x00020000
        """)
    ex = []
    for u in range(6):
        g = 14 + u
        if u < 3:
            ex.append(f"""s_add_u32 m0, {sr(sW1K)}, {g * 8192}
            s_add_u32 {sr(sT0)}, {sr(sWJ)}, {u * 2048}
            buffer_load_dwordx4 {vr(vDW)}, {sr(SRD_W,4)}, {sr(sT0)} offen lds""")
        else:
            ex.append(f"""s_add_u32 m0, {sr(sW1K)}, {g * 8192}
            s_add_u32 {sr(sT0)}, {sr(sXJ)}, {(u - 3) * 131072}
            buffer_load_dwordx4 {vr(vDX)}, {sr(SRD_X,4)}, {sr(sT0)} offen lds""")
    ex.append(f"""
    s_mov_b32 {sr(SRD_WS)}, s90
    s_mov_b32 {sr(SRD_WS+1)}, s91
    s_mov_b32 {sr(SRD_WS+2)}, {WS_SIZE}
    s_mov_b32 {sr(SRD_WS+3)}, 0x00020000
    """)
    ex.append(f"""
    s_mov_b32 {sr(SRD_DBG)}, s88
    s_mov_b32 {sr(SRD_DBG+1)}, s89
    s_mov_b32 {sr(SRD_DBG+2)}, 256
    s_mov_b32 {sr(SRD_DBG+3)}, 0x00020000
    """)
    ex.append(f"""
    s_mov_b32 {sr(SRD_GW)}, s62
    s_mov_b32 {sr(SRD_GW+1)}, s63
    s_mov_b32 {sr(SRD_GW+2)}, 2048
    s_mov_b32 {sr(SRD_GW+3)}, 0x00020000
    """)
    ex.append(f"""
    s_and_b32 s3, s2, 7
    s_lshr_b32 {sr(sT1)}, s2, 3
    s_lshr_b32 {sr(sT0)}, s3, 1
    s_lshl_b32 {sr(sT0)}, {sr(sT0)}, 2
    s_and_b32 {sr(sTB3)}, {sr(sT1)}, 3
    s_add_u32 {sr(sTB3)}, {sr(sT0)}, {sr(sTB3)}
    s_and_b32 {sr(sT0)}, s3, 1
    s_lshl_b32 {sr(sT0)}, {sr(sT0)}, 3
    s_lshr_b32 {sr(sT1)}, {sr(sT1)}, 2
    s_add_u32 {sr(sCB)}, {sr(sT0)}, {sr(sT1)}
    """)
    ex.append(f"""
    s_add_u32 {sr(sROT)}, {sr(sTB3)}, {sr(sCB)}
    s_and_b32 {sr(sROT)}, {sr(sROT)}, 15
    s_lshl_b32 {sr(sMB2)}, {sr(sTB3)}, 4
    s_add_u32 {sr(sMB2)}, {sr(sMB2)}, {sr(sCB)}
    s_lshl_b32 {sr(sMB2)}, {sr(sMB2)}, 7
    s_add_u32 {sr(sMB2)}, {sr(sMB2)}, {WS_MB2}
    """)
    ex.append(f"""
    s_cmp_eq_u32 {sr(sHH)}, 1
    s_cselect_b32 {sr(SRD_WO)}, s96, s94
    s_cselect_b32 {sr(SRD_WO+1)}, s97, s95
    s_mov_b32 {sr(SRD_WO+2)}, {1024*1024*2}
    s_mov_b32 {sr(SRD_WO+3)}, 0x00020000
    """)
    ex.append(f"""
    s_mov_b32 {sr(SRD_OUT)}, s98
    s_mov_b32 {sr(SRD_OUT+1)}, s99
    s_mov_b32 {sr(SRD_OUT+2)}, {2048*1024*2}
    s_mov_b32 {sr(SRD_OUT+3)}, 0x00020000
    """)
    ex.append(f"""
    s_lshl_b32 {sr(sMB)}, {sr(sHP)}, 3
    s_add_u32 {sr(sMB)}, {sr(sMB)}, {sr(sTB)}
    s_lshl_b32 {sr(sMB)}, {sr(sMB)}, 7
    s_add_u32 {sr(sMB)}, {sr(sMB)}, {WS_MB}
    s_lshl_b32 {sr(sCNT)}, {sr(sHP)}, 3
    """)
    nr = a.label("nr")
    ex.append(f"""
    s_cmp_eq_u32 {sr(sW)}, 0
    s_cselect_b32 {sr(sCHKJ)}, 5, 0xffff
    s_cselect_b32 {sr(sARRJ)}, 11, 0xffff
    s_cbranch_scc0 {nr}
    v_lshlrev_b32 v12, 2, v0
    s_sub_u32 {sr(sT0)}, {sr(sMB2)}, 128
    v_mov_b32 v13, {sr(sMB)}
    v_mov_b32 v14, {sr(sT0)}
    v_cmp_gt_u32 vcc, 32, v0
    s_nop 1
    v_cndmask_b32 v13, v14, v13, vcc
    v_add_u32 v12, v12, v13
    v_mov_b32 v13, 0
    buffer_store_dword v13, v12, {sr(SRD_WS,4)}, 0 offen sc1
    {nr}:
    """)
    ex.append(f"""
    s_and_b32 {sr(sT0)}, {sr(sHP)}, 15
    s_lshl_b32 {sr(sT0)}, {sr(sT0)}, 3
    s_add_u32 {sr(sT0)}, {sr(sT0)}, {sr(sTB)}
    s_lshl_b32 {sr(sT0)}, {sr(sT0)}, 3
    s_add_u32 {sr(sT0)}, {sr(sT0)}, {sr(sW)}
    s_lshl_b32 {sr(sT0)}, {sr(sT0)}, 10
    s_add_u32 {sr(sPF)}, {sr(sT0)}, {3 * 64 * 6144}
    """)
    ex.append(f"""
    s_lshl_b32 {sr(sT0)}, {sr(sTB)}, 8
    s_lshl_b32 {sr(sT1)}, {sr(sHP)}, 3
    s_add_u32 {sr(sT0)}, {sr(sT0)}, {sr(sT1)}
    s_add_u32 {sr(sT0)}, {sr(sT0)}, {sr(sW)}
    s_lshl_b32 {sr(sGOFF)}, {sr(sT0)}, 2
    s_lshl_b32 {sr(sT1)}, {sr(sT0)}, 11
    v_lshlrev_b32 v12, 5, v0
    buffer_load_dwordx4 v[16:19], v12, {sr(SRD_X,4)}, {sr(sT1)} offen
    buffer_load_dwordx4 v[20:23], v12, {sr(SRD_X,4)}, {sr(sT1)} offen offset:16
    """)
    ex.append(f"""
    v_lshlrev_b32 v12, 5, v0
    buffer_load_dwordx4 v[24:27], v12, {sr(SRD_GW,4)}, 0 offen
    buffer_load_dwordx4 v[28:31], v12, {sr(SRD_GW,4)}, 0 offen offset:16
    """)
    if opt.get("xpf", 0):
        ex.append(f"""
        s_lshl_b32 {sr(sT0)}, s2, 3
        s_add_u32 {sr(sT0)}, {sr(sT0)}, {sr(sW)}
        s_lshl_b32 {sr(sT0)}, {sr(sT0)}, 11
        buffer_load_dwordx4 v[40:43], {vr(vL16)}, {sr(SRD_X,4)}, {sr(sT0)} offen
        buffer_load_dwordx4 v[44:47], {vr(vL16)}, {sr(SRD_X,4)}, {sr(sT0)} offen offset:1024
        """)
    if opt.get("touch", 0):
        ex.append(f"""
        s_lshl_b32 {sr(sT0)}, {sr(sHP)}, 19
        s_lshl_b32 {sr(sT1)}, {sr(sTB)}, 20
        s_add_u32 {sr(sT1)}, {sr(sT1)}, {WS_O}
        buffer_load_dword v104, off, {sr(SRD_WS,4)}, {sr(sT0)}
        buffer_load_dword v105, off, {sr(SRD_WS,4)}, {sr(sT1)}
        """)
        ex.append(f"""
        s_lshl_b32 {sr(sT0)}, {sr(sTB3)}, 19
        s_add_u32 {sr(sT0)}, {sr(sT0)}, {WS_O}
        s_lshl_b32 {sr(sT1)}, {sr(sTB3)}, 18
        buffer_load_dword v106, off, {sr(SRD_WS,4)}, {sr(sT0)}
        buffer_load_dword v108, off, {sr(SRD_OUT,4)}, {sr(sT1)}
        """)
        ex.append(f"""
        s_mov_b32 {sr(sT0)}, {1024*1024*2 - 4}
        buffer_load_dword v107, off, {sr(SRD_WO,4)}, 0
        buffer_load_dword v109, off, {sr(SRD_WO,4)}, {sr(sT0)}
        """)
    return ex

def dma_unit_static(a, g):
    j, u = divmod(g, 7)
    a(f"s_add_u32 m0, {sr(sW1K)}, {(g % 20) * 8192}")
    if u < 3:
        a(f"s_add_u32 {sr(sT0)}, {sr(sWJ)}, {j * 64 * 6144 + u * 2048}")
        a(f"buffer_load_dwordx4 {vr(vDW)}, {sr(SRD_W,4)}, {sr(sT0)} offen lds")
    else:
        a(f"s_add_u32 {sr(sT0)}, {sr(sXJ)}, {j * 128 + (u - 3) * 131072}")
        a(f"buffer_load_dwordx4 {vr(vDX)}, {sr(SRD_X,4)}, {sr(sT0)} offen lds")

def gate_instrs():
    c = ["v_mov_b32 v12, 0"]
    for i in range(8):
        x, w = 16 + i, 24 + i
        c += [f"v_lshlrev_b32 v13, 16, v{x}", f"v_and_b32 v14, 0xffff0000, v{x}", f"v_lshlrev_b32 v32, 16, v{w}",
              f"v_and_b32 v1, 0xffff0000, v{w}", "v_mul_f32 v13, v13, v32", "v_mul_f32 v14, v14, v1",
              "v_cvt_pk_bf16_f32 v13, v13, v14", "v_lshlrev_b32 v14, 16, v13", "v_and_b32 v13, 0xffff0000, v13",
              "v_add_f32 v12, v12, v14", "v_add_f32 v12, v12, v13"]
    for sh in (1, 2, 4, 8):
        c += [f"s_nop 1\nv_add_f32_dpp v12, v12, v12 row_shr:{sh} row_mask:0xf bank_mask:0xf bound_ctrl:0"]
    c += ["s_nop 1\nv_add_f32_dpp v12, v12, v12 row_bcast:15 row_mask:0xa bank_mask:0xf"]
    c += ["s_nop 1\nv_add_f32_dpp v12, v12, v12 row_bcast:31 row_mask:0xc bank_mask:0xf"]
    c += ["s_nop 1\nv_cvt_pk_bf16_f32 v12, v12, v12", "v_lshlrev_b32 v12, 16, v12", f"v_mul_f32 v12, {hex(f2u(-LOG2E))}, v12",
          "v_exp_f32 v12, v12\ns_nop 0\nv_add_f32 v12, 1.0, v12", "v_rcp_f32 v12, v12\ns_nop 0\nv_cvt_pk_bf16_f32 v12, v12, v12",
          "v_lshlrev_b32 v12, 16, v12", f"v_mov_b32 v13, {WS_G}"]
    st = [f"""s_mov_b32 exec_lo, 0
    s_mov_b32 exec_hi, 0x80000000
    buffer_store_dword v12, v13, {sr(SRD_WS,4)}, {sr(sGOFF)} offen sc1
    s_mov_b64 exec, -1"""]
    return c, st

def frag(set_, name):
    off = {"X0": 0, "X1": 4, "Wq": 8, "Wk": 12, "Wv": 16}[name]
    return FR[set_] + off

def gemm_reads(ks, set_):
    r = []
    r.append(f"ds_read_b128 {vr(frag(set_,'X0'),4)}, {vr(vXA)}")
    for u, nm in enumerate(("Wq", "Wk", "Wv")):
        b = frag(set_, nm)
        r.append(f"ds_read_b64_tr_b16 {vr(b,2)}, {vr(vW0+u)} offset:{ks*2048}")
        r.append(f"ds_read_b64_tr_b16 {vr(b+2,2)}, {vr(vW0+u)} offset:{ks*2048+512}")
        if u == 0:
            r.append(f"ds_read_b128 {vr(frag(set_,'X1'),4)}, {vr(vXA)} offset:4096")
    return r

def gemm_mfmas(set_, first=False):
    m = []
    X0, X1 = frag(set_, "X0"), frag(set_, "X1")
    Wq, Wk, Wv = frag(set_, "Wq"), frag(set_, "Wk"), frag(set_, "Wv")
    def mf(acc, A, B): return f"v_mfma_f32_32x32x16_bf16 {vr(acc,16)}, {vr(A,4)}, {vr(B,4)}, {'0' if first else vr(acc,16)}"
    m.append(mf(ACC + 0, Wq, X0))
    m.append(mf(ACC + 32, Wk, X0))
    m.append(mf(ACC + 64, X0, Wv))
    m.append(mf(ACC + 16, Wq, X1))
    m.append(mf(ACC + 48, Wk, X1))
    m.append(mf(ACC + 80, X1, Wv))
    return m

def wrap_list(dst, src, const, tmp):
    return [f"s_add_u32 {sr(tmp)}, {sr(src)}, {const}", f"s_sub_u32 {dst}, {sr(tmp)}, {RING}", f"s_cselect_b32 {dst}, {sr(tmp)}, {dst}"]

def read_bases_list():
    r = [f"v_add_u32 {vr(vW0)}, {sr(sRING)}, {vr(vWP)}"]
    for u in (1, 2):
        r += wrap_list(sr(sT1), sRING, u * 8192, sT0)
        r.append(f"v_add_u32 {vr(vW0+u)}, {sr(sT1)}, {vr(vWP)}")
    r += [f"s_add_u32 {sr(sT0)}, {sr(sRING)}, {sr(sXQ)}", f"s_sub_u32 {sr(sT1)}, {sr(sT0)}, {RING}",
          f"s_cselect_b32 {sr(sT1)}, {sr(sT0)}, {sr(sT1)}", f"v_add_u32 {vr(vXB)}, {sr(sT1)}, {vr(vXP)}",
          f"v_mov_b32 {vr(vXA)}, {vr(vXB)}"]
    return r

def dma_group(i):
    if OPT.get("g_nodma"): return []
    s = [f"s_add_u32 {sr(sT2)}, {sr(sRINGW)}, {i * 8192}", f"s_sub_u32 m0, {sr(sT2)}, {RING}", f"s_cselect_b32 m0, {sr(sT2)}, m0"]
    if i == 0:
        s.append(f"s_add_u32 {sr(sT3)}, {sr(sXJ)}, {3 * 131072 - 128}")
        s.append(f"buffer_load_dwordx4 {vr(vDX)}, {sr(SRD_X,4)}, {sr(sT3)} offen lds")
    elif i <= 3:
        s.append(f"s_add_u32 {sr(sT3)}, {sr(sWJ)}, {(i - 1) * 2048}")
        s.append(f"buffer_load_dwordx4 {vr(vDW)}, {sr(SRD_W,4)}, {sr(sT3)} offen lds")
    else:
        s.append(f"s_add_u32 {sr(sT3)}, {sr(sXJ)}, {(i - 4) * 131072}")
        s.append(f"buffer_load_dwordx4 {vr(vDX)}, {sr(SRD_X,4)}, {sr(sT3)} offen lds")
    return s

def w_readahead():
    if not OPT.get("wpf", 1): return []
    return [f"buffer_load_dwordx4 v[36:39], {vr(vL16)}, {sr(SRD_W,4)}, {sr(sPF)} offen", f"s_add_u32 {sr(sPF)}, {sr(sPF)}, {1 << 20}"]

def kstep(a, cur, next_ks, gaps_extra, first=False):
    m = gemm_mfmas(cur, first)
    r = gemm_reads(next_ks, cur ^ 1) if next_ks is not None else []
    gaps = [[] for _ in range(6)]
    for i, x in enumerate(r):
        gaps[min(i // 3, 5)].append(x)
    for g in range(6):
        gaps[g] += gaps_extra.get(g, [])
    for i in range(6):
        a(m[i])
        for x in gaps[i]:
            a(x)

def gemm_stage(a, pending, new_batch, vm_wait, first=False, last=False, valu=None, after_bar=None):
    prio = OPT.get("gprio", 1)
    sp = lambda n: [f"s_setprio {n}"] if prio else []
    valu = list(valu or [])
    per = (len(valu) + 2) // 3
    for ks in range(3):
        ex = {}
        mine = [i for i in pending if (i - 2) // 2 == ks]
        if mine:
            ex[2] = dma_group(mine[0])
        if len(mine) > 1:
            ex[4] = dma_group(mine[1])
        chunk = valu[ks * per:(ks + 1) * per]
        n3 = (len(chunk) + 2) // 3
        for k, g in enumerate((1, 3, 5)):
            ex[g] = ex.get(g, []) + chunk[k * n3:(k + 1) * n3]
        ex[0] = sp(2 - ks)
        if ks < 2:
            ex[5] = ex.get(5, []) + [f"v_xor_b32 {vr(vXA)}, {(ks + 2) << 5}, {vr(vXB)}"]
        else:
            upd = [f"s_add_u32 {sr(sRINGW)}, {sr(sRING)}, {sr(sW1K)}", f"s_add_u32 {sr(sXJ)}, {sr(sXJ)}, 128",
                   f"s_add_u32 {sr(sWJ)}, {sr(sWJ)}, {64 * 6144}"] + wrap_list(sr(sRING), sRING, 7 * 8192, sT0)
            ex[3] = ex.get(3, []) + upd
            if not last:
                ex[4] = ex.get(4, []) + read_bases_list()
        a("s_waitcnt lgkmcnt(0)")
        kstep(a, ks & 1, ks + 1, ex, first=(first and ks == 0))
    if OPT.get("stampsg"):
        a("s_waitcnt lgkmcnt(0)")
        gstamp(a, 204)
    if vm_wait is not None:
        a(f"s_waitcnt vmcnt({vm_wait}) lgkmcnt(0)")
    else:
        a("s_waitcnt lgkmcnt(0)")
    if OPT.get("stampsg"): gstamp(a, 205)
    if not OPT.get("g_nobar"): a("s_barrier")
    if OPT.get("stampsg"):
        gstamp(a, 206)
        a("s_add_u32 s87, s87, 1")
    ex = {0: sp(3)}
    if len(new_batch) > 0: ex[2] = dma_group(new_batch[0])
    if len(new_batch) > 1: ex[4] = dma_group(new_batch[1]) + w_readahead()
    if not last:
        ex[5] = [f"v_xor_b32 {vr(vXA)}, {1 << 5}, {vr(vXB)}"]
    if after_bar:
        ex[5] = ex.get(5, []) + after_bar
    kstep(a, 1, None if last else 0, ex)

FR16 = [64, 104]
vW16 = [7, 8, 9, 48, 49, 50]

def g16_reads(step, set_):
    F = FR16[set_]
    r = []
    xs = [f"ds_read_b128 {vr(F + 4*i, 4)}, {vr(vXA)} offset:{i * 2048}" for i in range(4)]
    ws = []
    for u in range(3):
        for ft in range(2):
            b = F + 16 + 4 * (2 * u + ft)
            reg = vW16[u + 3 * ft]
            ws.append(f"ds_read_b64_tr_b16 {vr(b,2)}, {vr(reg)} offset:{step*4096}")
            ws.append(f"ds_read_b64_tr_b16 {vr(b+2,2)}, {vr(reg)} offset:{step*4096+512}")
    return [ws[0], ws[1], xs[0], xs[1], xs[2], xs[3]] + ws[2:]

def g16_mfmas(set_, first=False, order=(0, 1, 2, 3, 4, 5)):
    F = FR16[set_]
    m = []
    for f in order:
        for i in range(4):
            acc = ACC + 4 * (4 * f + i)
            W, X = F + 16 + 4 * f, F + 4 * i
            A, B = (W, X) if f < 4 else (X, W)
            m.append(f"v_mfma_f32_16x16x32_bf16 {vr(acc,4)}, {vr(A,4)}, {vr(B,4)}, {'0' if first else vr(acc,4)}")
    return m

def g16_bases():
    r = [f"v_add_u32 {vr(vW16[0])}, {sr(sRING)}, {vr(vWP)}", f"v_xor_b32 {vr(vW16[3])}, 32, {vr(vW16[0])}"]
    for u in (1, 2):
        r.append("\n".join(wrap_list(sr(sT1), sRING, u * 8192, sT0) + [f"v_add_u32 {vr(vW16[u])}, {sr(sT1)}, {vr(vWP)}"]))
        r.append(f"v_xor_b32 {vr(vW16[3+u])}, 32, {vr(vW16[u])}")
    r.append("\n".join([f"s_add_u32 {sr(sT0)}, {sr(sRING)}, {sr(sXQ)}", f"s_sub_u32 {sr(sT1)}, {sr(sT0)}, {RING}",
          f"s_cselect_b32 {sr(sT1)}, {sr(sT0)}, {sr(sT1)}", f"v_add_u32 {vr(vXB)}, {sr(sT1)}, {vr(vXP)}"]))
    r.append(f"v_mov_b32 {vr(vXA)}, {vr(vXB)}")
    return r

def g16_step(a, cur, next_step, gaps_extra, first=False, order=(0, 1, 2, 3, 4, 5)):
    m = g16_mfmas(cur, first, order)
    r = g16_reads(next_step, cur ^ 1) if next_step is not None else []
    rp = OPT.get("g16_rp", 1)
    for g in range(24):
        a(m[g])
        for x in r[rp * g:rp * g + rp]: a(x)
        for x in gaps_extra.get(g, []): a(x)

def g16_stage(a, pending, new_batch, vm_wait, first=False, last=False, valu=None, after_bar=None, ex1=None):
    prio = OPT.get("gprio", 1)
    sp = lambda n: [f"s_setprio {n}"] if prio else []
    valu = list(valu or [])
    ex = {g: [] for g in range(24)}
    ex[0] += sp(1); ex[12] += sp(0)
    pg = OPT.get("g16_pg", [4, 9, 14])
    def place(ex, g, i):
        grp = dma_group(i)
        if not grp: return
        if OPT.get("g16_spread", 1):
            ex[g - 3].append(grp[0]); ex[g - 2].append(grp[1] + "\n" + grp[2]); ex[g - 1].append(grp[3]); ex[g].append(grp[4])
        else:
            ex[g].append("\n".join(grp))
    for k, i in enumerate(pending):
        place(ex, pg[k], i)
    for k, x in enumerate(valu):
        ex[min(k * 16 // max(len(valu), 1), 15) + (0 if first else 0)].append(x)
    upd = [f"s_add_u32 {sr(sRINGW)}, {sr(sRING)}, {sr(sW1K)}", f"s_add_u32 {sr(sXJ)}, {sr(sXJ)}, 128",
           f"s_add_u32 {sr(sWJ)}, {sr(sWJ)}, {64 * 6144}", "\n".join(wrap_list(sr(sRING), sRING, 7 * 8192, sT0))]
    if not last:
        for k, x in enumerate(upd): ex[16 + k // 2].append(x)
    if not last:
        for k, x in enumerate(g16_bases()): ex[18 + k * 5 // 8].append(x)
    a("s_waitcnt lgkmcnt(0)")
    g16_step(a, 0, 1, ex, first=first)
    if OPT.get("stampsg"):
        gstamp(a, 204)
    if vm_wait is not None:
        a(f"s_waitcnt vmcnt({vm_wait}) lgkmcnt(0)")
    else:
        a("s_waitcnt lgkmcnt(0)")
    if OPT.get("stampsg"): gstamp(a, 205)
    a("s_barrier")
    if OPT.get("stampsg"):
        gstamp(a, 206)
        a("s_add_u32 s87, s87, 1")
    ex = {g: [] for g in range(24)}
    ex[0] += sp(3); ex[12] += sp(2)
    ng = OPT.get("g16_ng", [3, 8, 13, 18])
    for k, i in enumerate(new_batch):
        place(ex, ng[k], i)
    if len(new_batch) > 1:
        ex[20] += w_readahead()
    if not last:
        ex[22].append(f"v_xor_b32 {vr(vXA)}, 64, {vr(vXB)}")
    if after_bar:
        ex[23] += after_bar
    if ex1:
        for g, l in ex1.items(): ex[g] += l
    g16_step(a, 1, None if last else 0, ex, order=(2, 3, 4, 5, 0, 1) if last else (0, 1, 2, 3, 4, 5))

def gemm(a, opt, extras):
    if OPT.get("stampsg"): a("s_mov_b32 s87, 0")
    a(f"s_add_u32 {sr(sXJ)}, {sr(sXJ)}, {2 * 128}")
    a(f"s_add_u32 {sr(sWJ)}, {sr(sWJ)}, {2 * 64 * 6144}")
    a(f"s_mov_b32 {sr(sRING)}, 0")
    g16 = opt.get("g16", 1)
    for x in (g16_bases() if g16 else read_bases_list()): a(x)
    if opt.get("stamps_start"): timestamp(a, 4, opt)
    if opt.get("span2") or opt.get("span3"): a("s_memrealtime s[82:83]")
    nw = (6 if opt.get("touch", 0) else 0) + (2 if opt.get("xpf", 0) else 0)
    a(f"s_waitcnt vmcnt(7)")
    if opt.get("stamps_start"): timestamp(a, 5, opt)
    a("s_barrier")
    if opt.get("dbg_span"): dbg_span(a, "g0")
    if opt.get("span3"):
        sk = a.label("sk3")
        a(f"s_memrealtime s[76:77]")
        a(f"s_cmp_eq_u32 s2, {opt['span3']}")
        a(f"s_cbranch_scc0 {sk}")
        a(f"s_cmp_eq_u32 {sr(sW)}, 0")
        a(f"s_cbranch_scc0 {sk}")
        a("s_waitcnt lgkmcnt(0)")
        for reg, off in ((84, 4), (78, 12), (80, 20), (82, 28), (76, 36)):
            a(f"v_mov_b32 v12, s{reg}")
            a(f"s_mov_b32 s93, {off}")
            a("s_mov_b64 exec, 1")
            a(f"buffer_store_dword v12, off, {sr(SRD_DBG,4)}, s93 sc1")
            a("s_mov_b64 exec, -1")
        a(f"{sk}:")
    if opt.get("span2"):
        sk = a.label("sk2")
        a(f"s_memrealtime s[76:77]")
        a(f"s_cmp_eq_u32 {sr(sW)}, 0")
        a(f"s_cbranch_scc0 {sk}")
        a("s_waitcnt lgkmcnt(0)")
        a("s_not_b32 s75, s84")
        for reg, off in ((75, 4), (84, 60), (78, 20), (80, 36), (82, 52), (76, 44)):
            a(f"v_mov_b32 v12, s{reg}")
            a(f"s_mov_b32 s93, {off}")
            a("s_mov_b64 exec, 1")
            a(f"buffer_atomic_umax v12, off, {sr(SRD_DBG,4)}, s93 sc1")
            a("s_mov_b64 exec, -1")
        a(f"{sk}:")
    if opt.get("stamps_start"): timestamp(a, 6, opt)
    if g16:
        for x in g16_reads(0, 0): a(x)
        a(f"v_xor_b32 {vr(vXA)}, 64, {vr(vXB)}")
        g16_stage(a, [], [0, 1, 2, 3], 10 + nw, first=True, valu=extras)
    else:
        for x in gemm_reads(0, 0):
            a(x)
        a(f"v_xor_b32 {vr(vXA)}, {1 << 5}, {vr(vXB)}")
        gemm_stage(a, [], [0, 1], 10 + nw, first=True, valu=extras)
    a(f"s_mov_b32 {sr(sJ)}, 12")
    lab = a.label("gemm")
    a(".p2align 6")
    a(f"{lab}:")
    npf = 1 if opt.get("wpf", 1) else 0
    if g16: g16_stage(a, [4, 5, 6], [0, 1, 2, 3], 6 + npf)
    else: gemm_stage(a, [2, 3, 4, 5, 6], [0, 1], 6 + npf)
    nc = a.label("nc"); nd = a.label("nd")
    a(f"s_cmp_eq_u32 {sr(sJ)}, {sr(sARRJ)}")
    a(f"s_cbranch_scc0 {nd}")
    a(f"""
    v_mov_b32 v12, 1
    s_mov_b64 exec, 1
    buffer_atomic_add v12, off, {sr(SRD_DBG,4)}, {sr(sCNT)} sc1
    s_mov_b64 exec, -1
    s_nop 3
    """)
    a(f"{nd}:")
    a(f"s_cmp_eq_u32 {sr(sJ)}, {sr(sCHKJ)}")
    a(f"s_cbranch_scc0 {nc}")
    a(f"v_lshlrev_b32 v12, 2, v0")
    a(f"buffer_load_dword {vr(vCHK)}, v12, {sr(SRD_DBG,4)}, 0 offen sc1")
    a(f"{nc}:")
    a(f"s_sub_u32 {sr(sJ)}, {sr(sJ)}, 1")
    a(f"s_cmp_lg_u32 {sr(sJ)}, 0")
    a(f"s_cbranch_scc1 {lab}")
    gc, gs = gate_instrs()
    if g16:
        g16_stage(a, [4, 5, 6], [0], 6 + npf)
        g16_stage(a, [], [], 0, valu=gc, after_bar=gs + ["s_nop 3"])
        g16_stage(a, [], [], None, last=True, valu=setup_scalar_items(), ex1=last_step_items())
    else:
        gemm_stage(a, [2, 3, 4, 5, 6], [0], 6 + npf)
        gemm_stage(a, [], [], 0, valu=gc, after_bar=gs + ["s_nop 3"])
        gemm_stage(a, [], [], None, last=True)
    a("s_setprio 0")
    a("s_nop 15")

vLK = 7

def g16_pack(a, dst, t0, t1):
    a(f"v_cvt_pk_bf16_f32 v{dst}, v{t0}, v{t0+1}")
    a(f"v_cvt_pk_bf16_f32 v{dst+1}, v{t0+2}, v{t0+3}")
    a(f"v_cvt_pk_bf16_f32 v{dst+2}, v{t1}, v{t1+1}")
    a(f"v_cvt_pk_bf16_f32 v{dst+3}, v{t1+2}, v{t1+3}")

def g16_swap(a, dst):
    a(f"v_permlane16_swap_b32 v{dst}, v{dst+2}")
    a(f"v_permlane16_swap_b32 v{dst+1}, v{dst+3}")

SS16 = SS

def kreg(T, f):
    return ACC + 32 + 16 * f + 8 * T if OPT.get("g16", 1) else ACC + 32 + 16 * T + 4 * f
def vreg(T, t):
    return ACC + 64 + 4 * (2 * T + t) if OPT.get("g16", 1) else ACC + 64 + 16 * T + 4 * t

sOWN = 3

def setup_scalar_items():
    return [f"""v_bfe_u32 v12, v0, 2, 1
    v_and_b32 v13, 3, v0
    v_mov_b32 v14, 0x3f803f80
    v_cmp_gt_u32 vcc, 2, v13""",
    f"""; sparse ones operand: row m = l&15 (r = m&3 < 2) sums the lane groups with parity (m>>2)&1; index picks register r of each pair
    v_cndmask_b32 v14, 0, v14, vcc
    v_cmp_eq_u32 vcc, 0, v12
    s_nop 1
    v_cndmask_b32 v{ONES}, 0, v14, vcc
    v_cndmask_b32 v{ONES+2}, v14, 0, vcc""",
    f"""v_mov_b32 v{ONES+1}, v{ONES}
    v_mov_b32 v{ONES+3}, v{ONES+2}
    v_mov_b32 v14, 0x4444
    v_mov_b32 v12, 0xeeee""",
    f"""v_cmp_eq_u32 vcc, 1, v13
    s_nop 1
    v_cndmask_b32 v{IDX}, v14, v12, vcc""",
    f"""s_lshl_b32 {sr(sT1)}, {sr(sHP)}, 1
    s_add_u32 {sr(sT1)}, {sr(sT1)}, {sr(sHH)}
    s_lshl_b32 {sr(sKVSRC)}, {sr(sT1)}, 18""",
    f"""s_lshl_b32 {sr(sT1)}, {sr(sTB)}, 15
    s_lshl_b32 {sr(sT0)}, {sr(sTQ)}, 13
    s_add_u32 {sr(sT1)}, {sr(sT1)}, {sr(sT0)}
    s_add_u32 {sr(sKVO)}, {sr(sT1)}, {sr(sKVSRC)}""",
    f"""s_lshl_b32 {sr(sT0)}, {sr(sHH)}, 14
    s_lshl_b32 {sr(sT1)}, {sr(sTQ)}, 12
    s_add_u32 {sr(sLDSW)}, {sr(sT0)}, {sr(sT1)}
    s_add_u32 {sr(sKVSRC)}, {sr(sKVSRC)}, {sr(sT1)}""",
    f"""s_lshl_b32 {sr(sSRC)}, {sr(sTB)}, 1
    s_add_u32 {sr(sSRC)}, {sr(sSRC)}, 2
    s_and_b32 {sr(sSRC)}, {sr(sSRC)}, 15
    s_lshl_b32 {sr(sSRC)}, {sr(sSRC)}, 14""",
    f"""s_mov_b32 {sr(sSLOT)}, {2 * 32768}
    s_mov_b32 {sr(sJ)}, 0
    s_lshl_b32 {sr(sWOFF)}, {sr(sCB)}, 7""",
    f"""s_lshl_b32 {sr(sLDSW3)}, {sr(sHH)}, 13
    s_lshl_b32 {sr(sT0)}, {sr(sTQ)}, 11
    s_add_u32 {sr(sLDSW3)}, {sr(sLDSW3)}, {sr(sT0)}""",
    f"""; own K/V tiles in LDS: (tq>>1)*32768 + hh*16384 + 2*(tq&1)*4096
    s_lshr_b32 {sr(sT1)}, {sr(sTQ)}, 1
    s_lshl_b32 {sr(sT1)}, {sr(sT1)}, 15
    s_lshl_b32 {sr(sT0)}, {sr(sHH)}, 14
    s_add_u32 {sr(sT1)}, {sr(sT1)}, {sr(sT0)}""",
    f"""s_and_b32 {sr(sT0)}, {sr(sTQ)}, 1
    s_lshl_b32 {sr(sT0)}, {sr(sT0)}, 13
    s_add_u32 {sr(sOWN)}, {sr(sT1)}, {sr(sT0)}"""]

def setup_vector_items():
    it = [f"""s_lshl_b32 {sr(sT0)}, {sr(sHH)}, 14
    v_add_u32 {vr(vKVB)}, {sr(sT0)}, {vr(vL16)}
    v_mov_b32 {vr(vCUR)}, {vr(vKVB)}
    v_add_u32 {vr(vNXT)}, 32768, {vr(vKVB)}
    v_add_u32 {vr(vDMA)}, {sr(sKVSRC)}, {vr(vL16)}
    v_lshlrev_b32 {vr(vPA)}, 2, v0""",
    f"""; key index with bits 2 and 3 swapped: the score rows then match the order of the V slots
    v_and_b32 v12, 0x33, v0
    v_bfe_u32 v13, v0, 2, 1
    v_bfe_u32 v14, v0, 3, 1""",
    f"""v_lshl_add_u32 v12, v13, 3, v12
    v_lshl_add_u32 v12, v14, 2, v12
    v_lshlrev_b32 {vr(vLK)}, 4, v12""",
    f"""; weights of the output projection: rows 16tt .. 16tt+15 of every stage (two pieces per wave)
    v_lshrrev_b32 v12, 3, v0
    v_and_b32 v13, 7, v0
    v_bfe_u32 v14, v12, 1, 1
    v_lshlrev_b32 v14, 2, v14""",
    f"""v_xor_b32 v13, v13, v14
    s_lshl_b32 {sr(sT0)}, {sr(sTQ)}, 4
    v_add_u32 v12, {sr(sT0)}, v12
    v_lshlrev_b32 {vr(vDW3)}, 11, v12
    v_lshl_add_u32 {vr(vDW3)}, v13, 4, {vr(vDW3)}"""]
    it.append("\n".join(f"v_mov_b32 v{LA+i}, 0" for i in range(4)))
    it.append("\n".join(f"v_mov_b32 v{LA+4+i}, 0" for i in range(4)))
    return it

def last_step_items():
    def tile(f, i): return ACC + 4 * (4 * f + i)
    def pack(dst, t0, t1):
        return "\n".join([f"v_cvt_pk_bf16_f32 v{dst}, v{t0}, v{t0+1}", f"v_cvt_pk_bf16_f32 v{dst+1}, v{t0+2}, v{t0+3}",
                          f"v_cvt_pk_bf16_f32 v{dst+2}, v{t1}, v{t1+1}", f"v_cvt_pk_bf16_f32 v{dst+3}, v{t1+2}, v{t1+3}"])
    def swap(dst):
        return f"v_permlane16_swap_b32 v{dst}, v{dst+2}\nv_permlane16_swap_b32 v{dst+1}, v{dst+3}"
    ex = {g: [] for g in range(24)}
    vi = setup_vector_items()
    for k, x in enumerate(vi): ex[[1, 3, 5, 8, 9, 10, 11][k]].append(x)
    kk = [(T, ft) for ft in range(2) for T in range(2)]
    for k, (T, ft) in enumerate(kk):
        ex[12 + k].append(pack(kreg(T, ft), tile(2 + ft, 2 * T), tile(2 + ft, 2 * T + 1)))
    for k, (T, ft) in enumerate(kk):
        ex[16 + k].append(swap(kreg(T, ft)))
    vv = [(T, t) for T in range(2) for t in range(2)]
    for k, (T, t) in enumerate(vv):
        ex[20 + k].append(pack(vreg(T, t), tile(4, 2 * T + t), tile(5, 2 * T + t)))
    return ex

def gemm_epilogue16(a, opt):
    def tile(f, i): return ACC + 4 * (4 * f + i)
    a("s_nop 1")
    for T in range(2):
        for f in range(2): g16_swap(a, vreg(T, f))
    if opt.get("half", 1):
        late = a.label("late")
        a(f"s_cmp_lt_u32 {sr(sTQ)}, 2")
        a(f"s_cbranch_scc0 {late}")
        kv_stores(a)
        a(f"{late}:")
    else:
        kv_stores(a)
    a(f"s_mov_b32 {sr(sT2)}, {hex(f2u(QSCALE))}")
    a(f"s_mov_b32 {sr(sT3)}, {hex(f2u(QSCALE))}")
    for k in range(16):
        a(f"v_pk_mul_f32 {vr(ACC+2*k,2)}, {vr(ACC+2*k,2)}, {sr(sT2,2)}")
    for T in range(2):
        for ft in range(2):
            g16_pack(a, QF + 8 * T + 4 * ft, tile(ft, 2 * T), tile(ft, 2 * T + 1))
    a("s_nop 1")
    for k in range(4): g16_swap(a, QF + 4 * k)
    a("s_nop 1")
    for x in range(2):
        S, Q = SS16 + 16 * x, QF + 8 * x
        a(f"v_mfma_f32_32x32x16_bf16 {vr(S,16)}, {vr(kreg(0,0),4)}, {vr(Q,4)}, 0")
        a(f"v_mfma_f32_32x32x16_bf16 {vr(S,16)}, {vr(kreg(0,1),4)}, {vr(Q+4,4)}, {vr(S,16)}")
    a(f"""
    v_add_u32 v12, {sr(sOWN)}, {vr(vL16)}
    v_add_u32 v13, {sr(sOWN)}, {vr(vLK)}
    """)
    for tt in range(2):
        a(f"ds_write_b128 v13, {vr(kreg(tt,0),4)} offset:{tt*4096}")
        a(f"ds_write_b128 v13, {vr(kreg(tt,1),4)} offset:{tt*4096+1024}")
        a(f"ds_write_b128 v12, {vr(vreg(tt,0),4)} offset:{tt*4096+2048}")
        a(f"ds_write_b128 v12, {vr(vreg(tt,1),4)} offset:{tt*4096+3072}")

def gemm_epilogue(a, opt):
    if opt.get("g16", 1):
        return gemm_epilogue16(a, opt)
    for tile in (2, 3, 4, 5):
        b = ACC + 16 * tile
        for i in range(8):
            a(f"v_cvt_pk_bf16_f32 v{b+i}, v{b+2*i}, v{b+2*i+1}")
    a(f"""
    s_lshl_b32 {sr(sT1)}, {sr(sHP)}, 1
    s_add_u32 {sr(sT1)}, {sr(sT1)}, {sr(sHH)}
    s_lshl_b32 {sr(sKVSRC)}, {sr(sT1)}, 18
    s_lshl_b32 {sr(sT1)}, {sr(sTB)}, 15
    s_lshl_b32 {sr(sT2)}, {sr(sTQ)}, 13
    s_add_u32 {sr(sT1)}, {sr(sT1)}, {sr(sT2)}
    s_add_u32 {sr(sKVO)}, {sr(sT1)}, {sr(sKVSRC)}
    """)
    if opt.get("half", 1):
        late = a.label("late")
        a(f"s_cmp_lt_u32 {sr(sTQ)}, 2")
        a(f"s_cbranch_scc0 {late}")
        kv_stores(a)
        a(f"{late}:")
    else:
        kv_stores(a)
    a(f"s_mov_b32 {sr(sT2)}, {hex(f2u(QSCALE))}")
    a(f"s_mov_b32 {sr(sT3)}, {hex(f2u(QSCALE))}")
    for tt in range(2):
        b = ACC + 16 * tt
        for i in range(8):
            a(f"v_pk_mul_f32 {vr(b+2*i,2)}, {vr(b+2*i,2)}, {sr(sT2,2)}")
        for i in range(8):
            a(f"v_cvt_pk_bf16_f32 v{QF+8*tt+i}, v{b+2*i}, v{b+2*i+1}")
    kb = ACC + 32
    a("s_nop 1")
    for x in range(2):
        S, Q = SS + 16 * x, QF + 8 * x
        a(f"v_mfma_f32_32x32x16_bf16 {vr(S,16)}, {vr(kb,4)}, {vr(Q,4)}, 0")
        a(f"v_mfma_f32_32x32x16_bf16 {vr(S,16)}, {vr(kb+4,4)}, {vr(Q+4,4)}, {vr(S,16)}")
    a(f"""
    s_lshr_b32 {sr(sT1)}, {sr(sTQ)}, 1
    s_lshl_b32 {sr(sT1)}, {sr(sT1)}, 15
    s_lshl_b32 {sr(sT2)}, {sr(sHH)}, 14
    s_add_u32 {sr(sT1)}, {sr(sT1)}, {sr(sT2)}
    s_and_b32 {sr(sT2)}, {sr(sTQ)}, 1
    s_lshl_b32 {sr(sT2)}, {sr(sT2)}, 13
    s_add_u32 {sr(sT1)}, {sr(sT1)}, {sr(sT2)}
    v_add_u32 v12, {sr(sT1)}, {vr(vL16)}
    """)
    for tt in range(2):
        kb, vb = ACC + 32 + 16 * tt, ACC + 64 + 16 * tt
        a(f"ds_write_b128 v12, {vr(kb,4)} offset:{tt*4096}")
        a(f"ds_write_b128 v12, {vr(kb+4,4)} offset:{tt*4096+1024}")
        a(f"ds_write_b128 v12, {vr(vb,4)} offset:{tt*4096+2048}")
        a(f"ds_write_b128 v12, {vr(vb+4,4)} offset:{tt*4096+3072}")
    if opt.get("dump_q"):
        a(f"""
        s_lshl_b32 {sr(sT1)}, s2, 3
        s_add_u32 {sr(sT1)}, {sr(sT1)}, {sr(sW)}
        s_lshl_b32 {sr(sT1)}, {sr(sT1)}, 12
        s_add_u32 {sr(sT1)}, {sr(sT1)}, {WS_DBG}
        """)
        for i in range(4):
            a(f"buffer_store_dwordx4 {vr(QF+4*i,4)}, {vr(vL16)}, {sr(SRD_WS,4)}, {sr(sT1)} offen offset:{i*1024}")

def smf(L):
    return f"v_smfmac_f32_16x16x64_bf16 {vr(L,4)}, {vr(ONES,4)}, {vr(PP,8)}, {vr(IDX)}"

def attn_unit(a, t, x, hooks, skip_prev=False, c_zero=False):
    S = SS + 16 * x
    Sn = SS + 16 * (x ^ 1)
    xn = xp = x ^ 1
    Qn = QF + 8 * xn
    P0, P1 = PP, PP + 4
    def M(d, A, B, C): return f"v_mfma_f32_32x32x16_bf16 {vr(d,16)}, {vr(A,4)}, {vr(B,4)}, {C}"
    e = lambda i: f"v_exp_f32 v{S+i}, v{S+i}"
    c = lambda i: f"v_cvt_pk_bf16_f32 v{PP+i}, v{S+2*i}, v{S+2*i+1}"
    mf = [M(Sn, KF, Qn, vr(NM + 16 * xn, 16)),
          None if skip_prev else M(OA + 16 * xp, VF + 4, P1, vr(OA + 16 * xp, 16)),
          None if skip_prev else smf(LA + 4 * xp),
          M(Sn, KF + 4, Qn + 4, vr(Sn, 16)),
          M(OA + 16 * x, VF, P0, "0" if c_zero else vr(OA + 16 * x, 16))]
    va = [[e(0), e(1), e(2)], [e(3), e(4), e(5)], [e(6), e(7), c(0), c(1), c(2), c(3)],
          [e(8), e(9), e(10)], [e(11), e(12), e(13), e(14), e(15), c(4), c(5), c(6), c(7)]]
    for g in range(5):
        if mf[g]: a(mf[g])
        for h in hooks.get(g, []):
            a(h)
        for v in va[g]:
            a(v)

def kv_addr(tile, f):
    if tile < 4:
        return vCUR, tile * 4096 + f * 1024
    return vNXT, f * 1024

def rd(dst, tile, f):
    b, o = kv_addr(tile, f)
    return f"ds_read_b128 {vr(dst,4)}, {vr(b)} offset:{o}"

def kv_dma(p, so):
    return f"buffer_load_dwordx4 {vr(vDMA)}, {sr(SRD_WS,4)}, {sr(so)} offen offset:{p*1024} sc1 lds"

def sample_mailbox(a, off_s, lanes):
    sk = a.label("smp")
    a(f"s_cmp_eq_u32 {sr(sW)}, 0")
    a(f"s_cbranch_scc0 {sk}")
    a(f"s_mov_b32 exec_lo, {hex(lanes)}")
    a("s_mov_b32 exec_hi, 0")
    a(f"buffer_load_dword {vr(vPV)}, {vr(vPA)}, {sr(SRD_WS,4)}, {sr(off_s)} offen sc1")
    a("s_mov_b64 exec, -1")
    a("s_nop 3")
    a(f"{sk}:")

def poll_mailbox(a, want_all):
    poll, done = a.label("poll"), a.label("pdone")
    a(f"s_mov_b32 {sr(sT1)}, 400000")
    a(f"s_add_u32 {sr(sT2)}, {sr(sTB)}, 1")
    a(f"s_and_b32 {sr(sT2)}, {sr(sT2)}, 7")
    a(f"s_lshl_b32 {sr(sT2)}, 1, {sr(sT2)}")
    if want_all == "b1a2":
        a(f"s_lshl_b32 {sr(sT2)}, {sr(sT2)}, 8")
        a(f"s_add_u32 {sr(sT3)}, {sr(sTB)}, 2")
        a(f"s_and_b32 {sr(sT3)}, {sr(sT3)}, 7")
        a(f"s_lshl_b32 {sr(sT3)}, 1, {sr(sT3)}")
        a(f"s_or_b32 {sr(sT2)}, {sr(sT2)}, {sr(sT3)}")
    elif want_all:
        a(f"s_mov_b32 {sr(sT2)}, {0xffff if OPT.get('half', 1) else 0xff}")
    a("s_mov_b64 exec, 0xffff")
    a(f"{poll}:")
    a("s_waitcnt vmcnt(0)")
    a(f"v_cmp_eq_u32 vcc, 1, {vr(vPV)}")
    a("s_nop 3")
    a(f"s_and_b32 {sr(sT3)}, vcc_lo, {sr(sT2)}")
    a(f"s_cmp_eq_u32 {sr(sT3)}, {sr(sT2)}")
    a(f"s_cbranch_scc1 {done}")
    a(f"s_sub_u32 {sr(sT1)}, {sr(sT1)}, 1")
    a(f"s_cbranch_scc1 {done}")
    a(f"buffer_load_dword {vr(vPV)}, {vr(vPA)}, {sr(SRD_WS,4)}, {sr(sMB)} offen sc1")
    a(f"s_branch {poll}")
    a(f"{done}:")
    a("s_mov_b64 exec, -1")

def publish(a):
    spin, ok = a.label("rdy"), a.label("rdyok")
    a(f"s_mov_b32 {sr(sT1)}, 400000")
    a(f"s_mov_b32 {sr(sT2)}, 0x55555555")
    a(f"v_lshlrev_b32 v12, 2, v0")
    a(f"{spin}:")
    a(f"v_cmp_eq_u32 vcc, 8, {vr(vCHK)}")
    a("s_nop 3")
    a(f"s_and_b32 {sr(sT0)}, vcc_lo, {sr(sT2)}")
    a(f"s_and_b32 {sr(sT3)}, vcc_hi, {sr(sT2)}")
    a(f"s_and_b32 {sr(sT0)}, {sr(sT0)}, {sr(sT3)}")
    a(f"s_cmp_eq_u32 {sr(sT0)}, {sr(sT2)}")
    a(f"s_cbranch_scc1 {ok}")
    a(f"s_sub_u32 {sr(sT1)}, {sr(sT1)}, 1")
    a(f"s_cbranch_scc1 {ok}")
    a(f"buffer_load_dword {vr(vCHK)}, v12, {sr(SRD_DBG,4)}, 0 offen sc1")
    a("s_waitcnt vmcnt(0)")
    a(f"s_branch {spin}")
    a(f"{ok}:")
    a(f"""
    s_lshl_b32 {sr(sT0)}, {sr(sHP)}, 10
    s_lshl_b32 {sr(sT1)}, {sr(sTB)}, 2
    s_add_u32 {sr(sT0)}, {sr(sT0)}, {sr(sT1)}
    s_add_u32 {sr(sT0)}, {sr(sT0)}, {WS_MB}
    v_lshlrev_b32 v12, 7, v0
    v_mov_b32 v13, 1
    s_mov_b64 exec, 0xff
    buffer_store_dword v13, v12, {sr(SRD_WS,4)}, {sr(sT0)} offen sc1
    s_mov_b64 exec, -1
    """)

def publish_b(a):
    a(f"""
    s_lshl_b32 {sr(sT0)}, {sr(sHP)}, 10
    s_lshl_b32 {sr(sT1)}, {sr(sTB)}, 2
    s_add_u32 {sr(sT0)}, {sr(sT0)}, {sr(sT1)}
    s_add_u32 {sr(sT0)}, {sr(sT0)}, {WS_MB + 32}
    v_lshlrev_b32 v12, 7, v0
    v_mov_b32 v13, 1
    s_mov_b64 exec, 0xff
    buffer_store_dword v13, v12, {sr(SRD_WS,4)}, {sr(sT0)} offen sc1
    s_mov_b64 exec, -1
    """)

def kv_stores(a):
    a(f"s_add_u32 {sr(sT2)}, {sr(sKVO)}, 4096")
    for tt in range(2):
        so = sKVO if tt == 0 else sT2
        vk = vLK if OPT.get("g16", 1) else vL16
        a(f"buffer_store_dwordx4 {vr(kreg(tt,0),4)}, {vr(vk)}, {sr(SRD_WS,4)}, {sr(so)} offen sc1")
        a(f"buffer_store_dwordx4 {vr(kreg(tt,1),4)}, {vr(vk)}, {sr(SRD_WS,4)}, {sr(so)} offen offset:1024 sc1")
        a(f"buffer_store_dwordx4 {vr(vreg(tt,0),4)}, {vr(vL16)}, {sr(SRD_WS,4)}, {sr(so)} offen offset:2048 sc1")
        a(f"buffer_store_dwordx4 {vr(vreg(tt,1),4)}, {vr(vL16)}, {sr(SRD_WS,4)}, {sr(so)} offen offset:3072 sc1")

def wo_piece(i, half):
    return [f"s_add_u32 {sr(sT0)}, {sr(sROT)}, {i}", f"s_and_b32 {sr(sT0)}, {sr(sT0)}, 15", f"s_lshl_b32 {sr(sT0)}, {sr(sT0)}, 17",
            f"s_add_u32 {sr(sT0)}, {sr(sT0)}, {sr(sWOFF)}"] + ([f"s_add_u32 {sr(sT0)}, {sr(sT0)}, 16384"] if half else []) + \
           [f"s_add_u32 m0, {sr(sLDSW3)}, {(i % NSLOT3) * 16384 + half * 1024}", "s_nop 0",
            f"buffer_load_dwordx4 {vr(vDW3)}, {sr(SRD_WO,4)}, {sr(sT0)} offen lds"]

def attn_stage(a, opt, kind, s_=None):
    prio = opt.get("prio", 1)
    def sp(n): return [f"s_setprio {n}"] if prio else []
    for t in range(4):
        h0 = {0: [rd(KF, t + 1, 0)], 1: [rd(VF + 4, t, 3)], 2: ["s_waitcnt lgkmcnt(2)"],
              3: [rd(KF + 4, t + 1, 1)], 4: ["s_waitcnt lgkmcnt(2)"]}
        h1 = {0: ["s_waitcnt lgkmcnt(1)"], 1: [], 2: ["s_waitcnt lgkmcnt(0)"], 3: [], 4: [rd(VF, t + 1, 2)]}
        if (kind == 1 and t in (0, 2)) or (kind == 4 and t == 2):
            sample_mailbox(a, sMB, 0xffff)
        if t == 0:
            h0[0] += sp(2)
            h0[4] += [f"s_mov_b32 {sr(sNXT)}, {sr(sSLOT)}"]
            h1[1] = [f"s_add_u32 {sr(sSRC)}, {sr(sSRC)}, 16384"]
            h1[3] = [f"s_and_b32 {sr(sSRC)}, {sr(sSRC)}, 0x3ffff"]
        if t == 1:
            h0[0] += sp(1)
            h1[1] = [f"s_add_u32 {sr(sSLOT)}, {sr(sSLOT)}, 32768"]
            h1[3] = [f"s_and_b32 {sr(sSLOT)}, {sr(sSLOT)}, 0x1ffff"]
            if kind == 0:
                h1[4] += ["s_waitcnt vmcnt(0)", "s_barrier"]
            if kind == 3 and s_ == 13:
                h0[2] += wo_piece(8, 0)
                h0[4] += wo_piece(8, 1)
                h1[0] += wo_piece(9, 0)
                h1[2] += wo_piece(9, 1)
            if kind == 1:
                go = a.label("go")
                lanestamp(a, 203, opt, 0)
                half = opt.get("half", 1)
                if half: a("s_waitcnt vmcnt(0)")
                a(f"s_cmp_eq_u32 {sr(sW)}, 0")
                a(f"s_cbranch_scc0 {go}")
                poll_mailbox(a, False)
                a(f"{go}:")
                lanestamp(a, 203, opt, 1)
                a("s_barrier")
                lanestamp(a, 203, opt, 2)
                for st in ((2,) if half else (2, 3)):
                    a(f"""
                    s_lshl_b32 {sr(sT0)}, {sr(sTB)}, 1
                    s_add_u32 {sr(sT0)}, {sr(sT0)}, {st}
                    s_and_b32 {sr(sT0)}, {sr(sT0)}, 15
                    s_lshl_b32 {sr(sOFFS)}, {sr(sT0)}, 14
                    s_add_u32 m0, {sr(sLDSW)}, {st * 32768}
                    s_nop 0
                    """)
                    for p in range(4):
                        a(kv_dma(p, sOFFS))
                if half:
                    nb = a.label("nb")
                    a(f"s_cmp_eq_u32 {sr(sW)}, 0")
                    a(f"s_cbranch_scc0 {nb}")
                    publish_b(a)
                    a(f"{nb}:")
        if t == 2:
            h0[0] += sp(0)
            h1[1] = [f"s_add_u32 m0, {sr(sSLOT)}, {sr(sLDSW)}"]
            h1[3] = [f"s_add_u32 {sr(sJ)}, {sr(sJ)}, 1"]
            if kind == 0:
                h1[4] += ["s_barrier"] + sp(3)
                if opt.get("half", 1):
                    ns = a.label("ns")
                    a(f"s_cmp_ge_u32 {sr(sTQ)}, 2")
                    a(f"s_cbranch_scc0 {ns}")
                    kv_stores(a)
                    a(f"{ns}:")
                np_ = a.label("np")
                a(f"s_cmp_eq_u32 {sr(sW)}, 0")
                a(f"s_cbranch_scc0 {np_}")
                publish(a)
                a(f"{np_}:")
            elif kind == 3 and s_ == 15:
                h1[4] += ["s_barrier"] + sp(3)
            elif kind == 3:
                h1[4] += ["s_waitcnt vmcnt(8)", "s_barrier"] + sp(3)
            elif kind not in (1, 4):
                h1[4] += ["s_waitcnt vmcnt(4)", "s_barrier"] + sp(3)
        if t == 3:
            if kind == 3:
                q = s_ - 13
                h0[2] += wo_piece(2 * q, 0)
                h0[4] += wo_piece(2 * q, 1)
                h1[1] = wo_piece(2 * q + 1, 0)
                h1[3] = wo_piece(2 * q + 1, 1)
            elif kind != 0:
                h0[2] += [kv_dma(0, sSRC)]
                h0[4] += [kv_dma(1, sSRC)]
                h1[1] = [kv_dma(2, sSRC)]
                h1[3] = [kv_dma(3, sSRC)]
            if kind == 1:
                go = a.label("go")
                a(f"s_cmp_eq_u32 {sr(sW)}, 0")
                a(f"s_cbranch_scc0 {go}")
                poll_mailbox(a, "b1a2" if opt.get("prog", 1) and opt.get("half", 1) else True)
                a(f"{go}:")
                if opt.get("half", 1):
                    a("s_waitcnt vmcnt(0)")
                    a("s_barrier")
                    a(f"""
                    s_lshl_b32 {sr(sT0)}, {sr(sTB)}, 1
                    s_add_u32 {sr(sT0)}, {sr(sT0)}, 3
                    s_and_b32 {sr(sT0)}, {sr(sT0)}, 15
                    s_lshl_b32 {sr(sOFFS)}, {sr(sT0)}, 14
                    s_add_u32 m0, {sr(sLDSW)}, {3 * 32768}
                    s_nop 0
                    """)
                    for p in range(4):
                        a(kv_dma(p, sOFFS))
                    a(f"s_add_u32 m0, {sr(sSLOT)}, {sr(sLDSW)}")
                else:
                    a("s_waitcnt vmcnt(4)")
                    a("s_barrier")
                for x in sp(3): a(x)
            if kind == 4:
                go = a.label("go")
                a(f"s_cmp_eq_u32 {sr(sW)}, 0")
                a(f"s_cbranch_scc0 {go}")
                poll_mailbox(a, True)
                a(f"{go}:")
                a("s_waitcnt vmcnt(4)")
                a("s_barrier")
                for x in sp(3): a(x)
        first = kind == 0 and t == 0
        attn_unit(a, t, 0, h0, skip_prev=first, c_zero=first)
        attn_unit(a, t, 1, h1, c_zero=first)
    a(f"v_mov_b32 {vr(vCUR)}, {vr(vNXT)}")
    a(f"v_add_u32 {vr(vNXT)}, {sr(sNXT)}, {vr(vKVB)}")

def attention(a, opt):
    if not opt.get("g16", 1):
        a(f"""
    v_bfe_u32 v12, v0, 2, 1
    v_and_b32 v13, 3, v0
    v_mov_b32 v14, 0x3f803f80
    v_cmp_gt_u32 vcc, 2, v13
    s_nop 1
    v_cndmask_b32 v14, 0, v14, vcc
    v_cmp_eq_u32 vcc, 0, v12
    s_nop 1
    v_cndmask_b32 v{ONES}, 0, v14, vcc
    v_cndmask_b32 v{ONES+2}, v14, 0, vcc
    v_mov_b32 v{ONES+1}, v{ONES}
    v_mov_b32 v{ONES+3}, v{ONES+2}
    v_mov_b32 v14, 0x4444
    v_mov_b32 v12, 0xeeee
    v_cmp_eq_u32 vcc, 1, v13
    s_nop 1
    v_cndmask_b32 v{IDX}, v14, v12, vcc
    s_lshl_b32 {sr(sT0)}, {sr(sHH)}, 14
    v_add_u32 {vr(vKVB)}, {sr(sT0)}, {vr(vL16)}
    v_mov_b32 {vr(vCUR)}, {vr(vKVB)}
    v_add_u32 {vr(vNXT)}, 32768, {vr(vKVB)}
    s_lshl_b32 {sr(sT1)}, {sr(sTQ)}, 12
    s_add_u32 {sr(sLDSW)}, {sr(sT0)}, {sr(sT1)}
    s_add_u32 {sr(sKVSRC)}, {sr(sKVSRC)}, {sr(sT1)}
    v_add_u32 {vr(vDMA)}, {sr(sKVSRC)}, {vr(vL16)}
    s_lshl_b32 {sr(sSRC)}, {sr(sTB)}, 1
    s_add_u32 {sr(sSRC)}, {sr(sSRC)}, 2
    s_and_b32 {sr(sSRC)}, {sr(sSRC)}, 15
    s_lshl_b32 {sr(sSRC)}, {sr(sSRC)}, 14
    s_mov_b32 {sr(sSLOT)}, {2 * 32768}
    s_mov_b32 {sr(sJ)}, 0
    v_lshrrev_b32 v12, 3, v0
    v_and_b32 v13, 7, v0
    v_bfe_u32 v14, v12, 1, 1
    v_lshlrev_b32 v14, 2, v14
    v_xor_b32 v13, v13, v14
    s_lshl_b32 {sr(sT0)}, {sr(sTQ)}, 4
    v_add_u32 v12, {sr(sT0)}, v12
    v_lshlrev_b32 {vr(vDW3)}, 11, v12
    v_lshl_add_u32 {vr(vDW3)}, v13, 4, {vr(vDW3)}
    s_lshl_b32 {sr(sWOFF)}, {sr(sCB)}, 7
    s_lshl_b32 {sr(sLDSW3)}, {sr(sHH)}, 13
    s_lshl_b32 {sr(sT0)}, {sr(sTQ)}, 11
    s_add_u32 {sr(sLDSW3)}, {sr(sLDSW3)}, {sr(sT0)}
        """)
        for i in range(8): a(f"v_mov_b32 v{LA+i}, 0")
    else:
        a("s_nop 7")
    for x in range(2):
        S = SS + 16 * x
        a(f"v_max3_f32 v12, v{S}, v{S+1}, v{S+2}")
        for i in range(3, 15, 2):
            a(f"v_max3_f32 v12, v12, v{S+i}, v{S+i+1}")
        a(f"v_max_f32 v12, v12, v{S+15}")
        a(f"""
        v_mov_b32 v13, v12
        s_nop 1
        v_permlane32_swap_b32 v13, v12
        s_nop 1
        v_max_f32 v12, v12, v13
        v_sub_f32 v12, 0, v12
        """)
        for i in range(16):
            a(f"v_mov_b32 v{NM+16*x+i}, v12")
    a("s_waitcnt lgkmcnt(0)")
    a("s_barrier")
    a(rd(KF, 0, 0)); a(rd(KF + 4, 0, 1)); a(rd(VF, 0, 2))
    a("s_waitcnt lgkmcnt(1)")
    a(f"v_mfma_f32_32x32x16_bf16 {vr(SS,16)}, {vr(KF,4)}, {vr(QF,4)}, {vr(NM,16)}")
    a(f"v_mfma_f32_32x32x16_bf16 {vr(SS,16)}, {vr(KF+4,4)}, {vr(QF+4,4)}, {vr(SS,16)}")
    lanestamp(a, 203, opt, 3)
    a("s_waitcnt lgkmcnt(0)")
    a("s_nop 15")
    attn_stage(a, opt, 0)
    lanestamp(a, 202, opt, 0)
    attn_stage(a, opt, 1)
    lanestamp(a, 202, opt, 1)
    if opt.get("prog", 1) and opt.get("half", 1):
        attn_stage(a, opt, 4)
        lanestamp(a, 202, opt, 2)
    loop = a.label("attn")
    a(".p2align 6")
    a(f"{loop}:")
    attn_stage(a, opt, 2)
    lanestamp(a, 202, opt, "m")
    a(f"s_cmp_lt_u32 {sr(sJ)}, 13")
    a(f"s_cbranch_scc1 {loop}")
    for s_ in (13, 14, 15):
        attn_stage(a, opt, 3, s_)
        lanestamp(a, 202, opt, s_)
    a("s_setprio 0")
    a("s_nop 1")
    a(f"v_mfma_f32_32x32x16_bf16 {vr(OA+16,16)}, {vr(VF+4,4)}, {vr(PP+4,4)}, {vr(OA+16,16)}")
    a(smf(LA + 4))
    a("s_waitcnt lgkmcnt(0)")

def attn_epilogue(a, opt):
    a(f"""
    s_lshl_b32 {sr(sT0)}, {sr(sTB)}, 3
    s_lshl_b32 {sr(sT1)}, {sr(sTQ)}, 1
    s_add_u32 {sr(sT0)}, {sr(sT0)}, {sr(sT1)}
    s_lshl_b32 {sr(sT0)}, {sr(sT0)}, 17
    s_lshl_b32 {sr(sT1)}, {sr(sHP)}, 1
    s_add_u32 {sr(sT1)}, {sr(sT1)}, {sr(sHH)}
    s_lshl_b32 {sr(sT1)}, {sr(sT1)}, 11
    s_add_u32 {sr(sT0)}, {sr(sT0)}, {sr(sT1)}
    s_add_u32 {sr(sOOFF)}, {sr(sT0)}, {WS_O}
    s_mov_b32 {sr(sT2)}, {hex(f2u(2.0**24))}
    s_nop 7
    """)
    ok = a.label("ok")
    a("v_mov_b32 v12, 0")
    a("v_mov_b32 v13, 0")
    a(f"v_add_f32 v{LA}, v{LA}, v{LA+1}")
    a(f"v_add_f32 v{LA+4}, v{LA+4}, v{LA+5}")
    for i in range(16):
        a(f"v_pk_fma_f32 v[12:13], {vr(OA+2*i,2)}, 0, v[12:13] op_sel_hi:[1,0,1]")
    a(f"v_cmp_nle_f32 {sr(sM,2)}, v{LA}, {sr(sT2)}")
    a(f"v_cmp_nle_f32 {sr(sM2,2)}, v{LA+4}, {sr(sT2)}")
    a("v_cmp_u_f32 vcc, v12, v13")
    a(f"s_or_b64 {sr(sM,2)}, {sr(sM,2)}, {sr(sM2,2)}")
    a(f"s_or_b64 {sr(sM,2)}, {sr(sM,2)}, vcc")
    if opt.get("force_fallback"):
        a(f"s_mov_b64 {sr(sM,2)}, -1")
    a(f"s_cmp_eq_u64 {sr(sM,2)}, 0")
    a(f"s_cbranch_scc1 {ok}")
    fallback(a, opt)
    a(f"{ok}:")
    a(f"v_rcp_f32 v12, v{LA}")
    a(f"v_rcp_f32 v14, v{LA+4}")
    for x in range(2):
        r = (12, 14)[x]
        a(f"v_mov_b32 v{r+1}, v{r}" if x == 1 else f"v_mov_b32 v13, v12")
        b = OA + 16 * x
        for i in range(8):
            a(f"v_pk_mul_f32 {vr(b+2*i,2)}, {vr(b+2*i,2)}, {vr(r,2)}")
        for i in range(8):
            a(f"v_cvt_pk_bf16_f32 v{b+i}, v{b+2*i}, v{b+2*i+1}")
        if x == 1:
            a(f"s_add_u32 {sr(sOOFF)}, {sr(sOOFF)}, 131072")
        a(f"buffer_store_dwordx4 {vr(b,4)}, {vr(vL16)}, {sr(SRD_WS,4)}, {sr(sOOFF)} offen sc1")
        a(f"buffer_store_dwordx4 {vr(b+4,4)}, {vr(vL16)}, {sr(SRD_WS,4)}, {sr(sOOFF)} offen offset:1024 sc1")

def phase3(a, opt):
    vm = VmTracker()
    ACC3, AF, OF, DEPTH, NSLOT = 16, 48, 72, opt.get("depth", 16), NSLOT3
    vRD = [7, 8, 9, 11, 4, 5]
    vG, vOUT = 14, 13
    sample_mailbox(a, sMB2, 0xffffffff)
    a("s_waitcnt vmcnt(0)")
    a("s_barrier")
    timestamp(a, 4, opt)
    np_ = a.label("np3")
    a(f"s_cmp_eq_u32 {sr(sW)}, 0")
    a(f"s_cbranch_scc0 {np_}")
    a(f"""
    s_lshl_b32 {sr(sT0)}, {sr(sTB)}, 12
    s_lshl_b32 {sr(sT1)}, {sr(sHP)}, 2
    s_add_u32 {sr(sT0)}, {sr(sT0)}, {sr(sT1)}
    s_add_u32 {sr(sT0)}, {sr(sT0)}, {WS_MB2}
    v_lshlrev_b32 v12, 7, v0
    v_mov_b32 v15, 1
    s_mov_b32 exec_lo, -1
    s_mov_b32 exec_hi, 0
    buffer_store_dword v15, v12, {sr(SRD_WS,4)}, {sr(sT0)} offen sc1
    s_mov_b64 exec, -1
    """)
    poll = a.label("poll3"); done = a.label("pd3")
    a(f"""
    s_mov_b32 {sr(sT1)}, 400000
    s_lshr_b32 {sr(sT2)}, {sr(sTB3)}, 1
    s_cmp_eq_u32 {sr(sT2)}, {sr(sTB)}
    s_cselect_b32 {sr(sT2)}, 1, 0
    s_lshl_b32 {sr(sT2)}, {sr(sT2)}, {sr(sHP)}
    s_mov_b32 exec_lo, -1
    s_mov_b32 exec_hi, 0
    """)
    a(f"{poll}:")
    a(f"v_cmp_eq_u32 vcc, 1, {vr(vPV)}")
    a("s_nop 3")
    a(f"s_or_b32 {sr(sT3)}, vcc_lo, {sr(sT2)}")
    a(f"s_cmp_eq_u32 {sr(sT3)}, -1")
    a(f"s_cbranch_scc1 {done}")
    a(f"s_sub_u32 {sr(sT1)}, {sr(sT1)}, 1")
    a(f"s_cbranch_scc1 {done}")
    a(f"buffer_load_dword {vr(vPV)}, {vr(vPA)}, {sr(SRD_WS,4)}, {sr(sMB2)} offen sc1")
    a("s_waitcnt vmcnt(0)")
    a(f"s_branch {poll}")
    a(f"{done}:")
    a("s_mov_b64 exec, -1")
    a(f"{np_}:")
    def wdma(i):
        for half in range(2):
            for x in wo_piece(i, half): a(x)
            vm.issue(("w", i))
    wdma(6); wdma(7)
    a(f"""
    v_and_b32 v12, 31, v0
    s_lshl_b32 {sr(sT0)}, {sr(sTB3)}, 7
    s_lshl_b32 {sr(sT2)}, {sr(sTQ)}, 5
    s_add_u32 {sr(sT0)}, {sr(sT0)}, {sr(sT2)}
    v_add_u32 v12, {sr(sT0)}, v12                  ; token
    v_lshlrev_b32 v3, 2, v12
    v_lshrrev_b32 {vr(vG)}, 5, v0                  ; h
    v_lshlrev_b32 {vr(vOUT)}, 11, v12
    v_lshl_add_u32 {vr(vOUT)}, {vr(vG)}, 4, {vr(vOUT)}
    v_bfe_u32 v15, v0, 2, 2                        ; r
    v_lshl_add_u32 v12, {vr(vG)}, 2, v15           ; 4h + r
    v_lshlrev_b32 v2, 7, v12
    v_and_b32 v12, 1, v0                           ; h'
    v_bfe_u32 v1, v0, 1, 1                         ; a
    v_bfe_u32 v5, v0, 4, 1                         ; g
    v_lshl_add_u32 v12, v5, 1, v12                 ; chunk16 = 2g + h'
    v_lshrrev_b32 v15, 1, v15
    v_lshlrev_b32 v15, 2, v15
    v_xor_b32 v12, v12, v15
    v_lshl_add_u32 v2, v12, 4, v2
    v_lshl_add_u32 v2, v1, 3, v2
    s_lshl_b32 {sr(sT0)}, {sr(sHH)}, 13
    v_add_u32 v{vRD[0]}, {sr(sT0)}, v2
    v_xor_b32 v{vRD[1]}, 64, v{vRD[0]}
    v_add_u32 v{vRD[2]}, 0x10000, v{vRD[0]}
    v_add_u32 v{vRD[3]}, 0x10000, v{vRD[1]}
    v_add_u32 v{vRD[4]}, 0x20000, v{vRD[0]}
    v_add_u32 v{vRD[5]}, 0x20000, v{vRD[1]}
    s_lshl_b32 {sr(sT0)}, {sr(sTB3)}, 2
    s_add_u32 {sr(sT0)}, {sr(sT0)}, {sr(sTQ)}
    s_lshl_b32 {sr(sAOFF)}, {sr(sT0)}, 17
    s_lshl_b32 {sr(sT1)}, {sr(sHH)}, 16
    s_add_u32 {sr(sAOFF)}, {sr(sAOFF)}, {sr(sT1)}
    s_add_u32 {sr(sAOFF)}, {sr(sAOFF)}, {WS_O}
    """)
    a("s_barrier")
    timestamp(a, 5, opt)
    if opt.get("dbg_span"): dbg_span(a, "e3")
    def oload(kk):
        d = kk % DEPTH
        if kk % 4 == 0:
            a(f"s_add_u32 {sr(sT1)}, {sr(sROT)}, {kk // 4}")
            a(f"s_and_b32 {sr(sT1)}, {sr(sT1)}, 15")
            a(f"s_lshl_b32 {sr(sT1)}, {sr(sT1)}, 12")
            a(f"s_add_u32 {sr(sT1)}, {sr(sT1)}, {sr(sAOFF)}")
        if opt.get("p3_noload") and kk >= DEPTH: return
        sc = "" if opt.get("p3_plain") else " sc1"
        a(f"buffer_load_dwordx4 {vr(OF+4*d,4)}, {vr(vL16)}, {sr(SRD_WS,4)}, {sr(sT1)} offen offset:{(kk%4)*1024}{sc}")
        vm.issue(("o", kk))
    for kk in range(DEPTH): oload(kk)
    a(f"s_mov_b32 {sr(sT2)}, {WS_G}")
    a(f"buffer_load_dword {vr(vG)}, v3, {sr(SRD_WS,4)}, {sr(sT2)} offen sc1")
    vm.issue(("g", 0))
    def wreads(st, ks, set_):
        r = []
        slot = st % NSLOT
        win, off = divmod(slot * 16384, 65536)
        for ct in range(2):
            base = AF + 8 * set_ + 4 * ct
            reg = vRD[2 * win + ct]
            r.append(f"ds_read_b64_tr_b16 {vr(base,2)}, {vr(reg)} offset:{off + ks*2048}")
            r.append(f"ds_read_b64_tr_b16 {vr(base+2,2)}, {vr(reg)} offset:{off + ks*2048+1024}")
        return r
    def wr(kk): return wreads(kk // 4, kk % 4, kk % 3)
    for x in wr(0) + wr(1): a(x)
    pend = []
    for st in range(16):
        for ks in range(4):
            kk = 4 * st + ks
            d = kk % DEPTH
            cur = kk % 3
            bar = ks == 2 and st in (5, 9)
            if bar:
                need = ("w", 7) if st == 5 else ("w", 15)
                n = vm.wait_count(lambda t: t in (need, ("o", kk)))
                a(f"s_waitcnt vmcnt({n}) lgkmcnt(0)")
                a("s_barrier")
                if st == 5:
                    pend = [(i, h) for i in range(10, 16) for h in range(2)]
            else:
                n = vm.wait_count(lambda t: t == ("o", kk))
                a(f"s_waitcnt vmcnt({n}) lgkmcnt({4 if kk < 63 else 0})")
            nxt = wr(kk + 2) if kk + 2 < 64 else []
            if opt.get("p3prio", 0) and kk % 16 == 0:
                a(f"s_setprio {3 - kk // 16}")
            for ct in range(2):
                c = "0" if kk == 0 else vr(ACC3+16*ct,16)
                a(f"v_mfma_f32_32x32x16_bf16 {vr(ACC3+16*ct,16)}, {vr(AF+8*cur+4*ct,4)}, {vr(OF+4*d,4)}, {c}")
                for x in nxt[2*ct:2*ct+2]: a(x)
            if kk + DEPTH < 64:
                oload(kk + DEPTH)
            for i, h in pend[:2]:
                if opt.get("p3_nowo"): continue
                for x in wo_piece(i, h): a(x)
                vm.issue(("w", i))
            pend = pend[2:]
    timestamp(a, 6, opt)
    if opt.get("fullrow", 1):
        XA = 6 * 16384
        a(f"""
        v_sub_f32 v2, 1.0, {vr(vG)}
        v_cvt_pk_bf16_f32 v2, v2, v2
        v_lshlrev_b32 v2, 16, v2
        s_cmp_eq_u32 {sr(sHH)}, 0
        s_cselect_b64 vcc, -1, 0
        v_and_b32 v12, 31, v0                          ; t
        v_lshrrev_b32 v1, 5, v0                        ; h'
        v_cndmask_b32 v60, v2, {vr(vG)}, vcc
        v_and_b32 v3, 7, v12
        v_xor_b32 v1, v1, v3
        v_mov_b32 v61, v60
        s_lshl_b32 {sr(sT0)}, {sr(sHH)}, 14
        s_lshl_b32 {sr(sT1)}, {sr(sTQ)}, 12
        s_add_u32 {sr(sT0)}, {sr(sT0)}, {sr(sT1)}
        s_add_u32 {sr(sT0)}, {sr(sT0)}, {XA}
        v_lshlrev_b32 v12, 7, v12
        v_lshl_add_u32 v12, v1, 4, v12
        v_add_u32 v12, {sr(sT0)}, v12
        v_xor_b32 v56, 32, v12
        v_xor_b32 v57, 64, v12
        v_xor_b32 v58, 96, v12
        """)
        for ct in range(2):
            b = ACC3 + 16 * ct
            for i in range(8):
                a(f"v_pk_mul_f32 {vr(b+2*i,2)}, {vr(b+2*i,2)}, v[60:61]")
            for i in range(8):
                a(f"v_cvt_pk_bf16_f32 v{b+i}, v{b+2*i}, v{b+2*i+1}")
            a(f"ds_write_b128 v{12 if ct == 0 else 57}, {vr(b,4)}")
            a(f"ds_write_b128 v{56 if ct == 0 else 58}, {vr(b+4,4)}")
        a(f"""
        v_lshrrev_b32 v1, 3, v0
        v_and_b32 v3, 7, v0
        v_xor_b32 v2, v3, v1
        s_lshl_b32 {sr(sT0)}, {sr(sW)}, 4
        v_add_u32 v1, {sr(sT0)}, v1                    ; row (p = 0)
        v_lshlrev_b32 v12, 7, v1
        v_lshl_add_u32 v12, v2, 4, v12
        v_add_u32 v12, {XA}, v12
        s_lshl_b32 {sr(sT0)}, {sr(sTB3)}, 7
        v_add_u32 v1, {sr(sT0)}, v1                    ; token
        v_lshlrev_b32 {vr(vOUT)}, 11, v1
        v_lshl_add_u32 {vr(vOUT)}, v3, 4, {vr(vOUT)}
        s_lshl_b32 {sr(sT0)}, {sr(sCB)}, 7
        s_add_u32 {sr(sT1)}, {sr(sT0)}, {8 * 2048}
        s_waitcnt lgkmcnt(0)
        s_barrier
        ds_read_b128 v[16:19], v12
        ds_read_b128 v[20:23], v12 offset:16384
        ds_read_b128 v[24:27], v12 offset:1024
        ds_read_b128 v[28:31], v12 offset:{16384 + 1024}
        """)
        for p_ in range(2):
            a(f"s_waitcnt lgkmcnt({2 if p_ == 0 else 0})")
            A, B, O = 16 + 8 * p_, 20 + 8 * p_, 32 + 4 * p_
            for i in range(4):
                a(f"v_lshlrev_b32 v48, 16, v{A+i}")
                a(f"v_and_b32 v49, 0xffff0000, v{A+i}")
                a(f"v_lshlrev_b32 v50, 16, v{B+i}")
                a(f"v_and_b32 v51, 0xffff0000, v{B+i}")
                a(f"v_pk_add_f32 v[48:49], v[48:49], v[50:51]")
                a(f"v_cvt_pk_bf16_f32 v{O+i}, v48, v49")
            a(f"buffer_store_dwordx4 {vr(O,4)}, {vr(vOUT)}, {sr(SRD_OUT,4)}, {sr(sT0 if p_ == 0 else sT1)} offen {opt.get('outflag', 'sc1')}")
        return
    XA = 6 * 16384
    a(f"""
    s_lshl_b32 {sr(sT0)}, {sr(sTQ)}, 12
    s_lshl_b32 {sr(sT1)}, {sr(sHH)}, 11
    s_add_u32 {sr(sT2)}, {sr(sT0)}, {sr(sT1)}
    s_xor_b32 {sr(sT1)}, {sr(sT1)}, 2048
    s_add_u32 {sr(sT3)}, {sr(sT0)}, {sr(sT1)}
    s_add_u32 {sr(sT2)}, {sr(sT2)}, {XA}
    s_add_u32 {sr(sT3)}, {sr(sT3)}, {XA}
    v_add_u32 v12, {sr(sT2)}, {vr(vL16)}
    v_add_u32 v1, {sr(sT3)}, {vr(vL16)}
    v_sub_f32 v2, 1.0, {vr(vG)}
    v_cvt_pk_bf16_f32 v2, v2, v2
    v_lshlrev_b32 v2, 16, v2
    s_lshl_b32 {sr(sT0)}, {sr(sCB)}, 7
    s_lshl_b32 {sr(sT1)}, {sr(sHH)}, 6
    s_add_u32 {sr(sT0)}, {sr(sT0)}, {sr(sT1)}
    """)
    brb, fin = a.label("brb"), a.label("fin")
    a(f"s_cmp_eq_u32 {sr(sHH)}, 0")
    a(f"s_cbranch_scc0 {brb}")
    for br in range(2):
        K, S_ = ACC3 + 16 * br, ACC3 + 16 * (br ^ 1)
        own, rcv = (vG, 2) if br == 0 else (2, vG)
        a(f"v_mov_b32 v60, v{own}\nv_mov_b32 v61, v{own}\nv_mov_b32 v62, v{rcv}\nv_mov_b32 v63, v{rcv}")
        for i in range(8):
            a(f"v_cvt_pk_bf16_f32 v{48+i}, v{S_+2*i}, v{S_+2*i+1}")
        a("ds_write_b128 v12, v[48:51]")
        a("ds_write_b128 v12, v[52:55] offset:1024")
        a("s_waitcnt lgkmcnt(0)")
        a("s_barrier")
        a("ds_read_b128 v[48:51], v1")
        a("ds_read_b128 v[52:55], v1 offset:1024")
        for i in range(8):
            if i == 0: a("s_waitcnt lgkmcnt(1)")
            if i == 4: a("s_waitcnt lgkmcnt(0)")
            a(f"v_lshlrev_b32 v56, 16, v{48+i}")
            a(f"v_and_b32 v57, 0xffff0000, v{48+i}")
            a(f"v_pk_mul_f32 v[56:57], v[56:57], v[62:63]")
            a(f"v_pk_fma_f32 v[56:57], {vr(K+2*i,2)}, v[60:61], v[56:57]")
            if opt.get("perturb") and br == 0 and i == 0:
                a(f"s_cmp_eq_u32 s2, 0")
                a(f"s_cselect_b32 {sr(sT1)}, {hex(f2u(opt['perturb']))}, 0")
                a(f"s_cmp_eq_u32 {sr(sW)}, 0")
                a(f"s_cselect_b32 {sr(sT1)}, {sr(sT1)}, 0")
                a(f"v_mov_b32 v58, {sr(sT1)}")
                a(f"v_cmp_eq_u32 vcc, 0, v0")
                a("s_nop 1")
                a(f"v_cndmask_b32 v58, 0, v58, vcc")
                a(f"v_add_f32 v56, v56, v58")
            a(f"v_cvt_pk_bf16_f32 v{K+i}, v56, v57")
            if i == 3:
                a(f"buffer_store_dwordx4 {vr(K,4)}, {vr(vOUT)}, {sr(SRD_OUT,4)}, {sr(sT0)} offen {opt.get('outflag', 'sc1')}")
        a(f"buffer_store_dwordx4 {vr(K+4,4)}, {vr(vOUT)}, {sr(SRD_OUT,4)}, {sr(sT0)} offen offset:32 {opt.get('outflag', 'sc1')}")
        if br == 0:
            a(f"s_branch {fin}")
            a(f"{brb}:")
    a(f"{fin}:")

def fallback(a, opt):
    MX = NM
    a(f"s_lshl_b32 {sr(sT0)}, {sr(sHP)}, 1")
    a(f"s_add_u32 {sr(sT0)}, {sr(sT0)}, {sr(sHH)}")
    a(f"s_lshl_b32 {sr(sBLK)}, {sr(sT0)}, 18")
    for i in range(32): a(f"v_mov_b32 v{OA+i}, 0")
    for i in range(8): a(f"v_mov_b32 v{LA+i}, 0")
    a(f"v_mov_b32 v{MX}, 0xff800000")
    a(f"v_mov_b32 v{MX+16}, 0xff800000")
    a(f"s_mov_b32 {sr(sJ)}, 0")
    loop = a.label("fb")
    a(f"{loop}:")
    a(f"buffer_load_dwordx4 {vr(KF,4)}, {vr(vL16)}, {sr(SRD_WS,4)}, {sr(sBLK)} offen sc1")
    a(f"buffer_load_dwordx4 {vr(KF+4,4)}, {vr(vL16)}, {sr(SRD_WS,4)}, {sr(sBLK)} offen offset:1024 sc1")
    a(f"buffer_load_dwordx4 {vr(VF,4)}, {vr(vL16)}, {sr(SRD_WS,4)}, {sr(sBLK)} offen offset:2048 sc1")
    a(f"buffer_load_dwordx4 {vr(VF+4,4)}, {vr(vL16)}, {sr(SRD_WS,4)}, {sr(sBLK)} offen offset:3072 sc1")
    a("s_waitcnt vmcnt(0)")
    for x in range(2):
        S, Q, O, L, mx = SS, QF + 8 * x, OA + 16 * x, LA + 4 * x, MX + 16 * x
        a(f"v_mfma_f32_32x32x16_bf16 {vr(S,16)}, {vr(KF,4)}, {vr(Q,4)}, 0")
        a(f"v_mfma_f32_32x32x16_bf16 {vr(S,16)}, {vr(KF+4,4)}, {vr(Q+4,4)}, {vr(S,16)}")
        a("s_nop 15")
        a(f"v_max3_f32 v12, v{S}, v{S+1}, v{S+2}")
        for i in range(3, 15, 2):
            a(f"v_max3_f32 v12, v12, v{S+i}, v{S+i+1}")
        a(f"v_max_f32 v12, v12, v{S+15}")
        a(f"""
        v_mov_b32 v13, v12
        s_nop 1
        v_permlane32_swap_b32 v13, v12
        s_nop 1
        v_max3_f32 v12, v12, v13, v{mx}
        v_sub_f32 v13, v{mx}, v12
        v_cmp_eq_f32 vcc, v{mx}, v12
        v_exp_f32 v13, v13
        s_nop 1
        v_cndmask_b32 v13, v13, 1.0, vcc
        v_mov_b32 v{mx}, v12
        """)
        for i in range(16):
            a(f"v_mul_f32 v{O+i}, v13, v{O+i}")
        for i in range(4):
            a(f"v_mul_f32 v{L+i}, v13, v{L+i}")
        for i in range(16):
            a(f"v_sub_f32 v{S+i}, v{S+i}, v12")
        for i in range(16):
            a(f"v_exp_f32 v{S+i}, v{S+i}")
        a("s_nop 0")
        for i in range(8):
            a(f"v_cvt_pk_bf16_f32 v{PP+i}, v{S+2*i}, v{S+2*i+1}")
        a("s_nop 1")
        a(f"v_mfma_f32_32x32x16_bf16 {vr(O,16)}, {vr(VF,4)}, {vr(PP,4)}, {vr(O,16)}")
        a(f"v_mfma_f32_32x32x16_bf16 {vr(O,16)}, {vr(VF+4,4)}, {vr(PP+4,4)}, {vr(O,16)}")
        a(smf(L))
        a("s_nop 15")
    a(f"s_add_u32 {sr(sBLK)}, {sr(sBLK)}, 4096")
    a(f"s_add_u32 {sr(sJ)}, {sr(sJ)}, 1")
    a(f"s_cmp_lt_u32 {sr(sJ)}, 64")
    a(f"s_cbranch_scc1 {loop}")
    a(f"v_add_f32 v{LA}, v{LA}, v{LA+1}")
    a(f"v_add_f32 v{LA+4}, v{LA+4}, v{LA+5}")

def gstamp(a, reg):
    a("s_memtime s[70:71]")
    a("s_waitcnt lgkmcnt(0)")
    a("s_mov_b32 s69, m0")
    a("s_mov_b32 m0, s87")
    a(f"v_writelane_b32 v{reg-152}, s70, m0")
    a("s_mov_b32 m0, s69")

def lanestamp(a, reg, opt, lane=None):
    if not opt.get("stamps2"):
        return
    a("s_memtime s[70:71]")
    a("s_waitcnt lgkmcnt(0)")
    if lane == "m":
        a(f"s_mov_b32 s69, m0")
        a(f"s_sub_u32 m0, {sr(sJ)}, 1")
        a(f"v_writelane_b32 v{reg}, s70, m0")
        a(f"s_mov_b32 m0, s69")
    elif lane is None:
        a(f"s_mov_b32 s69, m0")
        a(f"s_mov_b32 m0, {sr(sJ)}")
        a(f"v_writelane_b32 v{reg}, s70, m0")
        a(f"s_mov_b32 m0, s69")
    else:
        a(f"v_writelane_b32 v{reg}, s70, {lane}")

def timestamp(a, idx, opt):
    if not opt.get("stamps"):
        return
    a(f"s_memtime s[70:71]")
    a(f"s_memrealtime s[92:93]")
    a("s_waitcnt lgkmcnt(0)")
    a(f"s_mov_b32 s{72+idx}, s70")
    a(f"s_mov_b32 s{80+idx}, s92")

def stamps_out(a, n, opt):
    if opt.get("stampsg"):
        a(f"""
        s_lshl_b32 {sr(sT1)}, s2, 3
        s_add_u32 {sr(sT1)}, {sr(sT1)}, {sr(sW)}
        s_lshl_b32 {sr(sT1)}, {sr(sT1)}, 10
        s_add_u32 {sr(sT1)}, {sr(sT1)}, {WS_DBG + (12 << 20)}
        v_lshlrev_b32 v12, 2, v0
        buffer_store_dword v52, v12, {sr(SRD_WS,4)}, {sr(sT1)} offen
        buffer_store_dword v53, v12, {sr(SRD_WS,4)}, {sr(sT1)} offen offset:256
        buffer_store_dword v54, v12, {sr(SRD_WS,4)}, {sr(sT1)} offen offset:512
        """)
    if opt.get("stamps2"):
        a(f"""
        s_lshl_b32 {sr(sT1)}, s2, 3
        s_add_u32 {sr(sT1)}, {sr(sT1)}, {sr(sW)}
        s_lshl_b32 {sr(sT1)}, {sr(sT1)}, 10
        s_add_u32 {sr(sT1)}, {sr(sT1)}, {WS_DBG + (10 << 20)}
        v_lshlrev_b32 v12, 2, v0
        buffer_store_dword v200, v12, {sr(SRD_WS,4)}, {sr(sT1)} offen
        buffer_store_dword v201, v12, {sr(SRD_WS,4)}, {sr(sT1)} offen offset:256
        buffer_store_dword v202, v12, {sr(SRD_WS,4)}, {sr(sT1)} offen offset:512
        buffer_store_dword v203, v12, {sr(SRD_WS,4)}, {sr(sT1)} offen offset:768
        """)
    if not opt.get("stamps"):
        return
    a(f"""
    s_lshl_b32 {sr(sT1)}, s2, 3
    s_add_u32 {sr(sT1)}, {sr(sT1)}, {sr(sW)}
    s_lshl_b32 {sr(sT1)}, {sr(sT1)}, 6
    s_add_u32 {sr(sT1)}, {sr(sT1)}, {WS_DBG + (8 << 20)}
    v_mov_b32 v13, 0
    """)
    for i in range(n):
        a(f"v_writelane_b32 v13, s{72+i}, {i}")
        a(f"v_writelane_b32 v13, s{80+i}, {8+i}")
    a(f"""
    v_lshlrev_b32 v12, 2, v0
    v_cmp_gt_u32 vcc, 16, v0
    s_and_saveexec_b64 {sr(sM,2)}, vcc
    buffer_store_dword v13, v12, {sr(SRD_WS,4)}, {sr(sT1)} offen
    s_mov_b64 exec, {sr(sM,2)}
    """)

def span3(a, opt, off):
    if not opt.get("span3"): return
    sk = a.label("sk3")
    a(f"s_cmp_eq_u32 s2, {opt['span3']}")
    a(f"s_cbranch_scc0 {sk}")
    a(f"s_cmp_eq_u32 {sr(sW)}, 0")
    a(f"s_cbranch_scc0 {sk}")
    a("s_memrealtime s[92:93]")
    a("s_waitcnt lgkmcnt(0)")
    a(f"v_mov_b32 v12, s92")
    a(f"s_mov_b32 s93, {off}")
    a("s_mov_b64 exec, 1")
    a(f"buffer_store_dword v12, off, {sr(SRD_DBG,4)}, s93 sc1")
    a("s_mov_b64 exec, -1")
    a(f"{sk}:")

def dbg_span(a, which):
    w = {"start": 4, "gemm": 12, "attn": 20, "end": 28, "e3": 36, "g0": 44, "hook": 52, "karg": 20, "dma": 36, "prew": 52, "smax": 60}[which]
    sk = a.label("sk")
    a(f"s_cmp_eq_u32 {sr(sW)}, 0")
    a(f"s_cbranch_scc0 {sk}")
    a("s_memrealtime s[92:93]")
    a("s_waitcnt lgkmcnt(0)")
    a(f"v_mov_b32 v12, s92")
    a(f"s_mov_b32 s93, {w}")
    a("s_mov_b64 exec, 1")
    a(f"buffer_atomic_umax v12, off, {sr(SRD_DBG,4)}, s93 sc1")
    a("s_mov_b64 exec, -1")
    a(f"{sk}:")

OPT = {}
def k12(opt):
    OPT.clear(); OPT.update(opt)
    a = Asm()
    a(f".globl {NAME12}\n.p2align 8\n.type {NAME12},@function\n{NAME12}:")
    timestamp(a, 0, opt)
    if opt.get("dbg_span") or opt.get("span2") or opt.get("span3"):
        a("s_memrealtime s[84:85]")
    extras = prologue(a, opt)
    if opt.get("dbg_span"):
        sk = a.label("sk")
        a(f"s_cmp_eq_u32 {sr(sW)}, 0")
        a(f"s_cbranch_scc0 {sk}")
        a("s_waitcnt lgkmcnt(0)")
        a("s_not_b32 s84, s84")
        a("v_mov_b32 v12, s84")
        a("s_mov_b32 s93, 4")
        a("s_mov_b64 exec, 1")
        a(f"buffer_atomic_umax v12, off, {sr(SRD_DBG,4)}, s93 sc1")
        a("s_mov_b64 exec, -1")
        a(f"{sk}:")
    gemm(a, opt, extras)
    if opt.get("dbg_span") or opt.get("span2"): dbg_span(a, "gemm")
    span3(a, opt, 44)
    if opt.get("stamps_start"):
        timestamp(a, 7, opt)
        opt = dict(opt); opt["stamps"] = 0
        gemm_epilogue(a, opt)
        a("s_waitcnt vmcnt(0) lgkmcnt(0)")
        opt["stamps"] = 1
        stamps_out(a, 8, opt)
        a("L_end12:\ns_endpgm")
        return a.text()
    timestamp(a, 1, opt)
    gemm_epilogue(a, opt)
    if opt.get("stop_after_gemm"):
        a("s_waitcnt vmcnt(0) lgkmcnt(0)")
        timestamp(a, 2, opt)
        stamps_out(a, 3, opt)
    else:
        timestamp(a, 2, opt)
        attention(a, opt)
        timestamp(a, 3, opt)
        if opt.get("dbg_span"): dbg_span(a, "attn")
        span3(a, opt, 52)
        attn_epilogue(a, opt)
        if opt.get("fused"):
            phase3(a, opt)
            if opt.get("stamps"):
                a("s_waitcnt vmcnt(0)")
                timestamp(a, 7, opt)
            stamps_out(a, 8, opt)
            if opt.get("span3"):
                a("s_waitcnt vmcnt(0)")
                span3(a, opt, 60)
            if opt.get("dbg_span") or opt.get("span2"):
                a("s_waitcnt vmcnt(0)")
                dbg_span(a, "end")
        else:
            a("s_waitcnt vmcnt(0)")
            timestamp(a, 4, opt)
            stamps_out(a, 5, opt)
    a("L_end12:\ns_endpgm")
    return a.text()

KD12 = f"""
.section .rodata,"a"
.p2align 6
.amdhsa_kernel {NAME12}
  .amdhsa_next_free_vgpr 256
  .amdhsa_next_free_sgpr 102
  .amdhsa_accum_offset 256
  .amdhsa_group_segment_fixed_size 0
  .amdhsa_kernarg_size 80
  .amdhsa_user_sgpr_count 2
  .amdhsa_user_sgpr_kernarg_segment_ptr 1
  .amdhsa_system_sgpr_workgroup_id_x 1
  .amdhsa_float_denorm_mode_32 3
.end_amdhsa_kernel
"""
```

```python
from asm import Asm, vr, sr, VmTracker

NAME12 = "gated_mix__mha_block__softmax_full_mha__prompt_kernel"
WS_KV = 0
WS_O = 16 << 20
WS_G = 24 << 20
WS_MB = 25 << 20
WS_MB2 = WS_MB + 65536
WS_DBG = 32 << 20
WS_SIZE = 0x10000000
LOG2E = 1.4426950408889634
QSCALE = LOG2E / (32 ** 0.5)

import struct
def f2u(x): return struct.unpack("<I", struct.pack("<f", x))[0]

SRD_X, SRD_W, SRD_WS, SRD_DBG, SRD_GW = 8, 12, 16, 20, 24
sW, sHH, sTQ, sHP, sTB = 28, 29, 30, 31, 32
sW1K = 33
sXJ = 34
sWJ = 35
sRING = 36
sRINGW = 37
sJ = 38
sT0, sT1, sT2, sT3 = 40, 41, 42, 43
sXQ = 44
sKVSRC = 45
sSLOT = 46
sBLK = 47
sM = 48
sM2 = 50
sOOFF = 52
sCNT = 53
sMB = 54
sLDSW = 55
sSRC = 39
sOFFS = 64
sNXT = 65
sCHKJ = 66
sARRJ = 67
sGOFF = 68
sKVO = 35
sPF = 47
SRD_WO, SRD_OUT = 4, 56
sTB3, sCB, sROT, sMB2 = 60, 61, 62, 63
sAOFF, sWOFF = 100, 101
sLDSW3 = 34
vDW3 = 6
vLANE = 0
vDX, vDW, vXP, vWP, vXA, vW0 = 2, 3, 4, 5, 6, 7
vL16 = 10
vXB = 11
vT = 12
FR = [64, 84]
ACC = 160
QF = 16
OA = 32
LA = 64
NM = 72
SS = 104
PP = 136
KF = 160
VF = 168
ONES = 144
IDX = 148
vCUR, vNXT = 2, 3
vKVB, vDMA = 4, 5
vCHK = 15
vPA, vPV = 149, 150

RING = 20 * 8192
NSLOT3 = 10

def wrap_add(a, dst, src, const, tmp):
    a(f"s_add_u32 {sr(tmp)}, {sr(src)}, {const}")
    a(f"s_sub_u32 {dst}, {sr(tmp)}, {RING}")
    a(f"s_cselect_b32 {dst}, {sr(tmp)}, {dst}")

def prologue(a, opt):
    a(f"""
    s_cmp_ge_u32 s2, 256
    s_cbranch_scc1 L_end12
    """)
    if opt.get("codepf", 1):
        a("""
        s_getpc_b64 s[92:93]
        L_pc12:
        s_mov_b32 s3, L_end12-L_pc12
        v_lshlrev_b32 v1, 6, v0
        v_min_u32 v1, s3, v1
        global_load_dword v33, v1, s[92:93]
        """)
        if opt.get("unroll_attn"):
            a("""
            v_lshlrev_b32 v1, 6, v0
            v_add_u32 v1, 0x8000, v1
            v_min_u32 v1, s3, v1
            global_load_dword v34, v1, s[92:93]
            """)
    a(f"""
    s_load_dwordx4 s[56:59], s[0:1], 0
    s_load_dwordx2 s[60:61], s[0:1], 32
    s_load_dwordx2 s[62:63], s[0:1], 48
    s_load_dwordx4 s[88:91], s[0:1], 64
    s_load_dwordx2 s[94:95], s[0:1], 16
    s_load_dwordx2 s[96:97], s[0:1], 40
    s_load_dwordx2 s[98:99], s[0:1], 56
    v_lshrrev_b32 v1, 6, v0
    v_and_b32 v0, 63, v0
    s_and_b32 s3, s2, 7
    v_readfirstlane_b32 {sr(sW)}, v1
    s_lshr_b32 s4, s2, 3
    s_add_u32 s5, s4, {opt.get("hpshift", 0)}
    s_and_b32 s5, s5, 3
    s_lshl_b32 s3, s3, 2
    s_add_u32 {sr(sHP)}, s3, s5
    s_lshr_b32 {sr(sTB)}, s4, 2
    s_lshr_b32 {sr(sHH)}, {sr(sW)}, 2
    s_and_b32 {sr(sTQ)}, {sr(sW)}, 3
    s_lshl_b32 {sr(sW1K)}, {sr(sW)}, 10
    """)
    a(f"""
    v_lshrrev_b32 v13, 3, v0                 ; r8
    v_and_b32 v14, 7, v0                     ; c'
    s_and_b32 {sr(sT0)}, {sr(sW)}, 1
    s_lshl_b32 {sr(sT0)}, {sr(sT0)}, 2
    v_lshrrev_b32 v15, 1, v13                ; r8>>1 (0..3)
    v_add_u32 v1, {sr(sT0)}, v15             ; 4*(w&1) + (r8>>1)
    v_xor_b32 v1, v1, v14                    ; cX
    s_lshl_b32 {sr(sT1)}, {sr(sW)}, 3
    v_add_u32 v13, {sr(sT1)}, v13            ; 8w + r8
    v_lshlrev_b32 {vr(vDX)}, 11, v13
    v_lshl_add_u32 {vr(vDX)}, v1, 4, {vr(vDX)}
    v_and_b32 v15, 1, v15
    v_lshlrev_b32 v15, 2, v15
    v_xor_b32 v15, v15, v14                  ; cW
    s_and_b32 {sr(sT1)}, {sr(sW)}, {1 if opt.get("g16", 1) else 0}
    s_lshl_b32 {sr(sT1)}, {sr(sT1)}, 1
    v_xor_b32 v15, {sr(sT1)}, v15
    s_mov_b32 {sr(sT1)}, 6144
    v_mul_lo_u32 {vr(vDW)}, v13, {sr(sT1)}
    v_lshl_add_u32 {vr(vDW)}, v15, 4, {vr(vDW)}
    s_lshl_b32 {sr(sXJ)}, {sr(sTB)}, 19          ; tb*256*2048
    s_and_b32 {sr(sWJ)}, {sr(sHP)}, 15
    s_lshl_b32 {sr(sWJ)}, {sr(sWJ)}, 7           ; hpl*128
    """)
    if opt.get("g16", 1):
        a(f"""
        v_and_b32 v13, 15, v0
        v_lshrrev_b32 v14, 4, v0                 ; g
        v_bfe_u32 v15, v13, 1, 3
        v_xor_b32 v15, v15, v14
        v_lshlrev_b32 {vr(vXP)}, 7, v13
        v_lshl_add_u32 {vr(vXP)}, v15, 4, {vr(vXP)}
        v_bfe_u32 v13, v0, 2, 2                  ; r
        v_lshl_add_u32 v1, v14, 3, v13           ; 8g + r
        v_lshlrev_b32 {vr(vWP)}, 7, v1
        v_bfe_u32 v15, v0, 1, 1                  ; c>>1
        s_lshl_b32 {sr(sT1)}, {sr(sHH)}, 2
        v_add_u32 v15, {sr(sT1)}, v15            ; cc
        v_lshrrev_b32 v13, 1, v13
        v_lshlrev_b32 v13, 2, v13
        v_xor_b32 v15, v15, v13
        v_and_b32 v14, 1, v14
        v_lshlrev_b32 v14, 1, v14
        v_xor_b32 v15, v15, v14
        v_lshl_add_u32 {vr(vWP)}, v15, 4, {vr(vWP)}
        v_and_b32 v1, 1, v0
        v_lshl_add_u32 {vr(vWP)}, v1, 3, {vr(vWP)}
        v_lshlrev_b32 {vr(vL16)}, 4, v0
        s_add_u32 {sr(sXQ)}, {sr(sTQ)}, 3
        s_lshl_b32 {sr(sXQ)}, {sr(sXQ)}, 13
        """)
    else:
        a(f"""
    v_and_b32 v13, 31, v0
    v_lshrrev_b32 v14, 5, v0                 ; h
    v_bfe_u32 v15, v13, 1, 3
    v_xor_b32 v15, v15, v14
    v_lshlrev_b32 {vr(vXP)}, 7, v13
    v_lshl_add_u32 {vr(vXP)}, v15, 4, {vr(vXP)}
    v_bfe_u32 v13, v0, 2, 2                  ; r
    v_lshl_add_u32 v1, v14, 3, v13           ; 8h + r
    v_lshlrev_b32 {vr(vWP)}, 7, v1
    v_bfe_u32 v15, v0, 4, 1                  ; g
    v_lshlrev_b32 v15, 1, v15
    v_bfe_u32 v1, v0, 1, 1                   ; c>>1
    v_add_u32 v15, v15, v1
    s_lshl_b32 {sr(sT1)}, {sr(sHH)}, 2
    v_add_u32 v15, {sr(sT1)}, v15            ; cc
    v_lshrrev_b32 v13, 1, v13
    v_lshlrev_b32 v13, 2, v13
    v_xor_b32 v15, v15, v13
    v_lshl_add_u32 {vr(vWP)}, v15, 4, {vr(vWP)}
    v_and_b32 v1, 1, v0
    v_lshl_add_u32 {vr(vWP)}, v1, 3, {vr(vWP)}
    v_lshlrev_b32 {vr(vL16)}, 4, v0
    s_add_u32 {sr(sXQ)}, {sr(sTQ)}, 3
    s_lshl_b32 {sr(sXQ)}, {sr(sXQ)}, 13
        """)
    a("s_waitcnt lgkmcnt(0)")
    if opt.get("stamps_start"): timestamp(a, 1, opt)
    if opt.get("span2") or opt.get("span3"): a("s_memrealtime s[78:79]")
    a(f"""
    s_mov_b32 {sr(SRD_X)}, s56
    s_mov_b32 {sr(SRD_X+1)}, s57
    s_mov_b32 {sr(SRD_X+2)}, {2048*1024*2}
    s_mov_b32 {sr(SRD_X+3)}, 0x00020000
    s_cmp_ge_u32 {sr(sHP)}, 16
    s_cselect_b32 {sr(SRD_W)}, s60, s58
    s_cselect_b32 {sr(SRD_W+1)}, s61, s59
    s_mov_b32 {sr(SRD_W+2)}, {1024*3072*2}
    s_mov_b32 {sr(SRD_W+3)}, 0x00020000
    """)
    for g in range(14):
        dma_unit_static(a, g)
        if g == 6 and opt.get("stamps_start"): timestamp(a, 2, opt)
    if opt.get("stamps_start"): timestamp(a, 3, opt)
    if opt.get("span2") or opt.get("span3"): a("s_memrealtime s[80:81]")
    if opt.get("dbg_span") or opt.get("span2") or opt.get("span3"):
        a(f"""
        s_mov_b32 {sr(SRD_DBG)}, s88
        s_mov_b32 {sr(SRD_DBG+1)}, s89
        s_mov_b32 {sr(SRD_DBG+2)}, 256
        s_mov_b32 {sr(SRD_DBG+3)}, 0x00020000
        """)
    ex = []
    for u in range(6):
        g = 14 + u
        if u < 3:
            ex.append(f"""s_add_u32 m0, {sr(sW1K)}, {g * 8192}
            s_add_u32 {sr(sT0)}, {sr(sWJ)}, {u * 2048}
            buffer_load_dwordx4 {vr(vDW)}, {sr(SRD_W,4)}, {sr(sT0)} offen lds""")
        else:
            ex.append(f"""s_add_u32 m0, {sr(sW1K)}, {g * 8192}
            s_add_u32 {sr(sT0)}, {sr(sXJ)}, {(u - 3) * 131072}
            buffer_load_dwordx4 {vr(vDX)}, {sr(SRD_X,4)}, {sr(sT0)} offen lds""")
    ex.append(f"""
    s_mov_b32 {sr(SRD_WS)}, s90
    s_mov_b32 {sr(SRD_WS+1)}, s91
    s_mov_b32 {sr(SRD_WS+2)}, {WS_SIZE}
    s_mov_b32 {sr(SRD_WS+3)}, 0x00020000
    """)
    ex.append(f"""
    s_mov_b32 {sr(SRD_DBG)}, s88
    s_mov_b32 {sr(SRD_DBG+1)}, s89
    s_mov_b32 {sr(SRD_DBG+2)}, 256
    s_mov_b32 {sr(SRD_DBG+3)}, 0x00020000
    """)
    ex.append(f"""
    s_mov_b32 {sr(SRD_GW)}, s62
    s_mov_b32 {sr(SRD_GW+1)}, s63
    s_mov_b32 {sr(SRD_GW+2)}, 2048
    s_mov_b32 {sr(SRD_GW+3)}, 0x00020000
    """)
    ex.append(f"""
    s_and_b32 s3, s2, 7
    s_lshr_b32 {sr(sT1)}, s2, 3
    s_lshr_b32 {sr(sT0)}, s3, 1
    s_lshl_b32 {sr(sT0)}, {sr(sT0)}, 2
    s_and_b32 {sr(sTB3)}, {sr(sT1)}, 3
    s_add_u32 {sr(sTB3)}, {sr(sT0)}, {sr(sTB3)}
    s_and_b32 {sr(sT0)}, s3, 1
    s_lshl_b32 {sr(sT0)}, {sr(sT0)}, 3
    s_lshr_b32 {sr(sT1)}, {sr(sT1)}, 2
    s_add_u32 {sr(sCB)}, {sr(sT0)}, {sr(sT1)}
    """)
    ex.append(f"""
    s_lshl_b32 {sr(sROT)}, {sr(sCB)}, {opt.get("rotsh", 0)}
    s_add_u32 {sr(sROT)}, {sr(sTB3)}, {sr(sROT)}
    s_and_b32 {sr(sROT)}, {sr(sROT)}, {opt.get("rotmask", 15)}
    s_lshl_b32 {sr(sMB2)}, {sr(sTB3)}, 4
    s_add_u32 {sr(sMB2)}, {sr(sMB2)}, {sr(sCB)}
    s_lshl_b32 {sr(sMB2)}, {sr(sMB2)}, 7
    s_add_u32 {sr(sMB2)}, {sr(sMB2)}, {WS_MB2}
    """)
    ex.append(f"""
    s_cmp_eq_u32 {sr(sHH)}, 1
    s_cselect_b32 {sr(SRD_WO)}, s96, s94
    s_cselect_b32 {sr(SRD_WO+1)}, s97, s95
    s_mov_b32 {sr(SRD_WO+2)}, {1024*1024*2}
    s_mov_b32 {sr(SRD_WO+3)}, 0x00020000
    """)
    ex.append(f"""
    s_mov_b32 {sr(SRD_OUT)}, s98
    s_mov_b32 {sr(SRD_OUT+1)}, s99
    s_mov_b32 {sr(SRD_OUT+2)}, {2048*1024*2}
    s_mov_b32 {sr(SRD_OUT+3)}, 0x00020000
    """)
    ex.append(f"""
    s_lshl_b32 {sr(sMB)}, {sr(sHP)}, 3
    s_add_u32 {sr(sMB)}, {sr(sMB)}, {sr(sTB)}
    s_lshl_b32 {sr(sMB)}, {sr(sMB)}, 7
    s_add_u32 {sr(sMB)}, {sr(sMB)}, {WS_MB}
    s_lshl_b32 {sr(sCNT)}, {sr(sHP)}, 3
    """)
    nr = a.label("nr")
    ex.append(f"""
    s_cmp_eq_u32 {sr(sW)}, 0
    s_cselect_b32 {sr(sCHKJ)}, 5, 0xffff
    s_cselect_b32 {sr(sARRJ)}, 11, 0xffff
    s_cbranch_scc0 {nr}
    v_lshlrev_b32 v12, 2, v0
    s_sub_u32 {sr(sT0)}, {sr(sMB2)}, 128
    v_mov_b32 v13, {sr(sMB)}
    v_mov_b32 v14, {sr(sT0)}
    v_cmp_gt_u32 vcc, 32, v0
    s_nop 1
    v_cndmask_b32 v13, v14, v13, vcc
    v_add_u32 v12, v12, v13
    v_mov_b32 v13, 0
    buffer_store_dword v13, v12, {sr(SRD_WS,4)}, 0 offen sc1
    {nr}:
    """)
    ex.append(f"""
    s_and_b32 {sr(sT0)}, {sr(sHP)}, 15
    s_lshl_b32 {sr(sT0)}, {sr(sT0)}, 3
    s_add_u32 {sr(sT0)}, {sr(sT0)}, {sr(sTB)}
    s_lshl_b32 {sr(sT0)}, {sr(sT0)}, 3
    s_add_u32 {sr(sT0)}, {sr(sT0)}, {sr(sW)}
    s_lshl_b32 {sr(sT0)}, {sr(sT0)}, 10
    s_add_u32 {sr(sPF)}, {sr(sT0)}, {3 * 64 * 6144}
    """)
    ex.append(f"""
    s_lshl_b32 {sr(sT0)}, {sr(sTB)}, 8
    s_lshl_b32 {sr(sT1)}, {sr(sHP)}, 3
    s_add_u32 {sr(sT0)}, {sr(sT0)}, {sr(sT1)}
    s_add_u32 {sr(sT0)}, {sr(sT0)}, {sr(sW)}
    s_lshl_b32 {sr(sGOFF)}, {sr(sT0)}, 2
    s_lshl_b32 {sr(sT1)}, {sr(sT0)}, 11
    v_lshlrev_b32 v12, 5, v0
    buffer_load_dwordx4 v[16:19], v12, {sr(SRD_X,4)}, {sr(sT1)} offen
    buffer_load_dwordx4 v[20:23], v12, {sr(SRD_X,4)}, {sr(sT1)} offen offset:16
    """)
    ex.append(f"""
    v_lshlrev_b32 v12, 5, v0
    buffer_load_dwordx4 v[24:27], v12, {sr(SRD_GW,4)}, 0 offen
    buffer_load_dwordx4 v[28:31], v12, {sr(SRD_GW,4)}, 0 offen offset:16
    """)
    if opt.get("xpf", 0):
        ex.append(f"""
        s_lshl_b32 {sr(sT0)}, s2, 3
        s_add_u32 {sr(sT0)}, {sr(sT0)}, {sr(sW)}
        s_lshl_b32 {sr(sT0)}, {sr(sT0)}, 11
        buffer_load_dwordx4 v[40:43], {vr(vL16)}, {sr(SRD_X,4)}, {sr(sT0)} offen
        buffer_load_dwordx4 v[44:47], {vr(vL16)}, {sr(SRD_X,4)}, {sr(sT0)} offen offset:1024
        """)
    if opt.get("touch", 0):
        ex.append(f"""
        s_lshl_b32 {sr(sT0)}, {sr(sHP)}, 19
        s_lshl_b32 {sr(sT1)}, {sr(sTB)}, 20
        s_add_u32 {sr(sT1)}, {sr(sT1)}, {WS_O}
        buffer_load_dword v104, off, {sr(SRD_WS,4)}, {sr(sT0)}
        buffer_load_dword v105, off, {sr(SRD_WS,4)}, {sr(sT1)}
        """)
        ex.append(f"""
        s_lshl_b32 {sr(sT0)}, {sr(sTB3)}, 19
        s_add_u32 {sr(sT0)}, {sr(sT0)}, {WS_O}
        s_lshl_b32 {sr(sT1)}, {sr(sTB3)}, 18
        buffer_load_dword v106, off, {sr(SRD_WS,4)}, {sr(sT0)}
        buffer_load_dword v108, off, {sr(SRD_OUT,4)}, {sr(sT1)}
        """)
        ex.append(f"""
        s_mov_b32 {sr(sT0)}, {1024*1024*2 - 4}
        buffer_load_dword v107, off, {sr(SRD_WO,4)}, 0
        buffer_load_dword v109, off, {sr(SRD_WO,4)}, {sr(sT0)}
        """)
    return ex

def dma_unit_static(a, g):
    j, u = divmod(g, 7)
    a(f"s_add_u32 m0, {sr(sW1K)}, {(g % 20) * 8192}")
    if u < 3:
        a(f"s_add_u32 {sr(sT0)}, {sr(sWJ)}, {j * 64 * 6144 + u * 2048}")
        a(f"buffer_load_dwordx4 {vr(vDW)}, {sr(SRD_W,4)}, {sr(sT0)} offen lds")
    else:
        a(f"s_add_u32 {sr(sT0)}, {sr(sXJ)}, {j * 128 + (u - 3) * 131072}")
        a(f"buffer_load_dwordx4 {vr(vDX)}, {sr(SRD_X,4)}, {sr(sT0)} offen lds")

def gate_instrs():
    c = ["v_mov_b32 v12, 0"]
    for i in range(8):
        x, w = 16 + i, 24 + i
        c += [f"v_lshlrev_b32 v13, 16, v{x}", f"v_and_b32 v14, 0xffff0000, v{x}", f"v_lshlrev_b32 v32, 16, v{w}",
              f"v_and_b32 v1, 0xffff0000, v{w}", "v_mul_f32 v13, v13, v32", "v_mul_f32 v14, v14, v1",
              "v_cvt_pk_bf16_f32 v13, v13, v14", "v_lshlrev_b32 v14, 16, v13", "v_and_b32 v13, 0xffff0000, v13",
              "v_add_f32 v12, v12, v14", "v_add_f32 v12, v12, v13"]
    for sh in (1, 2, 4, 8):
        c += [f"s_nop 1\nv_add_f32_dpp v12, v12, v12 row_shr:{sh} row_mask:0xf bank_mask:0xf bound_ctrl:0"]
    c += ["s_nop 1\nv_add_f32_dpp v12, v12, v12 row_bcast:15 row_mask:0xa bank_mask:0xf"]
    c += ["s_nop 1\nv_add_f32_dpp v12, v12, v12 row_bcast:31 row_mask:0xc bank_mask:0xf"]
    c += ["s_nop 1\nv_cvt_pk_bf16_f32 v12, v12, v12", "v_lshlrev_b32 v12, 16, v12", f"v_mul_f32 v12, {hex(f2u(-LOG2E))}, v12",
          "v_exp_f32 v12, v12\ns_nop 0\nv_add_f32 v12, 1.0, v12", "v_rcp_f32 v12, v12\ns_nop 0\nv_cvt_pk_bf16_f32 v12, v12, v12",
          "v_lshlrev_b32 v12, 16, v12", f"v_mov_b32 v13, {WS_G}"]
    st = [f"""s_mov_b32 exec_lo, 0
    s_mov_b32 exec_hi, 0x80000000
    buffer_store_dword v12, v13, {sr(SRD_WS,4)}, {sr(sGOFF)} offen sc1
    s_mov_b64 exec, -1"""]
    return c, st

def frag(set_, name):
    off = {"X0": 0, "X1": 4, "Wq": 8, "Wk": 12, "Wv": 16}[name]
    return FR[set_] + off

def gemm_reads(ks, set_):
    r = []
    r.append(f"ds_read_b128 {vr(frag(set_,'X0'),4)}, {vr(vXA)}")
    for u, nm in enumerate(("Wq", "Wk", "Wv")):
        b = frag(set_, nm)
        r.append(f"ds_read_b64_tr_b16 {vr(b,2)}, {vr(vW0+u)} offset:{ks*2048}")
        r.append(f"ds_read_b64_tr_b16 {vr(b+2,2)}, {vr(vW0+u)} offset:{ks*2048+512}")
        if u == 0:
            r.append(f"ds_read_b128 {vr(frag(set_,'X1'),4)}, {vr(vXA)} offset:4096")
    return r

def gemm_mfmas(set_, first=False):
    m = []
    X0, X1 = frag(set_, "X0"), frag(set_, "X1")
    Wq, Wk, Wv = frag(set_, "Wq"), frag(set_, "Wk"), frag(set_, "Wv")
    def mf(acc, A, B): return f"v_mfma_f32_32x32x16_bf16 {vr(acc,16)}, {vr(A,4)}, {vr(B,4)}, {'0' if first else vr(acc,16)}"
    m.append(mf(ACC + 0, Wq, X0))
    m.append(mf(ACC + 32, Wk, X0))
    m.append(mf(ACC + 64, X0, Wv))
    m.append(mf(ACC + 16, Wq, X1))
    m.append(mf(ACC + 48, Wk, X1))
    m.append(mf(ACC + 80, X1, Wv))
    return m

def wrap_list(dst, src, const, tmp):
    return [f"s_add_u32 {sr(tmp)}, {sr(src)}, {const}", f"s_sub_u32 {dst}, {sr(tmp)}, {RING}", f"s_cselect_b32 {dst}, {sr(tmp)}, {dst}"]

def read_bases_list():
    r = [f"v_add_u32 {vr(vW0)}, {sr(sRING)}, {vr(vWP)}"]
    for u in (1, 2):
        r += wrap_list(sr(sT1), sRING, u * 8192, sT0)
        r.append(f"v_add_u32 {vr(vW0+u)}, {sr(sT1)}, {vr(vWP)}")
    r += [f"s_add_u32 {sr(sT0)}, {sr(sRING)}, {sr(sXQ)}", f"s_sub_u32 {sr(sT1)}, {sr(sT0)}, {RING}",
          f"s_cselect_b32 {sr(sT1)}, {sr(sT0)}, {sr(sT1)}", f"v_add_u32 {vr(vXB)}, {sr(sT1)}, {vr(vXP)}",
          f"v_mov_b32 {vr(vXA)}, {vr(vXB)}"]
    return r

def dma_group(i):
    if OPT.get("g_nodma"): return []
    s = [f"s_add_u32 {sr(sT2)}, {sr(sRINGW)}, {i * 8192}", f"s_sub_u32 m0, {sr(sT2)}, {RING}", f"s_cselect_b32 m0, {sr(sT2)}, m0"]
    if i == 0:
        s.append(f"s_add_u32 {sr(sT3)}, {sr(sXJ)}, {3 * 131072 - 128}")
        s.append(f"buffer_load_dwordx4 {vr(vDX)}, {sr(SRD_X,4)}, {sr(sT3)} offen lds")
    elif i <= 3:
        s.append(f"s_add_u32 {sr(sT3)}, {sr(sWJ)}, {(i - 1) * 2048}")
        s.append(f"buffer_load_dwordx4 {vr(vDW)}, {sr(SRD_W,4)}, {sr(sT3)} offen lds")
    else:
        s.append(f"s_add_u32 {sr(sT3)}, {sr(sXJ)}, {(i - 4) * 131072}")
        s.append(f"buffer_load_dwordx4 {vr(vDX)}, {sr(SRD_X,4)}, {sr(sT3)} offen lds")
    return s

def w_readahead():
    if not OPT.get("wpf", 1): return []
    return [f"buffer_load_dwordx4 v[36:39], {vr(vL16)}, {sr(SRD_W,4)}, {sr(sPF)} offen", f"s_add_u32 {sr(sPF)}, {sr(sPF)}, {1 << 20}"]

def kstep(a, cur, next_ks, gaps_extra, first=False):
    m = gemm_mfmas(cur, first)
    r = gemm_reads(next_ks, cur ^ 1) if next_ks is not None else []
    gaps = [[] for _ in range(6)]
    for i, x in enumerate(r):
        gaps[min(i // 3, 5)].append(x)
    for g in range(6):
        gaps[g] += gaps_extra.get(g, [])
    for i in range(6):
        a(m[i])
        for x in gaps[i]:
            a(x)

def gemm_stage(a, pending, new_batch, vm_wait, first=False, last=False, valu=None, after_bar=None):
    prio = OPT.get("gprio", 1)
    sp = lambda n: [f"s_setprio {n}"] if prio else []
    valu = list(valu or [])
    per = (len(valu) + 2) // 3
    for ks in range(3):
        ex = {}
        mine = [i for i in pending if (i - 2) // 2 == ks]
        if mine:
            ex[2] = dma_group(mine[0])
        if len(mine) > 1:
            ex[4] = dma_group(mine[1])
        chunk = valu[ks * per:(ks + 1) * per]
        n3 = (len(chunk) + 2) // 3
        for k, g in enumerate((1, 3, 5)):
            ex[g] = ex.get(g, []) + chunk[k * n3:(k + 1) * n3]
        ex[0] = sp(2 - ks)
        if ks < 2:
            ex[5] = ex.get(5, []) + [f"v_xor_b32 {vr(vXA)}, {(ks + 2) << 5}, {vr(vXB)}"]
        else:
            upd = [f"s_add_u32 {sr(sRINGW)}, {sr(sRING)}, {sr(sW1K)}", f"s_add_u32 {sr(sXJ)}, {sr(sXJ)}, 128",
                   f"s_add_u32 {sr(sWJ)}, {sr(sWJ)}, {64 * 6144}"] + wrap_list(sr(sRING), sRING, 7 * 8192, sT0)
            ex[3] = ex.get(3, []) + upd
            if not last:
                ex[4] = ex.get(4, []) + read_bases_list()
        a("s_waitcnt lgkmcnt(0)")
        kstep(a, ks & 1, ks + 1, ex, first=(first and ks == 0))
    if OPT.get("stampsg"):
        a("s_waitcnt lgkmcnt(0)")
        gstamp(a, 204)
    if vm_wait is not None:
        a(f"s_waitcnt vmcnt({vm_wait}) lgkmcnt(0)")
    else:
        a("s_waitcnt lgkmcnt(0)")
    if OPT.get("stampsg"): gstamp(a, 205)
    if not OPT.get("g_nobar"): a("s_barrier")
    if OPT.get("stampsg"):
        gstamp(a, 206)
        a("s_add_u32 s87, s87, 1")
    ex = {0: sp(3)}
    if len(new_batch) > 0: ex[2] = dma_group(new_batch[0])
    if len(new_batch) > 1: ex[4] = dma_group(new_batch[1]) + w_readahead()
    if not last:
        ex[5] = [f"v_xor_b32 {vr(vXA)}, {1 << 5}, {vr(vXB)}"]
    if after_bar:
        ex[5] = ex.get(5, []) + after_bar
    kstep(a, 1, None if last else 0, ex)

FR16 = [64, 104]
vW16 = [7, 8, 9, 48, 49, 50]

def g16_reads(step, set_):
    F = FR16[set_]
    r = []
    xs = [f"ds_read_b128 {vr(F + 4*i, 4)}, {vr(vXA)} offset:{i * 2048}" for i in range(4)]
    ws = []
    for u in range(3):
        for ft in range(2):
            b = F + 16 + 4 * (2 * u + ft)
            reg = vW16[u + 3 * ft]
            ws.append(f"ds_read_b64_tr_b16 {vr(b,2)}, {vr(reg)} offset:{step*4096}")
            ws.append(f"ds_read_b64_tr_b16 {vr(b+2,2)}, {vr(reg)} offset:{step*4096+512}")
    return [ws[0], ws[1], xs[0], xs[1], xs[2], xs[3]] + ws[2:]

def g16_mfmas(set_, first=False, order=(0, 1, 2, 3, 4, 5)):
    F = FR16[set_]
    m = []
    for f in order:
        for i in range(4):
            acc = ACC + 4 * (4 * f + i)
            W, X = F + 16 + 4 * f, F + 4 * i
            A, B = (W, X) if f < 4 else (X, W)
            m.append(f"v_mfma_f32_16x16x32_bf16 {vr(acc,4)}, {vr(A,4)}, {vr(B,4)}, {'0' if first else vr(acc,4)}")
    return m

def g16_bases():
    r = [f"v_add_u32 {vr(vW16[0])}, {sr(sRING)}, {vr(vWP)}", f"v_xor_b32 {vr(vW16[3])}, 32, {vr(vW16[0])}"]
    for u in (1, 2):
        r.append("\n".join(wrap_list(sr(sT1), sRING, u * 8192, sT0) + [f"v_add_u32 {vr(vW16[u])}, {sr(sT1)}, {vr(vWP)}"]))
        r.append(f"v_xor_b32 {vr(vW16[3+u])}, 32, {vr(vW16[u])}")
    r.append("\n".join([f"s_add_u32 {sr(sT0)}, {sr(sRING)}, {sr(sXQ)}", f"s_sub_u32 {sr(sT1)}, {sr(sT0)}, {RING}",
          f"s_cselect_b32 {sr(sT1)}, {sr(sT0)}, {sr(sT1)}", f"v_add_u32 {vr(vXB)}, {sr(sT1)}, {vr(vXP)}"]))
    r.append(f"v_mov_b32 {vr(vXA)}, {vr(vXB)}")
    return r

def g16_step(a, cur, next_step, gaps_extra, first=False, order=(0, 1, 2, 3, 4, 5)):
    m = g16_mfmas(cur, first, order)
    r = g16_reads(next_step, cur ^ 1) if next_step is not None else []
    rp = OPT.get("g16_rp", 1)
    for g in range(24):
        a(m[g])
        for x in r[rp * g:rp * g + rp]: a(x)
        for x in gaps_extra.get(g, []): a(x)

def g16_stage(a, pending, new_batch, vm_wait, first=False, last=False, valu=None, after_bar=None, ex1=None):
    prio = OPT.get("gprio", 1)
    sp = lambda n: [f"s_setprio {n}"] if prio else []
    valu = list(valu or [])
    ex = {g: [] for g in range(24)}
    ex[0] += sp(1); ex[12] += sp(0)
    pg = OPT.get("g16_pg", [4, 9, 14])
    def place(ex, g, i):
        grp = dma_group(i)
        if not grp: return
        if OPT.get("g16_spread", 1):
            ex[g - 3].append(grp[0]); ex[g - 2].append(grp[1] + "\n" + grp[2]); ex[g - 1].append(grp[3]); ex[g].append(grp[4])
        else:
            ex[g].append("\n".join(grp))
    for k, i in enumerate(pending):
        place(ex, pg[k], i)
    for k, x in enumerate(valu):
        ex[min(k * 16 // max(len(valu), 1), 15) + (0 if first else 0)].append(x)
    upd = [f"s_add_u32 {sr(sRINGW)}, {sr(sRING)}, {sr(sW1K)}", f"s_add_u32 {sr(sXJ)}, {sr(sXJ)}, 128",
           f"s_add_u32 {sr(sWJ)}, {sr(sWJ)}, {64 * 6144}", "\n".join(wrap_list(sr(sRING), sRING, 7 * 8192, sT0))]
    if not last:
        for k, x in enumerate(upd): ex[16 + k // 2].append(x)
    if not last:
        for k, x in enumerate(g16_bases()): ex[18 + k * 5 // 8].append(x)
    a("s_waitcnt lgkmcnt(0)")
    g16_step(a, 0, 1, ex, first=first)
    if OPT.get("stampsg"):
        gstamp(a, 204)
    if vm_wait is not None:
        a(f"s_waitcnt vmcnt({vm_wait}) lgkmcnt(0)")
    else:
        a("s_waitcnt lgkmcnt(0)")
    if OPT.get("stampsg"): gstamp(a, 205)
    a("s_barrier")
    if OPT.get("stampsg"):
        gstamp(a, 206)
        a("s_add_u32 s87, s87, 1")
    ex = {g: [] for g in range(24)}
    ex[0] += sp(3); ex[12] += sp(2)
    ng = OPT.get("g16_ng", [3, 8, 13, 18])
    for k, i in enumerate(new_batch):
        place(ex, ng[k], i)
    if len(new_batch) > 1:
        ex[20] += w_readahead()
    if not last:
        ex[22].append(f"v_xor_b32 {vr(vXA)}, 64, {vr(vXB)}")
    if after_bar:
        ex[23] += after_bar
    if ex1:
        for g, l in ex1.items(): ex[g] += l
    g16_step(a, 1, None if last else 0, ex, order=(2, 3, 4, 5, 0, 1) if last else (0, 1, 2, 3, 4, 5))

def gemm(a, opt, extras):
    if OPT.get("stampsg"): a("s_mov_b32 s87, 0")
    a(f"s_add_u32 {sr(sXJ)}, {sr(sXJ)}, {2 * 128}")
    a(f"s_add_u32 {sr(sWJ)}, {sr(sWJ)}, {2 * 64 * 6144}")
    a(f"s_mov_b32 {sr(sRING)}, 0")
    g16 = opt.get("g16", 1)
    for x in (g16_bases() if g16 else read_bases_list()): a(x)
    if opt.get("stamps_start"): timestamp(a, 4, opt)
    if opt.get("span2") or opt.get("span3"): a("s_memrealtime s[82:83]")
    nw = (6 if opt.get("touch", 0) else 0) + (2 if opt.get("xpf", 0) else 0)
    a(f"s_waitcnt vmcnt(7)")
    if opt.get("stamps_start"): timestamp(a, 5, opt)
    a("s_barrier")
    if opt.get("dbg_span"): dbg_span(a, "g0")
    if opt.get("span3"):
        sk = a.label("sk3")
        a(f"s_memrealtime s[76:77]")
        a(f"s_cmp_eq_u32 s2, {opt['span3']}")
        a(f"s_cbranch_scc0 {sk}")
        a(f"s_cmp_eq_u32 {sr(sW)}, 0")
        a(f"s_cbranch_scc0 {sk}")
        a("s_waitcnt lgkmcnt(0)")
        for reg, off in ((84, 4), (78, 12), (80, 20), (82, 28), (76, 36)):
            a(f"v_mov_b32 v12, s{reg}")
            a(f"s_mov_b32 s93, {off}")
            a("s_mov_b64 exec, 1")
            a(f"buffer_store_dword v12, off, {sr(SRD_DBG,4)}, s93 sc1")
            a("s_mov_b64 exec, -1")
        a(f"{sk}:")
    if opt.get("span2"):
        sk = a.label("sk2")
        a(f"s_memrealtime s[76:77]")
        a(f"s_cmp_eq_u32 {sr(sW)}, 0")
        a(f"s_cbranch_scc0 {sk}")
        a("s_waitcnt lgkmcnt(0)")
        a("s_not_b32 s75, s84")
        for reg, off in ((75, 4), (84, 60), (78, 20), (80, 36), (82, 52), (76, 44)):
            a(f"v_mov_b32 v12, s{reg}")
            a(f"s_mov_b32 s93, {off}")
            a("s_mov_b64 exec, 1")
            a(f"buffer_atomic_umax v12, off, {sr(SRD_DBG,4)}, s93 sc1")
            a("s_mov_b64 exec, -1")
        a(f"{sk}:")
    if opt.get("stamps_start"): timestamp(a, 6, opt)
    if g16:
        for x in g16_reads(0, 0): a(x)
        a(f"v_xor_b32 {vr(vXA)}, 64, {vr(vXB)}")
        g16_stage(a, [], [0, 1, 2, 3], 10 + nw, first=True, valu=extras)
    else:
        for x in gemm_reads(0, 0):
            a(x)
        a(f"v_xor_b32 {vr(vXA)}, {1 << 5}, {vr(vXB)}")
        gemm_stage(a, [], [0, 1], 10 + nw, first=True, valu=extras)
    a(f"s_mov_b32 {sr(sJ)}, 12")
    lab = a.label("gemm")
    a(".p2align 6")
    a(f"{lab}:")
    npf = 1 if opt.get("wpf", 1) else 0
    if g16: g16_stage(a, [4, 5, 6], [0, 1, 2, 3], 6 + npf)
    else: gemm_stage(a, [2, 3, 4, 5, 6], [0, 1], 6 + npf)
    nc = a.label("nc"); nd = a.label("nd")
    a(f"s_cmp_eq_u32 {sr(sJ)}, {sr(sARRJ)}")
    a(f"s_cbranch_scc0 {nd}")
    a(f"""
    v_mov_b32 v12, 1
    s_mov_b64 exec, 1
    buffer_atomic_add v12, off, {sr(SRD_DBG,4)}, {sr(sCNT)} sc1
    s_mov_b64 exec, -1
    s_nop 3
    """)
    a(f"{nd}:")
    a(f"s_cmp_eq_u32 {sr(sJ)}, {sr(sCHKJ)}")
    a(f"s_cbranch_scc0 {nc}")
    a(f"v_lshlrev_b32 v12, 2, v0")
    a(f"buffer_load_dword {vr(vCHK)}, v12, {sr(SRD_DBG,4)}, 0 offen sc1")
    a(f"{nc}:")
    a(f"s_sub_u32 {sr(sJ)}, {sr(sJ)}, 1")
    a(f"s_cmp_lg_u32 {sr(sJ)}, 0")
    a(f"s_cbranch_scc1 {lab}")
    gc, gs = gate_instrs()
    if g16:
        g16_stage(a, [4, 5, 6], [0], 6 + npf)
        g16_stage(a, [], [], 0, valu=gc, after_bar=gs + ["s_nop 3"])
        g16_stage(a, [], [], None, last=True, valu=setup_scalar_items(), ex1=last_step_items())
    else:
        gemm_stage(a, [2, 3, 4, 5, 6], [0], 6 + npf)
        gemm_stage(a, [], [], 0, valu=gc, after_bar=gs + ["s_nop 3"])
        gemm_stage(a, [], [], None, last=True)
    a("s_setprio 0")
    a("s_nop 15")

vLK = 7

def g16_pack(a, dst, t0, t1):
    a(f"v_cvt_pk_bf16_f32 v{dst}, v{t0}, v{t0+1}")
    a(f"v_cvt_pk_bf16_f32 v{dst+1}, v{t0+2}, v{t0+3}")
    a(f"v_cvt_pk_bf16_f32 v{dst+2}, v{t1}, v{t1+1}")
    a(f"v_cvt_pk_bf16_f32 v{dst+3}, v{t1+2}, v{t1+3}")

def g16_swap(a, dst):
    a(f"v_permlane16_swap_b32 v{dst}, v{dst+2}")
    a(f"v_permlane16_swap_b32 v{dst+1}, v{dst+3}")

SS16 = SS

def kreg(T, f):
    return ACC + 32 + 16 * f + 8 * T if OPT.get("g16", 1) else ACC + 32 + 16 * T + 4 * f
def vreg(T, t):
    return ACC + 64 + 4 * (2 * T + t) if OPT.get("g16", 1) else ACC + 64 + 16 * T + 4 * t

sOWN = 3

def setup_scalar_items():
    return [f"""v_bfe_u32 v12, v0, 2, 1
    v_and_b32 v13, 3, v0
    v_mov_b32 v14, 0x3f803f80
    v_cmp_gt_u32 vcc, 2, v13""",
    f"""; sparse ones operand: row m = l&15 (r = m&3 < 2) sums the lane groups with parity (m>>2)&1; index picks register r of each pair
    v_cndmask_b32 v14, 0, v14, vcc
    v_cmp_eq_u32 vcc, 0, v12
    s_nop 1
    v_cndmask_b32 v{ONES}, 0, v14, vcc
    v_cndmask_b32 v{ONES+2}, v14, 0, vcc""",
    f"""v_mov_b32 v{ONES+1}, v{ONES}
    v_mov_b32 v{ONES+3}, v{ONES+2}
    v_mov_b32 v14, 0x4444
    v_mov_b32 v12, 0xeeee""",
    f"""v_cmp_eq_u32 vcc, 1, v13
    s_nop 1
    v_cndmask_b32 v{IDX}, v14, v12, vcc""",
    f"""s_lshl_b32 {sr(sT1)}, {sr(sHP)}, 1
    s_add_u32 {sr(sT1)}, {sr(sT1)}, {sr(sHH)}
    s_lshl_b32 {sr(sKVSRC)}, {sr(sT1)}, 18""",
    f"""s_lshl_b32 {sr(sT1)}, {sr(sTB)}, 15
    s_lshl_b32 {sr(sT0)}, {sr(sTQ)}, 13
    s_add_u32 {sr(sT1)}, {sr(sT1)}, {sr(sT0)}
    s_add_u32 {sr(sKVO)}, {sr(sT1)}, {sr(sKVSRC)}""",
    f"""s_lshl_b32 {sr(sT0)}, {sr(sHH)}, 14
    s_lshl_b32 {sr(sT1)}, {sr(sTQ)}, 12
    s_add_u32 {sr(sLDSW)}, {sr(sT0)}, {sr(sT1)}
    s_add_u32 {sr(sKVSRC)}, {sr(sKVSRC)}, {sr(sT1)}""",
    f"""s_lshl_b32 {sr(sSRC)}, {sr(sTB)}, 1
    s_add_u32 {sr(sSRC)}, {sr(sSRC)}, 2
    s_and_b32 {sr(sSRC)}, {sr(sSRC)}, 15
    s_lshl_b32 {sr(sSRC)}, {sr(sSRC)}, 14""",
    f"""s_mov_b32 {sr(sSLOT)}, {2 * 32768}
    s_mov_b32 {sr(sJ)}, 0
    s_lshl_b32 {sr(sWOFF)}, {sr(sCB)}, 7""",
    f"""s_lshl_b32 {sr(sLDSW3)}, {sr(sHH)}, 13
    s_lshl_b32 {sr(sT0)}, {sr(sTQ)}, 11
    s_add_u32 {sr(sLDSW3)}, {sr(sLDSW3)}, {sr(sT0)}""",
    f"""; own K/V tiles in LDS: (tq>>1)*32768 + hh*16384 + 2*(tq&1)*4096
    s_lshr_b32 {sr(sT1)}, {sr(sTQ)}, 1
    s_lshl_b32 {sr(sT1)}, {sr(sT1)}, 15
    s_lshl_b32 {sr(sT0)}, {sr(sHH)}, 14
    s_add_u32 {sr(sT1)}, {sr(sT1)}, {sr(sT0)}""",
    f"""s_and_b32 {sr(sT0)}, {sr(sTQ)}, 1
    s_lshl_b32 {sr(sT0)}, {sr(sT0)}, 13
    s_add_u32 {sr(sOWN)}, {sr(sT1)}, {sr(sT0)}"""]

def setup_vector_items():
    it = [f"""s_lshl_b32 {sr(sT0)}, {sr(sHH)}, 14
    v_add_u32 {vr(vKVB)}, {sr(sT0)}, {vr(vL16)}
    v_mov_b32 {vr(vCUR)}, {vr(vKVB)}
    v_add_u32 {vr(vNXT)}, 32768, {vr(vKVB)}
    v_add_u32 {vr(vDMA)}, {sr(sKVSRC)}, {vr(vL16)}
    v_lshlrev_b32 {vr(vPA)}, 2, v0""",
    f"""; key index with bits 2 and 3 swapped: the score rows then match the order of the V slots
    v_and_b32 v12, 0x33, v0
    v_bfe_u32 v13, v0, 2, 1
    v_bfe_u32 v14, v0, 3, 1""",
    f"""v_lshl_add_u32 v12, v13, 3, v12
    v_lshl_add_u32 v12, v14, 2, v12
    v_lshlrev_b32 {vr(vLK)}, 4, v12""",
    f"""; weights of the output projection: rows 16tt .. 16tt+15 of every stage (two pieces per wave)
    v_lshrrev_b32 v12, 3, v0
    v_and_b32 v13, 7, v0
    v_bfe_u32 v14, v12, 1, 1
    v_lshlrev_b32 v14, 2, v14""",
    f"""v_xor_b32 v13, v13, v14
    s_and_b32 {sr(sT0)}, {sr(sTQ)}, {1 if OPT.get("p16", 1) else 0}
    s_lshl_b32 {sr(sT0)}, {sr(sT0)}, 1
    v_xor_b32 v13, {sr(sT0)}, v13
    s_lshl_b32 {sr(sT0)}, {sr(sTQ)}, 4
    v_add_u32 v12, {sr(sT0)}, v12
    v_lshlrev_b32 {vr(vDW3)}, 11, v12
    v_lshl_add_u32 {vr(vDW3)}, v13, 4, {vr(vDW3)}"""]
    it.append("\n".join(f"v_mov_b32 v{LA+i}, 0" for i in range(4)))
    it.append("\n".join(f"v_mov_b32 v{LA+4+i}, 0" for i in range(4)))
    return it

def last_step_items():
    def tile(f, i): return ACC + 4 * (4 * f + i)
    def pack(dst, t0, t1):
        return "\n".join([f"v_cvt_pk_bf16_f32 v{dst}, v{t0}, v{t0+1}", f"v_cvt_pk_bf16_f32 v{dst+1}, v{t0+2}, v{t0+3}",
                          f"v_cvt_pk_bf16_f32 v{dst+2}, v{t1}, v{t1+1}", f"v_cvt_pk_bf16_f32 v{dst+3}, v{t1+2}, v{t1+3}"])
    def swap(dst):
        return f"v_permlane16_swap_b32 v{dst}, v{dst+2}\nv_permlane16_swap_b32 v{dst+1}, v{dst+3}"
    ex = {g: [] for g in range(24)}
    vi = setup_vector_items()
    for k, x in enumerate(vi): ex[[1, 3, 5, 8, 9, 10, 11][k]].append(x)
    kk = [(T, ft) for ft in range(2) for T in range(2)]
    for k, (T, ft) in enumerate(kk):
        ex[12 + k].append(pack(kreg(T, ft), tile(2 + ft, 2 * T), tile(2 + ft, 2 * T + 1)))
    for k, (T, ft) in enumerate(kk):
        ex[16 + k].append(swap(kreg(T, ft)))
    vv = [(T, t) for T in range(2) for t in range(2)]
    for k, (T, t) in enumerate(vv):
        ex[20 + k].append(pack(vreg(T, t), tile(4, 2 * T + t), tile(5, 2 * T + t)))
    return ex

def gemm_epilogue16(a, opt):
    def tile(f, i): return ACC + 4 * (4 * f + i)
    a("s_nop 1")
    for T in range(2):
        for f in range(2): g16_swap(a, vreg(T, f))
    if opt.get("half", 1):
        late = a.label("late")
        a(f"s_cmp_lt_u32 {sr(sTQ)}, 2")
        a(f"s_cbranch_scc0 {late}")
        kv_stores(a)
        a(f"{late}:")
    else:
        kv_stores(a)
    a(f"s_mov_b32 {sr(sT2)}, {hex(f2u(QSCALE))}")
    a(f"s_mov_b32 {sr(sT3)}, {hex(f2u(QSCALE))}")
    for k in range(16):
        a(f"v_pk_mul_f32 {vr(ACC+2*k,2)}, {vr(ACC+2*k,2)}, {sr(sT2,2)}")
    for T in range(2):
        for ft in range(2):
            g16_pack(a, QF + 8 * T + 4 * ft, tile(ft, 2 * T), tile(ft, 2 * T + 1))
    a("s_nop 1")
    for k in range(4): g16_swap(a, QF + 4 * k)
    a("s_nop 1")
    for x in range(2):
        S, Q = SS16 + 16 * x, QF + 8 * x
        a(f"v_mfma_f32_32x32x16_bf16 {vr(S,16)}, {vr(kreg(0,0),4)}, {vr(Q,4)}, 0")
        a(f"v_mfma_f32_32x32x16_bf16 {vr(S,16)}, {vr(kreg(0,1),4)}, {vr(Q+4,4)}, {vr(S,16)}")
    a(f"""
    v_add_u32 v12, {sr(sOWN)}, {vr(vL16)}
    v_add_u32 v13, {sr(sOWN)}, {vr(vLK)}
    """)
    for tt in range(2):
        a(f"ds_write_b128 v13, {vr(kreg(tt,0),4)} offset:{tt*4096}")
        a(f"ds_write_b128 v13, {vr(kreg(tt,1),4)} offset:{tt*4096+1024}")
        a(f"ds_write_b128 v12, {vr(vreg(tt,0),4)} offset:{tt*4096+2048}")
        a(f"ds_write_b128 v12, {vr(vreg(tt,1),4)} offset:{tt*4096+3072}")

def gemm_epilogue(a, opt):
    if opt.get("g16", 1):
        return gemm_epilogue16(a, opt)
    for tile in (2, 3, 4, 5):
        b = ACC + 16 * tile
        for i in range(8):
            a(f"v_cvt_pk_bf16_f32 v{b+i}, v{b+2*i}, v{b+2*i+1}")
    a(f"""
    s_lshl_b32 {sr(sT1)}, {sr(sHP)}, 1
    s_add_u32 {sr(sT1)}, {sr(sT1)}, {sr(sHH)}
    s_lshl_b32 {sr(sKVSRC)}, {sr(sT1)}, 18
    s_lshl_b32 {sr(sT1)}, {sr(sTB)}, 15
    s_lshl_b32 {sr(sT2)}, {sr(sTQ)}, 13
    s_add_u32 {sr(sT1)}, {sr(sT1)}, {sr(sT2)}
    s_add_u32 {sr(sKVO)}, {sr(sT1)}, {sr(sKVSRC)}
    """)
    if opt.get("half", 1):
        late = a.label("late")
        a(f"s_cmp_lt_u32 {sr(sTQ)}, 2")
        a(f"s_cbranch_scc0 {late}")
        kv_stores(a)
        a(f"{late}:")
    else:
        kv_stores(a)
    a(f"s_mov_b32 {sr(sT2)}, {hex(f2u(QSCALE))}")
    a(f"s_mov_b32 {sr(sT3)}, {hex(f2u(QSCALE))}")
    for tt in range(2):
        b = ACC + 16 * tt
        for i in range(8):
            a(f"v_pk_mul_f32 {vr(b+2*i,2)}, {vr(b+2*i,2)}, {sr(sT2,2)}")
        for i in range(8):
            a(f"v_cvt_pk_bf16_f32 v{QF+8*tt+i}, v{b+2*i}, v{b+2*i+1}")
    kb = ACC + 32
    a("s_nop 1")
    for x in range(2):
        S, Q = SS + 16 * x, QF + 8 * x
        a(f"v_mfma_f32_32x32x16_bf16 {vr(S,16)}, {vr(kb,4)}, {vr(Q,4)}, 0")
        a(f"v_mfma_f32_32x32x16_bf16 {vr(S,16)}, {vr(kb+4,4)}, {vr(Q+4,4)}, {vr(S,16)}")
    a(f"""
    s_lshr_b32 {sr(sT1)}, {sr(sTQ)}, 1
    s_lshl_b32 {sr(sT1)}, {sr(sT1)}, 15
    s_lshl_b32 {sr(sT2)}, {sr(sHH)}, 14
    s_add_u32 {sr(sT1)}, {sr(sT1)}, {sr(sT2)}
    s_and_b32 {sr(sT2)}, {sr(sTQ)}, 1
    s_lshl_b32 {sr(sT2)}, {sr(sT2)}, 13
    s_add_u32 {sr(sT1)}, {sr(sT1)}, {sr(sT2)}
    v_add_u32 v12, {sr(sT1)}, {vr(vL16)}
    """)
    for tt in range(2):
        kb, vb = ACC + 32 + 16 * tt, ACC + 64 + 16 * tt
        a(f"ds_write_b128 v12, {vr(kb,4)} offset:{tt*4096}")
        a(f"ds_write_b128 v12, {vr(kb+4,4)} offset:{tt*4096+1024}")
        a(f"ds_write_b128 v12, {vr(vb,4)} offset:{tt*4096+2048}")
        a(f"ds_write_b128 v12, {vr(vb+4,4)} offset:{tt*4096+3072}")
    if opt.get("dump_q"):
        a(f"""
        s_lshl_b32 {sr(sT1)}, s2, 3
        s_add_u32 {sr(sT1)}, {sr(sT1)}, {sr(sW)}
        s_lshl_b32 {sr(sT1)}, {sr(sT1)}, 12
        s_add_u32 {sr(sT1)}, {sr(sT1)}, {WS_DBG}
        """)
        for i in range(4):
            a(f"buffer_store_dwordx4 {vr(QF+4*i,4)}, {vr(vL16)}, {sr(SRD_WS,4)}, {sr(sT1)} offen offset:{i*1024}")

def smf(L):
    return f"v_smfmac_f32_16x16x64_bf16 {vr(L,4)}, {vr(ONES,4)}, {vr(PP,8)}, {vr(IDX)}"

def attn_unit(a, t, x, hooks, skip_prev=False, c_zero=False):
    S = SS + 16 * x
    Sn = SS + 16 * (x ^ 1)
    xn = xp = x ^ 1
    Qn = QF + 8 * xn
    P0, P1 = PP, PP + 4
    def M(d, A, B, C): return f"v_mfma_f32_32x32x16_bf16 {vr(d,16)}, {vr(A,4)}, {vr(B,4)}, {C}"
    e = lambda i: f"v_exp_f32 v{S+i}, v{S+i}"
    c = lambda i: f"v_cvt_pk_bf16_f32 v{PP+i}, v{S+2*i}, v{S+2*i+1}"
    mf = [M(Sn, KF, Qn, vr(NM + 16 * xn, 16)),
          None if skip_prev else M(OA + 16 * xp, VF + 4, P1, vr(OA + 16 * xp, 16)),
          None if skip_prev else smf(LA + 4 * xp),
          M(Sn, KF + 4, Qn + 4, vr(Sn, 16)),
          M(OA + 16 * x, VF, P0, "0" if c_zero else vr(OA + 16 * x, 16))]
    va = [[e(0), e(1), e(2)], [e(3), e(4), e(5)], [e(6), e(7), c(0), c(1), c(2), c(3)],
          [e(8), e(9), e(10)], [e(11), e(12), e(13), e(14), e(15), c(4), c(5), c(6), c(7)]]
    for g in range(5):
        if mf[g]: a(mf[g])
        for h in hooks.get(g, []):
            a(h)
        for v in va[g]:
            a(v)

def kv_addr(tile, f):
    if tile < 4:
        return vCUR, tile * 4096 + f * 1024
    return vNXT, f * 1024

def rd(dst, tile, f):
    b, o = kv_addr(tile, f)
    return f"ds_read_b128 {vr(dst,4)}, {vr(b)} offset:{o}"

def kv_dma(p, so):
    return f"buffer_load_dwordx4 {vr(vDMA)}, {sr(SRD_WS,4)}, {sr(so)} offen offset:{p*1024} sc1 lds"

def sample_mailbox(a, off_s, lanes):
    sk = a.label("smp")
    a(f"s_cmp_eq_u32 {sr(sW)}, 0")
    a(f"s_cbranch_scc0 {sk}")
    a(f"s_mov_b32 exec_lo, {hex(lanes)}")
    a("s_mov_b32 exec_hi, 0")
    a(f"buffer_load_dword {vr(vPV)}, {vr(vPA)}, {sr(SRD_WS,4)}, {sr(off_s)} offen sc1")
    a("s_mov_b64 exec, -1")
    a("s_nop 3")
    a(f"{sk}:")

def poll_mailbox(a, want_all):
    poll, done = a.label("poll"), a.label("pdone")
    a(f"s_mov_b32 {sr(sT1)}, 400000")
    a(f"s_add_u32 {sr(sT2)}, {sr(sTB)}, 1")
    a(f"s_and_b32 {sr(sT2)}, {sr(sT2)}, 7")
    a(f"s_lshl_b32 {sr(sT2)}, 1, {sr(sT2)}")
    if want_all == "b1a2":
        a(f"s_lshl_b32 {sr(sT2)}, {sr(sT2)}, 8")
        a(f"s_add_u32 {sr(sT3)}, {sr(sTB)}, 2")
        a(f"s_and_b32 {sr(sT3)}, {sr(sT3)}, 7")
        a(f"s_lshl_b32 {sr(sT3)}, 1, {sr(sT3)}")
        a(f"s_or_b32 {sr(sT2)}, {sr(sT2)}, {sr(sT3)}")
    elif want_all:
        a(f"s_mov_b32 {sr(sT2)}, {0xffff if OPT.get('half', 1) else 0xff}")
    a("s_mov_b64 exec, 0xffff")
    a(f"{poll}:")
    a("s_waitcnt vmcnt(0)")
    a(f"v_cmp_eq_u32 vcc, 1, {vr(vPV)}")
    a("s_nop 3")
    a(f"s_and_b32 {sr(sT3)}, vcc_lo, {sr(sT2)}")
    a(f"s_cmp_eq_u32 {sr(sT3)}, {sr(sT2)}")
    a(f"s_cbranch_scc1 {done}")
    a(f"s_sub_u32 {sr(sT1)}, {sr(sT1)}, 1")
    a(f"s_cbranch_scc1 {done}")
    a(f"buffer_load_dword {vr(vPV)}, {vr(vPA)}, {sr(SRD_WS,4)}, {sr(sMB)} offen sc1")
    a(f"s_branch {poll}")
    a(f"{done}:")
    a("s_mov_b64 exec, -1")

def publish(a):
    spin, ok = a.label("rdy"), a.label("rdyok")
    a(f"s_mov_b32 {sr(sT1)}, 400000")
    a(f"s_mov_b32 {sr(sT2)}, 0x55555555")
    a(f"v_lshlrev_b32 v12, 2, v0")
    a(f"{spin}:")
    a(f"v_cmp_eq_u32 vcc, 8, {vr(vCHK)}")
    a("s_nop 3")
    a(f"s_and_b32 {sr(sT0)}, vcc_lo, {sr(sT2)}")
    a(f"s_and_b32 {sr(sT3)}, vcc_hi, {sr(sT2)}")
    a(f"s_and_b32 {sr(sT0)}, {sr(sT0)}, {sr(sT3)}")
    a(f"s_cmp_eq_u32 {sr(sT0)}, {sr(sT2)}")
    a(f"s_cbranch_scc1 {ok}")
    a(f"s_sub_u32 {sr(sT1)}, {sr(sT1)}, 1")
    a(f"s_cbranch_scc1 {ok}")
    a(f"buffer_load_dword {vr(vCHK)}, v12, {sr(SRD_DBG,4)}, 0 offen sc1")
    a("s_waitcnt vmcnt(0)")
    a(f"s_branch {spin}")
    a(f"{ok}:")
    a(f"""
    s_lshl_b32 {sr(sT0)}, {sr(sHP)}, 10
    s_lshl_b32 {sr(sT1)}, {sr(sTB)}, 2
    s_add_u32 {sr(sT0)}, {sr(sT0)}, {sr(sT1)}
    s_add_u32 {sr(sT0)}, {sr(sT0)}, {WS_MB}
    v_lshlrev_b32 v12, 7, v0
    v_mov_b32 v13, 1
    s_mov_b64 exec, 0xff
    buffer_store_dword v13, v12, {sr(SRD_WS,4)}, {sr(sT0)} offen sc1
    s_mov_b64 exec, -1
    """)

def publish_b(a):
    a(f"""
    s_lshl_b32 {sr(sT0)}, {sr(sHP)}, 10
    s_lshl_b32 {sr(sT1)}, {sr(sTB)}, 2
    s_add_u32 {sr(sT0)}, {sr(sT0)}, {sr(sT1)}
    s_add_u32 {sr(sT0)}, {sr(sT0)}, {WS_MB + 32}
    v_lshlrev_b32 v12, 7, v0
    v_mov_b32 v13, 1
    s_mov_b64 exec, 0xff
    buffer_store_dword v13, v12, {sr(SRD_WS,4)}, {sr(sT0)} offen sc1
    s_mov_b64 exec, -1
    """)

def kv_stores(a):
    a(f"s_add_u32 {sr(sT2)}, {sr(sKVO)}, 4096")
    for tt in range(2):
        so = sKVO if tt == 0 else sT2
        vk = vLK if OPT.get("g16", 1) else vL16
        a(f"buffer_store_dwordx4 {vr(kreg(tt,0),4)}, {vr(vk)}, {sr(SRD_WS,4)}, {sr(so)} offen sc1")
        a(f"buffer_store_dwordx4 {vr(kreg(tt,1),4)}, {vr(vk)}, {sr(SRD_WS,4)}, {sr(so)} offen offset:1024 sc1")
        a(f"buffer_store_dwordx4 {vr(vreg(tt,0),4)}, {vr(vL16)}, {sr(SRD_WS,4)}, {sr(so)} offen offset:2048 sc1")
        a(f"buffer_store_dwordx4 {vr(vreg(tt,1),4)}, {vr(vL16)}, {sr(SRD_WS,4)}, {sr(so)} offen offset:3072 sc1")

def wo_piece(i, half):
    return [f"s_add_u32 {sr(sT0)}, {sr(sROT)}, {i}", f"s_and_b32 {sr(sT0)}, {sr(sT0)}, 15", f"s_lshl_b32 {sr(sT0)}, {sr(sT0)}, 17",
            f"s_add_u32 {sr(sT0)}, {sr(sT0)}, {sr(sWOFF)}"] + ([f"s_add_u32 {sr(sT0)}, {sr(sT0)}, 16384"] if half else []) + \
           [f"s_add_u32 m0, {sr(sLDSW3)}, {(i % NSLOT3) * 16384 + half * 1024}", "s_nop 0",
            f"buffer_load_dwordx4 {vr(vDW3)}, {sr(SRD_WO,4)}, {sr(sT0)} offen lds"]

def attn_stage(a, opt, kind, s_=None):
    prio = opt.get("prio", 1)
    def sp(n): return [f"s_setprio {n}"] if prio else []
    for t in range(4):
        h0 = {0: [rd(KF, t + 1, 0)], 1: [rd(VF + 4, t, 3)], 2: ["s_waitcnt lgkmcnt(2)"],
              3: [rd(KF + 4, t + 1, 1)], 4: ["s_waitcnt lgkmcnt(2)"]}
        h1 = {0: ["s_waitcnt lgkmcnt(1)"], 1: [], 2: ["s_waitcnt lgkmcnt(0)"], 3: [], 4: [rd(VF, t + 1, 2)]}
        if (kind == 1 and t in (0, 2)) or (kind == 4 and t == 2):
            sample_mailbox(a, sMB, 0xffff)
        if t == 0:
            h0[0] += sp(2)
            h0[4] += [f"s_mov_b32 {sr(sNXT)}, {sr(sSLOT)}"]
            h1[1] = [f"s_add_u32 {sr(sSRC)}, {sr(sSRC)}, 16384"]
            h1[3] = [f"s_and_b32 {sr(sSRC)}, {sr(sSRC)}, 0x3ffff"]
        if t == 1:
            h0[0] += sp(1)
            h1[1] = [f"s_add_u32 {sr(sSLOT)}, {sr(sSLOT)}, 32768"]
            h1[3] = [f"s_and_b32 {sr(sSLOT)}, {sr(sSLOT)}, 0x1ffff"]
            if kind == 0:
                h1[4] += ["s_waitcnt vmcnt(0)", "s_barrier"]
            if kind == 3 and s_ == 13:
                h0[2] += wo_piece(8, 0)
                h0[4] += wo_piece(8, 1)
                h1[0] += wo_piece(9, 0)
                h1[2] += wo_piece(9, 1)
            if kind == 1:
                go = a.label("go")
                lanestamp(a, 203, opt, 0)
                half = opt.get("half", 1)
                if half: a("s_waitcnt vmcnt(0)")
                a(f"s_cmp_eq_u32 {sr(sW)}, 0")
                a(f"s_cbranch_scc0 {go}")
                poll_mailbox(a, False)
                a(f"{go}:")
                lanestamp(a, 203, opt, 1)
                a("s_barrier")
                lanestamp(a, 203, opt, 2)
                for st in ((2,) if half else (2, 3)):
                    a(f"""
                    s_lshl_b32 {sr(sT0)}, {sr(sTB)}, 1
                    s_add_u32 {sr(sT0)}, {sr(sT0)}, {st}
                    s_and_b32 {sr(sT0)}, {sr(sT0)}, 15
                    s_lshl_b32 {sr(sOFFS)}, {sr(sT0)}, 14
                    s_add_u32 m0, {sr(sLDSW)}, {st * 32768}
                    s_nop 0
                    """)
                    for p in range(4):
                        a(kv_dma(p, sOFFS))
                if half:
                    nb = a.label("nb")
                    a(f"s_cmp_eq_u32 {sr(sW)}, 0")
                    a(f"s_cbranch_scc0 {nb}")
                    publish_b(a)
                    a(f"{nb}:")
        if t == 2:
            h0[0] += sp(0)
            h1[1] = [f"s_add_u32 m0, {sr(sSLOT)}, {sr(sLDSW)}"]
            h1[3] = [f"s_add_u32 {sr(sJ)}, {sr(sJ)}, 1"]
            if kind == 0:
                h1[4] += ["s_barrier"] + sp(3)
                if opt.get("half", 1):
                    ns = a.label("ns")
                    a(f"s_cmp_ge_u32 {sr(sTQ)}, 2")
                    a(f"s_cbranch_scc0 {ns}")
                    kv_stores(a)
                    a(f"{ns}:")
                np_ = a.label("np")
                a(f"s_cmp_eq_u32 {sr(sW)}, 0")
                a(f"s_cbranch_scc0 {np_}")
                publish(a)
                a(f"{np_}:")
            elif kind == 3 and s_ == 15:
                h1[4] += ["s_barrier"] + sp(3)
            elif kind == 3:
                h1[4] += ["s_waitcnt vmcnt(8)", "s_barrier"] + sp(3)
            elif kind not in (1, 4):
                h1[4] += ["s_waitcnt vmcnt(4)", "s_barrier"] + sp(3)
        if t == 3:
            if kind == 3:
                q = s_ - 13
                h0[2] += wo_piece(2 * q, 0)
                h0[4] += wo_piece(2 * q, 1)
                h1[1] = wo_piece(2 * q + 1, 0)
                h1[3] = wo_piece(2 * q + 1, 1)
            elif kind != 0:
                h0[2] += [kv_dma(0, sSRC)]
                h0[4] += [kv_dma(1, sSRC)]
                h1[1] = [kv_dma(2, sSRC)]
                h1[3] = [kv_dma(3, sSRC)]
            if kind == 1:
                go = a.label("go")
                a(f"s_cmp_eq_u32 {sr(sW)}, 0")
                a(f"s_cbranch_scc0 {go}")
                poll_mailbox(a, "b1a2" if opt.get("prog", 1) and opt.get("half", 1) else True)
                a(f"{go}:")
                if opt.get("half", 1):
                    a("s_waitcnt vmcnt(0)")
                    a("s_barrier")
                    a(f"""
                    s_lshl_b32 {sr(sT0)}, {sr(sTB)}, 1
                    s_add_u32 {sr(sT0)}, {sr(sT0)}, 3
                    s_and_b32 {sr(sT0)}, {sr(sT0)}, 15
                    s_lshl_b32 {sr(sOFFS)}, {sr(sT0)}, 14
                    s_add_u32 m0, {sr(sLDSW)}, {3 * 32768}
                    s_nop 0
                    """)
                    for p in range(4):
                        a(kv_dma(p, sOFFS))
                    a(f"s_add_u32 m0, {sr(sSLOT)}, {sr(sLDSW)}")
                else:
                    a("s_waitcnt vmcnt(4)")
                    a("s_barrier")
                for x in sp(3): a(x)
            if kind == 4:
                go = a.label("go")
                a(f"s_cmp_eq_u32 {sr(sW)}, 0")
                a(f"s_cbranch_scc0 {go}")
                poll_mailbox(a, True)
                a(f"{go}:")
                a("s_waitcnt vmcnt(4)")
                a("s_barrier")
                for x in sp(3): a(x)
        first = kind == 0 and t == 0
        attn_unit(a, t, 0, h0, skip_prev=first, c_zero=first)
        attn_unit(a, t, 1, h1, c_zero=first)
    a(f"v_mov_b32 {vr(vCUR)}, {vr(vNXT)}")
    a(f"v_add_u32 {vr(vNXT)}, {sr(sNXT)}, {vr(vKVB)}")

def attention(a, opt):
    if not opt.get("g16", 1):
        a(f"""
    v_bfe_u32 v12, v0, 2, 1
    v_and_b32 v13, 3, v0
    v_mov_b32 v14, 0x3f803f80
    v_cmp_gt_u32 vcc, 2, v13
    s_nop 1
    v_cndmask_b32 v14, 0, v14, vcc
    v_cmp_eq_u32 vcc, 0, v12
    s_nop 1
    v_cndmask_b32 v{ONES}, 0, v14, vcc
    v_cndmask_b32 v{ONES+2}, v14, 0, vcc
    v_mov_b32 v{ONES+1}, v{ONES}
    v_mov_b32 v{ONES+3}, v{ONES+2}
    v_mov_b32 v14, 0x4444
    v_mov_b32 v12, 0xeeee
    v_cmp_eq_u32 vcc, 1, v13
    s_nop 1
    v_cndmask_b32 v{IDX}, v14, v12, vcc
    s_lshl_b32 {sr(sT0)}, {sr(sHH)}, 14
    v_add_u32 {vr(vKVB)}, {sr(sT0)}, {vr(vL16)}
    v_mov_b32 {vr(vCUR)}, {vr(vKVB)}
    v_add_u32 {vr(vNXT)}, 32768, {vr(vKVB)}
    s_lshl_b32 {sr(sT1)}, {sr(sTQ)}, 12
    s_add_u32 {sr(sLDSW)}, {sr(sT0)}, {sr(sT1)}
    s_add_u32 {sr(sKVSRC)}, {sr(sKVSRC)}, {sr(sT1)}
    v_add_u32 {vr(vDMA)}, {sr(sKVSRC)}, {vr(vL16)}
    s_lshl_b32 {sr(sSRC)}, {sr(sTB)}, 1
    s_add_u32 {sr(sSRC)}, {sr(sSRC)}, 2
    s_and_b32 {sr(sSRC)}, {sr(sSRC)}, 15
    s_lshl_b32 {sr(sSRC)}, {sr(sSRC)}, 14
    s_mov_b32 {sr(sSLOT)}, {2 * 32768}
    s_mov_b32 {sr(sJ)}, 0
    v_lshrrev_b32 v12, 3, v0
    v_and_b32 v13, 7, v0
    v_bfe_u32 v14, v12, 1, 1
    v_lshlrev_b32 v14, 2, v14
    v_xor_b32 v13, v13, v14
    s_lshl_b32 {sr(sT0)}, {sr(sTQ)}, 4
    v_add_u32 v12, {sr(sT0)}, v12
    v_lshlrev_b32 {vr(vDW3)}, 11, v12
    v_lshl_add_u32 {vr(vDW3)}, v13, 4, {vr(vDW3)}
    s_lshl_b32 {sr(sWOFF)}, {sr(sCB)}, 7
    s_lshl_b32 {sr(sLDSW3)}, {sr(sHH)}, 13
    s_lshl_b32 {sr(sT0)}, {sr(sTQ)}, 11
    s_add_u32 {sr(sLDSW3)}, {sr(sLDSW3)}, {sr(sT0)}
        """)
        for i in range(8): a(f"v_mov_b32 v{LA+i}, 0")
    else:
        a("s_nop 7")
    for x in range(2):
        S = SS + 16 * x
        a(f"v_max3_f32 v12, v{S}, v{S+1}, v{S+2}")
        for i in range(3, 15, 2):
            a(f"v_max3_f32 v12, v12, v{S+i}, v{S+i+1}")
        a(f"v_max_f32 v12, v12, v{S+15}")
        a(f"""
        v_mov_b32 v13, v12
        s_nop 1
        v_permlane32_swap_b32 v13, v12
        s_nop 1
        v_max_f32 v12, v12, v13
        v_sub_f32 v12, 0, v12
        """)
        for i in range(16):
            a(f"v_mov_b32 v{NM+16*x+i}, v12")
    a("s_waitcnt lgkmcnt(0)")
    a("s_barrier")
    a(rd(KF, 0, 0)); a(rd(KF + 4, 0, 1)); a(rd(VF, 0, 2))
    a("s_waitcnt lgkmcnt(1)")
    a(f"v_mfma_f32_32x32x16_bf16 {vr(SS,16)}, {vr(KF,4)}, {vr(QF,4)}, {vr(NM,16)}")
    a(f"v_mfma_f32_32x32x16_bf16 {vr(SS,16)}, {vr(KF+4,4)}, {vr(QF+4,4)}, {vr(SS,16)}")
    lanestamp(a, 203, opt, 3)
    a("s_waitcnt lgkmcnt(0)")
    a("s_nop 15")
    attn_stage(a, opt, 0)
    lanestamp(a, 202, opt, 0)
    attn_stage(a, opt, 1)
    lanestamp(a, 202, opt, 1)
    if opt.get("prog", 1) and opt.get("half", 1):
        attn_stage(a, opt, 4)
        lanestamp(a, 202, opt, 2)
    if opt.get("unroll_attn"):
        for _ in range(10 if (opt.get("prog", 1) and opt.get("half", 1)) else 11):
            attn_stage(a, opt, 2)
    else:
        loop = a.label("attn")
        a(".p2align 6")
        a(f"{loop}:")
        attn_stage(a, opt, 2)
        lanestamp(a, 202, opt, "m")
        a(f"s_cmp_lt_u32 {sr(sJ)}, 13")
        a(f"s_cbranch_scc1 {loop}")
    for s_ in (13, 14, 15):
        attn_stage(a, opt, 3, s_)
        lanestamp(a, 202, opt, s_)
    a("s_setprio 0")
    a("s_nop 1")
    a(f"v_mfma_f32_32x32x16_bf16 {vr(OA+16,16)}, {vr(VF+4,4)}, {vr(PP+4,4)}, {vr(OA+16,16)}")
    a(smf(LA + 4))
    a("s_waitcnt lgkmcnt(0)")

def attn_epilogue(a, opt):
    a(f"""
    s_lshl_b32 {sr(sT0)}, {sr(sTB)}, 3
    s_lshl_b32 {sr(sT1)}, {sr(sTQ)}, 1
    s_add_u32 {sr(sT0)}, {sr(sT0)}, {sr(sT1)}
    s_lshl_b32 {sr(sT0)}, {sr(sT0)}, 17
    s_lshl_b32 {sr(sT1)}, {sr(sHP)}, 1
    s_add_u32 {sr(sT1)}, {sr(sT1)}, {sr(sHH)}
    s_lshl_b32 {sr(sT1)}, {sr(sT1)}, 11
    s_add_u32 {sr(sT0)}, {sr(sT0)}, {sr(sT1)}
    s_add_u32 {sr(sOOFF)}, {sr(sT0)}, {WS_O}
    s_mov_b32 {sr(sT2)}, {hex(f2u(2.0**24))}
    s_nop 7
    """)
    ok = a.label("ok")
    a("v_mov_b32 v12, 0")
    a("v_mov_b32 v13, 0")
    a(f"v_add_f32 v{LA}, v{LA}, v{LA+1}")
    a(f"v_add_f32 v{LA+4}, v{LA+4}, v{LA+5}")
    for i in range(16):
        a(f"v_pk_fma_f32 v[12:13], {vr(OA+2*i,2)}, 0, v[12:13] op_sel_hi:[1,0,1]")
    a(f"v_cmp_nle_f32 {sr(sM,2)}, v{LA}, {sr(sT2)}")
    a(f"v_cmp_nle_f32 {sr(sM2,2)}, v{LA+4}, {sr(sT2)}")
    a("v_cmp_u_f32 vcc, v12, v13")
    a(f"s_or_b64 {sr(sM,2)}, {sr(sM,2)}, {sr(sM2,2)}")
    a(f"s_or_b64 {sr(sM,2)}, {sr(sM,2)}, vcc")
    if opt.get("force_fallback"):
        a(f"s_mov_b64 {sr(sM,2)}, -1")
    a(f"s_cmp_eq_u64 {sr(sM,2)}, 0")
    a(f"s_cbranch_scc1 {ok}")
    fallback(a, opt)
    a(f"{ok}:")
    a(f"v_rcp_f32 v12, v{LA}")
    a(f"v_rcp_f32 v14, v{LA+4}")
    for x in range(2):
        r = (12, 14)[x]
        a(f"v_mov_b32 v{r+1}, v{r}" if x == 1 else f"v_mov_b32 v13, v12")
        b = OA + 16 * x
        for i in range(8):
            a(f"v_pk_mul_f32 {vr(b+2*i,2)}, {vr(b+2*i,2)}, {vr(r,2)}")
        for i in range(8):
            a(f"v_cvt_pk_bf16_f32 v{b+i}, v{b+2*i}, v{b+2*i+1}")
        if opt.get("p16", 1):
            a("s_nop 1")
            for i in range(4):
                a(f"v_permlane16_swap_b32 v{b+i}, v{b+4+i}")
        if x == 1:
            a(f"s_add_u32 {sr(sOOFF)}, {sr(sOOFF)}, 131072")
        a(f"buffer_store_dwordx4 {vr(b,4)}, {vr(vL16)}, {sr(SRD_WS,4)}, {sr(sOOFF)} offen sc1")
        a(f"buffer_store_dwordx4 {vr(b+4,4)}, {vr(vL16)}, {sr(SRD_WS,4)}, {sr(sOOFF)} offen offset:1024 sc1")

def phase3_16(a, opt):
    vm = VmTracker()
    ACC3, AF, OF, DEPTH, NSLOT = 16, 48, 96, opt.get("depth", 12), NSLOT3
    vRD = [[7, 8, 9, 11], [4, 5, 152, 153], [154, 155, 156, 157]]
    vG, vG2, vOUT = 14, 158, 13
    sample_mailbox(a, sMB2, 0xffffffff)
    a("s_waitcnt vmcnt(0)")
    a("s_barrier")
    timestamp(a, 4, opt)
    np_ = a.label("np3")
    a(f"s_cmp_eq_u32 {sr(sW)}, 0")
    a(f"s_cbranch_scc0 {np_}")
    a(f"""
    s_lshl_b32 {sr(sT0)}, {sr(sTB)}, 12
    s_lshl_b32 {sr(sT1)}, {sr(sHP)}, 2
    s_add_u32 {sr(sT0)}, {sr(sT0)}, {sr(sT1)}
    s_add_u32 {sr(sT0)}, {sr(sT0)}, {WS_MB2}
    v_lshlrev_b32 v12, 7, v0
    v_mov_b32 v15, 1
    s_mov_b32 exec_lo, -1
    s_mov_b32 exec_hi, 0
    buffer_store_dword v15, v12, {sr(SRD_WS,4)}, {sr(sT0)} offen sc1
    s_mov_b64 exec, -1
    """)
    poll = a.label("poll3"); done = a.label("pd3")
    a(f"""
    s_mov_b32 {sr(sT1)}, 400000
    s_lshr_b32 {sr(sT2)}, {sr(sTB3)}, 1
    s_cmp_eq_u32 {sr(sT2)}, {sr(sTB)}
    s_cselect_b32 {sr(sT2)}, 1, 0
    s_lshl_b32 {sr(sT2)}, {sr(sT2)}, {sr(sHP)}
    s_mov_b32 exec_lo, -1
    s_mov_b32 exec_hi, 0
    """)
    a(f"{poll}:")
    a(f"v_cmp_eq_u32 vcc, 1, {vr(vPV)}")
    a("s_nop 3")
    a(f"s_or_b32 {sr(sT3)}, vcc_lo, {sr(sT2)}")
    a(f"s_cmp_eq_u32 {sr(sT3)}, -1")
    a(f"s_cbranch_scc1 {done}")
    a(f"s_sub_u32 {sr(sT1)}, {sr(sT1)}, 1")
    a(f"s_cbranch_scc1 {done}")
    a(f"buffer_load_dword {vr(vPV)}, {vr(vPA)}, {sr(SRD_WS,4)}, {sr(sMB2)} offen sc1")
    a("s_waitcnt vmcnt(0)")
    a(f"s_branch {poll}")
    a(f"{done}:")
    a("s_mov_b64 exec, -1")
    a(f"{np_}:")
    def wdma(i):
        for half in range(2):
            for x in wo_piece(i, half): a(x)
            vm.issue(("w", i))
    wdma(6); wdma(7)
    a(f"""
    v_and_b32 v12, 15, v0                          ; n
    s_lshl_b32 {sr(sT0)}, {sr(sTB3)}, 7
    s_lshl_b32 {sr(sT2)}, {sr(sTQ)}, 5
    s_add_u32 {sr(sT0)}, {sr(sT0)}, {sr(sT2)}
    v_add_u32 v12, {sr(sT0)}, v12
    v_lshlrev_b32 v3, 2, v12
    v_bfe_u32 v15, v0, 2, 2                        ; r
    v_bfe_u32 v1, v0, 4, 1                         ; g&1
    v_bfe_u32 v2, v0, 5, 1                         ; g>>1
    v_lshl_add_u32 v12, v2, 2, v15
    v_lshl_add_u32 v12, v1, 4, v12                 ; row
    v_lshlrev_b32 v12, 7, v12
    v_bfe_u32 v2, v0, 1, 1                         ; c>>1
    v_lshrrev_b32 v15, 1, v15
    v_lshlrev_b32 v15, 2, v15
    v_xor_b32 v2, v2, v15
    v_lshlrev_b32 v1, 1, v1
    v_xor_b32 v2, v2, v1
    v_lshl_add_u32 v12, v2, 4, v12
    v_and_b32 v1, 1, v0
    v_lshl_add_u32 v12, v1, 3, v12
    s_lshl_b32 {sr(sT0)}, {sr(sHH)}, 13
    v_add_u32 v{vRD[0][0]}, {sr(sT0)}, v12
    v_xor_b32 v{vRD[0][1]}, 32, v{vRD[0][0]}
    v_xor_b32 v{vRD[0][2]}, 64, v{vRD[0][0]}
    v_xor_b32 v{vRD[0][3]}, 96, v{vRD[0][0]}
    """)
    for win in (1, 2):
        for c in range(4):
            a(f"v_add_u32 v{vRD[win][c]}, {hex(win * 65536)}, v{vRD[0][c]}")
    a(f"""
    s_lshl_b32 {sr(sT0)}, {sr(sTB3)}, 2
    s_add_u32 {sr(sT0)}, {sr(sT0)}, {sr(sTQ)}
    s_lshl_b32 {sr(sAOFF)}, {sr(sT0)}, 17
    s_lshl_b32 {sr(sT1)}, {sr(sHH)}, 16
    s_add_u32 {sr(sAOFF)}, {sr(sAOFF)}, {sr(sT1)}
    s_add_u32 {sr(sAOFF)}, {sr(sAOFF)}, {WS_O}
    """)
    a("s_barrier")
    timestamp(a, 5, opt)
    if opt.get("dbg_span"): dbg_span(a, "e3")
    def oload(kk):
        d = kk % DEPTH
        if kk % 4 == 0:
            a(f"s_add_u32 {sr(sT1)}, {sr(sROT)}, {kk // 4}")
            a(f"s_and_b32 {sr(sT1)}, {sr(sT1)}, 15")
            a(f"s_lshl_b32 {sr(sT1)}, {sr(sT1)}, 12")
            a(f"s_add_u32 {sr(sT1)}, {sr(sT1)}, {sr(sAOFF)}")
        a(f"buffer_load_dwordx4 {vr(OF+4*d,4)}, {vr(vL16)}, {sr(SRD_WS,4)}, {sr(sT1)} offen offset:{(kk%4)*1024} sc1")
        vm.issue(("o", kk))
    for kk in range(DEPTH): oload(kk)
    a(f"s_mov_b32 {sr(sT2)}, {WS_G}")
    a(f"buffer_load_dword {vr(vG)}, v3, {sr(SRD_WS,4)}, {sr(sT2)} offen sc1")
    a(f"buffer_load_dword {vr(vG2)}, v3, {sr(SRD_WS,4)}, {sr(sT2)} offen offset:64 sc1")
    vm.issue(("g", 0)); vm.issue(("g", 1))
    def wr(hs):
        st, e = divmod(hs, 2)
        win, off = divmod((st % NSLOT) * 16384, 65536)
        r = []
        for c in range(4):
            base = AF + 16 * (hs % 3) + 4 * c
            r.append(f"ds_read_b64_tr_b16 {vr(base,2)}, {vr(vRD[win][c])} offset:{off + e*4096}")
            r.append(f"ds_read_b64_tr_b16 {vr(base+2,2)}, {vr(vRD[win][c])} offset:{off + e*4096 + 1024}")
        return r
    for x in wr(0) + wr(1): a(x)
    pend = []
    for hs in range(32):
        bar = hs in (10, 18)
        k0, k1 = 2 * hs, 2 * hs + 1
        if bar:
            need = ("w", 7) if hs == 10 else ("w", 15)
            n = vm.wait_count(lambda t: t in (need, ("o", k0)))
            a(f"s_waitcnt vmcnt({n}) lgkmcnt(0)")
            a("s_barrier")
            if hs == 10:
                pend = [(i, h) for i in range(10, 16) for h in range(2)]
        else:
            n = vm.wait_count(lambda t: t == ("o", k0))
            a(f"s_waitcnt vmcnt({n}) lgkmcnt({8 if hs < 31 else 0})")
        nxt = wr(hs + 2) if hs + 2 < 32 else []
        for th in range(2):
            kk = 2 * hs + th
            if th == 1:
                n = vm.wait_count(lambda t: t == ("o", kk))
                a(f"s_waitcnt vmcnt({n})")
            for c in range(4):
                acc = ACC3 + 4 * (4 * th + c)
                cin = "0" if hs == 0 else vr(acc, 4)
                a(f"v_mfma_f32_16x16x32_bf16 {vr(acc,4)}, {vr(AF+16*(hs%3)+4*c,4)}, {vr(OF+4*(kk%DEPTH),4)}, {cin}")
                g = 4 * th + c
                if g < len(nxt): a(nxt[g])
            if kk + DEPTH < 64:
                oload(kk + DEPTH)
            for i, h in pend[:1]:
                for x in wo_piece(i, h): a(x)
                vm.issue(("w", i))
            pend = pend[1:]
    timestamp(a, 6, opt)
    XA = 6 * 16384
    a(f"""
    v_sub_f32 v2, 1.0, {vr(vG)}
    v_sub_f32 v3, 1.0, {vr(vG2)}
    v_cvt_pk_bf16_f32 v2, v2, v3
    v_and_b32 v3, 0xffff0000, v2
    v_lshlrev_b32 v2, 16, v2
    s_cmp_eq_u32 {sr(sHH)}, 0
    s_cselect_b64 vcc, -1, 0
    v_and_b32 v12, 15, v0                          ; n
    v_lshrrev_b32 v1, 5, v0                        ; g>>1
    v_cndmask_b32 v60, v2, {vr(vG)}, vcc
    v_cndmask_b32 v62, v3, {vr(vG2)}, vcc
    v_mov_b32 v61, v60
    v_mov_b32 v63, v62
    v_and_b32 v3, 7, v12
    v_xor_b32 v1, v1, v3
    s_lshl_b32 {sr(sT0)}, {sr(sHH)}, 14
    s_lshl_b32 {sr(sT1)}, {sr(sTQ)}, 12
    s_add_u32 {sr(sT0)}, {sr(sT0)}, {sr(sT1)}
    s_add_u32 {sr(sT0)}, {sr(sT0)}, {XA}
    v_lshlrev_b32 v12, 7, v12
    v_lshl_add_u32 v12, v1, 4, v12
    v_bfe_u32 v1, v0, 4, 1
    v_lshl_add_u32 v12, v1, 3, v12
    v_add_u32 v12, {sr(sT0)}, v12
    v_xor_b32 v56, 32, v12
    v_xor_b32 v57, 64, v12
    v_xor_b32 v58, 96, v12
    """)
    wreg = [12, 56, 57, 58]
    for th in range(2):
        for c in range(4):
            b = ACC3 + 4 * (4 * th + c)
            cf = "v[60:61]" if th == 0 else "v[62:63]"
            a(f"v_pk_mul_f32 {vr(b,2)}, {vr(b,2)}, {cf}")
            a(f"v_pk_mul_f32 {vr(b+2,2)}, {vr(b+2,2)}, {cf}")
            a(f"v_cvt_pk_bf16_f32 v{b}, v{b}, v{b+1}")
            a(f"v_cvt_pk_bf16_f32 v{b+1}, v{b+2}, v{b+3}")
            a(f"ds_write_b64 v{wreg[c]}, {vr(b,2)} offset:{th * 2048}")
    a(f"""
    v_lshrrev_b32 v1, 3, v0
    v_and_b32 v3, 7, v0
    v_xor_b32 v2, v3, v1
    s_lshl_b32 {sr(sT0)}, {sr(sW)}, 4
    v_add_u32 v1, {sr(sT0)}, v1                    ; row (p = 0)
    v_lshlrev_b32 v12, 7, v1
    v_lshl_add_u32 v12, v2, 4, v12
    v_add_u32 v12, {XA}, v12
    s_lshl_b32 {sr(sT0)}, {sr(sTB3)}, 7
    v_add_u32 v1, {sr(sT0)}, v1                    ; token
    v_lshlrev_b32 {vr(vOUT)}, 11, v1
    v_lshl_add_u32 {vr(vOUT)}, v3, 4, {vr(vOUT)}
    s_lshl_b32 {sr(sT0)}, {sr(sCB)}, 7
    s_add_u32 {sr(sT1)}, {sr(sT0)}, {8 * 2048}
    s_waitcnt lgkmcnt(0)
    s_barrier
    ds_read_b128 v[16:19], v12
    ds_read_b128 v[20:23], v12 offset:16384
    ds_read_b128 v[24:27], v12 offset:1024
    ds_read_b128 v[28:31], v12 offset:{16384 + 1024}
    """)
    for p_ in range(2):
        a(f"s_waitcnt lgkmcnt({2 if p_ == 0 else 0})")
        A, B, O = 16 + 8 * p_, 20 + 8 * p_, 32 + 4 * p_
        for i in range(4):
            a(f"v_lshlrev_b32 v48, 16, v{A+i}")
            a(f"v_and_b32 v49, 0xffff0000, v{A+i}")
            a(f"v_lshlrev_b32 v50, 16, v{B+i}")
            a(f"v_and_b32 v51, 0xffff0000, v{B+i}")
            a(f"v_pk_add_f32 v[48:49], v[48:49], v[50:51]")
            a(f"v_cvt_pk_bf16_f32 v{O+i}, v48, v49")
        a(f"buffer_store_dwordx4 {vr(O,4)}, {vr(vOUT)}, {sr(SRD_OUT,4)}, {sr(sT0 if p_ == 0 else sT1)} offen {opt.get('outflag', 'sc1')}")

def phase3(a, opt):
    vm = VmTracker()
    ACC3, AF, OF, DEPTH, NSLOT = 16, 48, 72, opt.get("depth", 12), NSLOT3
    vRD = [7, 8, 9, 11, 4, 5]
    vG, vOUT = 14, 13
    sample_mailbox(a, sMB2, 0xffffffff)
    a("s_waitcnt vmcnt(0)")
    a("s_barrier")
    timestamp(a, 4, opt)
    np_ = a.label("np3")
    a(f"s_cmp_eq_u32 {sr(sW)}, 0")
    a(f"s_cbranch_scc0 {np_}")
    a(f"""
    s_lshl_b32 {sr(sT0)}, {sr(sTB)}, 12
    s_lshl_b32 {sr(sT1)}, {sr(sHP)}, 2
    s_add_u32 {sr(sT0)}, {sr(sT0)}, {sr(sT1)}
    s_add_u32 {sr(sT0)}, {sr(sT0)}, {WS_MB2}
    v_lshlrev_b32 v12, 7, v0
    v_mov_b32 v15, 1
    s_mov_b32 exec_lo, -1
    s_mov_b32 exec_hi, 0
    buffer_store_dword v15, v12, {sr(SRD_WS,4)}, {sr(sT0)} offen sc1
    s_mov_b64 exec, -1
    """)
    poll = a.label("poll3"); done = a.label("pd3")
    a(f"""
    s_mov_b32 {sr(sT1)}, 400000
    s_lshr_b32 {sr(sT2)}, {sr(sTB3)}, 1
    s_cmp_eq_u32 {sr(sT2)}, {sr(sTB)}
    s_cselect_b32 {sr(sT2)}, 1, 0
    s_lshl_b32 {sr(sT2)}, {sr(sT2)}, {sr(sHP)}
    s_mov_b32 exec_lo, -1
    s_mov_b32 exec_hi, 0
    """)
    a(f"{poll}:")
    a(f"v_cmp_eq_u32 vcc, 1, {vr(vPV)}")
    a("s_nop 3")
    a(f"s_or_b32 {sr(sT3)}, vcc_lo, {sr(sT2)}")
    a(f"s_cmp_eq_u32 {sr(sT3)}, -1")
    a(f"s_cbranch_scc1 {done}")
    a(f"s_sub_u32 {sr(sT1)}, {sr(sT1)}, 1")
    a(f"s_cbranch_scc1 {done}")
    a(f"buffer_load_dword {vr(vPV)}, {vr(vPA)}, {sr(SRD_WS,4)}, {sr(sMB2)} offen sc1")
    a("s_waitcnt vmcnt(0)")
    a(f"s_branch {poll}")
    a(f"{done}:")
    a("s_mov_b64 exec, -1")
    a(f"{np_}:")
    def wdma(i):
        for half in range(2):
            for x in wo_piece(i, half): a(x)
            vm.issue(("w", i))
    wdma(6); wdma(7)
    a(f"""
    v_and_b32 v12, 31, v0
    s_lshl_b32 {sr(sT0)}, {sr(sTB3)}, 7
    s_lshl_b32 {sr(sT2)}, {sr(sTQ)}, 5
    s_add_u32 {sr(sT0)}, {sr(sT0)}, {sr(sT2)}
    v_add_u32 v12, {sr(sT0)}, v12                  ; token
    v_lshlrev_b32 v3, 2, v12
    v_lshrrev_b32 {vr(vG)}, 5, v0                  ; h
    v_lshlrev_b32 {vr(vOUT)}, 11, v12
    v_lshl_add_u32 {vr(vOUT)}, {vr(vG)}, 4, {vr(vOUT)}
    v_bfe_u32 v15, v0, 2, 2                        ; r
    v_lshl_add_u32 v12, {vr(vG)}, 2, v15           ; 4h + r
    v_lshlrev_b32 v2, 7, v12
    v_and_b32 v12, 1, v0                           ; h'
    v_bfe_u32 v1, v0, 1, 1                         ; a
    v_bfe_u32 v5, v0, 4, 1                         ; g
    v_lshl_add_u32 v12, v5, 1, v12                 ; chunk16 = 2g + h'
    v_lshrrev_b32 v15, 1, v15
    v_lshlrev_b32 v15, 2, v15
    v_xor_b32 v12, v12, v15
    v_lshl_add_u32 v2, v12, 4, v2
    v_lshl_add_u32 v2, v1, 3, v2
    s_lshl_b32 {sr(sT0)}, {sr(sHH)}, 13
    v_add_u32 v{vRD[0]}, {sr(sT0)}, v2
    v_xor_b32 v{vRD[1]}, 64, v{vRD[0]}
    v_add_u32 v{vRD[2]}, 0x10000, v{vRD[0]}
    v_add_u32 v{vRD[3]}, 0x10000, v{vRD[1]}
    v_add_u32 v{vRD[4]}, 0x20000, v{vRD[0]}
    v_add_u32 v{vRD[5]}, 0x20000, v{vRD[1]}
    s_lshl_b32 {sr(sT0)}, {sr(sTB3)}, 2
    s_add_u32 {sr(sT0)}, {sr(sT0)}, {sr(sTQ)}
    s_lshl_b32 {sr(sAOFF)}, {sr(sT0)}, 17
    s_lshl_b32 {sr(sT1)}, {sr(sHH)}, 16
    s_add_u32 {sr(sAOFF)}, {sr(sAOFF)}, {sr(sT1)}
    s_add_u32 {sr(sAOFF)}, {sr(sAOFF)}, {WS_O}
    """)
    a("s_barrier")
    timestamp(a, 5, opt)
    if opt.get("dbg_span"): dbg_span(a, "e3")
    def oload(kk):
        d = kk % DEPTH
        if kk % 4 == 0:
            a(f"s_add_u32 {sr(sT1)}, {sr(sROT)}, {kk // 4}")
            a(f"s_and_b32 {sr(sT1)}, {sr(sT1)}, 15")
            a(f"s_lshl_b32 {sr(sT1)}, {sr(sT1)}, 12")
            a(f"s_add_u32 {sr(sT1)}, {sr(sT1)}, {sr(sAOFF)}")
        if opt.get("p3_noload") and kk >= DEPTH: return
        sc = "" if opt.get("p3_plain") else " sc1"
        a(f"buffer_load_dwordx4 {vr(OF+4*d,4)}, {vr(vL16)}, {sr(SRD_WS,4)}, {sr(sT1)} offen offset:{(kk%4)*1024}{sc}")
        vm.issue(("o", kk))
    for kk in range(DEPTH): oload(kk)
    a(f"s_mov_b32 {sr(sT2)}, {WS_G}")
    a(f"buffer_load_dword {vr(vG)}, v3, {sr(SRD_WS,4)}, {sr(sT2)} offen sc1")
    vm.issue(("g", 0))
    def wreads(st, ks, set_):
        r = []
        slot = st % NSLOT
        win, off = divmod(slot * 16384, 65536)
        for ct in range(2):
            base = AF + 8 * set_ + 4 * ct
            reg = vRD[2 * win + ct]
            r.append(f"ds_read_b64_tr_b16 {vr(base,2)}, {vr(reg)} offset:{off + ks*2048}")
            r.append(f"ds_read_b64_tr_b16 {vr(base+2,2)}, {vr(reg)} offset:{off + ks*2048+1024}")
        return r
    def wr(kk): return wreads(kk // 4, kk % 4, kk % 3)
    for x in wr(0) + wr(1): a(x)
    pend = []
    for st in range(16):
        for ks in range(4):
            kk = 4 * st + ks
            d = kk % DEPTH
            cur = kk % 3
            bar = ks == 2 and st in (5, 9)
            if bar:
                need = ("w", 7) if st == 5 else ("w", 15)
                n = vm.wait_count(lambda t: t in (need, ("o", kk)))
                a(f"s_waitcnt vmcnt({n}) lgkmcnt(0)")
                a("s_barrier")
                if st == 5:
                    pend = [(i, h) for i in range(10, 16) for h in range(2)]
            else:
                n = vm.wait_count(lambda t: t == ("o", kk))
                a(f"s_waitcnt vmcnt({n}) lgkmcnt({4 if kk < 63 else 0})")
            nxt = wr(kk + 2) if kk + 2 < 64 else []
            if opt.get("p3prio", 0) and kk % 16 == 0:
                a(f"s_setprio {3 - kk // 16}")
            for ct in range(2):
                c = "0" if kk == 0 else vr(ACC3+16*ct,16)
                a(f"v_mfma_f32_32x32x16_bf16 {vr(ACC3+16*ct,16)}, {vr(AF+8*cur+4*ct,4)}, {vr(OF+4*d,4)}, {c}")
                for x in nxt[2*ct:2*ct+2]: a(x)
            if kk + DEPTH < 64:
                oload(kk + DEPTH)
            for i, h in pend[:2]:
                if opt.get("p3_nowo"): continue
                for x in wo_piece(i, h): a(x)
                vm.issue(("w", i))
            pend = pend[2:]
    timestamp(a, 6, opt)
    if opt.get("fullrow", 1):
        XA = 6 * 16384
        a(f"""
        v_sub_f32 v2, 1.0, {vr(vG)}
        v_cvt_pk_bf16_f32 v2, v2, v2
        v_lshlrev_b32 v2, 16, v2
        s_cmp_eq_u32 {sr(sHH)}, 0
        s_cselect_b64 vcc, -1, 0
        v_and_b32 v12, 31, v0                          ; t
        v_lshrrev_b32 v1, 5, v0                        ; h'
        v_cndmask_b32 v60, v2, {vr(vG)}, vcc
        v_and_b32 v3, 7, v12
        v_xor_b32 v1, v1, v3
        v_mov_b32 v61, v60
        s_lshl_b32 {sr(sT0)}, {sr(sHH)}, 14
        s_lshl_b32 {sr(sT1)}, {sr(sTQ)}, 12
        s_add_u32 {sr(sT0)}, {sr(sT0)}, {sr(sT1)}
        s_add_u32 {sr(sT0)}, {sr(sT0)}, {XA}
        v_lshlrev_b32 v12, 7, v12
        v_lshl_add_u32 v12, v1, 4, v12
        v_add_u32 v12, {sr(sT0)}, v12
        v_xor_b32 v56, 32, v12
        v_xor_b32 v57, 64, v12
        v_xor_b32 v58, 96, v12
        """)
        for ct in range(2):
            b = ACC3 + 16 * ct
            for i in range(8):
                a(f"v_pk_mul_f32 {vr(b+2*i,2)}, {vr(b+2*i,2)}, v[60:61]")
            for i in range(8):
                a(f"v_cvt_pk_bf16_f32 v{b+i}, v{b+2*i}, v{b+2*i+1}")
            a(f"ds_write_b128 v{12 if ct == 0 else 57}, {vr(b,4)}")
            a(f"ds_write_b128 v{56 if ct == 0 else 58}, {vr(b+4,4)}")
        a(f"""
        v_lshrrev_b32 v1, 3, v0
        v_and_b32 v3, 7, v0
        v_xor_b32 v2, v3, v1
        s_lshl_b32 {sr(sT0)}, {sr(sW)}, 4
        v_add_u32 v1, {sr(sT0)}, v1                    ; row (p = 0)
        v_lshlrev_b32 v12, 7, v1
        v_lshl_add_u32 v12, v2, 4, v12
        v_add_u32 v12, {XA}, v12
        s_lshl_b32 {sr(sT0)}, {sr(sTB3)}, 7
        v_add_u32 v1, {sr(sT0)}, v1                    ; token
        v_lshlrev_b32 {vr(vOUT)}, 11, v1
        v_lshl_add_u32 {vr(vOUT)}, v3, 4, {vr(vOUT)}
        s_lshl_b32 {sr(sT0)}, {sr(sCB)}, 7
        s_add_u32 {sr(sT1)}, {sr(sT0)}, {8 * 2048}
        s_waitcnt lgkmcnt(0)
        s_barrier
        ds_read_b128 v[16:19], v12
        ds_read_b128 v[20:23], v12 offset:16384
        ds_read_b128 v[24:27], v12 offset:1024
        ds_read_b128 v[28:31], v12 offset:{16384 + 1024}
        """)
        for p_ in range(2):
            a(f"s_waitcnt lgkmcnt({2 if p_ == 0 else 0})")
            A, B, O = 16 + 8 * p_, 20 + 8 * p_, 32 + 4 * p_
            for i in range(4):
                a(f"v_lshlrev_b32 v48, 16, v{A+i}")
                a(f"v_and_b32 v49, 0xffff0000, v{A+i}")
                a(f"v_lshlrev_b32 v50, 16, v{B+i}")
                a(f"v_and_b32 v51, 0xffff0000, v{B+i}")
                a(f"v_pk_add_f32 v[48:49], v[48:49], v[50:51]")
                a(f"v_cvt_pk_bf16_f32 v{O+i}, v48, v49")
            a(f"buffer_store_dwordx4 {vr(O,4)}, {vr(vOUT)}, {sr(SRD_OUT,4)}, {sr(sT0 if p_ == 0 else sT1)} offen {opt.get('outflag', 'sc1')}")
        return
    XA = 6 * 16384
    a(f"""
    s_lshl_b32 {sr(sT0)}, {sr(sTQ)}, 12
    s_lshl_b32 {sr(sT1)}, {sr(sHH)}, 11
    s_add_u32 {sr(sT2)}, {sr(sT0)}, {sr(sT1)}
    s_xor_b32 {sr(sT1)}, {sr(sT1)}, 2048
    s_add_u32 {sr(sT3)}, {sr(sT0)}, {sr(sT1)}
    s_add_u32 {sr(sT2)}, {sr(sT2)}, {XA}
    s_add_u32 {sr(sT3)}, {sr(sT3)}, {XA}
    v_add_u32 v12, {sr(sT2)}, {vr(vL16)}
    v_add_u32 v1, {sr(sT3)}, {vr(vL16)}
    v_sub_f32 v2, 1.0, {vr(vG)}
    v_cvt_pk_bf16_f32 v2, v2, v2
    v_lshlrev_b32 v2, 16, v2
    s_lshl_b32 {sr(sT0)}, {sr(sCB)}, 7
    s_lshl_b32 {sr(sT1)}, {sr(sHH)}, 6
    s_add_u32 {sr(sT0)}, {sr(sT0)}, {sr(sT1)}
    """)
    brb, fin = a.label("brb"), a.label("fin")
    a(f"s_cmp_eq_u32 {sr(sHH)}, 0")
    a(f"s_cbranch_scc0 {brb}")
    for br in range(2):
        K, S_ = ACC3 + 16 * br, ACC3 + 16 * (br ^ 1)
        own, rcv = (vG, 2) if br == 0 else (2, vG)
        a(f"v_mov_b32 v60, v{own}\nv_mov_b32 v61, v{own}\nv_mov_b32 v62, v{rcv}\nv_mov_b32 v63, v{rcv}")
        for i in range(8):
            a(f"v_cvt_pk_bf16_f32 v{48+i}, v{S_+2*i}, v{S_+2*i+1}")
        a("ds_write_b128 v12, v[48:51]")
        a("ds_write_b128 v12, v[52:55] offset:1024")
        a("s_waitcnt lgkmcnt(0)")
        a("s_barrier")
        a("ds_read_b128 v[48:51], v1")
        a("ds_read_b128 v[52:55], v1 offset:1024")
        for i in range(8):
            if i == 0: a("s_waitcnt lgkmcnt(1)")
            if i == 4: a("s_waitcnt lgkmcnt(0)")
            a(f"v_lshlrev_b32 v56, 16, v{48+i}")
            a(f"v_and_b32 v57, 0xffff0000, v{48+i}")
            a(f"v_pk_mul_f32 v[56:57], v[56:57], v[62:63]")
            a(f"v_pk_fma_f32 v[56:57], {vr(K+2*i,2)}, v[60:61], v[56:57]")
            if opt.get("perturb") and br == 0 and i == 0:
                a(f"s_cmp_eq_u32 s2, 0")
                a(f"s_cselect_b32 {sr(sT1)}, {hex(f2u(opt['perturb']))}, 0")
                a(f"s_cmp_eq_u32 {sr(sW)}, 0")
                a(f"s_cselect_b32 {sr(sT1)}, {sr(sT1)}, 0")
                a(f"v_mov_b32 v58, {sr(sT1)}")
                a(f"v_cmp_eq_u32 vcc, 0, v0")
                a("s_nop 1")
                a(f"v_cndmask_b32 v58, 0, v58, vcc")
                a(f"v_add_f32 v56, v56, v58")
            a(f"v_cvt_pk_bf16_f32 v{K+i}, v56, v57")
            if i == 3:
                a(f"buffer_store_dwordx4 {vr(K,4)}, {vr(vOUT)}, {sr(SRD_OUT,4)}, {sr(sT0)} offen {opt.get('outflag', 'sc1')}")
        a(f"buffer_store_dwordx4 {vr(K+4,4)}, {vr(vOUT)}, {sr(SRD_OUT,4)}, {sr(sT0)} offen offset:32 {opt.get('outflag', 'sc1')}")
        if br == 0:
            a(f"s_branch {fin}")
            a(f"{brb}:")
    a(f"{fin}:")

def fallback(a, opt):
    MX = NM
    a(f"s_lshl_b32 {sr(sT0)}, {sr(sHP)}, 1")
    a(f"s_add_u32 {sr(sT0)}, {sr(sT0)}, {sr(sHH)}")
    a(f"s_lshl_b32 {sr(sBLK)}, {sr(sT0)}, 18")
    for i in range(32): a(f"v_mov_b32 v{OA+i}, 0")
    for i in range(8): a(f"v_mov_b32 v{LA+i}, 0")
    a(f"v_mov_b32 v{MX}, 0xff800000")
    a(f"v_mov_b32 v{MX+16}, 0xff800000")
    a(f"s_mov_b32 {sr(sJ)}, 0")
    loop = a.label("fb")
    a(f"{loop}:")
    a(f"buffer_load_dwordx4 {vr(KF,4)}, {vr(vL16)}, {sr(SRD_WS,4)}, {sr(sBLK)} offen sc1")
    a(f"buffer_load_dwordx4 {vr(KF+4,4)}, {vr(vL16)}, {sr(SRD_WS,4)}, {sr(sBLK)} offen offset:1024 sc1")
    a(f"buffer_load_dwordx4 {vr(VF,4)}, {vr(vL16)}, {sr(SRD_WS,4)}, {sr(sBLK)} offen offset:2048 sc1")
    a(f"buffer_load_dwordx4 {vr(VF+4,4)}, {vr(vL16)}, {sr(SRD_WS,4)}, {sr(sBLK)} offen offset:3072 sc1")
    a("s_waitcnt vmcnt(0)")
    for x in range(2):
        S, Q, O, L, mx = SS, QF + 8 * x, OA + 16 * x, LA + 4 * x, MX + 16 * x
        a(f"v_mfma_f32_32x32x16_bf16 {vr(S,16)}, {vr(KF,4)}, {vr(Q,4)}, 0")
        a(f"v_mfma_f32_32x32x16_bf16 {vr(S,16)}, {vr(KF+4,4)}, {vr(Q+4,4)}, {vr(S,16)}")
        a("s_nop 15")
        a(f"v_max3_f32 v12, v{S}, v{S+1}, v{S+2}")
        for i in range(3, 15, 2):
            a(f"v_max3_f32 v12, v12, v{S+i}, v{S+i+1}")
        a(f"v_max_f32 v12, v12, v{S+15}")
        a(f"""
        v_mov_b32 v13, v12
        s_nop 1
        v_permlane32_swap_b32 v13, v12
        s_nop 1
        v_max3_f32 v12, v12, v13, v{mx}
        v_sub_f32 v13, v{mx}, v12
        v_cmp_eq_f32 vcc, v{mx}, v12
        v_exp_f32 v13, v13
        s_nop 1
        v_cndmask_b32 v13, v13, 1.0, vcc
        v_mov_b32 v{mx}, v12
        """)
        for i in range(16):
            a(f"v_mul_f32 v{O+i}, v13, v{O+i}")
        for i in range(4):
            a(f"v_mul_f32 v{L+i}, v13, v{L+i}")
        for i in range(16):
            a(f"v_sub_f32 v{S+i}, v{S+i}, v12")
        for i in range(16):
            a(f"v_exp_f32 v{S+i}, v{S+i}")
        a("s_nop 0")
        for i in range(8):
            a(f"v_cvt_pk_bf16_f32 v{PP+i}, v{S+2*i}, v{S+2*i+1}")
        a("s_nop 1")
        a(f"v_mfma_f32_32x32x16_bf16 {vr(O,16)}, {vr(VF,4)}, {vr(PP,4)}, {vr(O,16)}")
        a(f"v_mfma_f32_32x32x16_bf16 {vr(O,16)}, {vr(VF+4,4)}, {vr(PP+4,4)}, {vr(O,16)}")
        a(smf(L))
        a("s_nop 15")
    a(f"s_add_u32 {sr(sBLK)}, {sr(sBLK)}, 4096")
    a(f"s_add_u32 {sr(sJ)}, {sr(sJ)}, 1")
    a(f"s_cmp_lt_u32 {sr(sJ)}, 64")
    a(f"s_cbranch_scc1 {loop}")
    a(f"v_add_f32 v{LA}, v{LA}, v{LA+1}")
    a(f"v_add_f32 v{LA+4}, v{LA+4}, v{LA+5}")

def gstamp(a, reg):
    a("s_memtime s[70:71]")
    a("s_waitcnt lgkmcnt(0)")
    a("s_mov_b32 s69, m0")
    a("s_mov_b32 m0, s87")
    a(f"v_writelane_b32 v{reg-152}, s70, m0")
    a("s_mov_b32 m0, s69")

def lanestamp(a, reg, opt, lane=None):
    if not opt.get("stamps2"):
        return
    a("s_memtime s[70:71]")
    a("s_waitcnt lgkmcnt(0)")
    if lane == "m":
        a(f"s_mov_b32 s69, m0")
        a(f"s_sub_u32 m0, {sr(sJ)}, 1")
        a(f"v_writelane_b32 v{reg}, s70, m0")
        a(f"s_mov_b32 m0, s69")
    elif lane is None:
        a(f"s_mov_b32 s69, m0")
        a(f"s_mov_b32 m0, {sr(sJ)}")
        a(f"v_writelane_b32 v{reg}, s70, m0")
        a(f"s_mov_b32 m0, s69")
    else:
        a(f"v_writelane_b32 v{reg}, s70, {lane}")

def timestamp(a, idx, opt):
    if not opt.get("stamps"):
        return
    a(f"s_memtime s[70:71]")
    a(f"s_memrealtime s[92:93]")
    a("s_waitcnt lgkmcnt(0)")
    a(f"s_mov_b32 s{72+idx}, s70")
    a(f"s_mov_b32 s{80+idx}, s92")

def stamps_out(a, n, opt):
    if opt.get("stampsg"):
        a(f"""
        s_lshl_b32 {sr(sT1)}, s2, 3
        s_add_u32 {sr(sT1)}, {sr(sT1)}, {sr(sW)}
        s_lshl_b32 {sr(sT1)}, {sr(sT1)}, 10
        s_add_u32 {sr(sT1)}, {sr(sT1)}, {WS_DBG + (12 << 20)}
        v_lshlrev_b32 v12, 2, v0
        buffer_store_dword v52, v12, {sr(SRD_WS,4)}, {sr(sT1)} offen
        buffer_store_dword v53, v12, {sr(SRD_WS,4)}, {sr(sT1)} offen offset:256
        buffer_store_dword v54, v12, {sr(SRD_WS,4)}, {sr(sT1)} offen offset:512
        """)
    if opt.get("stamps2"):
        a(f"""
        s_lshl_b32 {sr(sT1)}, s2, 3
        s_add_u32 {sr(sT1)}, {sr(sT1)}, {sr(sW)}
        s_lshl_b32 {sr(sT1)}, {sr(sT1)}, 10
        s_add_u32 {sr(sT1)}, {sr(sT1)}, {WS_DBG + (10 << 20)}
        v_lshlrev_b32 v12, 2, v0
        buffer_store_dword v200, v12, {sr(SRD_WS,4)}, {sr(sT1)} offen
        buffer_store_dword v201, v12, {sr(SRD_WS,4)}, {sr(sT1)} offen offset:256
        buffer_store_dword v202, v12, {sr(SRD_WS,4)}, {sr(sT1)} offen offset:512
        buffer_store_dword v203, v12, {sr(SRD_WS,4)}, {sr(sT1)} offen offset:768
        """)
    if not opt.get("stamps"):
        return
    a(f"""
    s_lshl_b32 {sr(sT1)}, s2, 3
    s_add_u32 {sr(sT1)}, {sr(sT1)}, {sr(sW)}
    s_lshl_b32 {sr(sT1)}, {sr(sT1)}, 6
    s_add_u32 {sr(sT1)}, {sr(sT1)}, {WS_DBG + (8 << 20)}
    v_mov_b32 v13, 0
    """)
    for i in range(n):
        a(f"v_writelane_b32 v13, s{72+i}, {i}")
        a(f"v_writelane_b32 v13, s{80+i}, {8+i}")
    a(f"""
    v_lshlrev_b32 v12, 2, v0
    v_cmp_gt_u32 vcc, 16, v0
    s_and_saveexec_b64 {sr(sM,2)}, vcc
    buffer_store_dword v13, v12, {sr(SRD_WS,4)}, {sr(sT1)} offen
    s_mov_b64 exec, {sr(sM,2)}
    """)

def span3(a, opt, off):
    if not opt.get("span3"): return
    sk = a.label("sk3")
    a(f"s_cmp_eq_u32 s2, {opt['span3']}")
    a(f"s_cbranch_scc0 {sk}")
    a(f"s_cmp_eq_u32 {sr(sW)}, 0")
    a(f"s_cbranch_scc0 {sk}")
    a("s_memrealtime s[92:93]")
    a("s_waitcnt lgkmcnt(0)")
    a(f"v_mov_b32 v12, s92")
    a(f"s_mov_b32 s93, {off}")
    a("s_mov_b64 exec, 1")
    a(f"buffer_store_dword v12, off, {sr(SRD_DBG,4)}, s93 sc1")
    a("s_mov_b64 exec, -1")
    a(f"{sk}:")

def dbg_span(a, which):
    w = {"start": 4, "gemm": 12, "attn": 20, "end": 28, "e3": 36, "g0": 44, "hook": 52, "karg": 20, "dma": 36, "prew": 52, "smax": 60}[which]
    sk = a.label("sk")
    a(f"s_cmp_eq_u32 {sr(sW)}, 0")
    a(f"s_cbranch_scc0 {sk}")
    a("s_memrealtime s[92:93]")
    a("s_waitcnt lgkmcnt(0)")
    a(f"v_mov_b32 v12, s92")
    a(f"s_mov_b32 s93, {w}")
    a("s_mov_b64 exec, 1")
    a(f"buffer_atomic_umax v12, off, {sr(SRD_DBG,4)}, s93 sc1")
    a("s_mov_b64 exec, -1")
    a(f"{sk}:")

OPT = {}
def k12(opt):
    OPT.clear(); OPT.update(opt)
    a = Asm()
    a(f".globl {NAME12}\n.p2align 8\n.type {NAME12},@function\n{NAME12}:")
    timestamp(a, 0, opt)
    if opt.get("dbg_span") or opt.get("span2") or opt.get("span3"):
        a("s_memrealtime s[84:85]")
    extras = prologue(a, opt)
    if opt.get("dbg_span"):
        sk = a.label("sk")
        a(f"s_cmp_eq_u32 {sr(sW)}, 0")
        a(f"s_cbranch_scc0 {sk}")
        a("s_waitcnt lgkmcnt(0)")
        a("s_not_b32 s84, s84")
        a("v_mov_b32 v12, s84")
        a("s_mov_b32 s93, 4")
        a("s_mov_b64 exec, 1")
        a(f"buffer_atomic_umax v12, off, {sr(SRD_DBG,4)}, s93 sc1")
        a("s_mov_b64 exec, -1")
        a(f"{sk}:")
    gemm(a, opt, extras)
    if opt.get("dbg_span") or opt.get("span2"): dbg_span(a, "gemm")
    span3(a, opt, 44)
    if opt.get("stamps_start"):
        timestamp(a, 7, opt)
        opt = dict(opt); opt["stamps"] = 0
        gemm_epilogue(a, opt)
        a("s_waitcnt vmcnt(0) lgkmcnt(0)")
        opt["stamps"] = 1
        stamps_out(a, 8, opt)
        a("L_end12:\ns_endpgm")
        return a.text()
    timestamp(a, 1, opt)
    gemm_epilogue(a, opt)
    if opt.get("stop_after_gemm"):
        a("s_waitcnt vmcnt(0) lgkmcnt(0)")
        timestamp(a, 2, opt)
        stamps_out(a, 3, opt)
    else:
        timestamp(a, 2, opt)
        attention(a, opt)
        timestamp(a, 3, opt)
        if opt.get("dbg_span"): dbg_span(a, "attn")
        span3(a, opt, 52)
        attn_epilogue(a, opt)
        if opt.get("fused"):
            (phase3_16 if opt.get("p16", 1) else phase3)(a, opt)
            if opt.get("stamps"):
                a("s_waitcnt vmcnt(0)")
                timestamp(a, 7, opt)
            stamps_out(a, 8, opt)
            if opt.get("span3"):
                a("s_waitcnt vmcnt(0)")
                span3(a, opt, 60)
            if opt.get("dbg_span") or opt.get("span2"):
                a("s_waitcnt vmcnt(0)")
                dbg_span(a, "end")
        else:
            a("s_waitcnt vmcnt(0)")
            timestamp(a, 4, opt)
            stamps_out(a, 5, opt)
    a("L_end12:\ns_endpgm")
    return a.text()

KD12 = f"""
.section .rodata,"a"
.p2align 6
.amdhsa_kernel {NAME12}
  .amdhsa_next_free_vgpr 256
  .amdhsa_next_free_sgpr 102
  .amdhsa_accum_offset 256
  .amdhsa_group_segment_fixed_size 0
  .amdhsa_kernarg_size 80
  .amdhsa_user_sgpr_count 2
  .amdhsa_user_sgpr_kernarg_segment_ptr 1
  .amdhsa_system_sgpr_workgroup_id_x 1
  .amdhsa_float_denorm_mode_32 3
.end_amdhsa_kernel
"""
```

```python
from asm import Asm, vr, sr, VmTracker

NAME12 = "gated_mix__mha_block__softmax_full_mha__prompt_kernel"
WS_KV = 0
WS_O = 16 << 20
WS_G = 24 << 20
WS_MB = 25 << 20
WS_MB2 = WS_MB + 65536
WS_DBG = 32 << 20
WS_SIZE = 0x10000000
LOG2E = 1.4426950408889634
QSCALE = LOG2E / (32 ** 0.5)

import struct
def f2u(x): return struct.unpack("<I", struct.pack("<f", x))[0]

SRD_X, SRD_W, SRD_WS, SRD_DBG, SRD_GW = 8, 12, 16, 20, 24
sW, sHH, sTQ, sHP, sTB = 28, 29, 30, 31, 32
sW1K = 33
sXJ = 34
sWJ = 35
sRING = 36
sRINGW = 37
sJ = 38
sT0, sT1, sT2, sT3 = 40, 41, 42, 43
sXQ = 44
sKVSRC = 45
sSLOT = 46
sBLK = 47
sM = 48
sM2 = 50
sOOFF = 52
sCNT = 53
sMB = 54
sLDSW = 55
sSRC = 39
sOFFS = 64
sNXT = 65
sCHKJ = 66
sARRJ = 67
sGOFF = 68
sKVO = 35
sPF = 47
SRD_WO, SRD_OUT = 4, 56
sTB3, sCB, sROT, sMB2 = 60, 61, 62, 63
sAOFF, sWOFF = 100, 101
sLDSW3 = 34
vDW3 = 6
vLANE = 0
vDX, vDW, vXP, vWP, vXA, vW0 = 2, 3, 4, 5, 6, 7
vL16 = 10
vXB = 11
vT = 12
FR = [64, 84]
ACC = 160
QF = 16
OA = 32
LA = 64
NM = 72
SS = 104
PP = 136
KF = 160
VF = 168
ONES = 144
IDX = 148
vCUR, vNXT = 2, 3
vKVB, vDMA = 4, 5
vCHK = 15
vPA, vPV = 149, 150

RING = 20 * 8192
NSLOT3 = 10

def wrap_add(a, dst, src, const, tmp):
    a(f"s_add_u32 {sr(tmp)}, {sr(src)}, {const}")
    a(f"s_sub_u32 {dst}, {sr(tmp)}, {RING}")
    a(f"s_cselect_b32 {dst}, {sr(tmp)}, {dst}")

def prologue(a, opt):
    a(f"""
    s_cmp_ge_u32 s2, 256
    s_cbranch_scc1 L_end12
    """)
    if opt.get("codepf", 1):
        a("""
        s_getpc_b64 s[92:93]
        L_pc12:
        s_mov_b32 s3, L_end12-L_pc12
        v_lshlrev_b32 v1, 6, v0
        v_min_u32 v1, s3, v1
        global_load_dword v33, v1, s[92:93]
        """)
        if opt.get("unroll_attn"):
            a("""
            v_lshlrev_b32 v1, 6, v0
            v_add_u32 v1, 0x8000, v1
            v_min_u32 v1, s3, v1
            global_load_dword v34, v1, s[92:93]
            """)
    a(f"""
    s_load_dwordx4 s[56:59], s[0:1], 0
    s_load_dwordx2 s[60:61], s[0:1], 32
    s_load_dwordx2 s[62:63], s[0:1], 48
    s_load_dwordx4 s[88:91], s[0:1], 64
    s_load_dwordx2 s[94:95], s[0:1], 16
    s_load_dwordx2 s[96:97], s[0:1], 40
    s_load_dwordx2 s[98:99], s[0:1], 56
    v_lshrrev_b32 v1, 6, v0
    v_and_b32 v0, 63, v0
    s_and_b32 s3, s2, 7
    v_readfirstlane_b32 {sr(sW)}, v1
    s_lshr_b32 s4, s2, 3
    s_add_u32 s5, s4, {opt.get("hpshift", 0)}
    s_and_b32 s5, s5, 3
    s_lshl_b32 s3, s3, 2
    s_add_u32 {sr(sHP)}, s3, s5
    s_lshr_b32 {sr(sTB)}, s4, 2
    s_lshr_b32 {sr(sHH)}, {sr(sW)}, 2
    s_and_b32 {sr(sTQ)}, {sr(sW)}, 3
    s_lshl_b32 {sr(sW1K)}, {sr(sW)}, 10
    """)
    a(f"""
    v_lshrrev_b32 v13, 3, v0                 ; r8
    v_and_b32 v14, 7, v0                     ; c'
    s_and_b32 {sr(sT0)}, {sr(sW)}, 1
    s_lshl_b32 {sr(sT0)}, {sr(sT0)}, 2
    v_lshrrev_b32 v15, 1, v13                ; r8>>1 (0..3)
    v_add_u32 v1, {sr(sT0)}, v15             ; 4*(w&1) + (r8>>1)
    v_xor_b32 v1, v1, v14                    ; cX
    s_lshl_b32 {sr(sT1)}, {sr(sW)}, 3
    v_add_u32 v13, {sr(sT1)}, v13            ; 8w + r8
    v_lshlrev_b32 {vr(vDX)}, 11, v13
    v_lshl_add_u32 {vr(vDX)}, v1, 4, {vr(vDX)}
    v_and_b32 v15, 1, v15
    v_lshlrev_b32 v15, 2, v15
    v_xor_b32 v15, v15, v14                  ; cW
    s_and_b32 {sr(sT1)}, {sr(sW)}, {1 if opt.get("g16", 1) else 0}
    s_lshl_b32 {sr(sT1)}, {sr(sT1)}, 1
    v_xor_b32 v15, {sr(sT1)}, v15
    s_mov_b32 {sr(sT1)}, 6144
    v_mul_lo_u32 {vr(vDW)}, v13, {sr(sT1)}
    v_lshl_add_u32 {vr(vDW)}, v15, 4, {vr(vDW)}
    s_lshl_b32 {sr(sXJ)}, {sr(sTB)}, 19          ; tb*256*2048
    s_and_b32 {sr(sWJ)}, {sr(sHP)}, 15
    s_lshl_b32 {sr(sWJ)}, {sr(sWJ)}, 7           ; hpl*128
    """)
    if opt.get("g16", 1):
        a(f"""
        v_and_b32 v13, 15, v0
        v_lshrrev_b32 v14, 4, v0                 ; g
        v_bfe_u32 v15, v13, 1, 3
        v_xor_b32 v15, v15, v14
        v_lshlrev_b32 {vr(vXP)}, 7, v13
        v_lshl_add_u32 {vr(vXP)}, v15, 4, {vr(vXP)}
        v_bfe_u32 v13, v0, 2, 2                  ; r
        v_lshl_add_u32 v1, v14, 3, v13           ; 8g + r
        v_lshlrev_b32 {vr(vWP)}, 7, v1
        v_bfe_u32 v15, v0, 1, 1                  ; c>>1
        s_lshl_b32 {sr(sT1)}, {sr(sHH)}, 2
        v_add_u32 v15, {sr(sT1)}, v15            ; cc
        v_lshrrev_b32 v13, 1, v13
        v_lshlrev_b32 v13, 2, v13
        v_xor_b32 v15, v15, v13
        v_and_b32 v14, 1, v14
        v_lshlrev_b32 v14, 1, v14
        v_xor_b32 v15, v15, v14
        v_lshl_add_u32 {vr(vWP)}, v15, 4, {vr(vWP)}
        v_and_b32 v1, 1, v0
        v_lshl_add_u32 {vr(vWP)}, v1, 3, {vr(vWP)}
        v_lshlrev_b32 {vr(vL16)}, 4, v0
        s_add_u32 {sr(sXQ)}, {sr(sTQ)}, 3
        s_lshl_b32 {sr(sXQ)}, {sr(sXQ)}, 13
        """)
    else:
        a(f"""
    v_and_b32 v13, 31, v0
    v_lshrrev_b32 v14, 5, v0                 ; h
    v_bfe_u32 v15, v13, 1, 3
    v_xor_b32 v15, v15, v14
    v_lshlrev_b32 {vr(vXP)}, 7, v13
    v_lshl_add_u32 {vr(vXP)}, v15, 4, {vr(vXP)}
    v_bfe_u32 v13, v0, 2, 2                  ; r
    v_lshl_add_u32 v1, v14, 3, v13           ; 8h + r
    v_lshlrev_b32 {vr(vWP)}, 7, v1
    v_bfe_u32 v15, v0, 4, 1                  ; g
    v_lshlrev_b32 v15, 1, v15
    v_bfe_u32 v1, v0, 1, 1                   ; c>>1
    v_add_u32 v15, v15, v1
    s_lshl_b32 {sr(sT1)}, {sr(sHH)}, 2
    v_add_u32 v15, {sr(sT1)}, v15            ; cc
    v_lshrrev_b32 v13, 1, v13
    v_lshlrev_b32 v13, 2, v13
    v_xor_b32 v15, v15, v13
    v_lshl_add_u32 {vr(vWP)}, v15, 4, {vr(vWP)}
    v_and_b32 v1, 1, v0
    v_lshl_add_u32 {vr(vWP)}, v1, 3, {vr(vWP)}
    v_lshlrev_b32 {vr(vL16)}, 4, v0
    s_add_u32 {sr(sXQ)}, {sr(sTQ)}, 3
    s_lshl_b32 {sr(sXQ)}, {sr(sXQ)}, 13
        """)
    a("s_waitcnt lgkmcnt(0)")
    if opt.get("stamps_start"): timestamp(a, 1, opt)
    if opt.get("span2") or opt.get("span3"): a("s_memrealtime s[78:79]")
    a(f"""
    s_mov_b32 {sr(SRD_X)}, s56
    s_mov_b32 {sr(SRD_X+1)}, s57
    s_mov_b32 {sr(SRD_X+2)}, {2048*1024*2}
    s_mov_b32 {sr(SRD_X+3)}, 0x00020000
    s_cmp_ge_u32 {sr(sHP)}, 16
    s_cselect_b32 {sr(SRD_W)}, s60, s58
    s_cselect_b32 {sr(SRD_W+1)}, s61, s59
    s_mov_b32 {sr(SRD_W+2)}, {1024*3072*2}
    s_mov_b32 {sr(SRD_W+3)}, 0x00020000
    """)
    for g in range(14):
        dma_unit_static(a, g)
        if g == 6 and opt.get("stamps_start"): timestamp(a, 2, opt)
    if opt.get("stamps_start"): timestamp(a, 3, opt)
    if opt.get("span2") or opt.get("span3"): a("s_memrealtime s[80:81]")
    if opt.get("dbg_span") or opt.get("span2") or opt.get("span3"):
        a(f"""
        s_mov_b32 {sr(SRD_DBG)}, s88
        s_mov_b32 {sr(SRD_DBG+1)}, s89
        s_mov_b32 {sr(SRD_DBG+2)}, 256
        s_mov_b32 {sr(SRD_DBG+3)}, 0x00020000
        """)
    ex = []
    for u in range(6):
        g = 14 + u
        if u < 3:
            ex.append(f"""s_add_u32 m0, {sr(sW1K)}, {g * 8192}
            s_add_u32 {sr(sT0)}, {sr(sWJ)}, {u * 2048}
            buffer_load_dwordx4 {vr(vDW)}, {sr(SRD_W,4)}, {sr(sT0)} offen lds""")
        else:
            ex.append(f"""s_add_u32 m0, {sr(sW1K)}, {g * 8192}
            s_add_u32 {sr(sT0)}, {sr(sXJ)}, {(u - 3) * 131072}
            buffer_load_dwordx4 {vr(vDX)}, {sr(SRD_X,4)}, {sr(sT0)} offen lds""")
    ex.append(f"""
    s_mov_b32 {sr(SRD_WS)}, s90
    s_mov_b32 {sr(SRD_WS+1)}, s91
    s_mov_b32 {sr(SRD_WS+2)}, {WS_SIZE}
    s_mov_b32 {sr(SRD_WS+3)}, 0x00020000
    """)
    ex.append(f"""
    s_mov_b32 {sr(SRD_DBG)}, s88
    s_mov_b32 {sr(SRD_DBG+1)}, s89
    s_mov_b32 {sr(SRD_DBG+2)}, 256
    s_mov_b32 {sr(SRD_DBG+3)}, 0x00020000
    """)
    ex.append(f"""
    s_mov_b32 {sr(SRD_GW)}, s62
    s_mov_b32 {sr(SRD_GW+1)}, s63
    s_mov_b32 {sr(SRD_GW+2)}, 2048
    s_mov_b32 {sr(SRD_GW+3)}, 0x00020000
    """)
    ex.append(f"""
    s_and_b32 s3, s2, 7
    s_lshr_b32 {sr(sT1)}, s2, 3
    s_lshr_b32 {sr(sT0)}, s3, 1
    s_lshl_b32 {sr(sT0)}, {sr(sT0)}, 2
    s_and_b32 {sr(sTB3)}, {sr(sT1)}, 3
    s_add_u32 {sr(sTB3)}, {sr(sT0)}, {sr(sTB3)}
    s_and_b32 {sr(sT0)}, s3, 1
    s_lshl_b32 {sr(sT0)}, {sr(sT0)}, 3
    s_lshr_b32 {sr(sT1)}, {sr(sT1)}, 2
    s_add_u32 {sr(sCB)}, {sr(sT0)}, {sr(sT1)}
    """)
    if opt.get("late4", 0):
        rot = f"""s_and_b32 {sr(sROT)}, s2, 3
    s_lshl_b32 {sr(sROT)}, {sr(sROT)}, 2
    s_add_u32 {sr(sROT)}, {sr(sROT)}, 4
    s_and_b32 {sr(sROT)}, {sr(sROT)}, 15"""
    else:
        rot = f"""s_lshl_b32 {sr(sROT)}, {sr(sCB)}, {opt.get("rotsh", 0)}
    s_add_u32 {sr(sROT)}, {sr(sTB3)}, {sr(sROT)}
    s_and_b32 {sr(sROT)}, {sr(sROT)}, {opt.get("rotmask", 15)}"""
    ex.append(f"""
    {rot}
    s_lshl_b32 {sr(sMB2)}, {sr(sTB3)}, 4
    s_add_u32 {sr(sMB2)}, {sr(sMB2)}, {sr(sCB)}
    s_lshl_b32 {sr(sMB2)}, {sr(sMB2)}, 7
    s_add_u32 {sr(sMB2)}, {sr(sMB2)}, {WS_MB2}
    """)
    ex.append(f"""
    s_cmp_eq_u32 {sr(sHH)}, 1
    s_cselect_b32 {sr(SRD_WO)}, s96, s94
    s_cselect_b32 {sr(SRD_WO+1)}, s97, s95
    s_mov_b32 {sr(SRD_WO+2)}, {1024*1024*2}
    s_mov_b32 {sr(SRD_WO+3)}, 0x00020000
    """)
    ex.append(f"""
    s_mov_b32 {sr(SRD_OUT)}, s98
    s_mov_b32 {sr(SRD_OUT+1)}, s99
    s_mov_b32 {sr(SRD_OUT+2)}, {2048*1024*2}
    s_mov_b32 {sr(SRD_OUT+3)}, 0x00020000
    """)
    ex.append(f"""
    s_lshl_b32 {sr(sMB)}, {sr(sHP)}, 3
    s_add_u32 {sr(sMB)}, {sr(sMB)}, {sr(sTB)}
    s_lshl_b32 {sr(sMB)}, {sr(sMB)}, 7
    s_add_u32 {sr(sMB)}, {sr(sMB)}, {WS_MB}
    s_lshl_b32 {sr(sCNT)}, {sr(sHP)}, 3
    """)
    nr = a.label("nr")
    ex.append(f"""
    s_cmp_eq_u32 {sr(sW)}, 0
    s_cselect_b32 {sr(sCHKJ)}, 5, 0xffff
    s_cselect_b32 {sr(sARRJ)}, 11, 0xffff
    s_cbranch_scc0 {nr}
    v_lshlrev_b32 v12, 2, v0
    s_sub_u32 {sr(sT0)}, {sr(sMB2)}, 128
    v_mov_b32 v13, {sr(sMB)}
    v_mov_b32 v14, {sr(sT0)}
    v_cmp_gt_u32 vcc, 32, v0
    s_nop 1
    v_cndmask_b32 v13, v14, v13, vcc
    v_add_u32 v12, v12, v13
    v_mov_b32 v13, 0
    buffer_store_dword v13, v12, {sr(SRD_WS,4)}, 0 offen sc1
    {nr}:
    """)
    ex.append(f"""
    s_and_b32 {sr(sT0)}, {sr(sHP)}, 15
    s_lshl_b32 {sr(sT0)}, {sr(sT0)}, 3
    s_add_u32 {sr(sT0)}, {sr(sT0)}, {sr(sTB)}
    s_lshl_b32 {sr(sT0)}, {sr(sT0)}, 3
    s_add_u32 {sr(sT0)}, {sr(sT0)}, {sr(sW)}
    s_lshl_b32 {sr(sT0)}, {sr(sT0)}, 10
    s_add_u32 {sr(sPF)}, {sr(sT0)}, {3 * 64 * 6144}
    """)
    ex.append(f"""
    s_lshl_b32 {sr(sT0)}, {sr(sTB)}, 8
    s_lshl_b32 {sr(sT1)}, {sr(sHP)}, 3
    s_add_u32 {sr(sT0)}, {sr(sT0)}, {sr(sT1)}
    s_add_u32 {sr(sT0)}, {sr(sT0)}, {sr(sW)}
    s_lshl_b32 {sr(sGOFF)}, {sr(sT0)}, 2
    s_lshl_b32 {sr(sT1)}, {sr(sT0)}, 11
    v_lshlrev_b32 v12, 5, v0
    buffer_load_dwordx4 v[16:19], v12, {sr(SRD_X,4)}, {sr(sT1)} offen
    buffer_load_dwordx4 v[20:23], v12, {sr(SRD_X,4)}, {sr(sT1)} offen offset:16
    """)
    ex.append(f"""
    v_lshlrev_b32 v12, 5, v0
    buffer_load_dwordx4 v[24:27], v12, {sr(SRD_GW,4)}, 0 offen
    buffer_load_dwordx4 v[28:31], v12, {sr(SRD_GW,4)}, 0 offen offset:16
    """)
    if opt.get("xpf", 0):
        ex.append(f"""
        s_lshl_b32 {sr(sT0)}, s2, 3
        s_add_u32 {sr(sT0)}, {sr(sT0)}, {sr(sW)}
        s_lshl_b32 {sr(sT0)}, {sr(sT0)}, 11
        buffer_load_dwordx4 v[40:43], {vr(vL16)}, {sr(SRD_X,4)}, {sr(sT0)} offen
        buffer_load_dwordx4 v[44:47], {vr(vL16)}, {sr(SRD_X,4)}, {sr(sT0)} offen offset:1024
        """)
    if opt.get("touch", 0):
        ex.append(f"""
        s_lshl_b32 {sr(sT0)}, {sr(sHP)}, 19
        s_lshl_b32 {sr(sT1)}, {sr(sTB)}, 20
        s_add_u32 {sr(sT1)}, {sr(sT1)}, {WS_O}
        buffer_load_dword v104, off, {sr(SRD_WS,4)}, {sr(sT0)}
        buffer_load_dword v105, off, {sr(SRD_WS,4)}, {sr(sT1)}
        """)
        ex.append(f"""
        s_lshl_b32 {sr(sT0)}, {sr(sTB3)}, 19
        s_add_u32 {sr(sT0)}, {sr(sT0)}, {WS_O}
        s_lshl_b32 {sr(sT1)}, {sr(sTB3)}, 18
        buffer_load_dword v106, off, {sr(SRD_WS,4)}, {sr(sT0)}
        buffer_load_dword v108, off, {sr(SRD_OUT,4)}, {sr(sT1)}
        """)
        ex.append(f"""
        s_mov_b32 {sr(sT0)}, {1024*1024*2 - 4}
        buffer_load_dword v107, off, {sr(SRD_WO,4)}, 0
        buffer_load_dword v109, off, {sr(SRD_WO,4)}, {sr(sT0)}
        """)
    return ex

def dma_unit_static(a, g):
    j, u = divmod(g, 7)
    a(f"s_add_u32 m0, {sr(sW1K)}, {(g % 20) * 8192}")
    if u < 3:
        a(f"s_add_u32 {sr(sT0)}, {sr(sWJ)}, {j * 64 * 6144 + u * 2048}")
        a(f"buffer_load_dwordx4 {vr(vDW)}, {sr(SRD_W,4)}, {sr(sT0)} offen lds")
    else:
        a(f"s_add_u32 {sr(sT0)}, {sr(sXJ)}, {j * 128 + (u - 3) * 131072}")
        a(f"buffer_load_dwordx4 {vr(vDX)}, {sr(SRD_X,4)}, {sr(sT0)} offen lds")

def gate_instrs():
    c = ["v_mov_b32 v12, 0"]
    for i in range(8):
        x, w = 16 + i, 24 + i
        c += [f"v_lshlrev_b32 v13, 16, v{x}", f"v_and_b32 v14, 0xffff0000, v{x}", f"v_lshlrev_b32 v32, 16, v{w}",
              f"v_and_b32 v1, 0xffff0000, v{w}", "v_mul_f32 v13, v13, v32", "v_mul_f32 v14, v14, v1",
              "v_cvt_pk_bf16_f32 v13, v13, v14", "v_lshlrev_b32 v14, 16, v13", "v_and_b32 v13, 0xffff0000, v13",
              "v_add_f32 v12, v12, v14", "v_add_f32 v12, v12, v13"]
    for sh in (1, 2, 4, 8):
        c += [f"s_nop 1\nv_add_f32_dpp v12, v12, v12 row_shr:{sh} row_mask:0xf bank_mask:0xf bound_ctrl:0"]
    c += ["s_nop 1\nv_add_f32_dpp v12, v12, v12 row_bcast:15 row_mask:0xa bank_mask:0xf"]
    c += ["s_nop 1\nv_add_f32_dpp v12, v12, v12 row_bcast:31 row_mask:0xc bank_mask:0xf"]
    c += ["s_nop 1\nv_cvt_pk_bf16_f32 v12, v12, v12", "v_lshlrev_b32 v12, 16, v12", f"v_mul_f32 v12, {hex(f2u(-LOG2E))}, v12",
          "v_exp_f32 v12, v12\ns_nop 0\nv_add_f32 v12, 1.0, v12", "v_rcp_f32 v12, v12\ns_nop 0\nv_cvt_pk_bf16_f32 v12, v12, v12",
          "v_lshlrev_b32 v12, 16, v12", f"v_mov_b32 v13, {WS_G}"]
    st = [f"""s_mov_b32 exec_lo, 0
    s_mov_b32 exec_hi, 0x80000000
    buffer_store_dword v12, v13, {sr(SRD_WS,4)}, {sr(sGOFF)} offen sc1
    s_mov_b64 exec, -1"""]
    return c, st

def frag(set_, name):
    off = {"X0": 0, "X1": 4, "Wq": 8, "Wk": 12, "Wv": 16}[name]
    return FR[set_] + off

def gemm_reads(ks, set_):
    r = []
    r.append(f"ds_read_b128 {vr(frag(set_,'X0'),4)}, {vr(vXA)}")
    for u, nm in enumerate(("Wq", "Wk", "Wv")):
        b = frag(set_, nm)
        r.append(f"ds_read_b64_tr_b16 {vr(b,2)}, {vr(vW0+u)} offset:{ks*2048}")
        r.append(f"ds_read_b64_tr_b16 {vr(b+2,2)}, {vr(vW0+u)} offset:{ks*2048+512}")
        if u == 0:
            r.append(f"ds_read_b128 {vr(frag(set_,'X1'),4)}, {vr(vXA)} offset:4096")
    return r

def gemm_mfmas(set_, first=False):
    m = []
    X0, X1 = frag(set_, "X0"), frag(set_, "X1")
    Wq, Wk, Wv = frag(set_, "Wq"), frag(set_, "Wk"), frag(set_, "Wv")
    def mf(acc, A, B): return f"v_mfma_f32_32x32x16_bf16 {vr(acc,16)}, {vr(A,4)}, {vr(B,4)}, {'0' if first else vr(acc,16)}"
    m.append(mf(ACC + 0, Wq, X0))
    m.append(mf(ACC + 32, Wk, X0))
    m.append(mf(ACC + 64, X0, Wv))
    m.append(mf(ACC + 16, Wq, X1))
    m.append(mf(ACC + 48, Wk, X1))
    m.append(mf(ACC + 80, X1, Wv))
    return m

def wrap_list(dst, src, const, tmp):
    return [f"s_add_u32 {sr(tmp)}, {sr(src)}, {const}", f"s_sub_u32 {dst}, {sr(tmp)}, {RING}", f"s_cselect_b32 {dst}, {sr(tmp)}, {dst}"]

def read_bases_list():
    r = [f"v_add_u32 {vr(vW0)}, {sr(sRING)}, {vr(vWP)}"]
    for u in (1, 2):
        r += wrap_list(sr(sT1), sRING, u * 8192, sT0)
        r.append(f"v_add_u32 {vr(vW0+u)}, {sr(sT1)}, {vr(vWP)}")
    r += [f"s_add_u32 {sr(sT0)}, {sr(sRING)}, {sr(sXQ)}", f"s_sub_u32 {sr(sT1)}, {sr(sT0)}, {RING}",
          f"s_cselect_b32 {sr(sT1)}, {sr(sT0)}, {sr(sT1)}", f"v_add_u32 {vr(vXB)}, {sr(sT1)}, {vr(vXP)}",
          f"v_mov_b32 {vr(vXA)}, {vr(vXB)}"]
    return r

def dma_group(i):
    if OPT.get("g_nodma"): return []
    s = [f"s_add_u32 {sr(sT2)}, {sr(sRINGW)}, {i * 8192}", f"s_sub_u32 m0, {sr(sT2)}, {RING}", f"s_cselect_b32 m0, {sr(sT2)}, m0"]
    if i == 0:
        s.append(f"s_add_u32 {sr(sT3)}, {sr(sXJ)}, {3 * 131072 - 128}")
        s.append(f"buffer_load_dwordx4 {vr(vDX)}, {sr(SRD_X,4)}, {sr(sT3)} offen lds")
    elif i <= 3:
        s.append(f"s_add_u32 {sr(sT3)}, {sr(sWJ)}, {(i - 1) * 2048}")
        s.append(f"buffer_load_dwordx4 {vr(vDW)}, {sr(SRD_W,4)}, {sr(sT3)} offen lds")
    else:
        s.append(f"s_add_u32 {sr(sT3)}, {sr(sXJ)}, {(i - 4) * 131072}")
        s.append(f"buffer_load_dwordx4 {vr(vDX)}, {sr(SRD_X,4)}, {sr(sT3)} offen lds")
    return s

def w_readahead():
    if not OPT.get("wpf", 1): return []
    return [f"buffer_load_dwordx4 v[36:39], {vr(vL16)}, {sr(SRD_W,4)}, {sr(sPF)} offen", f"s_add_u32 {sr(sPF)}, {sr(sPF)}, {1 << 20}"]

def kstep(a, cur, next_ks, gaps_extra, first=False):
    m = gemm_mfmas(cur, first)
    r = gemm_reads(next_ks, cur ^ 1) if next_ks is not None else []
    gaps = [[] for _ in range(6)]
    for i, x in enumerate(r):
        gaps[min(i // 3, 5)].append(x)
    for g in range(6):
        gaps[g] += gaps_extra.get(g, [])
    for i in range(6):
        a(m[i])
        for x in gaps[i]:
            a(x)

def gemm_stage(a, pending, new_batch, vm_wait, first=False, last=False, valu=None, after_bar=None):
    prio = OPT.get("gprio", 1)
    sp = lambda n: [f"s_setprio {n}"] if prio else []
    valu = list(valu or [])
    per = (len(valu) + 2) // 3
    for ks in range(3):
        ex = {}
        mine = [i for i in pending if (i - 2) // 2 == ks]
        if mine:
            ex[2] = dma_group(mine[0])
        if len(mine) > 1:
            ex[4] = dma_group(mine[1])
        chunk = valu[ks * per:(ks + 1) * per]
        n3 = (len(chunk) + 2) // 3
        for k, g in enumerate((1, 3, 5)):
            ex[g] = ex.get(g, []) + chunk[k * n3:(k + 1) * n3]
        ex[0] = sp(2 - ks)
        if ks < 2:
            ex[5] = ex.get(5, []) + [f"v_xor_b32 {vr(vXA)}, {(ks + 2) << 5}, {vr(vXB)}"]
        else:
            upd = [f"s_add_u32 {sr(sRINGW)}, {sr(sRING)}, {sr(sW1K)}", f"s_add_u32 {sr(sXJ)}, {sr(sXJ)}, 128",
                   f"s_add_u32 {sr(sWJ)}, {sr(sWJ)}, {64 * 6144}"] + wrap_list(sr(sRING), sRING, 7 * 8192, sT0)
            ex[3] = ex.get(3, []) + upd
            if not last:
                ex[4] = ex.get(4, []) + read_bases_list()
        a("s_waitcnt lgkmcnt(0)")
        kstep(a, ks & 1, ks + 1, ex, first=(first and ks == 0))
    if OPT.get("stampsg"):
        a("s_waitcnt lgkmcnt(0)")
        gstamp(a, 204)
    if vm_wait is not None:
        a(f"s_waitcnt vmcnt({vm_wait}) lgkmcnt(0)")
    else:
        a("s_waitcnt lgkmcnt(0)")
    if OPT.get("stampsg"): gstamp(a, 205)
    if not OPT.get("g_nobar"): a("s_barrier")
    if OPT.get("stampsg"):
        gstamp(a, 206)
        a("s_add_u32 s87, s87, 1")
    ex = {0: sp(3)}
    if len(new_batch) > 0: ex[2] = dma_group(new_batch[0])
    if len(new_batch) > 1: ex[4] = dma_group(new_batch[1]) + w_readahead()
    if not last:
        ex[5] = [f"v_xor_b32 {vr(vXA)}, {1 << 5}, {vr(vXB)}"]
    if after_bar:
        ex[5] = ex.get(5, []) + after_bar
    kstep(a, 1, None if last else 0, ex)

FR16 = [64, 104]
vW16 = [7, 8, 9, 48, 49, 50]

def g16_reads(step, set_):
    F = FR16[set_]
    r = []
    xs = [f"ds_read_b128 {vr(F + 4*i, 4)}, {vr(vXA)} offset:{i * 2048}" for i in range(4)]
    ws = []
    for u in range(3):
        for ft in range(2):
            b = F + 16 + 4 * (2 * u + ft)
            reg = vW16[u + 3 * ft]
            ws.append(f"ds_read_b64_tr_b16 {vr(b,2)}, {vr(reg)} offset:{step*4096}")
            ws.append(f"ds_read_b64_tr_b16 {vr(b+2,2)}, {vr(reg)} offset:{step*4096+512}")
    return [ws[0], ws[1], xs[0], xs[1], xs[2], xs[3]] + ws[2:]

def g16_mfmas(set_, first=False, order=(0, 1, 2, 3, 4, 5)):
    F = FR16[set_]
    m = []
    for f in order:
        for i in range(4):
            acc = ACC + 4 * (4 * f + i)
            W, X = F + 16 + 4 * f, F + 4 * i
            A, B = (W, X) if f < 4 else (X, W)
            m.append(f"v_mfma_f32_16x16x32_bf16 {vr(acc,4)}, {vr(A,4)}, {vr(B,4)}, {'0' if first else vr(acc,4)}")
    return m

def g16_bases():
    r = [f"v_add_u32 {vr(vW16[0])}, {sr(sRING)}, {vr(vWP)}", f"v_xor_b32 {vr(vW16[3])}, 32, {vr(vW16[0])}"]
    for u in (1, 2):
        r.append("\n".join(wrap_list(sr(sT1), sRING, u * 8192, sT0) + [f"v_add_u32 {vr(vW16[u])}, {sr(sT1)}, {vr(vWP)}"]))
        r.append(f"v_xor_b32 {vr(vW16[3+u])}, 32, {vr(vW16[u])}")
    r.append("\n".join([f"s_add_u32 {sr(sT0)}, {sr(sRING)}, {sr(sXQ)}", f"s_sub_u32 {sr(sT1)}, {sr(sT0)}, {RING}",
          f"s_cselect_b32 {sr(sT1)}, {sr(sT0)}, {sr(sT1)}", f"v_add_u32 {vr(vXB)}, {sr(sT1)}, {vr(vXP)}"]))
    r.append(f"v_mov_b32 {vr(vXA)}, {vr(vXB)}")
    return r

def g16_step(a, cur, next_step, gaps_extra, first=False, order=(0, 1, 2, 3, 4, 5)):
    m = g16_mfmas(cur, first, order)
    r = g16_reads(next_step, cur ^ 1) if next_step is not None else []
    rp = OPT.get("g16_rp", 1)
    for g in range(24):
        a(m[g])
        for x in r[rp * g:rp * g + rp]: a(x)
        for x in gaps_extra.get(g, []): a(x)

def g16_stage(a, pending, new_batch, vm_wait, first=False, last=False, valu=None, after_bar=None, ex1=None):
    prio = OPT.get("gprio", 1)
    sp = lambda n: [f"s_setprio {n}"] if prio else []
    valu = list(valu or [])
    ex = {g: [] for g in range(24)}
    pm = OPT.get("g16_pm", 12)
    ex[0] += sp(1); ex[pm] += sp(0)
    pg = OPT.get("g16_pg", [4, 9, 14])
    def place(ex, g, i):
        grp = dma_group(i)
        if not grp: return
        if OPT.get("g16_spread", 1):
            ex[g - 3].append(grp[0]); ex[g - 2].append(grp[1] + "\n" + grp[2]); ex[g - 1].append(grp[3]); ex[g].append(grp[4])
        else:
            ex[g].append("\n".join(grp))
    for k, i in enumerate(pending):
        place(ex, pg[k], i)
    for k, x in enumerate(valu):
        ex[min(k * 16 // max(len(valu), 1), 15) + (0 if first else 0)].append(x)
    upd = [f"s_add_u32 {sr(sRINGW)}, {sr(sRING)}, {sr(sW1K)}", f"s_add_u32 {sr(sXJ)}, {sr(sXJ)}, 128",
           f"s_add_u32 {sr(sWJ)}, {sr(sWJ)}, {64 * 6144}", "\n".join(wrap_list(sr(sRING), sRING, 7 * 8192, sT0))]
    if not last:
        for k, x in enumerate(upd): ex[16 + k // 2].append(x)
    if not last:
        for k, x in enumerate(g16_bases()): ex[18 + k * 5 // 8].append(x)
    a("s_waitcnt lgkmcnt(0)")
    g16_step(a, 0, 1, ex, first=first)
    if OPT.get("stampsg"):
        gstamp(a, 204)
    if vm_wait is not None:
        a(f"s_waitcnt vmcnt({vm_wait}) lgkmcnt(0)")
    else:
        a("s_waitcnt lgkmcnt(0)")
    if OPT.get("stampsg"): gstamp(a, 205)
    a("s_barrier")
    if OPT.get("stampsg"):
        gstamp(a, 206)
        a("s_add_u32 s87, s87, 1")
    ex = {g: [] for g in range(24)}
    ex[0] += sp(3); ex[pm] += sp(2)
    ng = OPT.get("g16_ng", [3, 8, 13, 18])
    for k, i in enumerate(new_batch):
        place(ex, ng[k], i)
    if len(new_batch) > 1:
        ex[20] += w_readahead()
    if not last:
        ex[22].append(f"v_xor_b32 {vr(vXA)}, 64, {vr(vXB)}")
    if after_bar:
        ex[23] += after_bar
    if ex1:
        for g, l in ex1.items(): ex[g] += l
    g16_step(a, 1, None if last else 0, ex, order=(2, 3, 4, 5, 0, 1) if last else (0, 1, 2, 3, 4, 5))

def gemm(a, opt, extras):
    if OPT.get("stampsg"): a("s_mov_b32 s87, 0")
    a(f"s_add_u32 {sr(sXJ)}, {sr(sXJ)}, {2 * 128}")
    a(f"s_add_u32 {sr(sWJ)}, {sr(sWJ)}, {2 * 64 * 6144}")
    a(f"s_mov_b32 {sr(sRING)}, 0")
    g16 = opt.get("g16", 1)
    for x in (g16_bases() if g16 else read_bases_list()): a(x)
    if opt.get("stamps_start"): timestamp(a, 4, opt)
    if opt.get("span2") or opt.get("span3"): a("s_memrealtime s[82:83]")
    nw = (6 if opt.get("touch", 0) else 0) + (2 if opt.get("xpf", 0) else 0)
    a(f"s_waitcnt vmcnt(7)")
    if opt.get("stamps_start"): timestamp(a, 5, opt)
    a("s_barrier")
    if opt.get("dbg_span"): dbg_span(a, "g0")
    if opt.get("span3"):
        sk = a.label("sk3")
        a(f"s_memrealtime s[76:77]")
        a(f"s_cmp_eq_u32 s2, {opt['span3']}")
        a(f"s_cbranch_scc0 {sk}")
        a(f"s_cmp_eq_u32 {sr(sW)}, 0")
        a(f"s_cbranch_scc0 {sk}")
        a("s_waitcnt lgkmcnt(0)")
        for reg, off in ((84, 4), (78, 12), (80, 20), (82, 28), (76, 36)):
            a(f"v_mov_b32 v12, s{reg}")
            a(f"s_mov_b32 s93, {off}")
            a("s_mov_b64 exec, 1")
            a(f"buffer_store_dword v12, off, {sr(SRD_DBG,4)}, s93 sc1")
            a("s_mov_b64 exec, -1")
        a(f"{sk}:")
    if opt.get("span2"):
        sk = a.label("sk2")
        a(f"s_memrealtime s[76:77]")
        a(f"s_cmp_eq_u32 {sr(sW)}, 0")
        a(f"s_cbranch_scc0 {sk}")
        a("s_waitcnt lgkmcnt(0)")
        a("s_not_b32 s75, s84")
        for reg, off in ((75, 4), (84, 60), (78, 20), (80, 36), (82, 52), (76, 44)):
            a(f"v_mov_b32 v12, s{reg}")
            a(f"s_mov_b32 s93, {off}")
            a("s_mov_b64 exec, 1")
            a(f"buffer_atomic_umax v12, off, {sr(SRD_DBG,4)}, s93 sc1")
            a("s_mov_b64 exec, -1")
        a(f"{sk}:")
    if opt.get("stamps_start"): timestamp(a, 6, opt)
    if g16:
        for x in g16_reads(0, 0): a(x)
        a(f"v_xor_b32 {vr(vXA)}, 64, {vr(vXB)}")
        g16_stage(a, [], [0, 1, 2, 3], 10 + nw, first=True, valu=extras)
    else:
        for x in gemm_reads(0, 0):
            a(x)
        a(f"v_xor_b32 {vr(vXA)}, {1 << 5}, {vr(vXB)}")
        gemm_stage(a, [], [0, 1], 10 + nw, first=True, valu=extras)
    a(f"s_mov_b32 {sr(sJ)}, 12")
    lab = a.label("gemm")
    a(".p2align 6")
    a(f"{lab}:")
    npf = 1 if opt.get("wpf", 1) else 0
    if g16: g16_stage(a, [4, 5, 6], [0, 1, 2, 3], 6 + npf)
    else: gemm_stage(a, [2, 3, 4, 5, 6], [0, 1], 6 + npf)
    nc = a.label("nc"); nd = a.label("nd")
    a(f"s_cmp_eq_u32 {sr(sJ)}, {sr(sARRJ)}")
    a(f"s_cbranch_scc0 {nd}")
    a(f"""
    v_mov_b32 v12, 1
    s_mov_b64 exec, 1
    buffer_atomic_add v12, off, {sr(SRD_DBG,4)}, {sr(sCNT)} sc1
    s_mov_b64 exec, -1
    s_nop 3
    """)
    a(f"{nd}:")
    a(f"s_cmp_eq_u32 {sr(sJ)}, {sr(sCHKJ)}")
    a(f"s_cbranch_scc0 {nc}")
    a(f"v_lshlrev_b32 v12, 2, v0")
    a(f"buffer_load_dword {vr(vCHK)}, v12, {sr(SRD_DBG,4)}, 0 offen sc1")
    a(f"{nc}:")
    a(f"s_sub_u32 {sr(sJ)}, {sr(sJ)}, 1")
    a(f"s_cmp_lg_u32 {sr(sJ)}, 0")
    a(f"s_cbranch_scc1 {lab}")
    gc, gs = gate_instrs()
    if g16:
        g16_stage(a, [4, 5, 6], [0], 6 + npf)
        g16_stage(a, [], [], 0, valu=gc, after_bar=gs + ["s_nop 3"])
        g16_stage(a, [], [], None, last=True, valu=setup_scalar_items(), ex1=last_step_items())
    else:
        gemm_stage(a, [2, 3, 4, 5, 6], [0], 6 + npf)
        gemm_stage(a, [], [], 0, valu=gc, after_bar=gs + ["s_nop 3"])
        gemm_stage(a, [], [], None, last=True)
    a("s_setprio 0")
    a("s_nop 15")

vLK = 7

def g16_pack(a, dst, t0, t1):
    a(f"v_cvt_pk_bf16_f32 v{dst}, v{t0}, v{t0+1}")
    a(f"v_cvt_pk_bf16_f32 v{dst+1}, v{t0+2}, v{t0+3}")
    a(f"v_cvt_pk_bf16_f32 v{dst+2}, v{t1}, v{t1+1}")
    a(f"v_cvt_pk_bf16_f32 v{dst+3}, v{t1+2}, v{t1+3}")

def g16_swap(a, dst):
    a(f"v_permlane16_swap_b32 v{dst}, v{dst+2}")
    a(f"v_permlane16_swap_b32 v{dst+1}, v{dst+3}")

SS16 = SS

def kreg(T, f):
    return ACC + 32 + 16 * f + 8 * T if OPT.get("g16", 1) else ACC + 32 + 16 * T + 4 * f
def vreg(T, t):
    return ACC + 64 + 4 * (2 * T + t) if OPT.get("g16", 1) else ACC + 64 + 16 * T + 4 * t

sOWN = 3

def setup_scalar_items():
    return [f"""v_bfe_u32 v12, v0, 2, 1
    v_and_b32 v13, 3, v0
    v_mov_b32 v14, 0x3f803f80
    v_cmp_gt_u32 vcc, 2, v13""",
    f"""; sparse ones operand: row m = l&15 (r = m&3 < 2) sums the lane groups with parity (m>>2)&1; index picks register r of each pair
    v_cndmask_b32 v14, 0, v14, vcc
    v_cmp_eq_u32 vcc, 0, v12
    s_nop 1
    v_cndmask_b32 v{ONES}, 0, v14, vcc
    v_cndmask_b32 v{ONES+2}, v14, 0, vcc""",
    f"""v_mov_b32 v{ONES+1}, v{ONES}
    v_mov_b32 v{ONES+3}, v{ONES+2}
    v_mov_b32 v14, 0x4444
    v_mov_b32 v12, 0xeeee""",
    f"""v_cmp_eq_u32 vcc, 1, v13
    s_nop 1
    v_cndmask_b32 v{IDX}, v14, v12, vcc""",
    f"""s_lshl_b32 {sr(sT1)}, {sr(sHP)}, 1
    s_add_u32 {sr(sT1)}, {sr(sT1)}, {sr(sHH)}
    s_lshl_b32 {sr(sKVSRC)}, {sr(sT1)}, 18""",
    f"""s_lshl_b32 {sr(sT1)}, {sr(sTB)}, 15
    s_lshl_b32 {sr(sT0)}, {sr(sTQ)}, 13
    s_add_u32 {sr(sT1)}, {sr(sT1)}, {sr(sT0)}
    s_add_u32 {sr(sKVO)}, {sr(sT1)}, {sr(sKVSRC)}""",
    f"""s_lshl_b32 {sr(sT0)}, {sr(sHH)}, 14
    s_lshl_b32 {sr(sT1)}, {sr(sTQ)}, 12
    s_add_u32 {sr(sLDSW)}, {sr(sT0)}, {sr(sT1)}
    s_add_u32 {sr(sKVSRC)}, {sr(sKVSRC)}, {sr(sT1)}""",
    f"""s_lshl_b32 {sr(sSRC)}, {sr(sTB)}, 1
    s_add_u32 {sr(sSRC)}, {sr(sSRC)}, 2
    s_and_b32 {sr(sSRC)}, {sr(sSRC)}, 15
    s_lshl_b32 {sr(sSRC)}, {sr(sSRC)}, 14""",
    f"""s_mov_b32 {sr(sSLOT)}, {2 * 32768}
    s_mov_b32 {sr(sJ)}, 0
    s_lshl_b32 {sr(sWOFF)}, {sr(sCB)}, 7""",
    f"""s_lshl_b32 {sr(sLDSW3)}, {sr(sHH)}, 13
    s_lshl_b32 {sr(sT0)}, {sr(sTQ)}, 11
    s_add_u32 {sr(sLDSW3)}, {sr(sLDSW3)}, {sr(sT0)}""",
    f"""; own K/V tiles in LDS: (tq>>1)*32768 + hh*16384 + 2*(tq&1)*4096
    s_lshr_b32 {sr(sT1)}, {sr(sTQ)}, 1
    s_lshl_b32 {sr(sT1)}, {sr(sT1)}, 15
    s_lshl_b32 {sr(sT0)}, {sr(sHH)}, 14
    s_add_u32 {sr(sT1)}, {sr(sT1)}, {sr(sT0)}""",
    f"""s_and_b32 {sr(sT0)}, {sr(sTQ)}, 1
    s_lshl_b32 {sr(sT0)}, {sr(sT0)}, 13
    s_add_u32 {sr(sOWN)}, {sr(sT1)}, {sr(sT0)}"""]

def setup_vector_items():
    it = [f"""s_lshl_b32 {sr(sT0)}, {sr(sHH)}, 14
    v_add_u32 {vr(vKVB)}, {sr(sT0)}, {vr(vL16)}
    v_mov_b32 {vr(vCUR)}, {vr(vKVB)}
    v_add_u32 {vr(vNXT)}, 32768, {vr(vKVB)}
    v_add_u32 {vr(vDMA)}, {sr(sKVSRC)}, {vr(vL16)}
    v_lshlrev_b32 {vr(vPA)}, 2, v0""",
    f"""; key index with bits 2 and 3 swapped: the score rows then match the order of the V slots
    v_and_b32 v12, 0x33, v0
    v_bfe_u32 v13, v0, 2, 1
    v_bfe_u32 v14, v0, 3, 1""",
    f"""v_lshl_add_u32 v12, v13, 3, v12
    v_lshl_add_u32 v12, v14, 2, v12
    v_lshlrev_b32 {vr(vLK)}, 4, v12""",
    f"""; weights of the output projection: rows 16tt .. 16tt+15 of every stage (two pieces per wave)
    v_lshrrev_b32 v12, 3, v0
    v_and_b32 v13, 7, v0
    v_bfe_u32 v14, v12, 1, 1
    v_lshlrev_b32 v14, 2, v14""",
    f"""v_xor_b32 v13, v13, v14
    s_and_b32 {sr(sT0)}, {sr(sTQ)}, {1 if OPT.get("p16", 1) else 0}
    s_lshl_b32 {sr(sT0)}, {sr(sT0)}, 1
    v_xor_b32 v13, {sr(sT0)}, v13
    s_lshl_b32 {sr(sT0)}, {sr(sTQ)}, 4
    v_add_u32 v12, {sr(sT0)}, v12
    v_lshlrev_b32 {vr(vDW3)}, 11, v12
    v_lshl_add_u32 {vr(vDW3)}, v13, 4, {vr(vDW3)}"""]
    it.append("\n".join(f"v_mov_b32 v{LA+i}, 0" for i in range(4)))
    it.append("\n".join(f"v_mov_b32 v{LA+4+i}, 0" for i in range(4)))
    return it

def last_step_items():
    def tile(f, i): return ACC + 4 * (4 * f + i)
    def pack(dst, t0, t1):
        return "\n".join([f"v_cvt_pk_bf16_f32 v{dst}, v{t0}, v{t0+1}", f"v_cvt_pk_bf16_f32 v{dst+1}, v{t0+2}, v{t0+3}",
                          f"v_cvt_pk_bf16_f32 v{dst+2}, v{t1}, v{t1+1}", f"v_cvt_pk_bf16_f32 v{dst+3}, v{t1+2}, v{t1+3}"])
    def swap(dst):
        return f"v_permlane16_swap_b32 v{dst}, v{dst+2}\nv_permlane16_swap_b32 v{dst+1}, v{dst+3}"
    ex = {g: [] for g in range(24)}
    vi = setup_vector_items()
    for k, x in enumerate(vi): ex[[1, 3, 5, 8, 9, 10, 11][k]].append(x)
    kk = [(T, ft) for ft in range(2) for T in range(2)]
    for k, (T, ft) in enumerate(kk):
        ex[12 + k].append(pack(kreg(T, ft), tile(2 + ft, 2 * T), tile(2 + ft, 2 * T + 1)))
    for k, (T, ft) in enumerate(kk):
        ex[16 + k].append(swap(kreg(T, ft)))
    vv = [(T, t) for T in range(2) for t in range(2)]
    for k, (T, t) in enumerate(vv):
        ex[20 + k].append(pack(vreg(T, t), tile(4, 2 * T + t), tile(5, 2 * T + t)))
    return ex

def gemm_epilogue16(a, opt):
    def tile(f, i): return ACC + 4 * (4 * f + i)
    a("s_nop 1")
    for T in range(2):
        for f in range(2): g16_swap(a, vreg(T, f))
    if opt.get("half", 1):
        late = a.label("late")
        a(f"s_cmp_lt_u32 {sr(sTQ)}, 2")
        a(f"s_cbranch_scc0 {late}")
        kv_stores(a)
        a(f"{late}:")
    else:
        kv_stores(a)
    a(f"s_mov_b32 {sr(sT2)}, {hex(f2u(QSCALE))}")
    a(f"s_mov_b32 {sr(sT3)}, {hex(f2u(QSCALE))}")
    for k in range(16):
        a(f"v_pk_mul_f32 {vr(ACC+2*k,2)}, {vr(ACC+2*k,2)}, {sr(sT2,2)}")
    for T in range(2):
        for ft in range(2):
            g16_pack(a, QF + 8 * T + 4 * ft, tile(ft, 2 * T), tile(ft, 2 * T + 1))
    a("s_nop 1")
    for k in range(4): g16_swap(a, QF + 4 * k)
    a("s_nop 1")
    for x in range(2):
        S, Q = SS16 + 16 * x, QF + 8 * x
        a(f"v_mfma_f32_32x32x16_bf16 {vr(S,16)}, {vr(kreg(0,0),4)}, {vr(Q,4)}, 0")
        a(f"v_mfma_f32_32x32x16_bf16 {vr(S,16)}, {vr(kreg(0,1),4)}, {vr(Q+4,4)}, {vr(S,16)}")
    a(f"""
    v_add_u32 v12, {sr(sOWN)}, {vr(vL16)}
    v_add_u32 v13, {sr(sOWN)}, {vr(vLK)}
    """)
    for tt in range(2):
        a(f"ds_write_b128 v13, {vr(kreg(tt,0),4)} offset:{tt*4096}")
        a(f"ds_write_b128 v13, {vr(kreg(tt,1),4)} offset:{tt*4096+1024}")
        a(f"ds_write_b128 v12, {vr(vreg(tt,0),4)} offset:{tt*4096+2048}")
        a(f"ds_write_b128 v12, {vr(vreg(tt,1),4)} offset:{tt*4096+3072}")

def gemm_epilogue(a, opt):
    if opt.get("g16", 1):
        return gemm_epilogue16(a, opt)
    for tile in (2, 3, 4, 5):
        b = ACC + 16 * tile
        for i in range(8):
            a(f"v_cvt_pk_bf16_f32 v{b+i}, v{b+2*i}, v{b+2*i+1}")
    a(f"""
    s_lshl_b32 {sr(sT1)}, {sr(sHP)}, 1
    s_add_u32 {sr(sT1)}, {sr(sT1)}, {sr(sHH)}
    s_lshl_b32 {sr(sKVSRC)}, {sr(sT1)}, 18
    s_lshl_b32 {sr(sT1)}, {sr(sTB)}, 15
    s_lshl_b32 {sr(sT2)}, {sr(sTQ)}, 13
    s_add_u32 {sr(sT1)}, {sr(sT1)}, {sr(sT2)}
    s_add_u32 {sr(sKVO)}, {sr(sT1)}, {sr(sKVSRC)}
    """)
    if opt.get("half", 1):
        late = a.label("late")
        a(f"s_cmp_lt_u32 {sr(sTQ)}, 2")
        a(f"s_cbranch_scc0 {late}")
        kv_stores(a)
        a(f"{late}:")
    else:
        kv_stores(a)
    a(f"s_mov_b32 {sr(sT2)}, {hex(f2u(QSCALE))}")
    a(f"s_mov_b32 {sr(sT3)}, {hex(f2u(QSCALE))}")
    for tt in range(2):
        b = ACC + 16 * tt
        for i in range(8):
            a(f"v_pk_mul_f32 {vr(b+2*i,2)}, {vr(b+2*i,2)}, {sr(sT2,2)}")
        for i in range(8):
            a(f"v_cvt_pk_bf16_f32 v{QF+8*tt+i}, v{b+2*i}, v{b+2*i+1}")
    kb = ACC + 32
    a("s_nop 1")
    for x in range(2):
        S, Q = SS + 16 * x, QF + 8 * x
        a(f"v_mfma_f32_32x32x16_bf16 {vr(S,16)}, {vr(kb,4)}, {vr(Q,4)}, 0")
        a(f"v_mfma_f32_32x32x16_bf16 {vr(S,16)}, {vr(kb+4,4)}, {vr(Q+4,4)}, {vr(S,16)}")
    a(f"""
    s_lshr_b32 {sr(sT1)}, {sr(sTQ)}, 1
    s_lshl_b32 {sr(sT1)}, {sr(sT1)}, 15
    s_lshl_b32 {sr(sT2)}, {sr(sHH)}, 14
    s_add_u32 {sr(sT1)}, {sr(sT1)}, {sr(sT2)}
    s_and_b32 {sr(sT2)}, {sr(sTQ)}, 1
    s_lshl_b32 {sr(sT2)}, {sr(sT2)}, 13
    s_add_u32 {sr(sT1)}, {sr(sT1)}, {sr(sT2)}
    v_add_u32 v12, {sr(sT1)}, {vr(vL16)}
    """)
    for tt in range(2):
        kb, vb = ACC + 32 + 16 * tt, ACC + 64 + 16 * tt
        a(f"ds_write_b128 v12, {vr(kb,4)} offset:{tt*4096}")
        a(f"ds_write_b128 v12, {vr(kb+4,4)} offset:{tt*4096+1024}")
        a(f"ds_write_b128 v12, {vr(vb,4)} offset:{tt*4096+2048}")
        a(f"ds_write_b128 v12, {vr(vb+4,4)} offset:{tt*4096+3072}")
    if opt.get("dump_q"):
        a(f"""
        s_lshl_b32 {sr(sT1)}, s2, 3
        s_add_u32 {sr(sT1)}, {sr(sT1)}, {sr(sW)}
        s_lshl_b32 {sr(sT1)}, {sr(sT1)}, 12
        s_add_u32 {sr(sT1)}, {sr(sT1)}, {WS_DBG}
        """)
        for i in range(4):
            a(f"buffer_store_dwordx4 {vr(QF+4*i,4)}, {vr(vL16)}, {sr(SRD_WS,4)}, {sr(sT1)} offen offset:{i*1024}")

def smf(L):
    return f"v_smfmac_f32_16x16x64_bf16 {vr(L,4)}, {vr(ONES,4)}, {vr(PP,8)}, {vr(IDX)}"

def attn_unit(a, t, x, hooks, skip_prev=False, c_zero=False):
    S = SS + 16 * x
    Sn = SS + 16 * (x ^ 1)
    xn = xp = x ^ 1
    Qn = QF + 8 * xn
    P0, P1 = PP, PP + 4
    def M(d, A, B, C): return f"v_mfma_f32_32x32x16_bf16 {vr(d,16)}, {vr(A,4)}, {vr(B,4)}, {C}"
    e = lambda i: f"v_exp_f32 v{S+i}, v{S+i}"
    c = lambda i: f"v_cvt_pk_bf16_f32 v{PP+i}, v{S+2*i}, v{S+2*i+1}"
    mf = [M(Sn, KF, Qn, vr(NM + 16 * xn, 16)),
          None if skip_prev else M(OA + 16 * xp, VF + 4, P1, vr(OA + 16 * xp, 16)),
          None if skip_prev else smf(LA + 4 * xp),
          M(Sn, KF + 4, Qn + 4, vr(Sn, 16)),
          M(OA + 16 * x, VF, P0, "0" if c_zero else vr(OA + 16 * x, 16))]
    va = [[e(0), e(1), e(2)], [e(3), e(4), e(5)], [e(6), e(7), c(0), c(1), c(2), c(3)],
          [e(8), e(9), e(10)], [e(11), e(12), e(13), e(14), e(15), c(4), c(5), c(6), c(7)]]
    for g in range(5):
        if mf[g]: a(mf[g])
        for h in hooks.get(g, []):
            a(h)
        for v in va[g]:
            a(v)

def kv_addr(tile, f):
    if tile < 4:
        return vCUR, tile * 4096 + f * 1024
    return vNXT, f * 1024

def rd(dst, tile, f):
    b, o = kv_addr(tile, f)
    return f"ds_read_b128 {vr(dst,4)}, {vr(b)} offset:{o}"

def kv_dma(p, so):
    return f"buffer_load_dwordx4 {vr(vDMA)}, {sr(SRD_WS,4)}, {sr(so)} offen offset:{p*1024} sc1 lds"

def sample_mailbox(a, off_s, lanes):
    sk = a.label("smp")
    a(f"s_cmp_eq_u32 {sr(sW)}, 0")
    a(f"s_cbranch_scc0 {sk}")
    a(f"s_mov_b32 exec_lo, {hex(lanes)}")
    a("s_mov_b32 exec_hi, 0")
    a(f"buffer_load_dword {vr(vPV)}, {vr(vPA)}, {sr(SRD_WS,4)}, {sr(off_s)} offen sc1")
    a("s_mov_b64 exec, -1")
    a("s_nop 3")
    a(f"{sk}:")

def poll_mailbox(a, want_all):
    poll, done = a.label("poll"), a.label("pdone")
    a(f"s_mov_b32 {sr(sT1)}, 400000")
    a(f"s_add_u32 {sr(sT2)}, {sr(sTB)}, 1")
    a(f"s_and_b32 {sr(sT2)}, {sr(sT2)}, 7")
    a(f"s_lshl_b32 {sr(sT2)}, 1, {sr(sT2)}")
    if want_all == "b1a2":
        a(f"s_lshl_b32 {sr(sT2)}, {sr(sT2)}, 8")
        a(f"s_add_u32 {sr(sT3)}, {sr(sTB)}, 2")
        a(f"s_and_b32 {sr(sT3)}, {sr(sT3)}, 7")
        a(f"s_lshl_b32 {sr(sT3)}, 1, {sr(sT3)}")
        a(f"s_or_b32 {sr(sT2)}, {sr(sT2)}, {sr(sT3)}")
    elif want_all:
        a(f"s_mov_b32 {sr(sT2)}, {0xffff if OPT.get('half', 1) else 0xff}")
    a("s_mov_b64 exec, 0xffff")
    a(f"{poll}:")
    a("s_waitcnt vmcnt(0)")
    a(f"v_cmp_eq_u32 vcc, 1, {vr(vPV)}")
    a("s_nop 3")
    a(f"s_and_b32 {sr(sT3)}, vcc_lo, {sr(sT2)}")
    a(f"s_cmp_eq_u32 {sr(sT3)}, {sr(sT2)}")
    a(f"s_cbranch_scc1 {done}")
    a(f"s_sub_u32 {sr(sT1)}, {sr(sT1)}, 1")
    a(f"s_cbranch_scc1 {done}")
    a(f"buffer_load_dword {vr(vPV)}, {vr(vPA)}, {sr(SRD_WS,4)}, {sr(sMB)} offen sc1")
    a(f"s_branch {poll}")
    a(f"{done}:")
    a("s_mov_b64 exec, -1")

def publish(a):
    spin, ok = a.label("rdy"), a.label("rdyok")
    a(f"s_mov_b32 {sr(sT1)}, 400000")
    a(f"s_mov_b32 {sr(sT2)}, 0x55555555")
    a(f"v_lshlrev_b32 v12, 2, v0")
    a(f"{spin}:")
    a(f"v_cmp_eq_u32 vcc, 8, {vr(vCHK)}")
    a("s_nop 3")
    a(f"s_and_b32 {sr(sT0)}, vcc_lo, {sr(sT2)}")
    a(f"s_and_b32 {sr(sT3)}, vcc_hi, {sr(sT2)}")
    a(f"s_and_b32 {sr(sT0)}, {sr(sT0)}, {sr(sT3)}")
    a(f"s_cmp_eq_u32 {sr(sT0)}, {sr(sT2)}")
    a(f"s_cbranch_scc1 {ok}")
    a(f"s_sub_u32 {sr(sT1)}, {sr(sT1)}, 1")
    a(f"s_cbranch_scc1 {ok}")
    a(f"buffer_load_dword {vr(vCHK)}, v12, {sr(SRD_DBG,4)}, 0 offen sc1")
    a("s_waitcnt vmcnt(0)")
    a(f"s_branch {spin}")
    a(f"{ok}:")
    a(f"""
    s_lshl_b32 {sr(sT0)}, {sr(sHP)}, 10
    s_lshl_b32 {sr(sT1)}, {sr(sTB)}, 2
    s_add_u32 {sr(sT0)}, {sr(sT0)}, {sr(sT1)}
    s_add_u32 {sr(sT0)}, {sr(sT0)}, {WS_MB}
    v_lshlrev_b32 v12, 7, v0
    v_mov_b32 v13, 1
    s_mov_b64 exec, 0xff
    buffer_store_dword v13, v12, {sr(SRD_WS,4)}, {sr(sT0)} offen sc1
    s_mov_b64 exec, -1
    """)

def publish_b(a):
    a(f"""
    s_lshl_b32 {sr(sT0)}, {sr(sHP)}, 10
    s_lshl_b32 {sr(sT1)}, {sr(sTB)}, 2
    s_add_u32 {sr(sT0)}, {sr(sT0)}, {sr(sT1)}
    s_add_u32 {sr(sT0)}, {sr(sT0)}, {WS_MB + 32}
    v_lshlrev_b32 v12, 7, v0
    v_mov_b32 v13, 1
    s_mov_b64 exec, 0xff
    buffer_store_dword v13, v12, {sr(SRD_WS,4)}, {sr(sT0)} offen sc1
    s_mov_b64 exec, -1
    """)

def kv_stores(a):
    a(f"s_add_u32 {sr(sT2)}, {sr(sKVO)}, 4096")
    for tt in range(2):
        so = sKVO if tt == 0 else sT2
        vk = vLK if OPT.get("g16", 1) else vL16
        a(f"buffer_store_dwordx4 {vr(kreg(tt,0),4)}, {vr(vk)}, {sr(SRD_WS,4)}, {sr(so)} offen sc1")
        a(f"buffer_store_dwordx4 {vr(kreg(tt,1),4)}, {vr(vk)}, {sr(SRD_WS,4)}, {sr(so)} offen offset:1024 sc1")
        a(f"buffer_store_dwordx4 {vr(vreg(tt,0),4)}, {vr(vL16)}, {sr(SRD_WS,4)}, {sr(so)} offen offset:2048 sc1")
        a(f"buffer_store_dwordx4 {vr(vreg(tt,1),4)}, {vr(vL16)}, {sr(SRD_WS,4)}, {sr(so)} offen offset:3072 sc1")

def wo_piece(i, half):
    return [f"s_add_u32 {sr(sT0)}, {sr(sROT)}, {i}", f"s_and_b32 {sr(sT0)}, {sr(sT0)}, 15", f"s_lshl_b32 {sr(sT0)}, {sr(sT0)}, 17",
            f"s_add_u32 {sr(sT0)}, {sr(sT0)}, {sr(sWOFF)}"] + ([f"s_add_u32 {sr(sT0)}, {sr(sT0)}, 16384"] if half else []) + \
           [f"s_add_u32 m0, {sr(sLDSW3)}, {(i % NSLOT3) * 16384 + half * 1024}", "s_nop 0",
            f"buffer_load_dwordx4 {vr(vDW3)}, {sr(SRD_WO,4)}, {sr(sT0)} offen lds"]

def attn_stage(a, opt, kind, s_=None):
    prio = opt.get("prio", 1)
    def sp(n): return [f"s_setprio {n}"] if prio else []
    for t in range(4):
        h0 = {0: [rd(KF, t + 1, 0)], 1: [rd(VF + 4, t, 3)], 2: ["s_waitcnt lgkmcnt(2)"],
              3: [rd(KF + 4, t + 1, 1)], 4: ["s_waitcnt lgkmcnt(2)"]}
        h1 = {0: ["s_waitcnt lgkmcnt(1)"], 1: [], 2: ["s_waitcnt lgkmcnt(0)"], 3: [], 4: [rd(VF, t + 1, 2)]}
        if (kind == 1 and t in (0, 2)) or (kind == 4 and t == 2):
            sample_mailbox(a, sMB, 0xffff)
        if t == 0:
            h0[0] += sp(2)
            h0[4] += [f"s_mov_b32 {sr(sNXT)}, {sr(sSLOT)}"]
            h1[1] = [f"s_add_u32 {sr(sSRC)}, {sr(sSRC)}, 16384"]
            h1[3] = [f"s_and_b32 {sr(sSRC)}, {sr(sSRC)}, 0x3ffff"]
        if t == 1:
            h0[0] += sp(1)
            h1[1] = [f"s_add_u32 {sr(sSLOT)}, {sr(sSLOT)}, 32768"]
            h1[3] = [f"s_and_b32 {sr(sSLOT)}, {sr(sSLOT)}, 0x1ffff"]
            if kind == 0:
                h1[4] += ["s_waitcnt vmcnt(0)", "s_barrier"]
            if kind == 3 and s_ == 13:
                h0[2] += wo_piece(8, 0)
                h0[4] += wo_piece(8, 1)
                h1[0] += wo_piece(9, 0)
                h1[2] += wo_piece(9, 1)
            if kind == 1:
                go = a.label("go")
                lanestamp(a, 203, opt, 0)
                half = opt.get("half", 1)
                if half: a("s_waitcnt vmcnt(0)")
                a(f"s_cmp_eq_u32 {sr(sW)}, 0")
                a(f"s_cbranch_scc0 {go}")
                poll_mailbox(a, False)
                a(f"{go}:")
                lanestamp(a, 203, opt, 1)
                a("s_barrier")
                lanestamp(a, 203, opt, 2)
                for st in ((2,) if half else (2, 3)):
                    a(f"""
                    s_lshl_b32 {sr(sT0)}, {sr(sTB)}, 1
                    s_add_u32 {sr(sT0)}, {sr(sT0)}, {st}
                    s_and_b32 {sr(sT0)}, {sr(sT0)}, 15
                    s_lshl_b32 {sr(sOFFS)}, {sr(sT0)}, 14
                    s_add_u32 m0, {sr(sLDSW)}, {st * 32768}
                    s_nop 0
                    """)
                    for p in range(4):
                        a(kv_dma(p, sOFFS))
                if half:
                    nb = a.label("nb")
                    a(f"s_cmp_eq_u32 {sr(sW)}, 0")
                    a(f"s_cbranch_scc0 {nb}")
                    publish_b(a)
                    a(f"{nb}:")
        if t == 2:
            h0[0] += sp(0)
            h1[1] = [f"s_add_u32 m0, {sr(sSLOT)}, {sr(sLDSW)}"]
            h1[3] = [f"s_add_u32 {sr(sJ)}, {sr(sJ)}, 1"]
            if kind == 0:
                h1[4] += ["s_barrier"] + sp(3)
                if opt.get("half", 1):
                    ns = a.label("ns")
                    a(f"s_cmp_ge_u32 {sr(sTQ)}, 2")
                    a(f"s_cbranch_scc0 {ns}")
                    kv_stores(a)
                    a(f"{ns}:")
                np_ = a.label("np")
                a(f"s_cmp_eq_u32 {sr(sW)}, 0")
                a(f"s_cbranch_scc0 {np_}")
                publish(a)
                a(f"{np_}:")
            elif kind == 3 and s_ == 15:
                h1[4] += ["s_barrier"] + sp(3)
            elif kind == 3:
                h1[4] += ["s_waitcnt vmcnt(8)", "s_barrier"] + sp(3)
            elif kind not in (1, 4):
                h1[4] += ["s_waitcnt vmcnt(4)", "s_barrier"] + sp(3)
        if t == 3:
            if kind == 3:
                q = s_ - 13
                h0[2] += wo_piece(2 * q, 0)
                h0[4] += wo_piece(2 * q, 1)
                h1[1] = wo_piece(2 * q + 1, 0)
                h1[3] = wo_piece(2 * q + 1, 1)
            elif kind != 0:
                h0[2] += [kv_dma(0, sSRC)]
                h0[4] += [kv_dma(1, sSRC)]
                h1[1] = [kv_dma(2, sSRC)]
                h1[3] = [kv_dma(3, sSRC)]
            if kind == 1:
                go = a.label("go")
                a(f"s_cmp_eq_u32 {sr(sW)}, 0")
                a(f"s_cbranch_scc0 {go}")
                poll_mailbox(a, "b1a2" if opt.get("prog", 1) and opt.get("half", 1) else True)
                a(f"{go}:")
                if opt.get("half", 1):
                    a("s_waitcnt vmcnt(0)")
                    a("s_barrier")
                    a(f"""
                    s_lshl_b32 {sr(sT0)}, {sr(sTB)}, 1
                    s_add_u32 {sr(sT0)}, {sr(sT0)}, 3
                    s_and_b32 {sr(sT0)}, {sr(sT0)}, 15
                    s_lshl_b32 {sr(sOFFS)}, {sr(sT0)}, 14
                    s_add_u32 m0, {sr(sLDSW)}, {3 * 32768}
                    s_nop 0
                    """)
                    for p in range(4):
                        a(kv_dma(p, sOFFS))
                    a(f"s_add_u32 m0, {sr(sSLOT)}, {sr(sLDSW)}")
                else:
                    a("s_waitcnt vmcnt(4)")
                    a("s_barrier")
                for x in sp(3): a(x)
            if kind == 4:
                go = a.label("go")
                a(f"s_cmp_eq_u32 {sr(sW)}, 0")
                a(f"s_cbranch_scc0 {go}")
                poll_mailbox(a, True)
                a(f"{go}:")
                a("s_waitcnt vmcnt(4)")
                a("s_barrier")
                for x in sp(3): a(x)
        first = kind == 0 and t == 0
        attn_unit(a, t, 0, h0, skip_prev=first, c_zero=first)
        attn_unit(a, t, 1, h1, c_zero=first)
    a(f"v_mov_b32 {vr(vCUR)}, {vr(vNXT)}")
    a(f"v_add_u32 {vr(vNXT)}, {sr(sNXT)}, {vr(vKVB)}")

def attention(a, opt):
    if not opt.get("g16", 1):
        a(f"""
    v_bfe_u32 v12, v0, 2, 1
    v_and_b32 v13, 3, v0
    v_mov_b32 v14, 0x3f803f80
    v_cmp_gt_u32 vcc, 2, v13
    s_nop 1
    v_cndmask_b32 v14, 0, v14, vcc
    v_cmp_eq_u32 vcc, 0, v12
    s_nop 1
    v_cndmask_b32 v{ONES}, 0, v14, vcc
    v_cndmask_b32 v{ONES+2}, v14, 0, vcc
    v_mov_b32 v{ONES+1}, v{ONES}
    v_mov_b32 v{ONES+3}, v{ONES+2}
    v_mov_b32 v14, 0x4444
    v_mov_b32 v12, 0xeeee
    v_cmp_eq_u32 vcc, 1, v13
    s_nop 1
    v_cndmask_b32 v{IDX}, v14, v12, vcc
    s_lshl_b32 {sr(sT0)}, {sr(sHH)}, 14
    v_add_u32 {vr(vKVB)}, {sr(sT0)}, {vr(vL16)}
    v_mov_b32 {vr(vCUR)}, {vr(vKVB)}
    v_add_u32 {vr(vNXT)}, 32768, {vr(vKVB)}
    s_lshl_b32 {sr(sT1)}, {sr(sTQ)}, 12
    s_add_u32 {sr(sLDSW)}, {sr(sT0)}, {sr(sT1)}
    s_add_u32 {sr(sKVSRC)}, {sr(sKVSRC)}, {sr(sT1)}
    v_add_u32 {vr(vDMA)}, {sr(sKVSRC)}, {vr(vL16)}
    s_lshl_b32 {sr(sSRC)}, {sr(sTB)}, 1
    s_add_u32 {sr(sSRC)}, {sr(sSRC)}, 2
    s_and_b32 {sr(sSRC)}, {sr(sSRC)}, 15
    s_lshl_b32 {sr(sSRC)}, {sr(sSRC)}, 14
    s_mov_b32 {sr(sSLOT)}, {2 * 32768}
    s_mov_b32 {sr(sJ)}, 0
    v_lshrrev_b32 v12, 3, v0
    v_and_b32 v13, 7, v0
    v_bfe_u32 v14, v12, 1, 1
    v_lshlrev_b32 v14, 2, v14
    v_xor_b32 v13, v13, v14
    s_lshl_b32 {sr(sT0)}, {sr(sTQ)}, 4
    v_add_u32 v12, {sr(sT0)}, v12
    v_lshlrev_b32 {vr(vDW3)}, 11, v12
    v_lshl_add_u32 {vr(vDW3)}, v13, 4, {vr(vDW3)}
    s_lshl_b32 {sr(sWOFF)}, {sr(sCB)}, 7
    s_lshl_b32 {sr(sLDSW3)}, {sr(sHH)}, 13
    s_lshl_b32 {sr(sT0)}, {sr(sTQ)}, 11
    s_add_u32 {sr(sLDSW3)}, {sr(sLDSW3)}, {sr(sT0)}
        """)
        for i in range(8): a(f"v_mov_b32 v{LA+i}, 0")
    else:
        a("s_nop 7")
    for x in range(2):
        S = SS + 16 * x
        a(f"v_max3_f32 v12, v{S}, v{S+1}, v{S+2}")
        for i in range(3, 15, 2):
            a(f"v_max3_f32 v12, v12, v{S+i}, v{S+i+1}")
        a(f"v_max_f32 v12, v12, v{S+15}")
        a(f"""
        v_mov_b32 v13, v12
        s_nop 1
        v_permlane32_swap_b32 v13, v12
        s_nop 1
        v_max_f32 v12, v12, v13
        v_sub_f32 v12, 0, v12
        """)
        for i in range(16):
            a(f"v_mov_b32 v{NM+16*x+i}, v12")
    a("s_waitcnt lgkmcnt(0)")
    a("s_barrier")
    a(rd(KF, 0, 0)); a(rd(KF + 4, 0, 1)); a(rd(VF, 0, 2))
    a("s_waitcnt lgkmcnt(1)")
    a(f"v_mfma_f32_32x32x16_bf16 {vr(SS,16)}, {vr(KF,4)}, {vr(QF,4)}, {vr(NM,16)}")
    a(f"v_mfma_f32_32x32x16_bf16 {vr(SS,16)}, {vr(KF+4,4)}, {vr(QF+4,4)}, {vr(SS,16)}")
    lanestamp(a, 203, opt, 3)
    a("s_waitcnt lgkmcnt(0)")
    a("s_nop 15")
    attn_stage(a, opt, 0)
    lanestamp(a, 202, opt, 0)
    attn_stage(a, opt, 1)
    lanestamp(a, 202, opt, 1)
    if opt.get("prog", 1) and opt.get("half", 1):
        attn_stage(a, opt, 4)
        lanestamp(a, 202, opt, 2)
    if opt.get("unroll_attn"):
        for _ in range(10 if (opt.get("prog", 1) and opt.get("half", 1)) else 11):
            attn_stage(a, opt, 2)
    else:
        loop = a.label("attn")
        a(".p2align 6")
        a(f"{loop}:")
        attn_stage(a, opt, 2)
        lanestamp(a, 202, opt, "m")
        a(f"s_cmp_lt_u32 {sr(sJ)}, 13")
        a(f"s_cbranch_scc1 {loop}")
    for s_ in (13, 14, 15):
        attn_stage(a, opt, 3, s_)
        lanestamp(a, 202, opt, s_)
    a("s_setprio 0")
    a("s_nop 1")
    a(f"v_mfma_f32_32x32x16_bf16 {vr(OA+16,16)}, {vr(VF+4,4)}, {vr(PP+4,4)}, {vr(OA+16,16)}")
    a(smf(LA + 4))
    a("s_waitcnt lgkmcnt(0)")

def attn_epilogue(a, opt):
    a(f"""
    s_lshl_b32 {sr(sT0)}, {sr(sTB)}, 3
    s_lshl_b32 {sr(sT1)}, {sr(sTQ)}, 1
    s_add_u32 {sr(sT0)}, {sr(sT0)}, {sr(sT1)}
    s_lshl_b32 {sr(sT0)}, {sr(sT0)}, 17
    s_lshl_b32 {sr(sT1)}, {sr(sHP)}, 1
    s_add_u32 {sr(sT1)}, {sr(sT1)}, {sr(sHH)}
    s_lshl_b32 {sr(sT1)}, {sr(sT1)}, 11
    s_add_u32 {sr(sT0)}, {sr(sT0)}, {sr(sT1)}
    s_add_u32 {sr(sOOFF)}, {sr(sT0)}, {WS_O}
    s_mov_b32 {sr(sT2)}, {hex(f2u(2.0**24))}
    s_nop 7
    """)
    ok = a.label("ok")
    a("v_mov_b32 v12, 0")
    a("v_mov_b32 v13, 0")
    a(f"v_add_f32 v{LA}, v{LA}, v{LA+1}")
    a(f"v_add_f32 v{LA+4}, v{LA+4}, v{LA+5}")
    for i in range(16):
        a(f"v_pk_fma_f32 v[12:13], {vr(OA+2*i,2)}, 0, v[12:13] op_sel_hi:[1,0,1]")
    a(f"v_cmp_nle_f32 {sr(sM,2)}, v{LA}, {sr(sT2)}")
    a(f"v_cmp_nle_f32 {sr(sM2,2)}, v{LA+4}, {sr(sT2)}")
    a("v_cmp_u_f32 vcc, v12, v13")
    a(f"s_or_b64 {sr(sM,2)}, {sr(sM,2)}, {sr(sM2,2)}")
    a(f"s_or_b64 {sr(sM,2)}, {sr(sM,2)}, vcc")
    if opt.get("force_fallback"):
        a(f"s_mov_b64 {sr(sM,2)}, -1")
    a(f"s_cmp_eq_u64 {sr(sM,2)}, 0")
    a(f"s_cbranch_scc1 {ok}")
    fallback(a, opt)
    a(f"{ok}:")
    a(f"v_rcp_f32 v12, v{LA}")
    a(f"v_rcp_f32 v14, v{LA+4}")
    for x in range(2):
        r = (12, 14)[x]
        a(f"v_mov_b32 v{r+1}, v{r}" if x == 1 else f"v_mov_b32 v13, v12")
        b = OA + 16 * x
        for i in range(8):
            a(f"v_pk_mul_f32 {vr(b+2*i,2)}, {vr(b+2*i,2)}, {vr(r,2)}")
        for i in range(8):
            a(f"v_cvt_pk_bf16_f32 v{b+i}, v{b+2*i}, v{b+2*i+1}")
        if opt.get("p16", 1):
            a("s_nop 1")
            for i in range(4):
                a(f"v_permlane16_swap_b32 v{b+i}, v{b+4+i}")
        if x == 1:
            a(f"s_add_u32 {sr(sOOFF)}, {sr(sOOFF)}, 131072")
        a(f"buffer_store_dwordx4 {vr(b,4)}, {vr(vL16)}, {sr(SRD_WS,4)}, {sr(sOOFF)} offen sc1")
        a(f"buffer_store_dwordx4 {vr(b+4,4)}, {vr(vL16)}, {sr(SRD_WS,4)}, {sr(sOOFF)} offen offset:1024 sc1")

def phase3_16(a, opt):
    vm = VmTracker()
    ACC3, AF, OF, DEPTH, NSLOT = 16, 48, 96, opt.get("depth", 12), NSLOT3
    vRD = [[7, 8, 9, 11], [4, 5, 152, 153], [154, 155, 156, 157]]
    vG, vG2, vOUT = 14, 158, 13
    sample_mailbox(a, sMB2, 0xffffffff)
    a("s_waitcnt vmcnt(0)")
    a("s_barrier")
    timestamp(a, 4, opt)
    np_ = a.label("np3")
    a(f"s_cmp_eq_u32 {sr(sW)}, 0")
    a(f"s_cbranch_scc0 {np_}")
    a(f"""
    s_lshl_b32 {sr(sT0)}, {sr(sTB)}, 12
    s_lshl_b32 {sr(sT1)}, {sr(sHP)}, 2
    s_add_u32 {sr(sT0)}, {sr(sT0)}, {sr(sT1)}
    s_add_u32 {sr(sT0)}, {sr(sT0)}, {WS_MB2}
    v_lshlrev_b32 v12, 7, v0
    v_mov_b32 v15, 1
    s_mov_b32 exec_lo, -1
    s_mov_b32 exec_hi, 0
    buffer_store_dword v15, v12, {sr(SRD_WS,4)}, {sr(sT0)} offen sc1
    s_mov_b64 exec, -1
    """)
    def poll_o(first):
        poll = a.label("poll3"); done = a.label("pd3")
        a(f"""
        s_mov_b32 {sr(sT0)}, 400000
        s_lshr_b32 {sr(sT2)}, {sr(sTB3)}, 1
        s_cmp_eq_u32 {sr(sT2)}, {sr(sTB)}
        s_cselect_b32 {sr(sT2)}, 1, 0
        s_lshl_b32 {sr(sT2)}, {sr(sT2)}, {sr(sHP)}
        """)
        if first and opt.get("late4", 0):
            a(f"""
            s_add_u32 {sr(sT3)}, {sr(sROT)}, 12
            s_and_b32 {sr(sT3)}, {sr(sT3)}, 15
            s_lshl_b32 {sr(sT3)}, 0x000f000f, {sr(sT3)}
            s_or_b32 {sr(sT2)}, {sr(sT2)}, {sr(sT3)}
            """)
        a("s_mov_b32 exec_lo, -1")
        a("s_mov_b32 exec_hi, 0")
        a(f"{poll}:")
        a(f"v_cmp_eq_u32 vcc, 1, {vr(vPV)}")
        a("s_nop 3")
        a(f"s_or_b32 {sr(sT3)}, vcc_lo, {sr(sT2)}")
        a(f"s_cmp_eq_u32 {sr(sT3)}, -1")
        a(f"s_cbranch_scc1 {done}")
        a(f"s_sub_u32 {sr(sT0)}, {sr(sT0)}, 1")
        a(f"s_cbranch_scc1 {done}")
        a(f"buffer_load_dword {vr(vPV)}, {vr(vPA)}, {sr(SRD_WS,4)}, {sr(sMB2)} offen sc1")
        a("s_waitcnt vmcnt(0)")
        a(f"s_branch {poll}")
        a(f"{done}:")
        a("s_mov_b64 exec, -1")
        a("s_nop 3")
    poll_o(True)
    a(f"{np_}:")
    def wdma(i):
        for half in range(2):
            for x in wo_piece(i, half): a(x)
            vm.issue(("w", i))
    wdma(6); wdma(7)
    a(f"""
    v_and_b32 v12, 15, v0                          ; n
    s_lshl_b32 {sr(sT0)}, {sr(sTB3)}, 7
    s_lshl_b32 {sr(sT2)}, {sr(sTQ)}, 5
    s_add_u32 {sr(sT0)}, {sr(sT0)}, {sr(sT2)}
    v_add_u32 v12, {sr(sT0)}, v12
    v_lshlrev_b32 v3, 2, v12
    v_bfe_u32 v15, v0, 2, 2                        ; r
    v_bfe_u32 v1, v0, 4, 1                         ; g&1
    v_bfe_u32 v2, v0, 5, 1                         ; g>>1
    v_lshl_add_u32 v12, v2, 2, v15
    v_lshl_add_u32 v12, v1, 4, v12                 ; row
    v_lshlrev_b32 v12, 7, v12
    v_bfe_u32 v2, v0, 1, 1                         ; c>>1
    v_lshrrev_b32 v15, 1, v15
    v_lshlrev_b32 v15, 2, v15
    v_xor_b32 v2, v2, v15
    v_lshlrev_b32 v1, 1, v1
    v_xor_b32 v2, v2, v1
    v_lshl_add_u32 v12, v2, 4, v12
    v_and_b32 v1, 1, v0
    v_lshl_add_u32 v12, v1, 3, v12
    s_lshl_b32 {sr(sT0)}, {sr(sHH)}, 13
    v_add_u32 v{vRD[0][0]}, {sr(sT0)}, v12
    v_xor_b32 v{vRD[0][1]}, 32, v{vRD[0][0]}
    v_xor_b32 v{vRD[0][2]}, 64, v{vRD[0][0]}
    v_xor_b32 v{vRD[0][3]}, 96, v{vRD[0][0]}
    """)
    for win in (1, 2):
        for c in range(4):
            a(f"v_add_u32 v{vRD[win][c]}, {hex(win * 65536)}, v{vRD[0][c]}")
    a(f"""
    s_lshl_b32 {sr(sT0)}, {sr(sTB3)}, 2
    s_add_u32 {sr(sT0)}, {sr(sT0)}, {sr(sTQ)}
    s_lshl_b32 {sr(sAOFF)}, {sr(sT0)}, 17
    s_lshl_b32 {sr(sT1)}, {sr(sHH)}, 16
    s_add_u32 {sr(sAOFF)}, {sr(sAOFF)}, {sr(sT1)}
    s_add_u32 {sr(sAOFF)}, {sr(sAOFF)}, {WS_O}
    """)
    a("s_barrier")
    timestamp(a, 5, opt)
    if opt.get("dbg_span"): dbg_span(a, "e3")
    def oload(kk):
        d = kk % DEPTH
        if kk % 4 == 0:
            a(f"s_add_u32 {sr(sT1)}, {sr(sROT)}, {kk // 4}")
            a(f"s_and_b32 {sr(sT1)}, {sr(sT1)}, 15")
            a(f"s_lshl_b32 {sr(sT1)}, {sr(sT1)}, 12")
            a(f"s_add_u32 {sr(sT1)}, {sr(sT1)}, {sr(sAOFF)}")
        a(f"buffer_load_dwordx4 {vr(OF+4*d,4)}, {vr(vL16)}, {sr(SRD_WS,4)}, {sr(sT1)} offen offset:{(kk%4)*1024} sc1")
        vm.issue(("o", kk))
    for kk in range(DEPTH): oload(kk)
    a(f"s_mov_b32 {sr(sT2)}, {WS_G}")
    a(f"buffer_load_dword {vr(vG)}, v3, {sr(SRD_WS,4)}, {sr(sT2)} offen sc1")
    a(f"buffer_load_dword {vr(vG2)}, v3, {sr(SRD_WS,4)}, {sr(sT2)} offen offset:64 sc1")
    vm.issue(("g", 0)); vm.issue(("g", 1))
    XA = 6 * 16384
    vWA, vRA, vCF = [160, 161, 162, 163], 164, 166
    pre_addr = [f"""v_and_b32 v12, 15, v0                          ; n
    v_lshrrev_b32 v1, 5, v0                        ; g>>1
    v_and_b32 v3, 7, v12
    v_xor_b32 v1, v1, v3""", f"""s_lshl_b32 {sr(sT0)}, {sr(sHH)}, 14
    s_lshl_b32 {sr(sT2)}, {sr(sTQ)}, 12
    s_add_u32 {sr(sT0)}, {sr(sT0)}, {sr(sT2)}
    s_add_u32 {sr(sT0)}, {sr(sT0)}, {XA}
    v_lshlrev_b32 v12, 7, v12
    v_lshl_add_u32 v12, v1, 4, v12""", f"""v_bfe_u32 v1, v0, 4, 1
    v_lshl_add_u32 v12, v1, 3, v12
    v_add_u32 v{vWA[0]}, {sr(sT0)}, v12""", f"""v_xor_b32 v{vWA[1]}, 32, v{vWA[0]}
    v_xor_b32 v{vWA[2]}, 64, v{vWA[0]}
    v_xor_b32 v{vWA[3]}, 96, v{vWA[0]}""", f"""; read / store addresses: row 16w + 8p + (l>>3), chunk l&7
    v_lshrrev_b32 v1, 3, v0
    v_and_b32 v3, 7, v0
    v_xor_b32 v2, v3, v1
    s_lshl_b32 {sr(sT0)}, {sr(sW)}, 4
    v_add_u32 v1, {sr(sT0)}, v1""", f"""v_lshlrev_b32 v12, 7, v1
    v_lshl_add_u32 v12, v2, 4, v12
    v_add_u32 v{vRA}, {XA}, v12""", f"""s_lshl_b32 {sr(sT0)}, {sr(sTB3)}, 7
    v_add_u32 v1, {sr(sT0)}, v1
    v_lshlrev_b32 {vr(vOUT)}, 11, v1
    v_lshl_add_u32 {vr(vOUT)}, v3, 4, {vr(vOUT)}"""]
    pre_gate = [f"""; gate coefficients of this wave's branch: g, or 1 - g rounded like the reference (tokens n and 16 + n)
    v_sub_f32 v2, 1.0, {vr(vG)}
    v_sub_f32 v3, 1.0, {vr(vG2)}
    v_cvt_pk_bf16_f32 v2, v2, v3
    v_and_b32 v3, 0xffff0000, v2
    v_lshlrev_b32 v2, 16, v2""", f"""s_cmp_eq_u32 {sr(sHH)}, 0
    s_cselect_b64 vcc, -1, 0
    s_nop 0
    v_cndmask_b32 v{vCF}, v2, {vr(vG)}, vcc
    v_cndmask_b32 v{vCF+2}, v3, {vr(vG2)}, vcc
    v_mov_b32 v{vCF+1}, v{vCF}
    v_mov_b32 v{vCF+3}, v{vCF+2}"""]
    pre = {4 + k: x for k, x in enumerate(pre_addr)}
    pre[12] = pre_gate[0]; pre[13] = pre_gate[1]
    def wr(hs):
        st, e = divmod(hs, 2)
        win, off = divmod((st % NSLOT) * 16384, 65536)
        r = []
        for c in range(4):
            base = AF + 16 * (hs % 3) + 4 * c
            r.append(f"ds_read_b64_tr_b16 {vr(base,2)}, {vr(vRD[win][c])} offset:{off + e*4096}")
            r.append(f"ds_read_b64_tr_b16 {vr(base+2,2)}, {vr(vRD[win][c])} offset:{off + e*4096 + 1024}")
        return r
    for x in wr(0) + wr(1): a(x)
    pend = []
    for hs in range(32):
        bar = hs in (10, 18)
        k0, k1 = 2 * hs, 2 * hs + 1
        if hs == 7 and opt.get("late4", 0):
            sample_mailbox(a, sMB2, 0xffffffff)
        if bar:
            need = ("w", 7) if hs == 10 else ("w", 15)
            n = vm.wait_count(lambda t: t in (need, ("o", k0)))
            a(f"s_waitcnt vmcnt({n}) lgkmcnt(0)")
            if hs == 10 and opt.get("late4", 0):
                go = a.label("go3")
                a(f"s_cmp_eq_u32 {sr(sW)}, 0")
                a(f"s_cbranch_scc0 {go}")
                a("s_waitcnt vmcnt(6)")
                poll_o(False)
                a(f"{go}:")
            a("s_barrier")
            if hs == 10:
                pend = [(i, h) for i in range(10, 16) for h in range(2)]
        else:
            n = vm.wait_count(lambda t: t == ("o", k0))
            a(f"s_waitcnt vmcnt({n}) lgkmcnt({8 if hs < 31 else 0})")
        nxt = wr(hs + 2) if hs + 2 < 32 else []
        for th in range(2):
            kk = 2 * hs + th
            if th == 1:
                n = vm.wait_count(lambda t: t == ("o", kk))
                a(f"s_waitcnt vmcnt({n})")
            for c in range(4):
                acc = ACC3 + 4 * (4 * th + c)
                cin = "0" if hs == 0 else vr(acc, 4)
                a(f"v_mfma_f32_16x16x32_bf16 {vr(acc,4)}, {vr(AF+16*(hs%3)+4*c,4)}, {vr(OF+4*(kk%DEPTH),4)}, {cin}")
                g = 4 * th + c
                if g < len(nxt): a(nxt[g])
            if kk + DEPTH < 64:
                oload(kk + DEPTH)
            if th == 1 and hs in pre:
                a(pre[hs])
            for i, h in pend[:1]:
                for x in wo_piece(i, h): a(x)
                vm.issue(("w", i))
            pend = pend[1:]
    timestamp(a, 6, opt)
    a("s_nop 7")
    for th in range(2):
        for c in range(4):
            b = ACC3 + 4 * (4 * th + c)
            cf = vr(vCF + 2 * th, 2)
            a(f"v_pk_mul_f32 {vr(b,2)}, {vr(b,2)}, {cf}")
            a(f"v_pk_mul_f32 {vr(b+2,2)}, {vr(b+2,2)}, {cf}")
            a(f"v_cvt_pk_bf16_f32 v{b}, v{b}, v{b+1}")
            a(f"v_cvt_pk_bf16_f32 v{b+1}, v{b+2}, v{b+3}")
            a(f"ds_write_b64 v{vWA[c]}, {vr(b,2)} offset:{th * 2048}")
    a(f"""
    s_lshl_b32 {sr(sT0)}, {sr(sCB)}, 7
    s_add_u32 {sr(sT1)}, {sr(sT0)}, {8 * 2048}
    s_waitcnt lgkmcnt(0)
    s_barrier
    ds_read_b128 v[16:19], v{vRA}
    ds_read_b128 v[20:23], v{vRA} offset:16384
    ds_read_b128 v[24:27], v{vRA} offset:1024
    ds_read_b128 v[28:31], v{vRA} offset:{16384 + 1024}
    """)
    for p_ in range(2):
        a(f"s_waitcnt lgkmcnt({2 if p_ == 0 else 0})")
        A, B, O = 16 + 8 * p_, 20 + 8 * p_, 32 + 4 * p_
        for i in range(4):
            a(f"v_lshlrev_b32 v48, 16, v{A+i}")
            a(f"v_and_b32 v49, 0xffff0000, v{A+i}")
            a(f"v_lshlrev_b32 v50, 16, v{B+i}")
            a(f"v_and_b32 v51, 0xffff0000, v{B+i}")
            a(f"v_pk_add_f32 v[48:49], v[48:49], v[50:51]")
            a(f"v_cvt_pk_bf16_f32 v{O+i}, v48, v49")
        a(f"buffer_store_dwordx4 {vr(O,4)}, {vr(vOUT)}, {sr(SRD_OUT,4)}, {sr(sT0 if p_ == 0 else sT1)} offen {opt.get('outflag', 'sc1')}")

def phase3(a, opt):
    vm = VmTracker()
    ACC3, AF, OF, DEPTH, NSLOT = 16, 48, 72, opt.get("depth", 12), NSLOT3
    vRD = [7, 8, 9, 11, 4, 5]
    vG, vOUT = 14, 13
    sample_mailbox(a, sMB2, 0xffffffff)
    a("s_waitcnt vmcnt(0)")
    a("s_barrier")
    timestamp(a, 4, opt)
    np_ = a.label("np3")
    a(f"s_cmp_eq_u32 {sr(sW)}, 0")
    a(f"s_cbranch_scc0 {np_}")
    a(f"""
    s_lshl_b32 {sr(sT0)}, {sr(sTB)}, 12
    s_lshl_b32 {sr(sT1)}, {sr(sHP)}, 2
    s_add_u32 {sr(sT0)}, {sr(sT0)}, {sr(sT1)}
    s_add_u32 {sr(sT0)}, {sr(sT0)}, {WS_MB2}
    v_lshlrev_b32 v12, 7, v0
    v_mov_b32 v15, 1
    s_mov_b32 exec_lo, -1
    s_mov_b32 exec_hi, 0
    buffer_store_dword v15, v12, {sr(SRD_WS,4)}, {sr(sT0)} offen sc1
    s_mov_b64 exec, -1
    """)
    poll = a.label("poll3"); done = a.label("pd3")
    a(f"""
    s_mov_b32 {sr(sT1)}, 400000
    s_lshr_b32 {sr(sT2)}, {sr(sTB3)}, 1
    s_cmp_eq_u32 {sr(sT2)}, {sr(sTB)}
    s_cselect_b32 {sr(sT2)}, 1, 0
    s_lshl_b32 {sr(sT2)}, {sr(sT2)}, {sr(sHP)}
    s_mov_b32 exec_lo, -1
    s_mov_b32 exec_hi, 0
    """)
    a(f"{poll}:")
    a(f"v_cmp_eq_u32 vcc, 1, {vr(vPV)}")
    a("s_nop 3")
    a(f"s_or_b32 {sr(sT3)}, vcc_lo, {sr(sT2)}")
    a(f"s_cmp_eq_u32 {sr(sT3)}, -1")
    a(f"s_cbranch_scc1 {done}")
    a(f"s_sub_u32 {sr(sT1)}, {sr(sT1)}, 1")
    a(f"s_cbranch_scc1 {done}")
    a(f"buffer_load_dword {vr(vPV)}, {vr(vPA)}, {sr(SRD_WS,4)}, {sr(sMB2)} offen sc1")
    a("s_waitcnt vmcnt(0)")
    a(f"s_branch {poll}")
    a(f"{done}:")
    a("s_mov_b64 exec, -1")
    a(f"{np_}:")
    def wdma(i):
        for half in range(2):
            for x in wo_piece(i, half): a(x)
            vm.issue(("w", i))
    wdma(6); wdma(7)
    a(f"""
    v_and_b32 v12, 31, v0
    s_lshl_b32 {sr(sT0)}, {sr(sTB3)}, 7
    s_lshl_b32 {sr(sT2)}, {sr(sTQ)}, 5
    s_add_u32 {sr(sT0)}, {sr(sT0)}, {sr(sT2)}
    v_add_u32 v12, {sr(sT0)}, v12                  ; token
    v_lshlrev_b32 v3, 2, v12
    v_lshrrev_b32 {vr(vG)}, 5, v0                  ; h
    v_lshlrev_b32 {vr(vOUT)}, 11, v12
    v_lshl_add_u32 {vr(vOUT)}, {vr(vG)}, 4, {vr(vOUT)}
    v_bfe_u32 v15, v0, 2, 2                        ; r
    v_lshl_add_u32 v12, {vr(vG)}, 2, v15           ; 4h + r
    v_lshlrev_b32 v2, 7, v12
    v_and_b32 v12, 1, v0                           ; h'
    v_bfe_u32 v1, v0, 1, 1                         ; a
    v_bfe_u32 v5, v0, 4, 1                         ; g
    v_lshl_add_u32 v12, v5, 1, v12                 ; chunk16 = 2g + h'
    v_lshrrev_b32 v15, 1, v15
    v_lshlrev_b32 v15, 2, v15
    v_xor_b32 v12, v12, v15
    v_lshl_add_u32 v2, v12, 4, v2
    v_lshl_add_u32 v2, v1, 3, v2
    s_lshl_b32 {sr(sT0)}, {sr(sHH)}, 13
    v_add_u32 v{vRD[0]}, {sr(sT0)}, v2
    v_xor_b32 v{vRD[1]}, 64, v{vRD[0]}
    v_add_u32 v{vRD[2]}, 0x10000, v{vRD[0]}
    v_add_u32 v{vRD[3]}, 0x10000, v{vRD[1]}
    v_add_u32 v{vRD[4]}, 0x20000, v{vRD[0]}
    v_add_u32 v{vRD[5]}, 0x20000, v{vRD[1]}
    s_lshl_b32 {sr(sT0)}, {sr(sTB3)}, 2
    s_add_u32 {sr(sT0)}, {sr(sT0)}, {sr(sTQ)}
    s_lshl_b32 {sr(sAOFF)}, {sr(sT0)}, 17
    s_lshl_b32 {sr(sT1)}, {sr(sHH)}, 16
    s_add_u32 {sr(sAOFF)}, {sr(sAOFF)}, {sr(sT1)}
    s_add_u32 {sr(sAOFF)}, {sr(sAOFF)}, {WS_O}
    """)
    a("s_barrier")
    timestamp(a, 5, opt)
    if opt.get("dbg_span"): dbg_span(a, "e3")
    def oload(kk):
        d = kk % DEPTH
        if kk % 4 == 0:
            a(f"s_add_u32 {sr(sT1)}, {sr(sROT)}, {kk // 4}")
            a(f"s_and_b32 {sr(sT1)}, {sr(sT1)}, 15")
            a(f"s_lshl_b32 {sr(sT1)}, {sr(sT1)}, 12")
            a(f"s_add_u32 {sr(sT1)}, {sr(sT1)}, {sr(sAOFF)}")
        if opt.get("p3_noload") and kk >= DEPTH: return
        sc = "" if opt.get("p3_plain") else " sc1"
        a(f"buffer_load_dwordx4 {vr(OF+4*d,4)}, {vr(vL16)}, {sr(SRD_WS,4)}, {sr(sT1)} offen offset:{(kk%4)*1024}{sc}")
        vm.issue(("o", kk))
    for kk in range(DEPTH): oload(kk)
    a(f"s_mov_b32 {sr(sT2)}, {WS_G}")
    a(f"buffer_load_dword {vr(vG)}, v3, {sr(SRD_WS,4)}, {sr(sT2)} offen sc1")
    vm.issue(("g", 0))
    def wreads(st, ks, set_):
        r = []
        slot = st % NSLOT
        win, off = divmod(slot * 16384, 65536)
        for ct in range(2):
            base = AF + 8 * set_ + 4 * ct
            reg = vRD[2 * win + ct]
            r.append(f"ds_read_b64_tr_b16 {vr(base,2)}, {vr(reg)} offset:{off + ks*2048}")
            r.append(f"ds_read_b64_tr_b16 {vr(base+2,2)}, {vr(reg)} offset:{off + ks*2048+1024}")
        return r
    def wr(kk): return wreads(kk // 4, kk % 4, kk % 3)
    for x in wr(0) + wr(1): a(x)
    pend = []
    for st in range(16):
        for ks in range(4):
            kk = 4 * st + ks
            d = kk % DEPTH
            cur = kk % 3
            bar = ks == 2 and st in (5, 9)
            if bar:
                need = ("w", 7) if st == 5 else ("w", 15)
                n = vm.wait_count(lambda t: t in (need, ("o", kk)))
                a(f"s_waitcnt vmcnt({n}) lgkmcnt(0)")
                a("s_barrier")
                if st == 5:
                    pend = [(i, h) for i in range(10, 16) for h in range(2)]
            else:
                n = vm.wait_count(lambda t: t == ("o", kk))
                a(f"s_waitcnt vmcnt({n}) lgkmcnt({4 if kk < 63 else 0})")
            nxt = wr(kk + 2) if kk + 2 < 64 else []
            if opt.get("p3prio", 0) and kk % 16 == 0:
                a(f"s_setprio {3 - kk // 16}")
            for ct in range(2):
                c = "0" if kk == 0 else vr(ACC3+16*ct,16)
                a(f"v_mfma_f32_32x32x16_bf16 {vr(ACC3+16*ct,16)}, {vr(AF+8*cur+4*ct,4)}, {vr(OF+4*d,4)}, {c}")
                for x in nxt[2*ct:2*ct+2]: a(x)
            if kk + DEPTH < 64:
                oload(kk + DEPTH)
            for i, h in pend[:2]:
                if opt.get("p3_nowo"): continue
                for x in wo_piece(i, h): a(x)
                vm.issue(("w", i))
            pend = pend[2:]
    timestamp(a, 6, opt)
    if opt.get("fullrow", 1):
        XA = 6 * 16384
        a(f"""
        v_sub_f32 v2, 1.0, {vr(vG)}
        v_cvt_pk_bf16_f32 v2, v2, v2
        v_lshlrev_b32 v2, 16, v2
        s_cmp_eq_u32 {sr(sHH)}, 0
        s_cselect_b64 vcc, -1, 0
        v_and_b32 v12, 31, v0                          ; t
        v_lshrrev_b32 v1, 5, v0                        ; h'
        v_cndmask_b32 v60, v2, {vr(vG)}, vcc
        v_and_b32 v3, 7, v12
        v_xor_b32 v1, v1, v3
        v_mov_b32 v61, v60
        s_lshl_b32 {sr(sT0)}, {sr(sHH)}, 14
        s_lshl_b32 {sr(sT1)}, {sr(sTQ)}, 12
        s_add_u32 {sr(sT0)}, {sr(sT0)}, {sr(sT1)}
        s_add_u32 {sr(sT0)}, {sr(sT0)}, {XA}
        v_lshlrev_b32 v12, 7, v12
        v_lshl_add_u32 v12, v1, 4, v12
        v_add_u32 v12, {sr(sT0)}, v12
        v_xor_b32 v56, 32, v12
        v_xor_b32 v57, 64, v12
        v_xor_b32 v58, 96, v12
        """)
        for ct in range(2):
            b = ACC3 + 16 * ct
            for i in range(8):
                a(f"v_pk_mul_f32 {vr(b+2*i,2)}, {vr(b+2*i,2)}, v[60:61]")
            for i in range(8):
                a(f"v_cvt_pk_bf16_f32 v{b+i}, v{b+2*i}, v{b+2*i+1}")
            a(f"ds_write_b128 v{12 if ct == 0 else 57}, {vr(b,4)}")
            a(f"ds_write_b128 v{56 if ct == 0 else 58}, {vr(b+4,4)}")
        a(f"""
        v_lshrrev_b32 v1, 3, v0
        v_and_b32 v3, 7, v0
        v_xor_b32 v2, v3, v1
        s_lshl_b32 {sr(sT0)}, {sr(sW)}, 4
        v_add_u32 v1, {sr(sT0)}, v1                    ; row (p = 0)
        v_lshlrev_b32 v12, 7, v1
        v_lshl_add_u32 v12, v2, 4, v12
        v_add_u32 v12, {XA}, v12
        s_lshl_b32 {sr(sT0)}, {sr(sTB3)}, 7
        v_add_u32 v1, {sr(sT0)}, v1                    ; token
        v_lshlrev_b32 {vr(vOUT)}, 11, v1
        v_lshl_add_u32 {vr(vOUT)}, v3, 4, {vr(vOUT)}
        s_lshl_b32 {sr(sT0)}, {sr(sCB)}, 7
        s_add_u32 {sr(sT1)}, {sr(sT0)}, {8 * 2048}
        s_waitcnt lgkmcnt(0)
        s_barrier
        ds_read_b128 v[16:19], v12
        ds_read_b128 v[20:23], v12 offset:16384
        ds_read_b128 v[24:27], v12 offset:1024
        ds_read_b128 v[28:31], v12 offset:{16384 + 1024}
        """)
        for p_ in range(2):
            a(f"s_waitcnt lgkmcnt({2 if p_ == 0 else 0})")
            A, B, O = 16 + 8 * p_, 20 + 8 * p_, 32 + 4 * p_
            for i in range(4):
                a(f"v_lshlrev_b32 v48, 16, v{A+i}")
                a(f"v_and_b32 v49, 0xffff0000, v{A+i}")
                a(f"v_lshlrev_b32 v50, 16, v{B+i}")
                a(f"v_and_b32 v51, 0xffff0000, v{B+i}")
                a(f"v_pk_add_f32 v[48:49], v[48:49], v[50:51]")
                a(f"v_cvt_pk_bf16_f32 v{O+i}, v48, v49")
            a(f"buffer_store_dwordx4 {vr(O,4)}, {vr(vOUT)}, {sr(SRD_OUT,4)}, {sr(sT0 if p_ == 0 else sT1)} offen {opt.get('outflag', 'sc1')}")
        return
    XA = 6 * 16384
    a(f"""
    s_lshl_b32 {sr(sT0)}, {sr(sTQ)}, 12
    s_lshl_b32 {sr(sT1)}, {sr(sHH)}, 11
    s_add_u32 {sr(sT2)}, {sr(sT0)}, {sr(sT1)}
    s_xor_b32 {sr(sT1)}, {sr(sT1)}, 2048
    s_add_u32 {sr(sT3)}, {sr(sT0)}, {sr(sT1)}
    s_add_u32 {sr(sT2)}, {sr(sT2)}, {XA}
    s_add_u32 {sr(sT3)}, {sr(sT3)}, {XA}
    v_add_u32 v12, {sr(sT2)}, {vr(vL16)}
    v_add_u32 v1, {sr(sT3)}, {vr(vL16)}
    v_sub_f32 v2, 1.0, {vr(vG)}
    v_cvt_pk_bf16_f32 v2, v2, v2
    v_lshlrev_b32 v2, 16, v2
    s_lshl_b32 {sr(sT0)}, {sr(sCB)}, 7
    s_lshl_b32 {sr(sT1)}, {sr(sHH)}, 6
    s_add_u32 {sr(sT0)}, {sr(sT0)}, {sr(sT1)}
    """)
    brb, fin = a.label("brb"), a.label("fin")
    a(f"s_cmp_eq_u32 {sr(sHH)}, 0")
    a(f"s_cbranch_scc0 {brb}")
    for br in range(2):
        K, S_ = ACC3 + 16 * br, ACC3 + 16 * (br ^ 1)
        own, rcv = (vG, 2) if br == 0 else (2, vG)
        a(f"v_mov_b32 v60, v{own}\nv_mov_b32 v61, v{own}\nv_mov_b32 v62, v{rcv}\nv_mov_b32 v63, v{rcv}")
        for i in range(8):
            a(f"v_cvt_pk_bf16_f32 v{48+i}, v{S_+2*i}, v{S_+2*i+1}")
        a("ds_write_b128 v12, v[48:51]")
        a("ds_write_b128 v12, v[52:55] offset:1024")
        a("s_waitcnt lgkmcnt(0)")
        a("s_barrier")
        a("ds_read_b128 v[48:51], v1")
        a("ds_read_b128 v[52:55], v1 offset:1024")
        for i in range(8):
            if i == 0: a("s_waitcnt lgkmcnt(1)")
            if i == 4: a("s_waitcnt lgkmcnt(0)")
            a(f"v_lshlrev_b32 v56, 16, v{48+i}")
            a(f"v_and_b32 v57, 0xffff0000, v{48+i}")
            a(f"v_pk_mul_f32 v[56:57], v[56:57], v[62:63]")
            a(f"v_pk_fma_f32 v[56:57], {vr(K+2*i,2)}, v[60:61], v[56:57]")
            if opt.get("perturb") and br == 0 and i == 0:
                a(f"s_cmp_eq_u32 s2, 0")
                a(f"s_cselect_b32 {sr(sT1)}, {hex(f2u(opt['perturb']))}, 0")
                a(f"s_cmp_eq_u32 {sr(sW)}, 0")
                a(f"s_cselect_b32 {sr(sT1)}, {sr(sT1)}, 0")
                a(f"v_mov_b32 v58, {sr(sT1)}")
                a(f"v_cmp_eq_u32 vcc, 0, v0")
                a("s_nop 1")
                a(f"v_cndmask_b32 v58, 0, v58, vcc")
                a(f"v_add_f32 v56, v56, v58")
            a(f"v_cvt_pk_bf16_f32 v{K+i}, v56, v57")
            if i == 3:
                a(f"buffer_store_dwordx4 {vr(K,4)}, {vr(vOUT)}, {sr(SRD_OUT,4)}, {sr(sT0)} offen {opt.get('outflag', 'sc1')}")
        a(f"buffer_store_dwordx4 {vr(K+4,4)}, {vr(vOUT)}, {sr(SRD_OUT,4)}, {sr(sT0)} offen offset:32 {opt.get('outflag', 'sc1')}")
        if br == 0:
            a(f"s_branch {fin}")
            a(f"{brb}:")
    a(f"{fin}:")

def fallback(a, opt):
    MX = NM
    a(f"s_lshl_b32 {sr(sT0)}, {sr(sHP)}, 1")
    a(f"s_add_u32 {sr(sT0)}, {sr(sT0)}, {sr(sHH)}")
    a(f"s_lshl_b32 {sr(sBLK)}, {sr(sT0)}, 18")
    for i in range(32): a(f"v_mov_b32 v{OA+i}, 0")
    for i in range(8): a(f"v_mov_b32 v{LA+i}, 0")
    a(f"v_mov_b32 v{MX}, 0xff800000")
    a(f"v_mov_b32 v{MX+16}, 0xff800000")
    a(f"s_mov_b32 {sr(sJ)}, 0")
    loop = a.label("fb")
    a(f"{loop}:")
    a(f"buffer_load_dwordx4 {vr(KF,4)}, {vr(vL16)}, {sr(SRD_WS,4)}, {sr(sBLK)} offen sc1")
    a(f"buffer_load_dwordx4 {vr(KF+4,4)}, {vr(vL16)}, {sr(SRD_WS,4)}, {sr(sBLK)} offen offset:1024 sc1")
    a(f"buffer_load_dwordx4 {vr(VF,4)}, {vr(vL16)}, {sr(SRD_WS,4)}, {sr(sBLK)} offen offset:2048 sc1")
    a(f"buffer_load_dwordx4 {vr(VF+4,4)}, {vr(vL16)}, {sr(SRD_WS,4)}, {sr(sBLK)} offen offset:3072 sc1")
    a("s_waitcnt vmcnt(0)")
    for x in range(2):
        S, Q, O, L, mx = SS, QF + 8 * x, OA + 16 * x, LA + 4 * x, MX + 16 * x
        a(f"v_mfma_f32_32x32x16_bf16 {vr(S,16)}, {vr(KF,4)}, {vr(Q,4)}, 0")
        a(f"v_mfma_f32_32x32x16_bf16 {vr(S,16)}, {vr(KF+4,4)}, {vr(Q+4,4)}, {vr(S,16)}")
        a("s_nop 15")
        a(f"v_max3_f32 v12, v{S}, v{S+1}, v{S+2}")
        for i in range(3, 15, 2):
            a(f"v_max3_f32 v12, v12, v{S+i}, v{S+i+1}")
        a(f"v_max_f32 v12, v12, v{S+15}")
        a(f"""
        v_mov_b32 v13, v12
        s_nop 1
        v_permlane32_swap_b32 v13, v12
        s_nop 1
        v_max3_f32 v12, v12, v13, v{mx}
        v_sub_f32 v13, v{mx}, v12
        v_cmp_eq_f32 vcc, v{mx}, v12
        v_exp_f32 v13, v13
        s_nop 1
        v_cndmask_b32 v13, v13, 1.0, vcc
        v_mov_b32 v{mx}, v12
        """)
        for i in range(16):
            a(f"v_mul_f32 v{O+i}, v13, v{O+i}")
        for i in range(4):
            a(f"v_mul_f32 v{L+i}, v13, v{L+i}")
        for i in range(16):
            a(f"v_sub_f32 v{S+i}, v{S+i}, v12")
        for i in range(16):
            a(f"v_exp_f32 v{S+i}, v{S+i}")
        a("s_nop 0")
        for i in range(8):
            a(f"v_cvt_pk_bf16_f32 v{PP+i}, v{S+2*i}, v{S+2*i+1}")
        a("s_nop 1")
        a(f"v_mfma_f32_32x32x16_bf16 {vr(O,16)}, {vr(VF,4)}, {vr(PP,4)}, {vr(O,16)}")
        a(f"v_mfma_f32_32x32x16_bf16 {vr(O,16)}, {vr(VF+4,4)}, {vr(PP+4,4)}, {vr(O,16)}")
        a(smf(L))
        a("s_nop 15")
    a(f"s_add_u32 {sr(sBLK)}, {sr(sBLK)}, 4096")
    a(f"s_add_u32 {sr(sJ)}, {sr(sJ)}, 1")
    a(f"s_cmp_lt_u32 {sr(sJ)}, 64")
    a(f"s_cbranch_scc1 {loop}")
    a(f"v_add_f32 v{LA}, v{LA}, v{LA+1}")
    a(f"v_add_f32 v{LA+4}, v{LA+4}, v{LA+5}")

def gstamp(a, reg):
    a("s_memtime s[70:71]")
    a("s_waitcnt lgkmcnt(0)")
    a("s_mov_b32 s69, m0")
    a("s_mov_b32 m0, s87")
    a(f"v_writelane_b32 v{reg-152}, s70, m0")
    a("s_mov_b32 m0, s69")

def lanestamp(a, reg, opt, lane=None):
    if not opt.get("stamps2"):
        return
    a("s_memtime s[70:71]")
    a("s_waitcnt lgkmcnt(0)")
    if lane == "m":
        a(f"s_mov_b32 s69, m0")
        a(f"s_sub_u32 m0, {sr(sJ)}, 1")
        a(f"v_writelane_b32 v{reg}, s70, m0")
        a(f"s_mov_b32 m0, s69")
    elif lane is None:
        a(f"s_mov_b32 s69, m0")
        a(f"s_mov_b32 m0, {sr(sJ)}")
        a(f"v_writelane_b32 v{reg}, s70, m0")
        a(f"s_mov_b32 m0, s69")
    else:
        a(f"v_writelane_b32 v{reg}, s70, {lane}")

def timestamp(a, idx, opt):
    if not opt.get("stamps"):
        return
    a(f"s_memtime s[70:71]")
    a(f"s_memrealtime s[92:93]")
    a("s_waitcnt lgkmcnt(0)")
    a(f"s_mov_b32 s{72+idx}, s70")
    a(f"s_mov_b32 s{80+idx}, s92")

def stamps_out(a, n, opt):
    if opt.get("stampsg"):
        a(f"""
        s_lshl_b32 {sr(sT1)}, s2, 3
        s_add_u32 {sr(sT1)}, {sr(sT1)}, {sr(sW)}
        s_lshl_b32 {sr(sT1)}, {sr(sT1)}, 10
        s_add_u32 {sr(sT1)}, {sr(sT1)}, {WS_DBG + (12 << 20)}
        v_lshlrev_b32 v12, 2, v0
        buffer_store_dword v52, v12, {sr(SRD_WS,4)}, {sr(sT1)} offen
        buffer_store_dword v53, v12, {sr(SRD_WS,4)}, {sr(sT1)} offen offset:256
        buffer_store_dword v54, v12, {sr(SRD_WS,4)}, {sr(sT1)} offen offset:512
        """)
    if opt.get("stamps2"):
        a(f"""
        s_lshl_b32 {sr(sT1)}, s2, 3
        s_add_u32 {sr(sT1)}, {sr(sT1)}, {sr(sW)}
        s_lshl_b32 {sr(sT1)}, {sr(sT1)}, 10
        s_add_u32 {sr(sT1)}, {sr(sT1)}, {WS_DBG + (10 << 20)}
        v_lshlrev_b32 v12, 2, v0
        buffer_store_dword v200, v12, {sr(SRD_WS,4)}, {sr(sT1)} offen
        buffer_store_dword v201, v12, {sr(SRD_WS,4)}, {sr(sT1)} offen offset:256
        buffer_store_dword v202, v12, {sr(SRD_WS,4)}, {sr(sT1)} offen offset:512
        buffer_store_dword v203, v12, {sr(SRD_WS,4)}, {sr(sT1)} offen offset:768
        """)
    if not opt.get("stamps"):
        return
    a(f"""
    s_lshl_b32 {sr(sT1)}, s2, 3
    s_add_u32 {sr(sT1)}, {sr(sT1)}, {sr(sW)}
    s_lshl_b32 {sr(sT1)}, {sr(sT1)}, 6
    s_add_u32 {sr(sT1)}, {sr(sT1)}, {WS_DBG + (8 << 20)}
    v_mov_b32 v13, 0
    """)
    for i in range(n):
        a(f"v_writelane_b32 v13, s{72+i}, {i}")
        a(f"v_writelane_b32 v13, s{80+i}, {8+i}")
    a(f"""
    v_lshlrev_b32 v12, 2, v0
    v_cmp_gt_u32 vcc, 16, v0
    s_and_saveexec_b64 {sr(sM,2)}, vcc
    buffer_store_dword v13, v12, {sr(SRD_WS,4)}, {sr(sT1)} offen
    s_mov_b64 exec, {sr(sM,2)}
    """)

def span3(a, opt, off):
    if not opt.get("span3"): return
    sk = a.label("sk3")
    a(f"s_cmp_eq_u32 s2, {opt['span3']}")
    a(f"s_cbranch_scc0 {sk}")
    a(f"s_cmp_eq_u32 {sr(sW)}, 0")
    a(f"s_cbranch_scc0 {sk}")
    a("s_memrealtime s[92:93]")
    a("s_waitcnt lgkmcnt(0)")
    a(f"v_mov_b32 v12, s92")
    a(f"s_mov_b32 s93, {off}")
    a("s_mov_b64 exec, 1")
    a(f"buffer_store_dword v12, off, {sr(SRD_DBG,4)}, s93 sc1")
    a("s_mov_b64 exec, -1")
    a(f"{sk}:")

def dbg_span(a, which):
    w = {"start": 4, "gemm": 12, "attn": 20, "end": 28, "e3": 36, "g0": 44, "hook": 52, "karg": 20, "dma": 36, "prew": 52, "smax": 60}[which]
    sk = a.label("sk")
    a(f"s_cmp_eq_u32 {sr(sW)}, 0")
    a(f"s_cbranch_scc0 {sk}")
    a("s_memrealtime s[92:93]")
    a("s_waitcnt lgkmcnt(0)")
    a(f"v_mov_b32 v12, s92")
    a(f"s_mov_b32 s93, {w}")
    a("s_mov_b64 exec, 1")
    a(f"buffer_atomic_umax v12, off, {sr(SRD_DBG,4)}, s93 sc1")
    a("s_mov_b64 exec, -1")
    a(f"{sk}:")

OPT = {}
def k12(opt):
    OPT.clear(); OPT.update(opt)
    a = Asm()
    a(f".globl {NAME12}\n.p2align 8\n.type {NAME12},@function\n{NAME12}:")
    timestamp(a, 0, opt)
    if opt.get("dbg_span") or opt.get("span2") or opt.get("span3"):
        a("s_memrealtime s[84:85]")
    extras = prologue(a, opt)
    if opt.get("dbg_span"):
        sk = a.label("sk")
        a(f"s_cmp_eq_u32 {sr(sW)}, 0")
        a(f"s_cbranch_scc0 {sk}")
        a("s_waitcnt lgkmcnt(0)")
        a("s_not_b32 s84, s84")
        a("v_mov_b32 v12, s84")
        a("s_mov_b32 s93, 4")
        a("s_mov_b64 exec, 1")
        a(f"buffer_atomic_umax v12, off, {sr(SRD_DBG,4)}, s93 sc1")
        a("s_mov_b64 exec, -1")
        a(f"{sk}:")
    gemm(a, opt, extras)
    if opt.get("dbg_span") or opt.get("span2"): dbg_span(a, "gemm")
    span3(a, opt, 44)
    if opt.get("stamps_start"):
        timestamp(a, 7, opt)
        opt = dict(opt); opt["stamps"] = 0
        gemm_epilogue(a, opt)
        a("s_waitcnt vmcnt(0) lgkmcnt(0)")
        opt["stamps"] = 1
        stamps_out(a, 8, opt)
        a("L_end12:\ns_endpgm")
        return a.text()
    timestamp(a, 1, opt)
    gemm_epilogue(a, opt)
    if opt.get("stop_after_gemm"):
        a("s_waitcnt vmcnt(0) lgkmcnt(0)")
        timestamp(a, 2, opt)
        stamps_out(a, 3, opt)
    else:
        timestamp(a, 2, opt)
        attention(a, opt)
        timestamp(a, 3, opt)
        if opt.get("dbg_span"): dbg_span(a, "attn")
        span3(a, opt, 52)
        attn_epilogue(a, opt)
        if opt.get("fused"):
            (phase3_16 if opt.get("p16", 1) else phase3)(a, opt)
            if opt.get("stamps"):
                a("s_waitcnt vmcnt(0)")
                timestamp(a, 7, opt)
            stamps_out(a, 8, opt)
            if opt.get("span3"):
                a("s_waitcnt vmcnt(0)")
                span3(a, opt, 60)
            if opt.get("dbg_span") or opt.get("span2"):
                a("s_waitcnt vmcnt(0)")
                dbg_span(a, "end")
        else:
            a("s_waitcnt vmcnt(0)")
            timestamp(a, 4, opt)
            stamps_out(a, 5, opt)
    a("L_end12:\ns_endpgm")
    return a.text()

KD12 = f"""
.section .rodata,"a"
.p2align 6
.amdhsa_kernel {NAME12}
  .amdhsa_next_free_vgpr 256
  .amdhsa_next_free_sgpr 102
  .amdhsa_accum_offset 256
  .amdhsa_group_segment_fixed_size 0
  .amdhsa_kernarg_size 80
  .amdhsa_user_sgpr_count 2
  .amdhsa_user_sgpr_kernarg_segment_ptr 1
  .amdhsa_system_sgpr_workgroup_id_x 1
  .amdhsa_float_denorm_mode_32 3
.end_amdhsa_kernel
"""
```

```python
import sys, json
sys.path.insert(0, 'gen'); sys.path.insert(0, 'tools')
import importlib
import k12, k3
HEADER = open('gated_mix__mha_block__softmax_full_mha__prompt.s.ref').read().split('; Override launch geometry')[0]
DESCR = """;
"""

def build(opt=None):
    opt = opt or {}
    s = HEADER
    if opt.get("fused"):
        s += "; @launch grid=(256,1,1) block=(512,1,1) lds=163840\n"
        s += DESCR
        s += '.amdgcn_target "amdgcn-amd-amdhsa--gfx950"\n.text\n'
        s += k12.k12(opt)
        s += k12.KD12
        return s
    s += f"; @launch kernel={k12.NAME12} grid=(256,1,1) block=(512,1,1) lds=163840\n"
    if not opt.get("stop_after_gemm") and not opt.get("no_k3"):
        s += f"; @launch kernel={k3.NAME3} grid=(256,1,1) block=(512,1,1) lds=131072\n"
    s += '.amdgcn_target "amdgcn-amd-amdhsa--gfx950"\n.text\n'
    s += k12.k12(opt)
    s += ".text\n" if False else ""
    s += k3.k3(opt)
    s += k12.KD12 + k3.KD3
    return s
if __name__ == "__main__":
    out = sys.argv[1]
    opt = json.loads(sys.argv[2]) if len(sys.argv) > 2 else {}
    open(out, 'w').write(build(opt))
    print("wrote", out)
```

```python
from asm import Asm, vr, sr, VmTracker

NAME12 = "gated_mix__mha_block__softmax_full_mha__prompt_kernel"
WS_KV = 0
WS_O = 16 << 20
WS_G = 24 << 20
WS_MB = 25 << 20
WS_MB2 = WS_MB + 65536
WS_DBG = 32 << 20
WS_SIZE = 0x10000000
LOG2E = 1.4426950408889634
QSCALE = LOG2E / (32 ** 0.5)

import struct
def f2u(x): return struct.unpack("<I", struct.pack("<f", x))[0]

SRD_X, SRD_W, SRD_WS, SRD_DBG, SRD_GW = 8, 12, 16, 20, 24
sW, sHH, sTQ, sHP, sTB = 28, 29, 30, 31, 32
sW1K = 33
sXJ = 34
sWJ = 35
sRING = 36
sRINGW = 37
sJ = 38
sT0, sT1, sT2, sT3 = 40, 41, 42, 43
sXQ = 44
sKVSRC = 45
sSLOT = 46
sBLK = 47
sM = 48
sM2 = 50
sOOFF = 52
sCNT = 53
sMB = 54
sLDSW = 55
sSRC = 39
sOFFS = 64
sNXT = 65
sCHKJ = 66
sARRJ = 67
sGOFF = 68
sKVO = 35
sPF = 47
SRD_WO, SRD_OUT = 4, 56
sTB3, sCB, sROT, sMB2 = 60, 61, 62, 63
sAOFF, sWOFF = 100, 101
sLDSW3 = 34
vDW3 = 6
vLANE = 0
vDX, vDW, vXP, vWP, vXA, vW0 = 2, 3, 4, 5, 6, 7
vL16 = 10
vXB = 11
vT = 12
FR = [64, 84]
ACC = 160
QF = 16
OA = 32
LA = 64
NM = 72
SS = 104
PP = 136
KF = 160
VF = 168
ONES = 144
IDX = 148
vCUR, vNXT = 2, 3
vKVB, vDMA = 4, 5
vCHK = 15
vPA, vPV = 149, 150

RING = 20 * 8192
NSLOT3 = 10

def wrap_add(a, dst, src, const, tmp):
    a(f"s_add_u32 {sr(tmp)}, {sr(src)}, {const}")
    a(f"s_sub_u32 {dst}, {sr(tmp)}, {RING}")
    a(f"s_cselect_b32 {dst}, {sr(tmp)}, {dst}")

def prologue(a, opt):
    a(f"""
    s_cmp_ge_u32 s2, 256
    s_cbranch_scc1 L_end12
    """)
    if opt.get("codepf", 1):
        a("""
        s_getpc_b64 s[92:93]
        L_pc12:
        s_mov_b32 s3, L_end12-L_pc12
        v_lshlrev_b32 v1, 6, v0
        v_min_u32 v1, s3, v1
        global_load_dword v33, v1, s[92:93]
        """)
        if opt.get("unroll_attn"):
            a("""
            v_lshlrev_b32 v1, 6, v0
            v_add_u32 v1, 0x8000, v1
            v_min_u32 v1, s3, v1
            global_load_dword v34, v1, s[92:93]
            """)
    a(f"""
    s_load_dwordx4 s[56:59], s[0:1], 0
    s_load_dwordx2 s[60:61], s[0:1], 32
    s_load_dwordx2 s[62:63], s[0:1], 48
    s_load_dwordx4 s[88:91], s[0:1], 64
    s_load_dwordx2 s[94:95], s[0:1], 16
    s_load_dwordx2 s[96:97], s[0:1], 40
    s_load_dwordx2 s[98:99], s[0:1], 56
    v_lshrrev_b32 v1, 6, v0
    v_and_b32 v0, 63, v0
    s_and_b32 s3, s2, 7
    v_readfirstlane_b32 {sr(sW)}, v1
    s_lshr_b32 s4, s2, 3
    s_add_u32 s5, s4, {opt.get("hpshift", 0)}
    s_and_b32 s5, s5, 3
    s_lshl_b32 s3, s3, 2
    s_add_u32 {sr(sHP)}, s3, s5
    s_lshr_b32 {sr(sTB)}, s4, 2
    s_lshr_b32 {sr(sHH)}, {sr(sW)}, 2
    s_and_b32 {sr(sTQ)}, {sr(sW)}, 3
    s_lshl_b32 {sr(sW1K)}, {sr(sW)}, 10
    """)
    a(f"""
    v_lshrrev_b32 v13, 3, v0                 ; r8
    v_and_b32 v14, 7, v0                     ; c'
    s_and_b32 {sr(sT0)}, {sr(sW)}, 1
    s_lshl_b32 {sr(sT0)}, {sr(sT0)}, 2
    v_lshrrev_b32 v15, 1, v13                ; r8>>1 (0..3)
    v_add_u32 v1, {sr(sT0)}, v15             ; 4*(w&1) + (r8>>1)
    v_xor_b32 v1, v1, v14                    ; cX
    s_lshl_b32 {sr(sT1)}, {sr(sW)}, 3
    v_add_u32 v13, {sr(sT1)}, v13            ; 8w + r8
    v_lshlrev_b32 {vr(vDX)}, 11, v13
    v_lshl_add_u32 {vr(vDX)}, v1, 4, {vr(vDX)}
    v_and_b32 v15, 1, v15
    v_lshlrev_b32 v15, 2, v15
    v_xor_b32 v15, v15, v14                  ; cW
    s_and_b32 {sr(sT1)}, {sr(sW)}, {1 if opt.get("g16", 1) else 0}
    s_lshl_b32 {sr(sT1)}, {sr(sT1)}, 1
    v_xor_b32 v15, {sr(sT1)}, v15
    s_mov_b32 {sr(sT1)}, 6144
    v_mul_lo_u32 {vr(vDW)}, v13, {sr(sT1)}
    v_lshl_add_u32 {vr(vDW)}, v15, 4, {vr(vDW)}
    s_lshl_b32 {sr(sXJ)}, {sr(sTB)}, 19          ; tb*256*2048
    s_and_b32 {sr(sWJ)}, {sr(sHP)}, 15
    s_lshl_b32 {sr(sWJ)}, {sr(sWJ)}, 7           ; hpl*128
    """)
    if opt.get("g16", 1):
        a(f"""
        v_and_b32 v13, 15, v0
        v_lshrrev_b32 v14, 4, v0                 ; g
        v_bfe_u32 v15, v13, 1, 3
        v_xor_b32 v15, v15, v14
        v_lshlrev_b32 {vr(vXP)}, 7, v13
        v_lshl_add_u32 {vr(vXP)}, v15, 4, {vr(vXP)}
        v_bfe_u32 v13, v0, 2, 2                  ; r
        v_lshl_add_u32 v1, v14, 3, v13           ; 8g + r
        v_lshlrev_b32 {vr(vWP)}, 7, v1
        v_bfe_u32 v15, v0, 1, 1                  ; c>>1
        s_lshl_b32 {sr(sT1)}, {sr(sHH)}, 2
        v_add_u32 v15, {sr(sT1)}, v15            ; cc
        v_lshrrev_b32 v13, 1, v13
        v_lshlrev_b32 v13, 2, v13
        v_xor_b32 v15, v15, v13
        v_and_b32 v14, 1, v14
        v_lshlrev_b32 v14, 1, v14
        v_xor_b32 v15, v15, v14
        v_lshl_add_u32 {vr(vWP)}, v15, 4, {vr(vWP)}
        v_and_b32 v1, 1, v0
        v_lshl_add_u32 {vr(vWP)}, v1, 3, {vr(vWP)}
        v_lshlrev_b32 {vr(vL16)}, 4, v0
        s_add_u32 {sr(sXQ)}, {sr(sTQ)}, 3
        s_lshl_b32 {sr(sXQ)}, {sr(sXQ)}, 13
        """)
    else:
        a(f"""
    v_and_b32 v13, 31, v0
    v_lshrrev_b32 v14, 5, v0                 ; h
    v_bfe_u32 v15, v13, 1, 3
    v_xor_b32 v15, v15, v14
    v_lshlrev_b32 {vr(vXP)}, 7, v13
    v_lshl_add_u32 {vr(vXP)}, v15, 4, {vr(vXP)}
    v_bfe_u32 v13, v0, 2, 2                  ; r
    v_lshl_add_u32 v1, v14, 3, v13           ; 8h + r
    v_lshlrev_b32 {vr(vWP)}, 7, v1
    v_bfe_u32 v15, v0, 4, 1                  ; g
    v_lshlrev_b32 v15, 1, v15
    v_bfe_u32 v1, v0, 1, 1                   ; c>>1
    v_add_u32 v15, v15, v1
    s_lshl_b32 {sr(sT1)}, {sr(sHH)}, 2
    v_add_u32 v15, {sr(sT1)}, v15            ; cc
    v_lshrrev_b32 v13, 1, v13
    v_lshlrev_b32 v13, 2, v13
    v_xor_b32 v15, v15, v13
    v_lshl_add_u32 {vr(vWP)}, v15, 4, {vr(vWP)}
    v_and_b32 v1, 1, v0
    v_lshl_add_u32 {vr(vWP)}, v1, 3, {vr(vWP)}
    v_lshlrev_b32 {vr(vL16)}, 4, v0
    s_add_u32 {sr(sXQ)}, {sr(sTQ)}, 3
    s_lshl_b32 {sr(sXQ)}, {sr(sXQ)}, 13
        """)
    a("s_waitcnt lgkmcnt(0)")
    if opt.get("stamps_start"): timestamp(a, 1, opt)
    if opt.get("span2") or opt.get("span3"): a("s_memrealtime s[78:79]")
    a(f"""
    s_mov_b32 {sr(SRD_X)}, s56
    s_mov_b32 {sr(SRD_X+1)}, s57
    s_mov_b32 {sr(SRD_X+2)}, {2048*1024*2}
    s_mov_b32 {sr(SRD_X+3)}, 0x00020000
    s_cmp_ge_u32 {sr(sHP)}, 16
    s_cselect_b32 {sr(SRD_W)}, s60, s58
    s_cselect_b32 {sr(SRD_W+1)}, s61, s59
    s_mov_b32 {sr(SRD_W+2)}, {1024*3072*2}
    s_mov_b32 {sr(SRD_W+3)}, 0x00020000
    """)
    if opt.get("wpf0", 0):
        a(f"""
        s_and_b32 {sr(sT0)}, {sr(sHP)}, 15
        s_lshl_b32 {sr(sT0)}, {sr(sT0)}, 3
        s_add_u32 {sr(sT0)}, {sr(sT0)}, {sr(sTB)}
        s_lshl_b32 {sr(sT0)}, {sr(sT0)}, 3
        s_add_u32 {sr(sT0)}, {sr(sT0)}, {sr(sW)}
        s_lshl_b32 {sr(sPF)}, {sr(sT0)}, 10
        buffer_load_dwordx4 v[36:39], {vr(vL16)}, {sr(SRD_W,4)}, {sr(sPF)} offen
        s_add_u32 {sr(sPF)}, {sr(sPF)}, {1 << 20}
        """)
    for g in range(14):
        dma_unit_static(a, g)
        if g == 6 and opt.get("stamps_start"): timestamp(a, 2, opt)
    if opt.get("stamps_start"): timestamp(a, 3, opt)
    if opt.get("span2") or opt.get("span3"): a("s_memrealtime s[80:81]")
    if opt.get("dbg_span") or opt.get("span2") or opt.get("span3"):
        a(f"""
        s_mov_b32 {sr(SRD_DBG)}, s88
        s_mov_b32 {sr(SRD_DBG+1)}, s89
        s_mov_b32 {sr(SRD_DBG+2)}, 256
        s_mov_b32 {sr(SRD_DBG+3)}, 0x00020000
        """)
    ex = []
    for u in range(6):
        g = 14 + u
        if u < 3:
            ex.append(f"""s_add_u32 m0, {sr(sW1K)}, {g * 8192}
            s_add_u32 {sr(sT0)}, {sr(sWJ)}, {u * 2048}
            buffer_load_dwordx4 {vr(vDW)}, {sr(SRD_W,4)}, {sr(sT0)} offen lds""")
        else:
            ex.append(f"""s_add_u32 m0, {sr(sW1K)}, {g * 8192}
            s_add_u32 {sr(sT0)}, {sr(sXJ)}, {(u - 3) * 131072}
            buffer_load_dwordx4 {vr(vDX)}, {sr(SRD_X,4)}, {sr(sT0)} offen lds""")
    ex.append(f"""
    s_mov_b32 {sr(SRD_WS)}, s90
    s_mov_b32 {sr(SRD_WS+1)}, s91
    s_mov_b32 {sr(SRD_WS+2)}, {WS_SIZE}
    s_mov_b32 {sr(SRD_WS+3)}, 0x00020000
    """)
    ex.append(f"""
    s_mov_b32 {sr(SRD_DBG)}, s88
    s_mov_b32 {sr(SRD_DBG+1)}, s89
    s_mov_b32 {sr(SRD_DBG+2)}, 256
    s_mov_b32 {sr(SRD_DBG+3)}, 0x00020000
    """)
    ex.append(f"""
    s_mov_b32 {sr(SRD_GW)}, s62
    s_mov_b32 {sr(SRD_GW+1)}, s63
    s_mov_b32 {sr(SRD_GW+2)}, 2048
    s_mov_b32 {sr(SRD_GW+3)}, 0x00020000
    """)
    ex.append(f"""
    s_and_b32 s3, s2, 7
    s_lshr_b32 {sr(sT1)}, s2, 3
    s_lshr_b32 {sr(sT0)}, s3, 1
    s_lshl_b32 {sr(sT0)}, {sr(sT0)}, 2
    s_and_b32 {sr(sTB3)}, {sr(sT1)}, 3
    s_add_u32 {sr(sTB3)}, {sr(sT0)}, {sr(sTB3)}
    s_and_b32 {sr(sT0)}, s3, 1
    s_lshl_b32 {sr(sT0)}, {sr(sT0)}, 3
    s_lshr_b32 {sr(sT1)}, {sr(sT1)}, 2
    s_add_u32 {sr(sCB)}, {sr(sT0)}, {sr(sT1)}
    """)
    if opt.get("late4", 0):
        rot = f"""s_and_b32 {sr(sROT)}, s2, 3
    s_lshl_b32 {sr(sROT)}, {sr(sROT)}, 2
    s_add_u32 {sr(sROT)}, {sr(sROT)}, 4
    s_and_b32 {sr(sROT)}, {sr(sROT)}, 15"""
    else:
        rot = f"""s_lshl_b32 {sr(sROT)}, {sr(sCB)}, {opt.get("rotsh", 0)}
    s_add_u32 {sr(sROT)}, {sr(sTB3)}, {sr(sROT)}
    s_and_b32 {sr(sROT)}, {sr(sROT)}, {opt.get("rotmask", 15)}"""
    ex.append(f"""
    {rot}
    s_lshl_b32 {sr(sMB2)}, {sr(sTB3)}, 4
    s_add_u32 {sr(sMB2)}, {sr(sMB2)}, {sr(sCB)}
    s_lshl_b32 {sr(sMB2)}, {sr(sMB2)}, 7
    s_add_u32 {sr(sMB2)}, {sr(sMB2)}, {WS_MB2}
    """)
    ex.append(f"""
    s_cmp_eq_u32 {sr(sHH)}, 1
    s_cselect_b32 {sr(SRD_WO)}, s96, s94
    s_cselect_b32 {sr(SRD_WO+1)}, s97, s95
    s_mov_b32 {sr(SRD_WO+2)}, {1024*1024*2}
    s_mov_b32 {sr(SRD_WO+3)}, 0x00020000
    """)
    ex.append(f"""
    s_mov_b32 {sr(SRD_OUT)}, s98
    s_mov_b32 {sr(SRD_OUT+1)}, s99
    s_mov_b32 {sr(SRD_OUT+2)}, {2048*1024*2}
    s_mov_b32 {sr(SRD_OUT+3)}, 0x00020000
    """)
    ex.append(f"""
    s_lshl_b32 {sr(sMB)}, {sr(sHP)}, 3
    s_add_u32 {sr(sMB)}, {sr(sMB)}, {sr(sTB)}
    s_lshl_b32 {sr(sMB)}, {sr(sMB)}, 7
    s_add_u32 {sr(sMB)}, {sr(sMB)}, {WS_MB}
    s_lshl_b32 {sr(sCNT)}, {sr(sHP)}, 3
    """)
    nr = a.label("nr")
    ex.append(f"""
    s_cmp_eq_u32 {sr(sW)}, 0
    s_cselect_b32 {sr(sCHKJ)}, 5, 0xffff
    s_cselect_b32 {sr(sARRJ)}, 11, 0xffff
    s_cbranch_scc0 {nr}
    v_lshlrev_b32 v12, 2, v0
    s_sub_u32 {sr(sT0)}, {sr(sMB2)}, 128
    v_mov_b32 v13, {sr(sMB)}
    v_mov_b32 v14, {sr(sT0)}
    v_cmp_gt_u32 vcc, 32, v0
    s_nop 1
    v_cndmask_b32 v13, v14, v13, vcc
    v_add_u32 v12, v12, v13
    v_mov_b32 v13, 0
    buffer_store_dword v13, v12, {sr(SRD_WS,4)}, 0 offen sc1
    {nr}:
    """)
    if not opt.get("wpf0", 0):
        ex.append(f"""
        s_and_b32 {sr(sT0)}, {sr(sHP)}, 15
        s_lshl_b32 {sr(sT0)}, {sr(sT0)}, 3
        s_add_u32 {sr(sT0)}, {sr(sT0)}, {sr(sTB)}
        s_lshl_b32 {sr(sT0)}, {sr(sT0)}, 3
        s_add_u32 {sr(sT0)}, {sr(sT0)}, {sr(sW)}
        s_lshl_b32 {sr(sT0)}, {sr(sT0)}, 10
        s_add_u32 {sr(sPF)}, {sr(sT0)}, {3 * 64 * 6144}
        """)
    ex.append(f"""
    s_lshl_b32 {sr(sT0)}, {sr(sTB)}, 8
    s_lshl_b32 {sr(sT1)}, {sr(sHP)}, 3
    s_add_u32 {sr(sT0)}, {sr(sT0)}, {sr(sT1)}
    s_add_u32 {sr(sT0)}, {sr(sT0)}, {sr(sW)}
    s_lshl_b32 {sr(sGOFF)}, {sr(sT0)}, 2
    s_lshl_b32 {sr(sT1)}, {sr(sT0)}, 11
    v_lshlrev_b32 v12, 5, v0
    buffer_load_dwordx4 v[16:19], v12, {sr(SRD_X,4)}, {sr(sT1)} offen
    buffer_load_dwordx4 v[20:23], v12, {sr(SRD_X,4)}, {sr(sT1)} offen offset:16
    """)
    ex.append(f"""
    v_lshlrev_b32 v12, 5, v0
    buffer_load_dwordx4 v[24:27], v12, {sr(SRD_GW,4)}, 0 offen
    buffer_load_dwordx4 v[28:31], v12, {sr(SRD_GW,4)}, 0 offen offset:16
    """)
    if opt.get("xpf", 0):
        ex.append(f"""
        s_lshl_b32 {sr(sT0)}, s2, 3
        s_add_u32 {sr(sT0)}, {sr(sT0)}, {sr(sW)}
        s_lshl_b32 {sr(sT0)}, {sr(sT0)}, 11
        buffer_load_dwordx4 v[40:43], {vr(vL16)}, {sr(SRD_X,4)}, {sr(sT0)} offen
        buffer_load_dwordx4 v[44:47], {vr(vL16)}, {sr(SRD_X,4)}, {sr(sT0)} offen offset:1024
        """)
    if opt.get("touch", 0):
        ex.append(f"""
        s_lshl_b32 {sr(sT0)}, {sr(sHP)}, 19
        s_lshl_b32 {sr(sT1)}, {sr(sTB)}, 20
        s_add_u32 {sr(sT1)}, {sr(sT1)}, {WS_O}
        buffer_load_dword v104, off, {sr(SRD_WS,4)}, {sr(sT0)}
        buffer_load_dword v105, off, {sr(SRD_WS,4)}, {sr(sT1)}
        """)
        ex.append(f"""
        s_lshl_b32 {sr(sT0)}, {sr(sTB3)}, 19
        s_add_u32 {sr(sT0)}, {sr(sT0)}, {WS_O}
        s_lshl_b32 {sr(sT1)}, {sr(sTB3)}, 18
        buffer_load_dword v106, off, {sr(SRD_WS,4)}, {sr(sT0)}
        buffer_load_dword v108, off, {sr(SRD_OUT,4)}, {sr(sT1)}
        """)
        ex.append(f"""
        s_mov_b32 {sr(sT0)}, {1024*1024*2 - 4}
        buffer_load_dword v107, off, {sr(SRD_WO,4)}, 0
        buffer_load_dword v109, off, {sr(SRD_WO,4)}, {sr(sT0)}
        """)
    return ex

def dma_unit_static(a, g):
    j, u = divmod(g, 7)
    a(f"s_add_u32 m0, {sr(sW1K)}, {(g % 20) * 8192}")
    if u < 3:
        a(f"s_add_u32 {sr(sT0)}, {sr(sWJ)}, {j * 64 * 6144 + u * 2048}")
        a(f"buffer_load_dwordx4 {vr(vDW)}, {sr(SRD_W,4)}, {sr(sT0)} offen lds")
    else:
        a(f"s_add_u32 {sr(sT0)}, {sr(sXJ)}, {j * 128 + (u - 3) * 131072}")
        a(f"buffer_load_dwordx4 {vr(vDX)}, {sr(SRD_X,4)}, {sr(sT0)} offen lds")

def gate_instrs():
    c = ["v_mov_b32 v12, 0"]
    for i in range(8):
        x, w = 16 + i, 24 + i
        c += [f"v_lshlrev_b32 v13, 16, v{x}", f"v_and_b32 v14, 0xffff0000, v{x}", f"v_lshlrev_b32 v32, 16, v{w}",
              f"v_and_b32 v1, 0xffff0000, v{w}", "v_mul_f32 v13, v13, v32", "v_mul_f32 v14, v14, v1",
              "v_cvt_pk_bf16_f32 v13, v13, v14", "v_lshlrev_b32 v14, 16, v13", "v_and_b32 v13, 0xffff0000, v13",
              "v_add_f32 v12, v12, v14", "v_add_f32 v12, v12, v13"]
    for sh in (1, 2, 4, 8):
        c += [f"s_nop 1\nv_add_f32_dpp v12, v12, v12 row_shr:{sh} row_mask:0xf bank_mask:0xf bound_ctrl:0"]
    c += ["s_nop 1\nv_add_f32_dpp v12, v12, v12 row_bcast:15 row_mask:0xa bank_mask:0xf"]
    c += ["s_nop 1\nv_add_f32_dpp v12, v12, v12 row_bcast:31 row_mask:0xc bank_mask:0xf"]
    c += ["s_nop 1\nv_cvt_pk_bf16_f32 v12, v12, v12", "v_lshlrev_b32 v12, 16, v12", f"v_mul_f32 v12, {hex(f2u(-LOG2E))}, v12",
          "v_exp_f32 v12, v12\ns_nop 0\nv_add_f32 v12, 1.0, v12", "v_rcp_f32 v12, v12\ns_nop 0\nv_cvt_pk_bf16_f32 v12, v12, v12",
          "v_lshlrev_b32 v12, 16, v12", f"v_mov_b32 v13, {WS_G}"]
    st = [f"""s_mov_b32 exec_lo, 0
    s_mov_b32 exec_hi, 0x80000000
    buffer_store_dword v12, v13, {sr(SRD_WS,4)}, {sr(sGOFF)} offen sc1
    s_mov_b64 exec, -1"""]
    return c, st

def frag(set_, name):
    off = {"X0": 0, "X1": 4, "Wq": 8, "Wk": 12, "Wv": 16}[name]
    return FR[set_] + off

def gemm_reads(ks, set_):
    r = []
    r.append(f"ds_read_b128 {vr(frag(set_,'X0'),4)}, {vr(vXA)}")
    for u, nm in enumerate(("Wq", "Wk", "Wv")):
        b = frag(set_, nm)
        r.append(f"ds_read_b64_tr_b16 {vr(b,2)}, {vr(vW0+u)} offset:{ks*2048}")
        r.append(f"ds_read_b64_tr_b16 {vr(b+2,2)}, {vr(vW0+u)} offset:{ks*2048+512}")
        if u == 0:
            r.append(f"ds_read_b128 {vr(frag(set_,'X1'),4)}, {vr(vXA)} offset:4096")
    return r

def gemm_mfmas(set_, first=False):
    m = []
    X0, X1 = frag(set_, "X0"), frag(set_, "X1")
    Wq, Wk, Wv = frag(set_, "Wq"), frag(set_, "Wk"), frag(set_, "Wv")
    def mf(acc, A, B): return f"v_mfma_f32_32x32x16_bf16 {vr(acc,16)}, {vr(A,4)}, {vr(B,4)}, {'0' if first else vr(acc,16)}"
    m.append(mf(ACC + 0, Wq, X0))
    m.append(mf(ACC + 32, Wk, X0))
    m.append(mf(ACC + 64, X0, Wv))
    m.append(mf(ACC + 16, Wq, X1))
    m.append(mf(ACC + 48, Wk, X1))
    m.append(mf(ACC + 80, X1, Wv))
    return m

def wrap_list(dst, src, const, tmp):
    return [f"s_add_u32 {sr(tmp)}, {sr(src)}, {const}", f"s_sub_u32 {dst}, {sr(tmp)}, {RING}", f"s_cselect_b32 {dst}, {sr(tmp)}, {dst}"]

def read_bases_list():
    r = [f"v_add_u32 {vr(vW0)}, {sr(sRING)}, {vr(vWP)}"]
    for u in (1, 2):
        r += wrap_list(sr(sT1), sRING, u * 8192, sT0)
        r.append(f"v_add_u32 {vr(vW0+u)}, {sr(sT1)}, {vr(vWP)}")
    r += [f"s_add_u32 {sr(sT0)}, {sr(sRING)}, {sr(sXQ)}", f"s_sub_u32 {sr(sT1)}, {sr(sT0)}, {RING}",
          f"s_cselect_b32 {sr(sT1)}, {sr(sT0)}, {sr(sT1)}", f"v_add_u32 {vr(vXB)}, {sr(sT1)}, {vr(vXP)}",
          f"v_mov_b32 {vr(vXA)}, {vr(vXB)}"]
    return r

def dma_group(i):
    if OPT.get("g_nodma"): return []
    s = [f"s_add_u32 {sr(sT2)}, {sr(sRINGW)}, {i * 8192}", f"s_sub_u32 m0, {sr(sT2)}, {RING}", f"s_cselect_b32 m0, {sr(sT2)}, m0"]
    if i == 0:
        s.append(f"s_add_u32 {sr(sT3)}, {sr(sXJ)}, {3 * 131072 - 128}")
        s.append(f"buffer_load_dwordx4 {vr(vDX)}, {sr(SRD_X,4)}, {sr(sT3)} offen lds")
    elif i <= 3:
        s.append(f"s_add_u32 {sr(sT3)}, {sr(sWJ)}, {(i - 1) * 2048}")
        s.append(f"buffer_load_dwordx4 {vr(vDW)}, {sr(SRD_W,4)}, {sr(sT3)} offen lds")
    else:
        s.append(f"s_add_u32 {sr(sT3)}, {sr(sXJ)}, {(i - 4) * 131072}")
        s.append(f"buffer_load_dwordx4 {vr(vDX)}, {sr(SRD_X,4)}, {sr(sT3)} offen lds")
    return s

def w_readahead():
    if not OPT.get("wpf", 1): return []
    return [f"buffer_load_dwordx4 v[36:39], {vr(vL16)}, {sr(SRD_W,4)}, {sr(sPF)} offen", f"s_add_u32 {sr(sPF)}, {sr(sPF)}, {1 << 20}"]

def kstep(a, cur, next_ks, gaps_extra, first=False):
    m = gemm_mfmas(cur, first)
    r = gemm_reads(next_ks, cur ^ 1) if next_ks is not None else []
    gaps = [[] for _ in range(6)]
    for i, x in enumerate(r):
        gaps[min(i // 3, 5)].append(x)
    for g in range(6):
        gaps[g] += gaps_extra.get(g, [])
    for i in range(6):
        a(m[i])
        for x in gaps[i]:
            a(x)

def gemm_stage(a, pending, new_batch, vm_wait, first=False, last=False, valu=None, after_bar=None):
    prio = OPT.get("gprio", 1)
    sp = lambda n: [f"s_setprio {n}"] if prio else []
    valu = list(valu or [])
    per = (len(valu) + 2) // 3
    for ks in range(3):
        ex = {}
        mine = [i for i in pending if (i - 2) // 2 == ks]
        if mine:
            ex[2] = dma_group(mine[0])
        if len(mine) > 1:
            ex[4] = dma_group(mine[1])
        chunk = valu[ks * per:(ks + 1) * per]
        n3 = (len(chunk) + 2) // 3
        for k, g in enumerate((1, 3, 5)):
            ex[g] = ex.get(g, []) + chunk[k * n3:(k + 1) * n3]
        ex[0] = sp(2 - ks)
        if ks < 2:
            ex[5] = ex.get(5, []) + [f"v_xor_b32 {vr(vXA)}, {(ks + 2) << 5}, {vr(vXB)}"]
        else:
            upd = [f"s_add_u32 {sr(sRINGW)}, {sr(sRING)}, {sr(sW1K)}", f"s_add_u32 {sr(sXJ)}, {sr(sXJ)}, 128",
                   f"s_add_u32 {sr(sWJ)}, {sr(sWJ)}, {64 * 6144}"] + wrap_list(sr(sRING), sRING, 7 * 8192, sT0)
            ex[3] = ex.get(3, []) + upd
            if not last:
                ex[4] = ex.get(4, []) + read_bases_list()
        a("s_waitcnt lgkmcnt(0)")
        kstep(a, ks & 1, ks + 1, ex, first=(first and ks == 0))
    if OPT.get("stampsg"):
        a("s_waitcnt lgkmcnt(0)")
        gstamp(a, 204)
    if vm_wait is not None:
        a(f"s_waitcnt vmcnt({vm_wait}) lgkmcnt(0)")
    else:
        a("s_waitcnt lgkmcnt(0)")
    if OPT.get("stampsg"): gstamp(a, 205)
    if not OPT.get("g_nobar"): a("s_barrier")
    if OPT.get("stampsg"):
        gstamp(a, 206)
        a("s_add_u32 s87, s87, 1")
    ex = {0: sp(3)}
    if len(new_batch) > 0: ex[2] = dma_group(new_batch[0])
    if len(new_batch) > 1: ex[4] = dma_group(new_batch[1]) + w_readahead()
    if not last:
        ex[5] = [f"v_xor_b32 {vr(vXA)}, {1 << 5}, {vr(vXB)}"]
    if after_bar:
        ex[5] = ex.get(5, []) + after_bar
    kstep(a, 1, None if last else 0, ex)

FR16 = [64, 104]
vW16 = [7, 8, 9, 48, 49, 50]

def g16_reads(step, set_):
    F = FR16[set_]
    r = []
    xs = [f"ds_read_b128 {vr(F + 4*i, 4)}, {vr(vXA)} offset:{i * 2048}" for i in range(4)]
    ws = []
    for u in range(3):
        for ft in range(2):
            b = F + 16 + 4 * (2 * u + ft)
            reg = vW16[u + 3 * ft]
            ws.append(f"ds_read_b64_tr_b16 {vr(b,2)}, {vr(reg)} offset:{step*4096}")
            ws.append(f"ds_read_b64_tr_b16 {vr(b+2,2)}, {vr(reg)} offset:{step*4096+512}")
    return [ws[0], ws[1], xs[0], xs[1], xs[2], xs[3]] + ws[2:]

def g16_mfmas(set_, first=False, order=(0, 1, 2, 3, 4, 5)):
    F = FR16[set_]
    m = []
    for f in order:
        for i in range(4):
            acc = ACC + 4 * (4 * f + i)
            W, X = F + 16 + 4 * f, F + 4 * i
            A, B = (W, X) if f < 4 else (X, W)
            m.append(f"v_mfma_f32_16x16x32_bf16 {vr(acc,4)}, {vr(A,4)}, {vr(B,4)}, {'0' if first else vr(acc,4)}")
    return m

def g16_bases():
    r = [f"v_add_u32 {vr(vW16[0])}, {sr(sRING)}, {vr(vWP)}", f"v_xor_b32 {vr(vW16[3])}, 32, {vr(vW16[0])}"]
    for u in (1, 2):
        r.append("\n".join(wrap_list(sr(sT1), sRING, u * 8192, sT0) + [f"v_add_u32 {vr(vW16[u])}, {sr(sT1)}, {vr(vWP)}"]))
        r.append(f"v_xor_b32 {vr(vW16[3+u])}, 32, {vr(vW16[u])}")
    r.append("\n".join([f"s_add_u32 {sr(sT0)}, {sr(sRING)}, {sr(sXQ)}", f"s_sub_u32 {sr(sT1)}, {sr(sT0)}, {RING}",
          f"s_cselect_b32 {sr(sT1)}, {sr(sT0)}, {sr(sT1)}", f"v_add_u32 {vr(vXB)}, {sr(sT1)}, {vr(vXP)}"]))
    r.append(f"v_mov_b32 {vr(vXA)}, {vr(vXB)}")
    return r

def g16_step(a, cur, next_step, gaps_extra, first=False, order=(0, 1, 2, 3, 4, 5)):
    m = g16_mfmas(cur, first, order)
    r = g16_reads(next_step, cur ^ 1) if next_step is not None else []
    rp = OPT.get("g16_rp", 1)
    for g in range(24):
        a(m[g])
        for x in r[rp * g:rp * g + rp]: a(x)
        for x in gaps_extra.get(g, []): a(x)

def g16_stage(a, pending, new_batch, vm_wait, first=False, last=False, valu=None, after_bar=None, ex1=None):
    prio = OPT.get("gprio", 1)
    sp = lambda n: [f"s_setprio {n}"] if prio else []
    valu = list(valu or [])
    ex = {g: [] for g in range(24)}
    pm = OPT.get("g16_pm", 12)
    ex[0] += sp(1); ex[pm] += sp(0)
    pg = OPT.get("g16_pg", [4, 9, 14])
    def place(ex, g, i):
        grp = dma_group(i)
        if not grp: return
        if OPT.get("g16_spread", 1):
            ex[g - 3].append(grp[0]); ex[g - 2].append(grp[1] + "\n" + grp[2]); ex[g - 1].append(grp[3]); ex[g].append(grp[4])
        else:
            ex[g].append("\n".join(grp))
    for k, i in enumerate(pending):
        place(ex, pg[k], i)
    for k, x in enumerate(valu):
        ex[min(k * 16 // max(len(valu), 1), 15) + (0 if first else 0)].append(x)
    upd = [f"s_add_u32 {sr(sRINGW)}, {sr(sRING)}, {sr(sW1K)}", f"s_add_u32 {sr(sXJ)}, {sr(sXJ)}, 128",
           f"s_add_u32 {sr(sWJ)}, {sr(sWJ)}, {64 * 6144}", "\n".join(wrap_list(sr(sRING), sRING, 7 * 8192, sT0))]
    if not last:
        for k, x in enumerate(upd): ex[16 + k // 2].append(x)
    if not last:
        for k, x in enumerate(g16_bases()): ex[18 + k * 5 // 8].append(x)
    a("s_waitcnt lgkmcnt(0)")
    g16_step(a, 0, 1, ex, first=first)
    if OPT.get("stampsg"):
        gstamp(a, 204)
    if vm_wait is not None:
        a(f"s_waitcnt vmcnt({vm_wait}) lgkmcnt(0)")
    else:
        a("s_waitcnt lgkmcnt(0)")
    if OPT.get("stampsg"): gstamp(a, 205)
    a("s_barrier")
    if OPT.get("stampsg"):
        gstamp(a, 206)
        a("s_add_u32 s87, s87, 1")
    ex = {g: [] for g in range(24)}
    ex[0] += sp(3); ex[pm] += sp(2)
    ng = OPT.get("g16_ng", [3, 8, 13, 18])
    for k, i in enumerate(new_batch):
        place(ex, ng[k], i)
    if len(new_batch) > 1:
        ex[20] += w_readahead()
    if not last:
        ex[22].append(f"v_xor_b32 {vr(vXA)}, 64, {vr(vXB)}")
    if after_bar:
        ex[23] += after_bar
    if ex1:
        for g, l in ex1.items(): ex[g] += l
    g16_step(a, 1, None if last else 0, ex, order=(2, 3, 4, 5, 0, 1) if last else (0, 1, 2, 3, 4, 5))

def gemm(a, opt, extras):
    if OPT.get("stampsg"): a("s_mov_b32 s87, 0")
    a(f"s_add_u32 {sr(sXJ)}, {sr(sXJ)}, {2 * 128}")
    a(f"s_add_u32 {sr(sWJ)}, {sr(sWJ)}, {2 * 64 * 6144}")
    a(f"s_mov_b32 {sr(sRING)}, 0")
    g16 = opt.get("g16", 1)
    for x in (g16_bases() if g16 else read_bases_list()): a(x)
    if opt.get("stamps_start"): timestamp(a, 4, opt)
    if opt.get("span2") or opt.get("span3"): a("s_memrealtime s[82:83]")
    nw = (6 if opt.get("touch", 0) else 0) + (2 if opt.get("xpf", 0) else 0)
    a(f"s_waitcnt vmcnt(7)")
    if opt.get("stamps_start"): timestamp(a, 5, opt)
    a("s_barrier")
    if opt.get("dbg_span"): dbg_span(a, "g0")
    if opt.get("span3"):
        sk = a.label("sk3")
        a(f"s_memrealtime s[76:77]")
        a(f"s_cmp_eq_u32 s2, {opt['span3']}")
        a(f"s_cbranch_scc0 {sk}")
        a(f"s_cmp_eq_u32 {sr(sW)}, 0")
        a(f"s_cbranch_scc0 {sk}")
        a("s_waitcnt lgkmcnt(0)")
        for reg, off in ((84, 4), (78, 12), (80, 20), (82, 28), (76, 36)):
            a(f"v_mov_b32 v12, s{reg}")
            a(f"s_mov_b32 s93, {off}")
            a("s_mov_b64 exec, 1")
            a(f"buffer_store_dword v12, off, {sr(SRD_DBG,4)}, s93 sc1")
            a("s_mov_b64 exec, -1")
        a(f"{sk}:")
    if opt.get("span2"):
        sk = a.label("sk2")
        a(f"s_memrealtime s[76:77]")
        a(f"s_cmp_eq_u32 {sr(sW)}, 0")
        a(f"s_cbranch_scc0 {sk}")
        a("s_waitcnt lgkmcnt(0)")
        a("s_not_b32 s75, s84")
        for reg, off in ((75, 4), (84, 60), (78, 20), (80, 36), (82, 52), (76, 44)):
            a(f"v_mov_b32 v12, s{reg}")
            a(f"s_mov_b32 s93, {off}")
            a("s_mov_b64 exec, 1")
            a(f"buffer_atomic_umax v12, off, {sr(SRD_DBG,4)}, s93 sc1")
            a("s_mov_b64 exec, -1")
        a(f"{sk}:")
    if opt.get("stamps_start"): timestamp(a, 6, opt)
    if g16:
        for x in g16_reads(0, 0): a(x)
        a(f"v_xor_b32 {vr(vXA)}, 64, {vr(vXB)}")
        g16_stage(a, [], [0, 1, 2, 3], 10 + nw, first=True, valu=extras)
    else:
        for x in gemm_reads(0, 0):
            a(x)
        a(f"v_xor_b32 {vr(vXA)}, {1 << 5}, {vr(vXB)}")
        gemm_stage(a, [], [0, 1], 10 + nw, first=True, valu=extras)
    a(f"s_mov_b32 {sr(sJ)}, 12")
    lab = a.label("gemm")
    a(".p2align 6")
    a(f"{lab}:")
    if opt.get("gshift"): a("s_nop 0")
    npf = 1 if opt.get("wpf", 1) else 0
    if g16: g16_stage(a, [4, 5, 6], [0, 1, 2, 3], 6 + npf)
    else: gemm_stage(a, [2, 3, 4, 5, 6], [0, 1], 6 + npf)
    nc = a.label("nc"); nd = a.label("nd")
    a(f"s_cmp_eq_u32 {sr(sJ)}, {sr(sARRJ)}")
    a(f"s_cbranch_scc0 {nd}")
    a(f"""
    v_mov_b32 v12, 1
    s_mov_b64 exec, 1
    buffer_atomic_add v12, off, {sr(SRD_DBG,4)}, {sr(sCNT)} sc1
    s_mov_b64 exec, -1
    s_nop 3
    """)
    a(f"{nd}:")
    a(f"s_cmp_eq_u32 {sr(sJ)}, {sr(sCHKJ)}")
    a(f"s_cbranch_scc0 {nc}")
    a(f"v_lshlrev_b32 v12, 2, v0")
    a(f"buffer_load_dword {vr(vCHK)}, v12, {sr(SRD_DBG,4)}, 0 offen sc1")
    a(f"{nc}:")
    a(f"s_sub_u32 {sr(sJ)}, {sr(sJ)}, 1")
    a(f"s_cmp_lg_u32 {sr(sJ)}, 0")
    a(f"s_cbranch_scc1 {lab}")
    gc, gs = gate_instrs()
    if g16:
        g16_stage(a, [4, 5, 6], [0], 6 + npf)
        g16_stage(a, [], [], 0, valu=gc, after_bar=gs + ["s_nop 3"])
        g16_stage(a, [], [], None, last=True, valu=setup_scalar_items(), ex1=last_step_items())
    else:
        gemm_stage(a, [2, 3, 4, 5, 6], [0], 6 + npf)
        gemm_stage(a, [], [], 0, valu=gc, after_bar=gs + ["s_nop 3"])
        gemm_stage(a, [], [], None, last=True)
    a("s_setprio 0")
    a("s_nop 15")

vLK = 7

def g16_pack(a, dst, t0, t1):
    a(f"v_cvt_pk_bf16_f32 v{dst}, v{t0}, v{t0+1}")
    a(f"v_cvt_pk_bf16_f32 v{dst+1}, v{t0+2}, v{t0+3}")
    a(f"v_cvt_pk_bf16_f32 v{dst+2}, v{t1}, v{t1+1}")
    a(f"v_cvt_pk_bf16_f32 v{dst+3}, v{t1+2}, v{t1+3}")

def g16_swap(a, dst):
    a(f"v_permlane16_swap_b32 v{dst}, v{dst+2}")
    a(f"v_permlane16_swap_b32 v{dst+1}, v{dst+3}")

SS16 = SS

def kreg(T, f):
    return ACC + 32 + 16 * f + 8 * T if OPT.get("g16", 1) else ACC + 32 + 16 * T + 4 * f
def vreg(T, t):
    return ACC + 64 + 4 * (2 * T + t) if OPT.get("g16", 1) else ACC + 64 + 16 * T + 4 * t

sOWN = 3

def setup_scalar_items():
    return [f"""v_bfe_u32 v12, v0, 2, 1
    v_and_b32 v13, 3, v0
    v_mov_b32 v14, 0x3f803f80
    v_cmp_gt_u32 vcc, 2, v13""",
    f"""; sparse ones operand: row m = l&15 (r = m&3 < 2) sums the lane groups with parity (m>>2)&1; index picks register r of each pair
    v_cndmask_b32 v14, 0, v14, vcc
    v_cmp_eq_u32 vcc, 0, v12
    s_nop 1
    v_cndmask_b32 v{ONES}, 0, v14, vcc
    v_cndmask_b32 v{ONES+2}, v14, 0, vcc""",
    f"""v_mov_b32 v{ONES+1}, v{ONES}
    v_mov_b32 v{ONES+3}, v{ONES+2}
    v_mov_b32 v14, 0x4444
    v_mov_b32 v12, 0xeeee""",
    f"""v_cmp_eq_u32 vcc, 1, v13
    s_nop 1
    v_cndmask_b32 v{IDX}, v14, v12, vcc""",
    f"""s_lshl_b32 {sr(sT1)}, {sr(sHP)}, 1
    s_add_u32 {sr(sT1)}, {sr(sT1)}, {sr(sHH)}
    s_lshl_b32 {sr(sKVSRC)}, {sr(sT1)}, 18""",
    f"""s_lshl_b32 {sr(sT1)}, {sr(sTB)}, 15
    s_lshl_b32 {sr(sT0)}, {sr(sTQ)}, 13
    s_add_u32 {sr(sT1)}, {sr(sT1)}, {sr(sT0)}
    s_add_u32 {sr(sKVO)}, {sr(sT1)}, {sr(sKVSRC)}""",
    f"""s_lshl_b32 {sr(sT0)}, {sr(sHH)}, 14
    s_lshl_b32 {sr(sT1)}, {sr(sTQ)}, 12
    s_add_u32 {sr(sLDSW)}, {sr(sT0)}, {sr(sT1)}
    s_add_u32 {sr(sKVSRC)}, {sr(sKVSRC)}, {sr(sT1)}""",
    f"""s_lshl_b32 {sr(sSRC)}, {sr(sTB)}, 1
    s_add_u32 {sr(sSRC)}, {sr(sSRC)}, 2
    s_and_b32 {sr(sSRC)}, {sr(sSRC)}, 15
    s_lshl_b32 {sr(sSRC)}, {sr(sSRC)}, 14""",
    f"""s_mov_b32 {sr(sSLOT)}, {2 * 32768}
    s_mov_b32 {sr(sJ)}, 0
    s_lshl_b32 {sr(sWOFF)}, {sr(sCB)}, 7""",
    f"""s_lshl_b32 {sr(sLDSW3)}, {sr(sHH)}, 13
    s_lshl_b32 {sr(sT0)}, {sr(sTQ)}, 11
    s_add_u32 {sr(sLDSW3)}, {sr(sLDSW3)}, {sr(sT0)}""",
    f"""; own K/V tiles in LDS: (tq>>1)*32768 + hh*16384 + 2*(tq&1)*4096
    s_lshr_b32 {sr(sT1)}, {sr(sTQ)}, 1
    s_lshl_b32 {sr(sT1)}, {sr(sT1)}, 15
    s_lshl_b32 {sr(sT0)}, {sr(sHH)}, 14
    s_add_u32 {sr(sT1)}, {sr(sT1)}, {sr(sT0)}""",
    f"""s_and_b32 {sr(sT0)}, {sr(sTQ)}, 1
    s_lshl_b32 {sr(sT0)}, {sr(sT0)}, 13
    s_add_u32 {sr(sOWN)}, {sr(sT1)}, {sr(sT0)}"""]

def setup_vector_items():
    it = [f"""s_lshl_b32 {sr(sT0)}, {sr(sHH)}, 14
    v_add_u32 {vr(vKVB)}, {sr(sT0)}, {vr(vL16)}
    v_mov_b32 {vr(vCUR)}, {vr(vKVB)}
    v_add_u32 {vr(vNXT)}, 32768, {vr(vKVB)}
    v_add_u32 {vr(vDMA)}, {sr(sKVSRC)}, {vr(vL16)}
    v_lshlrev_b32 {vr(vPA)}, 2, v0""",
    f"""; key index with bits 2 and 3 swapped: the score rows then match the order of the V slots
    v_and_b32 v12, 0x33, v0
    v_bfe_u32 v13, v0, 2, 1
    v_bfe_u32 v14, v0, 3, 1""",
    f"""v_lshl_add_u32 v12, v13, 3, v12
    v_lshl_add_u32 v12, v14, 2, v12
    v_lshlrev_b32 {vr(vLK)}, 4, v12""",
    f"""; weights of the output projection: rows 16tt .. 16tt+15 of every stage (two pieces per wave)
    v_lshrrev_b32 v12, 3, v0
    v_and_b32 v13, 7, v0
    v_bfe_u32 v14, v12, 1, 1
    v_lshlrev_b32 v14, 2, v14""",
    f"""v_xor_b32 v13, v13, v14
    s_and_b32 {sr(sT0)}, {sr(sTQ)}, {1 if OPT.get("p16", 1) else 0}
    s_lshl_b32 {sr(sT0)}, {sr(sT0)}, 1
    v_xor_b32 v13, {sr(sT0)}, v13
    s_lshl_b32 {sr(sT0)}, {sr(sTQ)}, 4
    v_add_u32 v12, {sr(sT0)}, v12
    v_lshlrev_b32 {vr(vDW3)}, 11, v12
    v_lshl_add_u32 {vr(vDW3)}, v13, 4, {vr(vDW3)}"""]
    it.append("\n".join(f"v_mov_b32 v{LA+i}, 0" for i in range(4)))
    it.append("\n".join(f"v_mov_b32 v{LA+4+i}, 0" for i in range(4)))
    return it

def last_step_items():
    def tile(f, i): return ACC + 4 * (4 * f + i)
    def pack(dst, t0, t1):
        return "\n".join([f"v_cvt_pk_bf16_f32 v{dst}, v{t0}, v{t0+1}", f"v_cvt_pk_bf16_f32 v{dst+1}, v{t0+2}, v{t0+3}",
                          f"v_cvt_pk_bf16_f32 v{dst+2}, v{t1}, v{t1+1}", f"v_cvt_pk_bf16_f32 v{dst+3}, v{t1+2}, v{t1+3}"])
    def swap(dst):
        return f"v_permlane16_swap_b32 v{dst}, v{dst+2}\nv_permlane16_swap_b32 v{dst+1}, v{dst+3}"
    ex = {g: [] for g in range(24)}
    vi = setup_vector_items()
    for k, x in enumerate(vi): ex[[1, 3, 5, 8, 9, 10, 11][k]].append(x)
    kk = [(T, ft) for ft in range(2) for T in range(2)]
    for k, (T, ft) in enumerate(kk):
        ex[12 + k].append(pack(kreg(T, ft), tile(2 + ft, 2 * T), tile(2 + ft, 2 * T + 1)))
    for k, (T, ft) in enumerate(kk):
        ex[16 + k].append(swap(kreg(T, ft)))
    vv = [(T, t) for T in range(2) for t in range(2)]
    for k, (T, t) in enumerate(vv):
        ex[20 + k].append(pack(vreg(T, t), tile(4, 2 * T + t), tile(5, 2 * T + t)))
    return ex

def gemm_epilogue16(a, opt):
    def tile(f, i): return ACC + 4 * (4 * f + i)
    a("s_nop 1")
    for T in range(2):
        for f in range(2): g16_swap(a, vreg(T, f))
    if opt.get("half", 1):
        late = a.label("late")
        a(f"s_cmp_lt_u32 {sr(sTQ)}, 2")
        a(f"s_cbranch_scc0 {late}")
        kv_stores(a)
        a(f"{late}:")
    else:
        kv_stores(a)
    a(f"s_mov_b32 {sr(sT2)}, {hex(f2u(QSCALE))}")
    a(f"s_mov_b32 {sr(sT3)}, {hex(f2u(QSCALE))}")
    for k in range(16):
        a(f"v_pk_mul_f32 {vr(ACC+2*k,2)}, {vr(ACC+2*k,2)}, {sr(sT2,2)}")
    for T in range(2):
        for ft in range(2):
            g16_pack(a, QF + 8 * T + 4 * ft, tile(ft, 2 * T), tile(ft, 2 * T + 1))
    a("s_nop 1")
    for k in range(4): g16_swap(a, QF + 4 * k)
    a("s_nop 1")
    for x in range(2):
        S, Q = SS16 + 16 * x, QF + 8 * x
        a(f"v_mfma_f32_32x32x16_bf16 {vr(S,16)}, {vr(kreg(0,0),4)}, {vr(Q,4)}, 0")
        a(f"v_mfma_f32_32x32x16_bf16 {vr(S,16)}, {vr(kreg(0,1),4)}, {vr(Q+4,4)}, {vr(S,16)}")
    a(f"""
    v_add_u32 v12, {sr(sOWN)}, {vr(vL16)}
    v_add_u32 v13, {sr(sOWN)}, {vr(vLK)}
    """)
    for tt in range(2):
        a(f"ds_write_b128 v13, {vr(kreg(tt,0),4)} offset:{tt*4096}")
        a(f"ds_write_b128 v13, {vr(kreg(tt,1),4)} offset:{tt*4096+1024}")
        a(f"ds_write_b128 v12, {vr(vreg(tt,0),4)} offset:{tt*4096+2048}")
        a(f"ds_write_b128 v12, {vr(vreg(tt,1),4)} offset:{tt*4096+3072}")

def gemm_epilogue(a, opt):
    if opt.get("g16", 1):
        return gemm_epilogue16(a, opt)
    for tile in (2, 3, 4, 5):
        b = ACC + 16 * tile
        for i in range(8):
            a(f"v_cvt_pk_bf16_f32 v{b+i}, v{b+2*i}, v{b+2*i+1}")
    a(f"""
    s_lshl_b32 {sr(sT1)}, {sr(sHP)}, 1
    s_add_u32 {sr(sT1)}, {sr(sT1)}, {sr(sHH)}
    s_lshl_b32 {sr(sKVSRC)}, {sr(sT1)}, 18
    s_lshl_b32 {sr(sT1)}, {sr(sTB)}, 15
    s_lshl_b32 {sr(sT2)}, {sr(sTQ)}, 13
    s_add_u32 {sr(sT1)}, {sr(sT1)}, {sr(sT2)}
    s_add_u32 {sr(sKVO)}, {sr(sT1)}, {sr(sKVSRC)}
    """)
    if opt.get("half", 1):
        late = a.label("late")
        a(f"s_cmp_lt_u32 {sr(sTQ)}, 2")
        a(f"s_cbranch_scc0 {late}")
        kv_stores(a)
        a(f"{late}:")
    else:
        kv_stores(a)
    a(f"s_mov_b32 {sr(sT2)}, {hex(f2u(QSCALE))}")
    a(f"s_mov_b32 {sr(sT3)}, {hex(f2u(QSCALE))}")
    for tt in range(2):
        b = ACC + 16 * tt
        for i in range(8):
            a(f"v_pk_mul_f32 {vr(b+2*i,2)}, {vr(b+2*i,2)}, {sr(sT2,2)}")
        for i in range(8):
            a(f"v_cvt_pk_bf16_f32 v{QF+8*tt+i}, v{b+2*i}, v{b+2*i+1}")
    kb = ACC + 32
    a("s_nop 1")
    for x in range(2):
        S, Q = SS + 16 * x, QF + 8 * x
        a(f"v_mfma_f32_32x32x16_bf16 {vr(S,16)}, {vr(kb,4)}, {vr(Q,4)}, 0")
        a(f"v_mfma_f32_32x32x16_bf16 {vr(S,16)}, {vr(kb+4,4)}, {vr(Q+4,4)}, {vr(S,16)}")
    a(f"""
    s_lshr_b32 {sr(sT1)}, {sr(sTQ)}, 1
    s_lshl_b32 {sr(sT1)}, {sr(sT1)}, 15
    s_lshl_b32 {sr(sT2)}, {sr(sHH)}, 14
    s_add_u32 {sr(sT1)}, {sr(sT1)}, {sr(sT2)}
    s_and_b32 {sr(sT2)}, {sr(sTQ)}, 1
    s_lshl_b32 {sr(sT2)}, {sr(sT2)}, 13
    s_add_u32 {sr(sT1)}, {sr(sT1)}, {sr(sT2)}
    v_add_u32 v12, {sr(sT1)}, {vr(vL16)}
    """)
    for tt in range(2):
        kb, vb = ACC + 32 + 16 * tt, ACC + 64 + 16 * tt
        a(f"ds_write_b128 v12, {vr(kb,4)} offset:{tt*4096}")
        a(f"ds_write_b128 v12, {vr(kb+4,4)} offset:{tt*4096+1024}")
        a(f"ds_write_b128 v12, {vr(vb,4)} offset:{tt*4096+2048}")
        a(f"ds_write_b128 v12, {vr(vb+4,4)} offset:{tt*4096+3072}")
    if opt.get("dump_q"):
        a(f"""
        s_lshl_b32 {sr(sT1)}, s2, 3
        s_add_u32 {sr(sT1)}, {sr(sT1)}, {sr(sW)}
        s_lshl_b32 {sr(sT1)}, {sr(sT1)}, 12
        s_add_u32 {sr(sT1)}, {sr(sT1)}, {WS_DBG}
        """)
        for i in range(4):
            a(f"buffer_store_dwordx4 {vr(QF+4*i,4)}, {vr(vL16)}, {sr(SRD_WS,4)}, {sr(sT1)} offen offset:{i*1024}")

def smf(L):
    return f"v_smfmac_f32_16x16x64_bf16 {vr(L,4)}, {vr(ONES,4)}, {vr(PP,8)}, {vr(IDX)}"

def attn_unit(a, t, x, hooks, skip_prev=False, c_zero=False):
    S = SS + 16 * x
    Sn = SS + 16 * (x ^ 1)
    xn = xp = x ^ 1
    Qn = QF + 8 * xn
    P0, P1 = PP, PP + 4
    def M(d, A, B, C): return f"v_mfma_f32_32x32x16_bf16 {vr(d,16)}, {vr(A,4)}, {vr(B,4)}, {C}"
    e = lambda i: f"v_exp_f32 v{S+i}, v{S+i}"
    c = lambda i: f"v_cvt_pk_bf16_f32 v{PP+i}, v{S+2*i}, v{S+2*i+1}"
    mf = [M(Sn, KF, Qn, vr(NM + 16 * xn, 16)),
          None if skip_prev else M(OA + 16 * xp, VF + 4, P1, vr(OA + 16 * xp, 16)),
          None if skip_prev else smf(LA + 4 * xp),
          M(Sn, KF + 4, Qn + 4, vr(Sn, 16)),
          M(OA + 16 * x, VF, P0, "0" if c_zero else vr(OA + 16 * x, 16))]
    va = [[e(0), e(1), e(2)], [e(3), e(4), e(5)], [e(6), e(7), c(0), c(1), c(2), c(3)],
          [e(8), e(9), e(10)], [e(11), e(12), e(13), e(14), e(15), c(4), c(5), c(6), c(7)]]
    for g in range(5):
        if mf[g]: a(mf[g])
        for h in hooks.get(g, []):
            a(h)
        for v in va[g]:
            a(v)

def kv_addr(tile, f):
    if tile < 4:
        return vCUR, tile * 4096 + f * 1024
    return vNXT, f * 1024

def rd(dst, tile, f):
    b, o = kv_addr(tile, f)
    return f"ds_read_b128 {vr(dst,4)}, {vr(b)} offset:{o}"

def kv_dma(p, so):
    return f"buffer_load_dwordx4 {vr(vDMA)}, {sr(SRD_WS,4)}, {sr(so)} offen offset:{p*1024} sc1 lds"

def sample_mailbox(a, off_s, lanes):
    sk = a.label("smp")
    a(f"s_cmp_eq_u32 {sr(sW)}, 0")
    a(f"s_cbranch_scc0 {sk}")
    a(f"s_mov_b32 exec_lo, {hex(lanes)}")
    a("s_mov_b32 exec_hi, 0")
    a(f"buffer_load_dword {vr(vPV)}, {vr(vPA)}, {sr(SRD_WS,4)}, {sr(off_s)} offen sc1")
    a("s_mov_b64 exec, -1")
    a("s_nop 3")
    a(f"{sk}:")

def poll_mailbox(a, want_all):
    poll, done = a.label("poll"), a.label("pdone")
    a(f"s_mov_b32 {sr(sT1)}, 400000")
    a(f"s_add_u32 {sr(sT2)}, {sr(sTB)}, 1")
    a(f"s_and_b32 {sr(sT2)}, {sr(sT2)}, 7")
    a(f"s_lshl_b32 {sr(sT2)}, 1, {sr(sT2)}")
    if want_all == "b1a2":
        a(f"s_lshl_b32 {sr(sT2)}, {sr(sT2)}, 8")
        a(f"s_add_u32 {sr(sT3)}, {sr(sTB)}, 2")
        a(f"s_and_b32 {sr(sT3)}, {sr(sT3)}, 7")
        a(f"s_lshl_b32 {sr(sT3)}, 1, {sr(sT3)}")
        a(f"s_or_b32 {sr(sT2)}, {sr(sT2)}, {sr(sT3)}")
    elif want_all:
        a(f"s_mov_b32 {sr(sT2)}, {0xffff if OPT.get('half', 1) else 0xff}")
    a("s_mov_b64 exec, 0xffff")
    a(f"{poll}:")
    a("s_waitcnt vmcnt(0)")
    a(f"v_cmp_eq_u32 vcc, 1, {vr(vPV)}")
    a("s_nop 3")
    a(f"s_and_b32 {sr(sT3)}, vcc_lo, {sr(sT2)}")
    a(f"s_cmp_eq_u32 {sr(sT3)}, {sr(sT2)}")
    a(f"s_cbranch_scc1 {done}")
    a(f"s_sub_u32 {sr(sT1)}, {sr(sT1)}, 1")
    a(f"s_cbranch_scc1 {done}")
    a(f"buffer_load_dword {vr(vPV)}, {vr(vPA)}, {sr(SRD_WS,4)}, {sr(sMB)} offen sc1")
    a(f"s_branch {poll}")
    a(f"{done}:")
    a("s_mov_b64 exec, -1")

def publish(a):
    spin, ok = a.label("rdy"), a.label("rdyok")
    a(f"s_mov_b32 {sr(sT1)}, 400000")
    a(f"s_mov_b32 {sr(sT2)}, 0x55555555")
    a(f"v_lshlrev_b32 v12, 2, v0")
    a(f"{spin}:")
    a(f"v_cmp_eq_u32 vcc, 8, {vr(vCHK)}")
    a("s_nop 3")
    a(f"s_and_b32 {sr(sT0)}, vcc_lo, {sr(sT2)}")
    a(f"s_and_b32 {sr(sT3)}, vcc_hi, {sr(sT2)}")
    a(f"s_and_b32 {sr(sT0)}, {sr(sT0)}, {sr(sT3)}")
    a(f"s_cmp_eq_u32 {sr(sT0)}, {sr(sT2)}")
    a(f"s_cbranch_scc1 {ok}")
    a(f"s_sub_u32 {sr(sT1)}, {sr(sT1)}, 1")
    a(f"s_cbranch_scc1 {ok}")
    a(f"buffer_load_dword {vr(vCHK)}, v12, {sr(SRD_DBG,4)}, 0 offen sc1")
    a("s_waitcnt vmcnt(0)")
    a(f"s_branch {spin}")
    a(f"{ok}:")
    a(f"""
    s_lshl_b32 {sr(sT0)}, {sr(sHP)}, 10
    s_lshl_b32 {sr(sT1)}, {sr(sTB)}, 2
    s_add_u32 {sr(sT0)}, {sr(sT0)}, {sr(sT1)}
    s_add_u32 {sr(sT0)}, {sr(sT0)}, {WS_MB}
    v_lshlrev_b32 v12, 7, v0
    v_mov_b32 v13, 1
    s_mov_b64 exec, 0xff
    buffer_store_dword v13, v12, {sr(SRD_WS,4)}, {sr(sT0)} offen sc1
    s_mov_b64 exec, -1
    """)

def publish_b(a):
    a(f"""
    s_lshl_b32 {sr(sT0)}, {sr(sHP)}, 10
    s_lshl_b32 {sr(sT1)}, {sr(sTB)}, 2
    s_add_u32 {sr(sT0)}, {sr(sT0)}, {sr(sT1)}
    s_add_u32 {sr(sT0)}, {sr(sT0)}, {WS_MB + 32}
    v_lshlrev_b32 v12, 7, v0
    v_mov_b32 v13, 1
    s_mov_b64 exec, 0xff
    buffer_store_dword v13, v12, {sr(SRD_WS,4)}, {sr(sT0)} offen sc1
    s_mov_b64 exec, -1
    """)

def kv_stores(a):
    a(f"s_add_u32 {sr(sT2)}, {sr(sKVO)}, 4096")
    for tt in range(2):
        so = sKVO if tt == 0 else sT2
        vk = vLK if OPT.get("g16", 1) else vL16
        a(f"buffer_store_dwordx4 {vr(kreg(tt,0),4)}, {vr(vk)}, {sr(SRD_WS,4)}, {sr(so)} offen sc1")
        a(f"buffer_store_dwordx4 {vr(kreg(tt,1),4)}, {vr(vk)}, {sr(SRD_WS,4)}, {sr(so)} offen offset:1024 sc1")
        a(f"buffer_store_dwordx4 {vr(vreg(tt,0),4)}, {vr(vL16)}, {sr(SRD_WS,4)}, {sr(so)} offen offset:2048 sc1")
        a(f"buffer_store_dwordx4 {vr(vreg(tt,1),4)}, {vr(vL16)}, {sr(SRD_WS,4)}, {sr(so)} offen offset:3072 sc1")

def wo_piece(i, half):
    return [f"s_add_u32 {sr(sT0)}, {sr(sROT)}, {i}", f"s_and_b32 {sr(sT0)}, {sr(sT0)}, 15", f"s_lshl_b32 {sr(sT0)}, {sr(sT0)}, 17",
            f"s_add_u32 {sr(sT0)}, {sr(sT0)}, {sr(sWOFF)}"] + ([f"s_add_u32 {sr(sT0)}, {sr(sT0)}, 16384"] if half else []) + \
           [f"s_add_u32 m0, {sr(sLDSW3)}, {(i % NSLOT3) * 16384 + half * 1024}", "s_nop 0",
            f"buffer_load_dwordx4 {vr(vDW3)}, {sr(SRD_WO,4)}, {sr(sT0)} offen lds"]

def attn_stage(a, opt, kind, s_=None):
    prio = opt.get("prio", 1)
    def sp(n): return [f"s_setprio {n}"] if prio else []
    for t in range(4):
        h0 = {0: [rd(KF, t + 1, 0)], 1: [rd(VF + 4, t, 3)], 2: ["s_waitcnt lgkmcnt(2)"],
              3: [rd(KF + 4, t + 1, 1)], 4: ["s_waitcnt lgkmcnt(2)"]}
        h1 = {0: ["s_waitcnt lgkmcnt(1)"], 1: [], 2: ["s_waitcnt lgkmcnt(0)"], 3: [], 4: [rd(VF, t + 1, 2)]}
        if (kind == 1 and t in (0, 2)) or (kind == 4 and t == 2):
            sample_mailbox(a, sMB, 0xffff)
        if t == 0:
            h0[0] += sp(2)
            h0[4] += [f"s_mov_b32 {sr(sNXT)}, {sr(sSLOT)}"]
            h1[1] = [f"s_add_u32 {sr(sSRC)}, {sr(sSRC)}, 16384"]
            h1[3] = [f"s_and_b32 {sr(sSRC)}, {sr(sSRC)}, 0x3ffff"]
        if t == 1:
            h0[0] += sp(1)
            h1[1] = [f"s_add_u32 {sr(sSLOT)}, {sr(sSLOT)}, 32768"]
            h1[3] = [f"s_and_b32 {sr(sSLOT)}, {sr(sSLOT)}, 0x1ffff"]
            if kind == 0:
                h1[4] += ["s_waitcnt vmcnt(0)", "s_barrier"]
            if kind == 3 and s_ == 13:
                h0[2] += wo_piece(8, 0)
                h0[4] += wo_piece(8, 1)
                h1[0] += wo_piece(9, 0)
                h1[2] += wo_piece(9, 1)
            if kind == 1:
                go = a.label("go")
                lanestamp(a, 203, opt, 0)
                half = opt.get("half", 1)
                if half: a("s_waitcnt vmcnt(0)")
                a(f"s_cmp_eq_u32 {sr(sW)}, 0")
                a(f"s_cbranch_scc0 {go}")
                poll_mailbox(a, False)
                a(f"{go}:")
                lanestamp(a, 203, opt, 1)
                a("s_barrier")
                lanestamp(a, 203, opt, 2)
                for st in ((2,) if half else (2, 3)):
                    a(f"""
                    s_lshl_b32 {sr(sT0)}, {sr(sTB)}, 1
                    s_add_u32 {sr(sT0)}, {sr(sT0)}, {st}
                    s_and_b32 {sr(sT0)}, {sr(sT0)}, 15
                    s_lshl_b32 {sr(sOFFS)}, {sr(sT0)}, 14
                    s_add_u32 m0, {sr(sLDSW)}, {st * 32768}
                    s_nop 0
                    """)
                    for p in range(4):
                        a(kv_dma(p, sOFFS))
                if half:
                    nb = a.label("nb")
                    a(f"s_cmp_eq_u32 {sr(sW)}, 0")
                    a(f"s_cbranch_scc0 {nb}")
                    publish_b(a)
                    a(f"{nb}:")
        if t == 2:
            h0[0] += sp(0)
            h1[1] = [f"s_add_u32 m0, {sr(sSLOT)}, {sr(sLDSW)}"]
            h1[3] = [f"s_add_u32 {sr(sJ)}, {sr(sJ)}, 1"]
            if kind == 0:
                h1[4] += ["s_barrier"] + sp(3)
                if opt.get("half", 1):
                    ns = a.label("ns")
                    a(f"s_cmp_ge_u32 {sr(sTQ)}, 2")
                    a(f"s_cbranch_scc0 {ns}")
                    kv_stores(a)
                    a(f"{ns}:")
                np_ = a.label("np")
                a(f"s_cmp_eq_u32 {sr(sW)}, 0")
                a(f"s_cbranch_scc0 {np_}")
                publish(a)
                a(f"{np_}:")
            elif kind == 3 and s_ == 15:
                h1[4] += ["s_barrier"] + sp(3)
            elif kind == 3:
                h1[4] += ["s_waitcnt vmcnt(8)", "s_barrier"] + sp(3)
            elif kind not in (1, 4):
                h1[4] += ["s_waitcnt vmcnt(4)", "s_barrier"] + sp(3)
        if t == 3:
            if kind == 3:
                q = s_ - 13
                h0[2] += wo_piece(2 * q, 0)
                h0[4] += wo_piece(2 * q, 1)
                h1[1] = wo_piece(2 * q + 1, 0)
                h1[3] = wo_piece(2 * q + 1, 1)
            elif kind != 0:
                h0[2] += [kv_dma(0, sSRC)]
                h0[4] += [kv_dma(1, sSRC)]
                h1[1] = [kv_dma(2, sSRC)]
                h1[3] = [kv_dma(3, sSRC)]
            if kind == 1:
                go = a.label("go")
                a(f"s_cmp_eq_u32 {sr(sW)}, 0")
                a(f"s_cbranch_scc0 {go}")
                poll_mailbox(a, "b1a2" if opt.get("prog", 1) and opt.get("half", 1) else True)
                a(f"{go}:")
                if opt.get("half", 1):
                    a("s_waitcnt vmcnt(0)")
                    a("s_barrier")
                    a(f"""
                    s_lshl_b32 {sr(sT0)}, {sr(sTB)}, 1
                    s_add_u32 {sr(sT0)}, {sr(sT0)}, 3
                    s_and_b32 {sr(sT0)}, {sr(sT0)}, 15
                    s_lshl_b32 {sr(sOFFS)}, {sr(sT0)}, 14
                    s_add_u32 m0, {sr(sLDSW)}, {3 * 32768}
                    s_nop 0
                    """)
                    for p in range(4):
                        a(kv_dma(p, sOFFS))
                    a(f"s_add_u32 m0, {sr(sSLOT)}, {sr(sLDSW)}")
                else:
                    a("s_waitcnt vmcnt(4)")
                    a("s_barrier")
                for x in sp(3): a(x)
            if kind == 4:
                go = a.label("go")
                a(f"s_cmp_eq_u32 {sr(sW)}, 0")
                a(f"s_cbranch_scc0 {go}")
                poll_mailbox(a, True)
                a(f"{go}:")
                a("s_waitcnt vmcnt(4)")
                a("s_barrier")
                for x in sp(3): a(x)
        first = kind == 0 and t == 0
        attn_unit(a, t, 0, h0, skip_prev=first, c_zero=first)
        attn_unit(a, t, 1, h1, c_zero=first)
    a(f"v_mov_b32 {vr(vCUR)}, {vr(vNXT)}")
    a(f"v_add_u32 {vr(vNXT)}, {sr(sNXT)}, {vr(vKVB)}")

def attention(a, opt):
    if not opt.get("g16", 1):
        a(f"""
    v_bfe_u32 v12, v0, 2, 1
    v_and_b32 v13, 3, v0
    v_mov_b32 v14, 0x3f803f80
    v_cmp_gt_u32 vcc, 2, v13
    s_nop 1
    v_cndmask_b32 v14, 0, v14, vcc
    v_cmp_eq_u32 vcc, 0, v12
    s_nop 1
    v_cndmask_b32 v{ONES}, 0, v14, vcc
    v_cndmask_b32 v{ONES+2}, v14, 0, vcc
    v_mov_b32 v{ONES+1}, v{ONES}
    v_mov_b32 v{ONES+3}, v{ONES+2}
    v_mov_b32 v14, 0x4444
    v_mov_b32 v12, 0xeeee
    v_cmp_eq_u32 vcc, 1, v13
    s_nop 1
    v_cndmask_b32 v{IDX}, v14, v12, vcc
    s_lshl_b32 {sr(sT0)}, {sr(sHH)}, 14
    v_add_u32 {vr(vKVB)}, {sr(sT0)}, {vr(vL16)}
    v_mov_b32 {vr(vCUR)}, {vr(vKVB)}
    v_add_u32 {vr(vNXT)}, 32768, {vr(vKVB)}
    s_lshl_b32 {sr(sT1)}, {sr(sTQ)}, 12
    s_add_u32 {sr(sLDSW)}, {sr(sT0)}, {sr(sT1)}
    s_add_u32 {sr(sKVSRC)}, {sr(sKVSRC)}, {sr(sT1)}
    v_add_u32 {vr(vDMA)}, {sr(sKVSRC)}, {vr(vL16)}
    s_lshl_b32 {sr(sSRC)}, {sr(sTB)}, 1
    s_add_u32 {sr(sSRC)}, {sr(sSRC)}, 2
    s_and_b32 {sr(sSRC)}, {sr(sSRC)}, 15
    s_lshl_b32 {sr(sSRC)}, {sr(sSRC)}, 14
    s_mov_b32 {sr(sSLOT)}, {2 * 32768}
    s_mov_b32 {sr(sJ)}, 0
    v_lshrrev_b32 v12, 3, v0
    v_and_b32 v13, 7, v0
    v_bfe_u32 v14, v12, 1, 1
    v_lshlrev_b32 v14, 2, v14
    v_xor_b32 v13, v13, v14
    s_lshl_b32 {sr(sT0)}, {sr(sTQ)}, 4
    v_add_u32 v12, {sr(sT0)}, v12
    v_lshlrev_b32 {vr(vDW3)}, 11, v12
    v_lshl_add_u32 {vr(vDW3)}, v13, 4, {vr(vDW3)}
    s_lshl_b32 {sr(sWOFF)}, {sr(sCB)}, 7
    s_lshl_b32 {sr(sLDSW3)}, {sr(sHH)}, 13
    s_lshl_b32 {sr(sT0)}, {sr(sTQ)}, 11
    s_add_u32 {sr(sLDSW3)}, {sr(sLDSW3)}, {sr(sT0)}
        """)
        for i in range(8): a(f"v_mov_b32 v{LA+i}, 0")
    else:
        a("s_nop 7")
    for x in range(2):
        S = SS + 16 * x
        a(f"v_max3_f32 v12, v{S}, v{S+1}, v{S+2}")
        for i in range(3, 15, 2):
            a(f"v_max3_f32 v12, v12, v{S+i}, v{S+i+1}")
        a(f"v_max_f32 v12, v12, v{S+15}")
        a(f"""
        v_mov_b32 v13, v12
        s_nop 1
        v_permlane32_swap_b32 v13, v12
        s_nop 1
        v_max_f32 v12, v12, v13
        v_sub_f32 v12, 0, v12
        """)
        for i in range(16):
            a(f"v_mov_b32 v{NM+16*x+i}, v12")
    a("s_waitcnt lgkmcnt(0)")
    a("s_barrier")
    a(rd(KF, 0, 0)); a(rd(KF + 4, 0, 1)); a(rd(VF, 0, 2))
    a("s_waitcnt lgkmcnt(1)")
    a(f"v_mfma_f32_32x32x16_bf16 {vr(SS,16)}, {vr(KF,4)}, {vr(QF,4)}, {vr(NM,16)}")
    a(f"v_mfma_f32_32x32x16_bf16 {vr(SS,16)}, {vr(KF+4,4)}, {vr(QF+4,4)}, {vr(SS,16)}")
    lanestamp(a, 203, opt, 3)
    a("s_waitcnt lgkmcnt(0)")
    a("s_nop 15")
    attn_stage(a, opt, 0)
    lanestamp(a, 202, opt, 0)
    attn_stage(a, opt, 1)
    lanestamp(a, 202, opt, 1)
    if opt.get("prog", 1) and opt.get("half", 1):
        attn_stage(a, opt, 4)
        lanestamp(a, 202, opt, 2)
    if opt.get("unroll_attn"):
        for _ in range(10 if (opt.get("prog", 1) and opt.get("half", 1)) else 11):
            attn_stage(a, opt, 2)
    else:
        loop = a.label("attn")
        a(".p2align 6")
        a(f"{loop}:")
        if opt.get("ashift"): a("s_nop 0")
        attn_stage(a, opt, 2)
        lanestamp(a, 202, opt, "m")
        a(f"s_cmp_lt_u32 {sr(sJ)}, 13")
        a(f"s_cbranch_scc1 {loop}")
    for s_ in (13, 14, 15):
        attn_stage(a, opt, 3, s_)
        lanestamp(a, 202, opt, s_)
    a("s_setprio 0")
    a("s_nop 1")
    a(f"v_mfma_f32_32x32x16_bf16 {vr(OA+16,16)}, {vr(VF+4,4)}, {vr(PP+4,4)}, {vr(OA+16,16)}")
    a(smf(LA + 4))
    a("s_waitcnt lgkmcnt(0)")

def attn_epilogue(a, opt):
    a(f"""
    s_lshl_b32 {sr(sT0)}, {sr(sTB)}, 3
    s_lshl_b32 {sr(sT1)}, {sr(sTQ)}, 1
    s_add_u32 {sr(sT0)}, {sr(sT0)}, {sr(sT1)}
    s_lshl_b32 {sr(sT0)}, {sr(sT0)}, 17
    s_lshl_b32 {sr(sT1)}, {sr(sHP)}, 1
    s_add_u32 {sr(sT1)}, {sr(sT1)}, {sr(sHH)}
    s_lshl_b32 {sr(sT1)}, {sr(sT1)}, 11
    s_add_u32 {sr(sT0)}, {sr(sT0)}, {sr(sT1)}
    s_add_u32 {sr(sOOFF)}, {sr(sT0)}, {WS_O}
    s_mov_b32 {sr(sT2)}, {hex(f2u(2.0**24))}
    s_nop 7
    """)
    ok = a.label("ok")
    a("v_mov_b32 v12, 0")
    a("v_mov_b32 v13, 0")
    a(f"v_add_f32 v{LA}, v{LA}, v{LA+1}")
    a(f"v_add_f32 v{LA+4}, v{LA+4}, v{LA+5}")
    for i in range(16):
        a(f"v_pk_fma_f32 v[12:13], {vr(OA+2*i,2)}, 0, v[12:13] op_sel_hi:[1,0,1]")
    a(f"v_cmp_nle_f32 {sr(sM,2)}, v{LA}, {sr(sT2)}")
    a(f"v_cmp_nle_f32 {sr(sM2,2)}, v{LA+4}, {sr(sT2)}")
    a("v_cmp_u_f32 vcc, v12, v13")
    a(f"s_or_b64 {sr(sM,2)}, {sr(sM,2)}, {sr(sM2,2)}")
    a(f"s_or_b64 {sr(sM,2)}, {sr(sM,2)}, vcc")
    if opt.get("force_fallback"):
        a(f"s_mov_b64 {sr(sM,2)}, -1")
    a(f"s_cmp_eq_u64 {sr(sM,2)}, 0")
    a(f"s_cbranch_scc1 {ok}")
    fallback(a, opt)
    a(f"{ok}:")
    a(f"v_rcp_f32 v12, v{LA}")
    a(f"v_rcp_f32 v14, v{LA+4}")
    for x in range(2):
        r = (12, 14)[x]
        a(f"v_mov_b32 v{r+1}, v{r}" if x == 1 else f"v_mov_b32 v13, v12")
        b = OA + 16 * x
        for i in range(8):
            a(f"v_pk_mul_f32 {vr(b+2*i,2)}, {vr(b+2*i,2)}, {vr(r,2)}")
        for i in range(8):
            a(f"v_cvt_pk_bf16_f32 v{b+i}, v{b+2*i}, v{b+2*i+1}")
        if opt.get("p16", 1):
            a("s_nop 1")
            for i in range(4):
                a(f"v_permlane16_swap_b32 v{b+i}, v{b+4+i}")
        if x == 1:
            a(f"s_add_u32 {sr(sOOFF)}, {sr(sOOFF)}, 131072")
        a(f"buffer_store_dwordx4 {vr(b,4)}, {vr(vL16)}, {sr(SRD_WS,4)}, {sr(sOOFF)} offen sc1")
        a(f"buffer_store_dwordx4 {vr(b+4,4)}, {vr(vL16)}, {sr(SRD_WS,4)}, {sr(sOOFF)} offen offset:1024 sc1")

def phase3_16(a, opt):
    vm = VmTracker()
    ACC3, AF, OF, DEPTH, NSLOT = 16, 48, 96, opt.get("depth", 12), NSLOT3
    vRD = [[7, 8, 9, 11], [4, 5, 152, 153], [154, 155, 156, 157]]
    vG, vG2, vOUT = 14, 158, 13
    sample_mailbox(a, sMB2, 0xffffffff)
    a("s_waitcnt vmcnt(0)")
    a("s_barrier")
    timestamp(a, 4, opt)
    np_ = a.label("np3")
    a(f"s_cmp_eq_u32 {sr(sW)}, 0")
    a(f"s_cbranch_scc0 {np_}")
    a(f"""
    s_lshl_b32 {sr(sT0)}, {sr(sTB)}, 12
    s_lshl_b32 {sr(sT1)}, {sr(sHP)}, 2
    s_add_u32 {sr(sT0)}, {sr(sT0)}, {sr(sT1)}
    s_add_u32 {sr(sT0)}, {sr(sT0)}, {WS_MB2}
    v_lshlrev_b32 v12, 7, v0
    v_mov_b32 v15, 1
    s_mov_b32 exec_lo, -1
    s_mov_b32 exec_hi, 0
    buffer_store_dword v15, v12, {sr(SRD_WS,4)}, {sr(sT0)} offen sc1
    s_mov_b64 exec, -1
    """)
    def poll_o(first):
        poll = a.label("poll3"); done = a.label("pd3")
        a(f"""
        s_mov_b32 {sr(sT0)}, 400000
        s_lshr_b32 {sr(sT2)}, {sr(sTB3)}, 1
        s_cmp_eq_u32 {sr(sT2)}, {sr(sTB)}
        s_cselect_b32 {sr(sT2)}, 1, 0
        s_lshl_b32 {sr(sT2)}, {sr(sT2)}, {sr(sHP)}
        """)
        if first and opt.get("late4", 0):
            a(f"""
            s_add_u32 {sr(sT3)}, {sr(sROT)}, 12
            s_and_b32 {sr(sT3)}, {sr(sT3)}, 15
            s_lshl_b32 {sr(sT3)}, 0x000f000f, {sr(sT3)}
            s_or_b32 {sr(sT2)}, {sr(sT2)}, {sr(sT3)}
            """)
        a("s_mov_b32 exec_lo, -1")
        a("s_mov_b32 exec_hi, 0")
        a(f"{poll}:")
        a(f"v_cmp_eq_u32 vcc, 1, {vr(vPV)}")
        a("s_nop 3")
        a(f"s_or_b32 {sr(sT3)}, vcc_lo, {sr(sT2)}")
        a(f"s_cmp_eq_u32 {sr(sT3)}, -1")
        a(f"s_cbranch_scc1 {done}")
        a(f"s_sub_u32 {sr(sT0)}, {sr(sT0)}, 1")
        a(f"s_cbranch_scc1 {done}")
        a(f"buffer_load_dword {vr(vPV)}, {vr(vPA)}, {sr(SRD_WS,4)}, {sr(sMB2)} offen sc1")
        a("s_waitcnt vmcnt(0)")
        a(f"s_branch {poll}")
        a(f"{done}:")
        a("s_mov_b64 exec, -1")
        a("s_nop 3")
    poll_o(True)
    a(f"{np_}:")
    def wdma(i):
        for half in range(2):
            for x in wo_piece(i, half): a(x)
            vm.issue(("w", i))
    wdma(6); wdma(7)
    a(f"""
    v_and_b32 v12, 15, v0                          ; n
    s_lshl_b32 {sr(sT0)}, {sr(sTB3)}, 7
    s_lshl_b32 {sr(sT2)}, {sr(sTQ)}, 5
    s_add_u32 {sr(sT0)}, {sr(sT0)}, {sr(sT2)}
    v_add_u32 v12, {sr(sT0)}, v12
    v_lshlrev_b32 v3, 2, v12
    v_bfe_u32 v15, v0, 2, 2                        ; r
    v_bfe_u32 v1, v0, 4, 1                         ; g&1
    v_bfe_u32 v2, v0, 5, 1                         ; g>>1
    v_lshl_add_u32 v12, v2, 2, v15
    v_lshl_add_u32 v12, v1, 4, v12                 ; row
    v_lshlrev_b32 v12, 7, v12
    v_bfe_u32 v2, v0, 1, 1                         ; c>>1
    v_lshrrev_b32 v15, 1, v15
    v_lshlrev_b32 v15, 2, v15
    v_xor_b32 v2, v2, v15
    v_lshlrev_b32 v1, 1, v1
    v_xor_b32 v2, v2, v1
    v_lshl_add_u32 v12, v2, 4, v12
    v_and_b32 v1, 1, v0
    v_lshl_add_u32 v12, v1, 3, v12
    s_lshl_b32 {sr(sT0)}, {sr(sHH)}, 13
    v_add_u32 v{vRD[0][0]}, {sr(sT0)}, v12
    v_xor_b32 v{vRD[0][1]}, 32, v{vRD[0][0]}
    v_xor_b32 v{vRD[0][2]}, 64, v{vRD[0][0]}
    v_xor_b32 v{vRD[0][3]}, 96, v{vRD[0][0]}
    """)
    for win in (1, 2):
        for c in range(4):
            a(f"v_add_u32 v{vRD[win][c]}, {hex(win * 65536)}, v{vRD[0][c]}")
    a(f"""
    s_lshl_b32 {sr(sT0)}, {sr(sTB3)}, 2
    s_add_u32 {sr(sT0)}, {sr(sT0)}, {sr(sTQ)}
    s_lshl_b32 {sr(sAOFF)}, {sr(sT0)}, 17
    s_lshl_b32 {sr(sT1)}, {sr(sHH)}, 16
    s_add_u32 {sr(sAOFF)}, {sr(sAOFF)}, {sr(sT1)}
    s_add_u32 {sr(sAOFF)}, {sr(sAOFF)}, {WS_O}
    """)
    a("s_barrier")
    timestamp(a, 5, opt)
    if opt.get("dbg_span"): dbg_span(a, "e3")
    def oload(kk):
        d = kk % DEPTH
        if kk % 4 == 0:
            a(f"s_add_u32 {sr(sT1)}, {sr(sROT)}, {kk // 4}")
            a(f"s_and_b32 {sr(sT1)}, {sr(sT1)}, 15")
            a(f"s_lshl_b32 {sr(sT1)}, {sr(sT1)}, 12")
            a(f"s_add_u32 {sr(sT1)}, {sr(sT1)}, {sr(sAOFF)}")
        a(f"buffer_load_dwordx4 {vr(OF+4*d,4)}, {vr(vL16)}, {sr(SRD_WS,4)}, {sr(sT1)} offen offset:{(kk%4)*1024} sc1")
        vm.issue(("o", kk))
    for kk in range(DEPTH): oload(kk)
    a(f"s_mov_b32 {sr(sT2)}, {WS_G}")
    a(f"buffer_load_dword {vr(vG)}, v3, {sr(SRD_WS,4)}, {sr(sT2)} offen sc1")
    a(f"buffer_load_dword {vr(vG2)}, v3, {sr(SRD_WS,4)}, {sr(sT2)} offen offset:64 sc1")
    vm.issue(("g", 0)); vm.issue(("g", 1))
    XA = 6 * 16384
    vWA, vRA, vCF = [160, 161, 162, 163], 164, 166
    pre_addr = [f"""v_and_b32 v12, 15, v0                          ; n
    v_lshrrev_b32 v1, 5, v0                        ; g>>1
    v_and_b32 v3, 7, v12
    v_xor_b32 v1, v1, v3""", f"""s_lshl_b32 {sr(sT0)}, {sr(sHH)}, 14
    s_lshl_b32 {sr(sT2)}, {sr(sTQ)}, 12
    s_add_u32 {sr(sT0)}, {sr(sT0)}, {sr(sT2)}
    s_add_u32 {sr(sT0)}, {sr(sT0)}, {XA}
    v_lshlrev_b32 v12, 7, v12
    v_lshl_add_u32 v12, v1, 4, v12""", f"""v_bfe_u32 v1, v0, 4, 1
    v_lshl_add_u32 v12, v1, 3, v12
    v_add_u32 v{vWA[0]}, {sr(sT0)}, v12""", f"""v_xor_b32 v{vWA[1]}, 32, v{vWA[0]}
    v_xor_b32 v{vWA[2]}, 64, v{vWA[0]}
    v_xor_b32 v{vWA[3]}, 96, v{vWA[0]}""", f"""; read / store addresses: row 16w + 8p + (l>>3), chunk l&7
    v_lshrrev_b32 v1, 3, v0
    v_and_b32 v3, 7, v0
    v_xor_b32 v2, v3, v1
    s_lshl_b32 {sr(sT0)}, {sr(sW)}, 4
    v_add_u32 v1, {sr(sT0)}, v1""", f"""v_lshlrev_b32 v12, 7, v1
    v_lshl_add_u32 v12, v2, 4, v12
    v_add_u32 v{vRA}, {XA}, v12""", f"""s_lshl_b32 {sr(sT0)}, {sr(sTB3)}, 7
    v_add_u32 v1, {sr(sT0)}, v1
    v_lshlrev_b32 {vr(vOUT)}, 11, v1
    v_lshl_add_u32 {vr(vOUT)}, v3, 4, {vr(vOUT)}"""]
    pre_gate = [f"""; gate coefficients of this wave's branch: g, or 1 - g rounded like the reference (tokens n and 16 + n)
    v_sub_f32 v2, 1.0, {vr(vG)}
    v_sub_f32 v3, 1.0, {vr(vG2)}
    v_cvt_pk_bf16_f32 v2, v2, v3
    v_and_b32 v3, 0xffff0000, v2
    v_lshlrev_b32 v2, 16, v2""", f"""s_cmp_eq_u32 {sr(sHH)}, 0
    s_cselect_b64 vcc, -1, 0
    s_nop 0
    v_cndmask_b32 v{vCF}, v2, {vr(vG)}, vcc
    v_cndmask_b32 v{vCF+2}, v3, {vr(vG2)}, vcc
    v_mov_b32 v{vCF+1}, v{vCF}
    v_mov_b32 v{vCF+3}, v{vCF+2}"""]
    pre = {4 + k: x for k, x in enumerate(pre_addr)}
    pre[12] = pre_gate[0]; pre[13] = pre_gate[1]
    def wr(hs):
        st, e = divmod(hs, 2)
        win, off = divmod((st % NSLOT) * 16384, 65536)
        r = []
        for c in range(4):
            base = AF + 16 * (hs % 3) + 4 * c
            r.append(f"ds_read_b64_tr_b16 {vr(base,2)}, {vr(vRD[win][c])} offset:{off + e*4096}")
            r.append(f"ds_read_b64_tr_b16 {vr(base+2,2)}, {vr(vRD[win][c])} offset:{off + e*4096 + 1024}")
        return r
    for x in wr(0) + wr(1): a(x)
    pend = []
    for hs in range(32):
        bar = hs in (10, 18)
        k0, k1 = 2 * hs, 2 * hs + 1
        if hs == 7 and opt.get("late4", 0):
            sample_mailbox(a, sMB2, 0xffffffff)
        if bar:
            need = ("w", 7) if hs == 10 else ("w", 15)
            n = vm.wait_count(lambda t: t in (need, ("o", k0)))
            a(f"s_waitcnt vmcnt({n}) lgkmcnt(0)")
            if hs == 10 and opt.get("late4", 0):
                go = a.label("go3")
                a(f"s_cmp_eq_u32 {sr(sW)}, 0")
                a(f"s_cbranch_scc0 {go}")
                a("s_waitcnt vmcnt(6)")
                poll_o(False)
                a(f"{go}:")
            a("s_barrier")
            if hs == 10:
                pend = [(i, h) for i in range(10, 16) for h in range(2)]
        else:
            n = vm.wait_count(lambda t: t == ("o", k0))
            a(f"s_waitcnt vmcnt({n}) lgkmcnt({8 if hs < 31 else 0})")
        nxt = wr(hs + 2) if hs + 2 < 32 else []
        for th in range(2):
            kk = 2 * hs + th
            if th == 1:
                n = vm.wait_count(lambda t: t == ("o", kk))
                a(f"s_waitcnt vmcnt({n})")
            for c in range(4):
                acc = ACC3 + 4 * (4 * th + c)
                cin = "0" if hs == 0 else vr(acc, 4)
                a(f"v_mfma_f32_16x16x32_bf16 {vr(acc,4)}, {vr(AF+16*(hs%3)+4*c,4)}, {vr(OF+4*(kk%DEPTH),4)}, {cin}")
                g = 4 * th + c
                if g < len(nxt): a(nxt[g])
            if kk + DEPTH < 64:
                oload(kk + DEPTH)
            if th == 1 and hs in pre:
                a(pre[hs])
            for i, h in pend[:1]:
                for x in wo_piece(i, h): a(x)
                vm.issue(("w", i))
            pend = pend[1:]
    timestamp(a, 6, opt)
    a("s_nop 7")
    for th in range(2):
        for c in range(4):
            b = ACC3 + 4 * (4 * th + c)
            cf = vr(vCF + 2 * th, 2)
            a(f"v_pk_mul_f32 {vr(b,2)}, {vr(b,2)}, {cf}")
            a(f"v_pk_mul_f32 {vr(b+2,2)}, {vr(b+2,2)}, {cf}")
            a(f"v_cvt_pk_bf16_f32 v{b}, v{b}, v{b+1}")
            a(f"v_cvt_pk_bf16_f32 v{b+1}, v{b+2}, v{b+3}")
            a(f"ds_write_b64 v{vWA[c]}, {vr(b,2)} offset:{th * 2048}")
    a(f"""
    s_lshl_b32 {sr(sT0)}, {sr(sCB)}, 7
    s_add_u32 {sr(sT1)}, {sr(sT0)}, {8 * 2048}
    s_waitcnt lgkmcnt(0)
    s_barrier
    ds_read_b128 v[16:19], v{vRA}
    ds_read_b128 v[20:23], v{vRA} offset:16384
    ds_read_b128 v[24:27], v{vRA} offset:1024
    ds_read_b128 v[28:31], v{vRA} offset:{16384 + 1024}
    """)
    for p_ in range(2):
        a(f"s_waitcnt lgkmcnt({2 if p_ == 0 else 0})")
        A, B, O = 16 + 8 * p_, 20 + 8 * p_, 32 + 4 * p_
        for i in range(4):
            a(f"v_lshlrev_b32 v48, 16, v{A+i}")
            a(f"v_and_b32 v49, 0xffff0000, v{A+i}")
            a(f"v_lshlrev_b32 v50, 16, v{B+i}")
            a(f"v_and_b32 v51, 0xffff0000, v{B+i}")
            a(f"v_pk_add_f32 v[48:49], v[48:49], v[50:51]")
            a(f"v_cvt_pk_bf16_f32 v{O+i}, v48, v49")
        a(f"buffer_store_dwordx4 {vr(O,4)}, {vr(vOUT)}, {sr(SRD_OUT,4)}, {sr(sT0 if p_ == 0 else sT1)} offen {opt.get('outflag', 'sc1')}")

def phase3(a, opt):
    vm = VmTracker()
    ACC3, AF, OF, DEPTH, NSLOT = 16, 48, 72, opt.get("depth", 12), NSLOT3
    vRD = [7, 8, 9, 11, 4, 5]
    vG, vOUT = 14, 13
    sample_mailbox(a, sMB2, 0xffffffff)
    a("s_waitcnt vmcnt(0)")
    a("s_barrier")
    timestamp(a, 4, opt)
    np_ = a.label("np3")
    a(f"s_cmp_eq_u32 {sr(sW)}, 0")
    a(f"s_cbranch_scc0 {np_}")
    a(f"""
    s_lshl_b32 {sr(sT0)}, {sr(sTB)}, 12
    s_lshl_b32 {sr(sT1)}, {sr(sHP)}, 2
    s_add_u32 {sr(sT0)}, {sr(sT0)}, {sr(sT1)}
    s_add_u32 {sr(sT0)}, {sr(sT0)}, {WS_MB2}
    v_lshlrev_b32 v12, 7, v0
    v_mov_b32 v15, 1
    s_mov_b32 exec_lo, -1
    s_mov_b32 exec_hi, 0
    buffer_store_dword v15, v12, {sr(SRD_WS,4)}, {sr(sT0)} offen sc1
    s_mov_b64 exec, -1
    """)
    poll = a.label("poll3"); done = a.label("pd3")
    a(f"""
    s_mov_b32 {sr(sT1)}, 400000
    s_lshr_b32 {sr(sT2)}, {sr(sTB3)}, 1
    s_cmp_eq_u32 {sr(sT2)}, {sr(sTB)}
    s_cselect_b32 {sr(sT2)}, 1, 0
    s_lshl_b32 {sr(sT2)}, {sr(sT2)}, {sr(sHP)}
    s_mov_b32 exec_lo, -1
    s_mov_b32 exec_hi, 0
    """)
    a(f"{poll}:")
    a(f"v_cmp_eq_u32 vcc, 1, {vr(vPV)}")
    a("s_nop 3")
    a(f"s_or_b32 {sr(sT3)}, vcc_lo, {sr(sT2)}")
    a(f"s_cmp_eq_u32 {sr(sT3)}, -1")
    a(f"s_cbranch_scc1 {done}")
    a(f"s_sub_u32 {sr(sT1)}, {sr(sT1)}, 1")
    a(f"s_cbranch_scc1 {done}")
    a(f"buffer_load_dword {vr(vPV)}, {vr(vPA)}, {sr(SRD_WS,4)}, {sr(sMB2)} offen sc1")
    a("s_waitcnt vmcnt(0)")
    a(f"s_branch {poll}")
    a(f"{done}:")
    a("s_mov_b64 exec, -1")
    a(f"{np_}:")
    def wdma(i):
        for half in range(2):
            for x in wo_piece(i, half): a(x)
            vm.issue(("w", i))
    wdma(6); wdma(7)
    a(f"""
    v_and_b32 v12, 31, v0
    s_lshl_b32 {sr(sT0)}, {sr(sTB3)}, 7
    s_lshl_b32 {sr(sT2)}, {sr(sTQ)}, 5
    s_add_u32 {sr(sT0)}, {sr(sT0)}, {sr(sT2)}
    v_add_u32 v12, {sr(sT0)}, v12                  ; token
    v_lshlrev_b32 v3, 2, v12
    v_lshrrev_b32 {vr(vG)}, 5, v0                  ; h
    v_lshlrev_b32 {vr(vOUT)}, 11, v12
    v_lshl_add_u32 {vr(vOUT)}, {vr(vG)}, 4, {vr(vOUT)}
    v_bfe_u32 v15, v0, 2, 2                        ; r
    v_lshl_add_u32 v12, {vr(vG)}, 2, v15           ; 4h + r
    v_lshlrev_b32 v2, 7, v12
    v_and_b32 v12, 1, v0                           ; h'
    v_bfe_u32 v1, v0, 1, 1                         ; a
    v_bfe_u32 v5, v0, 4, 1                         ; g
    v_lshl_add_u32 v12, v5, 1, v12                 ; chunk16 = 2g + h'
    v_lshrrev_b32 v15, 1, v15
    v_lshlrev_b32 v15, 2, v15
    v_xor_b32 v12, v12, v15
    v_lshl_add_u32 v2, v12, 4, v2
    v_lshl_add_u32 v2, v1, 3, v2
    s_lshl_b32 {sr(sT0)}, {sr(sHH)}, 13
    v_add_u32 v{vRD[0]}, {sr(sT0)}, v2
    v_xor_b32 v{vRD[1]}, 64, v{vRD[0]}
    v_add_u32 v{vRD[2]}, 0x10000, v{vRD[0]}
    v_add_u32 v{vRD[3]}, 0x10000, v{vRD[1]}
    v_add_u32 v{vRD[4]}, 0x20000, v{vRD[0]}
    v_add_u32 v{vRD[5]}, 0x20000, v{vRD[1]}
    s_lshl_b32 {sr(sT0)}, {sr(sTB3)}, 2
    s_add_u32 {sr(sT0)}, {sr(sT0)}, {sr(sTQ)}
    s_lshl_b32 {sr(sAOFF)}, {sr(sT0)}, 17
    s_lshl_b32 {sr(sT1)}, {sr(sHH)}, 16
    s_add_u32 {sr(sAOFF)}, {sr(sAOFF)}, {sr(sT1)}
    s_add_u32 {sr(sAOFF)}, {sr(sAOFF)}, {WS_O}
    """)
    a("s_barrier")
    timestamp(a, 5, opt)
    if opt.get("dbg_span"): dbg_span(a, "e3")
    def oload(kk):
        d = kk % DEPTH
        if kk % 4 == 0:
            a(f"s_add_u32 {sr(sT1)}, {sr(sROT)}, {kk // 4}")
            a(f"s_and_b32 {sr(sT1)}, {sr(sT1)}, 15")
            a(f"s_lshl_b32 {sr(sT1)}, {sr(sT1)}, 12")
            a(f"s_add_u32 {sr(sT1)}, {sr(sT1)}, {sr(sAOFF)}")
        if opt.get("p3_noload") and kk >= DEPTH: return
        sc = "" if opt.get("p3_plain") else " sc1"
        a(f"buffer_load_dwordx4 {vr(OF+4*d,4)}, {vr(vL16)}, {sr(SRD_WS,4)}, {sr(sT1)} offen offset:{(kk%4)*1024}{sc}")
        vm.issue(("o", kk))
    for kk in range(DEPTH): oload(kk)
    a(f"s_mov_b32 {sr(sT2)}, {WS_G}")
    a(f"buffer_load_dword {vr(vG)}, v3, {sr(SRD_WS,4)}, {sr(sT2)} offen sc1")
    vm.issue(("g", 0))
    def wreads(st, ks, set_):
        r = []
        slot = st % NSLOT
        win, off = divmod(slot * 16384, 65536)
        for ct in range(2):
            base = AF + 8 * set_ + 4 * ct
            reg = vRD[2 * win + ct]
            r.append(f"ds_read_b64_tr_b16 {vr(base,2)}, {vr(reg)} offset:{off + ks*2048}")
            r.append(f"ds_read_b64_tr_b16 {vr(base+2,2)}, {vr(reg)} offset:{off + ks*2048+1024}")
        return r
    def wr(kk): return wreads(kk // 4, kk % 4, kk % 3)
    for x in wr(0) + wr(1): a(x)
    pend = []
    for st in range(16):
        for ks in range(4):
            kk = 4 * st + ks
            d = kk % DEPTH
            cur = kk % 3
            bar = ks == 2 and st in (5, 9)
            if bar:
                need = ("w", 7) if st == 5 else ("w", 15)
                n = vm.wait_count(lambda t: t in (need, ("o", kk)))
                a(f"s_waitcnt vmcnt({n}) lgkmcnt(0)")
                a("s_barrier")
                if st == 5:
                    pend = [(i, h) for i in range(10, 16) for h in range(2)]
            else:
                n = vm.wait_count(lambda t: t == ("o", kk))
                a(f"s_waitcnt vmcnt({n}) lgkmcnt({4 if kk < 63 else 0})")
            nxt = wr(kk + 2) if kk + 2 < 64 else []
            if opt.get("p3prio", 0) and kk % 16 == 0:
                a(f"s_setprio {3 - kk // 16}")
            for ct in range(2):
                c = "0" if kk == 0 else vr(ACC3+16*ct,16)
                a(f"v_mfma_f32_32x32x16_bf16 {vr(ACC3+16*ct,16)}, {vr(AF+8*cur+4*ct,4)}, {vr(OF+4*d,4)}, {c}")
                for x in nxt[2*ct:2*ct+2]: a(x)
            if kk + DEPTH < 64:
                oload(kk + DEPTH)
            for i, h in pend[:2]:
                if opt.get("p3_nowo"): continue
                for x in wo_piece(i, h): a(x)
                vm.issue(("w", i))
            pend = pend[2:]
    timestamp(a, 6, opt)
    if opt.get("fullrow", 1):
        XA = 6 * 16384
        a(f"""
        v_sub_f32 v2, 1.0, {vr(vG)}
        v_cvt_pk_bf16_f32 v2, v2, v2
        v_lshlrev_b32 v2, 16, v2
        s_cmp_eq_u32 {sr(sHH)}, 0
        s_cselect_b64 vcc, -1, 0
        v_and_b32 v12, 31, v0                          ; t
        v_lshrrev_b32 v1, 5, v0                        ; h'
        v_cndmask_b32 v60, v2, {vr(vG)}, vcc
        v_and_b32 v3, 7, v12
        v_xor_b32 v1, v1, v3
        v_mov_b32 v61, v60
        s_lshl_b32 {sr(sT0)}, {sr(sHH)}, 14
        s_lshl_b32 {sr(sT1)}, {sr(sTQ)}, 12
        s_add_u32 {sr(sT0)}, {sr(sT0)}, {sr(sT1)}
        s_add_u32 {sr(sT0)}, {sr(sT0)}, {XA}
        v_lshlrev_b32 v12, 7, v12
        v_lshl_add_u32 v12, v1, 4, v12
        v_add_u32 v12, {sr(sT0)}, v12
        v_xor_b32 v56, 32, v12
        v_xor_b32 v57, 64, v12
        v_xor_b32 v58, 96, v12
        """)
        for ct in range(2):
            b = ACC3 + 16 * ct
            for i in range(8):
                a(f"v_pk_mul_f32 {vr(b+2*i,2)}, {vr(b+2*i,2)}, v[60:61]")
            for i in range(8):
                a(f"v_cvt_pk_bf16_f32 v{b+i}, v{b+2*i}, v{b+2*i+1}")
            a(f"ds_write_b128 v{12 if ct == 0 else 57}, {vr(b,4)}")
            a(f"ds_write_b128 v{56 if ct == 0 else 58}, {vr(b+4,4)}")
        a(f"""
        v_lshrrev_b32 v1, 3, v0
        v_and_b32 v3, 7, v0
        v_xor_b32 v2, v3, v1
        s_lshl_b32 {sr(sT0)}, {sr(sW)}, 4
        v_add_u32 v1, {sr(sT0)}, v1                    ; row (p = 0)
        v_lshlrev_b32 v12, 7, v1
        v_lshl_add_u32 v12, v2, 4, v12
        v_add_u32 v12, {XA}, v12
        s_lshl_b32 {sr(sT0)}, {sr(sTB3)}, 7
        v_add_u32 v1, {sr(sT0)}, v1                    ; token
        v_lshlrev_b32 {vr(vOUT)}, 11, v1
        v_lshl_add_u32 {vr(vOUT)}, v3, 4, {vr(vOUT)}
        s_lshl_b32 {sr(sT0)}, {sr(sCB)}, 7
        s_add_u32 {sr(sT1)}, {sr(sT0)}, {8 * 2048}
        s_waitcnt lgkmcnt(0)
        s_barrier
        ds_read_b128 v[16:19], v12
        ds_read_b128 v[20:23], v12 offset:16384
        ds_read_b128 v[24:27], v12 offset:1024
        ds_read_b128 v[28:31], v12 offset:{16384 + 1024}
        """)
        for p_ in range(2):
            a(f"s_waitcnt lgkmcnt({2 if p_ == 0 else 0})")
            A, B, O = 16 + 8 * p_, 20 + 8 * p_, 32 + 4 * p_
            for i in range(4):
                a(f"v_lshlrev_b32 v48, 16, v{A+i}")
                a(f"v_and_b32 v49, 0xffff0000, v{A+i}")
                a(f"v_lshlrev_b32 v50, 16, v{B+i}")
                a(f"v_and_b32 v51, 0xffff0000, v{B+i}")
                a(f"v_pk_add_f32 v[48:49], v[48:49], v[50:51]")
                a(f"v_cvt_pk_bf16_f32 v{O+i}, v48, v49")
            a(f"buffer_store_dwordx4 {vr(O,4)}, {vr(vOUT)}, {sr(SRD_OUT,4)}, {sr(sT0 if p_ == 0 else sT1)} offen {opt.get('outflag', 'sc1')}")
        return
    XA = 6 * 16384
    a(f"""
    s_lshl_b32 {sr(sT0)}, {sr(sTQ)}, 12
    s_lshl_b32 {sr(sT1)}, {sr(sHH)}, 11
    s_add_u32 {sr(sT2)}, {sr(sT0)}, {sr(sT1)}
    s_xor_b32 {sr(sT1)}, {sr(sT1)}, 2048
    s_add_u32 {sr(sT3)}, {sr(sT0)}, {sr(sT1)}
    s_add_u32 {sr(sT2)}, {sr(sT2)}, {XA}
    s_add_u32 {sr(sT3)}, {sr(sT3)}, {XA}
    v_add_u32 v12, {sr(sT2)}, {vr(vL16)}
    v_add_u32 v1, {sr(sT3)}, {vr(vL16)}
    v_sub_f32 v2, 1.0, {vr(vG)}
    v_cvt_pk_bf16_f32 v2, v2, v2
    v_lshlrev_b32 v2, 16, v2
    s_lshl_b32 {sr(sT0)}, {sr(sCB)}, 7
    s_lshl_b32 {sr(sT1)}, {sr(sHH)}, 6
    s_add_u32 {sr(sT0)}, {sr(sT0)}, {sr(sT1)}
    """)
    brb, fin = a.label("brb"), a.label("fin")
    a(f"s_cmp_eq_u32 {sr(sHH)}, 0")
    a(f"s_cbranch_scc0 {brb}")
    for br in range(2):
        K, S_ = ACC3 + 16 * br, ACC3 + 16 * (br ^ 1)
        own, rcv = (vG, 2) if br == 0 else (2, vG)
        a(f"v_mov_b32 v60, v{own}\nv_mov_b32 v61, v{own}\nv_mov_b32 v62, v{rcv}\nv_mov_b32 v63, v{rcv}")
        for i in range(8):
            a(f"v_cvt_pk_bf16_f32 v{48+i}, v{S_+2*i}, v{S_+2*i+1}")
        a("ds_write_b128 v12, v[48:51]")
        a("ds_write_b128 v12, v[52:55] offset:1024")
        a("s_waitcnt lgkmcnt(0)")
        a("s_barrier")
        a("ds_read_b128 v[48:51], v1")
        a("ds_read_b128 v[52:55], v1 offset:1024")
        for i in range(8):
            if i == 0: a("s_waitcnt lgkmcnt(1)")
            if i == 4: a("s_waitcnt lgkmcnt(0)")
            a(f"v_lshlrev_b32 v56, 16, v{48+i}")
            a(f"v_and_b32 v57, 0xffff0000, v{48+i}")
            a(f"v_pk_mul_f32 v[56:57], v[56:57], v[62:63]")
            a(f"v_pk_fma_f32 v[56:57], {vr(K+2*i,2)}, v[60:61], v[56:57]")
            if opt.get("perturb") and br == 0 and i == 0:
                a(f"s_cmp_eq_u32 s2, 0")
                a(f"s_cselect_b32 {sr(sT1)}, {hex(f2u(opt['perturb']))}, 0")
                a(f"s_cmp_eq_u32 {sr(sW)}, 0")
                a(f"s_cselect_b32 {sr(sT1)}, {sr(sT1)}, 0")
                a(f"v_mov_b32 v58, {sr(sT1)}")
                a(f"v_cmp_eq_u32 vcc, 0, v0")
                a("s_nop 1")
                a(f"v_cndmask_b32 v58, 0, v58, vcc")
                a(f"v_add_f32 v56, v56, v58")
            a(f"v_cvt_pk_bf16_f32 v{K+i}, v56, v57")
            if i == 3:
                a(f"buffer_store_dwordx4 {vr(K,4)}, {vr(vOUT)}, {sr(SRD_OUT,4)}, {sr(sT0)} offen {opt.get('outflag', 'sc1')}")
        a(f"buffer_store_dwordx4 {vr(K+4,4)}, {vr(vOUT)}, {sr(SRD_OUT,4)}, {sr(sT0)} offen offset:32 {opt.get('outflag', 'sc1')}")
        if br == 0:
            a(f"s_branch {fin}")
            a(f"{brb}:")
    a(f"{fin}:")

def fallback(a, opt):
    MX = NM
    a(f"s_lshl_b32 {sr(sT0)}, {sr(sHP)}, 1")
    a(f"s_add_u32 {sr(sT0)}, {sr(sT0)}, {sr(sHH)}")
    a(f"s_lshl_b32 {sr(sBLK)}, {sr(sT0)}, 18")
    for i in range(32): a(f"v_mov_b32 v{OA+i}, 0")
    for i in range(8): a(f"v_mov_b32 v{LA+i}, 0")
    a(f"v_mov_b32 v{MX}, 0xff800000")
    a(f"v_mov_b32 v{MX+16}, 0xff800000")
    a(f"s_mov_b32 {sr(sJ)}, 0")
    loop = a.label("fb")
    a(f"{loop}:")
    a(f"buffer_load_dwordx4 {vr(KF,4)}, {vr(vL16)}, {sr(SRD_WS,4)}, {sr(sBLK)} offen sc1")
    a(f"buffer_load_dwordx4 {vr(KF+4,4)}, {vr(vL16)}, {sr(SRD_WS,4)}, {sr(sBLK)} offen offset:1024 sc1")
    a(f"buffer_load_dwordx4 {vr(VF,4)}, {vr(vL16)}, {sr(SRD_WS,4)}, {sr(sBLK)} offen offset:2048 sc1")
    a(f"buffer_load_dwordx4 {vr(VF+4,4)}, {vr(vL16)}, {sr(SRD_WS,4)}, {sr(sBLK)} offen offset:3072 sc1")
    a("s_waitcnt vmcnt(0)")
    for x in range(2):
        S, Q, O, L, mx = SS, QF + 8 * x, OA + 16 * x, LA + 4 * x, MX + 16 * x
        a(f"v_mfma_f32_32x32x16_bf16 {vr(S,16)}, {vr(KF,4)}, {vr(Q,4)}, 0")
        a(f"v_mfma_f32_32x32x16_bf16 {vr(S,16)}, {vr(KF+4,4)}, {vr(Q+4,4)}, {vr(S,16)}")
        a("s_nop 15")
        a(f"v_max3_f32 v12, v{S}, v{S+1}, v{S+2}")
        for i in range(3, 15, 2):
            a(f"v_max3_f32 v12, v12, v{S+i}, v{S+i+1}")
        a(f"v_max_f32 v12, v12, v{S+15}")
        a(f"""
        v_mov_b32 v13, v12
        s_nop 1
        v_permlane32_swap_b32 v13, v12
        s_nop 1
        v_max3_f32 v12, v12, v13, v{mx}
        v_sub_f32 v13, v{mx}, v12
        v_cmp_eq_f32 vcc, v{mx}, v12
        v_exp_f32 v13, v13
        s_nop 1
        v_cndmask_b32 v13, v13, 1.0, vcc
        v_mov_b32 v{mx}, v12
        """)
        for i in range(16):
            a(f"v_mul_f32 v{O+i}, v13, v{O+i}")
        for i in range(4):
            a(f"v_mul_f32 v{L+i}, v13, v{L+i}")
        for i in range(16):
            a(f"v_sub_f32 v{S+i}, v{S+i}, v12")
        for i in range(16):
            a(f"v_exp_f32 v{S+i}, v{S+i}")
        a("s_nop 0")
        for i in range(8):
            a(f"v_cvt_pk_bf16_f32 v{PP+i}, v{S+2*i}, v{S+2*i+1}")
        a("s_nop 1")
        a(f"v_mfma_f32_32x32x16_bf16 {vr(O,16)}, {vr(VF,4)}, {vr(PP,4)}, {vr(O,16)}")
        a(f"v_mfma_f32_32x32x16_bf16 {vr(O,16)}, {vr(VF+4,4)}, {vr(PP+4,4)}, {vr(O,16)}")
        a(smf(L))
        a("s_nop 15")
    a(f"s_add_u32 {sr(sBLK)}, {sr(sBLK)}, 4096")
    a(f"s_add_u32 {sr(sJ)}, {sr(sJ)}, 1")
    a(f"s_cmp_lt_u32 {sr(sJ)}, 64")
    a(f"s_cbranch_scc1 {loop}")
    a(f"v_add_f32 v{LA}, v{LA}, v{LA+1}")
    a(f"v_add_f32 v{LA+4}, v{LA+4}, v{LA+5}")

def gstamp(a, reg):
    a("s_memtime s[70:71]")
    a("s_waitcnt lgkmcnt(0)")
    a("s_mov_b32 s69, m0")
    a("s_mov_b32 m0, s87")
    a(f"v_writelane_b32 v{reg-152}, s70, m0")
    a("s_mov_b32 m0, s69")

def lanestamp(a, reg, opt, lane=None):
    if not opt.get("stamps2"):
        return
    a("s_memtime s[70:71]")
    a("s_waitcnt lgkmcnt(0)")
    if lane == "m":
        a(f"s_mov_b32 s69, m0")
        a(f"s_sub_u32 m0, {sr(sJ)}, 1")
        a(f"v_writelane_b32 v{reg}, s70, m0")
        a(f"s_mov_b32 m0, s69")
    elif lane is None:
        a(f"s_mov_b32 s69, m0")
        a(f"s_mov_b32 m0, {sr(sJ)}")
        a(f"v_writelane_b32 v{reg}, s70, m0")
        a(f"s_mov_b32 m0, s69")
    else:
        a(f"v_writelane_b32 v{reg}, s70, {lane}")

def timestamp(a, idx, opt):
    if not opt.get("stamps"):
        return
    a(f"s_memtime s[70:71]")
    a(f"s_memrealtime s[92:93]")
    a("s_waitcnt lgkmcnt(0)")
    a(f"s_mov_b32 s{72+idx}, s70")
    a(f"s_mov_b32 s{80+idx}, s92")

def stamps_out(a, n, opt):
    if opt.get("stampsg"):
        a(f"""
        s_lshl_b32 {sr(sT1)}, s2, 3
        s_add_u32 {sr(sT1)}, {sr(sT1)}, {sr(sW)}
        s_lshl_b32 {sr(sT1)}, {sr(sT1)}, 10
        s_add_u32 {sr(sT1)}, {sr(sT1)}, {WS_DBG + (12 << 20)}
        v_lshlrev_b32 v12, 2, v0
        buffer_store_dword v52, v12, {sr(SRD_WS,4)}, {sr(sT1)} offen
        buffer_store_dword v53, v12, {sr(SRD_WS,4)}, {sr(sT1)} offen offset:256
        buffer_store_dword v54, v12, {sr(SRD_WS,4)}, {sr(sT1)} offen offset:512
        """)
    if opt.get("stamps2"):
        a(f"""
        s_lshl_b32 {sr(sT1)}, s2, 3
        s_add_u32 {sr(sT1)}, {sr(sT1)}, {sr(sW)}
        s_lshl_b32 {sr(sT1)}, {sr(sT1)}, 10
        s_add_u32 {sr(sT1)}, {sr(sT1)}, {WS_DBG + (10 << 20)}
        v_lshlrev_b32 v12, 2, v0
        buffer_store_dword v200, v12, {sr(SRD_WS,4)}, {sr(sT1)} offen
        buffer_store_dword v201, v12, {sr(SRD_WS,4)}, {sr(sT1)} offen offset:256
        buffer_store_dword v202, v12, {sr(SRD_WS,4)}, {sr(sT1)} offen offset:512
        buffer_store_dword v203, v12, {sr(SRD_WS,4)}, {sr(sT1)} offen offset:768
        """)
    if not opt.get("stamps"):
        return
    a(f"""
    s_lshl_b32 {sr(sT1)}, s2, 3
    s_add_u32 {sr(sT1)}, {sr(sT1)}, {sr(sW)}
    s_lshl_b32 {sr(sT1)}, {sr(sT1)}, 6
    s_add_u32 {sr(sT1)}, {sr(sT1)}, {WS_DBG + (8 << 20)}
    v_mov_b32 v13, 0
    """)
    for i in range(n):
        a(f"v_writelane_b32 v13, s{72+i}, {i}")
        a(f"v_writelane_b32 v13, s{80+i}, {8+i}")
    a(f"""
    v_lshlrev_b32 v12, 2, v0
    v_cmp_gt_u32 vcc, 16, v0
    s_and_saveexec_b64 {sr(sM,2)}, vcc
    buffer_store_dword v13, v12, {sr(SRD_WS,4)}, {sr(sT1)} offen
    s_mov_b64 exec, {sr(sM,2)}
    """)

def span3(a, opt, off):
    if not opt.get("span3"): return
    sk = a.label("sk3")
    a(f"s_cmp_eq_u32 s2, {opt['span3']}")
    a(f"s_cbranch_scc0 {sk}")
    a(f"s_cmp_eq_u32 {sr(sW)}, 0")
    a(f"s_cbranch_scc0 {sk}")
    a("s_memrealtime s[92:93]")
    a("s_waitcnt lgkmcnt(0)")
    a(f"v_mov_b32 v12, s92")
    a(f"s_mov_b32 s93, {off}")
    a("s_mov_b64 exec, 1")
    a(f"buffer_store_dword v12, off, {sr(SRD_DBG,4)}, s93 sc1")
    a("s_mov_b64 exec, -1")
    a(f"{sk}:")

def dbg_span(a, which):
    w = {"start": 4, "gemm": 12, "attn": 20, "end": 28, "e3": 36, "g0": 44, "hook": 52, "karg": 20, "dma": 36, "prew": 52, "smax": 60}[which]
    sk = a.label("sk")
    a(f"s_cmp_eq_u32 {sr(sW)}, 0")
    a(f"s_cbranch_scc0 {sk}")
    a("s_memrealtime s[92:93]")
    a("s_waitcnt lgkmcnt(0)")
    a(f"v_mov_b32 v12, s92")
    a(f"s_mov_b32 s93, {w}")
    a("s_mov_b64 exec, 1")
    a(f"buffer_atomic_umax v12, off, {sr(SRD_DBG,4)}, s93 sc1")
    a("s_mov_b64 exec, -1")
    a(f"{sk}:")

OPT = {}
def k12(opt):
    OPT.clear(); OPT.update(opt)
    a = Asm()
    a(f".globl {NAME12}\n.p2align 8\n.type {NAME12},@function\n{NAME12}:")
    timestamp(a, 0, opt)
    if opt.get("dbg_span") or opt.get("span2") or opt.get("span3"):
        a("s_memrealtime s[84:85]")
    extras = prologue(a, opt)
    if opt.get("dbg_span"):
        sk = a.label("sk")
        a(f"s_cmp_eq_u32 {sr(sW)}, 0")
        a(f"s_cbranch_scc0 {sk}")
        a("s_waitcnt lgkmcnt(0)")
        a("s_not_b32 s84, s84")
        a("v_mov_b32 v12, s84")
        a("s_mov_b32 s93, 4")
        a("s_mov_b64 exec, 1")
        a(f"buffer_atomic_umax v12, off, {sr(SRD_DBG,4)}, s93 sc1")
        a("s_mov_b64 exec, -1")
        a(f"{sk}:")
    gemm(a, opt, extras)
    if opt.get("dbg_span") or opt.get("span2"): dbg_span(a, "gemm")
    span3(a, opt, 44)
    if opt.get("stamps_start"):
        timestamp(a, 7, opt)
        opt = dict(opt); opt["stamps"] = 0
        gemm_epilogue(a, opt)
        a("s_waitcnt vmcnt(0) lgkmcnt(0)")
        opt["stamps"] = 1
        stamps_out(a, 8, opt)
        a("L_end12:\ns_endpgm")
        return a.text()
    timestamp(a, 1, opt)
    gemm_epilogue(a, opt)
    if opt.get("stop_after_gemm"):
        a("s_waitcnt vmcnt(0) lgkmcnt(0)")
        timestamp(a, 2, opt)
        stamps_out(a, 3, opt)
    else:
        timestamp(a, 2, opt)
        attention(a, opt)
        timestamp(a, 3, opt)
        if opt.get("dbg_span"): dbg_span(a, "attn")
        span3(a, opt, 52)
        attn_epilogue(a, opt)
        if opt.get("fused"):
            (phase3_16 if opt.get("p16", 1) else phase3)(a, opt)
            if opt.get("stamps"):
                a("s_waitcnt vmcnt(0)")
                timestamp(a, 7, opt)
            stamps_out(a, 8, opt)
            if opt.get("span3"):
                a("s_waitcnt vmcnt(0)")
                span3(a, opt, 60)
            if opt.get("dbg_span") or opt.get("span2"):
                a("s_waitcnt vmcnt(0)")
                dbg_span(a, "end")
        else:
            a("s_waitcnt vmcnt(0)")
            timestamp(a, 4, opt)
            stamps_out(a, 5, opt)
    a("L_end12:\ns_endpgm")
    return a.text()

KD12 = f"""
.section .rodata,"a"
.p2align 6
.amdhsa_kernel {NAME12}
  .amdhsa_next_free_vgpr 256
  .amdhsa_next_free_sgpr 102
  .amdhsa_accum_offset 256
  .amdhsa_group_segment_fixed_size 0
  .amdhsa_kernarg_size 80
  .amdhsa_user_sgpr_count 2
  .amdhsa_user_sgpr_kernarg_segment_ptr 1
  .amdhsa_system_sgpr_workgroup_id_x 1
  .amdhsa_float_denorm_mode_32 3
.end_amdhsa_kernel
"""
```

```python
import sys, json
sys.path.insert(0, 'gen'); sys.path.insert(0, 'tools')
import build, k12, k3
from asmutil import metadata, assemble
out = sys.argv[1]
opt = json.loads(sys.argv[2]) if len(sys.argv) > 2 else {}
s = build.build(opt)
s += metadata([(k12.NAME12, 80, 102, 256, 512)] + ([] if opt.get("fused") else [(k3.NAME3, 80, 96, 128, 512)]))
open(out.replace('.co', '.s'), 'w').write(s)
assemble(out.replace('.co', '.s'), out)
print("built", out)
```
